```python
import torch

def _softmax(x, axis=-1):
    return torch.softmax(x, dim=axis)
def _gelu(x):
    return torch.nn.functional.gelu(x, approximate="tanh")
def _silu(x):
    return torch.nn.functional.silu(x)
def _sigmoid(x):
    return torch.sigmoid(x)
def _layernorm(x, axis=-1, eps=1e-5):
    m = x.mean(dim=axis, keepdim=True)
    v = x.var(dim=axis, keepdim=True, unbiased=False)
    return (x - m) / torch.sqrt(v + eps)
def _scatter_add(tgt, idx, src, axis=0):
    return tgt.clone().index_add_(axis, idx, src)
def _segment_sum(src, seg, n):
    out = torch.zeros((n,) + src.shape[1:], dtype=src.dtype)
    return out.index_add_(0, seg, src)
def _pad(x, pw):
    flat = tuple(v for pair in reversed(pw) for v in pair)
    return torch.nn.functional.pad(x, flat)

kernel_name = 'gated_mix__softmax_full_mha__mixer_s_mlp__prompt'

def setup_inputs():

    _w = (lambda a: (lambda t: t.to(torch.bfloat16) if t.is_floating_point() else t)(torch.as_tensor(a)))
    def _A_setup():
        B, S, D = 1, 2048, 1024
        return {
            "x": _w((lambda *s: torch.randn(*s, dtype=torch.bfloat16) * 0.1)(B, S, D)),
            "wqkv": _w((lambda *s: torch.randn(*s, dtype=torch.bfloat16) * 0.4)(D, 3 * D)),
            "wo": _w((lambda *s: torch.randn(*s, dtype=torch.bfloat16) * 0.4)(D, D)),
        }
    _A_in = _A_setup()

    def _B_setup():
        B, S, D, F = 1, 2048, 1024, 3584
        return {
            "x":  _w((lambda *s: torch.randn(*s, dtype=torch.bfloat16) * 0.1)(B, S, D)),
            "w1": _w((lambda *s: torch.randn(*s, dtype=torch.bfloat16) * 3.2)(D, D) * (D ** -0.5)),
            "w2": _w((lambda *s: torch.randn(*s, dtype=torch.bfloat16) * 3.2)(D, D) * (D ** -0.5)),
            "w3": _w((lambda *s: torch.randn(*s, dtype=torch.bfloat16) * 3.2)(D, F) * (D ** -0.5)),
            "w4": _w((lambda *s: torch.randn(*s, dtype=torch.bfloat16) * 3.2)(F, D) * (F ** -0.5)),
        }
    _B_in = _B_setup()

    return {
        "A_x": _A_in["x"],
        "A_wqkv": _A_in["wqkv"],
        "A_wo": _A_in["wo"],
        "B_x": _B_in["x"],
        "B_w1": _B_in["w1"],
        "B_w2": _B_in["w2"],
        "B_w3": _B_in["w3"],
        "B_w4": _B_in["w4"],
        "gate_w": _w((lambda *s: torch.randn(*s, dtype=torch.bfloat16) * 0.4)(1024) * 16.0),
    }

def reference(A_x, A_wqkv, A_wo, B_x, B_w1, B_w2, B_w3, B_w4, gate_w):
    def _A_ref(x, wqkv, wo):
        B, S, D = x.shape
        H = 32; Dh = D // H
        qkv = (lambda x, *d: x.permute(*d))((x @ wqkv).reshape(B, S, 3, H, Dh), 2, 0, 3, 1, 4)
        q, k, v = qkv[0], qkv[1], qkv[2]
        scale = Dh ** -0.5
        scores = torch.einsum("bhqd,bhkd->bhqk", q, k) * scale
        p = _softmax(scores, axis=-1)
        o = torch.einsum("bhqk,bhkd->bhqd", p, v)
        return (lambda x, *d: x.permute(*d))(o, 0, 2, 1, 3).reshape(B, S, D) @ wo

    def _B_ref(x, w1, w2, w3, w4):
        B, S, D = x.shape
        h = _gelu(_layernorm(x, axis=-1) @ w1)
        c = D // 4
        g0 = _pad(h[:, :, 0*c:1*c], ((0, 0), (1, 0), (0, 0)))[:, :S, :]
        g1 = _pad(h[:, :, 1*c:2*c], ((0, 0), (0, 1), (0, 0)))[:, 1:, :]
        g2 = _pad(h[:, :, 2*c:3*c], ((0, 0), (2, 0), (0, 0)))[:, :S, :]
        g3 = _pad(h[:, :, 3*c:   ], ((0, 0), (0, 2), (0, 0)))[:, 2:, :]
        hs = torch.concatenate([g0, g1, g2, g3], axis=-1) @ w2
        x1 = x + hs
        h2 = _gelu(_layernorm(x1, axis=-1) @ w3) @ w4
        return x1 + h2

    x = A_x
    g = _sigmoid((x * gate_w).sum(-1, keepdims=True))
    a = _A_ref(x, A_wqkv, A_wo)
    b = _B_ref(x, B_w1, B_w2, B_w3, B_w4)
    return g * a + (1 - g) * b
```

```python
import re

REG_RE = re.compile(r'^(-|\|)?(abs\()?([vsa])(\d+|\[(\d+):(\d+)\])\)?\|?$')

def parse_reg(tok):
    t = tok.strip()
    if t.startswith('-'): t = t[1:]
    if t.startswith('abs(') and t.endswith(')'): t = t[4:-1]
    if t.startswith('|') and t.endswith('|'): t = t[1:-1]
    if t in ('vcc', 'exec'): return [t + '_lo', t + '_hi']
    if t in ('vcc_lo', 'vcc_hi', 'exec_lo', 'exec_hi', 'm0', 'scc'): return [t]
    m = re.match(r'^([vsa])(\d+)$', t)
    if m: return [m.group(1) + m.group(2)]
    m = re.match(r'^([vsa])\[(\d+):(\d+)\]$', t)
    if m: return [m.group(1) + str(i) for i in range(int(m.group(2)), int(m.group(3)) + 1)]
    return []

TRANS = ('v_exp_f32', 'v_log_f32', 'v_rcp_f32', 'v_rsq_f32', 'v_sqrt_f32', 'v_sin_f32', 'v_cos_f32',
         'v_exp_f16', 'v_rcp_f16', 'v_rcp_iflag_f32')

def split_ops(s):
    out = []; depth = 0; cur = ''
    for ch in s:
        if ch in '[(': depth += 1
        if ch in '])': depth -= 1
        if ch == ',' and depth == 0:
            out.append(cur.strip()); cur = ''
        else: cur += ch
    if cur.strip(): out.append(cur.strip())
    return out

class Inst:
    def __init__(self, text):
        self.text = text
        self.label = None
        self.defs = set(); self.uses = set()
        self.srcC = set(); self.srcAB = set(); self.sdata = set()
        t = text.split(';')[0].strip()
        if t.endswith(':'):
            self.label = t[:-1]; self.op = ''; self.kind = 'label'; return
        if t.startswith('.') or t == '':
            self.op = ''; self.kind = 'dir'; return
        sp = t.split(None, 1)
        op = sp[0]; rest = sp[1] if len(sp) > 1 else ''
        for suf in ('_e32', '_e64'):
            if op.endswith(suf): op = op[:-4]
        self.op = op
        ops = split_ops(rest)
        mods = ''
        if ops:
            parts = ops[-1].split()
            ops[-1] = parts[0] if parts else ''
            mods = ' '.join(parts[1:])
        self.mods = mods
        self.ops = ops
        R = [parse_reg(o) for o in ops]
        k = None
        if op.startswith('v_mfma') or op.startswith('v_smfmac'):
            k = 'mfma'
            self.defs = set(R[0]); self.srcAB = set(R[1]) | set(R[2])
            if op.startswith('v_smfmac'):
                self.srcC = set(R[0]); self.srcAB |= set(R[3])
            else:
                self.srcC = set(R[3])
            self.uses = self.srcAB | self.srcC
            self.passes = 8 if '32x32' in op else 4
            if op.startswith('v_smfmac'):
                self.passes = 16 if '32x32' in op else 8
        elif op.startswith('v_cmp'):
            k = 'valu'
            self.defs = set(R[0]); self.uses = set(sum(R[1:], []))
            if op.startswith('v_cmpx'): self.defs |= {'exec_lo', 'exec_hi'}
        elif op.startswith('v_'):
            k = 'valu'
            nd = 1
            if op in ('v_add_co_u32', 'v_sub_co_u32', 'v_addc_co_u32', 'v_subb_co_u32', 'v_subrev_co_u32',
                      'v_mad_u64_u32', 'v_div_scale_f32'): nd = 2
            self.defs = set(sum(R[:nd], [])); self.uses = set(sum(R[nd:], []))
            if op.startswith('v_permlane') and 'swap' in op:
                self.defs = set(R[0]) | set(R[1]); self.uses = set(R[0]) | set(R[1])
            if op.startswith('v_fmac') or op.startswith('v_dot2c') or op.startswith('v_pk_fmac') or op == 'v_writelane_b32' \
               or 'UNUSED_PRESERVE' in mods or 'dpp' in op or 'row_' in mods or 'quad_perm' in mods:
                self.uses |= set(R[0])
            if op == 'v_nop': self.defs = set(); self.uses = set()
        elif op.startswith('ds_'):
            k = 'lds'
            if op.startswith('ds_write') or op.startswith('ds_add') or op.startswith('ds_max'):
                self.uses = set(sum(R, []))
            else:
                self.defs = set(R[0]); self.uses = set(sum(R[1:], []))
        elif op.startswith('buffer_') or op.startswith('global_'):
            k = 'vmem'
            toks = mods.split()
            if op in ('buffer_wbl2', 'buffer_inv'):
                pass
            elif 'lds' in toks or op.startswith('global_load_lds'):
                self.uses = set(sum(R, [])) | {'m0'}
                self.dma = True
            elif 'load' in op:
                self.defs = set(R[0]); self.uses = set(sum(R[1:], []))
            elif op.startswith('buffer_store') or op.startswith('buffer_atomic'):
                self.uses = set(sum(R, []))
                if len(R[0]) >= 3: self.sdata = set(R[0])
                if 'atomic' in op and 'sc0' in toks: self.defs = set(R[0])
            elif op.startswith('global_store'):
                self.uses = set(sum(R, []))
                if len(R[1]) >= 3: self.sdata = set(R[1])
            elif op.startswith('global_atomic'):
                if 'sc0' in toks:
                    self.defs = set(R[0]); self.uses = set(sum(R[1:], []))
                else: self.uses = set(sum(R, []))
            else: raise Exception('unknown vmem ' + text)
        elif op.startswith('s_load') or op.startswith('s_memtime') or op.startswith('s_memrealtime') or op.startswith('s_buffer_load') or op.startswith('s_atomic'):
            k = 'smem'
            self.defs = set(R[0]); self.uses = set(sum(R[1:], []))
        elif op in ('s_branch',) or op.startswith('s_cbranch'):
            k = 'branch'; self.target = ops[0]
            if 'vcc' in op: self.uses = {'vcc_lo', 'vcc_hi'}
            if 'exec' in op: self.uses = {'exec_lo', 'exec_hi'}
        elif op in ('s_waitcnt', 's_nop', 's_barrier', 's_endpgm', 's_setprio', 's_sleep', 's_sethalt'):
            k = 'ctl'
        elif op.startswith('s_cmp') or op.startswith('s_bitcmp'):
            k = 'salu'; self.uses = set(sum(R, []))
        elif op.startswith('s_'):
            k = 'salu'
            self.defs = set(R[0]) if R else set(); self.uses = set(sum(R[1:], []))
            if 'saveexec' in op: self.defs |= {'exec_lo', 'exec_hi'}
            if op in ('s_addk_i32', 's_mulk_i32'): self.uses |= set(R[0])
        else:
            raise Exception('unknown op ' + text)
        self.kind = k
        if k == 'valu' and op == 'v_cndmask_b32' and len(ops) == 3: self.uses |= {'vcc_lo', 'vcc_hi'}
    def states(self):
        if self.kind in ('label', 'dir'): return 0
        if self.op == 's_nop': return int(self.ops[0], 0) + 1
        return 1
    @property
    def is_trans(self): return self.op in TRANS
    @property
    def is_dpp(self): return self.kind == 'valu' and ('dpp' in self.op or 'row_' in self.mods or 'quad_perm' in self.mods or 'wave_' in self.mods)
    @property
    def is_dot(self): return self.op.startswith('v_dot')

def sg(regs): return {r for r in regs if r[0] == 's' and r != 'scc' or r.startswith('vcc')}
def vg(regs): return {r for r in regs if (r[0] == 'v' and not r.startswith('vcc')) or r[0] == 'a'}
EXEC = {'exec_lo', 'exec_hi'}

def need_states(p, c):
    n = 0
    pk, ck = p.kind, c.kind
    if pk == 'valu':
        dv = vg(p.defs); ds_ = sg(p.defs); dexec = p.defs & EXEC
        if ck == 'mfma' and dv & c.uses: n = max(n, 3 if p.is_dot else 2)
        if ck == 'mfma' and dexec: n = max(n, 4)
        if ck == 'valu':
            if c.op in ('v_readlane_b32', 'v_readfirstlane_b32') and dv & c.uses: n = max(n, 1)
            if c.op.startswith('v_permlane') and dv & c.uses: n = max(n, 2)
            if c.is_dpp and dv & c.uses: n = max(n, 2)
            if c.is_dpp and dexec: n = max(n, 5)
            if p.is_trans and not c.is_trans and dv & c.uses: n = max(n, 1)
            if p.is_trans and c.is_trans and dv & c.uses: n = max(n, 1)
            if ds_ & c.uses:
                n = max(n, 4 if c.op in ('v_readlane_b32', 'v_writelane_b32', 'v_div_fmas_f32') else 2)
            if dexec and c.op in ('v_readlane_b32', 'v_readfirstlane_b32', 'v_writelane_b32'): n = max(n, 4)
            if dexec and c.op.startswith('v_permlane'): n = max(n, 4)
            if dexec and c.uses & EXEC: n = max(n, 2)
            if p.is_dot and dv & (c.uses | c.defs):
                if c.op == p.op and not (dv & set(sum([parse_reg(o) for o in c.ops[1:3]], []))): pass
                else: n = max(n, 3)
            if ('op_sel' in p.mods or 'sdwa' in p.op or 'dst_sel' in p.mods) and dv & (c.uses | c.defs): n = max(n, 1)
        if p.is_dot and ck in ('vmem', 'lds') and dv & c.uses: n = max(n, 3)
        if p.is_trans and ck in ('vmem', 'lds') and dv & c.uses: n = max(n, 1)
        if ck == 'vmem' and ds_ & c.uses: n = max(n, 5)
        if ck in ('salu', 'smem', 'branch') and (ds_ & c.uses): n = max(n, 2)
        if ck == 'branch' and (p.defs & c.uses): n = max(n, 5)
    if pk == 'mfma':
        D = p.defs; P = p.passes
        big = {4: 8, 8: 12, 16: 20}[P]; ov = {4: 6, 8: 10, 16: 18}[P]; war = {4: 3, 8: 7, 16: 15}[P]
        if ck == 'mfma':
            if D & c.srcAB: n = max(n, big)
            if D & c.srcC:
                if not (D == c.srcC and c.passes == P): n = max(n, ov)
            elif D & c.defs: n = max(n, ov)
        elif ck in ('valu', 'vmem', 'lds'):
            if D & (c.uses | c.defs): n = max(n, big)
            if ck == 'valu' and p.srcC & c.defs: n = max(n, war)
    if pk == 'salu':
        if 'm0' in p.defs and 'm0' in c.uses and ck in ('vmem', 'lds'): n = max(n, 1)
    if pk == 'vmem' and p.sdata:
        if p.sdata & c.defs: n = max(n, 2)
    return n

class Prog:
    def __init__(self):
        self.I = []
    def __call__(self, s):
        for line in s.split('\n'):
            line = line.strip()
            if line == '' or line.startswith(';'): continue
            self.I.append(Inst(line))
    def add(self, items):
        for s in items: self(s)
    def label(self, name): self.I.append(Inst(name + ':'))

    def _cfg(self):
        I = self.I
        lab = {x.label: i for i, x in enumerate(I) if x.label}
        succ = [[] for _ in I]; pred = [[] for _ in I]
        for i, x in enumerate(I):
            if x.op == 's_endpgm': continue
            if x.kind == 'branch':
                succ[i].append(lab[x.target])
                if x.op == 's_branch': continue
            if i + 1 < len(I): succ[i].append(i + 1)
        for i, ss in enumerate(succ):
            for s in ss: pred[s].append(i)
        return succ, pred

    def fix_waitcnt(self):
        I = self.I
        succ, pred = self._cfg()
        n = len(I)
        need = [dict() for _ in I]
        def transfer(i, st):
            x = I[i]
            lg = dict(st[0]); vm = dict(st[1])
            touched = x.uses | x.defs
            for nm, d in (('lgkm', lg), ('vm', vm)):
                hit = [d[r] for r in touched if r in d]
                if hit:
                    N = min(hit)
                    N = min(N, 15 if nm == 'lgkm' else 63)
                    if nm not in need[i] or need[i][nm] > N: need[i][nm] = N
                if nm in need[i]:
                    N = need[i][nm]
                    for r in [r for r in d if d[r] >= N]: del d[r]
            if x.op == 's_waitcnt':
                for nm, d, pat in (('lgkm', lg, r'lgkmcnt\((\d+)\)'), ('vm', vm, r'vmcnt\((\d+)\)')):
                    m = re.search(pat, x.text)
                    if m:
                        N = int(m.group(1))
                        for r in [r for r in d if d[r] >= N]: del d[r]
            if x.kind == 'lds':
                for r in lg:
                    if lg[r] >= 0: lg[r] += 1
                for r in x.defs: lg[r] = 0
            if x.kind == 'smem':
                for r in lg: lg[r] = 0
                for r in x.defs: lg[r] = 0
                lg['__smem'] = 0
            if x.kind == 'lds' and '__smem' in lg:
                for r in lg: lg[r] = 0
            if x.kind == 'vmem':
                for r in vm: vm[r] += 1
                for r in x.defs: vm[r] = 0
            return (lg, vm)
        def merge(a, b):
            if a is None: return b
            out = []
            for da, db in zip(a, b):
                d = dict(da)
                for r, v in db.items(): d[r] = min(d.get(r, 1 << 30), v)
                out.append(d)
            return tuple(out)
        for _round in range(6):
            before = [dict(d) for d in need]
            inn = [None] * n
            work = [i for i in range(n) if not pred[i]]
            for i in work: inn[i] = ({}, {})
            cnt = 0
            while work:
                i = work.pop(0); cnt += 1
                assert cnt < 50 * n + 1000
                out = transfer(i, inn[i])
                for s in succ[i]:
                    m = merge(inn[s], out)
                    if m != inn[s]:
                        inn[s] = m
                        if s not in work: work.append(s)
            if before == need: break
        out = []
        for i, x in enumerate(I):
            if need[i]:
                parts = []
                if 'vm' in need[i]: parts.append('vmcnt(%d)' % need[i]['vm'])
                if 'lgkm' in need[i]: parts.append('lgkmcnt(%d)' % need[i]['lgkm'])
                out.append(Inst('s_waitcnt ' + ' '.join(parts)))
            out.append(x)
        self.I = out

    def fix_hazards(self, verbose=False):
        while True:
            I = self.I
            succ, pred = self._cfg()
            ins = None
            for c, x in enumerate(I):
                if x.kind in ('label', 'dir', 'ctl'): continue
                worst = 0
                stack = [(p, 0) for p in pred[c]]
                seen = {}
                while stack:
                    p, dist = stack.pop()
                    if dist >= 20: continue
                    if p in seen and seen[p] <= dist: continue
                    seen[p] = dist
                    y = I[p]
                    if y.kind not in ('label', 'dir', 'ctl'):
                        nd = need_states(y, x)
                        if nd - dist > worst: worst = nd - dist; who = y
                    d2 = dist + y.states()
                    for q in pred[p]: stack.append((q, d2))
                if worst > 0:
                    ins = (c, worst)
                    if verbose: print('nop', worst, 'between', who.text, '->', x.text)
                    k = worst
                    new = []
                    while k > 0:
                        m = min(k, 16); new.append(Inst('s_nop %d' % (m - 1))); k -= m
                    I[c:c] = new
                    break
            if ins is None: break

    def fix_hazards_fast(self, verbose=False):
        for _ in range(10):
            I = self.I
            succ, pred = self._cfg()
            add = {}
            for c, x in enumerate(I):
                if x.kind in ('label', 'dir', 'ctl'): continue
                worst = 0
                stack = [(p, 0) for p in pred[c]]
                seen = {}
                while stack:
                    p, dist = stack.pop()
                    if dist >= 20: continue
                    if p in seen and seen[p] <= dist: continue
                    seen[p] = dist
                    y = I[p]
                    if y.kind not in ('label', 'dir', 'ctl'):
                        nd = need_states(y, x)
                        if nd - dist > worst: worst = nd - dist; who = y
                    d2 = dist + y.states() + add.get(p, 0)
                    for q in pred[p]: stack.append((q, d2))
                if worst > 0:
                    add[c] = worst
                    if verbose: print('nop', worst, 'between', who.text, '->', x.text)
            if not add: return
            out = []
            for c, x in enumerate(I):
                k = add.get(c, 0)
                while k > 0:
                    m = min(k, 16); out.append(Inst('s_nop %d' % (m - 1))); k -= m
                out.append(x)
            self.I = out
        raise Exception('hazard fixing did not converge')

    def finish(self, verbose=False):
        self.fix_waitcnt()
        self.fix_hazards_fast(verbose)
    def text(self):
        return '\n'.join((x.text if x.kind == 'label' else '    ' + x.text) for x in self.I) + '\n'
    def max_reg(self, c):
        m = -1
        for x in self.I:
            for r in (x.defs | x.uses):
                if r[0] == c and r[1:].isdigit(): m = max(m, int(r[1:]))
        return m

def interleave(main, fill, slots):
    out = []; f = list(fill)
    for i, m in enumerate(main):
        out.append(m)
        for _ in range(slots[i] if i < len(slots) else 0):
            if f: out.append(f.pop(0))
    out += f
    return out

def kernel_text(name, prog, nvgpr=None, nsgpr=None):
    body = f".globl {name}\n.p2align 8\n.type {name},@function\n{name}:\n" + prog.text()
    nv = nvgpr or (prog.max_reg('v') + 1)
    ns = nsgpr or max(prog.max_reg('s') + 1, 100)
    acc = (nv + 3) // 4 * 4
    kd = f""".p2align 6
.amdhsa_kernel {name}
  .amdhsa_next_free_vgpr {nv}
  .amdhsa_next_free_sgpr {ns}
  .amdhsa_accum_offset {acc}
  .amdhsa_group_segment_fixed_size 0
  .amdhsa_kernarg_size 96
  .amdhsa_user_sgpr_count 2
  .amdhsa_user_sgpr_kernarg_segment_ptr 1
  .amdhsa_system_sgpr_workgroup_id_x 1
.end_amdhsa_kernel
"""
    return body, kd
```

```python
from tasks import *

A_C, A_S, A_K, A_V, A_P, A_SEL, A_AD = 48, (64, 80), 96, (104, 112), (120, 124), 144, 148
V_G = 31
S_HEAD, S_BLK = 51, 52

def attn_ids(p):
    p(f"""
    s_lshl_b32 s3, s{S_XCD}, 2
    s_lshr_b32 s4, s{S_IDX}, 3
    s_add_u32 s{S_HEAD}, s3, s4
    s_and_b32 s3, s{S_IDX}, 7
    s_lshl_b32 s3, s3, 3
    s_add_u32 s{S_BLK}, s3, s{S_WID}
    """)

class Attn:
    nd = 4
    pubstep = 2
    def __init__(self, c0, n, dep=0, level=0):
        self.c0 = c0; self.nsteps = n; self.dep = dep; self.level = level
        self.first = c0 == 0; self.last = c0 + n == 16
    def __call__(self): return self
    def early(self, p, c):
        ho = c.opt.get('hoflag', '')
        W = f"s[{S_WS}:{S_WS+3}]"
        if self.first:
            attn_ids(p)
            p(f"""
            s_lshl_b32 s3, s{S_HEAD}, 17
            s_lshl_b32 s4, s{S_BLK}, 11
            s_add_u32 s3, s3, s4
            buffer_load_dwordx4 {vr(V_Q, 4)}, v1, {W}, s3 offen {ho}
            buffer_load_dwordx4 {vr(V_Q + 4, 4)}, v1, {W}, s3 offen offset:1024 {ho}
            s_lshl_b32 s3, s{S_BLK}, 7
            s_add_u32 s3, s3, {WS_G}
            v_and_b32 v{V_M}, 31, v0
            v_lshlrev_b32 v{V_M}, 2, v{V_M}
            buffer_load_dword v{V_G}, v{V_M}, {W}, s3 offen {ho}
            """)
    def h_dep(self, p, c):
        if self.dep and c.opt.get('persist'): wait_progress(p, c, self.dep)
    def h_setup(self, p, c):
        self.early(p, c)
        srd(p, S_A, ptr('ws'), 8 * MB, WS_KV)
        p(f"""
        s_lshl_b32 s3, s{S_HEAD}, 18
        s_lshl_b32 s{S_LD[0]}, s{S_WM}, 12
        s_add_u32 s3, s3, s{S_LD[0]}
        s_add_u32 s{S_SO[0]}, s3, {self.c0 * 16384}
        """)
    def h_dma(self, p, c):
        ho = c.opt.get('hoflag', '')
        p(f"s_add_u32 m0, s{S_DMA}, s{S_LD[0]}")
        for i in range(4):
            p(f"buffer_load_dwordx4 v1, s[{S_A}:{S_A+3}], s{S_SO[0]} offen offset:{1024 * i} {ho} lds")
        p(f"s_add_u32 s{S_SO[0]}, s{S_SO[0]}, 16384")
        p.add(slot_adv_dma())
    def sel_setup(self, p):
        p(f"""
        v_lshrrev_b32 v{A_SEL}, 2, v0
        v_lshrrev_b32 v{A_SEL+1}, 4, v0
        v_xor_b32 v{A_SEL}, v{A_SEL}, v{A_SEL+1}
        v_and_b32 v{A_SEL}, 1, v{A_SEL}
        v_and_b32 v{A_SEL+1}, 3, v0
        v_or_b32 v{A_SEL}, v{A_SEL}, v{A_SEL+1}
        v_cmp_eq_u32 vcc, 0, v{A_SEL}
        v_mov_b32 v{A_SEL+1}, 0x3f803f80
        v_cndmask_b32 v{A_SEL}, 0, v{A_SEL+1}, vcc
        v_mov_b32 v{A_SEL+1}, v{A_SEL}
        v_mov_b32 v{A_SEL+2}, v{A_SEL}
        v_mov_b32 v{A_SEL+3}, v{A_SEL}
        """)
    def rowmax(self, p, s, dst, init=None):
        if init is None:
            p(f"v_max3_f32 v{dst}, v{s}, v{s+1}, v{s+2}")
            p(f"v_max_f32 v{dst}, v{dst}, v{s+3}")
            k = 4
        else: k = 0
        for i in range(k, 16, 2): p(f"v_max3_f32 v{dst}, v{dst}, v{s+i}, v{s+i+1}")
    def setup(self, p, c):
        p(f"v_add_u32 v{A_AD}, s{S_RD}, v1")
        p(f"""
        ds_read_b128 {vr(A_K, 4)}, v{A_AD}
        ds_read_b128 {vr(A_K + 4, 4)}, v{A_AD} offset:1024
        ds_read_b128 {vr(A_V[0], 4)}, v{A_AD} offset:2048
        ds_read_b128 {vr(A_V[0] + 4, 4)}, v{A_AD} offset:3072
        """)
        self.sel_setup(p)
        for i in range(4):
            p(f"v_mov_b32 v{A_P[1] + i}, 0")
            p(f"v_mov_b32 v{A_V[1] + 4 + i}, 0")
        if self.first:
            for i in range(20): p(f"v_mov_b32 v{V_O + i}, 0")
            p(mfma32(A_S[1], A_K, V_Q, "0"))
            p(mfma32(A_S[1], A_K + 4, V_Q + 4))
            self.rowmax(p, A_S[1], V_M)
            p(f"""
            v_mov_b32 v{A_C}, v{V_M}
            v_permlane32_swap_b32 v{V_M}, v{A_C}
            v_max_f32 v{V_M}, v{V_M}, v{A_C}
            v_sub_f32 v{V_M}, 0, v{V_M}
            """)
        for i in range(16): p(f"v_mov_b32 v{A_C + i}, v{V_M}")
        p(mfma32(A_S[0], A_K, V_Q, A_C))
        p(mfma32(A_S[0], A_K + 4, V_Q + 4))
        p("s_nop 7")
    def tile(self, b, noff):
        S = A_S[b % 2]; Sn = A_S[(b + 1) % 2]
        Vc = A_V[b % 2]; Vn = A_V[(b + 1) % 2]
        e = lambda i: f"v_exp_f32 v{S + i}, v{S + i}"
        cv = lambda i: f"v_cvt_pk_bf16_f32 v{A_P[i // 4] + i % 4}, v{S + 2 * i}, v{S + 2 * i + 1}"
        rd = lambda d, o: f"ds_read_b128 {vr(d, 4)}, v{A_AD} offset:{noff + o}"
        L = [rd(A_K, 0), rd(A_K + 4, 1024), rd(Vn, 2048)]
        L += [e(i) for i in range(0, 4)]
        L += [mfma32(V_O, Vn + 4, A_P[1]), rd(Vn + 4, 3072)]
        L += [e(i) for i in range(4, 8)]
        L += [mfma16(V_L, A_SEL, A_P[1])]
        L += [cv(i) for i in range(0, 4)]
        L += [mfma32(Sn, A_K, V_Q, A_C)]
        L += [e(i) for i in range(8, 12)]
        L += [mfma32(Sn, A_K + 4, V_Q + 4)]
        L += [e(i) for i in range(12, 16)]
        L += [mfma32(V_O, Vc, A_P[0])]
        L += [cv(i) for i in range(4, 8)]
        L += [mfma16(V_L, A_SEL, A_P[0])]
        return L
    def drain(self, p):
        p(mfma32(V_O, A_V[1] + 4, A_P[1]))
        p(mfma16(V_L, A_SEL, A_P[1]))
        p("s_waitcnt lgkmcnt(0)")
    def loop(self, p, c, pre_bar, post_bar):
        p(f"s_mov_b32 s{S_CNT}, {self.nsteps}")
        L = c.lab("al")
        p(".p2align 5")
        p.label(L)
        for b in range(3): p.add(self.tile(b, (b + 1) * 4096))
        p.add(slot_adv_rd())
        p(f"v_add_u32 v{A_AD}, s{S_DELTA}, v{A_AD}")
        pre_bar(p)
        p("s_barrier")
        post_bar(p)
        p.add(self.tile(3, 0))
        p(f"s_sub_u32 s{S_CNT}, s{S_CNT}, 1\ns_cmp_lg_u32 s{S_CNT}, 0\ns_cbranch_scc1 {L}")
        self.drain(p)
    def g_setup(self, p, c): pass
    def g_body(self, p, c, pre):
        self.setup(p, c)
        def pre_bar(p):
            if pre:
                Ls = c.lab("dr")
                p(f"s_cmp_eq_u32 s{S_CNT}, {self.nsteps - self.pubstep + 1}\ns_cbranch_scc0 {Ls}\ns_waitcnt vmcnt(0)")
                p.label(Ls)
            p("s_waitcnt lgkmcnt(0)")
        self.loop(p, c, pre_bar, lambda p: None)
    def h_body(self, p, c, nxt, pub):
        n = self.nsteps
        assert n >= 4
        p(f"""
        s_add_u32 s{S_RD}, s{S_DMA}, {SLOT}
        s_cmp_eq_u32 s{S_RD}, {SLOT * NSLOT}
        s_cselect_b32 s{S_RD}, 0, s{S_RD}
        """)
        self.h_dma(p, c)
        self.setup(p, c)
        def pre_bar(p):
            L1 = c.lab("w"); L2 = c.lab("w"); Le = c.lab("w")
            p(f"s_cmp_ge_u32 s{S_CNT}, 3\ns_cbranch_scc0 {L1}\ns_waitcnt vmcnt(4) lgkmcnt(0)\ns_branch {Le}")
            p.label(L1)
            p(f"s_cmp_eq_u32 s{S_CNT}, 2\ns_cbranch_scc0 {L2}\ns_waitcnt vmcnt(0) lgkmcnt(0)\ns_branch {Le}")
            p.label(L2)
            p(f"s_waitcnt vmcnt({nxt.nd if nxt else 0}) lgkmcnt(0)")
            p.label(Le)
        def post_bar(p):
            L1 = c.lab("a"); Le = c.lab("a")
            if pub:
                Lp = c.lab("p")
                p(f"s_cmp_eq_u32 s{S_CNT}, {n - self.pubstep + 1}\ns_cbranch_scc0 {Lp}")
                pub(p)
                p.label(Lp)
            p(f"s_cmp_ge_u32 s{S_CNT}, 4\ns_cbranch_scc0 {L1}")
            self.h_dma(p, c)
            p(f"s_branch {Le}")
            p.label(L1)
            if nxt:
                p(f"s_cmp_eq_u32 s{S_CNT}, 2\ns_cbranch_scc0 {Le}")
                nxt.h_dep(p, c)
                nxt.h_setup(p, c)
                nxt.h_dma(p, c)
                nxt.h_dma(p, c)
            p.label(Le)
        self.loop(p, c, pre_bar, post_bar)
    def h_epi(self, p, c): self.g_epi(p, c)
    def g_epi(self, p, c):
        if not self.last: return
        st = c.opt.get('stflag', '')
        W = f"s[{S_WS}:{S_WS+3}]"
        Lok = c.lab("ok")
        p(f"v_mov_b32 v{A_C}, 0")
        for i in range(16): p(f"v_fma_f32 v{A_C}, v{V_O + i}, 0, v{A_C}")
        p(f"""
        v_add_f32 v{A_C}, v{A_C}, v{V_L}
        v_mov_b32 v{A_C+1}, {hexf(2.0 ** c.opt.get('lmaxlog', 64))}
        v_cmp_nlt_f32 vcc, v{A_C}, v{A_C+1}
        s_cbranch_vccz {Lok}
        """)
        self.fallback(p, c)
        p.label(Lok)
        p(f"""
        v_rcp_f32 v{A_C}, v{V_L}
        v_and_b32 v{A_C+2}, 15, v0
        v_bfe_u32 v{A_C+3}, v0, 4, 1
        v_mul_f32 v{A_C}, v{A_C}, v{V_G}
        v_lshrrev_b32 v{A_C+4}, 5, v0
        v_mul_u32_u24 v{A_C+3}, {AF_PITCH}, v{A_C+3}
        v_lshl_add_u32 v{A_C+3}, v{A_C+2}, 4, v{A_C+3}
        v_lshl_add_u32 v{A_C+3}, v{A_C+4}, 8, v{A_C+3}
        s_mul_i32 s3, s{S_BLK}, {2 * AF_PITCH}
        s_lshl_b32 s4, s{S_HEAD}, 10
        s_add_u32 s3, s3, s4
        s_add_u32 s3, s3, {WS_AF + 112 * 1024}
        """)
        for i in range(8): p(f"v_pk_mul_f32 {vr(V_O + 2 * i, 2)}, {vr(V_O + 2 * i, 2)}, {vr(A_C, 2)} op_sel_hi:[1,0]")
        for i in range(8): p(f"v_cvt_pk_bf16_f32 v{A_C + 8 + i}, v{V_O + 2 * i}, v{V_O + 2 * i + 1}")
        for u in range(2):
            p(f"buffer_store_dwordx4 {vr(A_C + 8 + 4 * u, 4)}, v{A_C+3}, {W}, s3 offen offset:{512 * u} {st}")
    def fallback(self, p, c):
        ho = c.opt.get('hoflag', '')
        W = f"s[{S_WS}:{S_WS+3}]"
        L1 = c.lab("fb"); L2 = c.lab("fb")
        S = A_S[0]
        p(f"""
        s_lshl_b32 s5, s{S_HEAD}, 18
        s_add_u32 s5, s5, {WS_KV}
        s_mov_b32 s6, s5
        s_mov_b32 s7, 64
        v_mov_b32 v{V_M}, 0xff800000
        """)
        p.label(L1)
        p(f"""
        buffer_load_dwordx4 {vr(A_K, 4)}, v1, {W}, s6 offen {ho}
        buffer_load_dwordx4 {vr(A_K + 4, 4)}, v1, {W}, s6 offen offset:1024 {ho}
        s_waitcnt vmcnt(0)
        """)
        p(mfma32(S, A_K, V_Q, "0"))
        p(mfma32(S, A_K + 4, V_Q + 4))
        self.rowmax(p, S, V_M, True)
        p(f"s_add_u32 s6, s6, 4096\ns_sub_u32 s7, s7, 1\ns_cmp_lg_u32 s7, 0\ns_cbranch_scc1 {L1}")
        p(f"""
        v_mov_b32 v{A_C}, v{V_M}
        v_permlane32_swap_b32 v{V_M}, v{A_C}
        v_max_f32 v{V_M}, v{V_M}, v{A_C}
        v_sub_f32 v{V_M}, 0, v{V_M}
        s_mov_b32 s7, 64
        """)
        for i in range(16): p(f"v_mov_b32 v{A_C + i}, v{V_M}")
        for i in range(20): p(f"v_mov_b32 v{V_O + i}, 0")
        p.label(L2)
        p(f"""
        buffer_load_dwordx4 {vr(A_K, 4)}, v1, {W}, s5 offen {ho}
        buffer_load_dwordx4 {vr(A_K + 4, 4)}, v1, {W}, s5 offen offset:1024 {ho}
        buffer_load_dwordx4 {vr(A_V[0], 4)}, v1, {W}, s5 offen offset:2048 {ho}
        buffer_load_dwordx4 {vr(A_V[0] + 4, 4)}, v1, {W}, s5 offen offset:3072 {ho}
        s_waitcnt vmcnt(0)
        """)
        p(mfma32(S, A_K, V_Q, A_C))
        p(mfma32(S, A_K + 4, V_Q + 4))
        for i in range(16): p(f"v_exp_f32 v{S + i}, v{S + i}")
        for i in range(8): p(f"v_cvt_pk_bf16_f32 v{A_P[i // 4] + i % 4}, v{S + 2 * i}, v{S + 2 * i + 1}")
        p(mfma32(V_O, A_V[0], A_P[0]))
        p(mfma16(V_L, A_SEL, A_P[0]))
        p(mfma32(V_O, A_V[0] + 4, A_P[1]))
        p(mfma16(V_L, A_SEL, A_P[1]))
        p(f"s_add_u32 s5, s5, 4096\ns_sub_u32 s7, s7, 1\ns_cmp_lg_u32 s7, 0\ns_cbranch_scc1 {L2}")
```

```python
import sys, importlib
sys.path.insert(0, 'gen')
from common import *
def assemble(kernels, path, header_extra=""):
    hdr = []; bodies = []; kds = []; seen = set()
    for name, prog, li, nv in kernels:
        kn = "" if name.startswith("gated_mix") else f"kernel={name} "
        hdr.append(f"; @launch {kn}grid=({li['grid']},1,1) block=({li['block']},1,1) lds={li['lds']}")
        if name in seen: continue
        seen.add(name)
        b, kd = kernel_text(name, prog, nv)
        bodies.append(b); kds.append(kd)
    txt = "\n".join(hdr) + "\n" + header_extra + '.amdgcn_target "amdgcn-amd-amdhsa--gfx950"\n.text\n' + "\n".join(bodies) + '\n.section .rodata,"a"\n' + "".join(kds)
    open(path, 'w').write(txt)
```

```python
from asmlib import *
import struct, math
def f2u(x): return struct.unpack('<I', struct.pack('<f', x))[0]
def hexf(x): return '0x%08x' % f2u(x)
MB = 1 << 20
WS_Q = 0
WS_KV = 4 * MB
WS_HS = 12 * MB
WS_X1 = 16 * MB
WS_AF = 20 * MB
WS_G = 40 * MB
WS_SIZE = 60 * MB
LOG2E = math.log2(math.e)
QSCALE = (32 ** -0.5) * LOG2E
GC0 = -2.0 * math.sqrt(2.0 / math.pi) * LOG2E
GC1 = GC0 * 0.044715
KA = dict(x=0, wqkv=8, wo=16, bx=24, w1=32, w2=40, w3=48, w4=56, gate=64, out=72, dbg=80, ws=88)

def srd(p, d, base, size, off=0):
    if off:
        p(f"s_add_u32 s{d}, s{base}, {off}")
        p(f"s_addc_u32 s{d+1}, s{base+1}, 0")
    else:
        p(f"s_mov_b32 s{d}, s{base}")
        p(f"s_mov_b32 s{d+1}, s{base+1}")
    p(f"s_mov_b32 s{d+2}, {size}")
    p(f"s_mov_b32 s{d+3}, 0x20000")

def vr(a, n=1):
    return f"v{a}" if n == 1 else f"v[{a}:{a+n-1}]"

def mfma32(d, a, b, c=None):
    cs = vr(d, 16) if c is None else (c if isinstance(c, str) else vr(c, 16))
    return f"v_mfma_f32_32x32x16_bf16 {vr(d,16)}, {vr(a,4)}, {vr(b,4)}, {cs}"

def gelu_pk(p, regs, tmp, sC0, sC1):
    n = len(regs)
    T = [tmp + 2 * i for i in range(n)]
    for r, t in zip(regs, T): p(f"v_pk_mul_f32 {vr(t,2)}, {vr(r,2)}, {vr(r,2)}")
    for r, t in zip(regs, T): p(f"v_pk_fma_f32 {vr(t,2)}, {vr(t,2)}, {vr(sC1,2)}, {vr(sC0,2)}")
    for r, t in zip(regs, T): p(f"v_pk_mul_f32 {vr(t,2)}, {vr(t,2)}, {vr(r,2)}")
    for t in T:
        p(f"v_exp_f32 v{t}, v{t}"); p(f"v_exp_f32 v{t+1}, v{t+1}")
    for t in T: p(f"v_pk_add_f32 {vr(t,2)}, {vr(t,2)}, 1.0 op_sel_hi:[1,0]")
    for t in T:
        p(f"v_rcp_f32 v{t}, v{t}"); p(f"v_rcp_f32 v{t+1}, v{t+1}")
    for r, t in zip(regs, T): p(f"v_pk_mul_f32 {vr(r,2)}, {vr(r,2)}, {vr(t,2)}")

WS_STAMP = 44 * MB
def stamp(p, slot, kidx, sws_base, tmp_s=60, tmp_v=250, cond_wave_sgpr=None):
    t = tmp_s; v = tmp_v
    p(f"""
    s_memrealtime s[{t}:{t+1}]
    s_memtime s[{t+2}:{t+3}]
    s_add_u32 s{t+4}, s2, {kidx * 512}
    s_lshl_b32 s{t+4}, s{t+4}, 3
    s_add_u32 s{t+4}, s{t+4}, s{cond_wave_sgpr}
    s_lshl_b32 s{t+4}, s{t+4}, 7
    s_add_u32 s{t+4}, s{t+4}, {WS_STAMP + slot * 16}
    s_waitcnt lgkmcnt(0)
    v_mov_b32 v{v}, s{t}
    v_mov_b32 v{v+1}, s{t+1}
    v_mov_b32 v{v+2}, s{t+2}
    v_mov_b32 v{v+3}, s{t+3}
    v_mov_b32 v{v+4}, 0
    s_mov_b64 s[{t}:{t+1}], exec
    s_mov_b64 exec, 1
    buffer_store_dwordx4 v[{v}:{v+3}], v{v+4}, s[{sws_base}:{sws_base+3}], s{t+4} offen
    s_mov_b64 exec, s[{t}:{t+1}]
    """)
```

```python
from common import *

SLOT = 49152
NSLOT = 3
L_X = SLOT * NSLOT
LDS_BYTES = 163840
L_MU = L_X
L_RS = L_X + 512
L_OG = L_X + 1024
L_CS = L_X + 1536
L_DUMMY = L_X + 4096

WS_ST1 = 41 * MB
WS_P2 = 42 * MB
WS_CSP = 43 * MB

S_A, S_B, S_WS, S_AUX = 8, 12, 16, 20
S_WID, S_WM, S_WN, S_XCD, S_IDX, S_MT, S_NT = 24, 25, 26, 27, 28, 29, 30
S_CNT, S_RD, S_DELTA, S_DMA = 31, 32, 33, 34
S_SO = [35, 36]
S_LD = [37, 38]
S_NEG = 39
S_PTR = 64
def ptr(name): return S_PTR + KA[name] // 4
V_LANE, V_L16 = 0, 1
V_Q, V_O, V_L, V_M = 2, 10, 26, 30
V_AD = 32
V_FR = 48

def mfma16(d, a, b, c=None):
    cs = vr(d, 4) if c is None else (c if isinstance(c, str) else vr(c, 4))
    return f"v_mfma_f32_16x16x32_bf16 {vr(d,4)}, {vr(a,4)}, {vr(b,4)}, {cs}"

def tile_map(p, a_log2):
    a = 1 << a_log2; b = 32 // a
    nxm = 16 // a
    p(f"""
    s_and_b32 s3, s{S_XCD}, {nxm - 1}
    s_lshl_b32 s3, s3, {a_log2}
    s_and_b32 s4, s{S_IDX}, {a - 1}
    s_add_u32 s{S_MT}, s3, s4
    s_lshr_b32 s3, s{S_XCD}, {nxm.bit_length() - 1}
    s_lshl_b32 s3, s3, {b.bit_length() - 1}
    s_lshr_b32 s4, s{S_IDX}, {a_log2}
    s_add_u32 s{S_NT}, s3, s4
    """)

def slot_adv_rd():
    return [f"s_add_u32 s{S_RD}, s{S_RD}, {SLOT}", f"s_cmp_eq_u32 s{S_RD}, {SLOT * NSLOT}",
            f"s_cselect_b32 s{S_DELTA}, s{S_NEG}, {SLOT}", f"s_cselect_b32 s{S_RD}, 0, s{S_RD}"]
def slot_adv_dma():
    return [f"s_add_u32 s{S_DMA}, s{S_DMA}, {SLOT}", f"s_cmp_eq_u32 s{S_DMA}, {SLOT * NSLOT}",
            f"s_cselect_b32 s{S_DMA}, 0, s{S_DMA}"]

class Ctx:
    def __init__(self, name, opt):
        self.name = name; self.opt = opt; self.nlab = 0
        self.stamp_slot = {'g': 0, 'h': 0}
    def lab(self, s):
        self.nlab += 1
        return f"{self.name}_{s}{self.nlab}"
    def ST(self, p, role):
        if not self.opt.get('stamp'): return
        sl = self.stamp_slot[role]; self.stamp_slot[role] += 1
        stamp2(p, sl, self.opt['stamp'] - 1)

NSTAMP = 32
def stamp2(p, slot, kidx):
    p(f"""
    s_memrealtime s[56:57]
    s_memtime s[58:59]
    s_add_u32 s60, s2, {kidx * 256}
    s_lshl_b32 s60, s60, 3
    s_add_u32 s60, s60, s{S_WID}
    s_lshl_b32 s60, s60, 8
    s_add_u32 s60, s60, {WS_STAMP + slot * 8}
    s_waitcnt lgkmcnt(0)
    v_mov_b32 v140, s56
    v_mov_b32 v141, s58
    v_mov_b32 v142, 0
    s_mov_b64 exec, 1
    buffer_store_dwordx2 v[140:141], v142, s[{S_WS}:{S_WS+3}], s60 offen
    s_mov_b64 exec, -1
    """)

class Gemm:
    MT = 4
    def acc(self, m, n): return 256 - 4 * self.MT * self.NT + 4 * (n * self.MT + m)
    def xf(self, s, m): return V_FR + s * 4 * (self.MT + self.NT) + 4 * m
    def wf(self, s, n): return V_FR + s * 4 * (self.MT + self.NT) + 4 * self.MT + 4 * n
    def swap(self, n): return False
    def reads(self, s, kk):
        rx = lambda m: "ds_read_b128 %s, v%d offset:%d" % ((vr(self.xf(s, m), 4),) + self.xaddr(kk, m))
        rw = lambda n, j: "ds_read_b64_tr_b16 %s, v%d offset:%d" % ((vr(self.wf(s, n) + 2 * j, 2),) + self.waddr(kk, n, j))
        R = [rx(0), rw(0, 0), rw(0, 1)] + [rx(m) for m in range(1, self.MT)]
        for n in range(1, self.NT): R += [rw(n, 0), rw(n, 1)]
        return R
    def mfmas(self, s):
        M = []
        for n in range(self.NT):
            for m in range(self.MT):
                if self.swap(n): M.append(mfma16(self.acc(m, n), self.xf(s, m), self.wf(s, n)))
                else: M.append(mfma16(self.acc(m, n), self.wf(s, n), self.xf(s, m)))
        return M
    def g_zero(self, p):
        for r in range(self.acc(0, 0), 256): p(f"v_mov_b32 v{r}, 0")
    def g_loop(self, p, c, nsteps, first_reads=True, pre_barrier_first=None, tail_reads=False):
        KS = self.KS
        nm = self.MT * self.NT
        big = nm >= 20
        def drain(p):
            if not pre_barrier_first: return
            Ls = c.lab("dr")
            p(f"s_cmp_eq_u32 s{S_CNT}, {nsteps - self.pubstep + 1}")
            p(f"s_cbranch_scc0 {Ls}")
            p("s_waitcnt vmcnt(0)")
            p.label(Ls)
        if first_reads: p.add(self.reads(0, 0))
        p(f"s_mov_b32 s{S_CNT}, {nsteps}")
        L = c.lab("gl")
        p(".p2align 5")
        p.label(L)
        for kk in range(KS - 1):
            R = self.reads((kk + 1) % 2, kk + 1)
            if big: p("s_waitcnt lgkmcnt(0)")
            p.add(interleave(self.mfmas(kk % 2), R, [1] * nm))
        M = self.mfmas((KS - 1) % 2)
        upd = slot_adv_rd() + [f"v_add_u32 v{r}, s{S_DELTA}, v{r}" for r in self.addr_regs]
        if big:
            bp = c.opt.get('barpos', 6)
            p("s_waitcnt lgkmcnt(0)")
            p.add(interleave(M[:bp], upd, [2] * bp))
            drain(p)
            p("s_barrier")
            p.add(interleave(M[bp:], self.reads(0, 0) + [f"s_sub_u32 s{S_CNT}, s{S_CNT}, 1", f"s_cmp_lg_u32 s{S_CNT}, 0"], [1] * nm))
        else:
            bp = 4
            p.add(interleave(M[:bp], upd, [2] * bp))
            p("s_waitcnt lgkmcnt(0)")
            drain(p)
            p("s_barrier")
            p.add(interleave(M[bp:], self.reads(0, 0) + [f"s_sub_u32 s{S_CNT}, s{S_CNT}, 1", f"s_cmp_lg_u32 s{S_CNT}, 0"], [2] * nm))
        p(f"s_cbranch_scc1 {L}")
    def h_dma(self, p, c):
        if c.opt.get('nodma'):
            p.add(slot_adv_dma()); return
        ld = c.opt.get('ldflag', '')
        nA, nB = self.nA, self.nB
        p(f"s_add_u32 m0, s{S_DMA}, s{S_LD[0]}")
        for i in range(nA):
            p(f"buffer_load_dwordx4 v{V_AD + i}, s[{S_A}:{S_A+3}], s{S_SO[0]} offen {self.aflag(c)} lds")
            if i < nA - 1: p(f"s_add_u32 m0, m0, 1024")
        p(f"s_add_u32 m0, s{S_DMA}, s{S_LD[1]}")
        for i in range(nB):
            p(f"buffer_load_dwordx4 v{V_AD + nA + i}, s[{S_B}:{S_B+3}], s{S_SO[1]} offen {ld} lds")
            if i < nB - 1: p(f"s_add_u32 m0, m0, 1024")
        if not c.opt.get('step0'):
            p(f"s_add_u32 s{S_SO[0]}, s{S_SO[0]}, {self.stepA}")
            p(f"s_add_u32 s{S_SO[1]}, s{S_SO[1]}, {self.stepB}")
        p.add(slot_adv_dma())
    def aflag(self, c): return c.opt.get('hoflag', '')
    @property
    def nd(self): return self.nA + self.nB
    def h_extra(self, p, c, t):
        return 0
    h_peel_head = 0
    def h_body(self, p, c, nxt, pub):
        n = self.nsteps
        head = max(self.h_peel_head, self.pubstep + 1 if pub else 0)
        assert head <= n - 2
        def step(t, dma_task, first_of_next=False):
            if t == self.pubstep and pub: pub(p)
            if dma_task is not None:
                if first_of_next:
                    nxt.h_dep(p, c)
                    nxt.h_setup(p, c)
                dma_task.h_dma(p, c)
            ex = self.h_extra(p, c, t) if (t is not None and not c.opt.get('noextra')) else 0
            nd = dma_task.nd if dma_task is not None else 0
            p(f"s_waitcnt vmcnt({nd + ex}) lgkmcnt(0)")
            p("s_barrier")
        for t in range(head): step(t, self)
        cnt = n - 2 - head
        if cnt > 0:
            p(f"s_mov_b32 s{S_CNT}, {cnt}")
            L = c.lab("hl")
            p.label(L)
            step(None, self)
            p(f"s_sub_u32 s{S_CNT}, s{S_CNT}, 1\ns_cmp_lg_u32 s{S_CNT}, 0\ns_cbranch_scc1 {L}")
        step(n - 2, nxt, True)
        step(n - 1, nxt)
    dep = 0
    level = 0
    pubstep = 3
    def h_dep(self, p, c):
        if self.dep and c.opt.get('persist'): wait_progress(p, c, self.dep)

def wait_progress(p, c, level):
    L = c.lab("poll"); E = c.lab("pollx")
    srd(p, S_AUX, ptr('dbg'), 256)
    p(f"""
    v_lshlrev_b32 v136, 2, v{V_LANE}
    s_mov_b32 s5, {c.opt.get('spinmax', 200000)}
    """)
    p.label(L)
    p(f"""
    buffer_load_dword v137, v136, s[{S_AUX}:{S_AUX+3}], 0 offen sc1
    s_waitcnt vmcnt(0)
    v_and_b32 v138, 0xff, v137
    v_bfe_u32 v139, v137, 8, 8
    v_min_u32 v138, v138, v139
    v_bfe_u32 v139, v137, 16, 8
    v_lshrrev_b32 v137, 24, v137
    v_min3_u32 v138, v138, v139, v137
    v_cmp_gt_u32 vcc, {level}, v138
    s_cbranch_vccz {E}
    s_sub_u32 s5, s5, 1
    s_cmp_eq_u32 s5, 0
    s_cbranch_scc1 {E}
    s_sleep 4
    s_branch {L}
    """)
    p.label(E)

def publish(c, level):
    def f(p):
        L = c.lab("pub")
        p(f"""
        s_cmp_eq_u32 s{S_WM}, 0
        s_cbranch_scc0 {L}
        """)
        srd(p, S_AUX, ptr('dbg'), 256)
        p(f"""
        v_mov_b32 v136, s2
        v_mov_b32 v137, {level}
        s_mov_b64 exec, 1
        buffer_store_byte v137, v136, s[{S_AUX}:{S_AUX+3}], 0 offen sc1
        s_mov_b64 exec, -1
        """)
        p.label(L)
    return f

def gen_kernel(name, tasks, opt):
    c = Ctx(name, opt)
    p = Prog()
    p(f"""
    s_cmp_ge_u32 s2, 256
    s_cbranch_scc1 {name}_end
    s_load_dwordx16 s[{S_PTR}:{S_PTR+15}], s[0:1], 0
    s_load_dwordx8 s[{S_PTR+16}:{S_PTR+23}], s[0:1], 64
    v_lshrrev_b32 v1, 6, v0
    v_and_b32 v0, 63, v0
    v_readfirstlane_b32 s{S_WID}, v1
    v_lshlrev_b32 v{V_L16}, 4, v0
    s_and_b32 s{S_XCD}, s2, 7
    s_lshr_b32 s{S_IDX}, s2, 3
    s_mov_b32 s{S_RD}, 0
    s_mov_b32 s{S_DMA}, 0
    s_mov_b32 s{S_NEG}, {-(NSLOT - 1) * SLOT & 0xffffffff}
    s_waitcnt lgkmcnt(0)
    """)
    srd(p, S_WS, ptr('ws'), WS_SIZE)
    p(f"""
    s_cmp_ge_u32 s{S_WID}, 4
    s_cbranch_scc1 {name}_H
    s_and_b32 s{S_WM}, s{S_WID}, 1
    s_lshr_b32 s{S_WN}, s{S_WID}, 1
    """)
    c.ST(p, 'g')
    if opt.get('gprio'): p(f"s_setprio {opt['gprio']}")
    for i, T in enumerate(tasks):
        if i == 0 and hasattr(T, 'early'): T.early(p, c)
        T.g_setup(p, c)
        if i == 0:
            p("s_barrier")
        c.ST(p, 'g')
        T.g_body(p, c, "s_waitcnt vmcnt(0)" if (i > 0 and opt.get('persist')) else None)
        c.ST(p, 'g')
        if i + 1 < len(tasks) and hasattr(tasks[i + 1], 'early'): tasks[i + 1].early(p, c)
        T.g_epi(p, c)
    c.ST(p, 'g')
    if opt.get('stamp'):
        p("s_waitcnt vmcnt(0)")
        c.ST(p, 'g')
    p("s_endpgm")
    p.label(f"{name}_H")
    p(f"s_sub_u32 s{S_WM}, s{S_WID}, 4")
    T0 = tasks[0]
    T0.h_setup(p, c)
    T0.h_dma(p, c)
    ex = T0.h_first(p, c) if hasattr(T0, 'h_first') else 0
    T0.h_dma(p, c)
    p(f"s_waitcnt vmcnt({T0.nd + ex})")
    p("s_barrier")
    for i, T in enumerate(tasks):
        nxt = tasks[i + 1] if i + 1 < len(tasks) else None
        pub = publish(c, tasks[i - 1].level) if (i > 0 and opt.get('persist') and tasks[i - 1].level) else None
        T.h_body(p, c, nxt, pub)
        if hasattr(T, 'h_epi'): T.h_epi(p, c)
    p.label(f"{name}_end")
    p("s_endpgm")
    p.finish(verbose=opt.get('verbose', False))
    return p, dict(grid=256, block=512, lds=LDS_BYTES)
```

```python
import sys
from build import *
from tasks import *
HEADER = """; One persistent launch, 256 workgroups (one per CU) x 8 waves, generated by my own script (gen/*.py).
"""
def make(path, groups, opt):
    ks = []; extra = ""
    for i, g in enumerate(groups):
        o = dict(opt)
        if o.get('stamp'): o['stamp'] = 1 + i
        nm = f"k{i}_kernel" if len(groups) > 1 or not opt.get('final') else "gated_mix__softmax_full_mha__mixer_s_mlp__prompt_kernel"
        p, li = gen_kernel(nm, [T() for T in g], o)
        ks.append((nm, p, li, 256))
        extra += f"; nstamp {li['nstamp']}\n"
    if opt.get('final'): extra = HEADER
    assemble(ks, path, extra)
if __name__ == "__main__":
    make("m1.s", [[QKV], [W1], [W2], [W3], [W4, WO]], dict(stamp=1, stflag='sc1'))
```

```python
from fw import *

def lane_fields(p, r16=None, g=None, r4=None, c4=None):
    if r16 is not None: p(f"v_and_b32 v{r16}, 15, v0")
    if g is not None: p(f"v_lshrrev_b32 v{g}, 4, v0")
    if r4 is not None: p(f"v_bfe_u32 v{r4}, v0, 2, 2")
    if c4 is not None: p(f"v_and_b32 v{c4}, 3, v0")

T0 = 128

def h_xrows(p, regs, sub_off):
    p(f"""
    v_lshrrev_b32 v{T0}, 3, v0
    v_and_b32 v{T0+1}, 7, v0
    s_lshl_b32 s3, s{S_MT}, 7
    s_lshl_b32 s4, s{S_WM}, 5
    s_add_u32 s3, s3, s4
    v_lshrrev_b32 v{T0+2}, 1, v{T0}
    v_xor_b32 v{T0+2}, v{T0+2}, v{T0+1}
    v_add_u32 v{T0+3}, s3, v{T0}
    v_lshlrev_b32 v{T0+3}, 11, v{T0+3}
    v_lshl_add_u32 v{regs[0]}, v{T0+2}, 4, v{T0+3}
    v_xor_b32 v{T0+2}, 64, v{regs[0]}
    """)
    for i, r in enumerate(regs):
        if i == 0: continue
        ii = i % 4
        src = regs[0] if ii % 2 == 0 else T0 + 2
        p(f"v_add_u32 v{r}, {ii * 8 * 2048 + sub_off(i)}, v{src}")

class QKV(Gemm):
    NT = 6; KS = 2; nsteps = 16; nA = 4; nB = 6
    stepA = 128; stepB = 64 * 6144
    addr_regs = [32, 34, 35, 33]
    level = 2
    h_peel_head = 9
    def swap(self, n): return n >= 4
    def xaddr(self, kk, m): return (32 + kk, m * 2048)
    def waddr(self, kk, n, j): return (34 + n % 2, (32 * kk + 4 * j) * 384 + (n // 2) * 128)
    def aflag(self, c): return c.opt.get('ldflag', '')
    def h_setup(self, p, c):
        tile_map(p, 3)
        srd(p, S_A, ptr('x'), 2048 * 2048)
        srd(p, S_B, ptr('wqkv'), 1024 * 6144)
        h_xrows(p, [32, 33, 34, 35], lambda i: 0)
        p(f"""
        s_mul_i32 s3, s{S_WM}, 384
        s_lshl_b32 s4, s{S_NT}, 7
        """)
        for i in range(3):
            p(f"""
            v_add_u32 v{T0}, s3, v0
            v_add_u32 v{T0}, {64 * i}, v{T0}
            v_mul_u32_u24 v{T0+1}, 0xaab, v{T0}
            v_lshrrev_b32 v{T0+1}, 16, v{T0+1}
            v_mul_u32_u24 v{T0+2}, 24, v{T0+1}
            v_sub_u32 v{T0+2}, v{T0}, v{T0+2}
            v_lshrrev_b32 v{T0+3}, 3, v{T0+2}
            v_and_b32 v{T0+2}, 7, v{T0+2}
            v_and_b32 v{T0+4}, 2, v{T0+1}
            v_xor_b32 v{T0+2}, v{T0+2}, v{T0+4}
            v_mul_u32_u24 v{T0+1}, 6144, v{T0+1}
            v_lshl_add_u32 v{T0+1}, v{T0+3}, 11, v{T0+1}
            v_lshl_add_u32 v{T0+1}, v{T0+2}, 4, v{T0+1}
            v_add_u32 v{36 + i}, s4, v{T0+1}
            v_xor_b32 v{T0+1}, 64, v{36 + i}
            v_add_u32 v{39 + i}, {8 * 6144}, v{T0+1}
            """)
        p(f"""
        s_lshl_b32 s{S_LD[0]}, s{S_WM}, 12
        s_mul_i32 s{S_LD[1]}, s{S_WM}, 6144
        s_add_u32 s{S_LD[1]}, s{S_LD[1]}, 16384
        s_mov_b32 s{S_SO[0]}, 0
        s_mov_b32 s{S_SO[1]}, 0
        """)
    def g_setup(self, p, c):
        tile_map(p, 3)
        lane_fields(p, T0, T0 + 1, T0 + 2, T0 + 3)
        p(f"""
        v_lshrrev_b32 v{T0+4}, 1, v{T0}
        v_xor_b32 v{T0+4}, v{T0+4}, v{T0+1}
        v_lshlrev_b32 v{T0+4}, 4, v{T0+4}
        v_lshl_or_b32 v{T0+4}, v{T0}, 7, v{T0+4}
        s_lshl_b32 s3, s{S_WM}, 13
        s_add_u32 s3, s3, s{S_RD}
        v_add_u32 v32, s3, v{T0+4}
        v_xor_b32 v33, 64, v32
        v_lshl_add_u32 v{T0+4}, v{T0+1}, 3, v{T0+2}
        v_mul_u32_u24 v{T0+4}, 384, v{T0+4}
        v_lshrrev_b32 v{T0+5}, 1, v{T0+2}
        v_and_b32 v{T0+6}, 1, v{T0+1}
        v_lshl_or_b32 v{T0+5}, v{T0+6}, 1, v{T0+5}
        s_lshl_b32 s3, s{S_WN}, 1
        v_xor_b32 v{T0+5}, s3, v{T0+5}
        v_lshl_add_u32 v{T0+4}, v{T0+5}, 5, v{T0+4}
        v_lshl_add_u32 v{T0+4}, v{T0+3}, 3, v{T0+4}
        s_add_u32 s3, s{S_RD}, 16384
        v_add_u32 v34, s3, v{T0+4}
        v_xor_b32 v35, 32, v34
        """)
        self.g_zero(p)
    def g_body(self, p, c, pre): self.g_loop(p, c, self.nsteps, True, pre)
    def g_epi(self, p, c):
        st = c.opt.get('stflag', '')
        lane_fields(p, T0, T0 + 1)
        p(f"""
        s_waitcnt lgkmcnt(0)
        v_lshrrev_b32 v{T0+2}, 1, v{T0+1}
        v_and_b32 v{T0+3}, 1, v{T0+1}
        v_lshlrev_b32 v{T0+2}, 10, v{T0+2}
        v_lshl_or_b32 v{T0+2}, v{T0+3}, 9, v{T0+2}
        v_lshl_or_b32 v32, v{T0}, 4, v{T0+2}
        v_and_b32 v{T0+3}, 7, v{T0}
        v_lshrrev_b32 v{T0+4}, 3, v{T0}
        v_lshl_or_b32 v{T0+2}, v{T0+4}, 8, v{T0+2}
        v_lshl_or_b32 v33, v{T0+3}, 4, v{T0+2}
        s_lshl_b32 s3, s{S_NT}, 1
        s_add_u32 s3, s3, s{S_WN}
        s_lshl_b32 s4, s{S_MT}, 2
        s_lshl_b32 s5, s{S_WM}, 1
        s_add_u32 s4, s4, s5
        s_lshl_b32 s5, s3, 17
        s_lshl_b32 s6, s4, 11
        s_add_u32 s42, s5, s6
        s_lshl_b32 s43, s42, 1
        s_add_u32 s43, s43, {WS_KV}
        s_add_u32 s44, s43, 4096
        s_mov_b32 s46, {hexf(QSCALE)}
        s_mov_b32 s47, {hexf(QSCALE)}
        """)
        W = f"s[{S_WS}:{S_WS+3}]"
        t = V_FR
        for m in range(4):
            a, b = self.acc(m, 2), self.acc(m, 3)
            for i, r in enumerate((a, a + 2, b, b + 2)): p(f"v_cvt_pk_bf16_f32 v{t + i}, v{r}, v{r + 1}")
            p(f"buffer_store_dwordx4 {vr(t, 4)}, v33, {W}, s{43 + m // 2} offen offset:{(m % 2) * 128} {st}")
            t += 4
        for u in range(2):
            for nb in range(2):
                a = self.acc(2 * u, 4 + nb)
                for i in range(4): p(f"v_cvt_pk_bf16_f32 v{t + i}, v{a + 2 * i}, v{a + 2 * i + 1}")
                p(f"buffer_store_dwordx4 {vr(t, 4)}, v32, {W}, s{43 + u} offen offset:{2048 + nb * 256} {st}")
                t += 4
        for m in range(4):
            a, b = self.acc(m, 0), self.acc(m, 1)
            for r in (a, a + 2, b, b + 2): p(f"v_pk_mul_f32 {vr(r, 2)}, {vr(r, 2)}, s[46:47]")
            for i, r in enumerate((a, a + 2, b, b + 2)): p(f"v_cvt_pk_bf16_f32 v{t + i}, v{r}, v{r + 1}")
            p(f"buffer_store_dwordx4 {vr(t, 4)}, v32, {W}, s42 offen offset:{(m // 2) * 2048 + (m % 2) * 256} {st}")
            t += 4
    def h_first(self, p, c):
        srd(p, S_AUX, ptr('gate'), 2048)
        p(f"""
        s_lshl_b32 s48, s2, 3
        s_lshl_b32 s3, s{S_WM}, 1
        s_add_u32 s48, s48, s3
        s_lshl_b32 s3, s48, 11
        buffer_load_dwordx4 v[64:67], v1, s[{S_A}:{S_A+3}], s3 offen
        buffer_load_dwordx4 v[68:71], v1, s[{S_A}:{S_A+3}], s3 offen offset:1024
        buffer_load_dwordx4 v[72:75], v1, s[{S_A}:{S_A+3}], s3 offen offset:2048
        buffer_load_dwordx4 v[76:79], v1, s[{S_A}:{S_A+3}], s3 offen offset:3072
        buffer_load_dwordx4 v[80:83], v1, s[{S_AUX}:{S_AUX+3}], 0 offen
        buffer_load_dwordx4 v[84:87], v1, s[{S_AUX}:{S_AUX+3}], 0 offen offset:1024
        """)
        n = 6
        if c.opt.get('pf', 1):
            p(f"""
            s_lshl_b32 s3, s{S_WM}, 8
            s_add_u32 s3, s3, s2
            s_mul_i32 s3, s3, 6144
            s_lshl_b32 s4, s{S_WM}, 10
            s_add_u32 m0, s4, {L_DUMMY}
            """)
            for i in range(6):
                p(f"buffer_load_dwordx4 v1, s[{S_B}:{S_B+3}], s3 offen lds")
                p(f"s_add_u32 s3, s3, 1024")
            n += 6
        return n
    def h_extra(self, p, c, t):
        W = f"s[{S_WS}:{S_WS+3}]"
        st = c.opt.get('stflag', '')
        if t == 1:
            for i in range(8):
                p(f"v_lshlrev_b32 v{88 + 2 * i}, 16, v{80 + i}")
                p(f"v_and_b32 v{89 + 2 * i}, 0xffff0000, v{80 + i}")
            for row in range(2):
                ag, as_, aq = 48 + row, 50 + row, 52 + row
                for a in (ag, as_, aq): p(f"v_mov_b32 v{a}, 0")
                for i in range(8):
                    x = 64 + 8 * row + i
                    p(f"""
                    v_lshlrev_b32 v56, 16, v{x}
                    v_and_b32 v57, 0xffff0000, v{x}
                    v_add_f32 v{as_}, v{as_}, v56
                    v_fmac_f32 v{aq}, v56, v56
                    v_add_f32 v{as_}, v{as_}, v57
                    v_fmac_f32 v{aq}, v57, v57
                    v_mul_f32 v56, v56, v{88 + 2 * i}
                    v_mul_f32 v57, v57, v{89 + 2 * i}
                    v_cvt_pk_bf16_f32 v56, v56, v57
                    v_lshlrev_b32 v57, 16, v56
                    v_and_b32 v56, 0xffff0000, v56
                    v_add_f32 v{ag}, v{ag}, v57
                    v_add_f32 v{ag}, v{ag}, v56
                    """)
            for a in (48, 50, 52): p(f"v_permlane32_swap_b32 v{a}, v{a + 1}")
            for a in (48, 50, 52): p(f"v_add_f32 v{a}, v{a}, v{a + 1}")
            for a in (48, 50, 52): p(f"v_mov_b32 v{a + 1}, v{a}")
            for a in (48, 50, 52): p(f"v_permlane16_swap_b32 v{a}, v{a + 1}")
            for a in (48, 50, 52): p(f"v_add_f32 v{a}, v{a}, v{a + 1}")
            for sh in (8, 4, 2, 1):
                for a in (48, 50, 52): p(f"v_add_f32_dpp v{a}, v{a}, v{a} row_ror:{sh} row_mask:0xf bank_mask:0xf")
            p(f"""
            v_mul_f32 v50, {hexf(1.0 / 1024)}, v50
            v_mul_f32 v52, {hexf(1.0 / 1024)}, v52
            v_fma_f32 v52, -v50, v50, v52
            v_max_f32 v52, 0, v52
            v_add_f32 v52, {hexf(1e-5)}, v52
            v_rsq_f32 v52, v52
            v_cvt_pk_bf16_f32 v48, v48, v48
            v_and_b32 v48, 0xffff0000, v48
            v_mul_f32 v48, {hexf(-LOG2E)}, v48
            v_exp_f32 v48, v48
            v_add_f32 v48, 1.0, v48
            v_rcp_f32 v48, v48
            v_cvt_pk_bf16_f32 v48, v48, v48
            v_and_b32 v48, 0xffff0000, v48
            v_sub_f32 v49, 1.0, v48
            v_cvt_pk_bf16_f32 v49, v49, v49
            v_and_b32 v49, 0xffff0000, v49
            v_lshrrev_b32 v56, 5, v0
            v_add_u32 v56, s48, v56
            v_lshlrev_b32 v56, 2, v56
            s_mov_b32 s3, {WS_G}
            s_mov_b32 s4, {WS_G + 8192}
            s_mov_b32 s5, {WS_ST1}
            s_mov_b32 s6, {WS_ST1 + 8192}
            s_mov_b32 exec_lo, 1
            s_mov_b32 exec_hi, 1
            buffer_store_dword v48, v56, {W}, s3 offen {st}
            buffer_store_dword v49, v56, {W}, s4 offen {st}
            buffer_store_dword v50, v56, {W}, s5 offen {st}
            buffer_store_dword v52, v56, {W}, s6 offen {st}
            s_mov_b64 exec, -1
            """)
            return 4
        if t == 2:
            p(f"""
            s_lshl_b32 s3, s{S_WM}, 8
            s_add_u32 s3, s3, s2
            s_mul_i32 s4, s3, 1821
            s_lshr_b32 s4, s4, 16
            s_mul_i32 s5, s4, 36
            s_sub_u32 s5, s3, s5
            s_mul_i32 s49, s4, {4608 * 4}
            s_lshl_b32 s6, s5, 9
            s_add_u32 s49, s49, s6
            s_add_u32 s49, s49, {WS_CSP}
            s_cmp_lt_u32 s3, 576
            s_cselect_b32 s49, s49, {WS_SIZE}
            s_cselect_b32 s7, 1024, 0
            s_cmp_lt_u32 s5, 8
            s_cselect_b32 s{S_AUX}, s{ptr('w1')}, s{ptr('w3')}
            s_cselect_b32 s{S_AUX+1}, s{ptr('w1')+1}, s{ptr('w3')+1}
            s_cselect_b32 s6, 0, 8
            s_mov_b32 s3, 7168
            s_cselect_b32 s3, 2048, s3
            s_mul_i32 s{S_AUX+2}, s3, s7
            s_mov_b32 s{S_AUX+3}, 0x20000
            s_sub_u32 s5, s5, s6
            s_lshl_b32 s5, s5, 8
            s_lshl_b32 s4, s4, 6
            v_lshrrev_b32 v56, 4, v0
            v_add_u32 v56, s4, v56
            v_mul_lo_u32 v56, v56, s3
            v_and_b32 v57, 15, v0
            v_lshl_add_u32 v56, v57, 4, v56
            s_lshl_b32 s3, s3, 2
            """)
            for i in range(16):
                p(f"buffer_load_dwordx4 {vr(64 + 4 * i, 4)}, v56, s[{S_AUX}:{S_AUX+3}], s5 offen")
                if i < 15: p("s_add_u32 s5, s5, s3")
            return 16
        if t == 4:
            for i in range(8): p(f"v_mov_b32 v{48 + i}, 0")
            for i in range(16):
                for d in range(4):
                    x = 64 + 4 * i + d
                    p(f"""
                    v_lshlrev_b32 v56, 16, v{x}
                    v_and_b32 v57, 0xffff0000, v{x}
                    v_add_f32 v{48 + 2 * d}, v{48 + 2 * d}, v56
                    v_add_f32 v{49 + 2 * d}, v{49 + 2 * d}, v57
                    """)
            for i in range(4): p(f"v_permlane32_swap_b32 v{48 + i}, v{52 + i}")
            for i in range(4): p(f"v_add_f32 v{48 + i}, v{48 + i}, v{52 + i}")
            for i in range(2): p(f"v_permlane16_swap_b32 v{48 + i}, v{50 + i}")
            for i in range(2): p(f"v_add_f32 v{48 + i}, v{48 + i}, v{50 + i}")
            p(f"""
            v_and_b32 v56, 15, v0
            v_lshrrev_b32 v57, 4, v0
            v_lshlrev_b32 v56, 5, v56
            v_lshl_add_u32 v56, v57, 3, v56
            buffer_store_dwordx2 v[48:49], v56, {W}, s49 offen {st}
            """)
            return 1
        if t in (5, 6) and c.opt.get('pf', 1):
            p(f"""
            s_lshl_b32 s3, s{S_WM}, 8
            s_add_u32 s3, s3, s2
            s_lshl_b32 s4, s{S_WM}, 10
            s_add_u32 m0, s4, {L_DUMMY}
            """)
            n = 0
            for nm, per in ((('w2', 2), ('wo', 2)) if t == 5 else (('w4', 7),)):
                srd(p, S_AUX, ptr(nm), per * 1024 * 1024)
                p(f"s_mul_i32 s5, s3, {per * 1024}")
                for i in range(per):
                    p(f"buffer_load_dwordx4 v1, s[{S_AUX}:{S_AUX+3}], s5 offen lds")
                    p(f"s_add_u32 s5, s5, 1024")
                    n += 1
            return n
        if t == 8 and c.opt.get('persist'):
            publish(c, 1)(p)
            return 0
        return 0

class N64(Gemm):
    NT = 2; KS = 4; nA = 8; nB = 4
    stepB = 128 * 2048
    order = 'perm32'; bname = None; babytes = 1024 * 2048
    a_pitch = 32768; a_base = 0; a_size = 4 * MB
    stepA = 4096
    addr_regs = [32, 34, 35]
    def xaddr(self, kk, m): return (32, m * 4096 + kk * 1024)
    def waddr(self, kk, n, j):
        js = {'nat': 4, 'perm32': 16, 'perm32b': 8}[self.order]
        return (34 + n, (32 * kk + js * j) * 128)
    def h_setup_a(self, p, c):
        srd(p, S_A, ptr('ws'), self.a_size, self.a_base)
        p(f"""
        s_lshl_b32 s3, s{S_MT}, 3
        s_lshl_b32 s4, s{S_WM}, 1
        s_add_u32 s3, s3, s4
        s_mul_i32 s3, s3, {self.a_pitch}
        v_add_u32 v32, s3, v1
        """)
        for i in range(1, 8): p(f"v_add_u32 v{32 + i}, {(i // 4) * self.a_pitch + (i % 4) * 1024}, v32")
        p(f"s_mov_b32 s{S_SO[0]}, {self.a_k0}")
    a_k0 = 0
    def h_setup(self, p, c):
        tile_map(p, 2)
        self.h_setup_a(p, c)
        srd(p, S_B, ptr(self.bname), self.babytes)
        p(f"""
        v_lshrrev_b32 v{T0}, 3, v0
        v_and_b32 v{T0+1}, 7, v0
        v_and_b32 v{T0+2}, {2 if self.order == 'nat' else 6}, v{T0}
        v_xor_b32 v{T0+1}, v{T0+1}, v{T0+2}
        s_lshl_b32 s3, s{S_WM}, 5
        v_add_u32 v{T0}, s3, v{T0}
        v_lshlrev_b32 v{T0}, 11, v{T0}
        v_lshl_add_u32 v{T0}, v{T0+1}, 4, v{T0}
        s_lshl_b32 s4, s{S_NT}, 7
        v_add_u32 v40, s4, v{T0}
        """)
        if self.order == 'nat':
            p(f"v_xor_b32 v{T0}, 64, v40")
            p(f"v_add_u32 v41, {8 * 2048}, v{T0}\nv_add_u32 v42, {16 * 2048}, v40\nv_add_u32 v43, {24 * 2048}, v{T0}")
        else:
            for i in range(1, 4): p(f"v_add_u32 v{40 + i}, {8 * i * 2048}, v40")
        p(f"""
        s_lshl_b32 s{S_LD[0]}, s{S_WM}, 13
        s_lshl_b32 s{S_LD[1]}, s{S_WM}, 12
        s_add_u32 s{S_LD[1]}, s{S_LD[1]}, 32768
        s_mov_b32 s{S_SO[1]}, 0
        """)
    def g_setup_x(self, p, c):
        p(f"""
        s_lshl_b32 s3, s{S_WM}, 14
        s_add_u32 s3, s3, s{S_RD}
        v_add_u32 v32, s3, v1
        """)
    def g_setup(self, p, c):
        tile_map(p, 2)
        lane_fields(p, T0, T0 + 1, T0 + 2, T0 + 3)
        self.g_setup_x(p, c)
        if self.order == 'nat': p(f"v_lshl_add_u32 v{T0+4}, v{T0+1}, 3, v{T0+2}")
        elif self.order == 'perm32': p(f"v_lshl_add_u32 v{T0+4}, v{T0+1}, 2, v{T0+2}")
        else:
            p(f"""
            v_lshrrev_b32 v{T0+4}, 1, v{T0+1}
            v_lshl_add_u32 v{T0+4}, v{T0+4}, 4, v{T0+2}
            v_and_b32 v{T0+5}, 1, v{T0+1}
            v_lshl_add_u32 v{T0+4}, v{T0+5}, 2, v{T0+4}
            """)
        p(f"""
        v_lshlrev_b32 v{T0+4}, 7, v{T0+4}
        v_lshrrev_b32 v{T0+5}, 1, v{T0+2}
        v_and_b32 v{T0+6}, 1, v{T0+1}
        v_lshl_or_b32 v{T0+5}, v{T0+6}, 1, v{T0+5}
        s_lshl_b32 s3, s{S_WN}, 1
        v_xor_b32 v{T0+5}, s3, v{T0+5}
        v_lshl_add_u32 v{T0+4}, v{T0+5}, 5, v{T0+4}
        v_lshl_add_u32 v{T0+4}, v{T0+3}, 3, v{T0+4}
        s_add_u32 s3, s{S_RD}, 32768
        v_add_u32 v34, s3, v{T0+4}
        v_xor_b32 v35, 32, v34
        """)
        self.g_pre(p, c)
        self.g_zero(p)
    def g_pre(self, p, c): pass
    def g_body(self, p, c, pre): self.g_loop(p, c, self.nsteps, True, pre)

def gelu_consts(p, mu, rs, og, kp, wp, tmp):
    p(f"""
    v_mul_f32 v{tmp}, v{rs}, v{rs}
    v_mul_f32 v{kp + 1}, {hexf(GC0)}, v{rs}
    v_mul_f32 v{tmp}, v{tmp}, v{rs}
    v_mul_f32 v{kp}, {hexf(GC1)}, v{tmp}
    """)
    if og is not None:
        p(f"""
        v_max_f32 v{tmp}, {hexf(1e-30)}, v{og}
        v_mul_f32 v{tmp}, v{tmp}, v{rs}
        v_rcp_f32 v{wp}, v{tmp}
        """)
    else:
        p(f"v_rcp_f32 v{wp}, v{rs}")
    p(f"v_min_f32 v{wp}, {hexf(1e38)}, v{wp}")

def gelu_block(p, items, tmp):
    T = [tmp + 2 * i for i in range(len(items))]
    for (r, cs, mw, kp) in items:
        p(f"v_pk_fma_f32 {vr(r,2)}, {vr(cs,2)}, {vr(mw,2)}, {vr(r,2)} op_sel_hi:[1,0,1] neg_lo:[1,0,0] neg_hi:[1,0,0]")
    for (r, cs, mw, kp), t in zip(items, T): p(f"v_pk_mul_f32 {vr(t,2)}, {vr(r,2)}, {vr(r,2)}")
    for (r, cs, mw, kp), t in zip(items, T):
        p(f"v_pk_fma_f32 {vr(t,2)}, {vr(t,2)}, {vr(kp,2)}, {vr(kp,2)} op_sel:[0,0,1] op_sel_hi:[1,0,1]")
    for (r, cs, mw, kp), t in zip(items, T): p(f"v_pk_mul_f32 {vr(t,2)}, {vr(t,2)}, {vr(r,2)}")
    for t in T:
        p(f"v_exp_f32 v{t}, v{t}"); p(f"v_exp_f32 v{t+1}, v{t+1}")
    for (r, cs, mw, kp), t in zip(items, T):
        p(f"v_pk_fma_f32 {vr(t,2)}, {vr(t,2)}, {vr(mw,2)}, {vr(mw,2)} op_sel:[0,1,1] op_sel_hi:[1,1,1]")
    for t in T:
        p(f"v_rcp_f32 v{t}, v{t}"); p(f"v_rcp_f32 v{t+1}, v{t+1}")
    for (r, cs, mw, kp), t in zip(items, T): p(f"v_pk_mul_f32 {vr(r,2)}, {vr(r,2)}, {vr(t,2)}")

def h_colsum_load(p, c, col0_sgpr, ncols):
    W = f"s[{S_WS}:{S_WS+3}]"
    ho = c.opt.get('hoflag', '')
    p(f"""
    s_lshl_b32 s3, s{S_WM}, 6
    s_add_u32 s3, s3, s{col0_sgpr}
    v_add_u32 v56, s3, v0
    v_lshlrev_b32 v56, 2, v56
    s_mov_b32 s4, {WS_CSP}
    """)
    for i in range(16):
        p(f"buffer_load_dword v{64 + i}, v56, {W}, s4 offen {ho}")
        if i < 15: p(f"s_add_u32 s4, s4, {4608 * 4}")
    return 16
def h_colsum_fin(p):
    for st in (8, 4, 2, 1):
        for i in range(st): p(f"v_add_f32 v{64 + i}, v{64 + i}, v{64 + i + st}")
    p(f"""
    s_lshl_b32 s3, s{S_WM}, 8
    s_add_u32 s3, s3, {L_CS}
    v_lshl_add_u32 v56, v0, 2, s3
    ds_write_b32 v56, v64
    """)

class W1(N64):
    nsteps = 8; order = 'nat'; bname = 'w1'; stepA = 256
    addr_regs = [32, 34, 35, 33]
    dep = 1; level = 3
    h_peel_head = 4
    def aflag(self, c): return c.opt.get('ldflag', '')
    def xaddr(self, kk, m): return (32 + kk % 2, (m // 2) * 8192 + (m % 2) * 2048 + (kk // 2) * 4096)
    def h_setup_a(self, p, c):
        srd(p, S_A, ptr('x'), 2048 * 2048)
        h_xrows(p, list(range(32, 40)), lambda i: (i // 4) * 128)
        p(f"s_mov_b32 s{S_SO[0]}, 0")
    def g_setup_x(self, p, c):
        p(f"""
        v_lshrrev_b32 v{T0+4}, 1, v{T0}
        v_xor_b32 v{T0+4}, v{T0+4}, v{T0+1}
        v_lshlrev_b32 v{T0+4}, 4, v{T0+4}
        v_lshl_or_b32 v{T0+4}, v{T0}, 7, v{T0+4}
        s_lshl_b32 s3, s{S_WM}, 14
        s_add_u32 s3, s3, s{S_RD}
        v_add_u32 v32, s3, v{T0+4}
        v_xor_b32 v33, 64, v32
        """)
    def g_pre(self, p, c):
        ho = c.opt.get('hoflag', '')
        p(f"""
        s_lshl_b32 s3, s{S_MT}, 7
        s_lshl_b32 s4, s{S_WM}, 6
        s_add_u32 s3, s3, s4
        v_add_u32 v{T0+7}, s3, v{T0}
        v_lshlrev_b32 v36, 2, v{T0+7}
        s_mov_b32 s3, {WS_ST1}
        s_mov_b32 s4, {WS_ST1 + 8192}
        """)
        for m in range(4):
            p(f"buffer_load_dword v{96 + 2 * m}, v36, s[{S_WS}:{S_WS+3}], s3 offen offset:{64 * m} {ho}")
            p(f"buffer_load_dword v{104 + m}, v36, s[{S_WS}:{S_WS+3}], s4 offen offset:{64 * m} {ho}")
    def h_extra(self, p, c, t):
        if t == 1:
            p(f"s_lshl_b32 s50, s{S_NT}, 6")
            return h_colsum_load(p, c, 50, 64)
        if t == 3: h_colsum_fin(p)
        return 0
    def g_epi(self, p, c):
        st = c.opt.get('stflag', '')
        W = f"s[{S_WS}:{S_WS+3}]"
        lane_fields(p, T0, T0 + 1)
        p(f"""
        s_waitcnt lgkmcnt(0)
        s_lshl_b32 s3, s{S_WN}, 7
        s_add_u32 s3, s3, {L_CS}
        v_lshl_add_u32 v36, v{T0+1}, 4, s3
        ds_read_b128 v[48:51], v36
        ds_read_b128 v[52:55], v36 offset:64
        """)
        for m in range(4): gelu_consts(p, 96 + 2 * m, 104 + m, None, 108 + 2 * m, 97 + 2 * m, 116)
        p(f"""
        s_lshr_b32 s5, s{S_NT}, 2
        s_lshr_b32 s6, s5, 1
        s_add_u32 s6, s6, 1
        s_sub_u32 s7, 0, s6
        s_bitcmp1_b32 s5, 0
        s_cselect_b32 s6, s7, s6
        s_lshl_b32 s3, s{S_MT}, 7
        s_lshl_b32 s4, s{S_WM}, 6
        s_add_u32 s3, s3, s4
        s_add_u32 s6, s6, s3
        s_lshl_b32 s3, s{S_NT}, 1
        s_add_u32 s3, s3, s{S_WN}
        s_lshl_b32 s42, s3, 10
        s_add_u32 s42, s42, {WS_HS}
        """)
        for mp in range(2):
            items = []
            for m in (2 * mp, 2 * mp + 1):
                for n in range(2):
                    for h in range(2): items.append((self.acc(m, n) + 2 * h, 48 + 4 * n + 2 * h, 96 + 2 * m, 108 + 2 * m))
            gelu_block(p, items, 56)
            for m in (2 * mp, 2 * mp + 1):
                a, b = self.acc(m, 0), self.acc(m, 1)
                t = 72 + 4 * m
                p(f"""
                v_add_u32 v{T0+2}, s6, v{T0}
                v_add_u32 v{T0+2}, {16 * m}, v{T0+2}
                v_cmp_gt_u32 vcc, 2048, v{T0+2}
                v_and_b32 v{T0+2}, 2047, v{T0+2}
                v_lshrrev_b32 v{T0+3}, 4, v{T0+2}
                v_and_b32 v{T0+2}, 15, v{T0+2}
                v_lshl_add_u32 v{T0+2}, v{T0+1}, 4, v{T0+2}
                v_lshlrev_b32 v{T0+2}, 4, v{T0+2}
                v_lshl_add_u32 v{36 + m}, v{T0+3}, 15, v{T0+2}
                """)
                for i, r in enumerate((a, a + 2, b, b + 2)): p(f"v_cvt_pk_bf16_f32 v{t + i}, v{r}, v{r + 1}")
                for i in range(4): p(f"v_cndmask_b32 v{t + i}, 0, v{t + i}, vcc")
                p(f"buffer_store_dwordx4 {vr(t, 4)}, v{36 + m}, {W}, s42 offen {st}")

class W2(N64):
    nsteps = 8; order = 'perm32'; bname = 'w2'; a_base = WS_HS
    dep = 3; level = 4
    def g_pre(self, p, c):
        srd(p, S_AUX, ptr('x'), 2048 * 2048)
        p(f"""
        s_lshl_b32 s3, s{S_MT}, 7
        s_lshl_b32 s4, s{S_WM}, 6
        s_add_u32 s3, s3, s4
        v_add_u32 v{T0+7}, s3, v{T0}
        v_lshlrev_b32 v36, 11, v{T0+7}
        v_lshl_add_u32 v36, v{T0+1}, 3, v36
        s_lshl_b32 s3, s{S_NT}, 7
        s_lshl_b32 s4, s{S_WN}, 6
        s_add_u32 s3, s3, s4
        """)
        for m in range(4):
            for n in range(2):
                p(f"buffer_load_dwordx2 {vr(96 + 4 * m + 2 * n, 2)}, v36, s[{S_AUX}:{S_AUX+3}], s3 offen offset:{32 * n}")
            if m < 3: p(f"s_add_u32 s3, s3, {16 * 2048}")
    def g_epi(self, p, c):
        st = c.opt.get('stflag', '')
        W = f"s[{S_WS}:{S_WS+3}]"
        p(f"""
        s_waitcnt lgkmcnt(0)
        s_lshl_b32 s3, s{S_NT}, 1
        s_add_u32 s3, s3, s{S_WN}
        s_lshl_b32 s4, s{S_MT}, 3
        s_lshl_b32 s5, s{S_WM}, 2
        s_add_u32 s4, s4, s5
        s_lshl_b32 s42, s4, 15
        s_lshl_b32 s5, s3, 10
        s_add_u32 s42, s42, s5
        s_add_u32 s42, s42, {WS_X1}
        s_lshl_b32 s43, s3, 14
        s_lshl_b32 s5, s4, 7
        s_add_u32 s43, s43, s5
        s_add_u32 s43, s43, {WS_P2}
        """)
        for m in range(4):
            for n in range(2):
                a = self.acc(m, n)
                for d in range(2):
                    x = 96 + 4 * m + 2 * n + d
                    p(f"v_lshlrev_b32 v48, 16, v{x}\nv_and_b32 v49, 0xffff0000, v{x}")
                    p(f"v_pk_add_f32 {vr(a + 2 * d, 2)}, {vr(a + 2 * d, 2)}, v[48:49]")
            a, b = self.acc(m, 0), self.acc(m, 1)
            t = 72 + 4 * m
            for i, r in enumerate((a, a + 2, b, b + 2)): p(f"v_cvt_pk_bf16_f32 v{t + i}, v{r}, v{r + 1}")
            p(f"buffer_store_dwordx4 {vr(t, 4)}, v1, {W}, s42 offen {st}")
            if m < 3: p(f"s_add_u32 s42, s42, 32768")
            p(f"""
            v_pk_add_f32 v[50:51], {vr(a, 2)}, {vr(a + 2, 2)}
            v_pk_mul_f32 v[52:53], {vr(a, 2)}, {vr(a, 2)}
            v_pk_add_f32 v[50:51], v[50:51], {vr(b, 2)}
            v_pk_fma_f32 v[52:53], {vr(a + 2, 2)}, {vr(a + 2, 2)}, v[52:53]
            v_pk_add_f32 v[50:51], v[50:51], {vr(b + 2, 2)}
            v_pk_fma_f32 v[52:53], {vr(b, 2)}, {vr(b, 2)}, v[52:53]
            v_pk_fma_f32 v[52:53], {vr(b + 2, 2)}, {vr(b + 2, 2)}, v[52:53]
            v_add_f32 v{56 + 2 * m}, v50, v51
            v_add_f32 v{57 + 2 * m}, v52, v53
            """)
        for i in range(4): p(f"v_permlane32_swap_b32 v{56 + i}, v{60 + i}")
        for i in range(4): p(f"v_add_f32 v{56 + i}, v{56 + i}, v{60 + i}")
        for i in range(2): p(f"v_permlane16_swap_b32 v{56 + i}, v{58 + i}")
        for i in range(2): p(f"v_add_f32 v{56 + i}, v{56 + i}, v{58 + i}")
        p(f"""
        v_lshlrev_b32 v36, 3, v0
        buffer_store_dwordx2 v[56:57], v36, {W}, s43 offen {st}
        """)

AF_PITCH = 144 * 1024
class W3(Gemm):
    NT = 7; KS = 2; nsteps = 16; nA = 4; nB = 8
    stepA = 2048; stepB = 64 * 7168
    addr_regs = [32, 33, 34, 35, 36, 37, 38, 39]
    dep = 4; level = 5
    h_peel_head = 5
    def xaddr(self, kk, m): return (32, m * 2048 + kk * 1024)
    def waddr(self, kk, n, j): return (33 + n, (32 * kk + 16 * j) * 512)
    def h_setup(self, p, c):
        tile_map(p, 3)
        srd(p, S_A, ptr('ws'), 4 * MB, WS_X1)
        srd(p, S_B, ptr('w3'), 1024 * 7168)
        p(f"""
        s_lshl_b32 s3, s{S_MT}, 3
        s_lshl_b32 s4, s{S_WM}, 1
        s_add_u32 s3, s3, s4
        s_lshl_b32 s3, s3, 15
        v_add_u32 v32, s3, v1
        v_add_u32 v33, 1024, v32
        v_add_u32 v34, 32768, v32
        v_add_u32 v35, {32768 + 1024}, v32
        s_mul_i32 s4, s{S_NT}, 448
        s_and_b32 s4, s4, {0xffffff80}
        s_mul_i32 s3, s{S_WM}, {16 * 7168}
        s_add_u32 s4, s4, s3
        v_lshrrev_b32 v{T0}, 5, v0
        v_and_b32 v{T0+1}, 31, v0
        v_mul_u32_u24 v{T0+2}, 7168, v{T0}
        v_add_u32 v{T0+2}, s4, v{T0+2}
        v_lshlrev_b32 v{T0}, 1, v{T0}
        v_xor_b32 v{T0+1}, v{T0+1}, v{T0}
        """)
        for i in range(4):
            p(f"""
            v_xor_b32 v{T0+3}, {4 * i}, v{T0+1}
            v_lshl_add_u32 v{T0+3}, v{T0+3}, 4, v{T0+2}
            v_add_u32 v{36 + i}, {2 * i * 7168}, v{T0+3}
            v_add_u32 v{40 + i}, {(2 * i + 8) * 7168}, v{T0+3}
            """)
        p(f"""
        s_lshl_b32 s{S_LD[0]}, s{S_WM}, 12
        s_lshl_b32 s{S_LD[1]}, s{S_WM}, 13
        s_add_u32 s{S_LD[1]}, s{S_LD[1]}, 16384
        s_mov_b32 s{S_SO[0]}, 0
        s_mov_b32 s{S_SO[1]}, 0
        """)
    def g_setup(self, p, c):
        tile_map(p, 3)
        lane_fields(p, None, T0 + 1, T0 + 2, T0 + 3)
        p(f"""
        s_lshl_b32 s3, s{S_WM}, 13
        s_add_u32 s3, s3, s{S_RD}
        v_add_u32 v32, s3, v1
        v_lshl_add_u32 v{T0+4}, v{T0+1}, 2, v{T0+2}
        v_and_b32 v{T0+5}, 7, v{T0+4}
        v_lshlrev_b32 v{T0+4}, 9, v{T0+4}
        v_lshl_add_u32 v{T0+4}, v{T0+3}, 3, v{T0+4}
        s_add_u32 s3, s{S_RD}, 16384
        v_add_u32 v{T0+4}, s3, v{T0+4}
        s_and_b32 s3, s{S_NT}, 1
        s_lshl_b32 s3, s3, 1
        s_mul_i32 s4, s{S_WN}, 7
        s_add_u32 s3, s3, s4
        """)
        for n in range(7):
            p(f"""
            v_xor_b32 v{T0+6}, s3, v{T0+5}
            v_lshl_add_u32 v{33 + n}, v{T0+6}, 5, v{T0+4}
            s_add_u32 s3, s3, 1
            """)
        self.g_zero(p)
    def g_body(self, p, c, pre): self.g_loop(p, c, self.nsteps, True, pre)
    def h_extra(self, p, c, t):
        W = f"s[{S_WS}:{S_WS+3}]"
        ho = c.opt.get('hoflag', '')
        if t == 1:
            p(f"s_mul_i32 s50, s{S_NT}, 224\ns_add_u32 s50, s50, 1024")
            n = h_colsum_load(p, c, 50, 224)
            p(f"""
            v_and_b32 v57, 15, v0
            v_lshrrev_b32 v58, 4, v0
            v_lshlrev_b32 v57, 4, v57
            v_lshl_add_u32 v57, v58, 17, v57
            s_lshl_b32 s3, s{S_MT}, 10
            s_lshl_b32 s4, s{S_WM}, 8
            s_add_u32 s3, s3, s4
            s_lshr_b32 s5, s3, 1
            s_add_u32 s5, s5, {WS_G + 8192}
            s_add_u32 s3, s3, {WS_P2}
            v_lshlrev_b32 v58, 2, v0
            """)
            for i in range(8):
                p(f"buffer_load_dwordx4 {vr(80 + 4 * i, 4)}, v57, {W}, s3 offen {ho}")
                if i < 7: p(f"s_add_u32 s3, s3, 16384")
            p(f"buffer_load_dword v112, v58, {W}, s5 offen {ho}")
            return n + 9
        if t == 3:
            h_colsum_fin(p)
            for st_ in (4, 2, 1):
                for i in range(st_):
                    for d in range(4): p(f"v_add_f32 v{80 + 4 * i + d}, v{80 + 4 * i + d}, v{80 + 4 * (i + st_) + d}")
            p(f"""
            v_permlane32_swap_b32 v80, v82
            v_permlane32_swap_b32 v81, v83
            v_add_f32 v80, v80, v82
            v_add_f32 v81, v81, v83
            v_mov_b32 v82, v80
            v_mov_b32 v83, v81
            v_permlane16_swap_b32 v80, v82
            v_permlane16_swap_b32 v81, v83
            v_add_f32 v80, v80, v82
            v_add_f32 v81, v81, v83
            v_mul_f32 v80, {hexf(1.0 / 1024)}, v80
            v_mul_f32 v81, {hexf(1.0 / 1024)}, v81
            v_fma_f32 v81, -v80, v80, v81
            v_max_f32 v81, 0, v81
            v_add_f32 v81, {hexf(1e-5)}, v81
            v_rsq_f32 v81, v81
            v_and_b32 v57, 15, v0
            v_lshrrev_b32 v58, 5, v0
            v_lshl_add_u32 v57, v57, 1, v58
            s_lshl_b32 s3, s{S_WM}, 7
            s_add_u32 s3, s3, {L_MU}
            v_lshl_add_u32 v57, v57, 2, s3
            ds_write_b32 v57, v80
            ds_write_b32 v57, v81 offset:512
            v_lshl_add_u32 v58, v0, 2, s3
            s_mov_b32 exec_hi, 0
            ds_write_b32 v58, v112 offset:1024
            s_mov_b32 exec_hi, -1
            """)
        return 0
    def g_epi(self, p, c):
        st = c.opt.get('stflag', '')
        W = f"s[{S_WS}:{S_WS+3}]"
        lane_fields(p, 40, 41)
        p(f"""
        s_waitcnt lgkmcnt(0)
        s_mul_i32 s3, s{S_WN}, 448
        s_add_u32 s3, s3, {L_CS}
        v_lshl_add_u32 v36, v41, 4, s3
        s_lshl_b32 s3, s{S_WM}, 8
        s_add_u32 s3, s3, {L_MU}
        v_lshl_add_u32 v37, v40, 2, s3
        """)
        for m in range(4):
            p(f"ds_read_b32 v{76 + 2 * m}, v37 offset:{64 * m}")
            p(f"ds_read_b32 v{84 + m}, v37 offset:{512 + 64 * m}")
            p(f"ds_read_b32 v{88 + m}, v37 offset:{1024 + 64 * m}")
        for n in range(7): p(f"ds_read_b128 {vr(48 + 4 * n, 4)}, v36 offset:{64 * n}")
        for m in range(4): gelu_consts(p, 76 + 2 * m, 84 + m, 88 + m, 92 + 2 * m, 77 + 2 * m, 100)
        p(f"""
        v_lshrrev_b32 v38, 5, v0
        v_mul_u32_u24 v38, {AF_PITCH}, v38
        v_and_b32 v39, 31, v0
        v_lshl_add_u32 v38, v39, 4, v38
        s_lshl_b32 s3, s{S_MT}, 3
        s_lshl_b32 s4, s{S_WM}, 2
        s_add_u32 s3, s3, s4
        s_mul_i32 s42, s3, {AF_PITCH}
        s_mul_i32 s3, s{S_NT}, 14
        s_mul_i32 s4, s{S_WN}, 7
        s_add_u32 s3, s3, s4
        s_lshl_b32 s3, s3, 9
        s_add_u32 s42, s42, s3
        s_add_u32 s42, s42, {WS_AF}
        s_add_u32 s43, s42, {2 * AF_PITCH}
        """)
        for n in range(7):
            items = []
            for m in range(4):
                for h in range(2): items.append((self.acc(m, n) + 2 * h, 48 + 4 * n + 2 * h, 76 + 2 * m, 92 + 2 * m))
            gelu_block(p, items, 100 + 16 * (n % 2))
            for u in range(2):
                a = self.acc(2 * u, n)
                for i in range(4): p(f"v_cvt_pk_bf16_f32 v{a + i}, v{a + 2 * i}, v{a + 2 * i + 1}")
            for u in range(2):
                a = self.acc(2 * u, n)
                p(f"v_permlane32_swap_b32 v{a}, v{a + 2}")
                p(f"v_permlane32_swap_b32 v{a + 1}, v{a + 3}")
            for u in range(2):
                a = self.acc(2 * u, n)
                p(f"buffer_store_dwordx4 {vr(a, 4)}, v38, {W}, s{42 + u} offen offset:{n * 512} {st}")

class W4(N64):
    nsteps = 28; order = 'perm32b'; bname = 'w4'; babytes = 3584 * 2048
    a_base = WS_AF; a_size = 18 * MB; a_pitch = AF_PITCH
    dep = 5; level = 0
    def g_pre(self, p, c):
        ho = c.opt.get('hoflag', '')
        W = f"s[{S_WS}:{S_WS+3}]"
        p(f"""
        s_lshl_b32 s3, s{S_NT}, 1
        s_add_u32 s3, s3, s{S_WN}
        s_lshl_b32 s4, s{S_MT}, 3
        s_lshl_b32 s5, s{S_WM}, 2
        s_add_u32 s4, s4, s5
        s_lshl_b32 s6, s4, 15
        s_lshl_b32 s5, s3, 10
        s_add_u32 s6, s6, s5
        s_add_u32 s6, s6, {WS_X1}
        s_lshl_b32 s4, s4, 6
        s_add_u32 s4, s4, {WS_G + 8192}
        v_lshlrev_b32 v36, 2, v{T0}
        """)
        for m in range(4):
            p(f"buffer_load_dwordx4 {vr(96 + 4 * m, 4)}, v1, {W}, s6 offen {ho}")
            p(f"buffer_load_dword v{112 + 2 * m}, v36, {W}, s4 offen offset:{64 * m} {ho}")
            if m < 3: p("s_add_u32 s6, s6, 32768")
    def g_body(self, p, c, pre): self.g_loop(p, c, 36, True, pre)
    def g_epi(self, p, c): pass

class WO(N64):
    nsteps = 8; order = 'perm32b'; bname = 'wo'
    a_base = WS_AF; a_size = 18 * MB; a_pitch = AF_PITCH; a_k0 = 112 * 1024
    dep = 6; level = 0
    def g_setup(self, p, c): pass
    def g_body(self, p, c, pre): pass
    def g_epi(self, p, c):
        st = c.opt.get('outflag', '')
        srd(p, S_AUX, ptr('out'), 2048 * 2048)
        lane_fields(p, T0, T0 + 1)
        p(f"""
        s_waitcnt lgkmcnt(0)
        s_lshl_b32 s3, s{S_MT}, 7
        s_lshl_b32 s4, s{S_WM}, 6
        s_add_u32 s3, s3, s4
        v_add_u32 v36, s3, v{T0}
        v_lshlrev_b32 v36, 11, v36
        v_and_b32 v{T0+2}, 1, v{T0+1}
        v_lshrrev_b32 v{T0+3}, 1, v{T0+1}
        v_lshl_add_u32 v36, v{T0+2}, 5, v36
        v_lshl_add_u32 v36, v{T0+3}, 4, v36
        s_lshl_b32 s3, s{S_NT}, 7
        s_lshl_b32 s4, s{S_WN}, 6
        s_add_u32 s42, s3, s4
        """)
        for m in range(4):
            for n in range(2):
                a = self.acc(m, n)
                for d in range(2):
                    x = 96 + 4 * m + 2 * n + d
                    p(f"v_lshlrev_b32 v48, 16, v{x}\nv_and_b32 v49, 0xffff0000, v{x}")
                    p(f"v_pk_fma_f32 {vr(a + 2 * d, 2)}, v[48:49], {vr(112 + 2 * m, 2)}, {vr(a + 2 * d, 2)} op_sel_hi:[1,0,1]")
            a, b = self.acc(m, 0), self.acc(m, 1)
            t = 72 + 4 * m
            for i, r in enumerate((a, a + 2, b, b + 2)): p(f"v_cvt_pk_bf16_f32 v{t + i}, v{r}, v{r + 1}")
            p(f"v_permlane16_swap_b32 v{t}, v{t + 2}")
            p(f"v_permlane16_swap_b32 v{t + 1}, v{t + 3}")
            p(f"buffer_store_dwordx4 {vr(t, 4)}, v36, s[{S_AUX}:{S_AUX+3}], s42 offen {st}")
            if m < 3: p(f"s_add_u32 s42, s42, {16 * 2048}")
```

```python
from mk import *
from attn import *
base = dict(stamp=1, stflag='sc1')
make("m3a.s", [[QKV], [W1], [Attn(0, 16)], [W2], [W3], [W4, WO]], dict(base))
make("m3b.s", [[QKV], [W1], [Attn(0, 16)], [W2], [W3], [W4, WO]], dict(base, lmaxlog=4))
make("m3f.s", [[QKV], [W1], [Attn(0, 16)], [W2], [W3], [W4, WO]], dict(stflag='sc1'))
print("mb/m3a.s mb/m3b.s")
```

```python
from tasks import *

A_C, A_S, A_K, A_V, A_P, A_SEL, A_AD = 48, (64, 80), 96, (104, 112), (120, 124), 144, 148
V_G = 31

class Attn(Task):
    nd = 4
    pubstep = 2
    def __init__(self, c0, n):
        self.c0 = c0; self.nsteps = n
        self.first = c0 == 0; self.last = c0 + n == 16
        self.pubkind = F_ATT if self.last else None
        self.late = self.first
        if self.first: self.poll = lambda c: poll_flags(c, F_QKV, S_HEAD, shift=1)
    def __call__(self): return self
    def early(self, p, c):
        ho = c.opt.get('hoflag', '')
        W = f"s[{S_WS}:{S_WS+3}]"
        if self.first:
            p(f"""
            s_lshl_b32 s3, s{S_HEAD}, 17
            s_lshl_b32 s4, s{S_BLK}, 11
            s_add_u32 s3, s3, s4
            buffer_load_dwordx4 {vr(V_Q, 4)}, v1, {W}, s3 offen {ho}
            buffer_load_dwordx4 {vr(V_Q + 4, 4)}, v1, {W}, s3 offen offset:1024 {ho}
            """)
        if self.last:
            p(f"""
            s_lshl_b32 s3, s{S_BLK}, 7
            s_add_u32 s3, s3, {WS_G}
            v_and_b32 v{V_G}, 31, v0
            v_lshlrev_b32 v{V_G}, 2, v{V_G}
            buffer_load_dword v{V_G}, v{V_G}, {W}, s3 offen {ho}
            """)
    def h_post_dep(self, p, c): self.early(p, c)
    def h_setup(self, p, c, first=False):
        srd(p, S_A, ptr('ws'), 8 * MB, WS_KV)
        p(f"""
        s_lshl_b32 s3, s{S_HEAD}, 18
        s_lshl_b32 s{S_LD[0]}, s{S_WM}, 12
        s_add_u32 s3, s3, s{S_LD[0]}
        s_add_u32 s{S_SO[0]}, s3, {self.c0 * 16384}
        """)
    def dma_atoms(self, c):
        ho = c.opt.get('hoflag', '')
        D = [f"buffer_load_dwordx4 v1, s[{S_A}:{S_A+3}], s{S_SO[0]} offen offset:{1024 * i} {ho} lds" for i in range(4)]
        D[0] = f"s_add_u32 m0, s{S_DMA}, s{S_LD[0]}\n" + D[0]
        D[-1] += f"\ns_add_u32 s{S_SO[0]}, s{S_SO[0]}, 16384\n" + "\n".join(slot_adv_dma())
        return D
    def sel_setup(self, p):
        p(f"""
        v_lshrrev_b32 v{A_SEL}, 2, v0
        v_lshrrev_b32 v{A_SEL+1}, 4, v0
        v_xor_b32 v{A_SEL}, v{A_SEL}, v{A_SEL+1}
        v_and_b32 v{A_SEL}, 1, v{A_SEL}
        v_and_b32 v{A_SEL+1}, 3, v0
        v_or_b32 v{A_SEL}, v{A_SEL}, v{A_SEL+1}
        v_cmp_eq_u32 vcc, 0, v{A_SEL}
        v_mov_b32 v{A_SEL+1}, 0x3f803f80
        v_cndmask_b32 v{A_SEL}, 0, v{A_SEL+1}, vcc
        v_mov_b32 v{A_SEL+1}, v{A_SEL}
        v_mov_b32 v{A_SEL+2}, v{A_SEL}
        v_mov_b32 v{A_SEL+3}, v{A_SEL}
        """)
    def rowmax(self, p, s, dst, init=None):
        if init is None:
            p(f"v_max3_f32 v{dst}, v{s}, v{s+1}, v{s+2}")
            p(f"v_max_f32 v{dst}, v{dst}, v{s+3}")
            k = 4
        else: k = 0
        for i in range(k, 16, 2): p(f"v_max3_f32 v{dst}, v{dst}, v{s+i}, v{s+i+1}")
    def setup(self, p, c):
        p(f"v_add_u32 v{A_AD}, s{S_RD}, v1")
        p(f"""
        ds_read_b128 {vr(A_K, 4)}, v{A_AD}
        ds_read_b128 {vr(A_K + 4, 4)}, v{A_AD} offset:1024
        ds_read_b128 {vr(A_V[0], 4)}, v{A_AD} offset:2048
        ds_read_b128 {vr(A_V[0] + 4, 4)}, v{A_AD} offset:3072
        """)
        self.sel_setup(p)
        for i in range(4):
            p(f"v_mov_b32 v{A_P[1] + i}, 0")
            p(f"v_mov_b32 v{A_V[1] + 4 + i}, 0")
        if self.first:
            for i in range(20): p(f"v_mov_b32 v{V_O + i}, 0")
            p(mfma32(A_S[1], A_K, V_Q, "0"))
            p(mfma32(A_S[1], A_K + 4, V_Q + 4))
            self.rowmax(p, A_S[1], V_M)
            p(f"""
            v_mov_b32 v{A_C}, v{V_M}
            v_permlane32_swap_b32 v{V_M}, v{A_C}
            v_max_f32 v{V_M}, v{V_M}, v{A_C}
            v_sub_f32 v{V_M}, 0, v{V_M}
            """)
        for i in range(16): p(f"v_mov_b32 v{A_C + i}, v{V_M}")
        p(mfma32(A_S[0], A_K, V_Q, A_C))
        p(mfma32(A_S[0], A_K + 4, V_Q + 4))
        p("s_nop 7")
    def tile(self, c, b, noff):
        S = A_S[b % 2]; Sn = A_S[(b + 1) % 2]
        Vc = A_V[b % 2]; Vn = A_V[(b + 1) % 2]
        e = lambda i: f"v_exp_f32 v{S + i}, v{S + i}"
        cv = lambda i: f"v_cvt_pk_bf16_f32 v{A_P[i // 4] + i % 4}, v{S + 2 * i}, v{S + 2 * i + 1}"
        rd = lambda d, o: f"ds_read_b128 {vr(d, 4)}, v{A_AD} offset:{noff + o}"
        L = [rd(A_K, 0), rd(A_K + 4, 1024), rd(Vn, 2048)]
        L += [e(i) for i in range(0, 4)]
        L += [mfma32(V_O, Vn + 4, A_P[1]), rd(Vn + 4, 3072)]
        L += [e(i) for i in range(4, 8)]
        L += [mfma16(V_L, A_SEL, A_P[1])]
        L += [cv(i) for i in range(0, 4)]
        L += [mfma32(Sn, A_K, V_Q, A_C)]
        L += [e(i) for i in range(8, 12)]
        L += [mfma32(Sn, A_K + 4, V_Q + 4)]
        L += [e(i) for i in range(12, 16)]
        L += [mfma32(V_O, Vc, A_P[0])]
        L += [cv(i) for i in range(4, 8)]
        L += [mfma16(V_L, A_SEL, A_P[0])]
        return L
    def drain(self, p):
        p(mfma32(V_O, A_V[1] + 4, A_P[1]))
        p(mfma16(V_L, A_SEL, A_P[1]))
        p("s_waitcnt lgkmcnt(0)")
    def adv(self, p):
        p.add(slot_adv_rd())
        p(f"v_add_u32 v{A_AD}, s{S_DELTA}, v{A_AD}")
    def g_setup(self, p, c): pass
    def g_sites(self, c):
        S = {}
        if self.first: S[self.pubstep] = lambda p: g_prefetch(p, c, [('w2', 2 * MB, 0, 2), ('w3', 7 * MB, 0, 7)])
        elif not self.last: S[self.pubstep] = lambda p: g_prefetch(p, c, [('w4', 7 * MB, 0, 7), ('wo', 2 * MB, 0, 2)])
        if self.nxt is not None and self.nxt.has_prev_site: S[self.nsteps - 2] = lambda p: self.nxt.g_prev_site(p, c)
        return S
    def g_body(self, p, c, prev):
        self.setup(p, c)
        p(f"s_mov_b32 s{S_CNT}, {self.nsteps}")
        L = c.lab("al")
        p(".p2align 5")
        p.label(L)
        for b in range(3): p.add(self.tile(c, b, (b + 1) * 4096))
        self.adv(p)
        p("s_waitcnt lgkmcnt(0)")
        self.barrier_g(p, c, self.nsteps, prev)
        p.add(self.tile(c, 3, 0))
        p(f"s_sub_u32 s{S_CNT}, s{S_CNT}, 1\ns_cmp_lg_u32 s{S_CNT}, 0\ns_cbranch_scc1 {L}")
        self.drain(p)
    def h_body(self, p, c, nxt, skip0=False):
        n = self.nsteps
        assert n >= 4 and not skip0
        p(f"""
        s_add_u32 s{S_RD}, s{S_DMA}, {SLOT}
        s_cmp_eq_u32 s{S_RD}, {SLOT * NSLOT}
        s_cselect_b32 s{S_RD}, 0, s{S_RD}
        """)
        p.add(self.dma_atoms(c))
        self.setup(p, c)
        p(f"s_mov_b32 s{S_CNT}, {n}")
        L = c.lab("al"); Lx = c.lab("ax"); L1 = c.lab("a"); L2 = c.lab("a"); L3 = c.lab("a"); L4 = c.lab("a")
        p(".p2align 5")
        p.label(L)
        p.add(self.tile(c, 0, 4096))
        if nxt:
            p(f"s_cmp_eq_u32 s{S_CNT}, 2\ns_cbranch_scc0 {L1}")
            nxt.h_setup(p, c)
            if nxt.poll: nxt.poll(c).issue(p)
            p.label(L1)
        p.add(self.tile(c, 1, 8192))
        p.add(self.tile(c, 2, 12288))
        self.adv(p)
        p(f"s_cmp_eq_u32 s{S_CNT}, 2\ns_cbranch_scc1 {Lx}")
        p("s_waitcnt vmcnt(4) lgkmcnt(0)")
        p("s_barrier")
        hstep_stamp(p, c)
        p(f"s_cmp_ge_u32 s{S_CNT}, 4\ns_cbranch_scc0 {L2}")
        p.add(self.dma_atoms(c))
        p.label(L2)
        p.add(self.tile(c, 3, 0))
        p(f"s_sub_u32 s{S_CNT}, s{S_CNT}, 1\ns_branch {L}")
        p.label(Lx)
        p("s_waitcnt vmcnt(0) lgkmcnt(0)")
        p("s_barrier")
        hstep_stamp(p, c)
        if nxt:
            if nxt.poll: nxt.poll(c).check(p)
            nxt.h_post_dep(p, c)
        D0 = nxt.dma_atoms(c) if nxt else []
        D1 = nxt.dma_atoms(c) if nxt else []
        p.add(spread(self.tile(c, 3, 0) + self.tile(c, 0, 4096), D0))
        a = Atoms()
        nl = nxt.h_late(a, c) if nxt else 0
        if nxt: nxt.first_extra = nl
        p.add(spread(self.tile(c, 1, 8192) + self.tile(c, 2, 12288), D1 + a.L))
        self.adv(p)
        p(f"s_waitcnt vmcnt({nxt.nd + nl if nxt else 0}) lgkmcnt(0)")
        p("s_barrier")
        hstep_stamp(p, c)
        p.add(spread(self.tile(c, 3, 0), nxt.dma_atoms(c) if nxt else []))
        self.drain(p)
        return nxt is not None
    def h_epi(self, p, c): self.g_epi(p, c)
    def g_epi(self, p, c):
        if not self.last: return
        st = c.opt.get('stflag', '')
        W = f"s[{S_WS}:{S_WS+3}]"
        Lok = c.lab("ok")
        p(f"v_mov_b32 v{A_C}, 0")
        for i in range(16): p(f"v_fma_f32 v{A_C}, v{V_O + i}, 0, v{A_C}")
        p(f"""
        v_add_f32 v{A_C}, v{A_C}, v{V_L}
        v_mov_b32 v{A_C+1}, {hexf(2.0 ** c.opt.get('lmaxlog', 64))}
        v_cmp_nlt_f32 vcc, v{A_C}, v{A_C+1}
        s_cbranch_vccz {Lok}
        """)
        self.fallback(p, c)
        p.label(Lok)
        p(f"""
        v_rcp_f32 v{A_C}, v{V_L}
        v_and_b32 v{A_C+2}, 15, v0
        v_bfe_u32 v{A_C+3}, v0, 4, 1
        v_mul_f32 v{A_C}, v{A_C}, v{V_G}
        v_lshrrev_b32 v{A_C+4}, 5, v0
        v_mul_u32_u24 v{A_C+3}, {AF_PITCH}, v{A_C+3}
        v_lshl_add_u32 v{A_C+3}, v{A_C+2}, 4, v{A_C+3}
        v_lshl_add_u32 v{A_C+3}, v{A_C+4}, 8, v{A_C+3}
        s_mul_i32 s3, s{S_BLK}, {2 * AF_PITCH}
        s_lshl_b32 s4, s{S_HEAD}, 10
        s_add_u32 s3, s3, s4
        s_add_u32 s3, s3, {WS_AF + 112 * 1024}
        """)
        for i in range(8): p(f"v_pk_mul_f32 {vr(V_O + 2 * i, 2)}, {vr(V_O + 2 * i, 2)}, {vr(A_C, 2)} op_sel_hi:[1,0]")
        for i in range(8): p(f"v_cvt_pk_bf16_f32 v{A_C + 8 + i}, v{V_O + 2 * i}, v{V_O + 2 * i + 1}")
        for u in range(2):
            p(f"buffer_store_dwordx4 {vr(A_C + 8 + 4 * u, 4)}, v{A_C+3}, {W}, s3 offen offset:{512 * u} {st}")
    def fallback(self, p, c):
        ho = c.opt.get('hoflag', '')
        W = f"s[{S_WS}:{S_WS+3}]"
        L1 = c.lab("fb"); L2 = c.lab("fb")
        S = A_S[0]
        p(f"""
        s_lshl_b32 s5, s{S_HEAD}, 18
        s_add_u32 s5, s5, {WS_KV}
        s_mov_b32 s6, s5
        s_mov_b32 s7, 64
        v_mov_b32 v{V_M}, 0xff800000
        """)
        p.label(L1)
        p(f"""
        buffer_load_dwordx4 {vr(A_K, 4)}, v1, {W}, s6 offen {ho}
        buffer_load_dwordx4 {vr(A_K + 4, 4)}, v1, {W}, s6 offen offset:1024 {ho}
        s_waitcnt vmcnt(0)
        """)
        p(mfma32(S, A_K, V_Q, "0"))
        p(mfma32(S, A_K + 4, V_Q + 4))
        self.rowmax(p, S, V_M, True)
        p(f"s_add_u32 s6, s6, 4096\ns_sub_u32 s7, s7, 1\ns_cmp_lg_u32 s7, 0\ns_cbranch_scc1 {L1}")
        p(f"""
        v_mov_b32 v{A_C}, v{V_M}
        v_permlane32_swap_b32 v{V_M}, v{A_C}
        v_max_f32 v{V_M}, v{V_M}, v{A_C}
        v_sub_f32 v{V_M}, 0, v{V_M}
        s_mov_b32 s7, 64
        """)
        for i in range(16): p(f"v_mov_b32 v{A_C + i}, v{V_M}")
        for i in range(20): p(f"v_mov_b32 v{V_O + i}, 0")
        p.label(L2)
        p(f"""
        buffer_load_dwordx4 {vr(A_K, 4)}, v1, {W}, s5 offen {ho}
        buffer_load_dwordx4 {vr(A_K + 4, 4)}, v1, {W}, s5 offen offset:1024 {ho}
        buffer_load_dwordx4 {vr(A_V[0], 4)}, v1, {W}, s5 offen offset:2048 {ho}
        buffer_load_dwordx4 {vr(A_V[0] + 4, 4)}, v1, {W}, s5 offen offset:3072 {ho}
        s_waitcnt vmcnt(0)
        """)
        p(mfma32(S, A_K, V_Q, A_C))
        p(mfma32(S, A_K + 4, V_Q + 4))
        for i in range(16): p(f"v_exp_f32 v{S + i}, v{S + i}")
        for i in range(8): p(f"v_cvt_pk_bf16_f32 v{A_P[i // 4] + i % 4}, v{S + 2 * i}, v{S + 2 * i + 1}")
        p(mfma32(V_O, A_V[0], A_P[0]))
        p(mfma16(V_L, A_SEL, A_P[0]))
        p(mfma32(V_O, A_V[0] + 4, A_P[1]))
        p(mfma16(V_L, A_SEL, A_P[1]))
        p(f"s_add_u32 s5, s5, 4096\ns_sub_u32 s7, s7, 1\ns_cmp_lg_u32 s7, 0\ns_cbranch_scc1 {L2}")
```

```python
from common import *

SLOT = 49152
NSLOT = 3
L_X = SLOT * NSLOT
LDS_BYTES = 163840
L_MU = L_X
L_RS = L_X + 512
L_OG = L_X + 1024
L_CS = L_X + 1536
L_DUMMY = L_X + 4096

WS_ST1 = 41 * MB
WS_P2 = 42 * MB
WS_CSP = 43 * MB

S_A, S_B, S_WS, S_AUX = 8, 12, 16, 20
S_WID, S_WM, S_WN, S_XCD, S_IDX = 24, 25, 26, 27, 28
S_MT3, S_NT3, S_MT2, S_NT2, S_HEAD, S_BLK, S_QB = 29, 30, 54, 55, 51, 52, 41
S_POLL = 40
S_DBG = 88
S_FL = 88
S_CNT, S_RD, S_DELTA, S_DMA = 31, 32, 33, 34
S_SO = [35, 36]
S_LD = [37, 38]
S_NEG = 39
S_PTR = 64
def ptr(name): return S_PTR + KA[name] // 4
V_LANE, V_L16 = 0, 1
V_Q, V_O, V_L, V_M = 2, 10, 26, 30
V_AD = 32
V_FR = 48

def mfma16(d, a, b, c=None):
    cs = vr(d, 4) if c is None else (c if isinstance(c, str) else vr(c, 4))
    return f"v_mfma_f32_16x16x32_bf16 {vr(d,4)}, {vr(a,4)}, {vr(b,4)}, {cs}"

def tile_map(p, a_log2, S_MT, S_NT):
    a = 1 << a_log2; b = 32 // a
    nxm = 16 // a
    p(f"""
    s_and_b32 s3, s{S_XCD}, {nxm - 1}
    s_lshl_b32 s3, s3, {a_log2}
    s_and_b32 s4, s{S_IDX}, {a - 1}
    s_add_u32 s{S_MT}, s3, s4
    s_lshr_b32 s3, s{S_XCD}, {nxm.bit_length() - 1}
    s_lshl_b32 s3, s3, {b.bit_length() - 1}
    s_lshr_b32 s4, s{S_IDX}, {a_log2}
    s_add_u32 s{S_NT}, s3, s4
    """)

def slot_adv_rd():
    return [f"s_add_u32 s{S_RD}, s{S_RD}, {SLOT}", f"s_cmp_eq_u32 s{S_RD}, {SLOT * NSLOT}",
            f"s_cselect_b32 s{S_DELTA}, s{S_NEG}, {SLOT}", f"s_cselect_b32 s{S_RD}, 0, s{S_RD}"]
def slot_adv_dma():
    return [f"s_add_u32 s{S_DMA}, s{S_DMA}, {SLOT}", f"s_cmp_eq_u32 s{S_DMA}, {SLOT * NSLOT}",
            f"s_cselect_b32 s{S_DMA}, 0, s{S_DMA}"]

class Ctx:
    def __init__(self, name, opt):
        self.name = name; self.opt = opt; self.nlab = 0
        self.stamp_slot = {'g': 0, 'h': 0}
    def lab(self, s):
        self.nlab += 1
        return f"{self.name}_{s}{self.nlab}"
    def ST(self, p, role):
        if not self.opt.get('stamp'): return
        sl = self.stamp_slot[role]; self.stamp_slot[role] += 1
        stamp2(p, sl, self.opt['stamp'] - 1)

def hstep_stamp(p, c):
    if not c.opt.get('hstamp'): return
    p("""
    s_memtime s[56:57]
    s_waitcnt lgkmcnt(0)
    s_lshl_b64 exec, 1, s62
    s_cmp_ge_u32 s62, 64
    s_cselect_b64 s[58:59], 0, exec
    s_cselect_b64 s[60:61], exec, 0
    s_mov_b64 exec, s[58:59]
    v_mov_b32 v150, s56
    s_mov_b64 exec, s[60:61]
    v_mov_b32 v151, s56
    s_mov_b64 exec, -1
    s_add_u32 s62, s62, 1
    """)
def hstep_dump(p, c):
    if not c.opt.get('hstamp'): return
    p(f"""
    s_lshl_b32 s3, s2, 2
    s_add_u32 s3, s3, s{S_WM}
    s_lshl_b32 s3, s3, 9
    s_add_u32 s3, s3, {WS_STAMP + 2 * MB}
    v_lshlrev_b32 v152, 2, v0
    buffer_store_dword v150, v152, s[{S_WS}:{S_WS+3}], s3 offen
    buffer_store_dword v151, v152, s[{S_WS}:{S_WS+3}], s3 offen offset:256
    """)
NSTAMP = 32
def stamp2(p, slot, kidx):
    p(f"""
    s_memrealtime s[56:57]
    s_memtime s[58:59]
    s_add_u32 s60, s2, {kidx * 256}
    s_lshl_b32 s60, s60, 3
    s_add_u32 s60, s60, s{S_WID}
    s_lshl_b32 s60, s60, 8
    s_add_u32 s60, s60, {WS_STAMP + slot * 8}
    s_waitcnt lgkmcnt(0)
    v_mov_b32 v140, s56
    v_mov_b32 v141, s58
    v_mov_b32 v142, 0
    s_mov_b64 exec, 1
    buffer_store_dwordx2 v[140:141], v142, s[{S_WS}:{S_WS+3}], s60 offen
    s_mov_b64 exec, -1
    """)


class Atoms:
    def __init__(self): self.L = []
    def __call__(self, s):
        for line in s.split('\n'):
            line = line.strip()
            if line and not line.startswith(';'): self.L.append(line)
    def atom(self, s): self.L.append(s)
    def add(self, items):
        for x in items: self(x)

def spread(main, fill, start=0, end=None):
    n = len(main); end = n if end is None else end
    k = end - start
    slots = [0] * n
    for i in range(k): slots[start + i] = ((i + 1) * len(fill)) // k - (i * len(fill)) // k
    return interleave(main, fill, slots)

class Task:
    pubkind = None; publevel = None
    pubstep = 3
    late = False
    poll = None
    def g_sites(self, c): return {}
    def h_post_dep(self, p, c): return
    def h_late(self, a, c): return 0
    def g_prev_site(self, p, c): return
    has_prev_site = False
    def early(self, p, c): return
    def h_epi(self, p, c): return
    def barrier_g(self, p, c, nsteps, prev):
        sites = dict(self.g_sites(c))
        pub = prev is not None and prev.pubkind is not None and c.opt.get('persist')
        ts = set(sites) | ({self.pubstep} if pub else set())
        if not ts:
            p("s_barrier"); return
        mask = sum(1 << (nsteps - t + 1) for t in ts)
        Lo = c.lab("sp"); Lb = c.lab("spb")
        p(f"s_bitcmp1_b32 {hex(mask)}, s{S_CNT}")
        p(f"s_cbranch_scc1 {Lo}")
        p("s_barrier")
        p.label(Lb)
        def ool(q):
            q.label(Lo)
            for i, t in enumerate(sorted(ts)):
                Ln = c.lab("spn")
                if i < len(ts) - 1: q(f"s_cmp_eq_u32 s{S_CNT}, {nsteps - t + 1}\ns_cbranch_scc0 {Ln}")
                if pub and t == self.pubstep: q("s_waitcnt vmcnt(0)")
                q("s_barrier")
                if pub and t == self.pubstep: publish(q, c, prev.pubkind)
                if t in sites: sites[t](q)
                q(f"s_branch {Lb}")
                if i < len(ts) - 1: q.label(Ln)
        c.ool.append(ool)

class Gemm(Task):
    MT = 4
    zero_first = False
    def acc(self, m, n): return 256 - 4 * self.MT * self.NT + 4 * (n * self.MT + m)
    def xf(self, s, m): return V_FR + s * 4 * (self.MT + self.NT) + 4 * m
    def wf(self, s, n): return V_FR + s * 4 * (self.MT + self.NT) + 4 * self.MT + 4 * n
    def swap(self, n): return False
    def reads(self, s, kk):
        rx = lambda m: "ds_read_b128 %s, v%d offset:%d" % ((vr(self.xf(s, m), 4),) + self.xaddr(kk, m))
        rw = lambda n, j: "ds_read_b64_tr_b16 %s, v%d offset:%d" % ((vr(self.wf(s, n) + 2 * j, 2),) + self.waddr(kk, n, j))
        R = [rx(0), rw(0, 0), rw(0, 1)] + [rx(m) for m in range(1, self.MT)]
        for n in range(1, self.NT): R += [rw(n, 0), rw(n, 1)]
        return R
    def mfmas(self, s, c0=None):
        M = []
        for n in range(self.NT):
            for m in range(self.MT):
                if self.swap(n): M.append(mfma16(self.acc(m, n), self.xf(s, m), self.wf(s, n), c0))
                else: M.append(mfma16(self.acc(m, n), self.wf(s, n), self.xf(s, m), c0))
            M += self.extra_mfma(s, n)
        return M
    def extra_mfma(self, s, n): return []
    def g_zero(self, p):
        if self.zero_first: return
        for r in range(self.acc(0, 0), 256): p(f"v_mov_b32 v{r}, 0")
    def g_body(self, p, c, prev): self.g_loop(p, c, self.nsteps, prev)
    def g_loop(self, p, c, nsteps, prev):
        KS = self.KS
        nm = len(self.mfmas(0)); nr = len(self.reads(0, 0))
        big = nm >= 16
        unroll = 2 if KS % 2 else 1
        assert nsteps % unroll == 0
        w0 = c.opt.get('w0', 4)
        p.add(self.reads(0, 0))
        p(f"s_mov_b32 s{S_CNT}, {nsteps}")
        L = c.lab("gl"); Le = c.lab("ge")
        if self.zero_first:
            p.add(interleave(self.mfmas(0, "0"), self.reads(1, 1), [1] * nm))
            p(f"s_branch {Le}")
        p(".p2align 5")
        p.label(L)
        par = 0
        for u in range(unroll):
            for kk in range(KS - 1):
                R = self.reads(par ^ 1, kk + 1)
                if big: p(f"s_waitcnt lgkmcnt({w0})")
                p.add(interleave(self.mfmas(par), R, [1] * nm))
                par ^= 1
                if u == 0 and kk == 0 and self.zero_first: p.label(Le)
            M = self.mfmas(par)
            upd = slot_adv_rd() + [f"v_add_u32 v{r}, s{S_DELTA}, v{r}" for r in self.addr_regs]
            tail = [f"s_sub_u32 s{S_CNT}, s{S_CNT}, 1"] + ([f"s_cmp_lg_u32 s{S_CNT}, 0"] if u == unroll - 1 else [])
            bp = min(c.opt.get('barpos', 6), nm - nr) if big else 4
            if big: p(f"s_waitcnt lgkmcnt({w0})")
            p.add(spread(M[:bp], upd))
            p("s_waitcnt lgkmcnt(0)")
            self.barrier_g(p, c, nsteps, prev)
            p.add(interleave(M[bp:], self.reads(par ^ 1, 0) + tail, [1 if big else 2] * nm))
            par ^= 1
        p(f"s_cbranch_scc1 {L}")
    def dma_atoms(self, c):
        if c.opt.get('nodma'): return ["\n".join(slot_adv_dma())]
        ld = c.opt.get('ldflag', '')
        nA, nB = self.nA, self.nB
        D = []
        for i in range(nA):
            D.append((f"s_add_u32 m0, s{S_DMA}, s{S_LD[0]}" if i == 0 else "s_add_u32 m0, m0, 1024") +
                     f"\nbuffer_load_dwordx4 v{V_AD + i}, s[{S_A}:{S_A+3}], s{S_SO[0]} offen {self.aflag(c)} lds")
        for i in range(nB):
            D.append((f"s_add_u32 m0, s{S_DMA}, s{S_LD[1]}" if i == 0 else "s_add_u32 m0, m0, 1024") +
                     f"\nbuffer_load_dwordx4 v{V_AD + nA + i}, s[{S_B}:{S_B+3}], s{S_SO[1]} offen {ld} lds")
        t = []
        if not c.opt.get('step0'):
            t += [f"s_add_u32 s{S_SO[0]}, s{S_SO[0]}, {self.stepA}", f"s_add_u32 s{S_SO[1]}, s{S_SO[1]}, {self.stepB}"]
        D[-1] += "\n" + "\n".join(t + slot_adv_dma())
        return D
    def aflag(self, c): return c.opt.get('hoflag', '')
    @property
    def nd(self): return self.nA + self.nB
    def h_pre(self, p, c, t): pass
    def h_mix(self, a, c, t): pass
    def h_extra(self, p, c, t): return 0
    h_steps = ()
    def h_body(self, p, c, nxt, skip0=False):
        n = self.nsteps
        special = set(self.h_steps) | {n - 2, n - 1}
        if skip0 or getattr(self, 'first_extra', 0): special.add(0)
        pollstep = None
        if nxt is not None and nxt.poll and c.opt.get('persist'):
            pollstep = n - 2 if nxt.late else n - 3
            special.add(pollstep)
        def step(t):
            ex = 0
            noex = t is None or c.opt.get('noextra')
            if t is not None and t == pollstep: nxt.poll(c).issue(p)
            if not noex: self.h_pre(p, c, t)
            D = []; nd = 0
            if t is None or t <= n - 3:
                nd = self.nd
                if not (t == 0 and skip0): D = self.dma_atoms(c)
            elif nxt is not None:
                if t == (n - 1 if nxt.late else n - 2):
                    nxt.h_setup(p, c)
                    if pollstep is not None: nxt.poll(c).check(p)
                    nxt.h_post_dep(p, c)
                if nxt.late:
                    if t == n - 1: D = nxt.dma_atoms(c) + nxt.dma_atoms(c); nd = nxt.nd
                else:
                    D = nxt.dma_atoms(c); nd = nxt.nd
            a = Atoms()
            if not noex: self.h_mix(a, c, t)
            p.add(spread(D, a.L) if D else a.L)
            if not noex: ex = self.h_extra(p, c, t)
            if t == 0: ex += getattr(self, 'first_extra', 0)
            p(f"s_waitcnt vmcnt({nd + ex}) lgkmcnt(0)")
            p("s_barrier")
            hstep_stamp(p, c)
        t = 0
        while t < n:
            if t in special:
                step(t); t += 1; continue
            e = t
            while e not in special: e += 1
            if e - t == 1: step(None)
            else:
                p(f"s_mov_b32 s{S_CNT}, {e - t}")
                L = c.lab("hl")
                p.label(L)
                step(None)
                p(f"s_sub_u32 s{S_CNT}, s{S_CNT}, 1\ns_cmp_lg_u32 s{S_CNT}, 0\ns_cbranch_scc1 {L}")
            t = e
        return False

WS_FLAG = 43 * MB + 512 * 1024
F_QKV, F_W1, F_W2, F_W3, F_ATT, F_XCH, F_ST = 0, 1, 2, 3, 4, 5, 6
NKIND = 7

class Poll:
    def __init__(self, c, addr, load, test):
        self.c, self.addr, self.load, self.test = c, addr, load, test
    def issue(self, p):
        if not self.c.opt.get('persist'): return
        p(self.addr); p(self.load)
    def check(self, p):
        c = self.c
        if not c.opt.get('persist'): return
        L = c.lab("poll"); E = c.lab("pollx")
        p(f"s_mov_b32 s5, {c.opt.get('spinmax', 100000)}")
        p.label(L)
        p(self.test)
        p(f"""
        s_cbranch_vccz {E}
        s_sub_u32 s5, s5, 1
        s_cmp_eq_u32 s5, 0
        s_cbranch_scc1 {E}
        s_sleep {c.opt.get('spinsleep', 2)}
        """)
        p(self.load)
        p("s_waitcnt vmcnt(0)")
        p(f"s_branch {L}")
        p.label(E)

def poll_init(c):
    return Poll(c, f"v_min_u32 v136, {4 * NKIND - 1}, v0\nv_lshlrev_b32 v136, 2, v136",
        f"buffer_load_dword v137, v136, s[{S_DBG}:{S_DBG+3}], 0 offen sc1", "v_cmp_eq_u32 vcc, 0, v137")

def poll_flags(c, kind, row_sgpr, shift=0, nprod=16, halo=False, single=None, col_sgpr=None):
    lg = nprod.bit_length() - 1
    a = f"v_and_b32 v136, {nprod - 1}, v0\n"
    if single is not None:
        a = f"s_xor_b32 s3, s{single}, 1\nv_mov_b32 v136, s3\n"
    if halo:
        a += f"""
        v_lshrrev_b32 v138, 4, v0
        v_min_u32 v138, 2, v138
        s_add_u32 s3, s{row_sgpr}, 15
        v_add_u32 v138, s3, v138
        v_and_b32 v138, 15, v138
        v_lshl_add_u32 v136, v138, 4, v136
        """
    else:
        if col_sgpr is not None: a += f"v_lshl_add_u32 v138, v136, 4, s{col_sgpr}\n"
        a += f"""
        s_lshr_b32 s3, s{row_sgpr}, {shift}
        s_lshl_b32 s3, s3, {lg}
        v_add_u32 v136, s3, v136
        """
        if col_sgpr is not None: a += "v_cmp_gt_u32 vcc, 32, v0\nv_cndmask_b32 v136, v138, v136, vcc\n"
    a += f"v_lshlrev_b32 v136, 7, v136\ns_mov_b32 s{S_POLL}, {WS_FLAG + kind * 32768}"
    return Poll(c, a, f"buffer_load_dword v137, v136, s[{S_WS}:{S_WS+3}], s{S_POLL} offen sc1", "v_cmp_eq_u32 vcc, 0, v137")

def own_flags(p, c):
    if not c.opt.get('persist'): return
    L = c.lab("zf")
    p(f"""
    s_cmp_lt_u32 s2, {NKIND}
    s_cbranch_scc0 {L}
    s_lshl_b32 s4, s2, 2
    s_add_u32 s4, s4, s{S_WID}
    s_lshl_b32 s3, s4, 13
    s_add_u32 s3, s3, {WS_FLAG}
    v_lshlrev_b32 v136, 7, v0
    v_mov_b32 v137, 0
    buffer_store_dword v137, v136, s[{S_WS}:{S_WS+3}], s3 offen sc1
    s_lshl_b32 s4, s4, 2
    v_mov_b32 v138, 1
    """)
    srd(p, S_AUX, ptr('dbg'), 256)
    p(f"""
    s_waitcnt vmcnt(0)
    s_mov_b64 exec, 1
    buffer_store_dword v138, v137, s[{S_AUX}:{S_AUX+3}], s4 offen sc1
    s_mov_b64 exec, -1
    """)
    p.label(L)
    for k, row, idx, lg in ((F_QKV, S_NT3, S_MT3, 4), (F_W1, S_MT2, S_NT2, 4), (F_W2, S_MT2, S_NT2, 4), (F_W3, S_MT3, S_NT3, 4),
                            (F_ATT, S_QB, S_HEAD, 5), (F_XCH, S_MT2, S_NT2, 4), (F_ST, S_MT3, S_NT3, 4)):
        p(f"""
        s_lshl_b32 s3, s{row}, {lg}
        s_add_u32 s3, s3, s{idx}
        s_lshl_b32 s3, s3, 7
        s_add_u32 s{S_FL + k}, s3, {WS_FLAG + k * 32768}
        """)

def publish(p, c, kind):
    if not c.opt.get('persist'): return
    L = c.lab("pub")
    p(f"s_cmp_eq_u32 s{S_WID}, 0\ns_cbranch_scc0 {L}")
    p("v_mov_b32 v136, 0\nv_mov_b32 v137, 1\ns_mov_b64 exec, 1")
    p(f"buffer_store_dword v137, v136, s[{S_WS}:{S_WS+3}], s{S_FL + kind} offen sc1")
    p("s_mov_b64 exec, -1")
    p.label(L)

def gen_kernel(name, tasks, opt):
    c = Ctx(name, opt)
    c.ool = []
    for i, T in enumerate(tasks): T.nxt = tasks[i + 1] if i + 1 < len(tasks) else None
    p = Prog()
    p(f"""
    s_cmp_ge_u32 s2, 256
    s_cbranch_scc1 {name}_end
    s_load_dwordx16 s[{S_PTR}:{S_PTR+15}], s[0:1], 0
    s_load_dwordx8 s[{S_PTR+16}:{S_PTR+23}], s[0:1], 64
    v_lshrrev_b32 v1, 6, v0
    v_and_b32 v0, 63, v0
    v_readfirstlane_b32 s{S_WID}, v1
    v_lshlrev_b32 v{V_L16}, 4, v0
    s_and_b32 s{S_XCD}, s2, 7
    s_lshr_b32 s{S_IDX}, s2, 3
    s_mov_b32 s{S_RD}, 0
    s_mov_b32 s{S_DMA}, 0
    s_mov_b32 s{S_NEG}, {-(NSLOT - 1) * SLOT & 0xffffffff}
    """)
    tile_map(p, 3, S_MT3, S_NT3)
    p(f"""
    s_and_b32 s3, s{S_XCD}, 3
    s_lshl_b32 s3, s3, 2
    s_and_b32 s4, s{S_IDX}, 3
    s_add_u32 s{S_MT2}, s3, s4
    s_lshr_b32 s3, s{S_IDX}, 2
    s_lshl_b32 s3, s3, 1
    s_lshr_b32 s4, s{S_XCD}, 2
    s_add_u32 s{S_NT2}, s3, s4
    s_lshl_b32 s3, s{S_NT3}, 1
    s_and_b32 s4, s{S_IDX}, 1
    s_add_u32 s{S_HEAD}, s3, s4
    s_lshr_b32 s{S_QB}, s{S_MT3}, 1
    s_lshl_b32 s3, s{S_QB}, 3
    s_add_u32 s{S_BLK}, s3, s{S_WID}
    s_cmp_ge_u32 s{S_WID}, 4
    s_cbranch_scc1 {name}_H
    s_and_b32 s{S_WM}, s{S_WID}, 1
    s_lshr_b32 s{S_WN}, s{S_WID}, 1
    s_waitcnt lgkmcnt(0)
    """)
    srd(p, S_WS, ptr('ws'), WS_SIZE)
    c.ST(p, 'g')
    own_flags(p, c)
    if opt.get('gprio'): p(f"s_setprio {opt['gprio']}")
    for i, T in enumerate(tasks):
        if i == 0: T.early(p, c)
        T.g_setup(p, c)
        if i == 0: p("s_barrier")
        c.ST(p, 'g')
        T.g_body(p, c, tasks[i - 1] if i > 0 else None)
        c.ST(p, 'g')
        if i + 1 < len(tasks): tasks[i + 1].early(p, c)
        T.g_epi(p, c)
    c.ST(p, 'g')
    if opt.get('stamp'):
        p("s_waitcnt vmcnt(0)")
        c.ST(p, 'g')
    p("s_endpgm")
    for f in c.ool: f(p)
    p.label(f"{name}_H")
    p(f"s_sub_u32 s{S_WM}, s{S_WID}, 4")
    T0 = tasks[0]
    T0.h_setup(p, c, first=True)
    srd(p, S_WS, ptr('ws'), WS_SIZE)
    T0.h_post_dep(p, c)
    p.add(T0.dma_atoms(c))
    p.add(T0.dma_atoms(c))
    srd(p, S_DBG, ptr('dbg'), 256)
    ex = T0.h_first(p, c) if hasattr(T0, 'h_first') else 0
    T0.first_extra = ex
    p(f"s_waitcnt vmcnt({T0.nd + ex})")
    p("s_barrier")
    p("s_mov_b32 s62, 0")
    hstep_stamp(p, c)
    skip0 = False
    for i, T in enumerate(tasks):
        nxt = tasks[i + 1] if i + 1 < len(tasks) else None
        skip0 = T.h_body(p, c, nxt, skip0)
        T.h_epi(p, c)
    hstep_dump(p, c)
    p.label(f"{name}_end")
    p("s_endpgm")
    p.finish(verbose=opt.get('verbose', False))
    return p, dict(grid=256, block=512, lds=LDS_BYTES)

def g_prefetch(p, c, items):
    if not c.opt.get('pf', 1): return 0
    p(f"""
    s_lshl_b32 s3, s2, 2
    s_and_b32 s4, s{S_WID}, 3
    s_add_u32 s3, s3, s4
    s_lshl_b32 s4, s{S_WID}, 10
    s_add_u32 m0, s4, {L_DUMMY}
    """)
    for nm, tot, m0_, n in items:
        srd(p, S_AUX, ptr(nm), tot)
        p(f"s_mul_i32 s5, s3, {n * 1024}")
        if m0_: p(f"s_add_u32 s5, s5, {m0_ * MB}")
        for i in range(n):
            p(f"buffer_load_dwordx4 v1, s[{S_AUX}:{S_AUX+3}], s5 offen lds")
            if i < n - 1: p(f"s_add_u32 s5, s5, 1024")
    return sum(x[3] for x in items)
```

```python
from fw import *

def lane_fields(p, r16=None, g=None, r4=None, c4=None):
    if r16 is not None: p(f"v_and_b32 v{r16}, 15, v0")
    if g is not None: p(f"v_lshrrev_b32 v{g}, 4, v0")
    if r4 is not None: p(f"v_bfe_u32 v{r4}, v0, 2, 2")
    if c4 is not None: p(f"v_and_b32 v{c4}, 3, v0")

T0 = 128

def h_xrows(p, regs, sub_off, S_MT):
    p(f"""
    v_lshrrev_b32 v{T0}, 3, v0
    v_and_b32 v{T0+1}, 7, v0
    s_lshl_b32 s3, s{S_MT}, 7
    s_lshl_b32 s4, s{S_WM}, 5
    s_add_u32 s3, s3, s4
    v_lshrrev_b32 v{T0+2}, 1, v{T0}
    v_xor_b32 v{T0+2}, v{T0+2}, v{T0+1}
    v_add_u32 v{T0+3}, s3, v{T0}
    v_lshlrev_b32 v{T0+3}, 11, v{T0+3}
    v_lshl_add_u32 v{regs[0]}, v{T0+2}, 4, v{T0+3}
    v_xor_b32 v{T0+2}, 64, v{regs[0]}
    """)
    for i, r in enumerate(regs):
        if i == 0: continue
        ii = i % 4
        src = regs[0] if ii % 2 == 0 else T0 + 2
        p(f"v_add_u32 v{r}, {ii * 8 * 2048 + sub_off(i)}, v{src}")

class QKV(Gemm):
    NT = 6; KS = 2; nsteps = 16; nA = 4; nB = 6
    stepA = 128; stepB = 64 * 6144
    addr_regs = [32, 34, 35, 33]
    pubkind = F_QKV
    h_steps = (2, 3, 4, 5, 6, 7)
    def swap(self, n): return n >= 4
    def xaddr(self, kk, m): return (32 + kk, m * 2048)
    def waddr(self, kk, n, j): return (34 + n % 2, (32 * kk + 4 * j) * 384 + (n // 2) * 128)
    def aflag(self, c): return c.opt.get('ldflag', '')
    def h_setup(self, p, c, first=False):
        h_xrows(p, [32, 33, 34, 35], lambda i: 0, S_MT3)
        p(f"""
        s_mul_i32 s3, s{S_WM}, 384
        s_lshl_b32 s4, s{S_NT3}, 7
        """)
        for i in range(3):
            p(f"""
            v_add_u32 v{T0}, s3, v0
            v_add_u32 v{T0}, {64 * i}, v{T0}
            v_mul_u32_u24 v{T0+1}, 0xaab, v{T0}
            v_lshrrev_b32 v{T0+1}, 16, v{T0+1}
            v_mul_u32_u24 v{T0+2}, 24, v{T0+1}
            v_sub_u32 v{T0+2}, v{T0}, v{T0+2}
            v_lshrrev_b32 v{T0+3}, 3, v{T0+2}
            v_and_b32 v{T0+2}, 7, v{T0+2}
            v_and_b32 v{T0+4}, 2, v{T0+1}
            v_xor_b32 v{T0+2}, v{T0+2}, v{T0+4}
            v_mul_u32_u24 v{T0+1}, 6144, v{T0+1}
            v_lshl_add_u32 v{T0+1}, v{T0+3}, 11, v{T0+1}
            v_lshl_add_u32 v{T0+1}, v{T0+2}, 4, v{T0+1}
            v_add_u32 v{36 + i}, s4, v{T0+1}
            v_xor_b32 v{T0+1}, 64, v{36 + i}
            v_add_u32 v{39 + i}, {8 * 6144}, v{T0+1}
            """)
        p(f"""
        s_lshl_b32 s{S_LD[0]}, s{S_WM}, 12
        s_mul_i32 s{S_LD[1]}, s{S_WM}, 6144
        s_add_u32 s{S_LD[1]}, s{S_LD[1]}, 16384
        s_mov_b32 s{S_SO[0]}, 0
        s_mov_b32 s{S_SO[1]}, 0
        """)
        srd(p, S_A, ptr('x'), 2048 * 2048)
        srd(p, S_B, ptr('wqkv'), 1024 * 6144)
    def g_setup(self, p, c):
        lane_fields(p, T0, T0 + 1, T0 + 2, T0 + 3)
        p(f"""
        v_lshrrev_b32 v{T0+4}, 1, v{T0}
        v_xor_b32 v{T0+4}, v{T0+4}, v{T0+1}
        v_lshlrev_b32 v{T0+4}, 4, v{T0+4}
        v_lshl_or_b32 v{T0+4}, v{T0}, 7, v{T0+4}
        s_lshl_b32 s3, s{S_WM}, 13
        s_add_u32 s3, s3, s{S_RD}
        v_add_u32 v32, s3, v{T0+4}
        v_xor_b32 v33, 64, v32
        v_lshl_add_u32 v{T0+4}, v{T0+1}, 3, v{T0+2}
        v_mul_u32_u24 v{T0+4}, 384, v{T0+4}
        v_lshrrev_b32 v{T0+5}, 1, v{T0+2}
        v_and_b32 v{T0+6}, 1, v{T0+1}
        v_lshl_or_b32 v{T0+5}, v{T0+6}, 1, v{T0+5}
        s_lshl_b32 s3, s{S_WN}, 1
        v_xor_b32 v{T0+5}, s3, v{T0+5}
        v_lshl_add_u32 v{T0+4}, v{T0+5}, 5, v{T0+4}
        v_lshl_add_u32 v{T0+4}, v{T0+3}, 3, v{T0+4}
        s_add_u32 s3, s{S_RD}, 16384
        v_add_u32 v34, s3, v{T0+4}
        v_xor_b32 v35, 32, v34
        """)
        self.g_zero(p)
    def g_epi(self, p, c):
        st = c.opt.get('stflag', '')
        lane_fields(p, T0, T0 + 1)
        p(f"""
        s_waitcnt lgkmcnt(0)
        v_lshrrev_b32 v{T0+2}, 1, v{T0+1}
        v_and_b32 v{T0+3}, 1, v{T0+1}
        v_lshlrev_b32 v{T0+2}, 10, v{T0+2}
        v_lshl_or_b32 v{T0+2}, v{T0+3}, 9, v{T0+2}
        v_lshl_or_b32 v32, v{T0}, 4, v{T0+2}
        v_and_b32 v{T0+3}, 7, v{T0}
        v_lshrrev_b32 v{T0+4}, 3, v{T0}
        v_lshl_or_b32 v{T0+2}, v{T0+4}, 8, v{T0+2}
        v_lshl_or_b32 v33, v{T0+3}, 4, v{T0+2}
        s_lshl_b32 s3, s{S_NT3}, 1
        s_add_u32 s3, s3, s{S_WN}
        s_lshl_b32 s4, s{S_MT3}, 2
        s_lshl_b32 s5, s{S_WM}, 1
        s_add_u32 s4, s4, s5
        s_lshl_b32 s5, s3, 17
        s_lshl_b32 s6, s4, 11
        s_add_u32 s42, s5, s6
        s_lshl_b32 s43, s42, 1
        s_add_u32 s43, s43, {WS_KV}
        s_add_u32 s44, s43, 4096
        s_mov_b32 s46, {hexf(QSCALE)}
        s_mov_b32 s47, {hexf(QSCALE)}
        """)
        W = f"s[{S_WS}:{S_WS+3}]"
        t = V_FR
        for m in range(4):
            a, b = self.acc(m, 2), self.acc(m, 3)
            for i, r in enumerate((a, a + 2, b, b + 2)): p(f"v_cvt_pk_bf16_f32 v{t + i}, v{r}, v{r + 1}")
            p(f"buffer_store_dwordx4 {vr(t, 4)}, v33, {W}, s{43 + m // 2} offen offset:{(m % 2) * 128} {st}")
            t += 4
        for u in range(2):
            for nb in range(2):
                a = self.acc(2 * u, 4 + nb)
                for i in range(4): p(f"v_cvt_pk_bf16_f32 v{t + i}, v{a + 2 * i}, v{a + 2 * i + 1}")
                p(f"buffer_store_dwordx4 {vr(t, 4)}, v32, {W}, s{43 + u} offen offset:{2048 + nb * 256} {st}")
                t += 4
        for m in range(4):
            a, b = self.acc(m, 0), self.acc(m, 1)
            for r in (a, a + 2, b, b + 2): p(f"v_pk_mul_f32 {vr(r, 2)}, {vr(r, 2)}, s[46:47]")
            for i, r in enumerate((a, a + 2, b, b + 2)): p(f"v_cvt_pk_bf16_f32 v{t + i}, v{r}, v{r + 1}")
            p(f"buffer_store_dwordx4 {vr(t, 4)}, v32, {W}, s42 offen offset:{(m // 2) * 2048 + (m % 2) * 256} {st}")
            t += 4
    def h_first(self, p, c):
        srd(p, S_AUX, ptr('gate'), 2048)
        p(f"""
        s_lshl_b32 s48, s{S_MT3}, 4
        s_add_u32 s48, s48, s{S_NT3}
        s_lshl_b32 s48, s48, 3
        s_lshl_b32 s3, s{S_WM}, 1
        s_add_u32 s48, s48, s3
        s_lshl_b32 s3, s48, 11
        buffer_load_dwordx4 v[64:67], v1, s[{S_A}:{S_A+3}], s3 offen
        buffer_load_dwordx4 v[68:71], v1, s[{S_A}:{S_A+3}], s3 offen offset:1024
        buffer_load_dwordx4 v[72:75], v1, s[{S_A}:{S_A+3}], s3 offen offset:2048
        buffer_load_dwordx4 v[76:79], v1, s[{S_A}:{S_A+3}], s3 offen offset:3072
        buffer_load_dwordx4 v[80:83], v1, s[{S_AUX}:{S_AUX+3}], 0 offen
        buffer_load_dwordx4 v[84:87], v1, s[{S_AUX}:{S_AUX+3}], 0 offen offset:1024
        """)
        n = g_prefetch(p, c, [('wqkv', 6 * MB, 0, 3), ('wqkv', 6 * MB, 3, 3), ('w1', 2 * MB, 0, 2)])
        return 6 + n
    def g_sites(self, c):
        if not c.opt.get('persist'): return {}
        return {9: lambda p: publish(p, c, F_ST)}
    def h_pre(self, p, c, t):
        if t == 6: poll_init(c).issue(p)
        if t == 7: poll_init(c).check(p)
    def h_mix(self, p, c, t):
        t -= 1
        if 1 <= t <= 4:
            if t == 1:
                for a in range(48, 54): p(f"v_mov_b32 v{a}, 0")
            for i in (2 * t - 2, 2 * t - 1):
                p(f"v_lshlrev_b32 v58, 16, v{80 + i}")
                p(f"v_and_b32 v59, 0xffff0000, v{80 + i}")
                for row in range(2):
                    ag, as_, aq = 48 + row, 50 + row, 52 + row
                    x = 64 + 8 * row + i
                    p(f"""
                    v_lshlrev_b32 v56, 16, v{x}
                    v_and_b32 v57, 0xffff0000, v{x}
                    v_add_f32 v{as_}, v{as_}, v56
                    v_fmac_f32 v{aq}, v56, v56
                    v_add_f32 v{as_}, v{as_}, v57
                    v_fmac_f32 v{aq}, v57, v57
                    v_mul_f32 v56, v56, v58
                    v_mul_f32 v57, v57, v59
                    v_cvt_pk_bf16_f32 v56, v56, v57
                    v_lshlrev_b32 v57, 16, v56
                    v_and_b32 v56, 0xffff0000, v56
                    v_add_f32 v{ag}, v{ag}, v57
                    v_add_f32 v{ag}, v{ag}, v56
                    """)
        if t == 5:
            for a in (48, 50, 52): p(f"v_permlane32_swap_b32 v{a}, v{a + 1}")
            for a in (48, 50, 52): p(f"v_add_f32 v{a}, v{a}, v{a + 1}")
            for a in (48, 50, 52): p(f"v_mov_b32 v{a + 1}, v{a}")
            for a in (48, 50, 52): p(f"v_permlane16_swap_b32 v{a}, v{a + 1}")
            for a in (48, 50, 52): p(f"v_add_f32 v{a}, v{a}, v{a + 1}")
            for sh in (8, 4, 2, 1):
                for a in (48, 50, 52): p(f"v_add_f32_dpp v{a}, v{a}, v{a} row_ror:{sh} row_mask:0xf bank_mask:0xf")
        if t == 6:
            p(f"""
            v_mul_f32 v50, {hexf(1.0 / 1024)}, v50
            v_mul_f32 v52, {hexf(1.0 / 1024)}, v52
            v_fma_f32 v52, -v50, v50, v52
            v_max_f32 v52, 0, v52
            v_add_f32 v52, {hexf(1e-5)}, v52
            v_rsq_f32 v52, v52
            v_cvt_pk_bf16_f32 v48, v48, v48
            v_and_b32 v48, 0xffff0000, v48
            v_mul_f32 v48, {hexf(-LOG2E)}, v48
            v_exp_f32 v48, v48
            v_add_f32 v48, 1.0, v48
            v_rcp_f32 v48, v48
            v_cvt_pk_bf16_f32 v48, v48, v48
            v_and_b32 v48, 0xffff0000, v48
            v_sub_f32 v49, 1.0, v48
            v_cvt_pk_bf16_f32 v49, v49, v49
            v_and_b32 v49, 0xffff0000, v49
            v_lshrrev_b32 v56, 5, v0
            v_add_u32 v56, s48, v56
            v_lshlrev_b32 v56, 2, v56
            """)
    def h_extra(self, p, c, t):
        W = f"s[{S_WS}:{S_WS+3}]"
        st = c.opt.get('stflag', '')
        if t == 7:
            p(f"""
            s_mov_b32 s3, {WS_G}
            s_mov_b32 s4, {WS_G + 8192}
            s_mov_b32 s5, {WS_ST1}
            s_mov_b32 s6, {WS_ST1 + 8192}
            s_mov_b32 exec_lo, 1
            s_mov_b32 exec_hi, 1
            buffer_store_dword v48, v56, {W}, s3 offen {st}
            buffer_store_dword v49, v56, {W}, s4 offen {st}
            buffer_store_dword v50, v56, {W}, s5 offen {st}
            buffer_store_dword v52, v56, {W}, s6 offen {st}
            s_mov_b64 exec, -1
            """)
            return 4
        return 0

class N64(Gemm):
    NT = 2; KS = 4; nA = 8; nB = 4
    stepB = 128 * 2048
    order = 'perm32'; bname = None; babytes = 1024 * 2048
    a_pitch = 32768; a_base = 0; a_size = 4 * MB
    stepA = 4096
    addr_regs = [32, 34, 35]
    def xaddr(self, kk, m): return (32, m * 4096 + kk * 1024)
    def waddr(self, kk, n, j):
        js = {'nat': 4, 'perm32': 16, 'perm32b': 8}[self.order]
        return (34 + n, (32 * kk + js * j) * 128)
    def h_setup_a(self, p, c):
        srd(p, S_A, ptr('ws'), self.a_size, self.a_base)
        p(f"""
        s_lshl_b32 s3, s{S_MT2}, 3
        s_lshl_b32 s4, s{S_WM}, 1
        s_add_u32 s3, s3, s4
        s_mul_i32 s3, s3, {self.a_pitch}
        v_add_u32 v32, s3, v1
        """)
        for i in range(1, 8): p(f"v_add_u32 v{32 + i}, {(i // 4) * self.a_pitch + (i % 4) * 1024}, v32")
        p(f"s_mov_b32 s{S_SO[0]}, {self.a_k0}")
    a_k0 = 0; b_k0 = 0
    def h_setup(self, p, c, first=False):
        self.h_setup_a(p, c)
        srd(p, S_B, ptr(self.bname), self.babytes)
        p(f"""
        v_lshrrev_b32 v{T0}, 3, v0
        v_and_b32 v{T0+1}, 7, v0
        v_and_b32 v{T0+2}, {2 if self.order == 'nat' else 6}, v{T0}
        v_xor_b32 v{T0+1}, v{T0+1}, v{T0+2}
        s_lshl_b32 s3, s{S_WM}, 5
        v_add_u32 v{T0}, s3, v{T0}
        v_lshlrev_b32 v{T0}, 11, v{T0}
        v_lshl_add_u32 v{T0}, v{T0+1}, 4, v{T0}
        s_lshl_b32 s4, s{S_NT2}, 7
        v_add_u32 v40, s4, v{T0}
        """)
        if self.order == 'nat':
            p(f"v_xor_b32 v{T0}, 64, v40")
            p(f"v_add_u32 v41, {8 * 2048}, v{T0}\nv_add_u32 v42, {16 * 2048}, v40\nv_add_u32 v43, {24 * 2048}, v{T0}")
        else:
            for i in range(1, 4): p(f"v_add_u32 v{40 + i}, {8 * i * 2048}, v40")
        p(f"""
        s_lshl_b32 s{S_LD[0]}, s{S_WM}, 13
        s_lshl_b32 s{S_LD[1]}, s{S_WM}, 12
        s_add_u32 s{S_LD[1]}, s{S_LD[1]}, 32768
        s_mov_b32 s{S_SO[1]}, {self.b_k0}
        """)
    def g_setup_x(self, p, c):
        p(f"""
        s_lshl_b32 s3, s{S_WM}, 14
        s_add_u32 s3, s3, s{S_RD}
        v_add_u32 v32, s3, v1
        """)
    def g_setup(self, p, c):
        lane_fields(p, T0, T0 + 1, T0 + 2, T0 + 3)
        self.g_setup_x(p, c)
        if self.order == 'nat': p(f"v_lshl_add_u32 v{T0+4}, v{T0+1}, 3, v{T0+2}")
        elif self.order == 'perm32': p(f"v_lshl_add_u32 v{T0+4}, v{T0+1}, 2, v{T0+2}")
        else:
            p(f"""
            v_lshrrev_b32 v{T0+4}, 1, v{T0+1}
            v_lshl_add_u32 v{T0+4}, v{T0+4}, 4, v{T0+2}
            v_and_b32 v{T0+5}, 1, v{T0+1}
            v_lshl_add_u32 v{T0+4}, v{T0+5}, 2, v{T0+4}
            """)
        p(f"""
        v_lshlrev_b32 v{T0+4}, 7, v{T0+4}
        v_lshrrev_b32 v{T0+5}, 1, v{T0+2}
        v_and_b32 v{T0+6}, 1, v{T0+1}
        v_lshl_or_b32 v{T0+5}, v{T0+6}, 1, v{T0+5}
        s_lshl_b32 s3, s{S_WN}, 1
        v_xor_b32 v{T0+5}, s3, v{T0+5}
        v_lshl_add_u32 v{T0+4}, v{T0+5}, 5, v{T0+4}
        v_lshl_add_u32 v{T0+4}, v{T0+3}, 3, v{T0+4}
        s_add_u32 s3, s{S_RD}, 32768
        v_add_u32 v34, s3, v{T0+4}
        v_xor_b32 v35, 32, v34
        """)
        self.g_pre(p, c)
        self.g_zero(p)
    def g_pre(self, p, c): pass

def gelu_consts(p, b, has_og):
    rs, og, k1, k0, w, t = b + 1, b + 3, b + 2, b + 4, b + 6, b + 5
    p(f"""
    v_mul_f32 v{t}, v{rs}, v{rs}
    v_mul_f32 v{k0}, {hexf(GC0)}, v{rs}
    v_mul_f32 v{t}, v{t}, v{rs}
    v_mul_f32 v{k1}, {hexf(GC1)}, v{t}
    """)
    if has_og:
        p(f"""
        v_max_f32 v{t}, {hexf(1e-30)}, v{og}
        v_mul_f32 v{t}, v{t}, v{rs}
        v_rcp_f32 v{w}, v{t}
        """)
    else:
        p(f"v_rcp_f32 v{w}, v{rs}")
    p(f"v_min_f32 v{w}, {hexf(1e38)}, v{w}")

def gelu_block(p, items, tmp, pk=True):
    T = [tmp + 2 * i for i in range(len(items))]
    Z = list(zip(items, T))
    if pk:
        for (r, cs, b), t in Z: p(f"v_pk_fma_f32 {vr(r,2)}, {vr(cs,2)}, {vr(b,2)}, {vr(r,2)} op_sel_hi:[1,0,1] neg_lo:[1,0,0] neg_hi:[1,0,0]")
        for (r, cs, b), t in Z: p(f"v_pk_mul_f32 {vr(t,2)}, {vr(r,2)}, {vr(r,2)}")
        for (r, cs, b), t in Z: p(f"v_pk_fma_f32 {vr(t,2)}, {vr(t,2)}, {vr(b+2,2)}, {vr(b+4,2)} op_sel_hi:[1,0,0]")
        for (r, cs, b), t in Z: p(f"v_pk_mul_f32 {vr(t,2)}, {vr(t,2)}, {vr(r,2)}")
    else:
        for (r, cs, b), t in Z:
            for h in range(2): p(f"v_fma_f32 v{r+h}, -v{cs+h}, v{b}, v{r+h}")
        for (r, cs, b), t in Z:
            for h in range(2): p(f"v_mul_f32 v{t+h}, v{r+h}, v{r+h}")
        for (r, cs, b), t in Z:
            for h in range(2): p(f"v_fma_f32 v{t+h}, v{t+h}, v{b+2}, v{b+4}")
        for (r, cs, b), t in Z:
            for h in range(2): p(f"v_mul_f32 v{t+h}, v{t+h}, v{r+h}")
    for t in T:
        p(f"v_exp_f32 v{t}, v{t}"); p(f"v_exp_f32 v{t+1}, v{t+1}")
    for (r, cs, b), t in Z:
        if pk: p(f"v_pk_fma_f32 {vr(t,2)}, {vr(t,2)}, {vr(b+6,2)}, {vr(b+6,2)} op_sel_hi:[1,0,0]")
        else:
            for h in range(2): p(f"v_fma_f32 v{t+h}, v{t+h}, v{b+6}, v{b+6}")
    for t in T:
        p(f"v_rcp_f32 v{t}, v{t}"); p(f"v_rcp_f32 v{t+1}, v{t+1}")
    for (r, cs, b), t in Z:
        if pk: p(f"v_pk_mul_f32 {vr(r,2)}, {vr(r,2)}, {vr(t,2)}")
        else:
            for h in range(2): p(f"v_mul_f32 v{r+h}, v{r+h}, v{t+h}")

def read_tok_consts(p, base, vaddr, r16, has_og):
    p(f"""
    s_lshl_b32 s3, s{S_WM}, 8
    s_add_u32 s3, s3, {L_MU}
    v_lshl_add_u32 v{vaddr}, v{r16}, 2, s3
    """)
    for m in range(4):
        p(f"ds_read_b32 v{base + 8 * m}, v{vaddr} offset:{64 * m}")
        p(f"ds_read_b32 v{base + 8 * m + 1}, v{vaddr} offset:{512 + 64 * m}")
        if has_og: p(f"ds_read_b32 v{base + 8 * m + 3}, v{vaddr} offset:{1024 + 64 * m}")

class W1(N64):
    nsteps = 8; order = 'nat'; bname = 'w1'; stepA = 256
    addr_regs = [32, 34, 35, 33]
    pubkind = F_W1
    h_steps = (0, 1, 3)
    pubstep = 2
    def aflag(self, c): return c.opt.get('ldflag', '')
    def xaddr(self, kk, m): return (32 + kk % 2, (m // 2) * 8192 + (m % 2) * 2048 + (kk // 2) * 4096)
    def h_setup_a(self, p, c):
        srd(p, S_A, ptr('x'), 2048 * 2048)
        h_xrows(p, list(range(32, 40)), lambda i: (i // 4) * 128, S_MT2)
        p(f"s_mov_b32 s{S_SO[0]}, 0")
    def g_setup_x(self, p, c):
        p(f"""
        v_lshrrev_b32 v{T0+4}, 1, v{T0}
        v_xor_b32 v{T0+4}, v{T0+4}, v{T0+1}
        v_lshlrev_b32 v{T0+4}, 4, v{T0+4}
        v_lshl_or_b32 v{T0+4}, v{T0}, 7, v{T0+4}
        s_lshl_b32 s3, s{S_WM}, 14
        s_add_u32 s3, s3, s{S_RD}
        v_add_u32 v32, s3, v{T0+4}
        v_xor_b32 v33, 64, v32
        """)
    def extra_mfma(self, s, n): return [mfma16(112 + 4 * n, self.wf(s, n), 120)]
    def g_pre(self, p, c):
        for i in range(8): p(f"v_mov_b32 v{112 + i}, 0")
        for i in range(4): p(f"v_mov_b32 v{120 + i}, 0x3f803f80")
    def h_pre(self, p, c, t):
        if t == 0: poll_flags(c, F_ST, S_MT2).issue(p)
        if t == 1: poll_flags(c, F_ST, S_MT2).check(p)
    def h_extra(self, p, c, t):
        W = f"s[{S_WS}:{S_WS+3}]"
        ho = c.opt.get('hoflag', ''); st = c.opt.get('stflag', '')
        if t == 1:
            p(f"""
            v_and_b32 v58, 31, v0
            v_lshrrev_b32 v59, 5, v0
            v_lshlrev_b32 v58, 2, v58
            v_lshl_add_u32 v60, v59, 13, v58
            v_lshl_add_u32 v58, v59, 9, v58
            s_lshl_b32 s3, s{S_MT2}, 9
            s_lshl_b32 s4, s{S_WM}, 7
            s_add_u32 s3, s3, s4
            s_add_u32 s3, s3, {WS_ST1}
            s_add_u32 s4, s4, {L_MU}
            v_add_u32 v58, s4, v58
            buffer_load_dword v59, v60, {W}, s3 offen {ho}
            """)
            return 1
        if t == 3: p("ds_write_b32 v58, v59")
        return 0
    def g_epi(self, p, c):
        st = c.opt.get('stflag', '')
        W = f"s[{S_WS}:{S_WS+3}]"
        lane_fields(p, T0, T0 + 1)
        p("s_waitcnt lgkmcnt(0)")
        read_tok_consts(p, 144, 36, T0, False)
        for m in range(4): gelu_consts(p, 144 + 8 * m, False)
        p(f"""
        s_lshr_b32 s5, s{S_NT2}, 2
        s_lshr_b32 s6, s5, 1
        s_add_u32 s6, s6, 1
        s_sub_u32 s7, 0, s6
        s_bitcmp1_b32 s5, 0
        s_cselect_b32 s6, s7, s6
        s_lshl_b32 s3, s{S_MT2}, 7
        s_lshl_b32 s4, s{S_WM}, 6
        s_add_u32 s3, s3, s4
        s_add_u32 s6, s6, s3
        s_lshl_b32 s3, s{S_NT2}, 1
        s_add_u32 s3, s3, s{S_WN}
        s_lshl_b32 s42, s3, 10
        s_add_u32 s42, s42, {WS_HS}
        """)
        for mp in range(2):
            items = []
            for m in (2 * mp, 2 * mp + 1):
                for n in range(2):
                    for h in range(2): items.append((self.acc(m, n) + 2 * h, 112 + 4 * n + 2 * h, 144 + 8 * m))
            gelu_block(p, items, 56, c.opt.get('pk', 1))
            for m in (2 * mp, 2 * mp + 1):
                a, b = self.acc(m, 0), self.acc(m, 1)
                t = 72 + 4 * m
                p(f"""
                v_add_u32 v{T0+2}, s6, v{T0}
                v_add_u32 v{T0+2}, {16 * m}, v{T0+2}
                v_cmp_gt_u32 vcc, 2048, v{T0+2}
                v_and_b32 v{T0+2}, 2047, v{T0+2}
                v_lshrrev_b32 v{T0+3}, 4, v{T0+2}
                v_and_b32 v{T0+2}, 15, v{T0+2}
                v_lshl_add_u32 v{T0+2}, v{T0+1}, 4, v{T0+2}
                v_lshlrev_b32 v{T0+2}, 4, v{T0+2}
                v_lshl_add_u32 v{36 + m}, v{T0+3}, 15, v{T0+2}
                """)
                for i, r in enumerate((a, a + 2, b, b + 2)): p(f"v_cvt_pk_bf16_f32 v{t + i}, v{r}, v{r + 1}")
                for i in range(4): p(f"v_cndmask_b32 v{t + i}, 0, v{t + i}, vcc")
                p(f"buffer_store_dwordx4 {vr(t, 4)}, v{36 + m}, {W}, s42 offen {st}")

class W2(N64):
    def h_late(self, a, c):
        t = Atoms()
        t(f"""
        s_lshl_b32 s49, s{S_NT2}, 4
        s_add_u32 s49, s49, s{S_MT2}
        s_lshl_b32 s49, s49, 2
        s_add_u32 s49, s49, s{S_WM}
        s_lshl_b32 s49, s49, 8
        s_add_u32 s49, s49, {WS_CSP}
        s_mul_i32 s53, s{S_NT2}, 448
        s_and_b32 s53, s53, {0xffffff80}
        s_lshl_b32 s4, s{S_WM}, 7
        s_add_u32 s53, s53, s4
        s_lshl_b32 s4, s{S_MT2}, 6
        v_lshrrev_b32 v{T0}, 3, v0
        v_add_u32 v{T0}, s4, v{T0}
        v_mul_u32_u24 v{T0}, 7168, v{T0}
        v_and_b32 v{T0+1}, 7, v0
        v_lshl_add_u32 v{T0}, v{T0+1}, 4, v{T0}
        """)
        srd(t, S_AUX, ptr('w3'), 1024 * 7168)
        a.atom("\n".join(t.L))
        for i in range(8):
            a.atom(f"buffer_load_dwordx4 {vr(160 + 4 * i, 4)}, v{T0}, s[{S_AUX}:{S_AUX+3}], s53 offen\ns_add_u32 s53, s53, {8 * 7168}")
        return 8
    nsteps = 8; order = 'perm32'; bname = 'w2'; a_base = WS_HS
    pubkind = F_W2
    h_steps = (1, 2, 3, 4)
    def poll(self, c): return poll_flags(c, F_W1, S_MT2, halo=True)
    def h_mix(self, p, c, t):
        if t == 1:
            for i in range(8): p(f"v_mov_b32 v{48 + i}, 0")
        if 1 <= t <= 3:
            for i in ((0, 1, 2), (3, 4, 5), (6, 7))[t - 1]:
                for d in range(4):
                    x = 160 + 4 * i + d
                    p(f"""
                    v_lshlrev_b32 v56, 16, v{x}
                    v_and_b32 v57, 0xffff0000, v{x}
                    v_add_f32 v{48 + 2 * d}, v{48 + 2 * d}, v56
                    v_add_f32 v{49 + 2 * d}, v{49 + 2 * d}, v57
                    """)
        if t == 4:
            for i in range(4): p(f"v_permlane32_swap_b32 v{48 + i}, v{52 + i}")
            for i in range(4): p(f"v_add_f32 v{48 + i}, v{48 + i}, v{52 + i}")
            for i in range(2): p(f"v_permlane16_swap_b32 v{48 + i}, v{50 + i}")
            for i in range(2): p(f"v_add_f32 v{48 + i}, v{48 + i}, v{50 + i}")
            for i in range(2): p(f"v_add_f32_dpp v{48 + i}, v{48 + i}, v{48 + i} row_ror:8 row_mask:0xf bank_mask:0xf")
            p(f"""
            v_and_b32 v56, 7, v0
            v_lshrrev_b32 v57, 4, v0
            v_lshlrev_b32 v56, 5, v56
            v_lshl_add_u32 v56, v57, 3, v56
            """)
    def h_extra(self, p, c, t):
        if t == 4:
            p(f"buffer_store_dwordx2 v[48:49], v56, s[{S_WS}:{S_WS+3}], s49 offen {c.opt.get('stflag', '')}")
            return 1
        return 0
    has_prev_site = True
    def g_prev_site(self, p, c):
        lane_fields(p, T0, T0 + 1)
        srd(p, S_AUX, ptr('x'), 2048 * 2048)
        p(f"""
        s_lshl_b32 s3, s{S_MT2}, 7
        s_lshl_b32 s4, s{S_WM}, 6
        s_add_u32 s3, s3, s4
        v_add_u32 v{T0+7}, s3, v{T0}
        v_lshlrev_b32 v36, 11, v{T0+7}
        v_lshl_add_u32 v36, v{T0+1}, 3, v36
        s_lshl_b32 s3, s{S_NT2}, 7
        s_lshl_b32 s4, s{S_WN}, 6
        s_add_u32 s3, s3, s4
        """)
        for m in range(4):
            for n in range(2):
                p(f"buffer_load_dwordx2 {vr(160 + 4 * m + 2 * n, 2)}, v36, s[{S_AUX}:{S_AUX+3}], s3 offen offset:{32 * n}")
            if m < 3: p(f"s_add_u32 s3, s3, {16 * 2048}")
    def g_epi(self, p, c):
        st = c.opt.get('stflag', '')
        W = f"s[{S_WS}:{S_WS+3}]"
        p(f"""
        s_waitcnt lgkmcnt(0)
        s_lshl_b32 s3, s{S_NT2}, 1
        s_add_u32 s3, s3, s{S_WN}
        s_lshl_b32 s4, s{S_MT2}, 3
        s_lshl_b32 s5, s{S_WM}, 2
        s_add_u32 s4, s4, s5
        s_lshl_b32 s42, s4, 15
        s_lshl_b32 s5, s3, 10
        s_add_u32 s42, s42, s5
        s_add_u32 s42, s42, {WS_X1}
        s_lshl_b32 s43, s3, 14
        s_lshl_b32 s5, s4, 7
        s_add_u32 s43, s43, s5
        s_add_u32 s43, s43, {WS_P2}
        """)
        for m in range(4):
            for n in range(2):
                a = self.acc(m, n)
                for d in range(2):
                    x = 160 + 4 * m + 2 * n + d
                    p(f"v_lshlrev_b32 v48, 16, v{x}\nv_and_b32 v49, 0xffff0000, v{x}")
                    p(f"v_pk_add_f32 {vr(a + 2 * d, 2)}, {vr(a + 2 * d, 2)}, v[48:49]")
            a, b = self.acc(m, 0), self.acc(m, 1)
            t = 72 + 4 * m
            for i, r in enumerate((a, a + 2, b, b + 2)): p(f"v_cvt_pk_bf16_f32 v{t + i}, v{r}, v{r + 1}")
            p(f"buffer_store_dwordx4 {vr(t, 4)}, v1, {W}, s42 offen {st}")
            if m < 3: p(f"s_add_u32 s42, s42, 32768")
            p(f"""
            v_pk_add_f32 v[50:51], {vr(a, 2)}, {vr(a + 2, 2)}
            v_pk_mul_f32 v[52:53], {vr(a, 2)}, {vr(a, 2)}
            v_pk_add_f32 v[50:51], v[50:51], {vr(b, 2)}
            v_pk_fma_f32 v[52:53], {vr(a + 2, 2)}, {vr(a + 2, 2)}, v[52:53]
            v_pk_add_f32 v[50:51], v[50:51], {vr(b + 2, 2)}
            v_pk_fma_f32 v[52:53], {vr(b, 2)}, {vr(b, 2)}, v[52:53]
            v_pk_fma_f32 v[52:53], {vr(b + 2, 2)}, {vr(b + 2, 2)}, v[52:53]
            v_add_f32 v{56 + 2 * m}, v50, v51
            v_add_f32 v{57 + 2 * m}, v52, v53
            """)
        for i in range(4): p(f"v_permlane32_swap_b32 v{56 + i}, v{60 + i}")
        for i in range(4): p(f"v_add_f32 v{56 + i}, v{56 + i}, v{60 + i}")
        for i in range(2): p(f"v_permlane16_swap_b32 v{56 + i}, v{58 + i}")
        for i in range(2): p(f"v_add_f32 v{56 + i}, v{56 + i}, v{58 + i}")
        p(f"""
        v_lshlrev_b32 v36, 3, v0
        buffer_store_dwordx2 v[56:57], v36, {W}, s43 offen {st}
        """)

AF_PITCH = 144 * 1024
class W3(Gemm):
    NT = 7; KS = 2; nsteps = 16; nA = 4; nB = 8
    stepA = 2048; stepB = 64 * 7168
    addr_regs = [32, 33, 34, 35, 36, 37, 38, 39]
    pubkind = F_W3
    zero_first = True
    h_steps = (2, 3, 4, 5, 6)
    def poll(self, c): return poll_flags(c, F_W2, S_MT3, col_sgpr=S_NT3)
    def xaddr(self, kk, m): return (32, m * 2048 + kk * 1024)
    def waddr(self, kk, n, j): return (33 + n, (32 * kk + 16 * j) * 512)
    def h_setup(self, p, c, first=False):
        srd(p, S_A, ptr('ws'), 4 * MB, WS_X1)
        srd(p, S_B, ptr('w3'), 1024 * 7168)
        p(f"""
        s_lshl_b32 s3, s{S_MT3}, 3
        s_lshl_b32 s4, s{S_WM}, 1
        s_add_u32 s3, s3, s4
        s_lshl_b32 s3, s3, 15
        v_add_u32 v32, s3, v1
        v_add_u32 v33, 1024, v32
        v_add_u32 v34, 32768, v32
        v_add_u32 v35, {32768 + 1024}, v32
        s_mul_i32 s4, s{S_NT3}, 448
        s_and_b32 s4, s4, {0xffffff80}
        s_mul_i32 s3, s{S_WM}, {16 * 7168}
        s_add_u32 s4, s4, s3
        v_lshrrev_b32 v{T0}, 5, v0
        v_and_b32 v{T0+1}, 31, v0
        v_mul_u32_u24 v{T0+2}, 7168, v{T0}
        v_add_u32 v{T0+2}, s4, v{T0+2}
        v_lshlrev_b32 v{T0}, 1, v{T0}
        v_xor_b32 v{T0+1}, v{T0+1}, v{T0}
        """)
        for i in range(4):
            p(f"""
            v_xor_b32 v{T0+3}, {4 * i}, v{T0+1}
            v_lshl_add_u32 v{T0+3}, v{T0+3}, 4, v{T0+2}
            v_add_u32 v{36 + i}, {2 * i * 7168}, v{T0+3}
            v_add_u32 v{40 + i}, {(2 * i + 8) * 7168}, v{T0+3}
            """)
        p(f"""
        s_lshl_b32 s{S_LD[0]}, s{S_WM}, 12
        s_lshl_b32 s{S_LD[1]}, s{S_WM}, 13
        s_add_u32 s{S_LD[1]}, s{S_LD[1]}, 16384
        s_mov_b32 s{S_SO[0]}, 0
        s_mov_b32 s{S_SO[1]}, 0
        """)
    def g_setup(self, p, c):
        lane_fields(p, None, T0 + 1, T0 + 2, T0 + 3)
        p(f"""
        s_lshl_b32 s3, s{S_WM}, 13
        s_add_u32 s3, s3, s{S_RD}
        v_add_u32 v32, s3, v1
        v_lshl_add_u32 v{T0+4}, v{T0+1}, 2, v{T0+2}
        v_and_b32 v{T0+5}, 7, v{T0+4}
        v_lshlrev_b32 v{T0+4}, 9, v{T0+4}
        v_lshl_add_u32 v{T0+4}, v{T0+3}, 3, v{T0+4}
        s_add_u32 s3, s{S_RD}, 16384
        v_add_u32 v{T0+4}, s3, v{T0+4}
        s_and_b32 s3, s{S_NT3}, 1
        s_lshl_b32 s3, s3, 1
        s_mul_i32 s4, s{S_WN}, 7
        s_add_u32 s3, s3, s4
        """)
        for n in range(7):
            p(f"""
            v_xor_b32 v{T0+6}, s3, v{T0+5}
            v_lshl_add_u32 v{33 + n}, v{T0+6}, 5, v{T0+4}
            s_add_u32 s3, s3, 1
            """)
        self.g_zero(p)
    def h_late(self, a, c):
        W = f"s[{S_WS}:{S_WS+3}]"
        ho = c.opt.get('hoflag', '')
        a.atom(f"""
        v_and_b32 v{T0}, 15, v0
        v_lshrrev_b32 v{T0+1}, 4, v0
        v_lshlrev_b32 v{T0}, 4, v{T0}
        v_lshl_add_u32 v{T0+2}, v{T0+1}, 10, v{T0}
        v_lshl_add_u32 v{T0+3}, v{T0+1}, 17, v{T0}
        v_lshlrev_b32 v{T0+4}, 2, v0
        s_lshl_b32 s53, s{S_NT3}, 14
        s_lshl_b32 s4, s{S_WM}, 8
        s_add_u32 s53, s53, s4
        s_add_u32 s53, s53, {WS_CSP}
        s_lshl_b32 s50, s{S_MT3}, 10
        s_add_u32 s50, s50, s4
        s_lshr_b32 s49, s50, 1
        s_add_u32 s49, s49, {WS_G + 8192}
        s_add_u32 s50, s50, {WS_P2}
        """)
        for i in range(4):
            a.atom(f"buffer_load_dwordx4 {vr(160 + 4 * i, 4)}, v{T0+2}, {W}, s53 offen {ho}\ns_add_u32 s53, s53, 4096")
        for i in range(8):
            a.atom(f"buffer_load_dwordx4 {vr(176 + 4 * i, 4)}, v{T0+3}, {W}, s50 offen {ho}\ns_add_u32 s50, s50, 16384")
        a.atom(f"buffer_load_dword v208, v{T0+4}, {W}, s49 offen {ho}")
        return 13
    def h_mix(self, p, c, t):
        if t == 2:
            for st_ in (2, 1):
                for i in range(st_):
                    for d in range(4): p(f"v_add_f32 v{160 + 4 * i + d}, v{160 + 4 * i + d}, v{160 + 4 * (i + st_) + d}")
            p("""
            v_permlane32_swap_b32 v160, v162
            v_permlane32_swap_b32 v161, v163
            v_add_f32 v160, v160, v162
            v_add_f32 v161, v161, v163
            """)
        if t == 3:
            p(f"""
            v_permlane16_swap_b32 v160, v161
            v_add_f32 v160, v160, v161
            v_and_b32 v56, 15, v0
            v_lshrrev_b32 v57, 4, v0
            v_lshl_add_u32 v56, v56, 2, v57
            s_lshl_b32 s3, s{S_WM}, 8
            v_lshl_add_u32 v56, v56, 2, s3
            v_add_u32 v56, {L_CS}, v56
            ds_write_b32 v56, v160
            """)
            for i in range(4):
                for d in range(4): p(f"v_add_f32 v{176 + 4 * i + d}, v{176 + 4 * i + d}, v{192 + 4 * i + d}")
        if t == 4:
            for st_ in (2, 1):
                for i in range(st_):
                    for d in range(4): p(f"v_add_f32 v{176 + 4 * i + d}, v{176 + 4 * i + d}, v{176 + 4 * (i + st_) + d}")
            p("""
            v_permlane32_swap_b32 v176, v178
            v_permlane32_swap_b32 v177, v179
            v_add_f32 v176, v176, v178
            v_add_f32 v177, v177, v179
            v_mov_b32 v178, v176
            v_mov_b32 v179, v177
            """)
        if t == 5:
            p(f"""
            v_permlane16_swap_b32 v176, v178
            v_permlane16_swap_b32 v177, v179
            v_add_f32 v176, v176, v178
            v_add_f32 v177, v177, v179
            v_mul_f32 v176, {hexf(1.0 / 1024)}, v176
            v_mul_f32 v177, {hexf(1.0 / 1024)}, v177
            v_fma_f32 v177, -v176, v176, v177
            v_max_f32 v177, 0, v177
            v_add_f32 v177, {hexf(1e-5)}, v177
            v_rsq_f32 v177, v177
            """)
        if t == 6:
            p(f"""
            v_and_b32 v57, 15, v0
            v_lshrrev_b32 v58, 5, v0
            v_lshl_add_u32 v57, v57, 1, v58
            s_lshl_b32 s3, s{S_WM}, 7
            v_lshl_add_u32 v57, v57, 2, s3
            v_lshl_add_u32 v58, v0, 2, s3
            v_add_u32 v57, {L_MU}, v57
            v_add_u32 v58, {L_MU}, v58
            ds_write_b32 v57, v176
            ds_write_b32 v57, v177 offset:512
            """)
            p.atom("s_mov_b32 exec_hi, 0\nds_write_b32 v58, v208 offset:1024\ns_mov_b32 exec_hi, -1")
    def g_epi(self, p, c):
        st = c.opt.get('stflag', '')
        W = f"s[{S_WS}:{S_WS+3}]"
        lane_fields(p, 40, 41)
        p(f"""
        s_waitcnt lgkmcnt(0)
        s_mul_i32 s3, s{S_WN}, 448
        s_and_b32 s4, s{S_NT3}, 1
        s_lshl_b32 s4, s4, 7
        s_add_u32 s3, s3, s4
        s_add_u32 s3, s3, {L_CS}
        v_lshl_add_u32 v36, v41, 4, s3
        """)
        read_tok_consts(p, 76, 37, 40, True)
        for n in range(7): p(f"ds_read_b128 {vr(48 + 4 * n, 4)}, v36 offset:{64 * n}")
        for m in range(4): gelu_consts(p, 76 + 8 * m, True)
        p(f"""
        v_lshrrev_b32 v38, 5, v0
        v_mul_u32_u24 v38, {AF_PITCH}, v38
        v_and_b32 v39, 31, v0
        v_lshl_add_u32 v38, v39, 4, v38
        s_lshl_b32 s3, s{S_MT3}, 3
        s_lshl_b32 s4, s{S_WM}, 2
        s_add_u32 s3, s3, s4
        s_mul_i32 s42, s3, {AF_PITCH}
        s_mul_i32 s3, s{S_NT3}, 14
        s_mul_i32 s4, s{S_WN}, 7
        s_add_u32 s3, s3, s4
        s_lshl_b32 s3, s3, 9
        s_add_u32 s42, s42, s3
        s_add_u32 s42, s42, {WS_AF}
        s_add_u32 s43, s42, {2 * AF_PITCH}
        """)
        for n in range(7):
            items = []
            for m in range(4):
                for h in range(2): items.append((self.acc(m, n) + 2 * h, 48 + 4 * n + 2 * h, 76 + 8 * m))
            gelu_block(p, items, 108 + 16 * (n % 2), c.opt.get('pk', 1))
            for u in range(2):
                a = self.acc(2 * u, n)
                for i in range(4): p(f"v_cvt_pk_bf16_f32 v{a + i}, v{a + 2 * i}, v{a + 2 * i + 1}")
            for u in range(2):
                a = self.acc(2 * u, n)
                p(f"v_permlane32_swap_b32 v{a}, v{a + 2}")
                p(f"v_permlane32_swap_b32 v{a + 1}, v{a + 3}")
            for u in range(2):
                a = self.acc(2 * u, n)
                p(f"buffer_store_dwordx4 {vr(a, 4)}, v38, {W}, s{42 + u} offen offset:{n * 512} {st}")

WS_XCH = 48 * MB
class W4(Gemm):
    NT = 4; KS = 3; nsteps = 18; nA = 6; nB = 6
    stepA = 3072; stepB = 96 * 2048
    addr_regs = [32, 33, 34, 35, 36]
    zero_first = True
    pubkind = F_XCH
    def poll(self, c): return poll_flags(c, F_W3, S_MT2)
    def xaddr(self, kk, m): return (32, m * 3072 + kk * 1024)
    def waddr(self, kk, n, j): return (33 + n, (32 * kk + 8 * j) * 256)
    def h_setup(self, p, c, first=False):
        srd(p, S_A, ptr('ws'), 18 * MB, WS_AF)
        srd(p, S_B, ptr('w4'), 3584 * 2048)
        p(f"""
        s_lshl_b32 s3, s{S_MT2}, 3
        s_lshl_b32 s4, s{S_WM}, 1
        s_add_u32 s3, s3, s4
        s_mul_i32 s3, s3, {AF_PITCH}
        v_add_u32 v32, s3, v1
        """)
        for i in range(1, 6): p(f"v_add_u32 v{32 + i}, {(i // 3) * AF_PITCH + (i % 3) * 1024}, v32")
        p(f"""
        v_lshrrev_b32 v{T0}, 4, v0
        v_and_b32 v{T0+1}, 15, v0
        v_lshlrev_b32 v{T0+2}, 1, v{T0}
        v_xor_b32 v{T0+1}, v{T0+1}, v{T0+2}
        s_mul_i32 s3, s{S_WM}, 24
        v_add_u32 v{T0}, s3, v{T0}
        v_lshlrev_b32 v{T0}, 11, v{T0}
        v_lshl_add_u32 v{T0}, v{T0+1}, 4, v{T0}
        s_lshr_b32 s4, s{S_NT2}, 1
        s_lshl_b32 s4, s4, 8
        v_add_u32 v38, s4, v{T0}
        v_xor_b32 v{T0}, 128, v38
        """)
        for i in range(1, 6): p(f"v_add_u32 v{38 + i}, {4 * i * 2048}, v{38 if i % 2 == 0 else T0}")
        p(f"""
        s_mul_i32 s{S_LD[0]}, s{S_WM}, 6144
        s_add_u32 s{S_LD[1]}, s{S_LD[0]}, 24576
        s_and_b32 s3, s{S_NT2}, 1
        s_mul_i32 s{S_SO[0]}, s3, {54 * 1024}
        s_mul_i32 s{S_SO[1]}, s3, {54 * 32 * 2048}
        """)
    def g_setup(self, p, c):
        lane_fields(p, None, T0 + 1, T0 + 2, T0 + 3)
        p(f"""
        s_mul_i32 s3, s{S_WM}, 12288
        s_add_u32 s3, s3, s{S_RD}
        v_add_u32 v32, s3, v1
        v_and_b32 v{T0+5}, 1, v{T0+1}
        v_lshl_add_u32 v{T0+5}, v{T0+5}, 2, v{T0+2}
        v_lshrrev_b32 v{T0+4}, 1, v{T0+1}
        v_lshl_add_u32 v{T0+4}, v{T0+4}, 4, v{T0+5}
        v_lshlrev_b32 v{T0+4}, 8, v{T0+4}
        v_lshl_add_u32 v{T0+4}, v{T0+3}, 3, v{T0+4}
        s_add_u32 s3, s{S_RD}, 24576
        v_add_u32 v{T0+4}, s3, v{T0+4}
        s_and_b32 s3, s{S_NT2}, 1
        s_lshl_b32 s3, s3, 2
        s_lshl_b32 s4, s{S_WN}, 1
        s_add_u32 s3, s3, s4
        v_xor_b32 v{T0+6}, s3, v{T0+5}
        v_lshl_add_u32 v35, v{T0+6}, 5, v{T0+4}
        v_xor_b32 v36, 32, v35
        v_xor_b32 v33, 128, v35
        v_xor_b32 v34, 160, v35
        """)
    def g_epi(self, p, c):
        st = c.opt.get('stflag', '')
        p(f"""
        s_lshl_b32 s3, s{S_MT2}, 4
        s_add_u32 s3, s3, s{S_NT2}
        s_lshl_b32 s3, s3, 2
        s_add_u32 s3, s3, s{S_WID}
        s_lshl_b32 s3, s3, 13
        s_add_u32 s3, s3, {WS_XCH}
        s_add_u32 s4, s3, 4096
        """)
        for i in range(8):
            p(f"buffer_store_dwordx4 {vr(192 + 4 * i, 4)}, v1, s[{S_WS}:{S_WS+3}], s{3 + i // 4} offen offset:{(i % 4) * 1024} {st}")
        p("s_waitcnt lgkmcnt(0)")

class WO(N64):
    nsteps = 9; order = 'perm32b'; bname = 'w4'; babytes = 3584 * 2048
    a_base = WS_AF; a_size = 18 * MB; a_pitch = AF_PITCH; a_k0 = 108 * 1024
    b_k0 = 108 * 32 * 2048
    h_steps = (5, 6)
    ncall = 0
    def poll(self, c): return poll_flags(c, F_ATT, S_MT2, shift=1, nprod=32)
    def dma_atoms(self, c):
        D = N64.dma_atoms(self, c)
        if self.ncall == 0:
            a = Atoms(); srd(a, S_B, ptr('wo'), 1024 * 2048); a(f"s_mov_b32 s{S_SO[1]}, 0")
            D[-1] += "\n" + "\n".join(a.L)
        self.ncall += 1
        return D
    def h_pre(self, p, c, t):
        if t == 5: poll_flags(c, F_XCH, S_MT2, single=S_NT2).issue(p)
        if t == 6: poll_flags(c, F_XCH, S_MT2, single=S_NT2).check(p)
    def g_zero(self, p): pass
    def g_sites(self, c):
        def f(p):
            ho = c.opt.get('hoflag', '')
            W = f"s[{S_WS}:{S_WS+3}]"
            p(f"""
            s_lshl_b32 s3, s{S_MT2}, 4
            s_xor_b32 s4, s{S_NT2}, 1
            s_add_u32 s3, s3, s4
            s_lshl_b32 s3, s3, 2
            s_add_u32 s3, s3, s{S_WID}
            s_lshl_b32 s3, s3, 13
            s_add_u32 s3, s3, {WS_XCH}
            s_add_u32 s4, s3, 4096
            """)
            for i in range(8):
                p(f"buffer_load_dwordx4 {vr(144 + 4 * i, 4)}, v1, {W}, s{3 + i // 4} offen offset:{(i % 4) * 1024} {ho}")
            p(f"""
            s_lshl_b32 s3, s{S_NT2}, 1
            s_add_u32 s3, s3, s{S_WN}
            s_lshl_b32 s4, s{S_MT2}, 3
            s_lshl_b32 s5, s{S_WM}, 2
            s_add_u32 s4, s4, s5
            s_lshl_b32 s6, s4, 15
            s_lshl_b32 s5, s3, 10
            s_add_u32 s6, s6, s5
            s_add_u32 s6, s6, {WS_X1}
            s_lshl_b32 s4, s4, 6
            s_add_u32 s4, s4, {WS_G + 8192}
            v_and_b32 v36, 15, v0
            v_lshlrev_b32 v36, 2, v36
            """)
            for m in range(4):
                p(f"buffer_load_dwordx4 {vr(96 + 4 * m, 4)}, v1, {W}, s6 offen {ho}")
                p(f"buffer_load_dword v{112 + 2 * m}, v36, {W}, s4 offen offset:{64 * m} {ho}")
                if m < 3: p("s_add_u32 s6, s6, 32768")
        return {7: f}
    def g_epi(self, p, c):
        st = c.opt.get('outflag', '')
        srd(p, S_AUX, ptr('out'), 2048 * 2048)
        lane_fields(p, T0, T0 + 1)
        p(f"""
        s_waitcnt lgkmcnt(0)
        s_lshl_b32 s3, s{S_MT2}, 7
        s_lshl_b32 s4, s{S_WM}, 6
        s_add_u32 s3, s3, s4
        v_add_u32 v36, s3, v{T0}
        v_lshlrev_b32 v36, 11, v36
        v_and_b32 v{T0+2}, 1, v{T0+1}
        v_lshrrev_b32 v{T0+3}, 1, v{T0+1}
        v_lshl_add_u32 v36, v{T0+2}, 5, v36
        v_lshl_add_u32 v36, v{T0+3}, 4, v36
        s_lshl_b32 s3, s{S_NT2}, 7
        s_lshl_b32 s4, s{S_WN}, 6
        s_add_u32 s42, s3, s4
        """)
        for i in range(16): p(f"v_pk_add_f32 {vr(224 + 2 * i, 2)}, {vr(224 + 2 * i, 2)}, {vr(144 + 2 * i, 2)}")
        for m in range(4):
            for n in range(2):
                a = self.acc(m, n)
                for d in range(2):
                    x = 96 + 4 * m + 2 * n + d
                    p(f"v_lshlrev_b32 v48, 16, v{x}\nv_and_b32 v49, 0xffff0000, v{x}")
                    p(f"v_pk_fma_f32 {vr(a + 2 * d, 2)}, v[48:49], {vr(112 + 2 * m, 2)}, {vr(a + 2 * d, 2)} op_sel_hi:[1,0,1]")
            a, b = self.acc(m, 0), self.acc(m, 1)
            t = 72 + 4 * m
            for i, r in enumerate((a, a + 2, b, b + 2)): p(f"v_cvt_pk_bf16_f32 v{t + i}, v{r}, v{r + 1}")
            p(f"v_permlane16_swap_b32 v{t}, v{t + 2}")
            p(f"v_permlane16_swap_b32 v{t + 1}, v{t + 3}")
            p(f"buffer_store_dwordx4 {vr(t, 4)}, v36, s[{S_AUX}:{S_AUX+3}], s42 offen {st}")
            if m < 3: p(f"s_add_u32 s42, s42, {16 * 2048}")
```

```python
from mk import *
from attn import *
def P(a=5, b=6): return [[QKV, W1, Attn(0, a), W2, Attn(a, b), W3, Attn(a + b, 16 - a - b), W4, WO]]
base = dict(stflag='sc1', hoflag='sc1', persist=1)
if __name__ == "__main__":
    make("p4a.s", P(), dict(base, stamp=1))
    make("p4b.s", P(), dict(base, hstamp=1))
    make("p4f.s", P(), dict(base, final=1))
    print("mb/p4a.s mb/p4b.s mb/p4f.s")
```

```python
from tasks import *

A_C, A_S, A_K, A_V, A_P, A_SEL, A_AD = 48, (64, 80), 96, (104, 112), (120, 124), 144, 148
A_V0 = (104, 108, 112, 116); A_V1 = (212, 216, 220, 224)
V_G = 31

A_IDX = 149
class Attn(Task):
    nsteps = 2
    puball = True
    pub_it = 1
    def __init__(self, b0, stages, exposed=False, late=False, defer1=None, pf=()):
        self.b0 = b0; self.stages = stages; self.ncall = 0; self.pfl = pf
        self.nsteps = len(stages)
        self.NI = sum(stages) // 4
        self.bars = [sum(stages[:i + 1]) // 4 - 1 for i in range(len(stages))]
        self.first = b0 == 0; self.last = b0 + sum(stages) == 64
        self.pubkind = F_ATT if self.last else None
        self.exposed = exposed
        self.late = late
        self.defer1 = (self.first or self.last) if defer1 is None else defer1
        if self.first: self.poll = lambda c: poll_flags(c, F_QKV, S_HEAD, shift=1)
    def __call__(self): return self
    def early(self, p, c):
        ho = c.opt.get('hoflag', '')
        W = f"s[{S_WS}:{S_WS+3}]"
        if self.first and not self.exposed:
            p(f"""
            s_lshl_b32 s3, s{S_HEAD}, 17
            s_lshl_b32 s4, s{S_BLK}, 11
            s_add_u32 s3, s3, s4
            buffer_load_dwordx4 {vr(V_Q, 4)}, v1, {W}, s3 offen {ho}
            buffer_load_dwordx4 {vr(V_Q + 4, 4)}, v1, {W}, s3 offen offset:1024 {ho}
            """)
        if self.last:
            p(f"""
            s_lshl_b32 s3, s{S_BLK}, 7
            s_add_u32 s3, s3, {WS_G}
            v_and_b32 v{V_G}, 31, v0
            v_lshlrev_b32 v{V_G}, 2, v{V_G}
            buffer_load_dword v{V_G}, v{V_G}, {W}, s3 offen {ho}
            """)
    def h_post_dep(self, p, c): self.early(p, c)
    def h_setup(self, p, c, first=False):
        srd(p, S_A, ptr('ws'), 8 * MB, WS_KV)
        p(f"""
        s_lshl_b32 s3, s{S_HEAD}, 18
        s_lshl_b32 s{S_LD[0]}, s{S_WM}, 12
        s_add_u32 s3, s3, s{S_LD[0]}
        s_add_u32 s{S_SO[0]}, s3, {self.b0 * 4096}
        """)
    def dma_atoms(self, c):
        ho = c.opt.get('qkvld', c.opt.get('hoflag', ''))
        n = self.stages[self.ncall]; self.ncall += 1
        D = []
        if self.exposed and self.ncall == 1:
            D = [f"buffer_load_dwordx4 v1, s[{S_WS}:{S_WS+3}], s3 offen offset:{1024 * i} {ho} lds" for i in range(4)]
            D[0] = f"""
            s_lshl_b32 s3, s{S_HEAD}, 17
            s_lshl_b32 s4, s{S_QB}, 14
            s_add_u32 s3, s3, s4
            s_add_u32 s3, s3, s{S_LD[0]}
            s_add_u32 s4, s{S_DMA}, s{S_LD[0]}
            s_add_u32 m0, s4, 32768
            """ + D[0]
        for g in range(n // 4):
            G = [f"buffer_load_dwordx4 v1, s[{S_A}:{S_A+3}], s{S_SO[0]} offen offset:{1024 * i} {ho} lds" for i in range(4)]
            G[0] = (f"s_add_u32 m0, s{S_DMA}, s{S_LD[0]}\n" if g == 0 else "s_add_u32 m0, m0, 16384\n") + G[0]
            G[-1] += f"\ns_add_u32 s{S_SO[0]}, s{S_SO[0]}, 16384"
            D += G
        D[-1] += "\n" + "\n".join(slot_adv_dma())
        return D
    def sel_setup(self, p):
        p(f"""
        v_mov_b32 v{A_SEL+1}, 0x3f803f80
        v_and_b32 v{A_IDX}, 6, v0
        v_cmp_eq_u32 vcc, 0, v{A_IDX}
        v_cndmask_b32 v{A_SEL}, 0, v{A_SEL+1}, vcc
        v_cmp_eq_u32 vcc, 4, v{A_IDX}
        v_cndmask_b32 v{A_SEL+2}, 0, v{A_SEL+1}, vcc
        v_and_b32 v{A_IDX}, 1, v0
        v_mov_b32 v{A_SEL+3}, v{A_SEL+2}
        v_mov_b32 v{A_SEL+1}, v{A_SEL}
        v_mul_u32_u24 v{A_IDX}, 0xaaaa, v{A_IDX}
        v_add_u32 v{A_IDX}, 0x4444, v{A_IDX}
        v_lshl_or_b32 v{A_IDX}, v{A_IDX}, 16, v{A_IDX}
        """)
    def LL(self): return f"v_smfmac_f32_16x16x64_bf16 {vr(V_L, 4)}, {vr(A_SEL, 4)}, {vr(A_P[0], 8)}, v{A_IDX}"
    def rowmax(self, p, s, dst, init=None):
        if init is None:
            p(f"v_max3_f32 v{dst}, v{s}, v{s+1}, v{s+2}")
            p(f"v_max_f32 v{dst}, v{dst}, v{s+3}")
            k = 4
        else: k = 0
        for i in range(k, 16, 2): p(f"v_max3_f32 v{dst}, v{dst}, v{s+i}, v{s+i+1}")
    def setup(self, p, c):
        p(f"v_add_u32 v{A_AD}, s{S_RD}, v1")
        if self.exposed:
            p(f"""
            s_lshl_b32 s3, s{S_WID}, 11
            v_add_u32 v{A_C}, s3, v{A_AD}
            ds_read_b128 {vr(V_Q, 4)}, v{A_C} offset:32768
            ds_read_b128 {vr(V_Q + 4, 4)}, v{A_C} offset:{32768 + 1024}
            """)
        p(f"""
        ds_read_b128 {vr(A_K, 4)}, v{A_AD}
        ds_read_b128 {vr(A_K + 4, 4)}, v{A_AD} offset:1024
        ds_read_b128 {vr(A_V0[0], 4)}, v{A_AD} offset:2048
        ds_read_b128 {vr(A_V1[0], 4)}, v{A_AD} offset:3072
        ds_read_b128 {vr(A_V0[1], 4)}, v{A_AD} offset:{4096 + 2048}
        ds_read_b128 {vr(A_V1[1], 4)}, v{A_AD} offset:{4096 + 3072}
        """)
        self.sel_setup(p)
        for i in range(4):
            p(f"v_mov_b32 v{A_P[0] + i}, 0")
            p(f"v_mov_b32 v{A_P[1] + i}, 0")
            p(f"v_mov_b32 v{A_V1[3] + i}, 0")
        if self.first:
            for i in range(20): p(f"v_mov_b32 v{V_O + i}, 0")
            p(mfma32(A_S[1], A_K, V_Q, "0"))
            p(mfma32(A_S[1], A_K + 4, V_Q + 4))
            self.rowmax(p, A_S[1], V_M)
            p(f"""
            v_mov_b32 v{A_C}, v{V_M}
            v_permlane32_swap_b32 v{V_M}, v{A_C}
            v_max_f32 v{V_M}, v{V_M}, v{A_C}
            v_sub_f32 v{V_M}, 0, v{V_M}
            """)
        for i in range(16): p(f"v_mov_b32 v{A_C + i}, v{V_M}")
        p(mfma32(A_S[0], A_K, V_Q, A_C))
        p(mfma32(A_S[0], A_K + 4, V_Q + 4))
        p(f"""
        ds_read_b128 {vr(A_K, 4)}, v{A_AD} offset:4096
        ds_read_b128 {vr(A_K + 4, 4)}, v{A_AD} offset:{4096 + 1024}
        s_nop 7
        s_waitcnt lgkmcnt(0)
        """)
    def tile(self, c, b):
        noff = ((b + 2) % 4) * 4096
        S = A_S[b % 2]; Sn = A_S[(b + 1) % 2]
        rd = lambda d, o: f"ds_read_b128 {vr(d, 4)}, v{A_AD} offset:{noff + o}"
        d = dict(k0=rd(A_K, 0), k1=rd(A_K + 4, 1024), v0=rd(A_V0[(b + 2) % 4], 2048), v1=rd(A_V1[(b + 2) % 4], 3072),
                 O1=mfma32(V_O, A_V1[(b - 1) % 4], A_P[1]), LL=self.LL(),
                 O0=mfma32(V_O, A_V0[b], A_P[0]),
                 Sa=mfma32(Sn, A_K, V_Q, A_C), Sb=mfma32(Sn, A_K + 4, V_Q + 4),
                 w0="s_waitcnt lgkmcnt(0)", w1="s_waitcnt lgkmcnt(1)", w2="s_waitcnt lgkmcnt(2)")
        E = [f"v_exp_f32 v{S + i}, v{S + i}" for i in range(16)]
        C = [f"v_cvt_pk_bf16_f32 v{A_P[i // 4] + i % 4}, v{S + 2 * i}, v{S + 2 * i + 1}" for i in range(8)]
        L = []
        for t in c.opt.get('aorder', "Sa k0 e3 Sb k1 e3 LL v0 e2 O1 v1 c4 e4 O0 w2 e4 c4").split():
            if t[0] == 'e': L += E[:int(t[1:])]; E = E[int(t[1:]):]
            elif t[0] == 'c': L += C[:int(t[1:])]; C = C[int(t[1:]):]
            else: L.append(d[t])
        assert not E and not C
        return L
    def mix(self, T, D):
        pos = [i for i, x in enumerate(T) if x.startswith('v_mfma') or x.startswith('v_smfmac')]
        slots = [0] * len(T)
        for k, i in enumerate(pos): slots[i] = ((k + 1) * len(D)) // len(pos) - (k * len(D)) // len(pos)
        return interleave(T, D, slots)
    def drain(self, p):
        p(mfma32(V_O, A_V1[3], A_P[1]))
        p(self.LL())
        p("s_waitcnt lgkmcnt(0)")
    def g_setup(self, p, c): pass
    def prefetch(self, p, c):
        g_prefetch(p, c, [(nm, {'w2': 2, 'wo': 2, 'w3': 7, 'w4': 7}[nm] * MB, a, n) for nm, a, n in self.pfl])
    def loop(self, p, c, events, pf):
        NI = self.NI
        L = c.lab("al"); Lm = c.lab("am"); Lx = c.lab("ax")
        mask = sum(1 << (NI - it) for it in events)
        p(f"s_mov_b32 s{S_CNT}, {NI}")
        p(f"s_branch {Lm}")
        p(".p2align 5")
        p.label(L)
        p.add(self.mix(self.tile(c, 2), pf(0)))
        p.add(self.mix(self.tile(c, 3), [f"s_sub_u32 s{S_CNT}, s{S_CNT}, 1\ns_cmp_eq_u32 s{S_CNT}, 0"]))
        p(f"s_cbranch_scc1 {Lx}")
        p.label(Lm)
        p.add(self.mix(self.tile(c, 0), pf(1)))
        p.add(self.mix(self.tile(c, 1), pf(0) + [f"s_bitcmp1_b32 {hex(mask)}, s{S_CNT}"]))
        p(f"v_add_u32 v{A_AD}, 16384, v{A_AD}")
        p(f"s_cbranch_scc0 {L}")
        its = sorted(events)
        for i, it in enumerate(its):
            Ln = c.lab("an")
            if i < len(its) - 1: p(f"s_cmp_eq_u32 s{S_CNT}, {NI - it}\ns_cbranch_scc0 {Ln}")
            events[it](p)
            p(f"s_branch {L}")
            if i < len(its) - 1: p.label(Ln)
        p.label(Lx)
        self.drain(p)
    def next_slot(self, p):
        p.add(slot_adv_rd())
        p(f"v_add_u32 v{A_AD}, s{S_RD}, v1")
    def g_body(self, p, c, prev):
        self.setup(p, c)
        pub = prev is not None and prev.pubkind is not None and c.opt.get('persist')
        def ev(it, bar):
            def f(p):
                if pub and it == self.pub_it:
                    p(f"s_waitcnt vmcnt({self.drain_n(c)})")
                    publish(p, c, prev.pubkind, False)
                    self.prefetch(p, c)
                if bar:
                    self.next_slot(p)
                    p("s_waitcnt lgkmcnt(0)\ns_barrier")
            return f
        bars = self.bars
        E = {it: ev(it, it in bars) for it in set(bars) | ({self.pub_it} if pub else set())}
        self.loop(p, c, E, lambda k: [])
    def h_body(self, p, c, nxt, skip0=False):
        assert not skip0
        if self.ncall == 1: p.add(self.dma_atoms(c))
        p(f"""
        s_add_u32 s{S_RD}, s{S_DMA}, {SLOT}
        s_cmp_eq_u32 s{S_RD}, {SLOT * NSLOT}
        s_cselect_b32 s{S_RD}, 0, s{S_RD}
        """)
        three = len(self.stages) == 3
        def prep(p):
            if not nxt: return 0
            nxt.h_setup(p, c)
            p(f"s_mov_b32 s44, s{S_DMA}")
            p.add(slot_adv_dma())
            p(f"s_mov_b32 s45, s{S_DMA}")
            p.add(slot_adv_dma())
            D = nxt.dma_part(c, 1, 44)
            p.add(D)
            return nvm(D)
        if three:
            D = self.dma_atoms(c); p.add(D); n0 = nvm(D)
        else: n0 = prep(p)
        self.setup(p, c)
        def e0(p):
            self.next_slot(p)
            p(f"s_waitcnt vmcnt({n0}) lgkmcnt(0)\ns_barrier")
            hstep_stamp(p, c)
        def e0b(p): self.n1 = prep(p)
        def e1(p):
            self.next_slot(p)
            p(f"s_waitcnt vmcnt({self.n1 if three else n0}) lgkmcnt(0)\ns_barrier")
            hstep_stamp(p, c)
            if c.opt.get('hprio', 1): p("s_setprio 1")
        def e2(p):
            if nxt: p.add(nxt.dma_part(c, 1, 45))
            if nxt and nxt.poll: nxt.poll(c).issue(p)
        def e3(p):
            self.next_slot(p)
            p("s_setprio 0")
            n1 = 0
            if nxt:
                if nxt.poll: nxt.poll(c).check(p)
                nxt.h_post_dep(p, c)
                p.add(nxt.dma_part(c, 0, 44))
                D1 = nxt.dma_part(c, 0, 45); n1 = nvm(D1)
                p.add(D1)
                a = Atoms()
                nxt.first_extra = nxt.h_late(a, c)
                p.add(a.L); n1 += nxt.first_extra
            p(f"s_waitcnt vmcnt({n1}) lgkmcnt(0)\ns_barrier")
            hstep_stamp(p, c)
            if nxt: p.add(nxt.dma_atoms(c))
        E = {self.bars[-2]: e1, self.NI - 2: e2, self.NI - 1: e3}
        if three:
            assert self.bars[1] - 1 > self.bars[0]
            E[self.bars[0]] = e0; E[self.bars[1] - 1] = e0b
        self.loop(p, c, E, lambda k: [])
        return nxt is not None
    def h_epi(self, p, c): self.g_epi(p, c)
    def g_epi(self, p, c):
        if not self.last: return
        st = c.opt.get('stflag', '')
        W = f"s[{S_WS}:{S_WS+3}]"
        Lok = c.lab("ok")
        p(f"v_mov_b32 v{A_C}, 0")
        for i in range(16): p(f"v_fma_f32 v{A_C}, v{V_O + i}, 0, v{A_C}")
        p(f"""
        v_add_f32 v{A_C}, v{A_C}, v{V_L}
        v_add_f32 v{A_C}, v{A_C}, v{V_L+1}
        v_mov_b32 v{A_C+1}, {hexf(2.0 ** c.opt.get('lmaxlog', 64))}
        v_cmp_nlt_f32 vcc, v{A_C}, v{A_C+1}
        s_cbranch_vccz {Lok}
        """)
        self.fallback(p, c)
        p.label(Lok)
        p(f"""
        v_add_f32 v{A_C}, v{V_L}, v{V_L+1}
        v_rcp_f32 v{A_C}, v{A_C}
        v_and_b32 v{A_C+2}, 15, v0
        v_bfe_u32 v{A_C+3}, v0, 4, 1
        v_mul_f32 v{A_C}, v{A_C}, v{V_G}
        v_lshrrev_b32 v{A_C+4}, 5, v0
        v_mul_u32_u24 v{A_C+3}, {AF_PITCH}, v{A_C+3}
        v_lshl_add_u32 v{A_C+3}, v{A_C+2}, 4, v{A_C+3}
        v_lshl_add_u32 v{A_C+3}, v{A_C+4}, 8, v{A_C+3}
        s_mul_i32 s3, s{S_BLK}, {2 * AF_PITCH}
        s_lshl_b32 s4, s{S_HEAD}, 10
        s_add_u32 s3, s3, s4
        s_add_u32 s3, s3, {WS_AF + 112 * 1024}
        """)
        for i in range(8): p(f"v_pk_mul_f32 {vr(V_O + 2 * i, 2)}, {vr(V_O + 2 * i, 2)}, {vr(A_C, 2)} op_sel_hi:[1,0]")
        for i in range(8): p(f"v_cvt_pk_bf16_f32 v{A_C + 8 + i}, v{V_O + 2 * i}, v{V_O + 2 * i + 1}")
        for u in range(2):
            p(f"buffer_store_dwordx4 {vr(A_C + 8 + 4 * u, 4)}, v{A_C+3}, {W}, s3 offen offset:{512 * u} {st}")
    def fallback(self, p, c):
        ho = c.opt.get('hoflag', '')
        W = f"s[{S_WS}:{S_WS+3}]"
        L1 = c.lab("fb"); L2 = c.lab("fb")
        S = A_S[0]
        p(f"""
        s_lshl_b32 s5, s{S_HEAD}, 18
        s_add_u32 s5, s5, {WS_KV}
        s_mov_b32 s6, s5
        s_mov_b32 s7, 64
        v_mov_b32 v{V_M}, 0xff800000
        """)
        p.label(L1)
        p(f"""
        buffer_load_dwordx4 {vr(A_K, 4)}, v1, {W}, s6 offen {ho}
        buffer_load_dwordx4 {vr(A_K + 4, 4)}, v1, {W}, s6 offen offset:1024 {ho}
        s_waitcnt vmcnt(0)
        """)
        p(mfma32(S, A_K, V_Q, "0"))
        p(mfma32(S, A_K + 4, V_Q + 4))
        self.rowmax(p, S, V_M, True)
        p(f"s_add_u32 s6, s6, 4096\ns_sub_u32 s7, s7, 1\ns_cmp_lg_u32 s7, 0\ns_cbranch_scc1 {L1}")
        p(f"""
        v_mov_b32 v{A_C}, v{V_M}
        v_permlane32_swap_b32 v{V_M}, v{A_C}
        v_max_f32 v{V_M}, v{V_M}, v{A_C}
        v_sub_f32 v{V_M}, 0, v{V_M}
        s_mov_b32 s7, 64
        """)
        for i in range(16): p(f"v_mov_b32 v{A_C + i}, v{V_M}")
        for i in range(20): p(f"v_mov_b32 v{V_O + i}, 0")
        p.label(L2)
        p(f"""
        buffer_load_dwordx4 {vr(A_K, 4)}, v1, {W}, s5 offen {ho}
        buffer_load_dwordx4 {vr(A_K + 4, 4)}, v1, {W}, s5 offen offset:1024 {ho}
        buffer_load_dwordx4 {vr(A_V[0], 4)}, v1, {W}, s5 offen offset:2048 {ho}
        buffer_load_dwordx4 {vr(A_V[0] + 4, 4)}, v1, {W}, s5 offen offset:3072 {ho}
        s_waitcnt vmcnt(0)
        """)
        p(mfma32(S, A_K, V_Q, A_C))
        p(mfma32(S, A_K + 4, V_Q + 4))
        for i in range(16): p(f"v_exp_f32 v{S + i}, v{S + i}")
        for i in range(8): p(f"v_cvt_pk_bf16_f32 v{A_P[i // 4] + i % 4}, v{S + 2 * i}, v{S + 2 * i + 1}")
        p(mfma32(V_O, A_V[0], A_P[0]))
        p(mfma32(V_O, A_V[0] + 4, A_P[1]))
        p(self.LL())
        p(f"s_add_u32 s5, s5, 4096\ns_sub_u32 s7, s7, 1\ns_cmp_lg_u32 s7, 0\ns_cbranch_scc1 {L2}")
```

```python
from common import *

SLOT = 49152
NSLOT = 3
L_X = SLOT * NSLOT
LDS_BYTES = 163840
L_MU = L_X
L_RS = L_X + 512
L_OG = L_X + 1024
L_CS = L_X + 1536
L_DUMMY = L_X + 4096

WS_ST1 = 41 * MB
WS_P2 = 42 * MB
WS_CSP = 43 * MB

S_A, S_B, S_WS, S_AUX = 8, 12, 16, 20
S_WID, S_WM, S_WN, S_XCD, S_IDX = 24, 25, 26, 27, 28
S_MT3, S_NT3, S_MT2, S_NT2, S_HEAD, S_BLK, S_QB = 29, 30, 54, 55, 51, 52, 41
S_POLL = 40
S_DBG = 88
S_FL = 88
S_CNT, S_RD, S_DELTA, S_DMA = 31, 32, 33, 34
S_SO = [35, 36]
S_LD = [37, 38]
S_OFFS = [42, 43, 44, 45, 46, 47, 92, 93, 94, 95, 98, 99]
S_NEG = 39
S_PTR = 64
def ptr(name): return S_PTR + KA[name] // 4
V_LANE, V_L16 = 0, 1
V_Q, V_O, V_L, V_M = 2, 10, 26, 30
V_AD = 32
V_FR = 48

def mfma16(d, a, b, c=None):
    cs = vr(d, 4) if c is None else (c if isinstance(c, str) else vr(c, 4))
    return f"v_mfma_f32_16x16x32_bf16 {vr(d,4)}, {vr(a,4)}, {vr(b,4)}, {cs}"

def tile_map(p, a_log2, S_MT, S_NT):
    a = 1 << a_log2; b = 32 // a
    nxm = 16 // a
    p(f"""
    s_and_b32 s3, s{S_XCD}, {nxm - 1}
    s_lshl_b32 s3, s3, {a_log2}
    s_and_b32 s4, s{S_IDX}, {a - 1}
    s_add_u32 s{S_MT}, s3, s4
    s_lshr_b32 s3, s{S_XCD}, {nxm.bit_length() - 1}
    s_lshl_b32 s3, s3, {b.bit_length() - 1}
    s_lshr_b32 s4, s{S_IDX}, {a_log2}
    s_add_u32 s{S_NT}, s3, s4
    """)

def slot_adv_rd():
    return [f"s_add_u32 s{S_RD}, s{S_RD}, {SLOT}", f"s_cmp_eq_u32 s{S_RD}, {SLOT * NSLOT}",
            f"s_cselect_b32 s{S_DELTA}, s{S_NEG}, {SLOT}", f"s_cselect_b32 s{S_RD}, 0, s{S_RD}"]
def slot_adv_dma():
    return [f"s_add_u32 s{S_DMA}, s{S_DMA}, {SLOT}", f"s_cmp_eq_u32 s{S_DMA}, {SLOT * NSLOT}",
            f"s_cselect_b32 s{S_DMA}, 0, s{S_DMA}"]

class Ctx:
    def __init__(self, name, opt):
        self.name = name; self.opt = opt; self.nlab = 0
        self.stamp_slot = {'g': 0, 'h': 0}
    def lab(self, s):
        self.nlab += 1
        return f"{self.name}_{s}{self.nlab}"
    def ST(self, p, role):
        if not self.opt.get('stamp'): return
        sl = self.stamp_slot[role]; self.stamp_slot[role] += 1
        stamp2(p, sl, self.opt['stamp'] - 1, 24 if (self.merged and sl < 6) else 140)

def hstep_stamp(p, c):
    if not c.opt.get('hstamp'): return
    p("""
    s_memtime s[56:57]
    s_waitcnt lgkmcnt(0)
    s_lshl_b64 exec, 1, s62
    s_cmp_ge_u32 s62, 64
    s_cselect_b64 s[58:59], 0, exec
    s_cselect_b64 s[60:61], exec, 0
    s_mov_b64 exec, s[58:59]
    v_mov_b32 v150, s56
    s_mov_b64 exec, s[60:61]
    v_mov_b32 v151, s56
    s_mov_b64 exec, -1
    s_add_u32 s62, s62, 1
    """)
def hstep_dump(p, c):
    if not c.opt.get('hstamp') and not c.opt.get('sstamp') and not c.opt.get('spincnt'): return
    p(f"""
    s_lshl_b32 s3, s2, 2
    s_add_u32 s3, s3, s{S_WM}
    s_lshl_b32 s3, s3, 9
    s_add_u32 s3, s3, {WS_STAMP + 2 * MB}
    v_lshlrev_b32 v152, 2, v0
    buffer_store_dword v150, v152, s[{S_WS}:{S_WS+3}], s3 offen
    buffer_store_dword v151, v152, s[{S_WS}:{S_WS+3}], s3 offen offset:256
    """)
NSTAMP = 32
def stamp2(p, slot, kidx, v=140):
    p(f"""
    s_memrealtime s[56:57]
    s_memtime s[58:59]
    s_add_u32 s60, s2, {kidx * 256}
    s_lshl_b32 s60, s60, 3
    s_add_u32 s60, s60, s{S_WID}
    s_lshl_b32 s60, s60, 8
    s_add_u32 s60, s60, {WS_STAMP + slot * 8}
    s_waitcnt lgkmcnt(0)
    v_mov_b32 v{v}, s56
    v_mov_b32 v{v+1}, s58
    v_mov_b32 v{v+2}, 0
    s_mov_b64 exec, 1
    buffer_store_dwordx2 v[{v}:{v+1}], v{v+2}, s[{S_WS}:{S_WS+3}], s60 offen
    s_mov_b64 exec, -1
    """)


class Atoms:
    def __init__(self): self.L = []
    def __call__(self, s):
        for line in s.split('\n'):
            line = line.strip()
            if line and not line.startswith(';'): self.L.append(line)
    def atom(self, s): self.L.append(s)
    def add(self, items):
        for x in items: self(x)

def spread(main, fill, start=0, end=None):
    n = len(main); end = n if end is None else end
    k = end - start
    slots = [0] * n
    for i in range(k): slots[start + i] = ((i + 1) * len(fill)) // k - (i * len(fill)) // k
    return interleave(main, fill, slots)

def nvm(D): return sum(x.count('buffer_') for x in D)

class Task:
    pubkind = None
    puball = False
    xbar = False
    pubstep = 3
    exposed = False
    defer1 = False
    late = False
    poll = None
    def g_sites(self, c): return {}
    def h_post_dep(self, p, c): return
    def drain_n(self, c): return 0
    def h_indep(self, a, c): return 0
    def h_late(self, a, c): return 0
    def g_prev_site(self, p, c): return
    has_prev_site = False
    def early(self, p, c): return
    def h_epi(self, p, c): return
    def g_events(self, c, prev, unroll):
        E = {t: [f] for t, f in self.g_sites(c).items()}
        if prev is not None and prev.pubkind is not None and c.opt.get('persist'):
            t = self.pubstep
            if prev.puball:
                E.setdefault(t - unroll, []).append(lambda q: q("s_waitcnt vmcnt(0)"))
                E.setdefault(t, []).append(lambda q: publish(q, c, prev.pubkind, True))
            else:
                E.setdefault(t, []).append(lambda q: (q("s_waitcnt vmcnt(0)"), publish(q, c, prev.pubkind, False)))
        assert all(t % unroll == 0 for t in E)
        return E

class Gemm(Task):
    MT = 4
    fr0 = V_FR
    zero_first = False
    def acc(self, m, n): return 256 - 4 * self.MT * self.NT + 4 * (n * self.MT + m)
    def xf(self, s, m): return self.fr0 + s * 4 * (self.MT + self.NT) + 4 * m
    def wf(self, s, n): return self.fr0 + s * 4 * (self.MT + self.NT) + 4 * self.MT + 4 * n
    def swap(self, n): return False
    def reads(self, s, kk):
        rx = lambda m: "ds_read_b128 %s, v%d offset:%d" % ((vr(self.xf(s, m), 4),) + self.xaddr(kk, m))
        rw = lambda n, j: "ds_read_b64_tr_b16 %s, v%d offset:%d" % ((vr(self.wf(s, n) + 2 * j, 2),) + self.waddr(kk, n, j))
        R = [rx(0), rw(0, 0), rw(0, 1)] + [rx(m) for m in range(1, self.MT)]
        for n in range(1, self.NT): R += [rw(n, 0), rw(n, 1)]
        return R
    def mfmas(self, s, c0=None):
        M = []
        for n in range(self.NT):
            for m in range(self.MT):
                if self.swap(n): M.append(mfma16(self.acc(m, n), self.xf(s, m), self.wf(s, n), c0))
                else: M.append(mfma16(self.acc(m, n), self.wf(s, n), self.xf(s, m), c0))
            M += self.extra_mfma(s, n)
        return M
    def extra_mfma(self, s, n): return []
    def g_loop_atoms(self, c): return []
    def g_zero(self, p):
        if self.zero_first: return
        for r in range(self.acc(0, 0), 256): p(f"v_mov_b32 v{r}, 0")
    def g_body(self, p, c, prev): self.g_loop(p, c, self.nsteps, prev)
    def g_loop(self, p, c, nsteps, prev):
        KS = self.KS
        nm = len(self.mfmas(0)); nr = len(self.reads(0, 0))
        big = nm >= 16
        unroll = 2 if KS % 2 else 1
        assert nsteps % unroll == 0
        w0 = c.opt.get('w0', 4)
        p.add(self.reads(0, 0))
        p(f"s_mov_b32 s{S_CNT}, {nsteps}")
        L = c.lab("gl"); Le = c.lab("ge")
        if self.zero_first:
            p.add(interleave(self.mfmas(0, "0"), self.reads(1, 1), [1] * nm))
            p(f"s_branch {Le}")
        p(".p2align 5")
        p.label(L)
        par = 0
        E = self.g_events(c, prev, unroll)
        mask = sum(1 << k for k in range(1, nsteps) if nsteps - k not in E)
        for u in range(unroll):
            for kk in range(KS - 1):
                R = self.reads(par ^ 1, kk + 1)
                if kk == 0: R = R + self.g_loop_atoms(c)
                if big: p(f"s_waitcnt lgkmcnt({w0})")
                p.add(interleave(self.mfmas(par), R, [1] * nm))
                par ^= 1
                if u == 0 and kk == 0 and self.zero_first: p.label(Le)
            M = self.mfmas(par)
            upd = slot_adv_rd() + [f"v_add_u32 v{r}, s{S_DELTA}, v{r}" for r in self.addr_regs]
            tail = [f"s_sub_u32 s{S_CNT}, s{S_CNT}, {unroll}", f"s_bitcmp1_b32 {hex(mask)}, s{S_CNT}"] if u == unroll - 1 else []
            bp = min(c.opt.get('barpos', 6), nm - nr) if big else 4
            if big: p(f"s_waitcnt lgkmcnt({w0})")
            p.add(spread(M[:bp], upd))
            p("s_waitcnt lgkmcnt(0)")
            p("s_barrier")
            p.add(interleave(M[bp:], self.reads(par ^ 1, 0) + tail, [1 if big else 2] * nm))
            par ^= 1
        p(f"s_cbranch_scc1 {L}")
        if E:
            Lo = c.lab("gev")
            p(f"s_cmp_lg_u32 s{S_CNT}, 0\ns_cbranch_scc1 {Lo}")
            def ool(q):
                q.label(Lo)
                ts = sorted(E)
                for i, t in enumerate(ts):
                    Ln = c.lab("gen")
                    if i < len(ts) - 1: q(f"s_cmp_eq_u32 s{S_CNT}, {nsteps - t}\ns_cbranch_scc0 {Ln}")
                    for f in E[t]: f(q)
                    q(f"s_branch {L}")
                    if i < len(ts) - 1: q.label(Ln)
            c.ool.append(ool)
    def dma_atoms(self, c):
        if c.opt.get('nodma'): return ["\n".join(slot_adv_dma())]
        ld = self.bflag(c)
        nA, nB = self.nA, self.nB
        D = []
        if self.rotated(c):
            A = [f"s_add_u32 m0, s{S_DMA}, s{S_OFFS[i]}\nbuffer_load_dwordx4 v{V_AD + i}, s[{S_A}:{S_A+3}], s{S_SO[0]} offen {self.aflag(c)} lds" for i in range(nA)]
            B = [f"s_add_u32 m0, s{S_DMA}, s{S_OFFS[nA + i]}\nbuffer_load_dwordx4 v{V_AD + nA + i}, s[{S_B}:{S_B+3}], s{S_SO[1]} offen {ld} lds" for i in range(nB)]
            D = [B[0], A[0]] + spread(A[1:], B[1:])
            nA = nB = 0
        for i in range(nA):
            D.append((f"s_add_u32 m0, s{S_DMA}, s{S_LD[0]}" if i == 0 else "s_add_u32 m0, m0, 1024") +
                     f"\nbuffer_load_dwordx4 v{V_AD + i}, s[{S_A}:{S_A+3}], s{S_SO[0]} offen {self.aflag(c)} lds")
        for i in range(nB):
            D.append((f"s_add_u32 m0, s{S_DMA}, s{S_LD[1]}" if i == 0 else "s_add_u32 m0, m0, 1024") +
                     f"\nbuffer_load_dwordx4 v{V_AD + nA + i}, s[{S_B}:{S_B+3}], s{S_SO[1]} offen {ld} lds")
        t = []
        if not c.opt.get('step0'):
            t += [f"s_add_u32 s{S_SO[0]}, s{S_SO[0]}, {self.stepA}", f"s_add_u32 s{S_SO[1]}, s{S_SO[1]}, {self.stepB}"]
        D[-1] += "\n" + "\n".join(t + slot_adv_dma())
        return D
    def dma_part(self, c, k, slot):
        n0, n, r, fl, st = ((0, self.nA, S_A, self.aflag(c), self.stepA), (self.nA, self.nB, S_B, c.opt.get('ldflag', ''), self.stepB))[k]
        D = [(f"s_add_u32 m0, s{slot}, s{S_LD[k]}" if i == 0 else "s_add_u32 m0, m0, 1024") +
             f"\nbuffer_load_dwordx4 v{V_AD + n0 + i}, s[{r}:{r+3}], s{S_SO[k]} offen {fl} lds" for i in range(n)]
        D[-1] += f"\ns_add_u32 s{S_SO[k]}, s{S_SO[k]}, {st}"
        return D
    def aflag(self, c): return c.opt.get('hoflag', '')
    def rotated(self, c): return False
    def bflag(self, c): return c.opt.get('ldflag', '')
    @property
    def nd(self): return self.nA + self.nB
    def h_post(self, p, c, t): pass
    def h_poll(self, c, t): return None
    def h_pre(self, p, c, t): pass
    def h_mix(self, a, c, t): pass
    def h_extra(self, p, c, t): return 0
    def h_tail(self, c): return []
    h_steps = ()
    def h_body(self, p, c, nxt, skip0=False):
        n = self.nsteps
        special = set(self.h_steps) | {n - 2, n - 1}
        if skip0 or self.xbar or getattr(self, 'first_extra', 0): special.add(0)
        pollstep = None
        real_nxt = nxt
        if nxt is not None and nxt.exposed: nxt = None
        if nxt is not None and nxt.poll and c.opt.get('persist'):
            pollstep = n - 2 if nxt.late else n - 3
            special.add(pollstep)
        def step(t):
            ex = 0
            noex = t is None or c.opt.get('noextra')
            P1 = None
            if t is not None: P1 = nxt.poll(c) if t == pollstep else self.h_poll(c, t)
            if P1: P1.issue1(p)
            if not noex: self.h_pre(p, c, t)
            D = []; nd = 0
            if t == 0 and self.xbar: p("s_barrier")
            if t is None or t <= n - 3:
                nd = self.nd
                if not (t == 0 and skip0): D = self.dma_atoms(c)
            else:
                if t == n - 2: D = self.h_tail(c)
                if nxt is not None:
                    if t == (n - 1 if nxt.late else n - 2):
                        nxt.h_setup(p, c)
                        nxt.h_post_dep(p, c)
                    if t == (n - 1 if nxt.late else n - 2) or not nxt.defer1: D += nxt.dma_atoms(c)
                nd = 0 if (nxt is not None and nxt.late) else nvm(D)
            a = Atoms()
            if not noex: self.h_mix(a, c, t)
            p.add(spread(D, a.L) if D else a.L)
            if not noex: ex = self.h_extra(p, c, t)
            if t == 0: ex += getattr(self, 'first_extra', 0)
            p(f"s_waitcnt vmcnt({nd + ex})")
            if P1: P1.check1(p)
            if not noex: self.h_post(p, c, t)
            p("s_barrier")
            hstep_stamp(p, c)
        t = 0
        while t < n:
            if t in special:
                step(t); t += 1; continue
            e = t
            while e not in special: e += 1
            if e - t == 1: step(None)
            else:
                p(f"s_mov_b32 s{S_CNT}, {e - t}")
                L = c.lab("hl")
                p.label(L)
                step(None)
                p(f"s_sub_u32 s{S_CNT}, s{S_CNT}, 1\ns_cmp_lg_u32 s{S_CNT}, 0\ns_cbranch_scc1 {L}")
            t = e
        if real_nxt is not None and real_nxt.exposed:
            real_nxt.h_setup(p, c)
            L = c.lab("xp")
            p("s_barrier")
            p(f"s_cmp_eq_u32 s{S_WM}, 0\ns_cbranch_scc0 {L}")
            P = real_nxt.poll(c); P.issue(p); P.check(p)
            p.label(L)
            p("s_barrier")
            hstep_stamp(p, c)
            p.add(real_nxt.dma_atoms(c))
            p("s_waitcnt vmcnt(0)\ns_barrier")
            hstep_stamp(p, c)
        return False

WS_FLAG = 43 * MB + 512 * 1024
F_QKV, F_W1, F_W2, F_W3, F_ATT, F_XCH, F_ST, F_CS = 0, 1, 2, 3, 4, 5, 6, 7
NKIND = 8

class Poll:
    def __init__(self, c, addr, load, test):
        self.c, self.addr, self.load, self.test = c, addr, load, test
    def issue(self, p):
        if not self.c.opt.get('persist'): return
        p(self.addr); p(self.load)
    def issue1(self, p):
        if not self.c.opt.get('persist'): return
        L = self.c.lab("p1")
        p(f"s_cmp_eq_u32 s{S_WM}, 0\ns_cbranch_scc0 {L}")
        self.issue(p)
        p.label(L)
    def check1(self, p):
        if not self.c.opt.get('persist'): return
        L = self.c.lab("c1")
        p(f"s_cmp_eq_u32 s{S_WM}, 0\ns_cbranch_scc0 {L}")
        self.check(p)
        p.label(L)
    def check(self, p):
        c = self.c
        if not c.opt.get('persist'): return
        L = c.lab("poll"); E = c.lab("pollx")
        p(f"s_mov_b32 s5, {c.opt.get('spinmax', 100000)}")
        p.label(L)
        p(self.test)
        p(f"""
        s_cbranch_vccz {E}
        s_sub_u32 s5, s5, 1
        s_cmp_eq_u32 s5, 0
        s_cbranch_scc1 {E}
        s_sleep {c.opt.get('spinsleep', 2)}
        """)
        p(self.load)
        p("s_waitcnt vmcnt(0)")
        p(f"s_branch {L}")
        p.label(E)
        if c.opt.get('spincnt'):
            c.npoll = getattr(c, 'npoll', 0) + 1
            p(f"s_sub_u32 s5, {c.opt.get('spinmax', 100000)}, s5\nv_writelane_b32 v153, s5, {c.npoll - 1}")

def poll_init(c):
    return Poll(c, f"v_min_u32 v136, {4 * NKIND - 1}, v0\nv_lshlrev_b32 v136, 2, v136",
        f"buffer_load_dword v137, v136, s[{S_DBG}:{S_DBG+3}], 0 offen sc1", "v_cmp_eq_u32 vcc, 0, v137")

def poll_flags(c, kind, row_sgpr, shift=0, nprod=16, halo=False, single=None, col_sgpr=None):
    lg = nprod.bit_length() - 1
    a = f"v_and_b32 v136, {nprod - 1}, v0\n"
    if single is not None:
        a = f"s_xor_b32 s3, s{single}, 1\nv_mov_b32 v136, s3\n"
    if halo:
        a += f"""
        v_lshrrev_b32 v138, 4, v0
        v_min_u32 v138, 2, v138
        s_add_u32 s3, s{row_sgpr}, 15
        v_add_u32 v138, s3, v138
        v_and_b32 v138, 15, v138
        v_lshl_add_u32 v136, v138, 4, v136
        """
    else:
        if col_sgpr is not None: a += f"v_lshl_add_u32 v138, v136, 4, s{col_sgpr}\n"
        a += f"""
        s_lshr_b32 s3, s{row_sgpr}, {shift}
        s_lshl_b32 s3, s3, {lg}
        v_add_u32 v136, s3, v136
        """
        if col_sgpr is not None: a += "v_cmp_gt_u32 vcc, 32, v0\nv_cndmask_b32 v136, v138, v136, vcc\n"
    a += f"v_lshlrev_b32 v136, 7, v136\ns_mov_b32 s{S_POLL}, {WS_FLAG + kind * 32768}"
    return Poll(c, a, f"buffer_load_dwordx4 v[140:143], v136, s[{S_WS}:{S_WS+3}], s{S_POLL} offen sc1",
                "v_min3_u32 v137, v140, v141, v142\nv_min_u32 v137, v137, v143\nv_cmp_eq_u32 vcc, 0, v137")

def own_flags(p, c):
    if not c.opt.get('persist'): return
    L = c.lab("zf")
    p(f"""
    s_cmp_lt_u32 s2, {NKIND}
    s_cbranch_scc0 {L}
    s_lshl_b32 s4, s2, 2
    s_add_u32 s4, s4, s{S_WID}
    s_lshl_b32 s3, s4, 13
    s_add_u32 s3, s3, {WS_FLAG}
    v_lshlrev_b32 v136, 7, v0
    v_mov_b32 v137, 0
    v_mov_b32 v140, 0
    v_mov_b32 v141, 0
    v_mov_b32 v142, 0
    v_mov_b32 v143, 0
    buffer_store_dwordx4 v[140:143], v136, s[{S_WS}:{S_WS+3}], s3 offen sc1
    s_lshl_b32 s4, s4, 2
    v_mov_b32 v138, 1
    """)
    srd(p, S_AUX, ptr('dbg'), 256)
    p(f"""
    s_waitcnt vmcnt(0)
    s_mov_b64 exec, 1
    buffer_store_dword v138, v137, s[{S_AUX}:{S_AUX+3}], s4 offen sc1
    s_mov_b64 exec, -1
    """)
    p.label(L)

def own_offsets(p, c):
    if not c.opt.get('persist'): return
    for k, row, idx, lg in ((F_QKV, S_NT3, S_MT3, 4), (F_W1, S_MT3, S_NT3, 4) if c.merged else (F_W1, S_MT2, S_NT2, 4), (F_W2, S_MT2, S_NT2, 4), (F_W3, S_MT3, S_NT3, 4),
                            (F_ATT, S_QB, S_HEAD, 5), (F_XCH, S_MT2, S_NT2, 4), (F_ST, S_MT3, S_NT3, 4), (F_CS, S_NT3, S_MT3, 4)):
        p(f"""
        s_lshl_b32 s3, s{row}, {lg}
        s_add_u32 s3, s3, s{idx}
        s_lshl_b32 s3, s3, 7
        s_add_u32 s{S_FL + k}, s3, {WS_FLAG + k * 32768}
        """)

def publish(p, c, kind, all4, v=136):
    if not c.opt.get('persist'): return
    W = f"s[{S_WS}:{S_WS+3}]"
    if all4:
        L = c.lab("pub")
        p(f"s_cmp_eq_u32 s{S_WID}, 0\ns_cbranch_scc0 {L}")
        p(f"v_lshlrev_b32 v{v}, 2, v0\nv_mov_b32 v{v+1}, 1\ns_mov_b64 exec, 15")
        p(f"buffer_store_dword v{v+1}, v{v}, {W}, s{S_FL + kind} offen sc1")
        p("s_mov_b64 exec, -1")
        p.label(L)
    else:
        p(f"s_lshl_b32 s3, s{S_WID}, 2\nv_mov_b32 v{v}, s3\nv_mov_b32 v{v+1}, 1\ns_mov_b64 exec, 1")
        p(f"buffer_store_dword v{v+1}, v{v}, {W}, s{S_FL + kind} offen sc1")
        p("s_mov_b64 exec, -1")

def gen_kernel(name, tasks, opt):
    c = Ctx(name, opt)
    c.ool = []
    c.merged = getattr(tasks[0], 'NT', 0) == 8
    for i, T in enumerate(tasks): T.nxt = tasks[i + 1] if i + 1 < len(tasks) else None
    p = Prog()
    def T(k):
        if opt.get('sstamp'): p(f"s_memrealtime s[{96 + 0}:{97}]\ns_waitcnt lgkmcnt(0)\nv_writelane_b32 v153, s96, {k}")
    p(f"""
    s_cmp_ge_u32 s2, 256
    s_cbranch_scc1 {name}_end
    """)
    T(0)
    p(f"""
    s_load_dwordx16 s[{S_PTR}:{S_PTR+15}], s[0:1], 0
    s_load_dwordx8 s[{S_PTR+16}:{S_PTR+23}], s[0:1], 64
    s_lshr_b32 s{S_IDX}, s2, 3
    """)
    code_prefetch(p, c)
    p(f"""
    v_lshrrev_b32 v1, 6, v0
    v_and_b32 v0, 63, v0
    v_readfirstlane_b32 s{S_WID}, v1
    v_lshlrev_b32 v{V_L16}, 4, v0
    s_and_b32 s{S_XCD}, s2, 7
    s_mov_b32 s{S_RD}, 0
    s_mov_b32 s{S_DMA}, 0
    """)
    tile_map(p, 3, S_MT3, S_NT3)
    ids = f"""
    s_mov_b32 s{S_NEG}, {-(NSLOT - 1) * SLOT & 0xffffffff}
    s_and_b32 s3, s{S_XCD}, 3
    s_lshl_b32 s3, s3, 2
    s_and_b32 s4, s{S_IDX}, 3
    s_add_u32 s{S_MT2}, s3, s4
    s_lshr_b32 s3, s{S_IDX}, 2
    s_lshl_b32 s3, s3, 1
    s_lshr_b32 s4, s{S_XCD}, 2
    s_add_u32 s{S_NT2}, s3, s4
    s_lshl_b32 s3, s{S_NT3}, 1
    s_and_b32 s4, s{S_IDX}, 1
    s_add_u32 s{S_HEAD}, s3, s4
    s_lshr_b32 s{S_QB}, s{S_MT3}, 1
    s_lshl_b32 s3, s{S_QB}, 3
    s_add_u32 s{S_BLK}, s3, s{S_WID}
    """
    T0 = tasks[0]
    lazy = hasattr(T0, 'h_first')
    ids_first = not lazy or getattr(T0, 'NT', 0) == 2
    if ids_first: p(ids); ids = ''
    p(f"""
    s_cmp_lt_u32 s{S_WID}, 4
    s_cbranch_scc1 {name}_G
    """)
    p(f"s_sub_u32 s{S_WM}, s{S_WID}, 4")
    if lazy: T0.h_first(p, c)
    T0.h_setup(p, c, first=True)
    T(1)
    if not lazy: srd(p, S_WS, ptr('ws'), WS_SIZE)
    T0.h_post_dep(p, c)
    p.add(T0.dma_atoms(c))
    T(2)
    D1 = T0.dma_atoms(c)
    p.add(D1)
    ex = 0
    T(3)
    if lazy:
        p(ids)
        srd(p, S_WS, ptr('ws'), WS_SIZE)
    srd(p, S_DBG, ptr('dbg'), 256)
    T0.first_extra = ex
    p(f"s_waitcnt vmcnt({nvm(D1) + ex})")
    T(4)
    p("s_barrier")
    T(5)
    p("s_mov_b32 s62, 0")
    hstep_stamp(p, c)
    skip0 = False
    for i, Tk in enumerate(tasks):
        nxt = tasks[i + 1] if i + 1 < len(tasks) else None
        skip0 = Tk.h_body(p, c, nxt, skip0)
        Tk.h_epi(p, c)
    T(6)
    if opt.get('sstamp') or opt.get('spincnt'): p("v_mov_b32 v150, v153")
    hstep_dump(p, c)
    p("s_endpgm")
    p.label(f"{name}_G")
    tlb_warm(p, c)
    srd(p, S_WS, ptr('ws'), WS_SIZE)
    own_flags(p, c)
    if lazy:
        T0.g_first(p, c)
        p(ids)
    p(f"""
    s_and_b32 s{S_WM}, s{S_WID}, 1
    s_lshr_b32 s{S_WN}, s{S_WID}, 1
    """)
    c.ST(p, 'g')
    own_offsets(p, c)
    if opt.get('gprio'): p(f"s_setprio {opt['gprio']}")
    for i, Tk in enumerate(tasks):
        if i == 0: Tk.early(p, c)
        Tk.g_setup(p, c)
        if i == 0: p("s_waitcnt lgkmcnt(0)\ns_barrier")
        c.ST(p, 'g')
        Tk.g_body(p, c, tasks[i - 1] if i > 0 else None)
        c.ST(p, 'g')
        if i + 1 < len(tasks): tasks[i + 1].early(p, c)
        Tk.g_epi(p, c)
        if i + 1 < len(tasks) and (tasks[i + 1].xbar or tasks[i + 1].exposed): p("s_barrier")
        if hasattr(Tk, 'g_after_bar'): Tk.g_after_bar(p, c)
    c.ST(p, 'g')
    if opt.get('stamp'):
        p("s_waitcnt vmcnt(0)")
        c.ST(p, 'g')
    p("s_endpgm")
    for f in c.ool: f(p)
    p.label(f"{name}_end")
    p("s_endpgm")
    p.finish(verbose=opt.get('verbose', False))
    return p, dict(grid=256, block=512, lds=LDS_BYTES, nstamp=c.stamp_slot['g'])

def g_prefetch(p, c, items, fl=''):
    if not c.opt.get('pf', 1) or not items: return 0
    p(f"""
    s_lshl_b32 s3, s2, 2
    s_and_b32 s4, s{S_WID}, 3
    s_add_u32 s3, s3, s4
    s_lshl_b32 s4, s{S_WID}, 10
    s_add_u32 m0, s4, {L_DUMMY}
    """)
    for nm, tot, m0_, n in items:
        srd(p, S_AUX, ptr(nm), tot)
        p(f"s_mul_i32 s5, s3, {n * 1024}")
        if m0_: p(f"s_add_u32 s5, s5, {m0_ * MB}")
        for i in range(n):
            p(f"buffer_load_dwordx4 v1, s[{S_AUX}:{S_AUX+3}], s5 offen {fl} lds")
            if i < n - 1: p(f"s_add_u32 s5, s5, 1024")
    return sum(x[3] for x in items)

def code_prefetch(p, c, lo=None, hi=None):
    if not c.opt.get('cpf', 1): return
    L = c.lab("pc")
    p("s_getpc_b64 s[4:5]")
    p.label(L)
    p(f"""
    s_sub_u32 s4, s4, {L}-{c.name}
    s_subb_u32 s5, s5, 0
    s_lshl_b32 s3, s{S_IDX}, 11
    v_lshl_add_u32 v136, v0, 2, s3
    s_mov_b32 s3, {c.name}_end-{c.name}
    v_min_u32 v136, s3, v136
    v_mov_b32 v137, s5
    v_add_co_u32 v136, vcc, s4, v136
    v_addc_co_u32 v137, vcc, 0, v137, vcc
    global_load_dword v138, v[136:137], off
    """)

def tlb_warm(p, c):
    if not c.opt.get('tlb', 0): return
    g = c.opt.get('tlbg', 2 * MB)
    def pages(nm, size): return [(nm, o) for o in range(0, size, g)]
    L = [pages('x', 4 * MB) + pages('wqkv', 6 * MB) + pages('gate', 1) + pages('w1', 2 * MB) + pages('dbg', 1) + pages('out', 4 * MB),
         pages('w2', 2 * MB) + pages('w3', 7 * MB) + pages('w4', 7 * MB) + pages('wo', 2 * MB)]
    ws = pages('ws', WS_SIZE)
    L += [ws[:len(ws) // 2], ws[len(ws) // 2:]]
    E = c.lab("tlbe")
    p("s_waitcnt lgkmcnt(0)")
    for w in range(4):
        N = c.lab("tlb")
        if w < 3: p(f"s_cmp_eq_u32 s{S_WID}, {w}\ns_cbranch_scc0 {N}")
        for nm, o in L[w]:
            if o: p(f"s_mov_b32 s3, {o}")
            p.I.append(Inst("s_nop 0"))
            p.I[-1].text = f"s_load_dword s98, s[{ptr(nm)}:{ptr(nm)+1}], " + ("s3" if o else "0")
        if w < 3:
            p(f"s_branch {E}")
            p.label(N)
    p.label(E)
    c.tlb_pending = True

def rot_pieces(p, n, first, rank_code, lds_base, emit):
    p(rank_code)
    for k in range(n):
        if k:
            p(f"s_add_u32 s6, s6, 1\ns_cmp_eq_u32 s6, {n}\ns_cselect_b32 s6, 0, s6")
        p(f"s_lshl_b32 s7, s6, 10\ns_add_u32 s{S_OFFS[first + k]}, s7, s{lds_base}")
        emit(k)
```

```python
from tasks import *
WS_CS1 = 43 * MB + 256 * 1024
S_B2 = 44
class G1(QKV):
    NT = 8; fr0 = 32
    addr_regs = [8, 10, 11, 12, 13, 9]
    pubkind = F_W1
    pubv = 28
    h_steps = (0, 1, 2, 3, 4, 5, 6, 7, 12, 13)
    def swap(self, n): return n in (4, 5)
    def xaddr(self, kk, m): return (8 + kk, m * 2048)
    def waddr(self, kk, n, j):
        if n < 6: return (10 + n % 2, (32 * kk + 4 * j) * 384 + (n // 2) * 128)
        return (12 + n % 2, (32 * kk + 4 * j) * 128)
    @property
    def nd(self): return 12
    def dma_atoms(self, c):
        D = QKV.dma_atoms(self, c)
        X = [f"s_add_u32 m0, s{S_DMA}, s50\nbuffer_load_dwordx4 v42, s[{S_B2}:{S_B2+3}], s53 offen lds",
             f"s_add_u32 m0, m0, 1024\nbuffer_load_dwordx4 v43, s[{S_B2}:{S_B2+3}], s53 offen lds\ns_add_u32 s53, s53, {64 * 2048}"]
        return D[:4] + X + D[4:]
    def h_setup(self, p, c, first=False):
        QKV.h_setup(self, p, c, first)
        p(f"""
        v_lshrrev_b32 v{T0}, 3, v0
        v_and_b32 v{T0+1}, 7, v0
        s_lshl_b32 s3, s{S_WM}, 4
        v_add_u32 v{T0+3}, s3, v{T0}
        v_lshlrev_b32 v{T0+3}, 11, v{T0+3}
        v_add_u32 v{T0+3}, s4, v{T0+3}
        v_lshl_add_u32 v44, v{T0+1}, 4, v{T0+3}
        v_and_b32 v{T0+2}, 2, v{T0}
        v_xor_b32 v{T0+1}, v{T0+1}, v{T0+2}
        v_lshl_add_u32 v42, v{T0+1}, 4, v{T0+3}
        v_xor_b32 v43, 64, v42
        v_add_u32 v43, {8 * 2048}, v43
        s_lshl_b32 s50, s{S_WM}, 11
        s_add_u32 s50, s50, 40960
        s_mov_b32 s53, 0
        """)
        srd(p, S_B2, ptr('w1'), 1024 * 2048)
    def g_setup(self, p, c):
        lane_fields(p, T0, T0 + 1, T0 + 2, T0 + 3)
        p(f"""
        v_lshrrev_b32 v{T0+4}, 1, v{T0}
        v_xor_b32 v{T0+4}, v{T0+4}, v{T0+1}
        v_lshlrev_b32 v{T0+4}, 4, v{T0+4}
        v_lshl_or_b32 v{T0+4}, v{T0}, 7, v{T0+4}
        s_lshl_b32 s3, s{S_WM}, 13
        s_add_u32 s3, s3, s{S_RD}
        v_add_u32 v8, s3, v{T0+4}
        v_xor_b32 v9, 64, v8
        v_lshrrev_b32 v{T0+5}, 1, v{T0+2}
        v_and_b32 v{T0+6}, 1, v{T0+1}
        v_lshl_or_b32 v{T0+5}, v{T0+6}, 1, v{T0+5}
        s_lshl_b32 s3, s{S_WN}, 1
        v_xor_b32 v{T0+5}, s3, v{T0+5}
        v_lshlrev_b32 v{T0+5}, 5, v{T0+5}
        v_lshl_add_u32 v{T0+5}, v{T0+3}, 3, v{T0+5}
        v_lshl_add_u32 v{T0+4}, v{T0+1}, 3, v{T0+2}
        v_mul_u32_u24 v{T0+6}, 384, v{T0+4}
        s_add_u32 s3, s{S_RD}, 16384
        v_add3_u32 v10, v{T0+6}, v{T0+5}, s3
        v_xor_b32 v11, 32, v10
        v_lshl_add_u32 v{T0+6}, v{T0+4}, 7, v{T0+5}
        s_add_u32 s3, s{S_RD}, 40960
        v_add_u32 v12, s3, v{T0+6}
        v_xor_b32 v13, 32, v12
        """)
        self.g_zero(p)
    def g_sites(self, c):
        if not c.opt.get('persist'): return {}
        return {9: lambda p: publish(p, c, F_ST, True, 28)}
    def pf_list(self, c): return [('wqkv', 6 * MB, i, 1) for i in range(6)]
    def h_poll(self, c, t): return poll_flags(c, F_ST, S_MT3, col_sgpr=S_NT3) if t == 12 else QKV.h_poll(self, c, t)
    def h_mix(self, p, c, t):
        QKV.h_mix(self, p, c, t)
        if t == 6:
            for d in range(4):
                p(f"""
                v_lshlrev_b32 v{96 + 2 * d}, 16, v{88 + d}
                v_and_b32 v{97 + 2 * d}, 0xffff0000, v{88 + d}
                v_lshlrev_b32 v104, 16, v{92 + d}
                v_and_b32 v105, 0xffff0000, v{92 + d}
                v_add_f32 v{96 + 2 * d}, v{96 + 2 * d}, v104
                v_add_f32 v{97 + 2 * d}, v{97 + 2 * d}, v105
                """)
        if t == 7:
            for i in range(4): p(f"v_permlane32_swap_b32 v{96 + i}, v{100 + i}")
            for i in range(4): p(f"v_add_f32 v{96 + i}, v{96 + i}, v{100 + i}")
            for i in range(2): p(f"v_permlane16_swap_b32 v{96 + i}, v{98 + i}")
            for i in range(2): p(f"v_add_f32 v{96 + i}, v{96 + i}, v{98 + i}")
            for i in range(2): p(f"v_add_f32_dpp v{96 + i}, v{96 + i}, v{96 + i} row_ror:8 row_mask:0xf bank_mask:0xf")
            p(f"""
            v_and_b32 v104, 7, v0
            v_lshrrev_b32 v105, 4, v0
            v_lshlrev_b32 v104, 5, v104
            v_lshl_add_u32 v104, v105, 3, v104
            """)
        if t == 15:
            for st_ in (2, 1):
                for i in range(st_):
                    for d in range(4): p(f"v_add_f32 v{64 + 4 * i + d}, v{64 + 4 * i + d}, v{64 + 4 * (i + st_) + d}")
            p(f"""
            v_permlane32_swap_b32 v64, v66
            v_permlane32_swap_b32 v65, v67
            v_add_f32 v64, v64, v66
            v_add_f32 v65, v65, v67
            v_permlane16_swap_b32 v64, v65
            v_add_f32 v64, v64, v65
            v_add_f32_dpp v64, v64, v64 row_ror:8 row_mask:0xf bank_mask:0xf
            v_add_f32_dpp v64, v64, v64 row_ror:4 row_mask:0xf bank_mask:0xf
            v_and_b32 v56, 3, v0
            v_lshrrev_b32 v57, 4, v0
            v_lshl_add_u32 v56, v56, 2, v57
            s_lshl_b32 s3, s{S_WM}, 6
            v_lshl_add_u32 v56, v56, 2, s3
            v_add_u32 v56, {L_CS}, v56
            ds_write_b32 v56, v64
            ds_write_b32 v58, v59
            s_waitcnt lgkmcnt(0)
            """)
    def h_extra(self, p, c, t):
        W = f"s[{S_WS}:{S_WS+3}]"
        ho = c.opt.get('hoflag', ''); st = c.opt.get('stflag', '')
        n = 0
        if t == 0:
            p(f"""
            s_lshl_b32 s3, s{S_MT3}, 17
            s_add_u32 s4, s3, {8 * 2048}
            buffer_load_dwordx4 v[88:91], v44, s[{S_B2}:{S_B2+3}], s3 offen
            buffer_load_dwordx4 v[92:95], v44, s[{S_B2}:{S_B2+3}], s4 offen
            """)
            n += 2
        if 1 <= t <= 6:
            rest = self.pf_list(c)[c.opt.get('pf0', 2):]
            k = c.opt.get('pfk', 1)
            it = rest[k * (t - 1):k * t]
            if it: n += g_prefetch(p, c, it)
        if t == 7:
            n += QKV.h_extra(self, p, c, t)
            p(f"""
            s_lshl_b32 s3, s{S_NT3}, 4
            s_add_u32 s3, s3, s{S_MT3}
            s_lshl_b32 s3, s3, 2
            s_add_u32 s3, s3, s{S_WM}
            s_lshl_b32 s3, s3, 8
            s_add_u32 s3, s3, {WS_CS1}
            buffer_store_dwordx2 v[96:97], v104, {W}, s3 offen {st}
            """)
            n += 1
        if t == 13:
            p(f"""
            v_and_b32 v58, 31, v0
            v_lshrrev_b32 v59, 5, v0
            v_lshlrev_b32 v58, 2, v58
            v_lshl_add_u32 v60, v59, 13, v58
            v_lshl_add_u32 v58, v59, 9, v58
            s_lshl_b32 s3, s{S_MT3}, 9
            s_lshl_b32 s4, s{S_WM}, 7
            s_add_u32 s3, s3, s4
            s_add_u32 s3, s3, {WS_ST1}
            s_add_u32 s4, s4, {L_MU}
            v_add_u32 v58, s4, v58
            buffer_load_dword v59, v60, {W}, s3 offen {ho}
            v_lshrrev_b32 v61, 2, v0
            v_and_b32 v62, 3, v0
            v_lshlrev_b32 v61, 8, v61
            v_lshl_add_u32 v61, v62, 4, v61
            s_lshl_b32 s3, s{S_NT3}, 14
            s_lshl_b32 s4, s{S_WM}, 6
            s_add_u32 s3, s3, s4
            s_add_u32 s3, s3, {WS_CS1}
            """)
            for i in range(4):
                p(f"buffer_load_dwordx4 {vr(64 + 4 * i, 4)}, v61, {W}, s3 offen {ho}")
                if i < 3: p("s_add_u32 s3, s3, 4096")
            n += 5
        return n
    def g_epi(self, p, c):
        st = c.opt.get('stflag', '')
        W = f"s[{S_WS}:{S_WS+3}]"
        R, G, U = 16, 17, 18
        lane_fields(p, R, G)
        p(f"""
        v_lshlrev_b32 v{U}, 9, v{G}
        v_lshl_or_b32 v8, v{R}, 4, v{U}
        v_and_b32 v{U+1}, 7, v{R}
        v_lshrrev_b32 v{U+2}, 3, v{R}
        v_lshl_or_b32 v{U}, v{U+2}, 8, v{U}
        v_lshl_or_b32 v9, v{U+1}, 4, v{U}
        s_lshl_b32 s3, s{S_NT3}, 1
        s_add_u32 s3, s3, s{S_WN}
        s_lshl_b32 s45, s3, 10
        s_add_u32 s45, s45, {WS_HS}
        s_lshl_b32 s4, s{S_MT3}, 2
        s_lshl_b32 s5, s{S_WM}, 1
        s_add_u32 s4, s4, s5
        s_lshl_b32 s5, s3, 17
        s_lshl_b32 s6, s4, 11
        s_add_u32 s42, s5, s6
        s_lshl_b32 s43, s42, 1
        s_add_u32 s43, s43, {WS_KV}
        s_add_u32 s44, s43, 4096
        s_mov_b32 s46, {hexf(QSCALE)}
        s_mov_b32 s47, {hexf(QSCALE)}
        s_lshl_b32 s3, s{S_WN}, 7
        s_add_u32 s3, s3, {L_CS}
        v_lshl_add_u32 v10, v{G}, 4, s3
        ds_read_b128 v[80:83], v10
        ds_read_b128 v[84:87], v10 offset:64
        """)
        read_tok_consts(p, 88, 11, R, False)
        st0 = st; st = c.opt.get('qkvst', st)
        t = 32
        for m in range(4):
            a, b = self.acc(m, 2), self.acc(m, 3)
            for i, r in enumerate((a, a + 2, b, b + 2)): p(f"v_cvt_pk_bf16_f32 v{t + i}, v{r}, v{r + 1}")
            p(f"buffer_store_dwordx4 {vr(t, 4)}, v9, {W}, s{43 + m // 2} offen offset:{(m % 2) * 128} {st}")
            t += 4
        for u in range(2):
            for nb in range(2):
                a = self.acc(2 * u, 4 + nb)
                for i in range(4): p(f"v_cvt_pk_bf16_f32 v{t + i}, v{a + 2 * i}, v{a + 2 * i + 1}")
                p(f"buffer_store_dwordx4 {vr(t, 4)}, v8, {W}, s{43 + u} offen offset:{2048 + nb * 256} {st}")
                t += 4
        for m in range(4):
            a, b = self.acc(m, 0), self.acc(m, 1)
            for r in (a, a + 2, b, b + 2): p(f"v_pk_mul_f32 {vr(r, 2)}, {vr(r, 2)}, s[46:47]")
            for i, r in enumerate((a, a + 2, b, b + 2)): p(f"v_cvt_pk_bf16_f32 v{t + i}, v{r}, v{r + 1}")
            p(f"buffer_store_dwordx4 {vr(t, 4)}, v8, {W}, s42 offen offset:{(m // 2) * 2048 + (m % 2) * 256} {st}")
            t += 4
        st = st0
        c.ST(p, 'g')
        for m in range(4): gelu_consts(p, 88 + 8 * m, False)
        p(f"""
        s_lshr_b32 s5, s{S_NT3}, 2
        s_lshr_b32 s6, s5, 1
        s_add_u32 s6, s6, 1
        s_sub_u32 s7, 0, s6
        s_bitcmp1_b32 s5, 0
        s_cselect_b32 s6, s7, s6
        s_lshl_b32 s3, s{S_MT3}, 7
        s_lshl_b32 s4, s{S_WM}, 6
        s_add_u32 s3, s3, s4
        s_add_u32 s6, s6, s3
        """)
        npub = c.opt.get('g1pub', 2)
        def pub():
            c.ST(p, 'g')
            p("s_waitcnt vmcnt(%d)" % (2 if c.opt.get('stamp') else 0))
            p("s_barrier")
            publish(p, c, F_QKV, True, 28)
            c.ST(p, 'g')
        for mp in range(2):
            if mp == npub: pub()
            items = []
            for m in (2 * mp, 2 * mp + 1):
                for n in range(2):
                    for h in range(2): items.append((self.acc(m, 6 + n) + 2 * h, 80 + 4 * n + 2 * h, 88 + 8 * m))
            gelu_block(p, items, 128, c.opt.get('pk', 1))
            for m in (2 * mp, 2 * mp + 1):
                a, b = self.acc(m, 6), self.acc(m, 7)
                t = 144 + 4 * m
                p(f"""
                v_add_u32 v{U}, s6, v{R}
                v_add_u32 v{U}, {16 * m}, v{U}
                v_cmp_gt_u32 vcc, 2048, v{U}
                v_and_b32 v{U}, 2047, v{U}
                v_lshrrev_b32 v{U+1}, 4, v{U}
                v_and_b32 v{U}, 15, v{U}
                v_lshl_add_u32 v{U}, v{G}, 4, v{U}
                v_lshlrev_b32 v{U}, 4, v{U}
                v_lshl_add_u32 v{160 + m}, v{U+1}, 15, v{U}
                """)
                for i, r in enumerate((a, a + 2, b, b + 2)): p(f"v_cvt_pk_bf16_f32 v{t + i}, v{r}, v{r + 1}")
                for i in range(4): p(f"v_cndmask_b32 v{t + i}, 0, v{t + i}, vcc")
        if npub == 2: pub()
        p("s_barrier")
        self.hs_stores = [f"buffer_store_dwordx4 {vr(144 + 4 * m, 4)}, v{160 + m}, {W}, s45 offen {st}" for m in range(4)]
        if not c.opt.get('hslate', 1): p.add(self.hs_stores); self.hs_stores = []
    def g_after_bar(self, p, c): p.add(self.hs_stores)
```

```python
from fw import *

def lane_fields(p, r16=None, g=None, r4=None, c4=None):
    if r16 is not None: p(f"v_and_b32 v{r16}, 15, v0")
    if g is not None: p(f"v_lshrrev_b32 v{g}, 4, v0")
    if r4 is not None: p(f"v_bfe_u32 v{r4}, v0, 2, 2")
    if c4 is not None: p(f"v_and_b32 v{c4}, 3, v0")

T0 = 128

def h_xrows(p, regs, sub_off, S_MT):
    p(f"""
    v_lshrrev_b32 v{T0}, 3, v0
    v_and_b32 v{T0+1}, 7, v0
    s_lshl_b32 s3, s{S_MT}, 7
    s_lshl_b32 s4, s{S_WM}, 5
    s_add_u32 s3, s3, s4
    v_lshrrev_b32 v{T0+2}, 1, v{T0}
    v_xor_b32 v{T0+2}, v{T0+2}, v{T0+1}
    v_add_u32 v{T0+3}, s3, v{T0}
    v_lshlrev_b32 v{T0+3}, 11, v{T0+3}
    v_lshl_add_u32 v{regs[0]}, v{T0+2}, 4, v{T0+3}
    v_xor_b32 v{T0+2}, 64, v{regs[0]}
    """)
    for i, r in enumerate(regs):
        if i == 0: continue
        ii = i % 4
        src = regs[0] if ii % 2 == 0 else T0 + 2
        p(f"v_add_u32 v{r}, {ii * 8 * 2048 + sub_off(i)}, v{src}")

class QKV(Gemm):
    NT = 6; KS = 2; nsteps = 16; nA = 4; nB = 6
    stepA = 128; stepB = 64 * 6144
    addr_regs = [32, 34, 35, 33]
    pubkind = F_QKV
    h_steps = (0, 1, 2, 3, 4, 5, 6, 7)
    def swap(self, n): return n >= 4
    def xaddr(self, kk, m): return (32 + kk, m * 2048)
    def waddr(self, kk, n, j): return (34 + n % 2, (32 * kk + 4 * j) * 384 + (n // 2) * 128)
    def aflag(self, c): return c.opt.get('ldflag', '')
    def h_setup(self, p, c, first=False):
        h_xrows(p, [32, 33, 34, 35], lambda i: 0, S_MT3)
        p(f"""
        s_mul_i32 s3, s{S_WM}, 384
        s_lshl_b32 s4, s{S_NT3}, 7
        """)
        for i in range(3):
            p(f"""
            v_add_u32 v{T0}, s3, v0
            v_add_u32 v{T0}, {64 * i}, v{T0}
            v_mul_u32_u24 v{T0+1}, 0xaab, v{T0}
            v_lshrrev_b32 v{T0+1}, 16, v{T0+1}
            v_mul_u32_u24 v{T0+2}, 24, v{T0+1}
            v_sub_u32 v{T0+2}, v{T0}, v{T0+2}
            v_lshrrev_b32 v{T0+3}, 3, v{T0+2}
            v_and_b32 v{T0+2}, 7, v{T0+2}
            v_and_b32 v{T0+4}, 2, v{T0+1}
            v_xor_b32 v{T0+2}, v{T0+2}, v{T0+4}
            v_mul_u32_u24 v{T0+1}, 6144, v{T0+1}
            v_lshl_add_u32 v{T0+1}, v{T0+3}, 11, v{T0+1}
            v_lshl_add_u32 v{T0+1}, v{T0+2}, 4, v{T0+1}
            v_add_u32 v{36 + i}, s4, v{T0+1}
            v_xor_b32 v{T0+1}, 64, v{36 + i}
            v_add_u32 v{39 + i}, {8 * 6144}, v{T0+1}
            """)
        p(f"""
        s_lshl_b32 s{S_LD[0]}, s{S_WM}, 12
        s_mul_i32 s{S_LD[1]}, s{S_WM}, 6144
        s_add_u32 s{S_LD[1]}, s{S_LD[1]}, 16384
        s_mov_b32 s{S_SO[0]}, 0
        s_mov_b32 s{S_SO[1]}, 0
        """)
        srd(p, S_B, ptr('wqkv'), 1024 * 6144)
    def g_setup(self, p, c):
        lane_fields(p, T0, T0 + 1, T0 + 2, T0 + 3)
        p(f"""
        v_lshrrev_b32 v{T0+4}, 1, v{T0}
        v_xor_b32 v{T0+4}, v{T0+4}, v{T0+1}
        v_lshlrev_b32 v{T0+4}, 4, v{T0+4}
        v_lshl_or_b32 v{T0+4}, v{T0}, 7, v{T0+4}
        s_lshl_b32 s3, s{S_WM}, 13
        s_add_u32 s3, s3, s{S_RD}
        v_add_u32 v32, s3, v{T0+4}
        v_xor_b32 v33, 64, v32
        v_lshl_add_u32 v{T0+4}, v{T0+1}, 3, v{T0+2}
        v_mul_u32_u24 v{T0+4}, 384, v{T0+4}
        v_lshrrev_b32 v{T0+5}, 1, v{T0+2}
        v_and_b32 v{T0+6}, 1, v{T0+1}
        v_lshl_or_b32 v{T0+5}, v{T0+6}, 1, v{T0+5}
        s_lshl_b32 s3, s{S_WN}, 1
        v_xor_b32 v{T0+5}, s3, v{T0+5}
        v_lshl_add_u32 v{T0+4}, v{T0+5}, 5, v{T0+4}
        v_lshl_add_u32 v{T0+4}, v{T0+3}, 3, v{T0+4}
        s_add_u32 s3, s{S_RD}, 16384
        v_add_u32 v34, s3, v{T0+4}
        v_xor_b32 v35, 32, v34
        """)
        self.g_zero(p)
    def g_epi(self, p, c):
        st = c.opt.get('stflag', '')
        lane_fields(p, T0, T0 + 1)
        p(f"""
        s_waitcnt lgkmcnt(0)
        v_lshrrev_b32 v{T0+2}, 1, v{T0+1}
        v_and_b32 v{T0+3}, 1, v{T0+1}
        v_lshlrev_b32 v{T0+2}, 10, v{T0+2}
        v_lshl_or_b32 v{T0+2}, v{T0+3}, 9, v{T0+2}
        v_lshl_or_b32 v32, v{T0}, 4, v{T0+2}
        v_and_b32 v{T0+3}, 7, v{T0}
        v_lshrrev_b32 v{T0+4}, 3, v{T0}
        v_lshl_or_b32 v{T0+2}, v{T0+4}, 8, v{T0+2}
        v_lshl_or_b32 v33, v{T0+3}, 4, v{T0+2}
        s_lshl_b32 s3, s{S_NT3}, 1
        s_add_u32 s3, s3, s{S_WN}
        s_lshl_b32 s4, s{S_MT3}, 2
        s_lshl_b32 s5, s{S_WM}, 1
        s_add_u32 s4, s4, s5
        s_lshl_b32 s5, s3, 17
        s_lshl_b32 s6, s4, 11
        s_add_u32 s42, s5, s6
        s_lshl_b32 s43, s42, 1
        s_add_u32 s43, s43, {WS_KV}
        s_add_u32 s44, s43, 4096
        s_mov_b32 s46, {hexf(QSCALE)}
        s_mov_b32 s47, {hexf(QSCALE)}
        """)
        W = f"s[{S_WS}:{S_WS+3}]"
        st = c.opt.get('qkvst', st)
        t = V_FR
        for m in range(4):
            a, b = self.acc(m, 2), self.acc(m, 3)
            for i, r in enumerate((a, a + 2, b, b + 2)): p(f"v_cvt_pk_bf16_f32 v{t + i}, v{r}, v{r + 1}")
            p(f"buffer_store_dwordx4 {vr(t, 4)}, v33, {W}, s{43 + m // 2} offen offset:{(m % 2) * 128} {st}")
            t += 4
        for u in range(2):
            for nb in range(2):
                a = self.acc(2 * u, 4 + nb)
                for i in range(4): p(f"v_cvt_pk_bf16_f32 v{t + i}, v{a + 2 * i}, v{a + 2 * i + 1}")
                p(f"buffer_store_dwordx4 {vr(t, 4)}, v32, {W}, s{43 + u} offen offset:{2048 + nb * 256} {st}")
                t += 4
        for m in range(4):
            a, b = self.acc(m, 0), self.acc(m, 1)
            for r in (a, a + 2, b, b + 2): p(f"v_pk_mul_f32 {vr(r, 2)}, {vr(r, 2)}, s[46:47]")
            for i, r in enumerate((a, a + 2, b, b + 2)): p(f"v_cvt_pk_bf16_f32 v{t + i}, v{r}, v{r + 1}")
            p(f"buffer_store_dwordx4 {vr(t, 4)}, v32, {W}, s42 offen offset:{(m // 2) * 2048 + (m % 2) * 256} {st}")
            t += 4
    def h_first(self, p, c):
        srd(p, S_A, ptr('x'), 2048 * 2048)
        srd(p, S_AUX, ptr('gate'), 2048)
        p(f"""
        s_lshl_b32 s48, s{S_MT3}, 4
        s_add_u32 s48, s48, s{S_NT3}
        s_lshl_b32 s48, s48, 3
        s_lshl_b32 s3, s{S_WM}, 1
        s_add_u32 s48, s48, s3
        s_lshl_b32 s3, s48, 11
        buffer_load_dwordx4 v[64:67], v1, s[{S_A}:{S_A+3}], s3 offen
        buffer_load_dwordx4 v[68:71], v1, s[{S_A}:{S_A+3}], s3 offen offset:1024
        buffer_load_dwordx4 v[72:75], v1, s[{S_A}:{S_A+3}], s3 offen offset:2048
        buffer_load_dwordx4 v[76:79], v1, s[{S_A}:{S_A+3}], s3 offen offset:3072
        buffer_load_dwordx4 v[80:83], v1, s[{S_AUX}:{S_AUX+3}], 0 offen
        buffer_load_dwordx4 v[84:87], v1, s[{S_AUX}:{S_AUX+3}], 0 offen offset:1024
        """)
    def bflag(self, c): return c.opt.get('qbfl', '')
    def pf_list(self, c): return [('wqkv', 6 * MB, i, 1) for i in range(c.opt.get('nqpf', 6))] + [('w1', 2 * MB, i, 1) for i in range(2)]
    def g_first(self, p, c):
        n0 = c.opt.get('pf0', 1)
        g_prefetch(p, c, self.pf_list(c)[:n0])
        if c.opt.get('gpf', 0):
            srd(p, S_A, ptr('wqkv'), 6 * MB)
            srd(p, S_B, ptr('w1'), 2 * MB)
            p(f"""
            s_lshl_b32 s3, s3, 10
            s_add_u32 s{S_SO[0]}, s3, {n0 * MB}
            s_add_u32 s{S_SO[1]}, s3, {(-(6 - n0) * MB) & 0xffffffff}
            """)
    def g_loop_atoms(self, c):
        if not c.opt.get('gpf', 0) or not c.opt.get('pf', 1): return []
        L = []
        for k, r in enumerate((S_A, S_B)):
            L += [f"buffer_load_dwordx4 v1, s[{r}:{r+3}], s{S_SO[k]} offen lds", f"s_add_u32 s{S_SO[k]}, s{S_SO[k]}, {MB}"]
        return L
    def g_sites(self, c):
        if not c.opt.get('persist'): return {}
        return {9: lambda p: publish(p, c, F_ST, True)}
    def h_poll(self, c, t): return poll_init(c) if t == 6 else None
    def h_mix(self, p, c, t):
        t -= 1
        if 1 <= t <= 4:
            if t == 1:
                for a in range(48, 54): p(f"v_mov_b32 v{a}, 0")
            for i in (2 * t - 2, 2 * t - 1):
                p(f"v_lshlrev_b32 v58, 16, v{80 + i}")
                p(f"v_and_b32 v59, 0xffff0000, v{80 + i}")
                for row in range(2):
                    ag, as_, aq = 48 + row, 50 + row, 52 + row
                    x = 64 + 8 * row + i
                    p(f"""
                    v_lshlrev_b32 v56, 16, v{x}
                    v_and_b32 v57, 0xffff0000, v{x}
                    v_add_f32 v{as_}, v{as_}, v56
                    v_fmac_f32 v{aq}, v56, v56
                    v_add_f32 v{as_}, v{as_}, v57
                    v_fmac_f32 v{aq}, v57, v57
                    v_mul_f32 v56, v56, v58
                    v_mul_f32 v57, v57, v59
                    v_cvt_pk_bf16_f32 v56, v56, v57
                    v_lshlrev_b32 v57, 16, v56
                    v_and_b32 v56, 0xffff0000, v56
                    v_add_f32 v{ag}, v{ag}, v57
                    v_add_f32 v{ag}, v{ag}, v56
                    """)
        if t == 5:
            for a in (48, 50, 52): p(f"v_permlane32_swap_b32 v{a}, v{a + 1}")
            for a in (48, 50, 52): p(f"v_add_f32 v{a}, v{a}, v{a + 1}")
            for a in (48, 50, 52): p(f"v_mov_b32 v{a + 1}, v{a}")
            for a in (48, 50, 52): p(f"v_permlane16_swap_b32 v{a}, v{a + 1}")
            for a in (48, 50, 52): p(f"v_add_f32 v{a}, v{a}, v{a + 1}")
            for sh in (8, 4, 2, 1):
                for a in (48, 50, 52): p(f"v_add_f32_dpp v{a}, v{a}, v{a} row_ror:{sh} row_mask:0xf bank_mask:0xf")
        if t == 6:
            p(f"""
            v_mul_f32 v50, {hexf(1.0 / 1024)}, v50
            v_mul_f32 v52, {hexf(1.0 / 1024)}, v52
            v_fma_f32 v52, -v50, v50, v52
            v_max_f32 v52, 0, v52
            v_add_f32 v52, {hexf(1e-5)}, v52
            v_rsq_f32 v52, v52
            v_cvt_pk_bf16_f32 v48, v48, v48
            v_and_b32 v48, 0xffff0000, v48
            v_mul_f32 v48, {hexf(-LOG2E)}, v48
            v_exp_f32 v48, v48
            v_add_f32 v48, 1.0, v48
            v_rcp_f32 v48, v48
            v_cvt_pk_bf16_f32 v48, v48, v48
            v_and_b32 v48, 0xffff0000, v48
            v_sub_f32 v49, 1.0, v48
            v_cvt_pk_bf16_f32 v49, v49, v49
            v_and_b32 v49, 0xffff0000, v49
            v_lshrrev_b32 v56, 5, v0
            v_add_u32 v56, s48, v56
            v_lshlrev_b32 v56, 2, v56
            """)
    def h_extra(self, p, c, t):
        W = f"s[{S_WS}:{S_WS+3}]"
        st = c.opt.get('stflag', '')
        rest = self.pf_list(c)[c.opt.get('pf0', 1):]
        k = c.opt.get('pfk', 1)
        if t < 7:
            it = rest[k * t:k * (t + 1)] if not c.opt.get('gpf', 0) else []
            return g_prefetch(p, c, it, c.opt.get('pffl', '')) if it else 0
        if t == 7:
            p(f"""
            s_mov_b32 s3, {WS_G}
            s_mov_b32 s4, {WS_G + 8192}
            s_mov_b32 s5, {WS_ST1}
            s_mov_b32 s6, {WS_ST1 + 8192}
            s_mov_b32 exec_lo, 1
            s_mov_b32 exec_hi, 1
            buffer_store_dword v48, v56, {W}, s3 offen {st}
            buffer_store_dword v49, v56, {W}, s4 offen {st}
            buffer_store_dword v50, v56, {W}, s5 offen {st}
            buffer_store_dword v52, v56, {W}, s6 offen {st}
            s_mov_b64 exec, -1
            """)
            return 4
        return 0

class N64(Gemm):
    NT = 2; KS = 4; nA = 8; nB = 4
    stepB = 128 * 2048
    order = 'perm32'; bname = None; babytes = 1024 * 2048
    a_pitch = 32768; a_base = 0; a_size = 4 * MB
    stepA = 4096
    addr_regs = [32, 34, 35]
    def xaddr(self, kk, m): return (32, m * 4096 + kk * 1024)
    def waddr(self, kk, n, j):
        js = {'nat': 4, 'perm32': 16, 'perm32b': 8}[self.order]
        return (34 + n, (32 * kk + js * j) * 128)
    def rotated(self, c): return c.opt.get('rot', 0)
    def h_setup_a(self, p, c):
        srd(p, S_A, ptr('ws'), self.a_size, self.a_base)
        p(f"""
        s_lshl_b32 s3, s{S_MT2}, 3
        s_lshl_b32 s4, s{S_WM}, 1
        s_add_u32 s3, s3, s4
        s_mul_i32 s3, s3, {self.a_pitch}
        """)
        if self.rotated(c):
            def emit(k):
                p(f"""
                s_lshr_b32 s4, s6, 2
                s_mul_i32 s4, s4, {self.a_pitch - 4096}
                s_add_u32 s4, s4, s7
                s_add_u32 s4, s4, s3
                v_add_u32 v{32 + k}, s4, v1
                """)
            rot_pieces(p, 8, 0, f"s_lshr_b32 s6, s{S_NT2}, 1", S_LD[0], emit)
        else:
            p("v_add_u32 v32, s3, v1")
            for i in range(1, 8): p(f"v_add_u32 v{32 + i}, {(i // 4) * self.a_pitch + (i % 4) * 1024}, v32")
        p(f"s_mov_b32 s{S_SO[0]}, {self.a_k0}")
    a_k0 = 0; b_k0 = 0
    def h_setup(self, p, c, first=False):
        p(f"""
        s_lshl_b32 s{S_LD[0]}, s{S_WM}, 13
        s_lshl_b32 s{S_LD[1]}, s{S_WM}, 12
        s_add_u32 s{S_LD[1]}, s{S_LD[1]}, 32768
        s_mov_b32 s{S_SO[1]}, {self.b_k0}
        """)
        self.h_setup_a(p, c)
        srd(p, S_B, ptr(self.bname), self.babytes)
        p(f"""
        v_lshrrev_b32 v{T0}, 3, v0
        v_and_b32 v{T0+1}, 7, v0
        v_and_b32 v{T0+2}, {2 if self.order == 'nat' else 6}, v{T0}
        v_xor_b32 v{T0+1}, v{T0+1}, v{T0+2}
        s_lshl_b32 s3, s{S_WM}, 5
        v_add_u32 v{T0}, s3, v{T0}
        v_lshlrev_b32 v{T0}, 11, v{T0}
        v_lshl_add_u32 v{T0}, v{T0+1}, 4, v{T0}
        s_lshl_b32 s4, s{S_NT2}, 7
        """)
        if self.rotated(c):
            p(f"v_add_u32 v{T0}, s4, v{T0}")
            def emit(k):
                p(f"s_lshl_b32 s4, s6, 14\nv_add_u32 v{40 + k}, s4, v{T0}")
                if self.order == 'nat': p(f"s_and_b32 s4, s6, 1\ns_lshl_b32 s4, s4, 6\nv_xor_b32 v{40 + k}, s4, v{40 + k}")
            rot_pieces(p, 4, 8, f"s_and_b32 s6, s{S_MT2}, 3", S_LD[1], emit)
        else:
            p(f"v_add_u32 v40, s4, v{T0}")
            if self.order == 'nat':
                p(f"v_xor_b32 v{T0}, 64, v40")
                p(f"v_add_u32 v41, {8 * 2048}, v{T0}\nv_add_u32 v42, {16 * 2048}, v40\nv_add_u32 v43, {24 * 2048}, v{T0}")
            else:
                for i in range(1, 4): p(f"v_add_u32 v{40 + i}, {8 * i * 2048}, v40")
    def g_setup_x(self, p, c):
        p(f"""
        s_lshl_b32 s3, s{S_WM}, 14
        s_add_u32 s3, s3, s{S_RD}
        v_add_u32 v32, s3, v1
        """)
    def g_setup(self, p, c):
        lane_fields(p, T0, T0 + 1, T0 + 2, T0 + 3)
        self.g_setup_x(p, c)
        if self.order == 'nat': p(f"v_lshl_add_u32 v{T0+4}, v{T0+1}, 3, v{T0+2}")
        elif self.order == 'perm32': p(f"v_lshl_add_u32 v{T0+4}, v{T0+1}, 2, v{T0+2}")
        else:
            p(f"""
            v_lshrrev_b32 v{T0+4}, 1, v{T0+1}
            v_lshl_add_u32 v{T0+4}, v{T0+4}, 4, v{T0+2}
            v_and_b32 v{T0+5}, 1, v{T0+1}
            v_lshl_add_u32 v{T0+4}, v{T0+5}, 2, v{T0+4}
            """)
        p(f"""
        v_lshlrev_b32 v{T0+4}, 7, v{T0+4}
        v_lshrrev_b32 v{T0+5}, 1, v{T0+2}
        v_and_b32 v{T0+6}, 1, v{T0+1}
        v_lshl_or_b32 v{T0+5}, v{T0+6}, 1, v{T0+5}
        s_lshl_b32 s3, s{S_WN}, 1
        v_xor_b32 v{T0+5}, s3, v{T0+5}
        v_lshl_add_u32 v{T0+4}, v{T0+5}, 5, v{T0+4}
        v_lshl_add_u32 v{T0+4}, v{T0+3}, 3, v{T0+4}
        s_add_u32 s3, s{S_RD}, 32768
        v_add_u32 v34, s3, v{T0+4}
        v_xor_b32 v35, 32, v34
        """)
        self.g_pre(p, c)
        self.g_zero(p)
    def g_pre(self, p, c): pass

def gelu_consts(p, b, has_og):
    rs, og, k1, k0, w, t = b + 1, b + 3, b + 2, b + 4, b + 6, b + 5
    p(f"""
    v_mul_f32 v{t}, v{rs}, v{rs}
    v_mul_f32 v{k0}, {hexf(GC0)}, v{rs}
    v_mul_f32 v{t}, v{t}, v{rs}
    v_mul_f32 v{k1}, {hexf(GC1)}, v{t}
    """)
    if has_og:
        p(f"""
        v_max_f32 v{t}, {hexf(1e-30)}, v{og}
        v_mul_f32 v{t}, v{t}, v{rs}
        v_rcp_f32 v{w}, v{t}
        """)
    else:
        p(f"v_rcp_f32 v{w}, v{rs}")
    p(f"v_min_f32 v{w}, {hexf(1e38)}, v{w}")

def gelu_block(p, items, tmp, pk=True):
    T = [tmp + 2 * i for i in range(len(items))]
    Z = list(zip(items, T))
    if pk:
        for (r, cs, b), t in Z: p(f"v_pk_fma_f32 {vr(r,2)}, {vr(cs,2)}, {vr(b,2)}, {vr(r,2)} op_sel_hi:[1,0,1] neg_lo:[1,0,0] neg_hi:[1,0,0]")
        for (r, cs, b), t in Z: p(f"v_pk_mul_f32 {vr(t,2)}, {vr(r,2)}, {vr(r,2)}")
        for (r, cs, b), t in Z: p(f"v_pk_fma_f32 {vr(t,2)}, {vr(t,2)}, {vr(b+2,2)}, {vr(b+4,2)} op_sel_hi:[1,0,0]")
        for (r, cs, b), t in Z: p(f"v_pk_mul_f32 {vr(t,2)}, {vr(t,2)}, {vr(r,2)}")
    else:
        for (r, cs, b), t in Z:
            for h in range(2): p(f"v_fma_f32 v{r+h}, -v{cs+h}, v{b}, v{r+h}")
        for (r, cs, b), t in Z:
            for h in range(2): p(f"v_mul_f32 v{t+h}, v{r+h}, v{r+h}")
        for (r, cs, b), t in Z:
            for h in range(2): p(f"v_fma_f32 v{t+h}, v{t+h}, v{b+2}, v{b+4}")
        for (r, cs, b), t in Z:
            for h in range(2): p(f"v_mul_f32 v{t+h}, v{t+h}, v{r+h}")
    for t in T:
        p(f"v_exp_f32 v{t}, v{t}"); p(f"v_exp_f32 v{t+1}, v{t+1}")
    for (r, cs, b), t in Z:
        if pk: p(f"v_pk_fma_f32 {vr(t,2)}, {vr(t,2)}, {vr(b+6,2)}, {vr(b+6,2)} op_sel_hi:[1,0,0]")
        else:
            for h in range(2): p(f"v_fma_f32 v{t+h}, v{t+h}, v{b+6}, v{b+6}")
    for t in T:
        p(f"v_rcp_f32 v{t}, v{t}"); p(f"v_rcp_f32 v{t+1}, v{t+1}")
    for (r, cs, b), t in Z:
        if pk: p(f"v_pk_mul_f32 {vr(r,2)}, {vr(r,2)}, {vr(t,2)}")
        else:
            for h in range(2): p(f"v_mul_f32 v{r+h}, v{r+h}, v{t+h}")

def read_tok_consts(p, base, vaddr, r16, has_og):
    p(f"""
    s_lshl_b32 s3, s{S_WM}, 8
    s_add_u32 s3, s3, {L_MU}
    v_lshl_add_u32 v{vaddr}, v{r16}, 2, s3
    """)
    for m in range(4):
        p(f"ds_read_b32 v{base + 8 * m}, v{vaddr} offset:{64 * m}")
        p(f"ds_read_b32 v{base + 8 * m + 1}, v{vaddr} offset:{512 + 64 * m}")
        if has_og: p(f"ds_read_b32 v{base + 8 * m + 3}, v{vaddr} offset:{1024 + 64 * m}")

class W1(N64):
    nsteps = 8; order = 'nat'; bname = 'w1'; stepA = 256
    addr_regs = [32, 34, 35, 33]
    pubkind = F_W1
    h_steps = (0, 1)
    xbar = True
    pubstep = 2
    def aflag(self, c): return c.opt.get('ldflag', '')
    def xaddr(self, kk, m): return (32 + kk % 2, (m // 2) * 8192 + (m % 2) * 2048 + (kk // 2) * 4096)
    def h_setup_a(self, p, c):
        srd(p, S_A, ptr('x'), 2048 * 2048)
        if self.rotated(c):
            h_xrows(p, [T0 + 4], lambda i: 0, S_MT2)
            def emit(k):
                p(f"""
                s_and_b32 s4, s6, 3
                s_lshl_b32 s4, s4, 14
                s_lshr_b32 s5, s6, 2
                s_lshl_b32 s5, s5, 7
                s_add_u32 s4, s4, s5
                v_add_u32 v{32 + k}, s4, v{T0+4}
                s_and_b32 s4, s6, 1
                s_lshl_b32 s4, s4, 6
                v_xor_b32 v{32 + k}, s4, v{32 + k}
                """)
            rot_pieces(p, 8, 0, f"s_lshr_b32 s6, s{S_NT2}, 1", S_LD[0], emit)
        else:
            h_xrows(p, list(range(32, 40)), lambda i: (i // 4) * 128, S_MT2)
        p(f"s_mov_b32 s{S_SO[0]}, 0")
    def g_setup_x(self, p, c):
        p(f"""
        v_lshrrev_b32 v{T0+4}, 1, v{T0}
        v_xor_b32 v{T0+4}, v{T0+4}, v{T0+1}
        v_lshlrev_b32 v{T0+4}, 4, v{T0+4}
        v_lshl_or_b32 v{T0+4}, v{T0}, 7, v{T0+4}
        s_lshl_b32 s3, s{S_WM}, 14
        s_add_u32 s3, s3, s{S_RD}
        v_add_u32 v32, s3, v{T0+4}
        v_xor_b32 v33, 64, v32
        """)
    lds_consts = True
    def extra_mfma(self, s, n): return [mfma16(112 + 4 * n, self.wf(s, n), 120)]
    def g_pre(self, p, c):
        for i in range(8): p(f"v_mov_b32 v{112 + i}, 0")
        for i in range(4): p(f"v_mov_b32 v{120 + i}, 0x3f803f80")
    def h_poll(self, c, t): return poll_flags(c, F_ST, S_MT2) if t == 0 else None
    def h_post(self, p, c, t):
        if t == (6 if self.nxt.late else 7): p("ds_write_b32 v58, v59\ns_waitcnt lgkmcnt(0)")
    def h_extra(self, p, c, t):
        W = f"s[{S_WS}:{S_WS+3}]"
        ho = c.opt.get('hoflag', ''); st = c.opt.get('stflag', '')
        if t == 1:
            p(f"""
            v_and_b32 v58, 31, v0
            v_lshrrev_b32 v59, 5, v0
            v_lshlrev_b32 v58, 2, v58
            v_lshl_add_u32 v60, v59, 13, v58
            v_lshl_add_u32 v58, v59, 9, v58
            s_lshl_b32 s3, s{S_MT2}, 9
            s_lshl_b32 s4, s{S_WM}, 7
            s_add_u32 s3, s3, s4
            s_add_u32 s3, s3, {WS_ST1}
            s_add_u32 s4, s4, {L_MU}
            v_add_u32 v58, s4, v58
            buffer_load_dword v59, v60, {W}, s3 offen {ho}
            """)
            return 1
        return 0
    def g_epi(self, p, c):
        st = c.opt.get('stflag', '')
        W = f"s[{S_WS}:{S_WS+3}]"
        lane_fields(p, T0, T0 + 1)
        p("s_waitcnt lgkmcnt(0)")
        if self.lds_consts: read_tok_consts(p, 144, 36, T0, False)
        for m in range(4): gelu_consts(p, 144 + 8 * m, False)
        p(f"""
        s_lshr_b32 s5, s{S_NT2}, 2
        s_lshr_b32 s6, s5, 1
        s_add_u32 s6, s6, 1
        s_sub_u32 s7, 0, s6
        s_bitcmp1_b32 s5, 0
        s_cselect_b32 s6, s7, s6
        s_lshl_b32 s3, s{S_MT2}, 7
        s_lshl_b32 s4, s{S_WM}, 6
        s_add_u32 s3, s3, s4
        s_add_u32 s6, s6, s3
        s_lshl_b32 s3, s{S_NT2}, 1
        s_add_u32 s3, s3, s{S_WN}
        s_lshl_b32 s42, s3, 10
        s_add_u32 s42, s42, {WS_HS}
        """)
        for mp in range(2):
            items = []
            for m in (2 * mp, 2 * mp + 1):
                for n in range(2):
                    for h in range(2): items.append((self.acc(m, n) + 2 * h, 112 + 4 * n + 2 * h, 144 + 8 * m))
            gelu_block(p, items, 56, c.opt.get('pk', 1))
            for m in (2 * mp, 2 * mp + 1):
                a, b = self.acc(m, 0), self.acc(m, 1)
                t = 72 + 4 * m
                p(f"""
                v_add_u32 v{T0+2}, s6, v{T0}
                v_add_u32 v{T0+2}, {16 * m}, v{T0+2}
                v_cmp_gt_u32 vcc, 2048, v{T0+2}
                v_and_b32 v{T0+2}, 2047, v{T0+2}
                v_lshrrev_b32 v{T0+3}, 4, v{T0+2}
                v_and_b32 v{T0+2}, 15, v{T0+2}
                v_lshl_add_u32 v{T0+2}, v{T0+1}, 4, v{T0+2}
                v_lshlrev_b32 v{T0+2}, 4, v{T0+2}
                v_lshl_add_u32 v{36 + m}, v{T0+3}, 15, v{T0+2}
                """)
                for i, r in enumerate((a, a + 2, b, b + 2)): p(f"v_cvt_pk_bf16_f32 v{t + i}, v{r}, v{r + 1}")
                for i in range(4): p(f"v_cndmask_b32 v{t + i}, 0, v{t + i}, vcc")
                p(f"buffer_store_dwordx4 {vr(t, 4)}, v{36 + m}, {W}, s42 offen {st}")

class W2(N64):
    nsteps = 8; order = 'perm32'; bname = 'w2'; a_base = WS_HS
    pubkind = F_W2
    def poll(self, c): return poll_flags(c, F_W1, S_MT2, halo=True)
    def h_tail(self, c):
        a = Atoms()
        h_xrows(a, [44, 45, 46, 47], lambda i: 0, S_MT2)
        srd(a, S_AUX, ptr('x'), 2048 * 2048)
        a(f"""
        s_lshl_b32 s5, s{S_NT2}, 7
        s_lshl_b32 s4, s{S_WM}, 12
        s_add_u32 s4, s4, s{S_DMA}
        s_add_u32 m0, s4, 32768
        """)
        D = [f"buffer_load_dwordx4 v{44 + i}, s[{S_AUX}:{S_AUX+3}], s5 offen lds" + ("\ns_add_u32 m0, m0, 1024" if i < 3 else "") for i in range(4)]
        D[0] = "\n".join(a.L) + "\n" + D[0]
        return D
    def g_epi(self, p, c):
        st = c.opt.get('stflag', '')
        W = f"s[{S_WS}:{S_WS+3}]"
        p(f"""
        s_waitcnt lgkmcnt(0)
        s_lshl_b32 s3, s{S_NT2}, 1
        s_add_u32 s3, s3, s{S_WN}
        s_lshl_b32 s4, s{S_MT2}, 3
        s_lshl_b32 s5, s{S_WM}, 2
        s_add_u32 s4, s4, s5
        s_lshl_b32 s42, s4, 15
        s_lshl_b32 s5, s3, 10
        s_add_u32 s42, s42, s5
        s_add_u32 s42, s42, {WS_X1}
        s_lshl_b32 s43, s3, 14
        s_lshl_b32 s5, s4, 7
        s_add_u32 s43, s43, s5
        s_add_u32 s43, s43, {WS_P2}
        """)
        lane_fields(p, T0, T0 + 1)
        p(f"""
        v_lshrrev_b32 v{T0+2}, 1, v{T0}
        v_lshrrev_b32 v{T0+3}, 1, v{T0+1}
        v_xor_b32 v{T0+2}, v{T0+2}, v{T0+3}
        s_lshl_b32 s3, s{S_WN}, 2
        v_xor_b32 v{T0+2}, s3, v{T0+2}
        v_lshlrev_b32 v{T0+2}, 4, v{T0+2}
        v_lshl_or_b32 v{T0+2}, v{T0}, 7, v{T0+2}
        v_and_b32 v{T0+3}, 1, v{T0+1}
        v_lshl_or_b32 v{T0+2}, v{T0+3}, 3, v{T0+2}
        s_lshl_b32 s3, s{S_WM}, 13
        s_add_u32 s3, s3, s{S_RD}
        v_add_u32 v37, s3, v{T0+2}
        v_xor_b32 v38, 32, v37
        """)
        for m in range(4):
            for n in range(2): p(f"ds_read_b64 {vr(160 + 4 * m + 2 * n, 2)}, v{37 + n} offset:{32768 + 2048 * m}")
        for m in range(4):
            for n in range(2):
                a = self.acc(m, n)
                for d in range(2):
                    x = 160 + 4 * m + 2 * n + d
                    p(f"v_lshlrev_b32 v48, 16, v{x}\nv_and_b32 v49, 0xffff0000, v{x}")
                    p(f"v_pk_add_f32 {vr(a + 2 * d, 2)}, {vr(a + 2 * d, 2)}, v[48:49]")
            a, b = self.acc(m, 0), self.acc(m, 1)
            t = 72 + 4 * m
            for i, r in enumerate((a, a + 2, b, b + 2)): p(f"v_cvt_pk_bf16_f32 v{t + i}, v{r}, v{r + 1}")
            p(f"buffer_store_dwordx4 {vr(t, 4)}, v1, {W}, s42 offen {st}")
            if m < 3: p(f"s_add_u32 s42, s42, 32768")
            p(f"""
            v_pk_add_f32 v[50:51], {vr(a, 2)}, {vr(a + 2, 2)}
            v_pk_mul_f32 v[52:53], {vr(a, 2)}, {vr(a, 2)}
            v_pk_add_f32 v[50:51], v[50:51], {vr(b, 2)}
            v_pk_fma_f32 v[52:53], {vr(a + 2, 2)}, {vr(a + 2, 2)}, v[52:53]
            v_pk_add_f32 v[50:51], v[50:51], {vr(b + 2, 2)}
            v_pk_fma_f32 v[52:53], {vr(b, 2)}, {vr(b, 2)}, v[52:53]
            v_pk_fma_f32 v[52:53], {vr(b + 2, 2)}, {vr(b + 2, 2)}, v[52:53]
            v_add_f32 v{56 + 2 * m}, v50, v51
            v_add_f32 v{57 + 2 * m}, v52, v53
            """)
        for i in range(4): p(f"v_permlane32_swap_b32 v{56 + i}, v{60 + i}")
        for i in range(4): p(f"v_add_f32 v{56 + i}, v{56 + i}, v{60 + i}")
        for i in range(2): p(f"v_permlane16_swap_b32 v{56 + i}, v{58 + i}")
        for i in range(2): p(f"v_add_f32 v{56 + i}, v{56 + i}, v{58 + i}")
        p(f"""
        v_lshlrev_b32 v36, 3, v0
        buffer_store_dwordx2 v[56:57], v36, {W}, s43 offen {st}
        """)

AF_PITCH = 144 * 1024
class W3(Gemm):
    NT = 7; KS = 2; nsteps = 16; nA = 4; nB = 8
    stepA = 2048; stepB = 64 * 7168
    addr_regs = [32, 33, 34, 35, 36, 37, 38, 39]
    pubkind = F_W3
    zero_first = True
    h_steps = tuple(range(1, 14))
    def poll(self, c): return poll_flags(c, F_W2, S_MT3)
    def g_sites(self, c):
        if not c.opt.get('persist'): return {}
        return {7: lambda p: publish(p, c, F_CS, True)}
    def h_poll(self, c, t): return poll_flags(c, F_CS, S_NT3) if t == 10 else None
    def h_post(self, p, c, t):
        if t == 15:
            p("""
            ds_write_b32 v56, v160
            ds_write_b32 v57, v64
            ds_write_b32 v57, v65 offset:512
            s_mov_b32 exec_hi, 0
            ds_write_b32 v58, v96 offset:1024
            s_mov_b32 exec_hi, -1
            s_waitcnt lgkmcnt(0)
            """)
    def xaddr(self, kk, m): return (32, m * 2048 + kk * 1024)
    def waddr(self, kk, n, j): return (33 + n, (32 * kk + 16 * j) * 512)
    def h_setup(self, p, c, first=False):
        srd(p, S_A, ptr('ws'), 4 * MB, WS_X1)
        srd(p, S_B, ptr('w3'), 1024 * 7168)
        p(f"""
        s_lshl_b32 s3, s{S_MT3}, 3
        s_lshl_b32 s4, s{S_WM}, 1
        s_add_u32 s3, s3, s4
        s_lshl_b32 s3, s3, 15
        v_add_u32 v32, s3, v1
        v_add_u32 v33, 1024, v32
        v_add_u32 v34, 32768, v32
        v_add_u32 v35, {32768 + 1024}, v32
        s_mul_i32 s4, s{S_NT3}, 448
        s_and_b32 s4, s4, {0xffffff80}
        s_mul_i32 s3, s{S_WM}, {16 * 7168}
        s_add_u32 s4, s4, s3
        v_lshrrev_b32 v{T0}, 5, v0
        v_and_b32 v{T0+1}, 31, v0
        v_mul_u32_u24 v{T0+2}, 7168, v{T0}
        v_add_u32 v{T0+2}, s4, v{T0+2}
        v_lshlrev_b32 v{T0}, 1, v{T0}
        v_xor_b32 v{T0+1}, v{T0+1}, v{T0}
        """)
        for i in range(4):
            p(f"""
            v_xor_b32 v{T0+3}, {4 * i}, v{T0+1}
            v_lshl_add_u32 v{T0+3}, v{T0+3}, 4, v{T0+2}
            v_add_u32 v{36 + i}, {2 * i * 7168}, v{T0+3}
            v_add_u32 v{40 + i}, {(2 * i + 8) * 7168}, v{T0+3}
            """)
        p(f"""
        s_lshl_b32 s{S_LD[0]}, s{S_WM}, 12
        s_lshl_b32 s{S_LD[1]}, s{S_WM}, 13
        s_add_u32 s{S_LD[1]}, s{S_LD[1]}, 16384
        s_mov_b32 s{S_SO[0]}, 0
        s_mov_b32 s{S_SO[1]}, 0
        """)
    def g_setup(self, p, c):
        lane_fields(p, None, T0 + 1, T0 + 2, T0 + 3)
        p(f"""
        s_lshl_b32 s3, s{S_WM}, 13
        s_add_u32 s3, s3, s{S_RD}
        v_add_u32 v32, s3, v1
        v_lshl_add_u32 v{T0+4}, v{T0+1}, 2, v{T0+2}
        v_and_b32 v{T0+5}, 7, v{T0+4}
        v_lshlrev_b32 v{T0+4}, 9, v{T0+4}
        v_lshl_add_u32 v{T0+4}, v{T0+3}, 3, v{T0+4}
        s_add_u32 s3, s{S_RD}, 16384
        v_add_u32 v{T0+4}, s3, v{T0+4}
        s_and_b32 s3, s{S_NT3}, 1
        s_lshl_b32 s3, s3, 1
        s_mul_i32 s4, s{S_WN}, 7
        s_add_u32 s3, s3, s4
        """)
        for n in range(7):
            p(f"""
            v_xor_b32 v{T0+6}, s3, v{T0+5}
            v_lshl_add_u32 v{33 + n}, v{T0+6}, 5, v{T0+4}
            s_add_u32 s3, s3, 1
            """)
        self.g_zero(p)
    def h_late(self, a, c):
        a.atom(f"""
        s_mul_i32 s53, s{S_NT3}, 448
        s_and_b32 s53, s53, {0xffffff80}
        s_lshl_b32 s4, s{S_WM}, 7
        s_add_u32 s53, s53, s4
        s_lshl_b32 s4, s{S_MT3}, 6
        v_lshrrev_b32 v{T0}, 3, v0
        v_add_u32 v{T0}, s4, v{T0}
        v_mul_u32_u24 v{T0}, 7168, v{T0}
        v_and_b32 v{T0+1}, 7, v0
        v_lshl_add_u32 v{T0}, v{T0+1}, 4, v{T0}
        """)
        for i in range(8):
            a.atom(f"buffer_load_dwordx4 {vr(160 + 4 * i, 4)}, v{T0}, s[{S_B}:{S_B+3}], s53 offen\ns_add_u32 s53, s53, {8 * 7168}")
        return 8
    def h_extra(self, p, c, t):
        W = f"s[{S_WS}:{S_WS+3}]"
        ho = c.opt.get('hoflag', ''); st = c.opt.get('stflag', '')
        n = 0
        if t == 1:
            p(f"""
            v_and_b32 v60, 15, v0
            v_lshrrev_b32 v61, 4, v0
            v_lshlrev_b32 v60, 4, v60
            v_lshl_add_u32 v62, v61, 10, v60
            v_lshl_add_u32 v63, v61, 17, v60
            v_lshlrev_b32 v60, 2, v0
            s_lshl_b32 s4, s{S_WM}, 8
            s_lshl_b32 s53, s{S_NT3}, 14
            s_add_u32 s53, s53, s4
            s_add_u32 s53, s53, {WS_CSP}
            s_lshl_b32 s49, s{S_MT3}, 10
            s_add_u32 s50, s49, s4
            s_add_u32 s49, s49, s53
            s_lshr_b32 s3, s50, 1
            s_add_u32 s3, s3, {WS_G + 8192}
            s_add_u32 s50, s50, {WS_P2}
            buffer_load_dword v96, v60, {W}, s3 offen {ho}
            """)
            n += 1
        if 1 <= t <= 8:
            p(f"buffer_load_dwordx4 {vr(64 + 4 * (t - 1), 4)}, v63, {W}, s50 offen {ho}\ns_add_u32 s50, s50, 16384")
            n += 1
        if t == 5:
            p(f"buffer_store_dwordx2 v[48:49], v56, {W}, s49 offen {st}")
            n += 1
        if t == 11:
            for i in range(4):
                p(f"buffer_load_dwordx4 {vr(160 + 4 * i, 4)}, v62, {W}, s53 offen {ho}\ns_add_u32 s53, s53, 4096")
            n += 4
        return n
    def h_mix(self, p, c, t):
        if t == 1:
            for i in range(8): p(f"v_mov_b32 v{48 + i}, 0")
        if 1 <= t <= 4:
            for i in (2 * t - 2, 2 * t - 1):
                for d in range(4):
                    x = 160 + 4 * i + d
                    p(f"""
                    v_lshlrev_b32 v56, 16, v{x}
                    v_and_b32 v57, 0xffff0000, v{x}
                    v_add_f32 v{48 + 2 * d}, v{48 + 2 * d}, v56
                    v_add_f32 v{49 + 2 * d}, v{49 + 2 * d}, v57
                    """)
        if t == 5:
            for i in range(4): p(f"v_permlane32_swap_b32 v{48 + i}, v{52 + i}")
            for i in range(4): p(f"v_add_f32 v{48 + i}, v{48 + i}, v{52 + i}")
            for i in range(2): p(f"v_permlane16_swap_b32 v{48 + i}, v{50 + i}")
            for i in range(2): p(f"v_add_f32 v{48 + i}, v{48 + i}, v{50 + i}")
            for i in range(2): p(f"v_add_f32_dpp v{48 + i}, v{48 + i}, v{48 + i} row_ror:8 row_mask:0xf bank_mask:0xf")
            p(f"""
            v_and_b32 v56, 7, v0
            v_lshrrev_b32 v57, 4, v0
            v_lshlrev_b32 v56, 5, v56
            v_lshl_add_u32 v56, v57, 3, v56
            """)
        if t == 10:
            for st_ in (4, 2, 1):
                for i in range(st_):
                    for d in range(4): p(f"v_add_f32 v{64 + 4 * i + d}, v{64 + 4 * i + d}, v{64 + 4 * (i + st_) + d}")
        if t == 11:
            p(f"""
            v_permlane32_swap_b32 v64, v66
            v_permlane32_swap_b32 v65, v67
            v_add_f32 v64, v64, v66
            v_add_f32 v65, v65, v67
            v_mov_b32 v66, v64
            v_mov_b32 v67, v65
            v_permlane16_swap_b32 v64, v66
            v_permlane16_swap_b32 v65, v67
            v_add_f32 v64, v64, v66
            v_add_f32 v65, v65, v67
            v_mul_f32 v64, {hexf(1.0 / 1024)}, v64
            v_mul_f32 v65, {hexf(1.0 / 1024)}, v65
            v_fma_f32 v65, -v64, v64, v65
            v_max_f32 v65, 0, v65
            v_add_f32 v65, {hexf(1e-5)}, v65
            v_rsq_f32 v65, v65
            """)
        if t == 12:
            p(f"""
            v_and_b32 v57, 15, v0
            v_lshrrev_b32 v58, 5, v0
            v_lshl_add_u32 v57, v57, 1, v58
            s_lshl_b32 s3, s{S_WM}, 7
            v_lshl_add_u32 v57, v57, 2, s3
            v_lshl_add_u32 v58, v0, 2, s3
            v_add_u32 v57, {L_MU}, v57
            v_add_u32 v58, {L_MU}, v58
            """)
        if t == 13:
            for st_ in (2, 1):
                for i in range(st_):
                    for d in range(4): p(f"v_add_f32 v{160 + 4 * i + d}, v{160 + 4 * i + d}, v{160 + 4 * (i + st_) + d}")
            p(f"""
            v_permlane32_swap_b32 v160, v162
            v_permlane32_swap_b32 v161, v163
            v_add_f32 v160, v160, v162
            v_add_f32 v161, v161, v163
            v_permlane16_swap_b32 v160, v161
            v_add_f32 v160, v160, v161
            v_and_b32 v56, 15, v0
            v_lshrrev_b32 v59, 4, v0
            v_lshl_add_u32 v56, v56, 2, v59
            s_lshl_b32 s3, s{S_WM}, 8
            v_lshl_add_u32 v56, v56, 2, s3
            v_add_u32 v56, {L_CS}, v56
            """)
    def g_epi(self, p, c):
        st = c.opt.get('stflag', '')
        W = f"s[{S_WS}:{S_WS+3}]"
        lane_fields(p, 40, 41)
        p(f"""
        s_waitcnt lgkmcnt(0)
        s_mul_i32 s3, s{S_WN}, 448
        s_and_b32 s4, s{S_NT3}, 1
        s_lshl_b32 s4, s4, 7
        s_add_u32 s3, s3, s4
        s_add_u32 s3, s3, {L_CS}
        v_lshl_add_u32 v36, v41, 4, s3
        """)
        read_tok_consts(p, 76, 37, 40, True)
        for n in range(7): p(f"ds_read_b128 {vr(48 + 4 * n, 4)}, v36 offset:{64 * n}")
        for m in range(4): gelu_consts(p, 76 + 8 * m, True)
        p(f"""
        v_lshrrev_b32 v38, 5, v0
        v_mul_u32_u24 v38, {AF_PITCH}, v38
        v_and_b32 v39, 31, v0
        v_lshl_add_u32 v38, v39, 4, v38
        s_lshl_b32 s3, s{S_MT3}, 3
        s_lshl_b32 s4, s{S_WM}, 2
        s_add_u32 s3, s3, s4
        s_mul_i32 s42, s3, {AF_PITCH}
        s_mul_i32 s3, s{S_NT3}, 14
        s_mul_i32 s4, s{S_WN}, 7
        s_add_u32 s3, s3, s4
        s_lshl_b32 s3, s3, 9
        s_add_u32 s42, s42, s3
        s_add_u32 s42, s42, {WS_AF}
        s_add_u32 s43, s42, {2 * AF_PITCH}
        """)
        for n in range(7):
            items = []
            for m in range(4):
                for h in range(2): items.append((self.acc(m, n) + 2 * h, 48 + 4 * n + 2 * h, 76 + 8 * m))
            gelu_block(p, items, 108 + 16 * (n % 2), c.opt.get('pk', 1))
            for u in range(2):
                a = self.acc(2 * u, n)
                for i in range(4): p(f"v_cvt_pk_bf16_f32 v{a + i}, v{a + 2 * i}, v{a + 2 * i + 1}")
            for u in range(2):
                a = self.acc(2 * u, n)
                p(f"v_permlane32_swap_b32 v{a}, v{a + 2}")
                p(f"v_permlane32_swap_b32 v{a + 1}, v{a + 3}")
            for u in range(2):
                a = self.acc(2 * u, n)
                p(f"buffer_store_dwordx4 {vr(a, 4)}, v38, {W}, s{42 + u} offen offset:{n * 512} {st}")

WS_XCH = 48 * MB
def xch_off(c, nt_code, wave, dst):
    if not c.opt.get('xreuse', 0):
        return f"""
        s_lshl_b32 s3, s{S_MT2}, 4
        {nt_code}
        s_add_u32 s3, s3, s4
        s_lshl_b32 s3, s3, 2
        s_add_u32 s3, s3, s{wave}
        s_lshl_b32 s3, s3, 13
        s_add_u32 s{dst}, s3, {WS_XCH}
        """
    return f"""
    {nt_code}
    s_lshl_b32 s4, s4, 1
    s_and_b32 s3, s{wave}, 1
    s_add_u32 s4, s4, s3
    s_lshl_b32 s3, s{S_MT2}, 5
    s_add_u32 s3, s3, s4
    s_lshl_b32 s3, s3, 13
    s_add_u32 s3, s3, {WS_HS}
    s_lshl_b32 s4, s4, 4
    s_add_u32 s4, s4, s{S_MT2}
    s_lshl_b32 s4, s4, 13
    s_cmp_lt_u32 s{wave}, 2
    s_cselect_b32 s{dst}, s3, s4
    """

class W4(Gemm):
    NT = 4; KS = 3; nA = 6; nB = 6
    h_steps = (15, 16)
    def __init__(self, xw=2): self.xw = xw; self.nsteps = 18 + xw
    def __call__(self): return self
    stepA = 3072; stepB = 96 * 2048
    addr_regs = [32, 33, 34, 35, 36]
    zero_first = True
    pubkind = F_XCH
    pubstep = 4
    def poll(self, c): return poll_flags(c, F_W3, S_MT2)
    def h_poll(self, c, t): return poll_flags(c, F_ATT, S_MT2, shift=1, nprod=32) if t == 15 else None
    def h_pre(self, p, c, t):
        if t == 16:
            if not self.xw: return
            srd(p, S_B, ptr('wo'), 1024 * 2048)
            p(f"""
            s_and_b32 s3, s{S_NT2}, 1
            s_mul_i32 s{S_SO[0]}, s3, {3 * self.xw * 1024}
            s_add_u32 s{S_SO[0]}, s{S_SO[0]}, {112 * 1024}
            s_mul_i32 s{S_SO[1]}, s3, {3 * self.xw * 32 * 2048}
            """)
    def xaddr(self, kk, m): return (32, m * 3072 + kk * 1024)
    def waddr(self, kk, n, j): return (33 + n, (32 * kk + 8 * j) * 256)
    def h_setup(self, p, c, first=False):
        srd(p, S_A, ptr('ws'), 18 * MB, WS_AF)
        srd(p, S_B, ptr('w4'), 3584 * 2048)
        p(f"""
        s_lshl_b32 s3, s{S_MT2}, 3
        s_lshl_b32 s4, s{S_WM}, 1
        s_add_u32 s3, s3, s4
        s_mul_i32 s3, s3, {AF_PITCH}
        s_mul_i32 s{S_LD[0]}, s{S_WM}, 6144
        s_add_u32 s{S_LD[1]}, s{S_LD[0]}, 24576
        """)
        if self.rotated(c):
            def emit(k):
                p(f"""
                s_cmp_ge_u32 s6, 3
                s_cselect_b32 s4, {AF_PITCH - 3072}, 0
                s_add_u32 s4, s4, s7
                s_add_u32 s4, s4, s3
                v_add_u32 v{32 + k}, s4, v1
                """)
            rot_pieces(p, 6, 0, f"s_lshr_b32 s6, s{S_NT2}, 1\ns_mul_i32 s6, s6, 3\ns_lshr_b32 s6, s6, 2", S_LD[0], emit)
        else:
            p("v_add_u32 v32, s3, v1")
            for i in range(1, 6): p(f"v_add_u32 v{32 + i}, {(i // 3) * AF_PITCH + (i % 3) * 1024}, v32")
        p(f"""
        v_lshrrev_b32 v{T0}, 4, v0
        v_and_b32 v{T0+1}, 15, v0
        v_lshlrev_b32 v{T0+2}, 1, v{T0}
        v_xor_b32 v{T0+1}, v{T0+1}, v{T0+2}
        s_mul_i32 s3, s{S_WM}, 24
        v_add_u32 v{T0}, s3, v{T0}
        v_lshlrev_b32 v{T0}, 11, v{T0}
        v_lshl_add_u32 v{T0}, v{T0+1}, 4, v{T0}
        s_lshr_b32 s4, s{S_NT2}, 1
        s_lshl_b32 s4, s4, 8
        """)
        if self.rotated(c):
            p(f"v_add_u32 v{T0}, s4, v{T0}")
            def emit(k):
                p(f"s_lshl_b32 s4, s6, 13\nv_add_u32 v{38 + k}, s4, v{T0}\ns_and_b32 s4, s6, 1\ns_lshl_b32 s4, s4, 7\nv_xor_b32 v{38 + k}, s4, v{38 + k}")
            rot_pieces(p, 6, 6, f"s_and_b32 s6, s{S_MT2}, 3\ns_mul_i32 s6, s6, 3\ns_lshr_b32 s6, s6, 1", S_LD[1], emit)
        else:
            p(f"v_add_u32 v38, s4, v{T0}\nv_xor_b32 v{T0}, 128, v38")
            for i in range(1, 6): p(f"v_add_u32 v{38 + i}, {4 * i * 2048}, v{38 if i % 2 == 0 else T0}")
        p(f"""
        s_and_b32 s3, s{S_NT2}, 1
        s_mul_i32 s{S_SO[0]}, s3, {54 * 1024}
        s_mul_i32 s{S_SO[1]}, s3, {54 * 32 * 2048}
        """)
    def rotated(self, c): return c.opt.get('rot', 0)
    def g_setup(self, p, c):
        lane_fields(p, None, T0 + 1, T0 + 2, T0 + 3)
        p(f"""
        s_mul_i32 s3, s{S_WM}, 12288
        s_add_u32 s3, s3, s{S_RD}
        v_add_u32 v32, s3, v1
        v_and_b32 v{T0+5}, 1, v{T0+1}
        v_lshl_add_u32 v{T0+5}, v{T0+5}, 2, v{T0+2}
        v_lshrrev_b32 v{T0+4}, 1, v{T0+1}
        v_lshl_add_u32 v{T0+4}, v{T0+4}, 4, v{T0+5}
        v_lshlrev_b32 v{T0+4}, 8, v{T0+4}
        v_lshl_add_u32 v{T0+4}, v{T0+3}, 3, v{T0+4}
        s_add_u32 s3, s{S_RD}, 24576
        v_add_u32 v{T0+4}, s3, v{T0+4}
        s_and_b32 s3, s{S_NT2}, 1
        s_lshl_b32 s3, s3, 2
        s_lshl_b32 s4, s{S_WN}, 1
        s_add_u32 s3, s3, s4
        v_xor_b32 v{T0+6}, s3, v{T0+5}
        v_lshl_add_u32 v35, v{T0+6}, 5, v{T0+4}
        v_xor_b32 v36, 32, v35
        v_xor_b32 v33, 128, v35
        v_xor_b32 v34, 160, v35
        """)
    def g_epi(self, p, c):
        st = c.opt.get('stflag', '')
        p(xch_off(c, f"s_mov_b32 s4, s{S_NT2}", S_WID, 3))
        p("s_add_u32 s4, s3, 4096")
        for i in range(8):
            p(f"buffer_store_dwordx4 {vr(192 + 4 * i, 4)}, v1, s[{S_WS}:{S_WS+3}], s{3 + i // 4} offen offset:{(i % 4) * 1024} {st}")
        p("s_waitcnt lgkmcnt(0)")

class WO(N64):
    def __init__(self, xw=2, xbar=False, pubstep=2): self.xw = xw; self.nsteps = 9 - 3 * xw // 2; self.xbar = xbar; self.pubstep = pubstep
    def __call__(self): return self
    order = 'perm32b'; bname = 'w4'; babytes = 3584 * 2048
    a_base = WS_AF; a_size = 18 * MB; a_pitch = AF_PITCH; a_k0 = 108 * 1024
    b_k0 = 108 * 32 * 2048
    ncall = 0
    def dma_atoms(self, c):
        D = N64.dma_atoms(self, c)
        if self.ncall == 0:
            a = Atoms(); srd(a, S_B, ptr('wo'), 1024 * 2048)
            a(f"s_mov_b32 s{S_SO[0]}, {(112 + 6 * self.xw) * 1024}\ns_mov_b32 s{S_SO[1]}, {6 * self.xw * 32 * 2048}")
            D[-1] += "\n" + "\n".join(a.L)
        self.ncall += 1
        return D
    def h_pre(self, p, c, t):
        if t == self.nsteps - 2: poll_flags(c, F_XCH, S_MT2, single=S_NT2).issue(p)
    def h_extra(self, p, c, t):
        if t == self.nsteps - 1:
            poll_flags(c, F_XCH, S_MT2, single=S_NT2).check(p)
            p.add(self.xch)
            return 8
        return 0
    def h_epi(self, p, c):
        p("s_waitcnt vmcnt(0)\ns_barrier")
        hstep_stamp(p, c)
    def g_zero(self, p): pass
    def h_tail(self, c):
        ho = c.opt.get('hoflag', '')
        W = f"s[{S_WS}:{S_WS+3}]"
        pre = xch_off(c, f"s_xor_b32 s4, s{S_NT2}, 1", S_WM, 49) + f"""
        s_lshl_b32 s3, s{S_NT2}, 1
        s_lshr_b32 s4, s{S_WM}, 1
        s_add_u32 s3, s3, s4
        s_lshl_b32 s3, s3, 10
        s_lshl_b32 s4, s{S_MT2}, 1
        s_and_b32 s5, s{S_WM}, 1
        s_add_u32 s4, s4, s5
        s_lshl_b32 s4, s4, 17
        s_add_u32 s3, s3, s4
        s_add_u32 s50, s3, {WS_X1}
        s_mul_i32 s4, s{S_WM}, 12288
        s_add_u32 m0, s4, s{S_DMA}
        """
        D = []
        for m in range(4): D.append(f"buffer_load_dwordx4 v1, {W}, s50 offen {ho} lds\ns_add_u32 s50, s50, 32768\ns_add_u32 m0, m0, 1024")
        for i in range(8):
            D.append(f"buffer_load_dwordx4 v1, {W}, s49 offen offset:{(i % 4) * 1024} {ho} lds" + ("\ns_add_u32 s49, s49, 4096\ns_add_u32 m0, m0, 4096" if i == 3 else ""))
        D[0] = pre + D[0]
        self.xch = D[4:]
        return D[:4]
    def g_pre(self, p, c):
        ho = c.opt.get('hoflag', '')
        p(f"""
        s_lshl_b32 s4, s{S_MT2}, 9
        s_lshl_b32 s5, s{S_WM}, 8
        s_add_u32 s4, s4, s5
        s_add_u32 s4, s4, {WS_G + 8192}
        v_lshlrev_b32 v36, 2, v{T0}
        """)
        for m in range(4): p(f"buffer_load_dword v{112 + 2 * m}, v36, s[{S_WS}:{S_WS+3}], s4 offen offset:{64 * m} {ho}")
    def g_epi(self, p, c):
        st = c.opt.get('outflag', '')
        p(f"""
        s_mul_i32 s3, s{S_WID}, 12288
        s_add_u32 s3, s3, s{S_RD}
        v_add_u32 v37, s3, v1
        """)
        for m in range(4): p(f"ds_read_b128 {vr(96 + 4 * m, 4)}, v37 offset:{1024 * m}")
        srd(p, S_AUX, ptr('out'), 2048 * 2048)
        lane_fields(p, T0, T0 + 1)
        p(f"""
        s_lshl_b32 s3, s{S_MT2}, 7
        s_lshl_b32 s4, s{S_WM}, 6
        s_add_u32 s3, s3, s4
        v_add_u32 v36, s3, v{T0}
        v_lshlrev_b32 v36, 11, v36
        v_and_b32 v{T0+2}, 1, v{T0+1}
        v_lshrrev_b32 v{T0+3}, 1, v{T0+1}
        v_lshl_add_u32 v36, v{T0+2}, 5, v36
        v_lshl_add_u32 v36, v{T0+3}, 4, v36
        s_lshl_b32 s3, s{S_NT2}, 7
        s_lshl_b32 s4, s{S_WN}, 6
        s_add_u32 s42, s3, s4
        """)
        for m in range(4):
            for n in range(2):
                a = self.acc(m, n)
                for d in range(2):
                    x = 96 + 4 * m + 2 * n + d
                    p(f"v_lshlrev_b32 v48, 16, v{x}\nv_and_b32 v49, 0xffff0000, v{x}")
                    p(f"v_pk_fma_f32 {vr(a + 2 * d, 2)}, v[48:49], {vr(112 + 2 * m, 2)}, {vr(a + 2 * d, 2)} op_sel_hi:[1,0,1]")
        p("s_barrier")
        for m in range(4):
            for n in range(2): p(f"ds_read_b128 {vr(144 + 4 * (4 * n + m), 4)}, v37 offset:{4096 + 1024 * (4 * n + m)}")
        for m in range(4):
            a, b = self.acc(m, 0), self.acc(m, 1)
            for r in (a, a + 2, b, b + 2): p(f"v_pk_add_f32 {vr(r, 2)}, {vr(r, 2)}, {vr(r - 80, 2)}")
            t = 72 + 4 * m
            for i, r in enumerate((a, a + 2, b, b + 2)): p(f"v_cvt_pk_bf16_f32 v{t + i}, v{r}, v{r + 1}")
            p(f"v_permlane16_swap_b32 v{t}, v{t + 2}")
            p(f"v_permlane16_swap_b32 v{t + 1}, v{t + 3}")
            p(f"buffer_store_dwordx4 {vr(t, 4)}, v36, s[{S_AUX}:{S_AUX+3}], s42 offen {st}")
            if m < 3: p(f"s_add_u32 s42, s42, {16 * 2048}")


def stats_code(p, c, xs, gs, wave):
    W = f"s[{S_WS}:{S_WS+3}]"
    st = c.opt.get('stflag', '')
    q = QKV()
    for t in range(2, 8): QKV.h_mix(q, p, c, t)
    QKV.h_extra(q, p, c, 7)

class W1F(W1):
    xbar = False
    h_steps = (0, 1, 2, 3, 4, 5)
    def h_first(self, p, c): pass
    def g_first(self, p, c, pf=True):
        srd(p, S_A, ptr('x'), 2048 * 2048)
        srd(p, S_B, ptr('gate'), 2048)
        p(f"""
        s_lshl_b32 s48, s{S_MT3}, 4
        s_add_u32 s48, s48, s{S_NT3}
        s_lshl_b32 s48, s48, 3
        s_lshl_b32 s3, s{S_WID}, 1
        s_add_u32 s48, s48, s3
        s_lshl_b32 s3, s48, 11
        buffer_load_dwordx4 v[64:67], v1, s[{S_A}:{S_A+3}], s3 offen
        buffer_load_dwordx4 v[68:71], v1, s[{S_A}:{S_A+3}], s3 offen offset:1024
        buffer_load_dwordx4 v[72:75], v1, s[{S_A}:{S_A+3}], s3 offen offset:2048
        buffer_load_dwordx4 v[76:79], v1, s[{S_A}:{S_A+3}], s3 offen offset:3072
        buffer_load_dwordx4 v[80:83], v1, s[{S_B}:{S_B+3}], 0 offen
        buffer_load_dwordx4 v[84:87], v1, s[{S_B}:{S_B+3}], 0 offen offset:1024
        """)
        if pf: g_prefetch(p, c, [('w1', 2 * MB, i, 1) for i in range(2)])
    def early(self, p, c): stats_code(p, c, 64, 80, S_WID)
    def h_poll(self, c, t):
        if t == 0: return poll_init(c)
        if t == 5: return poll_flags(c, F_ST, S_MT2)
    def h_post(self, p, c, t): pass
    def h_extra(self, p, c, t):
        L = c.opt.get('w1pf', {1: [0], 2: [1], 3: [2]})
        return g_prefetch(p, c, [('wqkv', 6 * MB, i, 1) for i in L[t]]) if t in L else 0
    def g_sites(self, c):
        def pub(p):
            p("s_waitcnt vmcnt(0)")
            publish(p, c, F_ST, False)
        def ld(p):
            ho = c.opt.get('hoflag', '')
            p(f"""
            s_lshl_b32 s3, s{S_MT2}, 9
            s_lshl_b32 s4, s{S_WM}, 8
            s_add_u32 s3, s3, s4
            s_add_u32 s3, s3, {WS_ST1}
            s_add_u32 s4, s3, 8192
            v_and_b32 v36, 15, v0
            v_lshlrev_b32 v36, 2, v36
            """)
            for m in range(4):
                p(f"buffer_load_dword v{144 + 8 * m}, v36, s[{S_WS}:{S_WS+3}], s3 offen offset:{64 * m} {ho}")
                p(f"buffer_load_dword v{145 + 8 * m}, v36, s[{S_WS}:{S_WS+3}], s4 offen offset:{64 * m} {ho}")
        return {1: pub, 6: ld}
    lds_consts = False

class QKV2(QKV):
    h_steps = (0,)
    zero_first = True
    def h_setup(self, p, c, first=False):
        srd(p, S_A, ptr('x'), 2048 * 2048)
        QKV.h_setup(self, p, c)
    def g_sites(self, c): return {}
    def h_poll(self, c, t): return None
    def h_mix(self, p, c, t): pass
    def h_extra(self, p, c, t):
        if t == 0: return g_prefetch(p, c, c.opt.get('qpf', [('wqkv', 6 * MB, 3, 3)]))
        if t == 9: return g_prefetch(p, c, [('w2', 2 * MB, 0, 2)])
        return 0
    h_steps = (0, 9)

class W2X(W2):
    xbar = True
    pubstep = 2

class QKVG(QKV):
    h_steps = (0, 1, 2, 3, 4, 5, 6)
    def h_first(self, p, c): srd(p, S_A, ptr('x'), 2048 * 2048)
    def g_first(self, p, c):
        W1F.g_first(self, p, c, False)
        QKV.g_first(self, p, c)
    def early(self, p, c): stats_code(p, c, 64, 80, S_WID)
    def h_mix(self, p, c, t): pass
    def h_extra(self, p, c, t): return QKV.h_extra(self, p, c, t) if t < 7 else 0
    def g_sites(self, c):
        def pub(p):
            p("s_waitcnt vmcnt(0)")
            publish(p, c, F_ST, False)
        return {7: pub}
```

```python
from mk import *
from attn import *
from g1 import *
PF3 = ([('w2', 0, 2), ('w3', 0, 4)], [('w3', 4, 3), ('w4', 0, 1), ('w4', 3, 2)], [('w4', 1, 2), ('w4', 5, 2), ('wo', 0, 2)])
def P1(): return [[G1, Attn(0, (8, 12), True, pf=PF3[0]), W2, Attn(20, (8, 12), pf=PF3[1]), W3, Attn(40, (12, 12), pf=PF3[2]), W4(4), WO(4, True, 1)]]
def P2(Q=QKVG): return [[Q, W1, Attn(0, (8, 12), pf=PF3[0]), W2, Attn(20, (8, 12), pf=PF3[1]), W3, Attn(40, (12, 12), pf=PF3[2]), W4(4), WO(4, True, 1)]]
def P3(): return [[W1F, QKV2, W2X, Attn(0, (8, 12, 12), defer1=False, pf=[('w3', 0, 7), ('w4', 0, 1)]), W3,
                   Attn(32, (12, 8, 12), pf=[('w4', 3, 2), ('w4', 1, 2), ('w4', 5, 2), ('wo', 0, 2)]), W4(4), WO(4, True, 1)]]
P = P2
base = dict(stflag='sc1', hoflag='sc1', persist=1, spinsleep=4)
if __name__ == "__main__":
    make("p4a.s", P(), dict(base, stamp=1))
    make("p4b.s", P(), dict(base, hstamp=1))
    make("p4f.s", P(), dict(base, final=1))
    make("p4s.s", P(), dict(base, sstamp=1))
    make("p4n.s", P(), dict(base, hstamp=1, pf0=0, nqpf=0, qbfl='nt'))
    make("p4m.s", P(), dict(base, hstamp=1, pf0=0, nqpf=0))
    make("p4c.s", P(), dict(base, spincnt=1))
```

```python
from mk4 import *
p, li = gen_kernel("main_kernel", [T() for T in P2()[0]], dict(base))
assemble([("main_kernel", p, li, 256)], "p7a.s")
assemble([("main_kernel", p, li, 256)] * 2, "p7b.s")
assemble([("main_kernel", p, li, 256)] * 3, "p7c.s")
q = Prog(); q("s_endpgm")
assemble([("tiny_kernel", q, dict(grid=1, block=64, lds=0), 8), ("main_kernel", p, li, 256)], "p7d.s")
```

```python
from tasks import *

A_C, A_S, A_K, A_V, A_P, A_SEL, A_AD = 48, (64, 80), 96, (104, 112), (120, 124), 144, 148
A_V0 = (104, 108, 112, 116); A_V1 = (212, 216, 220, 224)
V_G = 31

A_IDX = 149
class Attn(Task):
    nsteps = 2
    puball = True
    pub_it = 1
    adv = 16384
    def __init__(self, b0, stages, exposed=False, late=False, defer1=None, pf=(), local=False, pub_it=1):
        self.b0 = b0; self.stages = stages; self.ncall = 0; self.pfl = pf
        self.nsteps = len(stages)
        self.NI = sum(stages) // 4
        self.bars = [sum(stages[:i + 1]) // 4 - 1 for i in range(len(stages))]
        self.first = b0 == 0; self.last = b0 + sum(stages) == 64
        self.pubkind = F_ATT if self.last else None
        self.exposed = exposed; self.local = local; self.pub_it = pub_it
        self.late = late
        self.defer1 = (self.first or self.last) if defer1 is None else defer1
        if self.first: self.poll = lambda c: poll_flags(c, F_QKV, S_HEAD, nprod=8) if c.local else poll_flags(c, F_QKV, S_HEAD, shift=1)
    def __call__(self): return self
    def early(self, p, c):
        ho = c.opt.get('hoflag', '')
        W = f"s[{S_WS}:{S_WS+3}]"
        if self.first and not self.exposed and not self.local:
            p(f"""
            s_lshl_b32 s3, s{S_HEAD}, 17
            s_lshl_b32 s4, s{S_BLK}, 11
            s_add_u32 s3, s3, s4
            buffer_load_dwordx4 {vr(V_Q, 4)}, v1, {W}, s3 offen {ho}
            buffer_load_dwordx4 {vr(V_Q + 4, 4)}, v1, {W}, s3 offen offset:1024 {ho}
            """)
        if self.last:
            p(f"""
            s_lshl_b32 s3, s{S_BLK}, 7
            s_add_u32 s3, s3, {WS_G}
            v_and_b32 v{V_G}, 31, v0
            v_lshlrev_b32 v{V_G}, 2, v{V_G}
            buffer_load_dword v{V_G}, v{V_G}, {W}, s3 offen {ho}
            """)
    def h_post_dep(self, p, c): self.early(p, c)
    def h_setup(self, p, c, first=False):
        b0 = self.b0 + (self.stages[0] if self.local else 0)
        p(f"""
        s_lshl_b32 s3, s{S_HEAD}, 18
        s_add_u32 s3, s3, {WS_KV}
        s_add_u32 s{S_A}, s{ptr('ws')}, s3
        s_addc_u32 s{S_A+1}, s{ptr('ws')+1}, 0
        s_mov_b32 s{S_A+2}, 0x40000
        s_mov_b32 s{S_A+3}, 0x20000
        s_lshl_b32 s{S_LD[0]}, s{S_WM}, 12
        s_add_u32 s{S_SO[0]}, s{S_LD[0]}, {b0 * 4096}
        """)
        if c.local and c.opt.get('skip', 1):
            p(f"""
            s_lshl_b32 s101, s{S_QB}, 15
            s_add_u32 s101, s101, s{S_LD[0]}
            s_sub_u32 s3, s{S_SO[0]}, 32768
            s_cmp_ge_u32 s3, s101
            s_cselect_b32 s{S_SO[0]}, s{S_SO[0]}, s3
            """)
        elif c.local:
            p(f"s_lshl_b32 s3, s{S_QB}, 15\ns_add_u32 s{S_SO[0]}, s{S_SO[0]}, s3\ns_and_b32 s{S_SO[0]}, s{S_SO[0]}, 0x3ffff")
    def dma_atoms(self, c):
        ho = c.opt.get('qkvld', c.opt.get('hoflag', ''))
        n = self.stages[self.ncall]; self.ncall += 1
        D = []
        if self.exposed and self.ncall == 1:
            D = [f"buffer_load_dwordx4 v1, s[{S_WS}:{S_WS+3}], s3 offen offset:{1024 * i} {ho} lds" for i in range(4)]
            D[0] = f"""
            s_lshl_b32 s3, s{S_HEAD}, 17
            s_lshl_b32 s4, s{S_QB}, 14
            s_add_u32 s3, s3, s4
            s_add_u32 s3, s3, s{S_LD[0]}
            s_add_u32 s4, s{S_DMA}, s{S_LD[0]}
            s_add_u32 m0, s4, 32768
            """ + D[0]
        for g in range(n // 4):
            G = [f"buffer_load_dwordx4 v1, s[{S_A}:{S_A+3}], s{S_SO[0]} offen offset:{1024 * i} {ho} lds" for i in range(4)]
            G[0] = (f"s_add_u32 m0, s{S_DMA}, s{S_LD[0]}\n" if g == 0 else "s_add_u32 m0, m0, 16384\n") + G[0]
            if c.local and c.opt.get('skip', 1):
                G[-1] += f"\ns_add_u32 s{S_SO[0]}, s{S_SO[0]}, 16384\ns_cmp_eq_u32 s{S_SO[0]}, s101\ns_cselect_b32 s3, 32768, 0\ns_add_u32 s{S_SO[0]}, s{S_SO[0]}, s3"
            else:
                G[-1] += f"\ns_add_u32 s{S_SO[0]}, s{S_SO[0]}, 16384\ns_and_b32 s{S_SO[0]}, s{S_SO[0]}, 0x3ffff"
            D += G
        D[-1] += "\n" + "\n".join(slot_adv_dma())
        return D
    def sel_setup(self, p):
        p(f"""
        v_mov_b32 v{A_SEL+1}, 0x3f803f80
        v_and_b32 v{A_IDX}, 6, v0
        v_cmp_eq_u32 vcc, 0, v{A_IDX}
        v_cndmask_b32 v{A_SEL}, 0, v{A_SEL+1}, vcc
        v_cmp_eq_u32 vcc, 4, v{A_IDX}
        v_cndmask_b32 v{A_SEL+2}, 0, v{A_SEL+1}, vcc
        v_and_b32 v{A_IDX}, 1, v0
        v_mov_b32 v{A_SEL+3}, v{A_SEL+2}
        v_mov_b32 v{A_SEL+1}, v{A_SEL}
        v_mul_u32_u24 v{A_IDX}, 0xaaaa, v{A_IDX}
        v_add_u32 v{A_IDX}, 0x4444, v{A_IDX}
        v_lshl_or_b32 v{A_IDX}, v{A_IDX}, 16, v{A_IDX}
        """)
    def LL(self): return f"v_smfmac_f32_16x16x64_bf16 {vr(V_L, 4)}, {vr(A_SEL, 4)}, {vr(A_P[0], 8)}, v{A_IDX}"
    def rowmax(self, p, s, dst, init=None):
        if init is None:
            p(f"v_max3_f32 v{dst}, v{s}, v{s+1}, v{s+2}")
            p(f"v_max_f32 v{dst}, v{dst}, v{s+3}")
            k = 4
        else: k = 0
        for i in range(k, 16, 2): p(f"v_max3_f32 v{dst}, v{dst}, v{s+i}, v{s+i+1}")
    def presetup(self, p, c):
        self.sel_setup(p)
        for i in range(4):
            p(f"v_mov_b32 v{A_P[0] + i}, 0")
            p(f"v_mov_b32 v{A_P[1] + i}, 0")
            p(f"v_mov_b32 v{A_V1[3] + i}, 0")
        if self.first:
            for i in range(20): p(f"v_mov_b32 v{V_O + i}, 0")
    def setup(self, p, c, pre=False):
        p(f"v_add_u32 v{A_AD}, s{S_RD}, v1")
        if self.exposed or self.local:
            p(f"""
            s_lshl_b32 s3, s{S_WID}, 11
            v_add_u32 v{A_C}, s3, v{A_AD}
            ds_read_b128 {vr(V_Q, 4)}, v{A_C} offset:32768
            ds_read_b128 {vr(V_Q + 4, 4)}, v{A_C} offset:{32768 + 1024}
            """)
        p(f"""
        ds_read_b128 {vr(A_K, 4)}, v{A_AD}
        ds_read_b128 {vr(A_K + 4, 4)}, v{A_AD} offset:1024
        ds_read_b128 {vr(A_V0[0], 4)}, v{A_AD} offset:2048
        ds_read_b128 {vr(A_V1[0], 4)}, v{A_AD} offset:3072
        ds_read_b128 {vr(A_V0[1], 4)}, v{A_AD} offset:{4096 + 2048}
        ds_read_b128 {vr(A_V1[1], 4)}, v{A_AD} offset:{4096 + 3072}
        """)
        if not pre: self.presetup(p, c)
        if self.first:
            p(mfma32(A_S[1], A_K, V_Q, "0"))
            p(mfma32(A_S[1], A_K + 4, V_Q + 4))
            self.rowmax(p, A_S[1], V_M)
            p(f"""
            v_mov_b32 v{A_C}, v{V_M}
            v_permlane32_swap_b32 v{V_M}, v{A_C}
            v_max_f32 v{V_M}, v{V_M}, v{A_C}
            v_sub_f32 v{V_M}, 0, v{V_M}
            """)
        for i in range(16): p(f"v_mov_b32 v{A_C + i}, v{V_M}")
        p(mfma32(A_S[0], A_K, V_Q, A_C))
        p(mfma32(A_S[0], A_K + 4, V_Q + 4))
        p(f"""
        ds_read_b128 {vr(A_K, 4)}, v{A_AD} offset:4096
        ds_read_b128 {vr(A_K + 4, 4)}, v{A_AD} offset:{4096 + 1024}
        s_nop 7
        s_waitcnt lgkmcnt(0)
        """)
    def tile(self, c, b):
        noff = ((b + 2) % 4) * 4096
        S = A_S[b % 2]; Sn = A_S[(b + 1) % 2]
        rd = lambda d, o: f"ds_read_b128 {vr(d, 4)}, v{A_AD} offset:{noff + o}"
        d = dict(k0=rd(A_K, 0), k1=rd(A_K + 4, 1024), v0=rd(A_V0[(b + 2) % 4], 2048), v1=rd(A_V1[(b + 2) % 4], 3072),
                 O1=mfma32(V_O, A_V1[(b - 1) % 4], A_P[1]), LL=self.LL(),
                 O0=mfma32(V_O, A_V0[b], A_P[0]),
                 Sa=mfma32(Sn, A_K, V_Q, A_C), Sb=mfma32(Sn, A_K + 4, V_Q + 4),
                 w0="s_waitcnt lgkmcnt(0)", w1="s_waitcnt lgkmcnt(1)", w2="s_waitcnt lgkmcnt(2)")
        E = [f"v_exp_f32 v{S + i}, v{S + i}" for i in range(16)]
        C = [f"v_cvt_pk_bf16_f32 v{A_P[i // 4] + i % 4}, v{S + 2 * i}, v{S + 2 * i + 1}" for i in range(8)]
        L = []
        for t in c.opt.get('aorder', "Sa k0 e3 Sb k1 e3 LL v0 e2 O1 v1 c4 e4 O0 w2 e4 c4").split():
            if t[0] == 'e': L += E[:int(t[1:])]; E = E[int(t[1:]):]
            elif t[0] == 'c': L += C[:int(t[1:])]; C = C[int(t[1:]):]
            else: L.append(d[t])
        assert not E and not C
        return L
    def mix(self, T, D):
        pos = [i for i, x in enumerate(T) if x.startswith('v_mfma') or x.startswith('v_smfmac')]
        slots = [0] * len(T)
        for k, i in enumerate(pos): slots[i] = ((k + 1) * len(D)) // len(pos) - (k * len(D)) // len(pos)
        return interleave(T, D, slots)
    def drain(self, p):
        p(mfma32(V_O, A_V1[3], A_P[1]))
        p(self.LL())
        p("s_waitcnt lgkmcnt(0)")
    def g_setup(self, p, c): pass
    def prefetch(self, p, c):
        g_prefetch(p, c, [(nm, {'w2': 2, 'wo': 2, 'w3': 7, 'w4': 7}[nm] * MB, a, n) for nm, a, n in self.pfl])
        code_prefetch(p, c, True)
    def loop(self, p, c, events, pf, cont_in=False, cont_out=False):
        NI = self.NI
        L = c.lab("al"); Lm = c.lab("am"); Lx = c.lab("ax")
        mask = sum(1 << (NI - it) for it in events)
        p(f"s_mov_b32 s{S_CNT}, {NI + (1 if cont_in else 0)}")
        if not cont_in: p(f"s_branch {Lm}")
        p(".p2align 5")
        p.label(L)
        p.add(self.mix(self.tile(c, 2), pf(0)))
        p.add(self.mix(self.tile(c, 3), [f"s_sub_u32 s{S_CNT}, s{S_CNT}, 1\ns_cmp_eq_u32 s{S_CNT}, 0"]))
        if not cont_out: p(f"s_cbranch_scc1 {Lx}")
        p.label(Lm)
        p.add(self.mix(self.tile(c, 0), pf(1)))
        p.add(self.mix(self.tile(c, 1), pf(0) + [f"s_bitcmp1_b32 {hex(mask)}, s{S_CNT}"]))
        p(f"v_add_u32 v{A_AD}, {self.adv}, v{A_AD}")
        p(f"s_cbranch_scc0 {L}")
        its = sorted(events)
        for i, it in enumerate(its):
            Ln = c.lab("an")
            if i < len(its) - 1: p(f"s_cmp_eq_u32 s{S_CNT}, {NI - it}\ns_cbranch_scc0 {Ln}")
            events[it](p)
            if cont_out and i == len(its) - 1: return
            p(f"s_branch {L}")
            if i < len(its) - 1: p.label(Ln)
        p.label(Lx)
        self.drain(p)
    def next_slot(self, p):
        p.add(slot_adv_rd())
        p(f"v_add_u32 v{A_AD}, s{S_RD}, v1")
    def g_body(self, p, c, prev):
        self.setup(p, c)
        pub = prev is not None and prev.pubkind is not None and c.opt.get('persist')
        def ev(it, bar):
            def pb(p):
                if pub and it == self.pub_it:
                    p(f"s_waitcnt vmcnt({self.drain_n(c)})")
                    publish(p, c, prev.pubkind, False)
                    self.prefetch(p, c)
            def f(p):
                if not self.local: pb(p)
                if bar:
                    self.next_slot(p)
                    p("s_waitcnt lgkmcnt(0)\ns_barrier")
                if self.local: pb(p)
            return f
        bars = self.bars
        E = {it: ev(it, it in bars) for it in set(bars) | ({self.pub_it} if pub else set())}
        if getattr(prev, 'deferred', None): E[0] = lambda p: p.add(prev.deferred)
        self.loop(p, c, E, lambda k: [])
    def h_body(self, p, c, nxt, skip0=False):
        assert not skip0
        if self.ncall == 1: p.add(self.dma_atoms(c))
        if self.local:
            p(f"s_setprio 1\ns_mov_b32 s{S_RD}, s{S_DMA}")
            p.add(slot_adv_dma()); self.ncall = 1
        else:
            p(f"""
            s_add_u32 s{S_RD}, s{S_DMA}, {SLOT}
            s_cmp_eq_u32 s{S_RD}, {SLOT * NSLOT}
            s_cselect_b32 s{S_RD}, 0, s{S_RD}
            """)
        three = len(self.stages) == 3
        def prep(p):
            if not nxt: return 0
            nxt.h_setup2(p, c)
            p(f"s_mov_b32 s44, s{S_DMA}")
            p.add(slot_adv_dma())
            p(f"s_mov_b32 s45, s{S_DMA}")
            p.add(slot_adv_dma())
            D = nxt.dma_part(c, 1, 44)
            p.add(D)
            return nvm(D)
        if three:
            D = self.dma_atoms(c); p.add(D); n0 = nvm(D)
        elif not self.local: n0 = prep(p)
        self.setup(p, c, self.local)
        def e0(p):
            self.next_slot(p)
            p(f"s_waitcnt vmcnt({n0}) lgkmcnt(0)\ns_barrier")
            hstep_stamp(p, c)
        def e0b(p): self.n1 = prep(p)
        def e1(p):
            self.next_slot(p)
            if self.local:
                if c.opt.get('fine'): hstep_stamp(p, c)
                self.h_setup(p, c)
                P = self.poll(c)
                if not c.opt.get('apoll'): P.issue(p)
                P.check(p)
                if c.opt.get('fine'): hstep_stamp(p, c)
                p.add(self.dma_atoms(c))
                if c.opt.get('fine'): hstep_stamp(p, c)
                self.n1 = prep(p)
                if c.opt.get('fine'):
                    hstep_stamp(p, c)
                    p(f"s_waitcnt vmcnt({self.n1})")
                    hstep_stamp(p, c)
            p(f"s_waitcnt vmcnt({self.n1 if (three or self.local) else n0}) lgkmcnt(0)\ns_barrier")
            hstep_stamp(p, c)
            if c.opt.get('hprio', 1): p("s_setprio 1")
        def e2(p):
            if nxt: p.add(nxt.dma_part(c, 1, 45))
            if nxt and nxt.poll: nxt.poll(c).issue(p)
        def e3(p):
            self.next_slot(p)
            p("s_setprio 0")
            n1 = 0
            if nxt:
                if nxt.poll: nxt.poll(c).check(p)
                nxt.h_post_dep(p, c)
                p.add(nxt.dma_part(c, 0, 44))
                D1 = nxt.dma_part(c, 0, 45); n1 = nvm(D1)
                p.add(D1)
                a = Atoms()
                nxt.first_extra = nxt.h_late(a, c)
                p.add(a.L); n1 += nxt.first_extra
            p(f"s_waitcnt vmcnt({n1}) lgkmcnt(0)\ns_barrier")
            hstep_stamp(p, c)
            if nxt: p.add(nxt.dma_atoms(c))
        E = {self.bars[-2]: e1, self.NI - 2: e2, self.NI - 1: e3}
        if self.local and c.opt.get('apoll'): E[0] = lambda p: self.poll(c).issue(p)
        if three:
            assert self.bars[1] - 1 > self.bars[0]
            E[self.bars[0]] = e0; E[self.bars[1] - 1] = e0b
        self.loop(p, c, E, lambda k: [])
        return nxt is not None
    def h_epi(self, p, c): self.g_epi(p, c)
    def g_epi(self, p, c):
        if not self.last: return
        st = c.opt.get('stflag', '')
        W = f"s[{S_WS}:{S_WS+3}]"
        Lok = c.lab("ok")
        p(f"v_mov_b32 v{A_C}, 0")
        for i in range(16): p(f"v_fma_f32 v{A_C}, v{V_O + i}, 0, v{A_C}")
        p(f"""
        v_add_f32 v{A_C}, v{A_C}, v{V_L}
        v_add_f32 v{A_C}, v{A_C}, v{V_L+1}
        v_mov_b32 v{A_C+1}, {hexf(2.0 ** c.opt.get('lmaxlog', 64))}
        v_cmp_nlt_f32 vcc, v{A_C}, v{A_C+1}
        s_cbranch_vccz {Lok}
        """)
        self.fallback(p, c)
        p.label(Lok)
        p(f"""
        v_add_f32 v{A_C}, v{V_L}, v{V_L+1}
        v_rcp_f32 v{A_C}, v{A_C}
        v_and_b32 v{A_C+2}, 15, v0
        v_bfe_u32 v{A_C+3}, v0, 4, 1
        v_mul_f32 v{A_C}, v{A_C}, v{V_G}
        v_lshrrev_b32 v{A_C+4}, 5, v0
        v_mul_u32_u24 v{A_C+3}, {AF_PITCH}, v{A_C+3}
        v_lshl_add_u32 v{A_C+3}, v{A_C+2}, 4, v{A_C+3}
        v_lshl_add_u32 v{A_C+3}, v{A_C+4}, 8, v{A_C+3}
        s_mul_i32 s3, s{S_BLK}, {2 * AF_PITCH}
        s_lshl_b32 s4, s{S_HEAD}, 10
        s_add_u32 s3, s3, s4
        s_add_u32 s3, s3, {WS_AF + 112 * 1024}
        """)
        for i in range(8): p(f"v_pk_mul_f32 {vr(V_O + 2 * i, 2)}, {vr(V_O + 2 * i, 2)}, {vr(A_C, 2)} op_sel_hi:[1,0]")
        for i in range(8): p(f"v_cvt_pk_bf16_f32 v{A_C + 8 + i}, v{V_O + 2 * i}, v{V_O + 2 * i + 1}")
        for u in range(2):
            p(f"buffer_store_dwordx4 {vr(A_C + 8 + 4 * u, 4)}, v{A_C+3}, {W}, s3 offen offset:{512 * u} {st}")
    def fallback(self, p, c):
        ho = c.opt.get('hoflag', '')
        W = f"s[{S_WS}:{S_WS+3}]"
        L1 = c.lab("fb"); L2 = c.lab("fb")
        S = A_S[0]
        p(f"""
        s_lshl_b32 s5, s{S_HEAD}, 18
        s_add_u32 s5, s5, {WS_KV}
        s_mov_b32 s6, s5
        s_mov_b32 s7, 64
        v_mov_b32 v{V_M}, 0xff800000
        """)
        p.label(L1)
        p(f"""
        buffer_load_dwordx4 {vr(A_K, 4)}, v1, {W}, s6 offen {ho}
        buffer_load_dwordx4 {vr(A_K + 4, 4)}, v1, {W}, s6 offen offset:1024 {ho}
        s_waitcnt vmcnt(0)
        """)
        p(mfma32(S, A_K, V_Q, "0"))
        p(mfma32(S, A_K + 4, V_Q + 4))
        self.rowmax(p, S, V_M, True)
        p(f"s_add_u32 s6, s6, 4096\ns_sub_u32 s7, s7, 1\ns_cmp_lg_u32 s7, 0\ns_cbranch_scc1 {L1}")
        p(f"""
        v_mov_b32 v{A_C}, v{V_M}
        v_permlane32_swap_b32 v{V_M}, v{A_C}
        v_max_f32 v{V_M}, v{V_M}, v{A_C}
        v_sub_f32 v{V_M}, 0, v{V_M}
        s_mov_b32 s7, 64
        """)
        for i in range(16): p(f"v_mov_b32 v{A_C + i}, v{V_M}")
        for i in range(20): p(f"v_mov_b32 v{V_O + i}, 0")
        p.label(L2)
        p(f"""
        buffer_load_dwordx4 {vr(A_K, 4)}, v1, {W}, s5 offen {ho}
        buffer_load_dwordx4 {vr(A_K + 4, 4)}, v1, {W}, s5 offen offset:1024 {ho}
        buffer_load_dwordx4 {vr(A_V[0], 4)}, v1, {W}, s5 offen offset:2048 {ho}
        buffer_load_dwordx4 {vr(A_V[0] + 4, 4)}, v1, {W}, s5 offen offset:3072 {ho}
        s_waitcnt vmcnt(0)
        """)
        p(mfma32(S, A_K, V_Q, A_C))
        p(mfma32(S, A_K + 4, V_Q + 4))
        for i in range(16): p(f"v_exp_f32 v{S + i}, v{S + i}")
        for i in range(8): p(f"v_cvt_pk_bf16_f32 v{A_P[i // 4] + i % 4}, v{S + 2 * i}, v{S + 2 * i + 1}")
        p(mfma32(V_O, A_V[0], A_P[0]))
        p(mfma32(V_O, A_V[0] + 4, A_P[1]))
        p(self.LL())
        p(f"s_add_u32 s5, s5, 4096\ns_sub_u32 s7, s7, 1\ns_cmp_lg_u32 s7, 0\ns_cbranch_scc1 {L2}")
```

```python
from attn import *
B_O, B_Q, B_L, B_M, B_G = (192, 208), (224, 232), (240, 244), (248, 249), (250, 251)
B_C, B_V0, B_V1 = (48, 2), (104, 108), (112, 116)

class AttnH(Attn):
    defer1 = True
    def __init__(self, b0, stages, pf=(), local=False):
        Attn.__init__(self, b0, stages, pf=pf, local=local, defer1=True)
        assert len(stages) == 2
        self.NI = sum(stages) // 2
        self.bars = [stages[0] // 2 - 1, self.NI - 1]
    def early(self, p, c): pass
    def h_post_dep(self, p, c):
        if self.last:
            p(f"""
            s_lshl_b32 s3, s{S_QB}, 10
            s_lshl_b32 s4, s{S_WM}, 8
            s_add_u32 s3, s3, s4
            s_add_u32 s3, s3, {WS_G}
            v_and_b32 v{T0}, 31, v0
            v_lshlrev_b32 v{T0}, 2, v{T0}
            buffer_load_dword v{B_G[0]}, v{T0}, s[{S_WS}:{S_WS+3}], s3 offen {c.opt.get('hoflag', '')}
            buffer_load_dword v{B_G[1]}, v{T0}, s[{S_WS}:{S_WS+3}], s3 offen offset:128 {c.opt.get('hoflag', '')}
            """)
    def LLq(self, q): return f"v_smfmac_f32_16x16x64_bf16 {vr(B_L[q], 4)}, {vr(A_SEL, 4)}, {vr(A_P[0], 8)}, v{A_IDX}"
    def cblocks(self, p, qs=(0, 1)):
        for q in qs:
            for i in range(16): p(f"v_mov_b32 v{B_C[q] + i}, v{B_M[q]}")
    def presetup(self, p, c):
        self.sel_setup(p)
        for i in range(8): p(f"v_mov_b32 v{A_P[0] + i}, 0")
        for i in range(4): p(f"v_mov_b32 v{B_V1[1] + i}, 0")
        if self.first:
            for i in range(32): p(f"v_mov_b32 v{B_O[0] + i}, 0")
            for i in range(8): p(f"v_mov_b32 v{B_L[0] + i}, 0")
        else: self.cblocks(p)
    def negmax(self, p, q, tmp):
        p(f"""
        v_mov_b32 v{tmp}, v{B_M[q]}
        v_permlane32_swap_b32 v{B_M[q]}, v{tmp}
        v_max_f32 v{B_M[q]}, v{B_M[q]}, v{tmp}
        v_sub_f32 v{B_M[q]}, 0, v{B_M[q]}
        """)
    def setup(self, p, c):
        p(f"v_add_u32 v{A_AD}, s{S_RD}, v1")
        p(f"""
        ds_read_b128 {vr(A_K, 4)}, v{A_AD}
        ds_read_b128 {vr(A_K + 4, 4)}, v{A_AD} offset:1024
        """)
        if self.first:
            p(f"s_lshl_b32 s3, s{S_WM}, 12\nv_add_u32 v{T0}, s3, v{A_AD}")
            for i in range(4): p(f"ds_read_b128 {vr(B_Q[0] + 4 * i, 4)}, v{T0} offset:{32768 + 1024 * i}")
        p(f"""
        ds_read_b128 {vr(B_V0[0], 4)}, v{A_AD} offset:2048
        ds_read_b128 {vr(B_V1[0], 4)}, v{A_AD} offset:3072
        """)
        if self.first:
            for q in range(2):
                p(mfma32(A_S[q], A_K, B_Q[q], "0"))
                p(mfma32(A_S[q], A_K + 4, B_Q[q] + 4))
            for q in range(2):
                self.rowmax(p, A_S[q], B_M[q])
                self.negmax(p, q, T0)
            self.cblocks(p)
        p(mfma32(A_S[0], A_K, B_Q[0], B_C[0]))
        p(mfma32(A_S[0], A_K + 4, B_Q[0] + 4))
        p("s_nop 9\ns_waitcnt lgkmcnt(0)")
    def tile(self, c, t, noff=None):
        q = t % 2; b = t // 2
        if noff is None: noff = 4096 if b == 0 else 0
        S = A_S[q]; Sn = A_S[q ^ 1]
        rd = lambda d, o: f"ds_read_b128 {vr(d, 4)}, v{A_AD} offset:{noff + o}"
        pb = b if q == 1 else b ^ 1
        d = dict(O1=mfma32(B_O[q ^ 1], B_V1[pb], A_P[1]), LL=self.LLq(q ^ 1), O0=mfma32(B_O[q], B_V0[b], A_P[0]),
                 Sa=mfma32(Sn, A_K, B_Q[q ^ 1], B_C[q ^ 1]), Sb=mfma32(Sn, A_K + 4, B_Q[q ^ 1] + 4))
        if q == 0: d.update(r0=rd(A_K, 0), r1=rd(A_K + 4, 1024), w="s_waitcnt lgkmcnt(0)")
        else: d.update(r0=rd(B_V0[b ^ 1], 2048), r1=rd(B_V1[b ^ 1], 3072), w=None)
        E = [f"v_exp_f32 v{S + i}, v{S + i}" for i in range(16)]
        C = [f"v_cvt_pk_bf16_f32 v{A_P[i // 4] + i % 4}, v{S + 2 * i}, v{S + 2 * i + 1}" for i in range(8)]
        L = []
        for x in c.opt.get('aorder', "Sa r0 e3 Sb r1 e3 LL e2 O1 c4 e4 w O0 e4 c4").split():
            if x[0] == 'e': L += E[:int(x[1:])]; E = E[int(x[1:]):]
            elif x[0] == 'c': L += C[:int(x[1:])]; C = C[int(x[1:]):]
            elif d[x]: L.append(d[x])
        return L
    adv = 8192
    def drain(self, p):
        p(mfma32(B_O[1], B_V1[1], A_P[1]))
        p(self.LLq(1))
        p("s_waitcnt lgkmcnt(0)")
    def g_body(self, p, c, prev):
        nxt = self.nxt
        p(f"""
        s_mov_b32 s{S_WM}, s{S_WID}
        s_mov_b32 s{S_DMA}, s{S_RD}
        """)
        p.add(slot_adv_dma())
        sv = self.local; self.local = True; self.h_setup(p, c); self.local = sv
        if self.local:
            P = self.poll(c); P.issue(p); P.check(p)
        self.ncall = 1
        p.add(self.dma_atoms(c))
        if getattr(prev, 'deferred', None): p.add(prev.deferred)
        nxt.h_setup(p, c)
        p("s_waitcnt vmcnt(0)")
        publish(p, c, prev.pubkind, False)
        self.prefetch(p, c)
        p.add(slot_adv_rd())
        p("s_barrier")
        P = nxt.poll(c); P.issue(p); P.check(p)
        p.add(nxt.dma_atoms(c))
        p.add(nxt.dma_atoms(c))
        p(f"s_and_b32 s{S_WM}, s{S_WID}, 1")
        p.add(slot_adv_rd())
        nxt.g_setup(p, c); nxt.g_setup = lambda p, c: None
        p("s_waitcnt vmcnt(0)\ns_barrier")
    def g_epi(self, p, c): pass
    def h_body(self, p, c, nxt, skip0=False):
        if self.local: p(f"s_mov_b32 s{S_RD}, s{S_DMA}")
        else:
            p(f"""
            s_cmp_eq_u32 s{S_DMA}, 0
            s_cselect_b32 s{S_RD}, {SLOT * NSLOT}, s{S_DMA}
            s_sub_u32 s{S_RD}, s{S_RD}, {SLOT}
            """)
        self.setup(p, c)
        def e1(p):
            self.next_slot(p)
            nxt.h_setup(p, c)
            nxt.skip_stages(p, c, 2)
            p("s_waitcnt lgkmcnt(0)\ns_barrier")
            hstep_stamp(p, c)
        def e3(p):
            p(f"s_mov_b32 s{S_DMA}, s{S_RD}")
            self.next_slot(p)
            p("s_waitcnt lgkmcnt(0)\ns_barrier")
            hstep_stamp(p, c)
            a = Atoms()
            nxt.first_extra = nxt.h_late(a, c)
            p.add(nxt.dma_atoms(c))
            p.add(a.L)
        self.loop(p, c, {self.bars[0]: e1, self.bars[1]: e3}, lambda k: [])
        return True
    def h_epi(self, p, c):
        if not self.last: return
        a = Atoms(); self.epi_sums(a, c); p.add(a.L)
        self.epi_check(p, c)
        a = Atoms(); st = self.epi_atoms(a, c); p.add(a.L); p.add(st)
    X = 18
    def epi_sums(self, p, c):
        X = self.X
        for q in range(2):
            p(f"v_add_f32 v{X+q}, v{B_L[q]}, v{B_L[q]+1}")
        for i in range(16):
            for q in range(2): p(f"v_fma_f32 v{X+q}, v{B_O[q] + i}, 0, v{X+q}")
        p(f"v_mov_b32 v{X+2}, {hexf(2.0 ** c.opt.get('lmaxlog', 64))}")
    def epi_check(self, p, c):
        X = self.X
        for q in range(2):
            Lok = c.lab("ok"); Lf = c.lab("fbk")
            p(f"v_cmp_nlt_f32 vcc, v{X+q}, v{X+2}\ns_cbranch_vccnz {Lf}")
            p.label(Lok)
            def ool(z, q=q, Lf=Lf, Lok=Lok):
                z.label(Lf)
                self.fallback(z, c, q)
                z(f"v_add_f32 v{X+q}, v{B_L[q]}, v{B_L[q]+1}\ns_branch {Lok}")
            c.ool.append(ool)
    def epi_atoms(self, p, c):
        st = c.opt.get('stflag', '')
        W = f"s[{S_WS}:{S_WS+3}]"
        X = self.X
        for q in range(2): p(f"v_rcp_f32 v{X+q}, v{X+q}")
        p(f"""
        v_and_b32 v{X+2}, 15, v0
        v_bfe_u32 v{X+3}, v0, 4, 1
        v_lshrrev_b32 v{X+4}, 5, v0
        v_mul_u32_u24 v{X+3}, {AF_PITCH}, v{X+3}
        v_lshl_add_u32 v{X+3}, v{X+2}, 4, v{X+3}
        v_lshl_add_u32 v{X+3}, v{X+4}, 8, v{X+3}
        """)
        p.atom(f"""
        s_lshl_b32 s3, s{S_QB}, 2
        s_add_u32 s3, s3, s{S_WM}
        s_mul_i32 s3, s3, {4 * AF_PITCH}
        s_lshl_b32 s4, s{S_HEAD}, 10
        s_add_u32 s3, s3, s4
        s_add_u32 s49, s3, {WS_AF + 112 * 1024}
        s_add_u32 s50, s49, {2 * AF_PITCH}
        """)
        S = []
        for q in range(2):
            p(f"v_mul_f32 v{X+q}, v{X+q}, v{B_G[q]}")
        for q in range(2):
            for i in range(16): p(f"v_mul_f32 v{B_O[q] + i}, v{B_O[q] + i}, v{X+q}")
            for i in range(8): p(f"v_cvt_pk_bf16_f32 v{B_O[q] + i}, v{B_O[q] + 2 * i}, v{B_O[q] + 2 * i + 1}")
            for u in range(2): S.append(f"buffer_store_dwordx4 {vr(B_O[q] + 4 * u, 4)}, v{X+3}, {W}, s{49 + q} offen offset:{512 * u} {st}")
        return S
    def fallback(self, p, c, q):
        ho = c.opt.get('hoflag', '')
        W = f"s[{S_WS}:{S_WS+3}]"
        L1 = c.lab("fb"); L2 = c.lab("fb")
        S = A_S[0]
        p(f"""
        s_lshl_b32 s5, s{S_HEAD}, 18
        s_add_u32 s5, s5, {WS_KV}
        s_mov_b32 s6, s5
        s_mov_b32 s7, 64
        v_mov_b32 v{B_M[q]}, 0xff800000
        """)
        p.label(L1)
        p(f"""
        buffer_load_dwordx4 {vr(A_K, 4)}, v1, {W}, s6 offen {ho}
        buffer_load_dwordx4 {vr(A_K + 4, 4)}, v1, {W}, s6 offen offset:1024 {ho}
        s_waitcnt vmcnt(0)
        """)
        p(mfma32(S, A_K, B_Q[q], "0"))
        p(mfma32(S, A_K + 4, B_Q[q] + 4))
        self.rowmax(p, S, B_M[q], True)
        p(f"s_add_u32 s6, s6, 4096\ns_sub_u32 s7, s7, 1\ns_cmp_lg_u32 s7, 0\ns_cbranch_scc1 {L1}")
        self.negmax(p, q, T0)
        p("s_mov_b32 s7, 64")
        self.cblocks(p, (q,))
        for i in range(16): p(f"v_mov_b32 v{B_O[q] + i}, 0")
        for i in range(4): p(f"v_mov_b32 v{B_L[q] + i}, 0")
        p.label(L2)
        p(f"""
        buffer_load_dwordx4 {vr(A_K, 4)}, v1, {W}, s5 offen {ho}
        buffer_load_dwordx4 {vr(A_K + 4, 4)}, v1, {W}, s5 offen offset:1024 {ho}
        buffer_load_dwordx4 {vr(B_V0[0], 4)}, v1, {W}, s5 offen offset:2048 {ho}
        buffer_load_dwordx4 {vr(B_V1[0], 4)}, v1, {W}, s5 offen offset:3072 {ho}
        s_waitcnt vmcnt(0)
        """)
        p(mfma32(S, A_K, B_Q[q], B_C[q]))
        p(mfma32(S, A_K + 4, B_Q[q] + 4))
        for i in range(16): p(f"v_exp_f32 v{S + i}, v{S + i}")
        for i in range(8): p(f"v_cvt_pk_bf16_f32 v{A_P[i // 4] + i % 4}, v{S + 2 * i}, v{S + 2 * i + 1}")
        p(mfma32(B_O[q], B_V0[0], A_P[0]))
        p(mfma32(B_O[q], B_V1[0], A_P[1]))
        p(self.LLq(q))
        p(f"s_add_u32 s5, s5, 4096\ns_sub_u32 s7, s7, 1\ns_cmp_lg_u32 s7, 0\ns_cbranch_scc1 {L2}")


S_KV, S_KVO, S_KVS = 44, 63, 100
class Host:
    def __init__(self, att, d0, hsteps, final): self.att, self.d0, self.hsteps, self.final = att, d0, hsteps, final
    def kv_setup(self, p, c, skip):
        p(f"""
        s_lshl_b32 s3, s{S_HEAD}, 18
        s_add_u32 s3, s3, {WS_KV}
        s_add_u32 s{S_KV}, s{ptr('ws')}, s3
        s_addc_u32 s{S_KV+1}, s{ptr('ws')+1}, 0
        s_mov_b32 s{S_KV+2}, 0x40000
        s_mov_b32 s{S_KV+3}, 0x20000
        s_lshl_b32 s4, s{S_WM}, 10
        s_lshl_b32 s{S_KVS}, s{S_QB}, 15
        s_add_u32 s{S_KVS}, s{S_KVS}, s4
        s_add_u32 s{S_KVO}, s4, {(self.d0 + skip) * 4096}
        s_sub_u32 s3, s{S_KVO}, 32768
        s_cmp_ge_u32 s3, s{S_KVS}
        s_cselect_b32 s{S_KVO}, s{S_KVO}, s3
        s_add_u32 s48, s4, {L_X}
        """)
    def kv_atom(self, c, slot):
        return f"""
        s_lshr_b32 s3, s{slot}, 3
        s_add_u32 m0, s3, s48
        buffer_load_dwordx4 v1, s[{S_KV}:{S_KV+3}], s{S_KVO} offen {c.opt.get('hoflag', '')} lds
        s_add_u32 s{S_KVO}, s{S_KVO}, 4096
        s_cmp_eq_u32 s{S_KVO}, s{S_KVS}
        s_cselect_b32 s3, 32768, 0
        s_add_u32 s{S_KVO}, s{S_KVO}, s3
        """
    def step(self, p, c, par, D, last):
        A = self.att
        p(f"s_lshr_b32 s3, s{S_RD}, 3\ns_add_u32 s3, s3, {L_X}\nv_add_u32 v{A_AD}, s3, v1")
        p.add(D[:2])
        t0 = 2 if par == 0 else 0
        p.add(A.mix(A.tile(c, t0, 0) + A.tile(c, t0 + 1, 0), D[2:] + ["\n".join(slot_adv_rd())]))
        if last and self.final:
            A.drain(p)
            p("s_setprio 0")
    def finish(self, p, c, D):
        A = self.att
        if not c.opt.get('finmix', 1):
            p.add(D); A.epilogue(p, c); return 4
        a = Atoms(); A.epi_sums(a, c)
        p.add(spread(D[:4], a.L))
        A.epi_check(p, c)
        a = Atoms(); st = A.epi_atoms(a, c)
        p.add(spread(D[4:], a.L)); p.add(st)
        return 4
    def publish(self, p, c):
        p(f"""
        s_lshl_b32 s3, s{S_QB}, 5
        s_add_u32 s3, s3, s{S_HEAD}
        s_lshl_b32 s3, s3, 7
        s_lshl_b32 s4, s{S_WM}, 2
        s_add_u32 s3, s3, s4
        s_add_u32 s3, s3, {WS_FLAG + F_ATT * 32768}
        v_mov_b32 v18, 0
        v_mov_b32 v19, 1
        s_mov_b64 exec, 1
        buffer_store_dword v19, v18, s[{S_WS}:{S_WS+3}], s3 offen sc1
        s_mov_b64 exec, -1
        """)

class AttnW(AttnH):
    def __init__(self, b0, stages, pf=(), local=False, cont_in=False, hosted=0, pf2=()):
        self.pf2 = pf2
        AttnH.__init__(self, b0, stages, pf=pf, local=local)
        self.cont_in = cont_in; self.hosted = hosted
        self.last = b0 + sum(stages) + hosted == 64
        self.pubkind = F_ATT if self.last else None
    def link(self, c):
        if self.hosted:
            d0 = self.b0 + sum(self.stages)
            self.nxt.host = Host(self, d0, self.hosted + 1 if self.last else self.hosted, self.last)
            if self.last and c.opt.get('hpub', 0): self.pubkind = None
            elif self.last: self.nxt.pubstep = (self.hosted + 4) // 2 * 2
    def g_body(self, p, c, prev):
        nxt = self.nxt; H = nxt.host
        p(f"""
        s_mov_b32 s{S_WM}, s{S_WID}
        s_mov_b32 s{S_DMA}, s{S_RD}
        """)
        p.add(slot_adv_dma())
        sv = self.local; self.local = True; self.h_setup(p, c); self.local = sv
        if self.local:
            self.poll(c).group_wait(p)
        self.ncall = 1
        D = self.dma_atoms(c); p.add(D)
        p(f"s_waitcnt vmcnt({nvm(D)})")
        publish(p, c, prev.pubkind, False)
        fine = lambda: c.ST(p, 'g') if c.opt.get('fine') else None
        fine()
        W = hasattr(nxt, 'w_math')
        nxt.h_setup(p, c)
        if H: H.kv_setup(p, c, 0)
        p(f"s_mov_b32 s42, s{S_DMA}")
        p.add(slot_adv_dma())
        p(f"s_mov_b32 s43, s{S_DMA}")
        a = Prog()
        a.add(nxt.dma_part(c, 1, 42))
        if W: nxt.w_indep(a, c)
        self.prefetch(a, c)
        p.I += a.I
        n = 1 + sum(1 for x in a.I if x.kind == 'vmem')
        p.add(slot_adv_rd())
        p(f"s_waitcnt vmcnt({n})\ns_barrier")
        fine()
        p.add(nxt.dma_part(c, 1, 43))
        if H: p(H.kv_atom(c, 42)); p(H.kv_atom(c, 43))
        nxt.poll(c).group_wait(p)
        fine()
        p.add(nxt.dma_part(c, 0, 42))
        p.add(nxt.dma_part(c, 0, 43))
        if W: nxt.w_dep(p, c)
        n2 = g_prefetch(p, c, [(nm, {'w2': 2, 'wo': 2, 'w3': 7, 'w4': 7}[nm] * MB, a_, n_) for nm, a_, n_ in self.pf2], vdst=4)
        if hasattr(nxt, 'w_last'): n2 += nxt.w_last(p, c)
        if c.opt.get('glow', 1): p("s_setprio 0")
        if W: nxt.w_math(p, c)
        p(f"s_and_b32 s{S_WM}, s{S_WID}, 1")
        p.add(slot_adv_rd())
        nxt.g_setup(p, c); nxt.g_setup = lambda p, c: None
        p(f"s_waitcnt vmcnt({n2 if getattr(nxt, 'quiet', not W) else 0})")
        if W: nxt.w_fin(p, c)
        fine()
        p("s_barrier")
    def early(self, p, c):
        if c.opt.get('glow', 1): p("s_setprio 2")
    def h_body(self, p, c, nxt, skip0=False):
        H = nxt.host
        if c.opt.get('glow', 1): p("s_setprio 1")
        if self.cont_in:
            if not c.opt.get('glow', 1): p("s_setprio 0")
            p(f"v_add_u32 v{A_AD}, s{S_RD}, v1")
        else:
            if self.local: p(f"s_mov_b32 s{S_RD}, s{S_DMA}")
            else:
                p(f"""
                s_cmp_eq_u32 s{S_DMA}, 0
                s_cselect_b32 s{S_RD}, {SLOT * NSLOT}, s{S_DMA}
                s_sub_u32 s{S_RD}, s{S_RD}, {SLOT}
                """)
            self.setup(p, c)
        def e1(p):
            self.next_slot(p)
            if not c.opt.get('prenext', 1): self.pre_next(p, c)
            p("s_waitcnt vmcnt(0) lgkmcnt(0)\ns_barrier")
            hstep_stamp(p, c)
        def e3(p):
            p(f"s_mov_b32 s{S_DMA}, s{S_RD}")
            self.next_slot(p)
            p("s_waitcnt lgkmcnt(0)\ns_barrier")
            hstep_stamp(p, c)
            if H:
                p("s_setprio 1"); return
            a = Atoms()
            nxt.first_extra = nxt.h_late(a, c)
            p.add(nxt.dma_atoms(c))
            p.add(a.L)
        self.loop(p, c, {self.bars[0]: e1, self.bars[1]: e3}, lambda k: [], self.cont_in, H is not None)
        if not H: p("s_setprio 0")
        return H is None
    def pre_next(self, p, c):
        nxt = self.nxt
        nxt.h_setup(p, c)
        nxt.skip_stages(p, c, 2)
        if nxt.host: nxt.host.kv_setup(p, c, 2)
    def drain(self, p):
        if getattr(self.nxt, 'quiet', False): p("s_waitcnt lgkmcnt(0)")
        else: AttnH.drain(self, p)
    def h_epi(self, p, c):
        if not self.hosted: AttnH.h_epi(self, p, c)
    def epilogue(self, p, c): AttnH.h_epi(self, p, c)
```

```python
from common import *

SLOT = 49152
NSLOT = 3
L_X = SLOT * NSLOT
LDS_BYTES = 163840
L_MU = L_X + 4096
L_GW = L_X + 5888
L_CS = L_X + 10240
L_DUMMY = L_X + 11264

WS_ST1 = 41 * MB
WS_P2 = 42 * MB
WS_CSP = 43 * MB

S_A, S_B, S_WS, S_AUX = 8, 12, 16, 20
S_WID, S_WM, S_WN, S_XCD, S_IDX = 24, 25, 26, 27, 28
S_MT3, S_NT3, S_MT2, S_NT2, S_HEAD, S_BLK, S_QB = 29, 30, 54, 55, 51, 52, 41
S_POLL = 40
S_DBG = 88
S_FL = 88
S_CNT, S_RD, S_DELTA, S_DMA = 31, 32, 33, 34
S_SO = [35, 36]
S_LD = [37, 38]
S_OFFS = [42, 43, 44, 45, 46, 47, 92, 93, 94, 95, 98, 99]
S_NEG = 39
S_PTR = 64
def ptr(name): return S_PTR + KA[name] // 4
V_LANE, V_L16 = 0, 1
V_Q, V_O, V_L, V_M = 2, 10, 26, 30
V_AD = 32
V_FR = 48

def mfma16(d, a, b, c=None):
    cs = vr(d, 4) if c is None else (c if isinstance(c, str) else vr(c, 4))
    return f"v_mfma_f32_16x16x32_bf16 {vr(d,4)}, {vr(a,4)}, {vr(b,4)}, {cs}"

def tile_map(p, a_log2, S_MT, S_NT):
    a = 1 << a_log2; b = 32 // a
    nxm = 16 // a
    p(f"""
    s_and_b32 s3, s{S_XCD}, {nxm - 1}
    s_lshl_b32 s3, s3, {a_log2}
    s_and_b32 s4, s{S_IDX}, {a - 1}
    s_add_u32 s{S_MT}, s3, s4
    s_lshr_b32 s3, s{S_XCD}, {nxm.bit_length() - 1}
    s_lshl_b32 s3, s3, {b.bit_length() - 1}
    s_lshr_b32 s4, s{S_IDX}, {a_log2}
    s_add_u32 s{S_NT}, s3, s4
    """)

def slot_adv_rd():
    return [f"s_add_u32 s{S_RD}, s{S_RD}, {SLOT}", f"s_cmp_eq_u32 s{S_RD}, {SLOT * NSLOT}",
            f"s_cselect_b32 s{S_DELTA}, s{S_NEG}, {SLOT}", f"s_cselect_b32 s{S_RD}, 0, s{S_RD}"]
def slot_adv_dma():
    return [f"s_add_u32 s{S_DMA}, s{S_DMA}, {SLOT}", f"s_cmp_eq_u32 s{S_DMA}, {SLOT * NSLOT}",
            f"s_cselect_b32 s{S_DMA}, 0, s{S_DMA}"]

class Ctx:
    def __init__(self, name, opt):
        self.name = name; self.opt = opt; self.nlab = 0
        self.stamp_slot = {'g': 0, 'h': 0}
    def lab(self, s):
        self.nlab += 1
        return f"{self.name}_{s}{self.nlab}"
    def ST(self, p, role):
        if not self.opt.get('stamp'): return
        sl = self.stamp_slot[role]
        if sl >= 31: return
        self.stamp_slot[role] += 1
        stamp2(p, sl, self.opt['stamp'] - 1, self.stampv)

def hstep_stamp(p, c):
    if not c.opt.get('hstamp'): return
    p("""
    s_memtime s[56:57]
    s_waitcnt lgkmcnt(0)
    s_lshl_b64 exec, 1, s62
    s_cmp_ge_u32 s62, 64
    s_cselect_b64 s[58:59], 0, exec
    s_cselect_b64 s[60:61], exec, 0
    s_mov_b64 exec, s[58:59]
    v_mov_b32 v150, s56
    s_mov_b64 exec, s[60:61]
    v_mov_b32 v151, s56
    s_mov_b64 exec, -1
    s_add_u32 s62, s62, 1
    """)
def hstep_dump(p, c):
    if not c.opt.get('hstamp') and not c.opt.get('sstamp') and not c.opt.get('spincnt'): return
    p(f"""
    s_lshl_b32 s3, s2, 2
    s_add_u32 s3, s3, s{S_WM}
    s_lshl_b32 s3, s3, 9
    s_add_u32 s3, s3, {WS_STAMP + 2 * MB}
    v_lshlrev_b32 v152, 2, v0
    buffer_store_dword v150, v152, s[{S_WS}:{S_WS+3}], s3 offen
    buffer_store_dword v151, v152, s[{S_WS}:{S_WS+3}], s3 offen offset:256
    """)
NSTAMP = 32
def stamp2(p, slot, kidx, v=140):
    p(f"""
    s_memrealtime s[56:57]
    s_memtime s[58:59]
    s_add_u32 s60, s2, {kidx * 256}
    s_lshl_b32 s60, s60, 3
    s_add_u32 s60, s60, s{S_WID}
    s_lshl_b32 s60, s60, 8
    s_add_u32 s60, s60, {WS_STAMP + slot * 8}
    s_waitcnt lgkmcnt(0)
    v_mov_b32 v{v}, s56
    v_mov_b32 v{v+1}, s58
    v_mov_b32 v{v+2}, 0
    s_mov_b64 exec, 1
    buffer_store_dwordx2 v[{v}:{v+1}], v{v+2}, s[{S_WS}:{S_WS+3}], s60 offen
    s_mov_b64 exec, -1
    """)


class Atoms:
    def __init__(self): self.L = []
    def __call__(self, s):
        for line in s.split('\n'):
            line = line.strip()
            if line and not line.startswith(';'): self.L.append(line)
    def atom(self, s): self.L.append(s)
    def add(self, items):
        for x in items: self(x)

def spread(main, fill, start=0, end=None):
    n = len(main); end = n if end is None else end
    k = end - start
    slots = [0] * n
    for i in range(k): slots[start + i] = ((i + 1) * len(fill)) // k - (i * len(fill)) // k
    return interleave(main, fill, slots)

def nvm(D): return sum(x.count('buffer_') for x in D)

class Task:
    pubkind = None
    pubv = 136
    barpos = 6
    puball = False
    xbar = False
    pubstep = 3
    local = False
    exposed = False
    defer1 = False
    late = False
    poll = None
    def g_sites(self, c): return {}
    def h_post_dep(self, p, c): return
    def drain_n(self, c): return 0
    def h_indep(self, a, c): return 0
    def h_late(self, a, c): return 0
    def g_prev_site(self, p, c): return
    has_prev_site = False
    def early(self, p, c): return
    def h_epi(self, p, c): return
    def g_events(self, c, prev, unroll):
        E = {t: [f] for t, f in self.g_sites(c).items()}
        if prev is not None and prev.pubkind is not None and c.opt.get('persist'):
            t = self.pubstep
            if prev.puball:
                E.setdefault(t - unroll, []).append(lambda q: q("s_waitcnt vmcnt(0)"))
                E.setdefault(t, []).append(lambda q: publish(q, c, prev.pubkind, True, self.pubv))
            else:
                E.setdefault(t, []).append(lambda q: (q("s_waitcnt vmcnt(0)"), publish(q, c, prev.pubkind, False, self.pubv)))
        assert all(t % unroll == 0 for t in E)
        return E

class Gemm(Task):
    MT = 4
    fr0 = V_FR
    zero_first = False
    def acc(self, m, n): return 256 - 4 * self.MT * self.NT + 4 * (n * self.MT + m)
    def xf(self, s, m): return self.fr0 + s * 4 * (self.MT + self.NT) + 4 * m
    def wf(self, s, n): return self.fr0 + s * 4 * (self.MT + self.NT) + 4 * self.MT + 4 * n
    def swap(self, n): return False
    def reads(self, s, kk):
        rx = lambda m: "ds_read_b128 %s, v%d offset:%d" % ((vr(self.xf(s, m), 4),) + self.xaddr(kk, m))
        rw = lambda n, j: "ds_read_b64_tr_b16 %s, v%d offset:%d" % ((vr(self.wf(s, n) + 2 * j, 2),) + self.waddr(kk, n, j))
        R = [rx(0), rw(0, 0), rw(0, 1)] + [rx(m) for m in range(1, self.MT)]
        for n in range(1, self.NT): R += [rw(n, 0), rw(n, 1)]
        return R
    def mfmas(self, s, c0=None):
        M = []
        for n in range(self.NT):
            for m in (range(self.MT) if n % 2 == 0 else range(self.MT - 1, -1, -1)):
                if self.swap(n): M.append(mfma16(self.acc(m, n), self.xf(s, m), self.wf(s, n), c0))
                else: M.append(mfma16(self.acc(m, n), self.wf(s, n), self.xf(s, m), c0))
            M += self.extra_mfma(s, n)
        return M
    def extra_mfma(self, s, n): return []
    def g_loop_atoms(self, c): return []
    def g_zero(self, p):
        if self.zero_first: return
        for r in range(self.acc(0, 0), 256): p(f"v_mov_b32 v{r}, 0")
    chain = False
    host = None
    def g_body(self, p, c, prev):
        if self.chain and c.opt.get('chain', 1): self.g_loop_chain(p, c, self.nsteps, prev)
        else: self.g_loop(p, c, self.nsteps, prev)
    def g_loop_chain(self, p, c, nsteps, prev):
        KS, MT, NT = self.KS, self.MT, self.NT
        assert nsteps % 2 == 0
        xf = lambda s, m, kk: self.fr0 + 4 * (s * MT * KS + m * KS + kk)
        wf = lambda n, kk: self.fr0 + 8 * MT * KS + 4 * ((n % 4) * KS + kk)
        rx = lambda s, m: ["ds_read_b128 %s, v%d offset:%d" % ((vr(xf(s, m, kk), 4),) + self.xaddr(kk, m)) for kk in range(KS)]
        rw = lambda n: ["ds_read_b64_tr_b16 %s, v%d offset:%d" % ((vr(wf(n, kk) + 2 * j, 2),) + self.waddr(kk, n, j)) for kk in range(KS) for j in range(2)]
        def group(s, n, zero):
            M = []
            for i, m in enumerate(range(MT) if n % 2 == 0 else range(MT - 1, -1, -1)):
                for q, kk in enumerate(range(KS) if i % 2 == 0 else range(KS - 1, -1, -1)):
                    c0 = "0" if (zero and q == 0) else None
                    a, b = (xf(s, m, kk), wf(n, kk)) if self.swap(n) else (wf(n, kk), xf(s, m, kk))
                    M.append(mfma16(self.acc(m, n), a, b, c0))
            return M
        def first_reads(s):
            R = rx(s, 0) + rw(0)
            for m in range(1, MT): R += rx(s, m)
            return R + rw(1)
        xregs = sorted({self.xaddr(kk, 0)[0] for kk in range(KS)})
        def step(s, zero, tail):
            done = set()
            for n in range(NT - 2):
                F = rw(n + 2)
                if n == 0: F = F + slot_adv_rd()
                later = {self.waddr(0, k, 0)[0] for k in range(n + 3, NT)}
                if n >= 1 or NT == 3:
                    ready = [r for r in self.addr_regs if r not in later and r not in done]
                    if n < NT - 3: ready = ready[:2]
                    done |= set(ready)
                    F = F + [f"v_add_u32 v{r}, s{S_DELTA}, v{r}" for r in ready]
                G = group(s, n, zero)
                p(f"s_waitcnt lgkmcnt({(MT - 2) * KS + 2 * KS if n == 0 else 2 * KS})")
                p.add(interleave(G, F, [1] * len(G)) if len(F) <= len(G) else spread(G, F))
            assert done == set(self.addr_regs)
            G = group(s, NT - 2, zero) + group(s, NT - 1, zero)
            bp = c.opt.get('cbar', 0)
            p.add(G[:bp])
            p("s_waitcnt lgkmcnt(0)\ns_barrier")
            p.add(spread(G[bp:], first_reads(s ^ 1) + tail))
        E = self.g_events(c, prev, 2)
        mask = sum(1 << k for k in range(1, nsteps) if nsteps - k not in E)
        L = c.lab("gl"); Le = c.lab("ge")
        p.add(first_reads(0))
        p(f"s_mov_b32 s{S_CNT}, {nsteps}")
        if self.zero_first:
            step(0, True, [])
            p(f"s_branch {Le}")
        p(".p2align 5")
        p.label(L)
        step(0, False, [])
        p.label(Le)
        step(1, False, [f"s_sub_u32 s{S_CNT}, s{S_CNT}, 2", f"s_bitcmp1_b32 {hex(mask)}, s{S_CNT}"])
        self.loop_end(p, c, L, E, nsteps)
    def g_loop(self, p, c, nsteps, prev):
        KS = self.KS
        nm = len(self.mfmas(0)); nr = len(self.reads(0, 0))
        big = nm >= 16 and not getattr(self, 'small', False)
        unroll = 2 if KS % 2 else 1
        assert nsteps % unroll == 0
        w0 = c.opt.get('w0', 4)
        p.add(self.reads(0, 0))
        p(f"s_mov_b32 s{S_CNT}, {nsteps}")
        L = c.lab("gl"); Le = c.lab("ge")
        if self.zero_first:
            p.add(interleave(self.mfmas(0, "0"), self.reads(1, 1), [1] * nm))
            p(f"s_branch {Le}")
        p(".p2align 5")
        p.label(L)
        par = 0
        E = self.g_events(c, prev, unroll)
        mask = sum(1 << k for k in range(1, nsteps) if nsteps - k not in E)
        for u in range(unroll):
            for kk in range(KS - 1):
                R = self.reads(par ^ 1, kk + 1)
                if kk == 0: R = R + self.g_loop_atoms(c)
                if big: p(f"s_waitcnt lgkmcnt({w0})")
                p.add(interleave(self.mfmas(par), R, [1] * nm))
                par ^= 1
                if u == 0 and kk == 0 and self.zero_first: p.label(Le)
            M = self.mfmas(par)
            upd = slot_adv_rd() + [f"v_add_u32 v{r}, s{S_DELTA}, v{r}" for r in self.addr_regs]
            tail = [f"s_sub_u32 s{S_CNT}, s{S_CNT}, {unroll}", f"s_bitcmp1_b32 {hex(mask)}, s{S_CNT}"] if u == unroll - 1 else []
            bp = min(c.opt.get('barpos', self.barpos), nm - nr) if big else c.opt.get('bp64', 4)
            if big: p(f"s_waitcnt lgkmcnt({w0})")
            p.add(spread(M[:bp], upd))
            p("s_waitcnt lgkmcnt(0)")
            p("s_barrier")
            p.add(interleave(M[bp:], self.reads(par ^ 1, 0) + tail, [1 if big else 2] * nm))
            par ^= 1
        self.loop_end(p, c, L, E, nsteps)
    def loop_end(self, p, c, L, E, nsteps):
        p(f"s_cbranch_scc1 {L}")
        if E:
            Lo = c.lab("gev")
            p(f"s_cmp_lg_u32 s{S_CNT}, 0\ns_cbranch_scc1 {Lo}")
            def ool(q):
                q.label(Lo)
                ts = sorted(E)
                for i, t in enumerate(ts):
                    Ln = c.lab("gen")
                    if i < len(ts) - 1: q(f"s_cmp_eq_u32 s{S_CNT}, {nsteps - t}\ns_cbranch_scc0 {Ln}")
                    for f in E[t]: f(q)
                    q(f"s_branch {L}")
                    if i < len(ts) - 1: q.label(Ln)
            c.ool.append(ool)
    def dma_atoms(self, c):
        if c.opt.get('nodma'): return ["\n".join(slot_adv_dma())]
        ld = self.bflag(c)
        nA, nB = self.nA, self.nB
        D = []
        if self.rotated(c):
            A = [f"s_add_u32 m0, s{S_DMA}, s{S_OFFS[i]}\nbuffer_load_dwordx4 v{V_AD + i}, s[{S_A}:{S_A+3}], s{S_SO[0]} offen {self.aflag(c)} lds" for i in range(nA)]
            B = [f"s_add_u32 m0, s{S_DMA}, s{S_OFFS[nA + i]}\nbuffer_load_dwordx4 v{V_AD + nA + i}, s[{S_B}:{S_B+3}], s{S_SO[1]} offen {ld} lds" for i in range(nB)]
            D = [B[0], A[0]] + spread(A[1:], B[1:])
            nA = nB = 0
        if nA and c.opt.get('ilv', 0):
            A = [f"s_add_u32 m0, s92, {1024 * i}\nbuffer_load_dwordx4 v{V_AD + i}, s[{S_A}:{S_A+3}], s{S_SO[0]} offen {self.aflag(c)} lds" for i in range(nA)]
            B = [f"s_add_u32 m0, s93, {1024 * i}\nbuffer_load_dwordx4 v{V_AD + nA + i}, s[{S_B}:{S_B+3}], s{S_SO[1]} offen {ld} lds" for i in range(nB)]
            B += self.dma_extra(c)
            D = spread(A, B) if len(A) >= len(B) else spread(B, A)
            D[0] = f"s_add_u32 s92, s{S_DMA}, s{S_LD[0]}\ns_add_u32 s93, s{S_DMA}, s{S_LD[1]}\n" + D[0]
            nA = nB = 0
        elif nA: D = self.dma_extra(c)
        for i in range(nA):
            D.append((f"s_add_u32 m0, s{S_DMA}, s{S_LD[0]}" if i == 0 else "s_add_u32 m0, m0, 1024") +
                     f"\nbuffer_load_dwordx4 v{V_AD + i}, s[{S_A}:{S_A+3}], s{S_SO[0]} offen {self.aflag(c)} lds")
        for i in range(nB):
            D.append((f"s_add_u32 m0, s{S_DMA}, s{S_LD[1]}" if i == 0 else "s_add_u32 m0, m0, 1024") +
                     f"\nbuffer_load_dwordx4 v{V_AD + nA + i}, s[{S_B}:{S_B+3}], s{S_SO[1]} offen {ld} lds")
        t = []
        if not c.opt.get('step0'):
            t += [f"s_add_u32 s{S_SO[0]}, s{S_SO[0]}, {self.stepA}", f"s_add_u32 s{S_SO[1]}, s{S_SO[1]}, {self.stepB}"]
        D[-1] += "\n" + "\n".join(t + slot_adv_dma())
        return D
    def dma_part(self, c, k, slot):
        n0, n, r, fl, st = ((0, self.nA, S_A, self.aflag(c), self.stepA), (self.nA, self.nB, S_B, c.opt.get('ldflag', ''), self.stepB))[k]
        D = [(f"s_add_u32 m0, s{slot}, s{S_LD[k]}" if i == 0 else "s_add_u32 m0, m0, 1024") +
             f"\nbuffer_load_dwordx4 v{V_AD + n0 + i}, s[{r}:{r+3}], s{S_SO[k]} offen {fl} lds" for i in range(n)]
        D[-1] += f"\ns_add_u32 s{S_SO[k]}, s{S_SO[k]}, {st}"
        return D
    def aflag(self, c): return c.opt.get('hoflag', '')
    def rotated(self, c): return False
    def dma_extra(self, c): return []
    def skip_stages(self, p, c, n):
        p(f"s_add_u32 s{S_SO[0]}, s{S_SO[0]}, {n * self.stepA}\ns_add_u32 s{S_SO[1]}, s{S_SO[1]}, {n * self.stepB}")
    def bflag(self, c): return c.opt.get('ldflag', '')
    @property
    def nd(self): return self.nA + self.nB
    def h_post(self, p, c, t): pass
    def h_poll(self, c, t): return None
    def h_pre(self, p, c, t): pass
    def h_mix(self, a, c, t): pass
    def h_extra(self, p, c, t): return 0
    def h_tail(self, c): return []
    h_steps = ()
    def h_body(self, p, c, nxt, skip0=False):
        n = self.nsteps
        special = set(self.h_steps) | {n - 2, n - 1}
        if skip0 or self.xbar or getattr(self, 'first_extra', 0): special.add(0)
        pollstep = None
        real_nxt = nxt
        if nxt is not None and (nxt.exposed or nxt.local): nxt = None
        if nxt is not None and nxt.poll and c.opt.get('persist'):
            pollstep = n - 2 if nxt.late else n - 3
            special.add(pollstep)
        hs = self.host.hsteps if self.host else 0
        if self.host and self.host.final: special |= {hs - 1, hs, hs + 1}
        def step(t, par=None):
            if t is not None and t < hs: par = t % 2
            ex = 0
            noex = t is None or c.opt.get('noextra')
            P1 = None
            if t is not None: P1 = nxt.poll(c) if t == pollstep else self.h_poll(c, t)
            if P1: P1.issue1(p)
            if not noex: self.h_pre(p, c, t)
            if t == n - 2 and n >= 16 and c.opt.get('cpf3', 1) and not P1: code_prefetch(p, c, True)
            if t == n - 1 and n >= 16 and c.opt.get('cpf3', 1) and self.h_poll(c, n - 2): code_prefetch(p, c, True)
            D = []; nd = 0
            if t == 0 and self.xbar: p("s_barrier")
            if t is None or t <= n - 3:
                nd = self.nd
                if not (t == 0 and skip0): D = self.dma_atoms(c)
                if par is not None and not (self.host.final and t == hs - 1):
                    D = [self.host.kv_atom(c, S_DMA)] + D; nd += 1
            else:
                if t == n - 2: D = self.h_tail(c)
                if nxt is not None:
                    if t == (n - 1 if nxt.late else n - 2):
                        nxt.h_setup(p, c)
                        nxt.h_post_dep(p, c)
                    if t == (n - 1 if nxt.late else n - 2) or not nxt.defer1: D += nxt.dma_atoms(c)
                nd = 0 if (nxt is not None and nxt.late) else nvm(D)
            a = Atoms()
            if not noex: self.h_mix(a, c, t)
            if par is not None: self.host.step(p, c, par, D + a.L, t == hs - 1)
            elif self.host and self.host.final and t == hs: nd += self.host.finish(p, c, D)
            else: p.add(spread(D, a.L) if D else a.L)
            if not noex: ex = self.h_extra(p, c, t)
            if t == n - 1 and hasattr(real_nxt, 'pre_next') and c.opt.get('prenext', 1): real_nxt.pre_next(p, c)
            if t == 0: ex += getattr(self, 'first_extra', 0)
            p(f"s_waitcnt vmcnt({nd + ex})" + (" lgkmcnt(0)" if par is not None else ""))
            if P1: P1.check1(p)
            if self.host and self.host.final and t == hs + 1 and c.opt.get('hpub', 0): self.host.publish(p, c)
            if not noex: self.h_post(p, c, t)
            if t == n - 1 and nxt is not None and getattr(nxt, 'adv', 0) == 8192 and not self.host and not getattr(self, 'quiet', False): nxt.presetup(p, c)
            p("s_barrier")
            hstep_stamp(p, c)
        t = 0
        while t < n:
            if t in special:
                step(t); t += 1; continue
            e = t
            while e not in special: e += 1
            if t < hs:
                assert e <= hs and (e - t) % 2 == 0
                p(f"s_mov_b32 s{S_CNT}, {(e - t) // 2}")
                L = c.lab("hl")
                p.label(L)
                step(None, t % 2); step(None, (t + 1) % 2)
                p(f"s_sub_u32 s{S_CNT}, s{S_CNT}, 1\ns_cmp_lg_u32 s{S_CNT}, 0\ns_cbranch_scc1 {L}")
            elif e - t == 1: step(None)
            else:
                p(f"s_mov_b32 s{S_CNT}, {e - t}")
                L = c.lab("hl")
                p.label(L)
                step(None)
                p(f"s_sub_u32 s{S_CNT}, s{S_CNT}, 1\ns_cmp_lg_u32 s{S_CNT}, 0\ns_cbranch_scc1 {L}")
            t = e
        if real_nxt is not None and real_nxt.local:
            real_nxt.presetup(p, c)
            self.h_final(p, c)
            p("s_barrier")
            hstep_stamp(p, c)
        if real_nxt is not None and real_nxt.exposed:
            real_nxt.h_setup(p, c)
            L = c.lab("xp")
            p("s_barrier")
            p(f"s_cmp_eq_u32 s{S_WM}, 0\ns_cbranch_scc0 {L}")
            P = real_nxt.poll(c); P.issue(p); P.check(p)
            p.label(L)
            p("s_barrier")
            hstep_stamp(p, c)
            p.add(real_nxt.dma_atoms(c))
            p("s_waitcnt vmcnt(0)\ns_barrier")
            hstep_stamp(p, c)
        return False

WS_FLAG = 43 * MB + 512 * 1024
F_QKV, F_W1, F_W2, F_W3, F_ATT, F_XCH, F_ST, F_CS = 0, 1, 2, 3, 4, 5, 6, 7
NKIND = 8

class Poll:
    def __init__(self, c, addr, load, test):
        self.c, self.addr, self.load, self.test = c, addr, load, test
    def issue(self, p):
        if not self.c.opt.get('persist'): return
        p(self.addr); p(self.load)
    def issue1(self, p):
        if not self.c.opt.get('persist'): return
        L = self.c.lab("p1")
        p(f"s_cmp_eq_u32 s{S_WM}, 0\ns_cbranch_scc0 {L}")
        self.issue(p)
        p.label(L)
    def check1(self, p):
        if not self.c.opt.get('persist'): return
        L = self.c.lab("c1")
        p(f"s_cmp_eq_u32 s{S_WM}, 0\ns_cbranch_scc0 {L}")
        self.check(p)
        p.label(L)
    def group_wait(self, p):
        c = self.c
        if not c.opt.get('persist'): return
        c.gw = getattr(c, 'gw', 0) + 1
        Lo = c.lab("gw"); Le = c.lab("gwe"); Ls = c.lab("gws")
        p(f"v_mov_b32 v139, {L_GW}\ns_cmp_eq_u32 s{S_WID}, 0\ns_cbranch_scc0 {Lo}")
        self.issue(p); self.check(p, c.opt.get('gsleep', 12))
        p(f"v_mov_b32 v139, {L_GW}\nv_mov_b32 v137, {c.gw}\nds_write_b32 v139, v137\ns_branch {Le}")
        p.label(Lo)
        p(f"s_mov_b32 s5, {c.opt.get('spinmax', 100000) * 16}")
        p.label(Ls)
        p(f"""
        s_sleep 1
        ds_read_b32 v137, v139
        s_sub_u32 s5, s5, 1
        s_cmp_eq_u32 s5, 0
        s_cbranch_scc1 {Le}
        s_waitcnt lgkmcnt(0)
        v_cmp_gt_u32 vcc, {c.gw}, v137
        s_cbranch_vccnz {Ls}
        """)
        p.label(Le)
    def check(self, p, sleep=None):
        c = self.c
        if not c.opt.get('persist'): return
        L = c.lab("poll"); E = c.lab("pollx")
        p(f"s_mov_b32 s5, {c.opt.get('spinmax', 100000)}")
        p.label(L)
        p(self.test)
        p(f"""
        s_cbranch_vccz {E}
        s_sub_u32 s5, s5, 1
        s_cmp_eq_u32 s5, 0
        s_cbranch_scc1 {E}
        s_sleep {sleep or c.opt.get('spinsleep', 2)}
        s_mov_b64 exec, vcc
        """)
        p(self.load)
        p("s_mov_b64 exec, -1\ns_waitcnt vmcnt(0)")
        p(f"s_branch {L}")
        p.label(E)
        if c.opt.get('spincnt'):
            c.npoll = getattr(c, 'npoll', 0) + 1
            p(f"s_sub_u32 s5, {c.opt.get('spinmax', 100000)}, s5\nv_writelane_b32 v153, s5, {c.npoll - 1}")

def poll_init(c):
    return Poll(c, f"v_min_u32 v136, {4 * NKIND - 1}, v0\nv_lshlrev_b32 v136, 2, v136",
        f"buffer_load_dword v137, v136, s[{S_DBG}:{S_DBG+3}], 0 offen sc1", "v_cmp_eq_u32 vcc, 0, v137")

def poll_flags(c, kind, row_sgpr, shift=0, nprod=16, halo=False, single=None, col_sgpr=None):
    lg = nprod.bit_length() - 1
    a = f"v_and_b32 v136, {nprod - 1}, v0\n"
    if single is not None:
        a = f"s_xor_b32 s3, s{single}, 1\nv_mov_b32 v136, s3\n"
    if halo and c.local:
        a = f"""
        s_lshr_b32 s3, s{row_sgpr}, 1
        s_and_b32 s4, s{row_sgpr}, 1
        s_lshl_b32 s4, s4, 1
        s_add_u32 s4, s4, s3
        s_add_u32 s4, s4, 7
        s_and_b32 s4, s4, 7
        v_mov_b32 v136, s3
        v_mov_b32 v138, s4
        v_cmp_gt_u32 vcc, 32, v0
        v_cndmask_b32 v138, v138, v136, vcc
        v_and_b32 v136, 31, v0
        v_lshl_add_u32 v136, v138, 5, v136
        """
    elif halo:
        a += f"""
        v_lshrrev_b32 v138, 4, v0
        v_min_u32 v138, 2, v138
        s_add_u32 s3, s{row_sgpr}, 15
        v_add_u32 v138, s3, v138
        v_and_b32 v138, 15, v138
        v_lshl_add_u32 v136, v138, 4, v136
        """
    else:
        if col_sgpr is not None: a += f"v_and_b32 v138, 15, v0\nv_lshl_add_u32 v138, v138, 4, s{col_sgpr}\n"
        a += f"""
        s_lshr_b32 s3, s{row_sgpr}, {shift}
        s_lshl_b32 s3, s3, {lg}
        v_add_u32 v136, s3, v136
        """
        if col_sgpr is not None: a += "v_cmp_gt_u32 vcc, 32, v0\nv_cndmask_b32 v136, v138, v136, vcc\n"
    a += f"v_lshlrev_b32 v136, 7, v136\ns_mov_b32 s{S_POLL}, {WS_FLAG + kind * 32768}"
    return Poll(c, a, f"buffer_load_dwordx4 v[140:143], v136, s[{S_WS}:{S_WS+3}], s{S_POLL} offen sc1",
                "v_min3_u32 v137, v140, v141, v142\nv_min_u32 v137, v137, v143\nv_cmp_eq_u32 vcc, 0, v137")

def own_flags(p, c):
    if not c.opt.get('persist'): return
    L = c.lab("zf")
    p(f"""
    s_cmp_lt_u32 s2, {NKIND}
    s_cbranch_scc0 {L}
    s_lshl_b32 s4, s2, 2
    s_add_u32 s4, s4, s{S_WID}
    s_lshl_b32 s3, s4, 13
    s_add_u32 s3, s3, {WS_FLAG}
    v_lshlrev_b32 v136, 7, v0
    v_mov_b32 v137, 0
    v_mov_b32 v140, 0
    v_mov_b32 v141, 0
    v_mov_b32 v142, 0
    v_mov_b32 v143, 0
    buffer_store_dwordx4 v[140:143], v136, s[{S_WS}:{S_WS+3}], s3 offen sc1
    s_lshl_b32 s4, s4, 2
    v_mov_b32 v138, 1
    """)
    srd(p, S_AUX, ptr('dbg'), 256)
    p(f"""
    s_waitcnt vmcnt(0)
    s_mov_b64 exec, 1
    buffer_store_dword v138, v137, s[{S_AUX}:{S_AUX+3}], s4 offen sc1
    s_mov_b64 exec, -1
    """)
    p.label(L)

def own_offsets(p, c):
    if not c.opt.get('persist'): return
    for k, row, idx, lg in ((F_QKV, S_HEAD, S_QB, 3) if c.local else (F_QKV, S_NT3, S_MT3, 4),
                            (F_W1, S_QB, S_HEAD, 5) if c.local else (F_W1, S_MT3, S_NT3, 4) if c.merged else (F_W1, S_MT2, S_NT2, 4),
                            (F_W2, S_MT2, S_NT2, 4), (F_W3, S_MT3, S_NT3, 4),
                            (F_ATT, S_QB, S_HEAD, 5), (F_XCH, S_MT2, S_NT2, 4), (F_ST, S_MT3, S_NT3, 4), (F_CS, S_NT3, S_MT3, 4)):
        p(f"""
        s_lshl_b32 s3, s{row}, {lg}
        s_add_u32 s3, s3, s{idx}
        s_lshl_b32 s3, s3, 7
        s_add_u32 s{S_FL + k}, s3, {WS_FLAG + k * 32768}
        """)

def publish(p, c, kind, all4, v=136):
    if not c.opt.get('persist'): return
    W = f"s[{S_WS}:{S_WS+3}]"
    if all4:
        L = c.lab("pub")
        p(f"s_cmp_eq_u32 s{S_WID}, 0\ns_cbranch_scc0 {L}")
        p(f"v_lshlrev_b32 v{v}, 2, v0\nv_mov_b32 v{v+1}, 1\ns_mov_b64 exec, 15")
        p(f"buffer_store_dword v{v+1}, v{v}, {W}, s{S_FL + kind} offen sc1")
        p("s_mov_b64 exec, -1")
        p.label(L)
    else:
        p(f"s_lshl_b32 s3, s{S_WID}, 2\nv_mov_b32 v{v}, s3\nv_mov_b32 v{v+1}, 1\ns_mov_b64 exec, 1")
        p(f"buffer_store_dword v{v+1}, v{v}, {W}, s{S_FL + kind} offen sc1")
        p("s_mov_b64 exec, -1")

def gen_kernel(name, tasks, opt):
    c = Ctx(name, opt)
    c.ool = []
    c.stampv = 24
    c.merged = getattr(tasks[0], 'NT', 0) == 8
    c.local = c.merged and tasks[0].nA == 8
    for i, T in enumerate(tasks): T.nxt = tasks[i + 1] if i + 1 < len(tasks) else None
    for T in tasks:
        if hasattr(T, 'link'): T.link(c)
    p = Prog()
    def T(k):
        if opt.get('sstamp'): p(f"s_memrealtime s[{96 + 0}:{97}]\ns_waitcnt lgkmcnt(0)\nv_writelane_b32 v153, s96, {k}")
    p(f"""
    s_cmp_ge_u32 s2, 256
    s_cbranch_scc1 {name}_end
    """)
    T(0)
    if opt.get('entry'): p("s_memrealtime s[96:97]")
    p(f"""
    s_load_dwordx16 s[{S_PTR}:{S_PTR+15}], s[0:1], 0
    s_load_dwordx8 s[{S_PTR+16}:{S_PTR+23}], s[0:1], 64
    s_lshr_b32 s{S_IDX}, s2, 3
    """)
    code_prefetch(p, c)
    p(f"""
    v_lshrrev_b32 v1, 6, v0
    v_and_b32 v0, 63, v0
    v_readfirstlane_b32 s{S_WID}, v1
    v_lshlrev_b32 v{V_L16}, 4, v0
    s_and_b32 s{S_XCD}, s2, 7
    s_mov_b32 s{S_RD}, 0
    s_mov_b32 s{S_DMA}, 0
    """)
    tile_map(p, 3, S_MT3, S_NT3)
    ids = f"""
    s_mov_b32 s{S_NEG}, {-(NSLOT - 1) * SLOT & 0xffffffff}
    s_and_b32 s3, s{S_XCD}, 3
    s_lshl_b32 s3, s3, 2
    s_and_b32 s4, s{S_IDX}, 3
    s_add_u32 s{S_MT2}, s3, s4
    s_lshr_b32 s3, s{S_IDX}, 2
    s_lshl_b32 s3, s3, 1
    s_lshr_b32 s4, s{S_XCD}, 2
    s_add_u32 s{S_NT2}, s3, s4
    s_lshl_b32 s3, s{S_NT3}, 1
    s_and_b32 s4, s{S_IDX}, 1
    s_add_u32 s{S_HEAD}, s3, s4
    s_lshr_b32 s{S_QB}, s{S_MT3}, 1
    s_lshl_b32 s3, s{S_QB}, 3
    s_add_u32 s{S_BLK}, s3, s{S_WID}
    """
    T0 = tasks[0]
    lazy = hasattr(T0, 'h_first')
    ids_first = not lazy or getattr(T0, 'NT', 0) == 2 or c.local
    if ids_first: p(ids); ids = ''
    p(f"""
    s_cmp_lt_u32 s{S_WID}, 4
    s_cbranch_scc1 {name}_G
    """)
    p(f"s_sub_u32 s{S_WM}, s{S_WID}, 4")
    if lazy: T0.h_first(p, c)
    T0.h_setup(p, c, first=True)
    T(1)
    if not lazy: srd(p, S_WS, ptr('ws'), WS_SIZE)
    T0.h_post_dep(p, c)
    p.add(T0.dma_atoms(c))
    T(2)
    D1 = T0.dma_atoms(c)
    p.add(D1)
    ex = 0
    T(3)
    if lazy:
        p(ids)
        srd(p, S_WS, ptr('ws'), WS_SIZE)
    srd(p, S_DBG, ptr('dbg'), 256)
    T0.first_extra = ex
    p(f"s_waitcnt vmcnt({nvm(D1) + ex})")
    T(4)
    p("s_barrier")
    T(5)
    p("s_mov_b32 s62, 0")
    hstep_stamp(p, c)
    skip0 = False
    for i, Tk in enumerate(tasks):
        nxt = tasks[i + 1] if i + 1 < len(tasks) else None
        skip0 = Tk.h_body(p, c, nxt, skip0)
        Tk.h_epi(p, c)
    T(6)
    if opt.get('sstamp') or opt.get('spincnt'): p("v_mov_b32 v150, v153")
    hstep_dump(p, c)
    p("s_endpgm")
    p.label(f"{name}_G")
    tlb_warm(p, c)
    p(f"v_mov_b32 v2, {L_GW}\nv_mov_b32 v3, 0\nds_write_b32 v2, v3")
    srd(p, S_WS, ptr('ws'), WS_SIZE)
    own_flags(p, c)
    if lazy:
        T0.g_first(p, c)
        p(ids)
    p(f"""
    s_and_b32 s{S_WM}, s{S_WID}, 1
    s_lshr_b32 s{S_WN}, s{S_WID}, 1
    """)
    c.ST(p, 'g')
    if opt.get('entry'):
        p(f"v_mov_b32 v140, s96\nv_mov_b32 v142, 0\ns_mov_b64 exec, 1\nbuffer_store_dword v140, v142, s[{S_WS}:{S_WS+3}], s60 offen offset:248\ns_mov_b64 exec, -1")
    own_offsets(p, c)
    if opt.get('gprio'): p(f"s_setprio {opt['gprio']}")
    for i, Tk in enumerate(tasks):
        c.stampv = 24
        if i == 0 and hasattr(Tk, 'g_pre_early'): Tk.g_pre_early(p, c)
        if i == 0: Tk.early(p, c)
        Tk.g_setup(p, c)
        if i == 0: p("s_waitcnt lgkmcnt(0)\ns_barrier")
        c.ST(p, 'g')
        Tk.g_body(p, c, tasks[i - 1] if i > 0 else None)
        c.ST(p, 'g')
        if i + 1 < len(tasks): tasks[i + 1].early(p, c)
        Tk.g_epi(p, c)
        if i + 1 < len(tasks) and (tasks[i + 1].xbar or tasks[i + 1].exposed): p("s_barrier")
        if hasattr(Tk, 'g_after_bar'): Tk.g_after_bar(p, c)
    c.ST(p, 'g')
    if opt.get('stamp'):
        p("s_waitcnt vmcnt(0)")
        c.ST(p, 'g')
    p("s_endpgm")
    for f in c.ool: f(p)
    p.label(f"{name}_end")
    p("s_endpgm")
    p.finish(verbose=opt.get('verbose', False))
    return p, dict(grid=256, block=512, lds=LDS_BYTES, nstamp=c.stamp_slot['g'])

def g_prefetch(p, c, items, fl='', vdst=None):
    if not c.opt.get('pf', 1) or not items: return 0
    p(f"""
    s_lshl_b32 s3, s2, 2
    s_and_b32 s4, s{S_WID}, 3
    s_add_u32 s3, s3, s4
    s_mov_b32 m0, {L_DUMMY}
    """)
    for nm, tot, m0_, n in items:
        srd(p, S_AUX, ptr(nm), tot)
        p(f"s_mul_i32 s5, s3, {n * 1024}")
        if m0_: p(f"s_add_u32 s5, s5, {m0_ * MB}")
        for i in range(n):
            if vdst is None: p(f"buffer_load_dwordx4 v1, s[{S_AUX}:{S_AUX+3}], s5 offen {fl} lds")
            else:
                p(f"buffer_load_dwordx4 {vr(vdst, 4)}, v1, s[{S_AUX}:{S_AUX+3}], s5 offen {fl}"); vdst += 4
            if i < n - 1: p(f"s_add_u32 s5, s5, 1024")
    return sum(x[3] for x in items)

def code_prefetch(p, c, again=False):
    if not c.opt.get('cpf', 1) or (again and not c.opt.get('cpf2', 1)): return
    L = c.lab("pc")
    p("s_getpc_b64 s[4:5]")
    p.label(L)
    p(f"""
    s_sub_u32 s4, s4, {L}-{c.name}
    s_subb_u32 s5, s5, 0
    s_lshl_b32 s3, s{S_IDX}, 11
    """)
    if again: p(f"s_and_b32 s6, s{S_WID}, 3\ns_lshl_b32 s6, s6, 9\ns_add_u32 s3, s3, s6\nv_lshl_add_u32 v136, v0, 3, s3")
    else: p("v_lshl_add_u32 v136, v0, 2, s3")
    p(f"""
    s_mov_b32 s3, {c.name}_end-{c.name}
    v_min_u32 v136, s3, v136
    v_mov_b32 v137, s5
    v_add_co_u32 v136, vcc, s4, v136
    v_addc_co_u32 v137, vcc, 0, v137, vcc
    global_load_dword v138, v[136:137], off
    """)

def tlb_warm(p, c):
    if not c.opt.get('tlb', 0): return
    g = c.opt.get('tlbg', 2 * MB)
    def pages(nm, size): return [(nm, o) for o in range(0, size, g)]
    L = [pages('x', 4 * MB) + pages('wqkv', 6 * MB) + pages('gate', 1) + pages('w1', 2 * MB) + pages('dbg', 1) + pages('out', 4 * MB),
         pages('w2', 2 * MB) + pages('w3', 7 * MB) + pages('w4', 7 * MB) + pages('wo', 2 * MB)]
    ws = pages('ws', WS_SIZE)
    L += [ws[:len(ws) // 2], ws[len(ws) // 2:]]
    E = c.lab("tlbe")
    p("s_waitcnt lgkmcnt(0)")
    for w in range(4):
        N = c.lab("tlb")
        if w < 3: p(f"s_cmp_eq_u32 s{S_WID}, {w}\ns_cbranch_scc0 {N}")
        for nm, o in L[w]:
            if o: p(f"s_mov_b32 s3, {o}")
            p.I.append(Inst("s_nop 0"))
            p.I[-1].text = f"s_load_dword s98, s[{ptr(nm)}:{ptr(nm)+1}], " + ("s3" if o else "0")
        if w < 3:
            p(f"s_branch {E}")
            p.label(N)
    p.label(E)
    c.tlb_pending = True

def rot_pieces(p, n, first, rank_code, lds_base, emit):
    p(rank_code)
    for k in range(n):
        if k:
            p(f"s_add_u32 s6, s6, 1\ns_cmp_eq_u32 s6, {n}\ns_cselect_b32 s6, 0, s6")
        p(f"s_lshl_b32 s7, s6, 10\ns_add_u32 s{S_OFFS[first + k]}, s7, s{lds_base}")
        emit(k)
```

```python
from tasks import *
WS_CS1 = 43 * MB + 256 * 1024
S_B2 = 44
class G1(QKV):
    NT = 8; fr0 = 32
    addr_regs = [8, 10, 11, 12, 13, 9]
    pubkind = F_W1
    pubv = 28
    h_steps = (0, 1, 2, 3, 4, 5, 6, 7, 12, 13)
    def swap(self, n): return n in (4, 5)
    def xaddr(self, kk, m): return (8 + kk, m * 2048)
    def waddr(self, kk, n, j):
        if n < 6: return (10 + n % 2, (32 * kk + 4 * j) * 384 + (n // 2) * 128)
        return (12 + n % 2, (32 * kk + 4 * j) * 128)
    @property
    def nd(self): return 12
    def dma_extra(self, c):
        return [f"s_add_u32 m0, s{S_DMA}, s50\nbuffer_load_dwordx4 v42, s[{S_B2}:{S_B2+3}], s53 offen lds\ns_add_u32 m0, m0, 1024\n"
                f"buffer_load_dwordx4 v43, s[{S_B2}:{S_B2+3}], s53 offen lds\ns_add_u32 s53, s53, {64 * 2048}"]
    def h_setup(self, p, c, first=False):
        QKV.h_setup(self, p, c, first)
        p(f"""
        v_lshrrev_b32 v{T0}, 3, v0
        v_and_b32 v{T0+1}, 7, v0
        s_lshl_b32 s3, s{S_WM}, 4
        v_add_u32 v{T0+3}, s3, v{T0}
        v_lshlrev_b32 v{T0+3}, 11, v{T0+3}
        v_add_u32 v{T0+3}, s4, v{T0+3}
        v_lshl_add_u32 v44, v{T0+1}, 4, v{T0+3}
        v_and_b32 v{T0+2}, 2, v{T0}
        v_xor_b32 v{T0+1}, v{T0+1}, v{T0+2}
        v_lshl_add_u32 v42, v{T0+1}, 4, v{T0+3}
        v_xor_b32 v43, 64, v42
        v_add_u32 v43, {8 * 2048}, v43
        s_lshl_b32 s50, s{S_WM}, 11
        s_add_u32 s50, s50, 40960
        s_mov_b32 s53, 0
        """)
        srd(p, S_B2, ptr('w1'), 1024 * 2048)
    def g_setup(self, p, c):
        lane_fields(p, T0, T0 + 1, T0 + 2, T0 + 3)
        p(f"""
        v_lshrrev_b32 v{T0+4}, 1, v{T0}
        v_xor_b32 v{T0+4}, v{T0+4}, v{T0+1}
        v_lshlrev_b32 v{T0+4}, 4, v{T0+4}
        v_lshl_or_b32 v{T0+4}, v{T0}, 7, v{T0+4}
        s_lshl_b32 s3, s{S_WM}, 13
        s_add_u32 s3, s3, s{S_RD}
        v_add_u32 v8, s3, v{T0+4}
        v_xor_b32 v9, 64, v8
        v_lshrrev_b32 v{T0+5}, 1, v{T0+2}
        v_and_b32 v{T0+6}, 1, v{T0+1}
        v_lshl_or_b32 v{T0+5}, v{T0+6}, 1, v{T0+5}
        s_lshl_b32 s3, s{S_WN}, 1
        v_xor_b32 v{T0+5}, s3, v{T0+5}
        v_lshlrev_b32 v{T0+5}, 5, v{T0+5}
        v_lshl_add_u32 v{T0+5}, v{T0+3}, 3, v{T0+5}
        v_lshl_add_u32 v{T0+4}, v{T0+1}, 3, v{T0+2}
        v_mul_u32_u24 v{T0+6}, 384, v{T0+4}
        s_add_u32 s3, s{S_RD}, 16384
        v_add3_u32 v10, v{T0+6}, v{T0+5}, s3
        v_xor_b32 v11, 32, v10
        v_lshl_add_u32 v{T0+6}, v{T0+4}, 7, v{T0+5}
        s_add_u32 s3, s{S_RD}, 40960
        v_add_u32 v12, s3, v{T0+6}
        v_xor_b32 v13, 32, v12
        """)
        self.g_zero(p)
    def g_sites(self, c):
        if not c.opt.get('persist'): return {}
        return {9: lambda p: publish(p, c, F_ST, True, 28)}
    def pf_list(self, c): return [('wqkv', 6 * MB, i, 1) for i in range(6)]
    def h_poll(self, c, t): return poll_flags(c, F_ST, S_MT3, col_sgpr=S_NT3) if t == 12 else QKV.h_poll(self, c, t)
    def h_mix(self, p, c, t):
        QKV.h_mix(self, p, c, t)
        if t == 6:
            for d in range(4):
                p(f"""
                v_lshlrev_b32 v{96 + 2 * d}, 16, v{88 + d}
                v_and_b32 v{97 + 2 * d}, 0xffff0000, v{88 + d}
                v_lshlrev_b32 v104, 16, v{92 + d}
                v_and_b32 v105, 0xffff0000, v{92 + d}
                v_add_f32 v{96 + 2 * d}, v{96 + 2 * d}, v104
                v_add_f32 v{97 + 2 * d}, v{97 + 2 * d}, v105
                """)
        if t == 7:
            for i in range(4): p(f"v_permlane32_swap_b32 v{96 + i}, v{100 + i}")
            for i in range(4): p(f"v_add_f32 v{96 + i}, v{96 + i}, v{100 + i}")
            for i in range(2): p(f"v_permlane16_swap_b32 v{96 + i}, v{98 + i}")
            for i in range(2): p(f"v_add_f32 v{96 + i}, v{96 + i}, v{98 + i}")
            for i in range(2): p(f"v_add_f32_dpp v{96 + i}, v{96 + i}, v{96 + i} row_ror:8 row_mask:0xf bank_mask:0xf")
            p(f"""
            v_and_b32 v104, 7, v0
            v_lshrrev_b32 v105, 4, v0
            v_lshlrev_b32 v104, 5, v104
            v_lshl_add_u32 v104, v105, 3, v104
            """)
        if t == 15:
            for st_ in (2, 1):
                for i in range(st_):
                    for d in range(4): p(f"v_add_f32 v{64 + 4 * i + d}, v{64 + 4 * i + d}, v{64 + 4 * (i + st_) + d}")
            p(f"""
            v_permlane32_swap_b32 v64, v66
            v_permlane32_swap_b32 v65, v67
            v_add_f32 v64, v64, v66
            v_add_f32 v65, v65, v67
            v_permlane16_swap_b32 v64, v65
            v_add_f32 v64, v64, v65
            v_add_f32_dpp v64, v64, v64 row_ror:8 row_mask:0xf bank_mask:0xf
            v_add_f32_dpp v64, v64, v64 row_ror:4 row_mask:0xf bank_mask:0xf
            v_and_b32 v56, 3, v0
            v_lshrrev_b32 v57, 4, v0
            v_lshl_add_u32 v56, v56, 2, v57
            s_lshl_b32 s3, s{S_WM}, 6
            v_lshl_add_u32 v56, v56, 2, s3
            v_add_u32 v56, {L_CS}, v56
            ds_write_b32 v56, v64
            ds_write_b32 v58, v59
            s_waitcnt lgkmcnt(0)
            """)
    def h_extra(self, p, c, t):
        W = f"s[{S_WS}:{S_WS+3}]"
        ho = c.opt.get('hoflag', ''); st = c.opt.get('stflag', '')
        n = 0
        if t == 0:
            p(f"""
            s_lshl_b32 s3, s{S_MT3}, 17
            s_add_u32 s4, s3, {8 * 2048}
            buffer_load_dwordx4 v[88:91], v44, s[{S_B2}:{S_B2+3}], s3 offen
            buffer_load_dwordx4 v[92:95], v44, s[{S_B2}:{S_B2+3}], s4 offen
            """)
            n += 2
        if 1 <= t <= 6:
            rest = self.pf_list(c)[c.opt.get('pf0', 2):]
            k = c.opt.get('pfk', 1)
            it = rest[k * (t - 1):k * t]
            if it: n += g_prefetch(p, c, it)
        if t == 7:
            n += QKV.h_extra(self, p, c, t)
            p(f"""
            s_lshl_b32 s3, s{S_NT3}, 4
            s_add_u32 s3, s3, s{S_MT3}
            s_lshl_b32 s3, s3, 2
            s_add_u32 s3, s3, s{S_WM}
            s_lshl_b32 s3, s3, 8
            s_add_u32 s3, s3, {WS_CS1}
            buffer_store_dwordx2 v[96:97], v104, {W}, s3 offen {st}
            """)
            n += 1
        if t == 13:
            p(f"""
            v_and_b32 v58, 31, v0
            v_lshrrev_b32 v59, 5, v0
            v_lshlrev_b32 v58, 2, v58
            v_lshl_add_u32 v60, v59, 13, v58
            v_lshl_add_u32 v58, v59, 9, v58
            s_lshl_b32 s3, s{S_MT3}, 9
            s_lshl_b32 s4, s{S_WM}, 7
            s_add_u32 s3, s3, s4
            s_add_u32 s3, s3, {WS_ST1}
            s_add_u32 s4, s4, {L_MU}
            v_add_u32 v58, s4, v58
            buffer_load_dword v59, v60, {W}, s3 offen {ho}
            v_lshrrev_b32 v61, 2, v0
            v_and_b32 v62, 3, v0
            v_lshlrev_b32 v61, 8, v61
            v_lshl_add_u32 v61, v62, 4, v61
            s_lshl_b32 s3, s{S_NT3}, 14
            s_lshl_b32 s4, s{S_WM}, 6
            s_add_u32 s3, s3, s4
            s_add_u32 s3, s3, {WS_CS1}
            """)
            for i in range(4):
                p(f"buffer_load_dwordx4 {vr(64 + 4 * i, 4)}, v61, {W}, s3 offen {ho}")
                if i < 3: p("s_add_u32 s3, s3, 4096")
            n += 5
        return n
    def g_epi(self, p, c):
        st = c.opt.get('stflag', '')
        W = f"s[{S_WS}:{S_WS+3}]"
        R, G, U = 16, 17, 18
        lane_fields(p, R, G)
        p(f"""
        v_lshlrev_b32 v{U}, 9, v{G}
        v_lshl_or_b32 v8, v{R}, 4, v{U}
        v_and_b32 v{U+1}, 7, v{R}
        v_lshrrev_b32 v{U+2}, 3, v{R}
        v_lshl_or_b32 v{U}, v{U+2}, 8, v{U}
        v_lshl_or_b32 v9, v{U+1}, 4, v{U}
        s_lshl_b32 s3, s{S_NT3}, 1
        s_add_u32 s3, s3, s{S_WN}
        s_lshl_b32 s45, s3, 10
        s_add_u32 s45, s45, {WS_HS}
        s_lshl_b32 s4, s{S_MT3}, 2
        s_lshl_b32 s5, s{S_WM}, 1
        s_add_u32 s4, s4, s5
        s_lshl_b32 s5, s3, 17
        s_lshl_b32 s6, s4, 11
        s_add_u32 s42, s5, s6
        s_lshl_b32 s43, s42, 1
        s_add_u32 s43, s43, {WS_KV}
        s_add_u32 s44, s43, 4096
        s_mov_b32 s46, {hexf(QSCALE)}
        s_mov_b32 s47, {hexf(QSCALE)}
        s_lshl_b32 s3, s{S_WN}, 7
        s_add_u32 s3, s3, {L_CS}
        v_lshl_add_u32 v10, v{G}, 4, s3
        ds_read_b128 v[80:83], v10
        ds_read_b128 v[84:87], v10 offset:64
        """)
        read_tok_consts(p, 88, 11, R, False)
        st0 = st; st = c.opt.get('qkvst', st)
        t = 32
        for m in range(4):
            a, b = self.acc(m, 2), self.acc(m, 3)
            for i, r in enumerate((a, a + 2, b, b + 2)): p(f"v_cvt_pk_bf16_f32 v{t + i}, v{r}, v{r + 1}")
            p(f"buffer_store_dwordx4 {vr(t, 4)}, v9, {W}, s{43 + m // 2} offen offset:{(m % 2) * 128} {st}")
            t += 4
        for u in range(2):
            for nb in range(2):
                a = self.acc(2 * u, 4 + nb)
                for i in range(4): p(f"v_cvt_pk_bf16_f32 v{t + i}, v{a + 2 * i}, v{a + 2 * i + 1}")
                p(f"buffer_store_dwordx4 {vr(t, 4)}, v8, {W}, s{43 + u} offen offset:{2048 + nb * 256} {st}")
                t += 4
        for m in range(4):
            a, b = self.acc(m, 0), self.acc(m, 1)
            for r in (a, a + 2, b, b + 2): p(f"v_pk_mul_f32 {vr(r, 2)}, {vr(r, 2)}, s[46:47]")
            for i, r in enumerate((a, a + 2, b, b + 2)): p(f"v_cvt_pk_bf16_f32 v{t + i}, v{r}, v{r + 1}")
            p(f"buffer_store_dwordx4 {vr(t, 4)}, v8, {W}, s42 offen offset:{(m // 2) * 2048 + (m % 2) * 256} {st}")
            t += 4
        st = st0
        c.ST(p, 'g')
        for m in range(4): gelu_consts(p, 88 + 8 * m, False)
        p(f"""
        s_lshr_b32 s5, s{S_NT3}, 2
        s_lshr_b32 s6, s5, 1
        s_add_u32 s6, s6, 1
        s_sub_u32 s7, 0, s6
        s_bitcmp1_b32 s5, 0
        s_cselect_b32 s6, s7, s6
        s_lshl_b32 s3, s{S_MT3}, 7
        s_lshl_b32 s4, s{S_WM}, 6
        s_add_u32 s3, s3, s4
        s_add_u32 s6, s6, s3
        """)
        npub = c.opt.get('g1pub', 2)
        def pub():
            c.ST(p, 'g')
            p("s_waitcnt vmcnt(%d)" % (2 if c.opt.get('stamp') else 0))
            p("s_barrier")
            publish(p, c, F_QKV, True, 28)
            c.ST(p, 'g')
        for mp in range(2):
            if mp == npub: pub()
            items = []
            for m in (2 * mp, 2 * mp + 1):
                for n in range(2):
                    for h in range(2): items.append((self.acc(m, 6 + n) + 2 * h, 80 + 4 * n + 2 * h, 88 + 8 * m))
            gelu_block(p, items, 128, c.opt.get('pk', 1))
            for m in (2 * mp, 2 * mp + 1):
                a, b = self.acc(m, 6), self.acc(m, 7)
                t = 144 + 4 * m
                p(f"""
                v_add_u32 v{U}, s6, v{R}
                v_add_u32 v{U}, {16 * m}, v{U}
                v_cmp_gt_u32 vcc, 2048, v{U}
                v_and_b32 v{U}, 2047, v{U}
                v_lshrrev_b32 v{U+1}, 4, v{U}
                v_and_b32 v{U}, 15, v{U}
                v_lshl_add_u32 v{U}, v{G}, 4, v{U}
                v_lshlrev_b32 v{U}, 4, v{U}
                v_lshl_add_u32 v{160 + m}, v{U+1}, 15, v{U}
                """)
                for i, r in enumerate((a, a + 2, b, b + 2)): p(f"v_cvt_pk_bf16_f32 v{t + i}, v{r}, v{r + 1}")
                for i in range(4): p(f"v_cndmask_b32 v{t + i}, 0, v{t + i}, vcc")
        if npub == 2: pub()
        p("s_barrier")
        self.hs_stores = [f"buffer_store_dwordx4 {vr(144 + 4 * m, 4)}, v{160 + m}, {W}, s45 offen {st}" for m in range(4)]
        if not c.opt.get('hslate', 1): p.add(self.hs_stores); self.hs_stores = []
    def g_after_bar(self, p, c): p.add(self.hs_stores)
```

```python
from g1 import *
L_MU2 = L_X + 0
S_HB, S_NB = 63, 100
class G2(Gemm):
    NT = 8; KS = 2; nsteps = 16; nA = 8; nB = 3; fr0 = 32
    stepA = 128; stepB = 64 * 6144
    addr_regs = [8, 10, 11, 12, 13, 9]
    pubkind = F_W1
    chain = True
    h_steps = (0, 1, 2, 3, 4, 5, 6)
    def swap(self, n): return n in (4, 5)
    def xaddr(self, kk, m): return (8 + kk, m * 2048)
    def waddr(self, kk, n, j):
        if n < 6: return (10 + n % 2, (32 * kk + 4 * j) * 192 + (n // 2) * 64)
        return (12 + n % 2, (32 * kk + 4 * j) * 64)
    def aflag(self, c): return ''
    @property
    def nd(self): return 13 if self.coop else 12
    coop = True
    def dma_extra(self, c):
        return [f"s_add_u32 m0, s{S_DMA}, s50\nbuffer_load_dwordx4 v43, s[{S_B2}:{S_B2+3}], s53 offen lds\ns_add_u32 s53, s53, {64 * 2048}"] + \
               ([f"s_mov_b32 m0, {L_DUMMY}\nbuffer_load_dwordx4 v44, s[{S_B}:{S_B+3}], s{S_SO[1]} offen lds"] if self.coop else [])
    def h_first(self, p, c): pass
    def h_setup(self, p, c, first=False):
        p(f"""
        v_lshrrev_b32 v{T0}, 3, v0
        v_and_b32 v{T0+1}, 7, v0
        s_lshl_b32 s3, s{S_QB}, 8
        s_lshl_b32 s4, s{S_WM}, 6
        s_add_u32 s3, s3, s4
        v_lshrrev_b32 v{T0+2}, 1, v{T0}
        v_xor_b32 v{T0+2}, v{T0+2}, v{T0+1}
        v_add_u32 v{T0+3}, s3, v{T0}
        v_lshlrev_b32 v{T0+3}, 11, v{T0+3}
        v_lshl_add_u32 v32, v{T0+2}, 4, v{T0+3}
        v_xor_b32 v{T0+2}, 64, v32
        """)
        for i in range(1, 8): p(f"v_add_u32 v{32 + i}, {i * 8 * 2048}, v{32 if i % 2 == 0 else T0 + 2}")
        p(f"""
        s_mul_i32 s3, s{S_WM}, 192
        s_lshl_b32 s4, s{S_HEAD}, 6
        v_and_b32 v{T0+5}, 3, v0
        """)
        for i in range(3):
            p(f"""
            v_add_u32 v{T0}, s3, v0
            v_add_u32 v{T0}, {64 * i}, v{T0}
            v_mul_u32_u24 v{T0+1}, 0x1556, v{T0}
            v_lshrrev_b32 v{T0+1}, 16, v{T0+1}
            v_mul_u32_u24 v{T0+2}, 12, v{T0+1}
            v_sub_u32 v{T0+2}, v{T0}, v{T0+2}
            v_lshrrev_b32 v{T0+3}, 2, v{T0+2}
            v_lshrrev_b32 v{T0+4}, 2, v{T0+1}
            v_and_b32 v{T0+4}, 2, v{T0+4}
            v_xor_b32 v{T0+2}, v{T0+5}, v{T0+4}
            v_mul_u32_u24 v{T0+1}, 6144, v{T0+1}
            v_lshl_add_u32 v{T0+1}, v{T0+3}, 11, v{T0+1}
            v_lshl_add_u32 v{T0+1}, v{T0+2}, 4, v{T0+1}
            v_add_u32 v{40 + i}, s4, v{T0+1}
            """)
        p(f"""
        v_lshrrev_b32 v{T0}, 2, v0
        v_lshrrev_b32 v{T0+1}, 4, v0
        v_and_b32 v{T0+1}, 2, v{T0+1}
        v_xor_b32 v{T0+1}, v{T0+5}, v{T0+1}
        s_lshl_b32 s3, s{S_WM}, 4
        v_add_u32 v{T0}, s3, v{T0}
        v_lshlrev_b32 v{T0}, 11, v{T0}
        v_lshl_add_u32 v{T0}, v{T0+1}, 4, v{T0}
        s_add_u32 s{S_HB}, s{S_HEAD}, {c.opt.get('hbshift', 2)}
        s_and_b32 s{S_HB}, s{S_HB}, 31
        s_lshr_b32 s{S_NB}, s{S_HB}, 1
        s_lshl_b32 s4, s{S_HB}, 6
        v_add_u32 v43, s4, v{T0}
        s_lshl_b32 s{S_LD[0]}, s{S_WM}, 13
        s_mul_i32 s{S_LD[1]}, s{S_WM}, 3072
        s_add_u32 s{S_LD[1]}, s{S_LD[1]}, 32768
        s_lshl_b32 s50, s{S_WM}, 10
        s_add_u32 s50, s50, 45056
        s_mov_b32 s{S_SO[0]}, 0
        s_mov_b32 s{S_SO[1]}, 0
        s_mov_b32 s53, 0
        """)
        srd(p, S_A, ptr('x'), 2048 * 2048)
        srd(p, S_B, ptr('wqkv'), 1024 * 6144)
        srd(p, S_B2, ptr('w1'), 1024 * 2048)
        if self.coop:
            p(f"""
            s_or_b32 s4, s{S_NT3}, 3
            s_lshr_b32 s3, s{ptr('wqkv')}, 7
            s_add_u32 s3, s3, s4
            s_and_b32 s3, s3, 7
            s_lshl_b32 s4, s4, 7
            s_lshr_b32 s5, s{S_IDX}, 3
            s_lshl_b32 s6, s5, 11
            s_add_u32 s4, s4, s6
            s_and_b32 s6, s{S_IDX}, 7
            s_lshl_b32 s6, s6, 2
            s_add_u32 s6, s6, s{S_WM}
            s_mul_i32 s6, s6, {2 * 6144}
            s_add_u32 s4, s4, s6
            s_add_u32 s4, s4, {c.opt.get('coopa', 1) * self.stepB}
            s_cmp_eq_u32 s3, 3
            s_cselect_b32 s3, 16, 0
            s_cmp_eq_u32 s5, 3
            s_cselect_b32 s3, 0, s3
            v_lshrrev_b32 v{T0}, 3, v0
            v_mul_u32_u24 v{T0}, 6144, v{T0}
            v_and_b32 v{T0+1}, 7, v0
            v_lshl_add_u32 v{T0}, v{T0+1}, 4, v{T0}
            v_add_u32 v{T0}, s4, v{T0}
            v_mov_b32 v{T0+1}, 0x40000000
            v_cmp_gt_u32 vcc, s3, v0
            v_cndmask_b32 v44, v{T0+1}, v{T0}, vcc
            """)
    def pf_list(self, c): return [('wqkv', 6 * MB, i, 1) for i in range(6)]
    def g_first(self, p, c):
        W1F.g_first(self, p, c, False)
        srd(p, S_B, ptr('w1'), 1024 * 2048)
        p(f"""
        v_lshrrev_b32 v{T0}, 3, v0
        v_and_b32 v{T0+1}, 7, v0
        v_lshlrev_b32 v{T0}, 11, v{T0}
        v_lshl_add_u32 v{T0}, v{T0+1}, 4, v{T0}
        s_lshl_b32 s3, s{S_MT3}, 2
        s_add_u32 s3, s3, s{S_WID}
        s_lshl_b32 s3, s3, 15
        s_lshl_b32 s4, s{S_NT3}, 7
        s_add_u32 s3, s3, s4
        s_add_u32 s4, s3, {8 * 2048}
        buffer_load_dwordx4 v[88:91], v{T0}, s[{S_B}:{S_B+3}], s3 offen
        buffer_load_dwordx4 v[92:95], v{T0}, s[{S_B}:{S_B+3}], s4 offen
        """)
        g_prefetch(p, c, self.pf_list(c)[:c.opt.get('pf0', 1)])
    def early(self, p, c):
        stats_code(p, c, 64, 80, S_WID)
        for d in range(4):
            p(f"""
            v_lshlrev_b32 v{96 + 2 * d}, 16, v{88 + d}
            v_and_b32 v{97 + 2 * d}, 0xffff0000, v{88 + d}
            v_lshlrev_b32 v104, 16, v{92 + d}
            v_and_b32 v105, 0xffff0000, v{92 + d}
            v_add_f32 v{96 + 2 * d}, v{96 + 2 * d}, v104
            v_add_f32 v{97 + 2 * d}, v{97 + 2 * d}, v105
            """)
        for i in range(4): p(f"v_permlane32_swap_b32 v{96 + i}, v{100 + i}")
        for i in range(4): p(f"v_add_f32 v{96 + i}, v{96 + i}, v{100 + i}")
        for i in range(2): p(f"v_permlane16_swap_b32 v{96 + i}, v{98 + i}")
        for i in range(2): p(f"v_add_f32 v{96 + i}, v{96 + i}, v{98 + i}")
        for i in range(2): p(f"v_add_f32_dpp v{96 + i}, v{96 + i}, v{96 + i} row_ror:8 row_mask:0xf bank_mask:0xf")
        p(f"""
        v_and_b32 v104, 7, v0
        v_lshrrev_b32 v105, 4, v0
        v_lshlrev_b32 v104, 5, v104
        v_lshl_add_u32 v104, v105, 3, v104
        s_lshl_b32 s3, s{S_NT3}, 4
        s_add_u32 s3, s3, s{S_MT3}
        s_lshl_b32 s3, s3, 2
        s_add_u32 s3, s3, s{S_WID}
        s_lshl_b32 s3, s3, 8
        s_add_u32 s3, s3, {WS_CS1}
        buffer_store_dwordx2 v[96:97], v104, s[{S_WS}:{S_WS+3}], s3 offen {c.opt.get('stflag', '')}
        """)
    def g_pre_early(self, p, c):
        U = 16
        lane_fields(p, U, U + 1, U + 2, U + 3)
        p(f"""
        v_lshrrev_b32 v{U+4}, 1, v{U}
        v_xor_b32 v{U+4}, v{U+4}, v{U+1}
        v_lshlrev_b32 v{U+4}, 4, v{U+4}
        v_lshl_or_b32 v{U+4}, v{U}, 7, v{U+4}
        s_lshl_b32 s3, s{S_WID}, 13
        v_add_u32 v8, s3, v{U+4}
        v_xor_b32 v9, 64, v8
        v_and_b32 v{U+5}, 1, v{U+1}
        v_lshlrev_b32 v{U+5}, 5, v{U+5}
        v_lshl_add_u32 v{U+5}, v{U+3}, 3, v{U+5}
        v_lshl_add_u32 v{U+4}, v{U+1}, 3, v{U+2}
        v_mul_u32_u24 v{U+6}, 192, v{U+4}
        v_add_u32 v{U+6}, v{U+6}, v{U+5}
        v_add_u32 v10, 32768, v{U+6}
        v_xor_b32 v11, 32, v10
        v_lshl_add_u32 v{U+6}, v{U+4}, 6, v{U+5}
        v_add_u32 v12, 45056, v{U+6}
        v_xor_b32 v13, 32, v12
        """)
        self.g_zero(p)
    def g_setup(self, p, c): pass
    def g_sites(self, c):
        def pub(p):
            p("s_waitcnt vmcnt(0)")
            publish(p, c, F_ST, False, 28)
        return {c.opt.get('stpub', 4): pub} if c.opt.get('persist') else {}
    def h_poll(self, c, t):
        if t == 2: return poll_init(c)
        if t == 14: return poll_flags(c, F_ST, S_QB, nprod=32, col_sgpr=S_NB)
    def h_extra(self, p, c, t):
        W = f"s[{S_WS}:{S_WS+3}]"
        ho = c.opt.get('hoflag', '')
        if t <= 6:
            rest = self.pf_list(c)[c.opt.get('pf0', 1):]
            k = c.opt.get('pfk', 1)
            return g_prefetch(p, c, rest[k * t:k * (t + 1)])
        if t == 15:
            p(f"""
            v_lshlrev_b32 v60, 2, v0
            s_lshl_b32 s3, s{S_QB}, 10
            s_lshl_b32 s4, s{S_WM}, 8
            s_add_u32 s3, s3, s4
            s_add_u32 s3, s3, {WS_ST1}
            s_add_u32 s5, s3, 8192
            s_add_u32 s4, s4, {L_MU2}
            v_add_u32 v58, s4, v60
            buffer_load_dword v59, v60, {W}, s3 offen {ho}
            buffer_load_dword v63, v60, {W}, s5 offen {ho}
            v_lshrrev_b32 v61, 2, v0
            v_and_b32 v62, 3, v0
            v_lshlrev_b32 v61, 8, v61
            v_lshl_add_u32 v61, v62, 4, v61
            s_lshl_b32 s3, s{S_NB}, 14
            s_lshl_b32 s4, s{S_WM}, 6
            s_add_u32 s3, s3, s4
            s_add_u32 s3, s3, {WS_CS1}
            """)
            for i in range(4):
                p(f"buffer_load_dwordx4 {vr(64 + 4 * i, 4)}, v61, {W}, s3 offen {ho}")
                if i < 3: p("s_add_u32 s3, s3, 4096")
            if c.opt.get('cs3at') == 15: self.npf += cs3_loads(p, c, S_MT2, S_NT2)
            return 6 + self.npf
        if t == 14 and not c.opt.get('post14', 0): return self.cold_loads(p, c)
        return 0
    def cold_loads(self, p, c):
        self.npf = cs3_loads(p, c) if c.opt.get('cs3') else 0
        if c.opt.get('cs3at') == 14: self.npf += cs3_loads(p, c, S_MT2, S_NT2)
        self.npf += g_prefetch(p, c, c.opt.get('g2pf', [('w2', 2 * MB, 0, 2)]), vdst=152)
        return self.npf
    def h_post(self, p, c, t):
        if t == 14 and c.opt.get('post14', 0): self.cold_loads(p, c)
    def h_final(self, p, c):
        p("ds_write_b32 v58, v63 offset:1024")
        G1.h_mix(self, p, c, 15)
        if c.opt.get('cs3'): cs3_math(p, c)
        if c.opt.get('cs3m'): cs3_math(p, c, S_MT2, S_NT2)
    def g_epi(self, p, c):
        st = c.opt.get('stflag', '')
        W = f"s[{S_WS}:{S_WS+3}]"
        R, G, U = 16, 17, 18
        p("s_setprio 2")
        lane_fields(p, R, G)
        p(f"""
        v_lshlrev_b32 v{U}, 9, v{G}
        v_lshl_or_b32 v8, v{R}, 4, v{U}
        v_and_b32 v{U+1}, 7, v{R}
        v_lshrrev_b32 v{U+2}, 3, v{R}
        v_lshl_or_b32 v{U}, v{U+2}, 8, v{U}
        v_lshl_or_b32 v9, v{U+1}, 4, v{U}
        s_add_u32 s{S_HB}, s{S_HEAD}, {c.opt.get('hbshift', 2)}
        s_and_b32 s{S_HB}, s{S_HB}, 31
        s_lshl_b32 s45, s{S_HB}, 10
        s_add_u32 s45, s45, {WS_HS}
        s_lshl_b32 s43, s{S_HEAD}, 18
        s_lshl_b32 s4, s{S_QB}, 15
        s_lshl_b32 s5, s{S_WID}, 13
        s_add_u32 s43, s43, s4
        s_add_u32 s43, s43, s5
        s_add_u32 s43, s43, {WS_KV}
        s_add_u32 s44, s43, 4096
        s_add_u32 s5, s5, s{S_RD}
        v_add_u32 v12, s5, v8
        v_add_u32 v13, s5, v9
        s_lshl_b32 s5, s{S_WID}, 12
        s_add_u32 s5, s5, s{S_RD}
        v_add_u32 v14, s5, v8
        s_mov_b32 s46, {hexf(QSCALE)}
        s_mov_b32 s47, {hexf(QSCALE)}
        s_and_b32 s3, s{S_HEAD}, 1
        s_lshl_b32 s3, s3, 7
        s_add_u32 s3, s3, {L_CS}
        v_lshl_add_u32 v10, v{G}, 4, s3
        s_lshl_b32 s3, s{S_WID}, 8
        s_add_u32 s3, s3, {L_MU2}
        v_lshl_add_u32 v11, v{R}, 2, s3
        """)
        t = 32
        S = []
        late = c.opt.get('kvlate', 0)
        def st_(x):
            if late: S.append(x)
            else: p(x)
        for m in range(4):
            a, b = self.acc(m, 2), self.acc(m, 3)
            for i, r in enumerate((a, a + 2, b, b + 2)): p(f"v_cvt_pk_bf16_f32 v{t + i}, v{r}, v{r + 1}")
            st_(f"buffer_store_dwordx4 {vr(t, 4)}, v9, {W}, s{43 + m // 2} offen offset:{(m % 2) * 128} {st}")
            p(f"ds_write_b128 v13, {vr(t, 4)} offset:{(m // 2) * 4096 + (m % 2) * 128}")
            t += 4
        for u in range(2):
            for nb in range(2):
                a = self.acc(2 * u, 4 + nb)
                for i in range(4): p(f"v_cvt_pk_bf16_f32 v{t + i}, v{a + 2 * i}, v{a + 2 * i + 1}")
                st_(f"buffer_store_dwordx4 {vr(t, 4)}, v8, {W}, s{43 + u} offen offset:{2048 + nb * 256} {st}")
                p(f"ds_write_b128 v12, {vr(t, 4)} offset:{u * 4096 + 2048 + nb * 256}")
                t += 4
        for m in range(4):
            a, b = self.acc(m, 0), self.acc(m, 1)
            for r in (a, a + 2, b, b + 2): p(f"v_pk_mul_f32 {vr(r, 2)}, {vr(r, 2)}, s[46:47]")
            for i, r in enumerate((a, a + 2, b, b + 2)): p(f"v_cvt_pk_bf16_f32 v{t + i}, v{r}, v{r + 1}")
            p(f"ds_write_b128 v14, {vr(t, 4)} offset:{32768 + (m // 2) * 2048 + (m % 2) * 256}")
            t += 4
        p.add(S[:2])
        p("s_waitcnt lgkmcnt(0)\ns_barrier")
        p("ds_read_b128 v[80:83], v10\nds_read_b128 v[84:87], v10 offset:64")
        for m in range(4):
            p(f"ds_read_b32 v{88 + 8 * m}, v11 offset:{64 * m}")
            p(f"ds_read_b32 v{89 + 8 * m}, v11 offset:{1024 + 64 * m}")
        p.add(S[2:])
        c.ST(p, 'g')
        for m in range(4): gelu_consts(p, 88 + 8 * m, False)
        p(f"""
        s_lshr_b32 s5, s{S_HB}, 3
        s_lshr_b32 s6, s5, 1
        s_add_u32 s6, s6, 1
        s_sub_u32 s7, 0, s6
        s_bitcmp1_b32 s5, 0
        s_cselect_b32 s6, s7, s6
        s_lshl_b32 s3, s{S_QB}, 8
        s_lshl_b32 s4, s{S_WID}, 6
        s_add_u32 s3, s3, s4
        s_add_u32 s6, s6, s3
        """)
        npub = c.opt.get('g1pub', 0)
        def pub():
            p("s_waitcnt vmcnt(%d)" % (1 if c.opt.get('stamp') else 0))
            publish(p, c, F_QKV, False, 28)
            if not c.opt.get('gfirst'): p("s_setprio 0")
            c.ST(p, 'g')
        for mp in range(2):
            if mp == npub: pub()
            items = []
            for m in (2 * mp, 2 * mp + 1):
                for n in range(2):
                    for h in range(2): items.append((self.acc(m, 6 + n) + 2 * h, 80 + 4 * n + 2 * h, 88 + 8 * m))
            gelu_block(p, items, 128, c.opt.get('pk', 1))
            for m in (2 * mp, 2 * mp + 1):
                a, b = self.acc(m, 6), self.acc(m, 7)
                t = 160 + 4 * m
                if m == 0:
                    p(f"""
                    v_add_u32 v{U}, s6, v{R}
                    v_and_b32 v{U+1}, 15, v{U}
                    v_lshl_add_u32 v{U+1}, v{G}, 4, v{U+1}
                    v_lshlrev_b32 v{U+1}, 4, v{U+1}
                    v_ashrrev_i32 v{U+2}, 4, v{U}
                    v_lshl_add_u32 v{U+1}, v{U+2}, 15, v{U+1}
                    v_and_b32 v176, 0x3fffff, v{U+1}
                    v_add_u32 v177, 32768, v{U+1}
                    v_add_u32 v178, 65536, v{U+1}
                    v_add_u32 v179, 98304, v{U+1}
                    v_and_b32 v179, 0x3fffff, v179
                    v_cmp_le_i32 vcc, 0, v{U}
                    """)
                if m == 3: p(f"v_cmp_gt_i32 vcc, 2000, v{U}")
                for i, r in enumerate((a, a + 2, b, b + 2)): p(f"v_cvt_pk_bf16_f32 v{t + i}, v{r}, v{r + 1}")
                if m in (0, 3):
                    for i in range(4): p(f"v_cndmask_b32 v{t + i}, 0, v{t + i}, vcc")
        if npub == 2: pub()
        self.deferred = [f"buffer_store_dwordx4 {vr(160 + 4 * m, 4)}, v{176 + m}, {W}, s45 offen {st}" for m in range(4)]
        if not c.opt.get('hslate', 0): p.add(self.deferred); self.deferred = []
        if not (self.nxt.adv == 8192 and c.opt.get('glow', 1)): p("s_setprio 0")

class G2N(G2):
    coop = False
```

```python
from fw import *

def lane_fields(p, r16=None, g=None, r4=None, c4=None):
    if r16 is not None: p(f"v_and_b32 v{r16}, 15, v0")
    if g is not None: p(f"v_lshrrev_b32 v{g}, 4, v0")
    if r4 is not None: p(f"v_bfe_u32 v{r4}, v0, 2, 2")
    if c4 is not None: p(f"v_and_b32 v{c4}, 3, v0")

T0 = 128

def h_xrows(p, regs, sub_off, S_MT):
    p(f"""
    v_lshrrev_b32 v{T0}, 3, v0
    v_and_b32 v{T0+1}, 7, v0
    s_lshl_b32 s3, s{S_MT}, 7
    s_lshl_b32 s4, s{S_WM}, 5
    s_add_u32 s3, s3, s4
    v_lshrrev_b32 v{T0+2}, 1, v{T0}
    v_xor_b32 v{T0+2}, v{T0+2}, v{T0+1}
    v_add_u32 v{T0+3}, s3, v{T0}
    v_lshlrev_b32 v{T0+3}, 11, v{T0+3}
    v_lshl_add_u32 v{regs[0]}, v{T0+2}, 4, v{T0+3}
    v_xor_b32 v{T0+2}, 64, v{regs[0]}
    """)
    for i, r in enumerate(regs):
        if i == 0: continue
        ii = i % 4
        src = regs[0] if ii % 2 == 0 else T0 + 2
        p(f"v_add_u32 v{r}, {ii * 8 * 2048 + sub_off(i)}, v{src}")

class QKV(Gemm):
    NT = 6; KS = 2; nsteps = 16; nA = 4; nB = 6
    stepA = 128; stepB = 64 * 6144
    addr_regs = [32, 34, 35, 33]
    pubkind = F_QKV
    h_steps = (0, 1, 2, 3, 4, 5, 6, 7)
    def swap(self, n): return n >= 4
    def xaddr(self, kk, m): return (32 + kk, m * 2048)
    def waddr(self, kk, n, j): return (34 + n % 2, (32 * kk + 4 * j) * 384 + (n // 2) * 128)
    def aflag(self, c): return c.opt.get('ldflag', '')
    def h_setup(self, p, c, first=False):
        h_xrows(p, [32, 33, 34, 35], lambda i: 0, S_MT3)
        p(f"""
        s_mul_i32 s3, s{S_WM}, 384
        s_lshl_b32 s4, s{S_NT3}, 7
        """)
        for i in range(3):
            p(f"""
            v_add_u32 v{T0}, s3, v0
            v_add_u32 v{T0}, {64 * i}, v{T0}
            v_mul_u32_u24 v{T0+1}, 0xaab, v{T0}
            v_lshrrev_b32 v{T0+1}, 16, v{T0+1}
            v_mul_u32_u24 v{T0+2}, 24, v{T0+1}
            v_sub_u32 v{T0+2}, v{T0}, v{T0+2}
            v_lshrrev_b32 v{T0+3}, 3, v{T0+2}
            v_and_b32 v{T0+2}, 7, v{T0+2}
            v_and_b32 v{T0+4}, 2, v{T0+1}
            v_xor_b32 v{T0+2}, v{T0+2}, v{T0+4}
            v_mul_u32_u24 v{T0+1}, 6144, v{T0+1}
            v_lshl_add_u32 v{T0+1}, v{T0+3}, 11, v{T0+1}
            v_lshl_add_u32 v{T0+1}, v{T0+2}, 4, v{T0+1}
            v_add_u32 v{36 + i}, s4, v{T0+1}
            v_xor_b32 v{T0+1}, 64, v{36 + i}
            v_add_u32 v{39 + i}, {8 * 6144}, v{T0+1}
            """)
        p(f"""
        s_lshl_b32 s{S_LD[0]}, s{S_WM}, 12
        s_mul_i32 s{S_LD[1]}, s{S_WM}, 6144
        s_add_u32 s{S_LD[1]}, s{S_LD[1]}, 16384
        s_mov_b32 s{S_SO[0]}, 0
        s_mov_b32 s{S_SO[1]}, 0
        """)
        srd(p, S_B, ptr('wqkv'), 1024 * 6144)
    def g_setup(self, p, c):
        lane_fields(p, T0, T0 + 1, T0 + 2, T0 + 3)
        p(f"""
        v_lshrrev_b32 v{T0+4}, 1, v{T0}
        v_xor_b32 v{T0+4}, v{T0+4}, v{T0+1}
        v_lshlrev_b32 v{T0+4}, 4, v{T0+4}
        v_lshl_or_b32 v{T0+4}, v{T0}, 7, v{T0+4}
        s_lshl_b32 s3, s{S_WM}, 13
        s_add_u32 s3, s3, s{S_RD}
        v_add_u32 v32, s3, v{T0+4}
        v_xor_b32 v33, 64, v32
        v_lshl_add_u32 v{T0+4}, v{T0+1}, 3, v{T0+2}
        v_mul_u32_u24 v{T0+4}, 384, v{T0+4}
        v_lshrrev_b32 v{T0+5}, 1, v{T0+2}
        v_and_b32 v{T0+6}, 1, v{T0+1}
        v_lshl_or_b32 v{T0+5}, v{T0+6}, 1, v{T0+5}
        s_lshl_b32 s3, s{S_WN}, 1
        v_xor_b32 v{T0+5}, s3, v{T0+5}
        v_lshl_add_u32 v{T0+4}, v{T0+5}, 5, v{T0+4}
        v_lshl_add_u32 v{T0+4}, v{T0+3}, 3, v{T0+4}
        s_add_u32 s3, s{S_RD}, 16384
        v_add_u32 v34, s3, v{T0+4}
        v_xor_b32 v35, 32, v34
        """)
        self.g_zero(p)
    def g_epi(self, p, c):
        st = c.opt.get('stflag', '')
        lane_fields(p, T0, T0 + 1)
        p(f"""
        s_waitcnt lgkmcnt(0)
        v_lshrrev_b32 v{T0+2}, 1, v{T0+1}
        v_and_b32 v{T0+3}, 1, v{T0+1}
        v_lshlrev_b32 v{T0+2}, 10, v{T0+2}
        v_lshl_or_b32 v{T0+2}, v{T0+3}, 9, v{T0+2}
        v_lshl_or_b32 v32, v{T0}, 4, v{T0+2}
        v_and_b32 v{T0+3}, 7, v{T0}
        v_lshrrev_b32 v{T0+4}, 3, v{T0}
        v_lshl_or_b32 v{T0+2}, v{T0+4}, 8, v{T0+2}
        v_lshl_or_b32 v33, v{T0+3}, 4, v{T0+2}
        s_lshl_b32 s3, s{S_NT3}, 1
        s_add_u32 s3, s3, s{S_WN}
        s_lshl_b32 s4, s{S_MT3}, 2
        s_lshl_b32 s5, s{S_WM}, 1
        s_add_u32 s4, s4, s5
        s_lshl_b32 s5, s3, 17
        s_lshl_b32 s6, s4, 11
        s_add_u32 s42, s5, s6
        s_lshl_b32 s43, s42, 1
        s_add_u32 s43, s43, {WS_KV}
        s_add_u32 s44, s43, 4096
        s_mov_b32 s46, {hexf(QSCALE)}
        s_mov_b32 s47, {hexf(QSCALE)}
        """)
        W = f"s[{S_WS}:{S_WS+3}]"
        st = c.opt.get('qkvst', st)
        t = V_FR
        for m in range(4):
            a, b = self.acc(m, 2), self.acc(m, 3)
            for i, r in enumerate((a, a + 2, b, b + 2)): p(f"v_cvt_pk_bf16_f32 v{t + i}, v{r}, v{r + 1}")
            p(f"buffer_store_dwordx4 {vr(t, 4)}, v33, {W}, s{43 + m // 2} offen offset:{(m % 2) * 128} {st}")
            t += 4
        for u in range(2):
            for nb in range(2):
                a = self.acc(2 * u, 4 + nb)
                for i in range(4): p(f"v_cvt_pk_bf16_f32 v{t + i}, v{a + 2 * i}, v{a + 2 * i + 1}")
                p(f"buffer_store_dwordx4 {vr(t, 4)}, v32, {W}, s{43 + u} offen offset:{2048 + nb * 256} {st}")
                t += 4
        for m in range(4):
            a, b = self.acc(m, 0), self.acc(m, 1)
            for r in (a, a + 2, b, b + 2): p(f"v_pk_mul_f32 {vr(r, 2)}, {vr(r, 2)}, s[46:47]")
            for i, r in enumerate((a, a + 2, b, b + 2)): p(f"v_cvt_pk_bf16_f32 v{t + i}, v{r}, v{r + 1}")
            p(f"buffer_store_dwordx4 {vr(t, 4)}, v32, {W}, s42 offen offset:{(m // 2) * 2048 + (m % 2) * 256} {st}")
            t += 4
    def h_first(self, p, c):
        srd(p, S_A, ptr('x'), 2048 * 2048)
        srd(p, S_AUX, ptr('gate'), 2048)
        p(f"""
        s_lshl_b32 s48, s{S_MT3}, 4
        s_add_u32 s48, s48, s{S_NT3}
        s_lshl_b32 s48, s48, 3
        s_lshl_b32 s3, s{S_WM}, 1
        s_add_u32 s48, s48, s3
        s_lshl_b32 s3, s48, 11
        buffer_load_dwordx4 v[64:67], v1, s[{S_A}:{S_A+3}], s3 offen
        buffer_load_dwordx4 v[68:71], v1, s[{S_A}:{S_A+3}], s3 offen offset:1024
        buffer_load_dwordx4 v[72:75], v1, s[{S_A}:{S_A+3}], s3 offen offset:2048
        buffer_load_dwordx4 v[76:79], v1, s[{S_A}:{S_A+3}], s3 offen offset:3072
        buffer_load_dwordx4 v[80:83], v1, s[{S_AUX}:{S_AUX+3}], 0 offen
        buffer_load_dwordx4 v[84:87], v1, s[{S_AUX}:{S_AUX+3}], 0 offen offset:1024
        """)
    def bflag(self, c): return c.opt.get('qbfl', '')
    def pf_list(self, c): return [('wqkv', 6 * MB, i, 1) for i in range(c.opt.get('nqpf', 6))] + [('w1', 2 * MB, i, 1) for i in range(2)]
    def g_first(self, p, c):
        n0 = c.opt.get('pf0', 1)
        g_prefetch(p, c, self.pf_list(c)[:n0])
        if c.opt.get('gpf', 0):
            srd(p, S_A, ptr('wqkv'), 6 * MB)
            srd(p, S_B, ptr('w1'), 2 * MB)
            p(f"""
            s_lshl_b32 s3, s3, 10
            s_add_u32 s{S_SO[0]}, s3, {n0 * MB}
            s_add_u32 s{S_SO[1]}, s3, {(-(6 - n0) * MB) & 0xffffffff}
            """)
    def g_loop_atoms(self, c):
        if not c.opt.get('gpf', 0) or not c.opt.get('pf', 1): return []
        L = []
        for k, r in enumerate((S_A, S_B)):
            L += [f"buffer_load_dwordx4 v1, s[{r}:{r+3}], s{S_SO[k]} offen lds", f"s_add_u32 s{S_SO[k]}, s{S_SO[k]}, {MB}"]
        return L
    def g_sites(self, c):
        if not c.opt.get('persist'): return {}
        return {9: lambda p: publish(p, c, F_ST, True)}
    def h_poll(self, c, t): return poll_init(c) if t == 6 else None
    def h_mix(self, p, c, t):
        t -= 1
        if 1 <= t <= 4:
            if t == 1:
                for a in range(48, 54): p(f"v_mov_b32 v{a}, 0")
            for i in (2 * t - 2, 2 * t - 1):
                p(f"v_lshlrev_b32 v58, 16, v{80 + i}")
                p(f"v_and_b32 v59, 0xffff0000, v{80 + i}")
                for row in range(2):
                    ag, as_, aq = 48 + row, 50 + row, 52 + row
                    x = 64 + 8 * row + i
                    p(f"""
                    v_lshlrev_b32 v56, 16, v{x}
                    v_and_b32 v57, 0xffff0000, v{x}
                    v_add_f32 v{as_}, v{as_}, v56
                    v_fmac_f32 v{aq}, v56, v56
                    v_add_f32 v{as_}, v{as_}, v57
                    v_fmac_f32 v{aq}, v57, v57
                    v_mul_f32 v56, v56, v58
                    v_mul_f32 v57, v57, v59
                    v_cvt_pk_bf16_f32 v56, v56, v57
                    v_lshlrev_b32 v57, 16, v56
                    v_and_b32 v56, 0xffff0000, v56
                    v_add_f32 v{ag}, v{ag}, v57
                    v_add_f32 v{ag}, v{ag}, v56
                    """)
        if t == 5:
            for a in (48, 50, 52): p(f"v_permlane32_swap_b32 v{a}, v{a + 1}")
            for a in (48, 50, 52): p(f"v_add_f32 v{a}, v{a}, v{a + 1}")
            for a in (48, 50, 52): p(f"v_mov_b32 v{a + 1}, v{a}")
            for a in (48, 50, 52): p(f"v_permlane16_swap_b32 v{a}, v{a + 1}")
            for a in (48, 50, 52): p(f"v_add_f32 v{a}, v{a}, v{a + 1}")
            for sh in (8, 4, 2, 1):
                for a in (48, 50, 52): p(f"v_add_f32_dpp v{a}, v{a}, v{a} row_ror:{sh} row_mask:0xf bank_mask:0xf")
        if t == 6:
            p(f"""
            v_mul_f32 v50, {hexf(1.0 / 1024)}, v50
            v_mul_f32 v52, {hexf(1.0 / 1024)}, v52
            v_fma_f32 v52, -v50, v50, v52
            v_max_f32 v52, 0, v52
            v_add_f32 v52, {hexf(1e-5)}, v52
            v_rsq_f32 v52, v52
            v_cvt_pk_bf16_f32 v48, v48, v48
            v_and_b32 v48, 0xffff0000, v48
            v_mul_f32 v48, {hexf(-LOG2E)}, v48
            v_exp_f32 v48, v48
            v_add_f32 v48, 1.0, v48
            v_rcp_f32 v48, v48
            v_cvt_pk_bf16_f32 v48, v48, v48
            v_and_b32 v48, 0xffff0000, v48
            v_sub_f32 v49, 1.0, v48
            v_cvt_pk_bf16_f32 v49, v49, v49
            v_and_b32 v49, 0xffff0000, v49
            v_lshrrev_b32 v56, 5, v0
            v_add_u32 v56, s48, v56
            v_lshlrev_b32 v56, 2, v56
            """)
    def h_extra(self, p, c, t):
        W = f"s[{S_WS}:{S_WS+3}]"
        st = c.opt.get('stflag', '')
        rest = self.pf_list(c)[c.opt.get('pf0', 1):]
        k = c.opt.get('pfk', 1)
        if t < 7:
            it = rest[k * t:k * (t + 1)] if not c.opt.get('gpf', 0) else []
            return g_prefetch(p, c, it, c.opt.get('pffl', '')) if it else 0
        if t == 7:
            p(f"""
            s_mov_b32 s3, {WS_G}
            s_mov_b32 s4, {WS_G + 8192}
            s_mov_b32 s5, {WS_ST1}
            s_mov_b32 s6, {WS_ST1 + 8192}
            s_mov_b32 exec_lo, 1
            s_mov_b32 exec_hi, 1
            buffer_store_dword v48, v56, {W}, s3 offen {st}
            buffer_store_dword v49, v56, {W}, s4 offen {st}
            buffer_store_dword v50, v56, {W}, s5 offen {st}
            buffer_store_dword v52, v56, {W}, s6 offen {st}
            s_mov_b64 exec, -1
            """)
            return 4
        return 0

class N64(Gemm):
    NT = 2; KS = 4; nA = 8; nB = 4
    stepB = 128 * 2048
    order = 'perm32'; bname = None; babytes = 1024 * 2048
    a_pitch = 32768; a_base = 0; a_size = 4 * MB
    stepA = 4096
    addr_regs = [32, 34, 35]
    def xaddr(self, kk, m): return (32, m * 4096 + kk * 1024)
    def waddr(self, kk, n, j):
        js = {'nat': 4, 'perm32': 16, 'perm32b': 8}[self.order]
        return (34 + n, (32 * kk + js * j) * 128)
    def g_body(self, p, c, prev):
        if not c.opt.get('chain64', 1) or self.order == 'nat': return Gemm.g_body(self, p, c, prev)
        xf = lambda s, m, h: 48 + 48 * s + 8 * m + 4 * h
        wf = lambda s, n, h: 48 + 48 * s + 32 + 8 * n + 4 * h
        def reads(s, kk):
            rx = lambda m: ["ds_read_b128 %s, v%d offset:%d" % ((vr(xf(s, m, h), 4),) + self.xaddr(2 * kk + h, m)) for h in range(2)]
            rw = lambda n: ["ds_read_b64_tr_b16 %s, v%d offset:%d" % ((vr(wf(s, n, h) + 2 * j, 2),) + self.waddr(2 * kk + h, n, j)) for h in range(2) for j in range(2)]
            return rx(0) + rw(0) + rx(1) + rx(2) + rx(3) + rw(1)
        def mfmas(s, c0=None):
            M = []
            for n in range(2):
                for i, m in enumerate(range(4) if n == 0 else range(3, -1, -1)):
                    for h in ((0, 1) if i % 2 == 0 else (1, 0)): M.append(mfma16(self.acc(m, n), wf(s, n, h), xf(s, m, h)))
            return M
        self.reads, self.mfmas, self.KS, self.small = reads, mfmas, 2, True
        Gemm.g_body(self, p, c, prev)
    def rotated(self, c): return c.opt.get('rot', 0)
    def h_setup_a(self, p, c):
        srd(p, S_A, ptr('ws'), self.a_size, self.a_base)
        p(f"""
        s_lshl_b32 s3, s{S_MT2}, 3
        s_lshl_b32 s4, s{S_WM}, 1
        s_add_u32 s3, s3, s4
        s_mul_i32 s3, s3, {self.a_pitch}
        """)
        if self.rotated(c):
            def emit(k):
                p(f"""
                s_lshr_b32 s4, s6, 2
                s_mul_i32 s4, s4, {self.a_pitch - 4096}
                s_add_u32 s4, s4, s7
                s_add_u32 s4, s4, s3
                v_add_u32 v{32 + k}, s4, v1
                """)
            rot_pieces(p, 8, 0, f"s_lshr_b32 s6, s{S_NT2}, 1", S_LD[0], emit)
        else:
            p("v_add_u32 v32, s3, v1")
            for i in range(1, 8): p(f"v_add_u32 v{32 + i}, {(i // 4) * self.a_pitch + (i % 4) * 1024}, v32")
        p(f"s_mov_b32 s{S_SO[0]}, {self.a_k0}")
    a_k0 = 0; b_k0 = 0
    def h_setup(self, p, c, first=False):
        p(f"""
        s_lshl_b32 s{S_LD[0]}, s{S_WM}, 13
        s_lshl_b32 s{S_LD[1]}, s{S_WM}, 12
        s_add_u32 s{S_LD[1]}, s{S_LD[1]}, 32768
        s_mov_b32 s{S_SO[1]}, {self.b_k0}
        """)
        self.h_setup_a(p, c)
        srd(p, S_B, ptr(self.bname), self.babytes)
        p(f"""
        v_lshrrev_b32 v{T0}, 3, v0
        v_and_b32 v{T0+1}, 7, v0
        v_and_b32 v{T0+2}, {2 if self.order == 'nat' else 6}, v{T0}
        v_xor_b32 v{T0+1}, v{T0+1}, v{T0+2}
        s_lshl_b32 s3, s{S_WM}, 5
        v_add_u32 v{T0}, s3, v{T0}
        v_lshlrev_b32 v{T0}, 11, v{T0}
        v_lshl_add_u32 v{T0}, v{T0+1}, 4, v{T0}
        s_lshl_b32 s4, s{S_NT2}, 7
        """)
        if self.rotated(c):
            p(f"v_add_u32 v{T0}, s4, v{T0}")
            def emit(k):
                p(f"s_lshl_b32 s4, s6, 14\nv_add_u32 v{40 + k}, s4, v{T0}")
                if self.order == 'nat': p(f"s_and_b32 s4, s6, 1\ns_lshl_b32 s4, s4, 6\nv_xor_b32 v{40 + k}, s4, v{40 + k}")
            rot_pieces(p, 4, 8, f"s_and_b32 s6, s{S_MT2}, 3", S_LD[1], emit)
        else:
            p(f"v_add_u32 v40, s4, v{T0}")
            if self.order == 'nat':
                p(f"v_xor_b32 v{T0}, 64, v40")
                p(f"v_add_u32 v41, {8 * 2048}, v{T0}\nv_add_u32 v42, {16 * 2048}, v40\nv_add_u32 v43, {24 * 2048}, v{T0}")
            else:
                for i in range(1, 4): p(f"v_add_u32 v{40 + i}, {8 * i * 2048}, v40")
    def g_setup_x(self, p, c):
        p(f"""
        s_lshl_b32 s3, s{S_WM}, 14
        s_add_u32 s3, s3, s{S_RD}
        v_add_u32 v32, s3, v1
        """)
    def g_setup(self, p, c):
        lane_fields(p, T0, T0 + 1, T0 + 2, T0 + 3)
        self.g_setup_x(p, c)
        if self.order == 'nat': p(f"v_lshl_add_u32 v{T0+4}, v{T0+1}, 3, v{T0+2}")
        elif self.order == 'perm32': p(f"v_lshl_add_u32 v{T0+4}, v{T0+1}, 2, v{T0+2}")
        else:
            p(f"""
            v_lshrrev_b32 v{T0+4}, 1, v{T0+1}
            v_lshl_add_u32 v{T0+4}, v{T0+4}, 4, v{T0+2}
            v_and_b32 v{T0+5}, 1, v{T0+1}
            v_lshl_add_u32 v{T0+4}, v{T0+5}, 2, v{T0+4}
            """)
        p(f"""
        v_lshlrev_b32 v{T0+4}, 7, v{T0+4}
        v_lshrrev_b32 v{T0+5}, 1, v{T0+2}
        v_and_b32 v{T0+6}, 1, v{T0+1}
        v_lshl_or_b32 v{T0+5}, v{T0+6}, 1, v{T0+5}
        s_lshl_b32 s3, s{S_WN}, 1
        v_xor_b32 v{T0+5}, s3, v{T0+5}
        v_lshl_add_u32 v{T0+4}, v{T0+5}, 5, v{T0+4}
        v_lshl_add_u32 v{T0+4}, v{T0+3}, 3, v{T0+4}
        s_add_u32 s3, s{S_RD}, 32768
        v_add_u32 v34, s3, v{T0+4}
        v_xor_b32 v35, 32, v34
        """)
        self.g_pre(p, c)
        self.g_zero(p)
    def g_pre(self, p, c): pass

def gelu_consts(p, b, has_og):
    rs, og, k1, k0, w, t = b + 1, b + 3, b + 2, b + 4, b + 6, b + 5
    p(f"""
    v_mul_f32 v{t}, v{rs}, v{rs}
    v_mul_f32 v{k0}, {hexf(GC0)}, v{rs}
    v_mul_f32 v{t}, v{t}, v{rs}
    v_mul_f32 v{k1}, {hexf(GC1)}, v{t}
    """)
    if has_og:
        p(f"""
        v_mul_f32 v{t}, v{og}, v{rs}
        v_rcp_f32 v{w}, v{t}
        """)
    else:
        p(f"v_rcp_f32 v{w}, v{rs}")
    p(f"v_min_f32 v{w}, {hexf(3e38)}, v{w}")

def gelu_block(p, items, tmp, pk=True):
    T = [tmp + 2 * i for i in range(len(items))]
    Z = list(zip(items, T))
    if pk:
        for (r, cs, b), t in Z: p(f"v_pk_fma_f32 {vr(r,2)}, {vr(cs,2)}, {vr(b,2)}, {vr(r,2)} op_sel_hi:[1,0,1] neg_lo:[1,0,0] neg_hi:[1,0,0]")
        for (r, cs, b), t in Z: p(f"v_pk_mul_f32 {vr(t,2)}, {vr(r,2)}, {vr(r,2)}")
        for (r, cs, b), t in Z: p(f"v_pk_fma_f32 {vr(t,2)}, {vr(t,2)}, {vr(b+2,2)}, {vr(b+4,2)} op_sel_hi:[1,0,0]")
        for (r, cs, b), t in Z: p(f"v_pk_mul_f32 {vr(t,2)}, {vr(t,2)}, {vr(r,2)}")
    else:
        for (r, cs, b), t in Z:
            for h in range(2): p(f"v_fma_f32 v{r+h}, -v{cs+h}, v{b}, v{r+h}")
        for (r, cs, b), t in Z:
            for h in range(2): p(f"v_mul_f32 v{t+h}, v{r+h}, v{r+h}")
        for (r, cs, b), t in Z:
            for h in range(2): p(f"v_fma_f32 v{t+h}, v{t+h}, v{b+2}, v{b+4}")
        for (r, cs, b), t in Z:
            for h in range(2): p(f"v_mul_f32 v{t+h}, v{t+h}, v{r+h}")
    for t in T:
        p(f"v_exp_f32 v{t}, v{t}"); p(f"v_exp_f32 v{t+1}, v{t+1}")
    for (r, cs, b), t in Z:
        if pk: p(f"v_pk_fma_f32 {vr(t,2)}, {vr(t,2)}, {vr(b+6,2)}, {vr(b+6,2)} op_sel_hi:[1,0,0]")
        else:
            for h in range(2): p(f"v_fma_f32 v{t+h}, v{t+h}, v{b+6}, v{b+6}")
    for t in T:
        p(f"v_rcp_f32 v{t}, v{t}"); p(f"v_rcp_f32 v{t+1}, v{t+1}")
    for (r, cs, b), t in Z:
        if pk: p(f"v_pk_mul_f32 {vr(r,2)}, {vr(r,2)}, {vr(t,2)}")
        else:
            for h in range(2): p(f"v_mul_f32 v{r+h}, v{r+h}, v{t+h}")

def read_tok_consts(p, base, vaddr, r16, has_og):
    p(f"""
    s_lshl_b32 s3, s{S_WM}, 8
    s_add_u32 s3, s3, {L_MU}
    v_lshl_add_u32 v{vaddr}, v{r16}, 2, s3
    """)
    for m in range(4):
        p(f"ds_read_b32 v{base + 8 * m}, v{vaddr} offset:{64 * m}")
        p(f"ds_read_b32 v{base + 8 * m + 1}, v{vaddr} offset:{512 + 64 * m}")
        if has_og: p(f"ds_read_b32 v{base + 8 * m + 3}, v{vaddr} offset:{1024 + 64 * m}")

class W1(N64):
    nsteps = 8; order = 'nat'; bname = 'w1'; stepA = 256
    addr_regs = [32, 34, 35, 33]
    pubkind = F_W1
    h_steps = (0, 1)
    xbar = True
    pubstep = 2
    def aflag(self, c): return c.opt.get('ldflag', '')
    def xaddr(self, kk, m): return (32 + kk % 2, (m // 2) * 8192 + (m % 2) * 2048 + (kk // 2) * 4096)
    def h_setup_a(self, p, c):
        srd(p, S_A, ptr('x'), 2048 * 2048)
        if self.rotated(c):
            h_xrows(p, [T0 + 4], lambda i: 0, S_MT2)
            def emit(k):
                p(f"""
                s_and_b32 s4, s6, 3
                s_lshl_b32 s4, s4, 14
                s_lshr_b32 s5, s6, 2
                s_lshl_b32 s5, s5, 7
                s_add_u32 s4, s4, s5
                v_add_u32 v{32 + k}, s4, v{T0+4}
                s_and_b32 s4, s6, 1
                s_lshl_b32 s4, s4, 6
                v_xor_b32 v{32 + k}, s4, v{32 + k}
                """)
            rot_pieces(p, 8, 0, f"s_lshr_b32 s6, s{S_NT2}, 1", S_LD[0], emit)
        else:
            h_xrows(p, list(range(32, 40)), lambda i: (i // 4) * 128, S_MT2)
        p(f"s_mov_b32 s{S_SO[0]}, 0")
    def g_setup_x(self, p, c):
        p(f"""
        v_lshrrev_b32 v{T0+4}, 1, v{T0}
        v_xor_b32 v{T0+4}, v{T0+4}, v{T0+1}
        v_lshlrev_b32 v{T0+4}, 4, v{T0+4}
        v_lshl_or_b32 v{T0+4}, v{T0}, 7, v{T0+4}
        s_lshl_b32 s3, s{S_WM}, 14
        s_add_u32 s3, s3, s{S_RD}
        v_add_u32 v32, s3, v{T0+4}
        v_xor_b32 v33, 64, v32
        """)
    lds_consts = True
    def extra_mfma(self, s, n): return [mfma16(112 + 4 * n, self.wf(s, n), 120)]
    def g_pre(self, p, c):
        for i in range(8): p(f"v_mov_b32 v{112 + i}, 0")
        for i in range(4): p(f"v_mov_b32 v{120 + i}, 0x3f803f80")
    def h_poll(self, c, t): return poll_flags(c, F_ST, S_MT2) if t == 0 else None
    def h_post(self, p, c, t):
        if t == (6 if self.nxt.late else 7): p("ds_write_b32 v58, v59\ns_waitcnt lgkmcnt(0)")
    def h_extra(self, p, c, t):
        W = f"s[{S_WS}:{S_WS+3}]"
        ho = c.opt.get('hoflag', ''); st = c.opt.get('stflag', '')
        if t == 1:
            p(f"""
            v_and_b32 v58, 31, v0
            v_lshrrev_b32 v59, 5, v0
            v_lshlrev_b32 v58, 2, v58
            v_lshl_add_u32 v60, v59, 13, v58
            v_lshl_add_u32 v58, v59, 9, v58
            s_lshl_b32 s3, s{S_MT2}, 9
            s_lshl_b32 s4, s{S_WM}, 7
            s_add_u32 s3, s3, s4
            s_add_u32 s3, s3, {WS_ST1}
            s_add_u32 s4, s4, {L_MU}
            v_add_u32 v58, s4, v58
            buffer_load_dword v59, v60, {W}, s3 offen {ho}
            """)
            return 1
        return 0
    def g_epi(self, p, c):
        st = c.opt.get('stflag', '')
        W = f"s[{S_WS}:{S_WS+3}]"
        lane_fields(p, T0, T0 + 1)
        p("s_waitcnt lgkmcnt(0)")
        if self.lds_consts: read_tok_consts(p, 144, 36, T0, False)
        for m in range(4): gelu_consts(p, 144 + 8 * m, False)
        p(f"""
        s_lshr_b32 s5, s{S_NT2}, 2
        s_lshr_b32 s6, s5, 1
        s_add_u32 s6, s6, 1
        s_sub_u32 s7, 0, s6
        s_bitcmp1_b32 s5, 0
        s_cselect_b32 s6, s7, s6
        s_lshl_b32 s3, s{S_MT2}, 7
        s_lshl_b32 s4, s{S_WM}, 6
        s_add_u32 s3, s3, s4
        s_add_u32 s6, s6, s3
        s_lshl_b32 s3, s{S_NT2}, 1
        s_add_u32 s3, s3, s{S_WN}
        s_lshl_b32 s42, s3, 10
        s_add_u32 s42, s42, {WS_HS}
        """)
        for mp in range(2):
            items = []
            for m in (2 * mp, 2 * mp + 1):
                for n in range(2):
                    for h in range(2): items.append((self.acc(m, n) + 2 * h, 112 + 4 * n + 2 * h, 144 + 8 * m))
            gelu_block(p, items, 56, c.opt.get('pk', 1))
            for m in (2 * mp, 2 * mp + 1):
                a, b = self.acc(m, 0), self.acc(m, 1)
                t = 72 + 4 * m
                p(f"""
                v_add_u32 v{T0+2}, s6, v{T0}
                v_add_u32 v{T0+2}, {16 * m}, v{T0+2}
                v_cmp_gt_u32 vcc, 2048, v{T0+2}
                v_and_b32 v{T0+2}, 2047, v{T0+2}
                v_lshrrev_b32 v{T0+3}, 4, v{T0+2}
                v_and_b32 v{T0+2}, 15, v{T0+2}
                v_lshl_add_u32 v{T0+2}, v{T0+1}, 4, v{T0+2}
                v_lshlrev_b32 v{T0+2}, 4, v{T0+2}
                v_lshl_add_u32 v{36 + m}, v{T0+3}, 15, v{T0+2}
                """)
                for i, r in enumerate((a, a + 2, b, b + 2)): p(f"v_cvt_pk_bf16_f32 v{t + i}, v{r}, v{r + 1}")
                for i in range(4): p(f"v_cndmask_b32 v{t + i}, 0, v{t + i}, vcc")
                p(f"buffer_store_dwordx4 {vr(t, 4)}, v{36 + m}, {W}, s42 offen {st}")

class W2(N64):
    nsteps = 8; order = 'perm32'; bname = 'w2'; a_base = WS_HS
    pubkind = F_W2
    def poll(self, c): return poll_flags(c, F_W1, S_MT2, halo=True)
    def h_tail(self, c):
        a = Atoms()
        h_xrows(a, [44, 45, 46, 47], lambda i: 0, S_MT2)
        srd(a, S_AUX, ptr('x'), 2048 * 2048)
        a(f"""
        s_lshl_b32 s5, s{S_NT2}, 7
        s_lshl_b32 s4, s{S_WM}, 12
        s_add_u32 s4, s4, s{S_DMA}
        s_add_u32 m0, s4, 32768
        """)
        D = [f"buffer_load_dwordx4 v{44 + i}, s[{S_AUX}:{S_AUX+3}], s5 offen lds" + ("\ns_add_u32 m0, m0, 1024" if i < 3 else "") for i in range(4)]
        D[0] = "\n".join(a.L) + "\n" + D[0]
        return D
    def g_epi(self, p, c):
        st = c.opt.get('stflag', '')
        W = f"s[{S_WS}:{S_WS+3}]"
        p(f"""
        s_waitcnt lgkmcnt(0)
        s_lshl_b32 s3, s{S_NT2}, 1
        s_add_u32 s3, s3, s{S_WN}
        s_lshl_b32 s4, s{S_MT2}, 3
        s_lshl_b32 s5, s{S_WM}, 2
        s_add_u32 s4, s4, s5
        s_lshl_b32 s42, s4, 15
        s_lshl_b32 s5, s3, 10
        s_add_u32 s42, s42, s5
        s_add_u32 s42, s42, {WS_X1}
        s_lshl_b32 s43, s3, 14
        s_lshl_b32 s5, s4, 7
        s_add_u32 s43, s43, s5
        s_add_u32 s43, s43, {WS_P2}
        """)
        lane_fields(p, T0, T0 + 1)
        p(f"""
        v_lshrrev_b32 v{T0+2}, 1, v{T0}
        v_lshrrev_b32 v{T0+3}, 1, v{T0+1}
        v_xor_b32 v{T0+2}, v{T0+2}, v{T0+3}
        s_lshl_b32 s3, s{S_WN}, 2
        v_xor_b32 v{T0+2}, s3, v{T0+2}
        v_lshlrev_b32 v{T0+2}, 4, v{T0+2}
        v_lshl_or_b32 v{T0+2}, v{T0}, 7, v{T0+2}
        v_and_b32 v{T0+3}, 1, v{T0+1}
        v_lshl_or_b32 v{T0+2}, v{T0+3}, 3, v{T0+2}
        s_lshl_b32 s3, s{S_WM}, 13
        s_add_u32 s3, s3, s{S_RD}
        v_add_u32 v37, s3, v{T0+2}
        v_xor_b32 v38, 32, v37
        """)
        for m in range(4):
            for n in range(2): p(f"ds_read_b64 {vr(160 + 4 * m + 2 * n, 2)}, v{37 + n} offset:{32768 + 2048 * m}")
        for m in range(4):
            for n in range(2):
                a = self.acc(m, n)
                for d in range(2):
                    x = 160 + 4 * m + 2 * n + d
                    p(f"v_lshlrev_b32 v48, 16, v{x}\nv_and_b32 v49, 0xffff0000, v{x}")
                    p(f"v_pk_add_f32 {vr(a + 2 * d, 2)}, {vr(a + 2 * d, 2)}, v[48:49]")
            a, b = self.acc(m, 0), self.acc(m, 1)
            t = 72 + 4 * m
            for i, r in enumerate((a, a + 2, b, b + 2)): p(f"v_cvt_pk_bf16_f32 v{t + i}, v{r}, v{r + 1}")
            p(f"buffer_store_dwordx4 {vr(t, 4)}, v1, {W}, s42 offen {st}")
            if m < 3: p(f"s_add_u32 s42, s42, 32768")
            p(f"""
            v_pk_add_f32 v[50:51], {vr(a, 2)}, {vr(a + 2, 2)}
            v_pk_mul_f32 v[52:53], {vr(a, 2)}, {vr(a, 2)}
            v_pk_add_f32 v[50:51], v[50:51], {vr(b, 2)}
            v_pk_fma_f32 v[52:53], {vr(a + 2, 2)}, {vr(a + 2, 2)}, v[52:53]
            v_pk_add_f32 v[50:51], v[50:51], {vr(b + 2, 2)}
            v_pk_fma_f32 v[52:53], {vr(b, 2)}, {vr(b, 2)}, v[52:53]
            v_pk_fma_f32 v[52:53], {vr(b + 2, 2)}, {vr(b + 2, 2)}, v[52:53]
            v_add_f32 v{56 + 2 * m}, v50, v51
            v_add_f32 v{57 + 2 * m}, v52, v53
            """)
        for i in range(4): p(f"v_permlane32_swap_b32 v{56 + i}, v{60 + i}")
        for i in range(4): p(f"v_add_f32 v{56 + i}, v{56 + i}, v{60 + i}")
        for i in range(2): p(f"v_permlane16_swap_b32 v{56 + i}, v{58 + i}")
        for i in range(2): p(f"v_add_f32 v{56 + i}, v{56 + i}, v{58 + i}")
        p(f"""
        v_lshlrev_b32 v36, 3, v0
        buffer_store_dwordx2 v[56:57], v36, {W}, s43 offen {st}
        """)

AF_PITCH = 144 * 1024
class W3(Gemm):
    NT = 7; KS = 2; nsteps = 16; nA = 4; nB = 8
    stepA = 2048; stepB = 64 * 7168
    addr_regs = [32, 33, 34, 35, 36, 37, 38, 39]
    pubkind = F_W3
    zero_first = True
    h_steps = tuple(range(1, 14))
    def poll(self, c): return poll_flags(c, F_W2, S_MT3)
    def g_sites(self, c):
        if not c.opt.get('persist'): return {}
        return {7: lambda p: publish(p, c, F_CS, True)}
    def h_poll(self, c, t): return poll_flags(c, F_CS, S_NT3) if t == 10 else None
    def h_post(self, p, c, t):
        if t == 15:
            p("""
            ds_write_b32 v56, v160
            ds_write_b32 v57, v64
            ds_write_b32 v57, v65 offset:512
            s_mov_b32 exec_hi, 0
            ds_write_b32 v58, v96 offset:1024
            s_mov_b32 exec_hi, -1
            s_waitcnt lgkmcnt(0)
            """)
    def xaddr(self, kk, m): return (32, m * 2048 + kk * 1024)
    def waddr(self, kk, n, j): return (33 + n, (32 * kk + 16 * j) * 512)
    def h_setup(self, p, c, first=False):
        srd(p, S_A, ptr('ws'), 4 * MB, WS_X1)
        srd(p, S_B, ptr('w3'), 1024 * 7168)
        p(f"""
        s_lshl_b32 s3, s{S_MT3}, 3
        s_lshl_b32 s4, s{S_WM}, 1
        s_add_u32 s3, s3, s4
        s_lshl_b32 s3, s3, 15
        v_add_u32 v32, s3, v1
        v_add_u32 v33, 1024, v32
        v_add_u32 v34, 32768, v32
        v_add_u32 v35, {32768 + 1024}, v32
        s_mul_i32 s4, s{S_NT3}, 448
        s_and_b32 s4, s4, {0xffffff80}
        s_mul_i32 s3, s{S_WM}, {16 * 7168}
        s_add_u32 s4, s4, s3
        v_lshrrev_b32 v{T0}, 5, v0
        v_and_b32 v{T0+1}, 31, v0
        v_mul_u32_u24 v{T0+2}, 7168, v{T0}
        v_add_u32 v{T0+2}, s4, v{T0+2}
        v_lshlrev_b32 v{T0}, 1, v{T0}
        v_xor_b32 v{T0+1}, v{T0+1}, v{T0}
        """)
        for i in range(4):
            p(f"""
            v_xor_b32 v{T0+3}, {4 * i}, v{T0+1}
            v_lshl_add_u32 v{T0+3}, v{T0+3}, 4, v{T0+2}
            v_add_u32 v{36 + i}, {2 * i * 7168}, v{T0+3}
            v_add_u32 v{40 + i}, {(2 * i + 8) * 7168}, v{T0+3}
            """)
        p(f"""
        s_lshl_b32 s{S_LD[0]}, s{S_WM}, 12
        s_lshl_b32 s{S_LD[1]}, s{S_WM}, 13
        s_add_u32 s{S_LD[1]}, s{S_LD[1]}, 16384
        s_mov_b32 s{S_SO[0]}, 0
        s_mov_b32 s{S_SO[1]}, 0
        """)
    def g_setup(self, p, c):
        lane_fields(p, None, T0 + 1, T0 + 2, T0 + 3)
        p(f"""
        s_lshl_b32 s3, s{S_WM}, 13
        s_add_u32 s3, s3, s{S_RD}
        v_add_u32 v32, s3, v1
        v_lshl_add_u32 v{T0+4}, v{T0+1}, 2, v{T0+2}
        v_and_b32 v{T0+5}, 7, v{T0+4}
        v_lshlrev_b32 v{T0+4}, 9, v{T0+4}
        v_lshl_add_u32 v{T0+4}, v{T0+3}, 3, v{T0+4}
        s_add_u32 s3, s{S_RD}, 16384
        v_add_u32 v{T0+4}, s3, v{T0+4}
        s_and_b32 s3, s{S_NT3}, 1
        s_lshl_b32 s3, s3, 1
        s_mul_i32 s4, s{S_WN}, 7
        s_add_u32 s3, s3, s4
        """)
        for n in range(7):
            p(f"""
            v_xor_b32 v{T0+6}, s3, v{T0+5}
            v_lshl_add_u32 v{33 + n}, v{T0+6}, 5, v{T0+4}
            s_add_u32 s3, s3, 1
            """)
        self.g_zero(p)
    def h_late(self, a, c):
        a.atom(f"""
        s_mul_i32 s53, s{S_NT3}, 448
        s_and_b32 s53, s53, {0xffffff80}
        s_lshl_b32 s4, s{S_WM}, 7
        s_add_u32 s53, s53, s4
        s_lshl_b32 s4, s{S_MT3}, 6
        v_lshrrev_b32 v{T0}, 3, v0
        v_add_u32 v{T0}, s4, v{T0}
        v_mul_u32_u24 v{T0}, 7168, v{T0}
        v_and_b32 v{T0+1}, 7, v0
        v_lshl_add_u32 v{T0}, v{T0+1}, 4, v{T0}
        """)
        for i in range(8):
            a.atom(f"buffer_load_dwordx4 {vr(160 + 4 * i, 4)}, v{T0}, s[{S_B}:{S_B+3}], s53 offen\ns_add_u32 s53, s53, {8 * 7168}")
        return 8
    def h_extra(self, p, c, t):
        W = f"s[{S_WS}:{S_WS+3}]"
        ho = c.opt.get('hoflag', ''); st = c.opt.get('stflag', '')
        n = 0
        if t == 1:
            p(f"""
            v_and_b32 v60, 15, v0
            v_lshrrev_b32 v61, 4, v0
            v_lshlrev_b32 v60, 4, v60
            v_lshl_add_u32 v62, v61, 10, v60
            v_lshl_add_u32 v63, v61, 17, v60
            v_lshlrev_b32 v60, 2, v0
            s_lshl_b32 s4, s{S_WM}, 8
            s_lshl_b32 s53, s{S_NT3}, 14
            s_add_u32 s53, s53, s4
            s_add_u32 s53, s53, {WS_CSP}
            s_lshl_b32 s49, s{S_MT3}, 10
            s_add_u32 s50, s49, s4
            s_add_u32 s49, s49, s53
            s_lshr_b32 s3, s50, 1
            s_add_u32 s3, s3, {WS_G + 8192}
            s_add_u32 s50, s50, {WS_P2}
            buffer_load_dword v96, v60, {W}, s3 offen {ho}
            """)
            n += 1
        if 1 <= t <= 8:
            p(f"buffer_load_dwordx4 {vr(64 + 4 * (t - 1), 4)}, v63, {W}, s50 offen {ho}\ns_add_u32 s50, s50, 16384")
            n += 1
        if t == 5:
            p(f"buffer_store_dwordx2 v[48:49], v56, {W}, s49 offen {st}")
            n += 1
        if t == 11:
            for i in range(4):
                p(f"buffer_load_dwordx4 {vr(160 + 4 * i, 4)}, v62, {W}, s53 offen {ho}\ns_add_u32 s53, s53, 4096")
            n += 4
        return n
    def h_mix(self, p, c, t):
        if t == 1:
            for i in range(8): p(f"v_mov_b32 v{48 + i}, 0")
        if 1 <= t <= 4:
            for i in (2 * t - 2, 2 * t - 1):
                for d in range(4):
                    x = 160 + 4 * i + d
                    p(f"""
                    v_lshlrev_b32 v56, 16, v{x}
                    v_and_b32 v57, 0xffff0000, v{x}
                    v_add_f32 v{48 + 2 * d}, v{48 + 2 * d}, v56
                    v_add_f32 v{49 + 2 * d}, v{49 + 2 * d}, v57
                    """)
        if t == 5:
            for i in range(4): p(f"v_permlane32_swap_b32 v{48 + i}, v{52 + i}")
            for i in range(4): p(f"v_add_f32 v{48 + i}, v{48 + i}, v{52 + i}")
            for i in range(2): p(f"v_permlane16_swap_b32 v{48 + i}, v{50 + i}")
            for i in range(2): p(f"v_add_f32 v{48 + i}, v{48 + i}, v{50 + i}")
            for i in range(2): p(f"v_add_f32_dpp v{48 + i}, v{48 + i}, v{48 + i} row_ror:8 row_mask:0xf bank_mask:0xf")
            p(f"""
            v_and_b32 v56, 7, v0
            v_lshrrev_b32 v57, 4, v0
            v_lshlrev_b32 v56, 5, v56
            v_lshl_add_u32 v56, v57, 3, v56
            """)
        if t == 10:
            for st_ in (4, 2, 1):
                for i in range(st_):
                    for d in range(4): p(f"v_add_f32 v{64 + 4 * i + d}, v{64 + 4 * i + d}, v{64 + 4 * (i + st_) + d}")
        if t == 11:
            p(f"""
            v_permlane32_swap_b32 v64, v66
            v_permlane32_swap_b32 v65, v67
            v_add_f32 v64, v64, v66
            v_add_f32 v65, v65, v67
            v_mov_b32 v66, v64
            v_mov_b32 v67, v65
            v_permlane16_swap_b32 v64, v66
            v_permlane16_swap_b32 v65, v67
            v_add_f32 v64, v64, v66
            v_add_f32 v65, v65, v67
            v_mul_f32 v64, {hexf(1.0 / 1024)}, v64
            v_mul_f32 v65, {hexf(1.0 / 1024)}, v65
            v_fma_f32 v65, -v64, v64, v65
            v_max_f32 v65, 0, v65
            v_add_f32 v65, {hexf(1e-5)}, v65
            v_rsq_f32 v65, v65
            """)
        if t == 12:
            p(f"""
            v_and_b32 v57, 15, v0
            v_lshrrev_b32 v58, 5, v0
            v_lshl_add_u32 v57, v57, 1, v58
            s_lshl_b32 s3, s{S_WM}, 7
            v_lshl_add_u32 v57, v57, 2, s3
            v_lshl_add_u32 v58, v0, 2, s3
            v_add_u32 v57, {L_MU}, v57
            v_add_u32 v58, {L_MU}, v58
            """)
        if t == 13:
            for st_ in (2, 1):
                for i in range(st_):
                    for d in range(4): p(f"v_add_f32 v{160 + 4 * i + d}, v{160 + 4 * i + d}, v{160 + 4 * (i + st_) + d}")
            p(f"""
            v_permlane32_swap_b32 v160, v162
            v_permlane32_swap_b32 v161, v163
            v_add_f32 v160, v160, v162
            v_add_f32 v161, v161, v163
            v_permlane16_swap_b32 v160, v161
            v_add_f32 v160, v160, v161
            v_and_b32 v56, 15, v0
            v_lshrrev_b32 v59, 4, v0
            v_lshl_add_u32 v56, v56, 2, v59
            s_lshl_b32 s3, s{S_WM}, 8
            v_lshl_add_u32 v56, v56, 2, s3
            v_add_u32 v56, {L_CS}, v56
            """)
    def g_epi(self, p, c):
        st = c.opt.get('stflag', '')
        W = f"s[{S_WS}:{S_WS+3}]"
        lane_fields(p, 40, 41)
        p(f"""
        s_waitcnt lgkmcnt(0)
        s_mul_i32 s3, s{S_WN}, 448
        s_and_b32 s4, s{S_NT3}, 1
        s_lshl_b32 s4, s4, 7
        s_add_u32 s3, s3, s4
        s_add_u32 s3, s3, {L_CS}
        v_lshl_add_u32 v36, v41, 4, s3
        """)
        read_tok_consts(p, 76, 37, 40, True)
        for n in range(7): p(f"ds_read_b128 {vr(48 + 4 * n, 4)}, v36 offset:{64 * n}")
        for m in range(4): gelu_consts(p, 76 + 8 * m, True)
        p(f"""
        v_lshrrev_b32 v38, 5, v0
        v_mul_u32_u24 v38, {AF_PITCH}, v38
        v_and_b32 v39, 31, v0
        v_lshl_add_u32 v38, v39, 4, v38
        s_lshl_b32 s3, s{S_MT3}, 3
        s_lshl_b32 s4, s{S_WM}, 2
        s_add_u32 s3, s3, s4
        s_mul_i32 s42, s3, {AF_PITCH}
        s_mul_i32 s3, s{S_NT3}, 14
        s_mul_i32 s4, s{S_WN}, 7
        s_add_u32 s3, s3, s4
        s_lshl_b32 s3, s3, 9
        s_add_u32 s42, s42, s3
        s_add_u32 s42, s42, {WS_AF}
        s_add_u32 s43, s42, {2 * AF_PITCH}
        """)
        for n in range(7):
            items = []
            for m in range(4):
                for h in range(2): items.append((self.acc(m, n) + 2 * h, 48 + 4 * n + 2 * h, 76 + 8 * m))
            gelu_block(p, items, 108 + 16 * (n % 2), c.opt.get('pk', 1))
            for u in range(2):
                a = self.acc(2 * u, n)
                for i in range(4): p(f"v_cvt_pk_bf16_f32 v{a + i}, v{a + 2 * i}, v{a + 2 * i + 1}")
            for u in range(2):
                a = self.acc(2 * u, n)
                p(f"v_permlane32_swap_b32 v{a}, v{a + 2}")
                p(f"v_permlane32_swap_b32 v{a + 1}, v{a + 3}")
            for u in range(2):
                a = self.acc(2 * u, n)
                p(f"buffer_store_dwordx4 {vr(a, 4)}, v38, {W}, s{42 + u} offen offset:{n * 512} {st}")

WS_XCH = 48 * MB
def xch_off(c, nt_code, wave, dst):
    if not c.opt.get('xreuse', 0):
        return f"""
        s_lshl_b32 s3, s{S_MT2}, 4
        {nt_code}
        s_add_u32 s3, s3, s4
        s_lshl_b32 s3, s3, 2
        s_add_u32 s3, s3, s{wave}
        s_lshl_b32 s3, s3, 13
        s_add_u32 s{dst}, s3, {WS_XCH}
        """
    return f"""
    {nt_code}
    s_lshl_b32 s4, s4, 1
    s_and_b32 s3, s{wave}, 1
    s_add_u32 s4, s4, s3
    s_lshl_b32 s3, s{S_MT2}, 5
    s_add_u32 s3, s3, s4
    s_lshl_b32 s3, s3, 13
    s_add_u32 s3, s3, {WS_HS}
    s_lshl_b32 s4, s4, 4
    s_add_u32 s4, s4, s{S_MT2}
    s_lshl_b32 s4, s4, 13
    s_cmp_lt_u32 s{wave}, 2
    s_cselect_b32 s{dst}, s3, s4
    """

class W4(Gemm):
    NT = 4; KS = 3; nA = 6; nB = 6
    h_steps = (15, 16)
    def __init__(self, xw=2): self.xw = xw; self.nsteps = 18 + xw
    def __call__(self): return self
    stepA = 3072; stepB = 96 * 2048
    addr_regs = [32, 33, 34, 35, 36]
    zero_first = True
    pubkind = F_XCH
    pubstep = 4
    chain = True; pubv = 28
    def poll(self, c): return poll_flags(c, F_W3, S_MT2)
    def h_poll(self, c, t): return poll_flags(c, F_ATT, S_MT2, shift=1, nprod=32) if t == 15 else None
    def h_pre(self, p, c, t):
        if t == 16:
            if not self.xw: return
            srd(p, S_B, ptr('wo'), 1024 * 2048)
            p(f"""
            s_and_b32 s3, s{S_NT2}, 1
            s_mul_i32 s{S_SO[0]}, s3, {3 * self.xw * 1024}
            s_add_u32 s{S_SO[0]}, s{S_SO[0]}, {112 * 1024}
            s_mul_i32 s{S_SO[1]}, s3, {3 * self.xw * 32 * 2048}
            """)
    def xaddr(self, kk, m): return (32, m * 3072 + kk * 1024)
    def waddr(self, kk, n, j): return (33 + n, (32 * kk + 8 * j) * 256)
    def h_setup(self, p, c, first=False):
        srd(p, S_A, ptr('ws'), 18 * MB, WS_AF)
        srd(p, S_B, ptr('w4'), 3584 * 2048)
        p(f"""
        s_lshl_b32 s3, s{S_MT2}, 3
        s_lshl_b32 s4, s{S_WM}, 1
        s_add_u32 s3, s3, s4
        s_mul_i32 s3, s3, {AF_PITCH}
        s_mul_i32 s{S_LD[0]}, s{S_WM}, 6144
        s_add_u32 s{S_LD[1]}, s{S_LD[0]}, 24576
        """)
        if self.rotated(c):
            def emit(k):
                p(f"""
                s_cmp_ge_u32 s6, 3
                s_cselect_b32 s4, {AF_PITCH - 3072}, 0
                s_add_u32 s4, s4, s7
                s_add_u32 s4, s4, s3
                v_add_u32 v{32 + k}, s4, v1
                """)
            rot_pieces(p, 6, 0, f"s_lshr_b32 s6, s{S_NT2}, 1\ns_mul_i32 s6, s6, 3\ns_lshr_b32 s6, s6, 2", S_LD[0], emit)
        else:
            p("v_add_u32 v32, s3, v1")
            for i in range(1, 6): p(f"v_add_u32 v{32 + i}, {(i // 3) * AF_PITCH + (i % 3) * 1024}, v32")
        p(f"""
        v_lshrrev_b32 v{T0}, 4, v0
        v_and_b32 v{T0+1}, 15, v0
        v_lshlrev_b32 v{T0+2}, 1, v{T0}
        v_xor_b32 v{T0+1}, v{T0+1}, v{T0+2}
        s_mul_i32 s3, s{S_WM}, 24
        v_add_u32 v{T0}, s3, v{T0}
        v_lshlrev_b32 v{T0}, 11, v{T0}
        v_lshl_add_u32 v{T0}, v{T0+1}, 4, v{T0}
        s_lshr_b32 s4, s{S_NT2}, 1
        s_lshl_b32 s4, s4, 8
        """)
        if self.rotated(c):
            p(f"v_add_u32 v{T0}, s4, v{T0}")
            def emit(k):
                p(f"s_lshl_b32 s4, s6, 13\nv_add_u32 v{38 + k}, s4, v{T0}\ns_and_b32 s4, s6, 1\ns_lshl_b32 s4, s4, 7\nv_xor_b32 v{38 + k}, s4, v{38 + k}")
            rot_pieces(p, 6, 6, f"s_and_b32 s6, s{S_MT2}, 3\ns_mul_i32 s6, s6, 3\ns_lshr_b32 s6, s6, 1", S_LD[1], emit)
        else:
            p(f"v_add_u32 v38, s4, v{T0}\nv_xor_b32 v{T0}, 128, v38")
            for i in range(1, 6): p(f"v_add_u32 v{38 + i}, {4 * i * 2048}, v{38 if i % 2 == 0 else T0}")
        p(f"""
        s_and_b32 s3, s{S_NT2}, 1
        s_mul_i32 s{S_SO[0]}, s3, {54 * 1024}
        s_mul_i32 s{S_SO[1]}, s3, {54 * 32 * 2048}
        """)
        self.coop = c.opt.get('coop4', 0)
        if self.coop:
            p(f"""
            s_lshr_b32 s3, s{ptr('w4')}, 7
            s_sub_u32 s3, 3, s3
            s_and_b32 s3, s3, 7
            s_lshr_b32 s4, s{S_NT2}, 1
            s_lshr_b32 s5, s3, 1
            s_sub_u32 s5, s4, s5
            s_and_b32 s5, s5, 3
            s_lshr_b32 s4, s4, 2
            s_lshl_b32 s4, s4, 10
            s_lshl_b32 s3, s3, 7
            s_add_u32 s4, s4, s3
            s_sub_u32 s6, s5, 1
            s_lshl_b32 s6, s6, 2
            s_and_b32 s3, s{S_MT2}, 3
            s_add_u32 s6, s6, s3
            s_lshl_b32 s6, s6, 2
            s_add_u32 s6, s6, s{S_WM}
            s_lshl_b32 s6, s6, 12
            s_add_u32 s4, s4, s6
            s_add_u32 s4, s4, {c.opt.get('coopa', 1) * self.stepB}
            s_cmp_eq_u32 s5, 0
            s_cselect_b32 s3, 0, 16
            v_lshrrev_b32 v{T0}, 3, v0
            v_lshlrev_b32 v{T0}, 11, v{T0}
            v_and_b32 v{T0+1}, 7, v0
            v_lshl_add_u32 v{T0}, v{T0+1}, 4, v{T0}
            v_add_u32 v{T0}, s4, v{T0}
            v_mov_b32 v{T0+1}, 0x40000000
            v_cmp_gt_u32 vcc, s3, v0
            v_cndmask_b32 v44, v{T0+1}, v{T0}, vcc
            """)
    @property
    def nd(self): return 13 if self.coop else 12
    def dma_extra(self, c):
        return [f"s_mov_b32 m0, {L_DUMMY}\nbuffer_load_dwordx4 v44, s[{S_B}:{S_B+3}], s{S_SO[1]} offen lds"] if self.coop else []
    def rotated(self, c): return c.opt.get('rot', 0)
    def g_setup(self, p, c):
        lane_fields(p, None, T0 + 1, T0 + 2, T0 + 3)
        p(f"""
        s_mul_i32 s3, s{S_WM}, 12288
        s_add_u32 s3, s3, s{S_RD}
        v_add_u32 v32, s3, v1
        v_and_b32 v{T0+5}, 1, v{T0+1}
        v_lshl_add_u32 v{T0+5}, v{T0+5}, 2, v{T0+2}
        v_lshrrev_b32 v{T0+4}, 1, v{T0+1}
        v_lshl_add_u32 v{T0+4}, v{T0+4}, 4, v{T0+5}
        v_lshlrev_b32 v{T0+4}, 8, v{T0+4}
        v_lshl_add_u32 v{T0+4}, v{T0+3}, 3, v{T0+4}
        s_add_u32 s3, s{S_RD}, 24576
        v_add_u32 v{T0+4}, s3, v{T0+4}
        s_and_b32 s3, s{S_NT2}, 1
        s_lshl_b32 s3, s3, 2
        s_lshl_b32 s4, s{S_WN}, 1
        s_add_u32 s3, s3, s4
        v_xor_b32 v{T0+6}, s3, v{T0+5}
        v_lshl_add_u32 v35, v{T0+6}, 5, v{T0+4}
        v_xor_b32 v36, 32, v35
        v_xor_b32 v33, 128, v35
        v_xor_b32 v34, 160, v35
        """)
    def g_epi(self, p, c):
        st = c.opt.get('stflag', '')
        p(xch_off(c, f"s_mov_b32 s4, s{S_NT2}", S_WID, 3))
        p("s_add_u32 s4, s3, 4096")
        if c.opt.get('xbf'):
            for m in range(4):
                a, b = self.acc(m, 0), self.acc(m, 1)
                for i, r in enumerate((a, a + 2, b, b + 2)): p(f"v_cvt_pk_bf16_f32 v{144 + 4 * m + i}, v{r}, v{r + 1}")
                p(f"buffer_store_dwordx4 {vr(144 + 4 * m, 4)}, v1, s[{S_WS}:{S_WS+3}], s3 offen offset:{m * 1024} {st}")
        else:
          for i in range(8):
            p(f"buffer_store_dwordx4 {vr(192 + 4 * i, 4)}, v1, s[{S_WS}:{S_WS+3}], s{3 + i // 4} offen offset:{(i % 4) * 1024} {st}")
        p("s_waitcnt lgkmcnt(0)")

class WO(N64):
    def __init__(self, xw=2, xbar=False, pubstep=2): self.xw = xw; self.nsteps = 9 - 3 * xw // 2; self.xbar = xbar; self.pubstep = pubstep
    def __call__(self): return self
    order = 'perm32b'; bname = 'w4'; babytes = 3584 * 2048
    a_base = WS_AF; a_size = 18 * MB; a_pitch = AF_PITCH; a_k0 = 108 * 1024
    b_k0 = 108 * 32 * 2048
    ncall = 0; pubv = 28
    def dma_atoms(self, c):
        D = N64.dma_atoms(self, c)
        if self.ncall == 0:
            a = Atoms(); srd(a, S_B, ptr('wo'), 1024 * 2048)
            a(f"s_mov_b32 s{S_SO[0]}, {(112 + 6 * self.xw) * 1024}\ns_mov_b32 s{S_SO[1]}, {6 * self.xw * 32 * 2048}")
            D[-1] += "\n" + "\n".join(a.L)
        self.ncall += 1
        return D
    def h_poll(self, c, t):
        m = c.opt.get('xmode', 0)
        if (m == 1 and t == self.nsteps - 2) or (m == 2 and t == self.nsteps - 1): return poll_flags(c, F_XCH, S_MT2, single=S_NT2)
    def h_pre(self, p, c, t):
        if t == self.nsteps - 2 and c.opt.get('xmode', 0) == 0: poll_flags(c, F_XCH, S_MT2, single=S_NT2).issue(p)
        if t == self.nsteps - 1 and c.opt.get('xmode', 0) == 3: poll_flags(c, F_XCH, S_MT2, single=S_NT2).issue(p)
    def h_extra(self, p, c, t):
        if t == self.nsteps - 1 and c.opt.get('xmode', 0) != 2:
            if c.opt.get('xmode', 0) in (0, 3): poll_flags(c, F_XCH, S_MT2, single=S_NT2).check(p)
            p.add(self.xch)
            return len(self.xch)
        return 0
    def h_epi(self, p, c):
        if c.opt.get('xmode', 0) == 2: p.add(self.xch)
        p("s_waitcnt vmcnt(0)\ns_barrier")
        hstep_stamp(p, c)
    def g_zero(self, p): pass
    def h_tail(self, c):
        ho = c.opt.get('hoflag', '')
        W = f"s[{S_WS}:{S_WS+3}]"
        pre = xch_off(c, f"s_xor_b32 s4, s{S_NT2}, 1", S_WM, 49) + f"""
        s_lshl_b32 s3, s{S_NT2}, 1
        s_lshr_b32 s4, s{S_WM}, 1
        s_add_u32 s3, s3, s4
        s_lshl_b32 s3, s3, 10
        s_lshl_b32 s4, s{S_MT2}, 1
        s_and_b32 s5, s{S_WM}, 1
        s_add_u32 s4, s4, s5
        s_lshl_b32 s4, s4, 17
        s_add_u32 s3, s3, s4
        s_add_u32 s50, s3, {WS_X1}
        s_mul_i32 s4, s{S_WM}, 12288
        s_add_u32 m0, s4, s{S_DMA}
        """
        D = []
        for m in range(4): D.append(f"buffer_load_dwordx4 v1, {W}, s50 offen {ho} lds\ns_add_u32 s50, s50, 32768\ns_add_u32 m0, m0, 1024")
        for i in range(8):
            D.append(f"buffer_load_dwordx4 v1, {W}, s49 offen offset:{(i % 4) * 1024} {ho} lds" + ("\ns_add_u32 s49, s49, 4096\ns_add_u32 m0, m0, 4096" if i == 3 else ""))
        D[0] = pre + D[0]
        self.xch = D[4:8] if c.opt.get('xbf') else D[4:]
        return D[:4]
    def g_pre(self, p, c):
        ho = c.opt.get('hoflag', '')
        p(f"""
        s_lshl_b32 s4, s{S_MT2}, 9
        s_lshl_b32 s5, s{S_WM}, 8
        s_add_u32 s4, s4, s5
        s_add_u32 s4, s4, {WS_G + 8192}
        v_lshlrev_b32 v36, 2, v{T0}
        """)
        for m in range(4): p(f"buffer_load_dword v{176 + 2 * m}, v36, s[{S_WS}:{S_WS+3}], s4 offen offset:{64 * m} {ho}")
    def g_epi(self, p, c):
        st = c.opt.get('outflag', '')
        p(f"""
        s_mul_i32 s3, s{S_WID}, 12288
        s_add_u32 s3, s3, s{S_RD}
        v_add_u32 v37, s3, v1
        """)
        for m in range(4): p(f"ds_read_b128 {vr(96 + 4 * m, 4)}, v37 offset:{1024 * m}")
        srd(p, S_AUX, ptr('out'), 2048 * 2048)
        lane_fields(p, T0, T0 + 1)
        p(f"""
        s_lshl_b32 s3, s{S_MT2}, 7
        s_lshl_b32 s4, s{S_WM}, 6
        s_add_u32 s3, s3, s4
        v_add_u32 v36, s3, v{T0}
        v_lshlrev_b32 v36, 11, v36
        v_and_b32 v{T0+2}, 1, v{T0+1}
        v_lshrrev_b32 v{T0+3}, 1, v{T0+1}
        v_lshl_add_u32 v36, v{T0+2}, 5, v36
        v_lshl_add_u32 v36, v{T0+3}, 4, v36
        s_lshl_b32 s3, s{S_NT2}, 7
        s_lshl_b32 s4, s{S_WN}, 6
        s_add_u32 s42, s3, s4
        """)
        for m in range(4):
            for n in range(2):
                a = self.acc(m, n)
                for d in range(2):
                    x = 96 + 4 * m + 2 * n + d
                    p(f"v_lshlrev_b32 v48, 16, v{x}\nv_and_b32 v49, 0xffff0000, v{x}")
                    p(f"v_pk_fma_f32 {vr(a + 2 * d, 2)}, v[48:49], {vr(176 + 2 * m, 2)}, {vr(a + 2 * d, 2)} op_sel_hi:[1,0,1]")
        p("s_barrier")
        for m in range(4):
            for n in range(1 if c.opt.get('xbf') else 2): p(f"ds_read_b128 {vr(144 + 4 * (4 * n + m), 4)}, v37 offset:{4096 + 1024 * (4 * n + m)}")
        for m in range(4):
            a, b = self.acc(m, 0), self.acc(m, 1)
            if c.opt.get('xbf'):
                for i in range(4): p(f"v_lshlrev_b32 v{48 + 2 * i}, 16, v{144 + 4 * m + i}\nv_and_b32 v{49 + 2 * i}, 0xffff0000, v{144 + 4 * m + i}")
                for i, r in enumerate((a, a + 2, b, b + 2)): p(f"v_pk_add_f32 {vr(r, 2)}, {vr(r, 2)}, {vr(48 + 2 * i, 2)}")
            else:
                for r in (a, a + 2, b, b + 2): p(f"v_pk_add_f32 {vr(r, 2)}, {vr(r, 2)}, {vr(r - 80, 2)}")
            t = 72 + 4 * m
            for i, r in enumerate((a, a + 2, b, b + 2)): p(f"v_cvt_pk_bf16_f32 v{t + i}, v{r}, v{r + 1}")
            p(f"v_permlane16_swap_b32 v{t}, v{t + 2}")
            p(f"v_permlane16_swap_b32 v{t + 1}, v{t + 3}")
            p(f"buffer_store_dwordx4 {vr(t, 4)}, v36, s[{S_AUX}:{S_AUX+3}], s42 offen {st}")
            if m < 3: p(f"s_add_u32 s42, s42, {16 * 2048}")


def stats_code(p, c, xs, gs, wave):
    W = f"s[{S_WS}:{S_WS+3}]"
    st = c.opt.get('stflag', '')
    q = QKV()
    for t in range(2, 8): QKV.h_mix(q, p, c, t)
    QKV.h_extra(q, p, c, 7)

class W1F(W1):
    xbar = False
    h_steps = (0, 1, 2, 3, 4, 5)
    def h_first(self, p, c): pass
    def g_first(self, p, c, pf=True):
        srd(p, S_A, ptr('x'), 2048 * 2048)
        srd(p, S_B, ptr('gate'), 2048)
        p(f"""
        s_lshl_b32 s48, s{S_MT3}, 4
        s_add_u32 s48, s48, s{S_NT3}
        s_lshl_b32 s48, s48, 3
        s_lshl_b32 s3, s{S_WID}, 1
        s_add_u32 s48, s48, s3
        s_lshl_b32 s3, s48, 11
        buffer_load_dwordx4 v[64:67], v1, s[{S_A}:{S_A+3}], s3 offen
        buffer_load_dwordx4 v[68:71], v1, s[{S_A}:{S_A+3}], s3 offen offset:1024
        buffer_load_dwordx4 v[72:75], v1, s[{S_A}:{S_A+3}], s3 offen offset:2048
        buffer_load_dwordx4 v[76:79], v1, s[{S_A}:{S_A+3}], s3 offen offset:3072
        buffer_load_dwordx4 v[80:83], v1, s[{S_B}:{S_B+3}], 0 offen
        buffer_load_dwordx4 v[84:87], v1, s[{S_B}:{S_B+3}], 0 offen offset:1024
        """)
        if pf: g_prefetch(p, c, [('w1', 2 * MB, i, 1) for i in range(2)])
    def early(self, p, c): stats_code(p, c, 64, 80, S_WID)
    def h_poll(self, c, t):
        if t == 0: return poll_init(c)
        if t == 5: return poll_flags(c, F_ST, S_MT2)
    def h_post(self, p, c, t): pass
    def h_extra(self, p, c, t):
        L = c.opt.get('w1pf', {1: [0], 2: [1], 3: [2]})
        return g_prefetch(p, c, [('wqkv', 6 * MB, i, 1) for i in L[t]]) if t in L else 0
    def g_sites(self, c):
        def pub(p):
            p("s_waitcnt vmcnt(0)")
            publish(p, c, F_ST, False)
        def ld(p):
            ho = c.opt.get('hoflag', '')
            p(f"""
            s_lshl_b32 s3, s{S_MT2}, 9
            s_lshl_b32 s4, s{S_WM}, 8
            s_add_u32 s3, s3, s4
            s_add_u32 s3, s3, {WS_ST1}
            s_add_u32 s4, s3, 8192
            v_and_b32 v36, 15, v0
            v_lshlrev_b32 v36, 2, v36
            """)
            for m in range(4):
                p(f"buffer_load_dword v{144 + 8 * m}, v36, s[{S_WS}:{S_WS+3}], s3 offen offset:{64 * m} {ho}")
                p(f"buffer_load_dword v{145 + 8 * m}, v36, s[{S_WS}:{S_WS+3}], s4 offen offset:{64 * m} {ho}")
        return {1: pub, 6: ld}
    lds_consts = False

class QKV2(QKV):
    h_steps = (0,)
    zero_first = True
    def h_setup(self, p, c, first=False):
        srd(p, S_A, ptr('x'), 2048 * 2048)
        QKV.h_setup(self, p, c)
    def g_sites(self, c): return {}
    def h_poll(self, c, t): return None
    def h_mix(self, p, c, t): pass
    def h_extra(self, p, c, t):
        if t == 0: return g_prefetch(p, c, c.opt.get('qpf', [('wqkv', 6 * MB, 3, 3)]))
        if t == 9: return g_prefetch(p, c, [('w2', 2 * MB, 0, 2)])
        return 0
    h_steps = (0, 9)

class W2X(W2):
    xbar = True
    pubstep = 2

class QKVG(QKV):
    h_steps = (0, 1, 2, 3, 4, 5, 6)
    def h_first(self, p, c): srd(p, S_A, ptr('x'), 2048 * 2048)
    def g_first(self, p, c):
        W1F.g_first(self, p, c, False)
        QKV.g_first(self, p, c)
    def early(self, p, c): stats_code(p, c, 64, 80, S_WID)
    def h_mix(self, p, c, t): pass
    def h_extra(self, p, c, t): return QKV.h_extra(self, p, c, t) if t < 7 else 0
    def g_sites(self, c):
        def pub(p):
            p("s_waitcnt vmcnt(0)")
            publish(p, c, F_ST, False)
        return {7: pub}


def cs3_loads(a, c, S_MT3=S_MT3, S_NT3=S_NT3, dst=160):
    t = Atoms()
    srd(t, S_AUX, ptr('w3'), 1024 * 7168)
    t(f"""
    s_mul_i32 s6, s{S_NT3}, 448
    s_and_b32 s6, s6, {0xffffff80}
    s_lshl_b32 s4, s{S_WM}, 7
    s_add_u32 s6, s6, s4
    s_lshl_b32 s4, s{S_MT3}, 6
    v_lshrrev_b32 v{T0}, 3, v0
    v_add_u32 v{T0}, s4, v{T0}
    v_mul_u32_u24 v{T0}, 7168, v{T0}
    v_and_b32 v{T0+1}, 7, v0
    v_lshl_add_u32 v{T0}, v{T0+1}, 4, v{T0}
    """)
    a("\n".join(t.L))
    for i in range(8):
        a(f"buffer_load_dwordx4 {vr(dst + 4 * i, 4)}, v{T0}, s[{S_AUX}:{S_AUX+3}], s6 offen\ns_add_u32 s6, s6, {8 * 7168}")
    return 8
def cs3_math(p, c, *ids):
    q = W3()
    for t in range(1, 6): W3.h_mix(q, p, c, t)
    cs3_store(p, c, *ids)
def cs3_store(p, c, S_MT3=S_MT3, S_NT3=S_NT3):
    p(f"""
    s_lshl_b32 s3, s{S_NT3}, 4
    s_add_u32 s3, s3, s{S_MT3}
    s_lshl_b32 s3, s3, 2
    s_add_u32 s3, s3, s{S_WM}
    s_lshl_b32 s3, s3, 8
    s_add_u32 s3, s3, {WS_CSP}
    buffer_store_dwordx2 v[48:49], v56, s[{S_WS}:{S_WS+3}], s3 offen {c.opt.get('stflag', '')}
    """)

class W3E(W3):
    h_steps = (2, 3, 4, 5)
    chain = True
    def g_sites(self, c): return {}
    def h_poll(self, c, t): return None
    def poll(self, c):
        P = poll_flags(c, F_W2, S_MT3)
        P.addr += f"""
        v_and_b32 v138, 14, v0
        v_lshlrev_b32 v138, 4, v138
        v_and_b32 v139, 1, v0
        s_lshl_b32 s3, s{S_NT3}, 1
        v_add3_u32 v138, v138, v139, s3
        v_lshlrev_b32 v138, 7, v138
        v_add_u32 v136, {(F_W2 - F_W1) * 32768}, v136
        v_cmp_gt_u32 vcc, 32, v0
        v_cndmask_b32 v136, v138, v136, vcc
        s_mov_b32 s{S_POLL}, {WS_FLAG + F_W1 * 32768}
        """
        return P
    def h_late(self, a, c):
        W = f"s[{S_WS}:{S_WS+3}]"
        ho = c.opt.get('hoflag', '')
        a.atom(f"""
        v_and_b32 v{T0}, 15, v0
        v_lshrrev_b32 v{T0+1}, 4, v0
        v_lshlrev_b32 v{T0}, 4, v{T0}
        v_lshl_add_u32 v{T0+2}, v{T0+1}, 10, v{T0}
        v_lshl_add_u32 v{T0+3}, v{T0+1}, 17, v{T0}
        v_lshlrev_b32 v{T0+4}, 2, v0
        s_lshl_b32 s53, s{S_NT3}, 14
        s_lshl_b32 s4, s{S_WM}, 8
        s_add_u32 s53, s53, s4
        s_add_u32 s53, s53, {WS_CSP}
        s_lshl_b32 s50, s{S_MT3}, 10
        s_add_u32 s50, s50, s4
        s_lshr_b32 s49, s50, 1
        s_add_u32 s49, s49, {WS_G + 8192}
        s_add_u32 s50, s50, {WS_P2}
        """)
        for i in range(4): a.atom(f"buffer_load_dwordx4 {vr(160 + 4 * i, 4)}, v{T0+2}, {W}, s53 offen {ho}\ns_add_u32 s53, s53, 4096")
        for i in range(8): a.atom(f"buffer_load_dwordx4 {vr(176 + 4 * i, 4)}, v{T0+3}, {W}, s50 offen {ho}\ns_add_u32 s50, s50, 16384")
        a.atom(f"buffer_load_dword v208, v{T0+4}, {W}, s49 offen {ho}")
        return 13
    def h_extra(self, p, c, t): return 0
    def h_mix(self, p, c, t):
        if t == 2:
            for i in range(4):
                for d in range(4): p(f"v_add_f32 v{64 + 4 * i + d}, v{176 + 4 * i + d}, v{192 + 4 * i + d}")
            for st_ in (2, 1):
                for i in range(st_):
                    for d in range(4): p(f"v_add_f32 v{64 + 4 * i + d}, v{64 + 4 * i + d}, v{64 + 4 * (i + st_) + d}")
            p("v_mov_b32 v96, v208")
        if t in (3, 4, 5): W3.h_mix(self, p, c, t + 8)

class W2C(W2):
    h_steps = (1, 2, 3, 4, 5)
    def h_late(self, a, c):
        if c.opt.get('cs3at') != 'late': return 0
        t = Atoms(); n = cs3_loads(t, c, S_MT2, S_NT2); a.atom("\n".join(t.L)); return n
    def h_mix(self, p, c, t):
        if 1 <= t <= 5: W3.h_mix(self, p, c, t)
    def h_extra(self, p, c, t):
        if t == 5:
            cs3_store(p, c, S_MT2, S_NT2); return 1
        return 0
class W3F(W3E):
    def poll(self, c): return poll_flags(c, F_W2, S_MT3, col_sgpr=S_NT3)

class W3G(W3F):
    h_steps = tuple(range(1, 14))
    def h_late(self, a, c): return 0
    def h_extra(self, p, c, t):
        W = f"s[{S_WS}:{S_WS+3}]"
        ho = c.opt.get('hoflag', '')
        n = W3.h_extra(self, p, c, t) if (1 <= t <= 8 and t != 5) else 0
        if t == 5:
            p(f"buffer_load_dwordx4 {vr(64 + 4 * (t - 1), 4)}, v63, {W}, s50 offen {ho}\ns_add_u32 s50, s50, 16384"); n = 1
        if 8 <= t <= 11:
            p(f"buffer_load_dwordx4 {vr(160 + 4 * (t - 8), 4)}, v62, {W}, s53 offen {ho}\ns_add_u32 s53, s53, 4096"); n += 1
        return n
    def h_mix(self, p, c, t):
        if t >= 10: W3.h_mix(self, p, c, t)

class W3W(W3E):
    h_steps = (13,)
    pubv = 28
    def poll(self, c): return poll_flags(c, F_W2, S_MT3)
    def h_late(self, a, c): return 0
    def g_sites(self, c):
        return {2: lambda p: publish(p, c, F_CS, False, 28)} if c.opt.get('persist') else {}
    def h_poll(self, c, t): return poll_flags(c, F_CS, S_NT3) if t == 13 else None
    def w_indep(self, p, c): cs3_loads(p, c)
    def w_dep(self, p, c):
        for t in range(1, 9): W3G.h_extra(self, p, c, t) if t < 8 else W3.h_extra(self, p, c, t)
    def w_math(self, p, c):
        cs3_math(p, c)
        for t in (10, 11, 12): W3.h_mix(self, p, c, t)
    def w_fin(self, p, c):
        p("""
        ds_write_b32 v57, v64
        ds_write_b32 v57, v65 offset:512
        s_mov_b32 exec_hi, 0
        ds_write_b32 v58, v96 offset:1024
        s_mov_b32 exec_hi, -1
        s_waitcnt lgkmcnt(0)
        """)
    def h_pre(self, p, c, t):
        if t == 14:
            p(f"""
            v_and_b32 v60, 15, v0
            v_lshrrev_b32 v61, 4, v0
            v_lshlrev_b32 v60, 4, v60
            v_lshl_add_u32 v62, v61, 10, v60
            s_lshl_b32 s4, s{S_WM}, 8
            s_lshl_b32 s53, s{S_NT3}, 14
            s_add_u32 s53, s53, s4
            s_add_u32 s53, s53, {WS_CSP}
            """)
    def h_extra(self, p, c, t): return W3.h_extra(self, p, c, 11) if t == 14 else 0
    def h_mix(self, p, c, t):
        if t == 15: W3.h_mix(self, p, c, 13)
    def h_post(self, p, c, t):
        if t == 15: p("ds_write_b32 v56, v160\ns_waitcnt lgkmcnt(0)")

class W2D(W2):
    def w_last(self, p, c): return cs3_loads(p, c, S_MT2, S_NT2, 176)
    def g_epi(self, p, c):
        p(f"""
        v_and_b32 v8, 15, v0
        v_and_b32 v9, 1, v0
        v_lshlrev_b32 v9, 4, v9
        v_mov_b32 v10, 0x3f80
        v_lshlrev_b32 v9, v9, v10
        v_lshrrev_b32 v8, 1, v8
        """)
        for r in range(4): p(f"v_cmp_eq_u32 vcc, {r}, v8\nv_cndmask_b32 v{12 + r}, 0, v9, vcc")
        for i in range(8): p(mfma16(16, 12, 176 + 4 * i, "0" if i == 0 else None))
        W2.g_epi(self, p, c)
        for r in range(4): p(f"v_add_f32_dpp v{16 + r}, v{16 + r}, v{16 + r} row_ror:8 row_mask:0xf bank_mask:0xf")
        p(f"""
        v_and_b32 v8, 7, v0
        v_lshrrev_b32 v9, 4, v0
        v_lshlrev_b32 v8, 5, v8
        v_lshl_add_u32 v8, v9, 4, v8
        s_lshl_b32 s3, s{S_NT2}, 4
        s_add_u32 s3, s3, s{S_MT2}
        s_lshl_b32 s3, s3, 2
        s_add_u32 s3, s3, s{S_WID}
        s_lshl_b32 s3, s3, 8
        s_add_u32 s3, s3, {WS_CSP}
        s_mov_b32 exec_lo, 0x00ff00ff
        s_mov_b32 exec_hi, 0
        buffer_store_dwordx4 v[16:19], v8, s[{S_WS}:{S_WS+3}], s3 offen {c.opt.get('stflag', '')}
        s_mov_b64 exec, -1
        """)

class W3X(W3F):
    h_steps = ()
    quiet = True
    def h_late(self, a, c): return 0
    def h_mix(self, p, c, t): pass
    def h_post(self, p, c, t): pass
    def w_indep(self, p, c): pass
    def w_dep(self, p, c):
        for t in range(1, 12): W3G.h_extra(self, p, c, t)
    def w_math(self, p, c):
        for t in (10, 11, 12, 13): W3.h_mix(self, p, c, t)
    def w_fin(self, p, c): W3.h_post(self, p, c, 15)
```

```python
from tasks import *
def ids4(p):
    p(f"""
    s_lshr_b32 s3, s{S_XCD}, 2
    s_lshl_b32 s3, s3, 3
    s_and_b32 s4, s{S_IDX}, 7
    s_add_u32 s{S_MT2}, s3, s4
    s_lshr_b32 s3, s{S_IDX}, 3
    s_lshl_b32 s3, s3, 2
    s_and_b32 s4, s{S_XCD}, 3
    s_add_u32 s{S_NT2}, s3, s4
    """)

class W4Q(Gemm):
    NT = 8; KS = 2; nA = 4; nB = 8; fr0 = 32
    stepA = 2048; stepB = 64 * 2048
    addr_regs = [8, 9, 10, 11, 12, 13, 14, 15, 16]
    zero_first = True
    pubkind = F_XCH
    pubstep = 4; pubv = 28
    h_steps = (11, 12)
    barpos = 8
    chain = True
    def __init__(self, xw=3): self.xw = xw; self.nsteps = 14 + xw
    def __call__(self): return self
    def poll(self, c): return poll_flags(c, F_W3, S_MT2)
    def h_poll(self, c, t): return poll_flags(c, F_ATT, S_MT2, shift=1, nprod=32) if t == 11 else None
    def h_pre(self, p, c, t):
        if t == 12 and self.xw:
            srd(p, S_B, ptr('wo'), 1024 * 2048)
            p(f"""
            s_and_b32 s3, s{S_NT2}, 3
            s_mul_i32 s{S_SO[0]}, s3, {2 * self.xw * 1024}
            s_add_u32 s{S_SO[0]}, s{S_SO[0]}, {112 * 1024}
            s_mul_i32 s{S_SO[1]}, s3, {2 * self.xw * 32 * 2048}
            """)
    def xaddr(self, kk, m): return (8, m * 2048 + kk * 1024)
    def waddr(self, kk, n, j): return (9 + n, (32 * kk + 8 * j) * 512)
    def h_setup(self, p, c, first=False):
        ids4(p)
        srd(p, S_A, ptr('ws'), 18 * MB, WS_AF)
        srd(p, S_B, ptr('w4'), 3584 * 2048)
        p(f"""
        s_lshl_b32 s3, s{S_MT2}, 3
        s_lshl_b32 s4, s{S_WM}, 1
        s_add_u32 s3, s3, s4
        s_mul_i32 s3, s3, {AF_PITCH}
        v_add_u32 v32, s3, v1
        v_add_u32 v33, 1024, v32
        v_add_u32 v34, {AF_PITCH}, v32
        v_add_u32 v35, {AF_PITCH + 1024}, v32
        s_lshr_b32 s4, s{S_NT2}, 2
        s_lshl_b32 s4, s4, 9
        s_lshl_b32 s3, s{S_WM}, 15
        s_add_u32 s4, s4, s3
        v_lshrrev_b32 v{T0}, 5, v0
        v_and_b32 v{T0+1}, 31, v0
        v_lshl_add_u32 v{T0+2}, v{T0}, 11, s4
        v_lshlrev_b32 v{T0}, 1, v{T0}
        v_xor_b32 v{T0+1}, v{T0+1}, v{T0}
        """)
        for i in range(4):
            p(f"""
            v_xor_b32 v{T0+3}, {4 * i}, v{T0+1}
            v_lshl_add_u32 v{T0+3}, v{T0+3}, 4, v{T0+2}
            v_add_u32 v{36 + i}, {2 * i * 2048}, v{T0+3}
            v_add_u32 v{40 + i}, {(2 * i + 8) * 2048}, v{T0+3}
            """)
        p(f"""
        s_lshl_b32 s{S_LD[0]}, s{S_WM}, 12
        s_lshl_b32 s{S_LD[1]}, s{S_WM}, 13
        s_add_u32 s{S_LD[1]}, s{S_LD[1]}, 16384
        s_and_b32 s3, s{S_NT2}, 3
        s_mul_i32 s{S_SO[0]}, s3, {28 * 1024}
        s_mul_i32 s{S_SO[1]}, s3, {28 * 32 * 2048}
        """)
    def g_setup(self, p, c):
        ids4(p)
        lane_fields(p, None, T0 + 1, T0 + 2, T0 + 3)
        p(f"""
        s_lshl_b32 s3, s{S_MT2}, 4
        s_add_u32 s3, s3, s{S_NT2}
        s_lshl_b32 s3, s3, 7
        s_add_u32 s{S_FL + F_XCH}, s3, {WS_FLAG + F_XCH * 32768}
        s_lshl_b32 s3, s{S_WM}, 13
        s_add_u32 s3, s3, s{S_RD}
        v_add_u32 v8, s3, v1
        v_and_b32 v{T0+5}, 1, v{T0+1}
        v_lshl_add_u32 v{T0+5}, v{T0+5}, 2, v{T0+2}
        v_lshrrev_b32 v{T0+4}, 1, v{T0+1}
        v_lshl_add_u32 v{T0+4}, v{T0+4}, 4, v{T0+5}
        v_lshlrev_b32 v{T0+4}, 9, v{T0+4}
        v_lshl_add_u32 v{T0+4}, v{T0+3}, 3, v{T0+4}
        s_add_u32 s3, s{S_RD}, 16384
        v_add_u32 v{T0+4}, s3, v{T0+4}
        s_and_b32 s3, s{S_NT2}, 3
        s_lshl_b32 s3, s3, 2
        s_lshl_b32 s4, s{S_WN}, 1
        s_add_u32 s3, s3, s4
        v_xor_b32 v{T0+6}, s3, v{T0+5}
        v_lshl_add_u32 v15, v{T0+6}, 5, v{T0+4}
        v_xor_b32 v16, 32, v15
        """)
        for j in range(3):
            for nb in range(2): p(f"v_xor_b32 v{9 + 2 * j + nb}, {(j + 1) * 128 + nb * 32}, v15")
    def g_epi(self, p, c):
        st = c.opt.get('stflag', '')
        t = 32
        for j in range(3):
            p(f"""
            s_xor_b32 s4, s{S_NT2}, {j + 1}
            s_lshl_b32 s3, s{S_MT2}, 4
            s_add_u32 s3, s3, s4
            s_lshl_b32 s3, s3, 2
            s_add_u32 s3, s3, s{S_WID}
            s_mul_i32 s3, s3, 12288
            s_add_u32 s{42 + j}, s3, {WS_XCH + j * 4096}
            """)
        for j in range(3):
            for m in range(4):
                a, b = self.acc(m, 2 * j), self.acc(m, 2 * j + 1)
                for i, r in enumerate((a, a + 2, b, b + 2)): p(f"v_cvt_pk_bf16_f32 v{t + i}, v{r}, v{r + 1}")
                p(f"buffer_store_dwordx4 {vr(t, 4)}, v1, s[{S_WS}:{S_WS+3}], s{42 + j} offen offset:{m * 1024} {st}")
                t += 4

class WOQ(WO):
    bname = 'wo'; babytes = 1024 * 2048
    def __init__(self, xw=3, xbar=False, pubstep=1, lead=0):
        self.lead = lead; self.h_steps = (7 - 2 * xw - lead,)
        self.xw = xw; self.nsteps = 8 - 2 * xw; self.xbar = xbar; self.pubstep = pubstep
        self.a_k0 = (112 + 8 * xw) * 1024; self.b_k0 = 8 * xw * 32 * 2048
    def dma_atoms(self, c): return N64.dma_atoms(self, c)
    def h_pre(self, p, c, t): pass
    def h_extra(self, p, c, t):
        if self.lead and t == self.nsteps - self.lead: self.xdma(p, c)
        return 12 if self.lead and t >= self.nsteps - self.lead else 0
    def h_tail(self, c): return []
    def h_poll(self, c, t):
        if t != self.nsteps - 1 - self.lead: return None
        P = poll_flags(c, F_XCH, 49, shift=2, nprod=4)
        P.addr = f"s_lshl_b32 s49, s{S_MT2}, 4\ns_add_u32 s49, s49, s{S_NT2}\n" + P.addr
        return P
    def h_epi(self, p, c):
        if not self.lead: self.xdma(p, c)
        p("s_waitcnt vmcnt(0)\ns_barrier")
        hstep_stamp(p, c)
    def xdma(self, p, c):
        ho = c.opt.get('hoflag', '')
        p(f"""
        s_lshl_b32 s3, s{S_MT2}, 4
        s_add_u32 s3, s3, s{S_NT2}
        s_lshl_b32 s3, s3, 2
        s_add_u32 s3, s3, s{S_WM}
        s_mul_i32 s3, s3, 12288
        s_add_u32 s3, s3, {WS_XCH}
        s_mul_i32 s4, s{S_WM}, 12288
        s_add_u32 m0, s4, s{S_DMA}
        """)
        for i in range(12):
            p(f"buffer_load_dwordx4 v1, s[{S_WS}:{S_WS+3}], s3 offen offset:{(i % 4) * 1024} {ho} lds")
            if i % 4 == 3 and i < 11: p("s_add_u32 s3, s3, 4096\ns_add_u32 m0, m0, 4096")
    def early(self, p, c):
        ho = c.opt.get('hoflag', '')
        W = f"s[{S_WS}:{S_WS+3}]"
        p(f"""
        s_lshl_b32 s3, s{S_NT2}, 1
        s_add_u32 s3, s3, s{S_WN}
        s_lshl_b32 s4, s{S_MT2}, 1
        s_add_u32 s4, s4, s{S_WM}
        s_lshl_b32 s6, s4, 17
        s_lshl_b32 s5, s3, 10
        s_add_u32 s6, s6, s5
        s_add_u32 s6, s6, {WS_X1}
        s_lshl_b32 s4, s4, 8
        s_add_u32 s4, s4, {WS_G + 8192}
        v_and_b32 v18, 15, v0
        v_lshlrev_b32 v18, 2, v18
        """)
        for m in range(4):
            p(f"buffer_load_dwordx4 {vr(2 + 4 * m, 4)}, v1, {W}, s6 offen {ho}")
            p(f"buffer_load_dword v{20 + 2 * m}, v18, {W}, s4 offen offset:{64 * m} {ho}")
            if m < 3: p("s_add_u32 s6, s6, 32768")
    def g_pre(self, p, c): pass
    def g_epi(self, p, c):
        st = c.opt.get('outflag', '')
        p(f"""
        s_mul_i32 s3, s{S_WID}, 12288
        s_add_u32 s3, s3, s{S_RD}
        v_add_u32 v37, s3, v1
        """)
        srd(p, S_AUX, ptr('out'), 2048 * 2048)
        lane_fields(p, T0, T0 + 1)
        p(f"""
        s_lshl_b32 s3, s{S_MT2}, 7
        s_lshl_b32 s4, s{S_WM}, 6
        s_add_u32 s3, s3, s4
        v_add_u32 v36, s3, v{T0}
        v_lshlrev_b32 v36, 11, v36
        v_and_b32 v{T0+2}, 1, v{T0+1}
        v_lshrrev_b32 v{T0+3}, 1, v{T0+1}
        v_lshl_add_u32 v36, v{T0+2}, 5, v36
        v_lshl_add_u32 v36, v{T0+3}, 4, v36
        s_lshl_b32 s3, s{S_NT2}, 7
        s_lshl_b32 s4, s{S_WN}, 6
        s_add_u32 s42, s3, s4
        """)
        for m in range(4):
            for n in range(2):
                a = self.acc(m, n)
                for d in range(2):
                    x = 2 + 4 * m + 2 * n + d
                    p(f"v_lshlrev_b32 v48, 16, v{x}\nv_and_b32 v49, 0xffff0000, v{x}")
                    p(f"v_pk_fma_f32 {vr(a + 2 * d, 2)}, v[48:49], {vr(20 + 2 * m, 2)}, {vr(a + 2 * d, 2)} op_sel_hi:[1,0,1]")
        p("s_barrier")
        for m in range(4):
            for j in range(3): p(f"ds_read_b128 {vr(144 + 12 * m + 4 * j, 4)}, v37 offset:{4096 * j + 1024 * m}")
        for m in range(4):
            a, b = self.acc(m, 0), self.acc(m, 1)
            for j in range(3):
                for i, r in enumerate((a, a + 2, b, b + 2)):
                    x = 144 + 12 * m + 4 * j + i; u = 48 + 2 * i
                    p(f"v_lshlrev_b32 v{u}, 16, v{x}\nv_and_b32 v{u+1}, 0xffff0000, v{x}")
                for i, r in enumerate((a, a + 2, b, b + 2)): p(f"v_pk_add_f32 {vr(r, 2)}, {vr(r, 2)}, {vr(48 + 2 * i, 2)}")
            t = 72 + 4 * m
            for i, r in enumerate((a, a + 2, b, b + 2)): p(f"v_cvt_pk_bf16_f32 v{t + i}, v{r}, v{r + 1}")
            p(f"v_permlane16_swap_b32 v{t}, v{t + 2}")
            p(f"v_permlane16_swap_b32 v{t + 1}, v{t + 3}")
            p(f"buffer_store_dwordx4 {vr(t, 4)}, v36, s[{S_AUX}:{S_AUX+3}], s42 offen {st}")
            if m < 3: p(f"s_add_u32 s42, s42, {16 * 2048}")
```

```python
from mk import *
from attn import *
from g2 import *
from attn2 import *
from w4q import *
PF3 = ([('w2', 0, 2), ('w3', 0, 4)], [('w3', 4, 3), ('w4', 0, 1), ('w4', 3, 2)], [('w4', 1, 2), ('w4', 5, 2), ('wo', 0, 2)])
def P1(): return [[G1, Attn(0, (8, 12), True, pf=PF3[0]), W2, Attn(20, (8, 12), pf=PF3[1]), W3, Attn(40, (12, 12), pf=PF3[2]), W4(4), WO(4, True, 1)]]
def P2(Q=QKVG): return [[Q, W1, Attn(0, (8, 12), pf=PF3[0]), W2, Attn(20, (8, 12), pf=PF3[1]), W3, Attn(40, (12, 12), pf=PF3[2]), W4(4), WO(4, True, 1)]]
def P3(): return [[W1F, QKV2, W2X, Attn(0, (8, 12, 12), defer1=False, pf=[('w3', 0, 7), ('w4', 0, 1)]), W3,
                   Attn(32, (12, 8, 12), pf=[('w4', 3, 2), ('w4', 1, 2), ('w4', 5, 2), ('wo', 0, 2)]), W4(4), WO(4, True, 1)]]
def P4(G=G2, pf0=[('w3', 0, 4)], wo=(4, True, 1)): return [[G, Attn(0, (8, 12), local=True, pf=pf0), W2, Attn(20, (8, 12), pf=PF3[1]), W3, Attn(40, (12, 12), pf=PF3[2]), W4(wo[0]), WO(*wo)]]
def P5(): return [[G2, AttnH(0, (8, 12), local=True, pf=[('w3', 0, 4)]), W2, AttnH(20, (8, 12), pf=PF3[1]), W3, AttnH(40, (12, 12), pf=PF3[2]), W4(4), WO(4, True, 1)]]
PF4 = ([('w3', 0, 4)], [('w3', 4, 3), ('w4', 0, 3)], [('w4', 3, 4), ('wo', 0, 2)])
def P6(xw=1, xbar=True, ps=2, lead=1): return [[G2, Attn(0, (8, 12), local=True, pf=PF4[0]), W2, Attn(20, (8, 12), pf=PF4[1]), W3, Attn(40, (12, 12), pf=PF4[2]), W4Q(xw), WOQ(xw, xbar, ps, lead)]]
def P7(pf=([('w4', 0, 2)], [('w4', 2, 5)], [('wo', 0, 2)])): return [[G2, Attn(0, (8, 12), local=True, pf=pf[0]), W2, Attn(20, (8, 12), pf=pf[1]), W3E, Attn(40, (12, 12), pf=pf[2]), W4(4), WO(4, True, 1)]]
def P8(pf=([('w3', 0, 7)], [('w4', 0, 7)], [('wo', 0, 2)])): return [[G2, Attn(0, (8, 12), local=True, pf=pf[0]), W2C, Attn(20, (8, 12), pf=pf[1]), W3F, Attn(40, (12, 12), pf=pf[2]), W4(4), WO(4, True, 1)]]
def P9(xw=2, xbar=True, ps=1, lead=1, pf=([('w3', 0, 7)], [('w4', 0, 7)], [('wo', 0, 2)])): return [[G2, Attn(0, (8, 12), local=True, pf=pf[0]), W2C, Attn(20, (8, 12), pf=pf[1]), W3F, Attn(40, (12, 12), pf=pf[2]), W4Q(xw), WOQ(xw, xbar, ps, lead)]]
def PH(w=((8, 8), (8, 8), (8, 8)), h2=8, h4=8, pf=([('w4', 0, 3)], [('w4', 3, 4)], [('wo', 0, 2)])):
    b1 = sum(w[0]) + h2; b2 = b1 + sum(w[1])
    assert b2 + sum(w[2]) + h4 == 64
    return [[G2, AttnW(0, w[0], local=True, pf=pf[0], hosted=h2), W2, AttnW(b1, w[1], pf=pf[1], cont_in=h2 > 0), W3G,
             AttnW(b2, w[2], pf=pf[2], hosted=h4), W4(4), WO(4, True, 1)]]
def PW(w=((8, 8), (8, 8), (8, 8)), h2=8, h4=8, pf=([('w3', 2, 2)], [], [('w4', 1, 2), ('w4', 5, 2)]), pf2=([], [('w4', 0, 1), ('w4', 3, 2)], [('wo', 0, 2)])):
    b1 = sum(w[0]) + h2; b2 = b1 + sum(w[1])
    assert b2 + sum(w[2]) + h4 == 64
    return [[G2, AttnW(0, w[0], local=True, pf=pf[0], pf2=pf2[0], hosted=h2), W2, AttnW(b1, w[1], pf=pf[1], pf2=pf2[1], cont_in=h2 > 0), W3W,
             AttnW(b2, w[2], pf=pf[2], pf2=pf2[2], hosted=h4), W4(4), WO(4, True, 1)]]
def PX(w=((8, 8), (8, 8), (8, 8)), h2=8, h4=8, pf=([('w3', 2, 2)], [('w4', 0, 5)], []), pf2=([], [('w4', 5, 2)], [('wo', 0, 2)])):
    b1 = sum(w[0]) + h2; b2 = b1 + sum(w[1])
    assert b2 + sum(w[2]) + h4 == 64
    return [[G2, AttnW(0, w[0], local=True, pf=pf[0], pf2=pf2[0], hosted=h2), W2D, AttnW(b1, w[1], pf=pf[1], pf2=pf2[1], cont_in=h2 > 0), W3X,
             AttnW(b2, w[2], pf=pf[2], pf2=pf2[2], hosted=h4), W4(4), WO(4, True, 1)]]
P = PX
base = dict(stflag='sc1', hoflag='sc1', persist=1, spinsleep=4, xbf=1, g1pub=1, gfirst=1, g2pf=[('w2', 2 * MB, 0, 2), ('w3', 7 * MB, 0, 2)])
base5 = dict(base, hslate=1, g1pub=1)
if __name__ == "__main__":
    make("p4a.s", P(), dict(base, stamp=1))
    make("p4b.s", P(), dict(base, hstamp=1))
    make("p4f.s", P(), dict(base, final=1))
    make("p4s.s", P(), dict(base, sstamp=1))
    make("p4m.s", P(), dict(base, stamp=1, fine=1))
    make("p4c.s", P(), dict(base, spincnt=1))
```

```python
from attn import *
B_O, B_Q, B_L, B_M, B_G = (192, 208), (224, 232), (240, 244), (248, 249), (250, 251)
B_C, B_V0, B_V1 = (48, 2), (104, 108), (112, 116)

class AttnH(Attn):
    defer1 = True
    def __init__(self, b0, stages, pf=(), local=False):
        Attn.__init__(self, b0, stages, pf=pf, local=local, defer1=True)
        assert len(stages) == 2
        self.NI = sum(stages) // 2
        self.bars = [stages[0] // 2 - 1, self.NI - 1]
    def early(self, p, c): pass
    def h_post_dep(self, p, c):
        if self.last:
            p(f"""
            s_lshl_b32 s3, s{S_QB}, 10
            s_lshl_b32 s4, s{S_WM}, 8
            s_add_u32 s3, s3, s4
            s_add_u32 s3, s3, {WS_G}
            v_and_b32 v{T0}, 31, v0
            v_lshlrev_b32 v{T0}, 2, v{T0}
            buffer_load_dword v{B_G[0]}, v{T0}, s[{S_WS}:{S_WS+3}], s3 offen {c.opt.get('hoflag', '')}
            buffer_load_dword v{B_G[1]}, v{T0}, s[{S_WS}:{S_WS+3}], s3 offen offset:128 {c.opt.get('hoflag', '')}
            """)
    def LLq(self, q): return f"v_smfmac_f32_16x16x64_bf16 {vr(B_L[q], 4)}, {vr(A_SEL, 4)}, {vr(A_P[0], 8)}, v{A_IDX}"
    def cblocks(self, p, qs=(0, 1)):
        for q in qs:
            for i in range(16): p(f"v_mov_b32 v{B_C[q] + i}, v{B_M[q]}")
    def presetup(self, p, c):
        self.sel_setup(p)
        for i in range(8): p(f"v_mov_b32 v{A_P[0] + i}, 0")
        for i in range(4): p(f"v_mov_b32 v{B_V1[1] + i}, 0")
        if self.first:
            for i in range(32): p(f"v_mov_b32 v{B_O[0] + i}, 0")
            for i in range(8): p(f"v_mov_b32 v{B_L[0] + i}, 0")
        else: self.cblocks(p)
    def negmax(self, p, q, tmp):
        p(f"""
        v_mov_b32 v{tmp}, v{B_M[q]}
        v_permlane32_swap_b32 v{B_M[q]}, v{tmp}
        v_max_f32 v{B_M[q]}, v{B_M[q]}, v{tmp}
        v_sub_f32 v{B_M[q]}, 0, v{B_M[q]}
        """)
    def setup(self, p, c):
        p(f"v_add_u32 v{A_AD}, s{S_RD}, v1")
        p(f"""
        ds_read_b128 {vr(A_K, 4)}, v{A_AD}
        ds_read_b128 {vr(A_K + 4, 4)}, v{A_AD} offset:1024
        """)
        if self.first:
            p(f"s_lshl_b32 s3, s{S_WM}, 12\nv_add_u32 v{T0}, s3, v{A_AD}")
            for i in range(4): p(f"ds_read_b128 {vr(B_Q[0] + 4 * i, 4)}, v{T0} offset:{32768 + 1024 * i}")
        p(f"""
        ds_read_b128 {vr(B_V0[0], 4)}, v{A_AD} offset:2048
        ds_read_b128 {vr(B_V1[0], 4)}, v{A_AD} offset:3072
        """)
        if self.first:
            for q in range(2):
                p(mfma32(A_S[q], A_K, B_Q[q], "0"))
                p(mfma32(A_S[q], A_K + 4, B_Q[q] + 4))
            for q in range(2):
                self.rowmax(p, A_S[q], B_M[q])
                self.negmax(p, q, T0)
            self.cblocks(p)
        p(mfma32(A_S[0], A_K, B_Q[0], B_C[0]))
        p(mfma32(A_S[0], A_K + 4, B_Q[0] + 4))
        p("s_nop 9\ns_waitcnt lgkmcnt(0)")
    def tile(self, c, t, noff=None):
        q = t % 2; b = t // 2
        if noff is None: noff = 4096 if b == 0 else 0
        S = A_S[q]; Sn = A_S[q ^ 1]
        rd = lambda d, o: f"ds_read_b128 {vr(d, 4)}, v{A_AD} offset:{noff + o}"
        pb = b if q == 1 else b ^ 1
        d = dict(O1=mfma32(B_O[q ^ 1], B_V1[pb], A_P[1]), LL=self.LLq(q ^ 1), O0=mfma32(B_O[q], B_V0[b], A_P[0]),
                 Sa=mfma32(Sn, A_K, B_Q[q ^ 1], B_C[q ^ 1]), Sb=mfma32(Sn, A_K + 4, B_Q[q ^ 1] + 4))
        if q == 0: d.update(r0=rd(A_K, 0), r1=rd(A_K + 4, 1024), w="s_waitcnt lgkmcnt(0)")
        else: d.update(r0=rd(B_V0[b ^ 1], 2048), r1=rd(B_V1[b ^ 1], 3072), w=None)
        E = [f"v_exp_f32 v{S + i}, v{S + i}" for i in range(16)]
        C = [f"v_cvt_pk_bf16_f32 v{A_P[i // 4] + i % 4}, v{S + 2 * i}, v{S + 2 * i + 1}" for i in range(8)]
        L = []
        for x in c.opt.get('aorder', "Sa r0 e3 Sb r1 e3 LL e2 O1 c4 e4 w O0 e4 c4").split():
            if x[0] == 'e': L += E[:int(x[1:])]; E = E[int(x[1:]):]
            elif x[0] == 'c': L += C[:int(x[1:])]; C = C[int(x[1:]):]
            elif d[x]: L.append(d[x])
        return L
    adv = 8192
    def drain(self, p):
        p(mfma32(B_O[1], B_V1[1], A_P[1]))
        p(self.LLq(1))
        p("s_waitcnt lgkmcnt(0)")
    def g_body(self, p, c, prev):
        nxt = self.nxt
        p(f"""
        s_mov_b32 s{S_WM}, s{S_WID}
        s_mov_b32 s{S_DMA}, s{S_RD}
        """)
        p.add(slot_adv_dma())
        sv = self.local; self.local = True; self.h_setup(p, c); self.local = sv
        if self.local:
            P = self.poll(c); P.issue(p); P.check(p)
        self.ncall = 1
        p.add(self.dma_atoms(c))
        if getattr(prev, 'deferred', None): p.add(prev.deferred)
        nxt.h_setup(p, c)
        p("s_waitcnt vmcnt(0)")
        publish(p, c, prev.pubkind, False)
        self.prefetch(p, c)
        p.add(slot_adv_rd())
        p("s_barrier")
        P = nxt.poll(c); P.issue(p); P.check(p)
        p.add(nxt.dma_atoms(c))
        p.add(nxt.dma_atoms(c))
        p(f"s_and_b32 s{S_WM}, s{S_WID}, 1")
        p.add(slot_adv_rd())
        nxt.g_setup(p, c); nxt.g_setup = lambda p, c: None
        p("s_waitcnt vmcnt(0)\ns_barrier")
    def g_epi(self, p, c): pass
    def h_body(self, p, c, nxt, skip0=False):
        if self.local: p(f"s_mov_b32 s{S_RD}, s{S_DMA}")
        else:
            p(f"""
            s_cmp_eq_u32 s{S_DMA}, 0
            s_cselect_b32 s{S_RD}, {SLOT * NSLOT}, s{S_DMA}
            s_sub_u32 s{S_RD}, s{S_RD}, {SLOT}
            """)
        self.setup(p, c)
        def e1(p):
            self.next_slot(p)
            nxt.h_setup(p, c)
            nxt.skip_stages(p, c, 2)
            p("s_waitcnt lgkmcnt(0)\ns_barrier")
            hstep_stamp(p, c)
        def e3(p):
            p(f"s_mov_b32 s{S_DMA}, s{S_RD}")
            self.next_slot(p)
            p("s_waitcnt lgkmcnt(0)\ns_barrier")
            hstep_stamp(p, c)
            a = Atoms()
            nxt.first_extra = nxt.h_late(a, c)
            p.add(nxt.dma_atoms(c))
            p.add(a.L)
        self.loop(p, c, {self.bars[0]: e1, self.bars[1]: e3}, lambda k: [])
        return True
    def h_epi(self, p, c):
        if not self.last: return
        a = Atoms(); self.epi_sums(a, c); p.add(a.L)
        self.epi_check(p, c)
        a = Atoms(); st = self.epi_atoms(a, c); p.add(a.L); p.add(st)
    X = 18
    def epi_sums(self, p, c):
        X = self.X
        for q in range(2):
            p(f"v_add_f32 v{X+q}, v{B_L[q]}, v{B_L[q]+1}")
        for i in range(16):
            for q in range(2): p(f"v_fma_f32 v{X+q}, v{B_O[q] + i}, 0, v{X+q}")
        p(f"v_mov_b32 v{X+2}, {hexf(2.0 ** c.opt.get('lmaxlog', 64))}")
    def epi_check(self, p, c):
        X = self.X
        for q in range(2):
            Lok = c.lab("ok"); Lf = c.lab("fbk")
            p(f"v_cmp_nlt_f32 vcc, v{X+q}, v{X+2}\ns_cbranch_vccnz {Lf}")
            p.label(Lok)
            def ool(z, q=q, Lf=Lf, Lok=Lok):
                z.label(Lf)
                self.fallback(z, c, q)
                z(f"v_add_f32 v{X+q}, v{B_L[q]}, v{B_L[q]+1}\ns_branch {Lok}")
            c.ool.append(ool)
    def epi_atoms(self, p, c):
        st = c.opt.get('stflag', '')
        W = f"s[{S_WS}:{S_WS+3}]"
        X = self.X
        for q in range(2): p(f"v_rcp_f32 v{X+q}, v{X+q}")
        p(f"""
        v_and_b32 v{X+2}, 15, v0
        v_bfe_u32 v{X+3}, v0, 4, 1
        v_lshrrev_b32 v{X+4}, 5, v0
        v_mul_u32_u24 v{X+3}, {AF_PITCH}, v{X+3}
        v_lshl_add_u32 v{X+3}, v{X+2}, 4, v{X+3}
        v_lshl_add_u32 v{X+3}, v{X+4}, 8, v{X+3}
        """)
        p.atom(f"""
        s_lshl_b32 s3, s{S_QB}, 2
        s_add_u32 s3, s3, s{S_WM}
        s_mul_i32 s3, s3, {4 * AF_PITCH}
        s_lshl_b32 s4, s{S_HEAD}, 10
        s_add_u32 s3, s3, s4
        s_add_u32 s49, s3, {WS_AF + 112 * 1024}
        s_add_u32 s50, s49, {2 * AF_PITCH}
        """)
        S = []
        for q in range(2):
            p(f"v_mul_f32 v{X+q}, v{X+q}, v{B_G[q]}")
        for q in range(2):
            for i in range(16): p(f"v_mul_f32 v{B_O[q] + i}, v{B_O[q] + i}, v{X+q}")
            for i in range(8): p(f"v_cvt_pk_bf16_f32 v{B_O[q] + i}, v{B_O[q] + 2 * i}, v{B_O[q] + 2 * i + 1}")
            for u in range(2): S.append(f"buffer_store_dwordx4 {vr(B_O[q] + 4 * u, 4)}, v{X+3}, {W}, s{49 + q} offen offset:{512 * u} {st}")
        return S
    def fallback(self, p, c, q):
        ho = c.opt.get('hoflag', '')
        W = f"s[{S_WS}:{S_WS+3}]"
        L1 = c.lab("fb"); L2 = c.lab("fb")
        S = A_S[0]
        p(f"""
        s_lshl_b32 s5, s{S_HEAD}, 18
        s_add_u32 s5, s5, {WS_KV}
        s_mov_b32 s6, s5
        s_mov_b32 s7, 64
        v_mov_b32 v{B_M[q]}, 0xff800000
        """)
        p.label(L1)
        p(f"""
        buffer_load_dwordx4 {vr(A_K, 4)}, v1, {W}, s6 offen {ho}
        buffer_load_dwordx4 {vr(A_K + 4, 4)}, v1, {W}, s6 offen offset:1024 {ho}
        s_waitcnt vmcnt(0)
        """)
        p(mfma32(S, A_K, B_Q[q], "0"))
        p(mfma32(S, A_K + 4, B_Q[q] + 4))
        self.rowmax(p, S, B_M[q], True)
        p(f"s_add_u32 s6, s6, 4096\ns_sub_u32 s7, s7, 1\ns_cmp_lg_u32 s7, 0\ns_cbranch_scc1 {L1}")
        self.negmax(p, q, T0)
        p("s_mov_b32 s7, 64")
        self.cblocks(p, (q,))
        for i in range(16): p(f"v_mov_b32 v{B_O[q] + i}, 0")
        for i in range(4): p(f"v_mov_b32 v{B_L[q] + i}, 0")
        p.label(L2)
        p(f"""
        buffer_load_dwordx4 {vr(A_K, 4)}, v1, {W}, s5 offen {ho}
        buffer_load_dwordx4 {vr(A_K + 4, 4)}, v1, {W}, s5 offen offset:1024 {ho}
        buffer_load_dwordx4 {vr(B_V0[0], 4)}, v1, {W}, s5 offen offset:2048 {ho}
        buffer_load_dwordx4 {vr(B_V1[0], 4)}, v1, {W}, s5 offen offset:3072 {ho}
        s_waitcnt vmcnt(0)
        """)
        p(mfma32(S, A_K, B_Q[q], B_C[q]))
        p(mfma32(S, A_K + 4, B_Q[q] + 4))
        for i in range(16): p(f"v_exp_f32 v{S + i}, v{S + i}")
        for i in range(8): p(f"v_cvt_pk_bf16_f32 v{A_P[i // 4] + i % 4}, v{S + 2 * i}, v{S + 2 * i + 1}")
        p(mfma32(B_O[q], B_V0[0], A_P[0]))
        p(mfma32(B_O[q], B_V1[0], A_P[1]))
        p(self.LLq(q))
        p(f"s_add_u32 s5, s5, 4096\ns_sub_u32 s7, s7, 1\ns_cmp_lg_u32 s7, 0\ns_cbranch_scc1 {L2}")


S_KV, S_KVO, S_KVS = 44, 63, 100
class Host:
    def __init__(self, att, d0, hsteps, final): self.att, self.d0, self.hsteps, self.final = att, d0, hsteps, final
    def kv_setup(self, p, c, skip):
        p(f"""
        s_lshl_b32 s3, s{S_HEAD}, 18
        s_add_u32 s3, s3, {WS_KV}
        s_add_u32 s{S_KV}, s{ptr('ws')}, s3
        s_addc_u32 s{S_KV+1}, s{ptr('ws')+1}, 0
        s_mov_b32 s{S_KV+2}, 0x40000
        s_mov_b32 s{S_KV+3}, 0x20000
        s_lshl_b32 s4, s{S_WM}, 10
        s_lshl_b32 s{S_KVS}, s{S_QB}, 15
        s_add_u32 s{S_KVS}, s{S_KVS}, s4
        s_add_u32 s{S_KVO}, s4, {(self.d0 + skip) * 4096}
        s_sub_u32 s3, s{S_KVO}, 32768
        s_cmp_ge_u32 s3, s{S_KVS}
        s_cselect_b32 s{S_KVO}, s{S_KVO}, s3
        s_add_u32 s48, s4, {L_X}
        """)
    def kv_atom(self, c, slot):
        return f"""
        s_lshr_b32 s3, s{slot}, 3
        s_add_u32 m0, s3, s48
        buffer_load_dwordx4 v1, s[{S_KV}:{S_KV+3}], s{S_KVO} offen {c.opt.get('hoflag', '')} lds
        s_add_u32 s{S_KVO}, s{S_KVO}, 4096
        s_cmp_eq_u32 s{S_KVO}, s{S_KVS}
        s_cselect_b32 s3, 32768, 0
        s_add_u32 s{S_KVO}, s{S_KVO}, s3
        """
    def step(self, p, c, par, D, last):
        A = self.att
        p(f"s_lshr_b32 s3, s{S_RD}, 3\ns_add_u32 s3, s3, {L_X}\nv_add_u32 v{A_AD}, s3, v1")
        p.add(D[:2])
        t0 = 2 if par == 0 else 0
        p.add(A.mix(A.tile(c, t0, 0) + A.tile(c, t0 + 1, 0), D[2:] + ["\n".join(slot_adv_rd())]))
        if last and self.final: A.drain(p)
        if last: p("s_setprio 0")
    def finish(self, p, c, D):
        A = self.att
        if not c.opt.get('finmix', 1):
            p.add(D); A.epilogue(p, c); return 4
        a = Atoms(); A.epi_sums(a, c)
        p.add(spread(D[:4], a.L))
        A.epi_check(p, c)
        a = Atoms(); st = A.epi_atoms(a, c)
        p.add(spread(D[4:], a.L)); p.add(st)
        return 4
    def publish(self, p, c):
        p(f"""
        s_lshl_b32 s3, s{S_QB}, 5
        s_add_u32 s3, s3, s{S_HEAD}
        s_lshl_b32 s3, s3, 7
        s_lshl_b32 s4, s{S_WM}, 2
        s_add_u32 s3, s3, s4
        s_add_u32 s3, s3, {WS_FLAG + F_ATT * 32768}
        v_mov_b32 v18, 0
        v_mov_b32 v19, 1
        s_mov_b64 exec, 1
        buffer_store_dword v19, v18, s[{S_WS}:{S_WS+3}], s3 offen sc1
        s_mov_b64 exec, -1
        """)

class AttnW(AttnH):
    def __init__(self, b0, stages, pf=(), local=False, cont_in=False, hosted=0, pf2=()):
        self.pf2 = pf2
        AttnH.__init__(self, b0, stages, pf=pf, local=local)
        self.cont_in = cont_in; self.hosted = hosted
        self.last = b0 + sum(stages) + hosted == 64
        self.pubkind = F_ATT if self.last else None
    def link(self, c):
        if self.hosted:
            d0 = self.b0 + sum(self.stages)
            self.nxt.host = Host(self, d0, self.hosted + 1 if self.last else self.hosted, self.last)
            if self.last and c.opt.get('hpub', 0): self.pubkind = None
            elif self.last: self.nxt.pubstep = (self.hosted + 4) // 2 * 2
    def g_body(self, p, c, prev):
        nxt = self.nxt; H = nxt.host
        p(f"""
        s_mov_b32 s{S_WM}, s{S_WID}
        s_mov_b32 s{S_DMA}, s{S_RD}
        """)
        p.add(slot_adv_dma())
        sv = self.local; self.local = True; self.h_setup(p, c); self.local = sv
        if self.local:
            self.poll(c).group_wait(p)
        self.ncall = 1
        D = self.dma_atoms(c); p.add(D)
        p(f"s_waitcnt vmcnt({nvm(D)})")
        publish(p, c, prev.pubkind, False)
        fine = lambda: c.ST(p, 'g') if c.opt.get('fine') else None
        fine()
        W = hasattr(nxt, 'w_math')
        nxt.h_setup(p, c)
        if H: H.kv_setup(p, c, 0)
        p(f"s_mov_b32 s42, s{S_DMA}")
        p.add(slot_adv_dma())
        p(f"s_mov_b32 s43, s{S_DMA}")
        a = Prog()
        a.add(nxt.dma_part(c, 1, 42))
        if W: nxt.w_indep(a, c)
        self.prefetch(a, c)
        p.I += a.I
        n = 1 + sum(1 for x in a.I if x.kind == 'vmem')
        p.add(slot_adv_rd())
        p(f"s_waitcnt vmcnt({n})\ns_barrier")
        fine()
        p.add(nxt.dma_part(c, 1, 43))
        if H: p(H.kv_atom(c, 42)); p(H.kv_atom(c, 43))
        nxt.poll(c).group_wait(p)
        fine()
        if W and c.opt.get('depfirst', 1): nxt.w_dep(p, c)
        p.add(nxt.dma_part(c, 0, 42))
        p.add(nxt.dma_part(c, 0, 43))
        if W and not c.opt.get('depfirst', 1): nxt.w_dep(p, c)
        n2 = g_prefetch(p, c, [(nm, {'w2': 2, 'wo': 2, 'w3': 7, 'w4': 7}[nm] * MB, a_, n_) for nm, a_, n_ in self.pf2], vdst=4)
        if hasattr(nxt, 'w_last'): n2 += nxt.w_last(p, c)
        if c.opt.get('glow', 1) == 1: p("s_setprio 0")
        if W: nxt.w_math(p, c)
        p(f"s_and_b32 s{S_WM}, s{S_WID}, 1")
        p.add(slot_adv_rd())
        nxt.g_setup(p, c); nxt.g_setup = lambda p, c: None
        if c.opt.get('glow', 1) == 2: p("s_setprio 0")
        if not W and c.opt.get('a0only', 1):
            nxt.first_wait = n2; n2 += nxt.nA
        p(f"s_waitcnt vmcnt({n2 if getattr(nxt, 'quiet', not W) else 0})")
        if W: nxt.w_fin(p, c)
        fine()
        p("s_barrier")
    def early(self, p, c):
        if c.opt.get('glow', 1): p("s_setprio 2")
    def h_body(self, p, c, nxt, skip0=False):
        H = nxt.host
        if c.opt.get('glow', 1): p("s_setprio 1")
        if self.cont_in:
            p(f"""
            s_cmp_eq_u32 s{S_DMA}, 0
            s_cselect_b32 s{S_RD}, {SLOT * NSLOT}, s{S_DMA}
            s_sub_u32 s{S_RD}, s{S_RD}, {SLOT}
            v_add_u32 v{A_AD}, s{S_RD}, v1
            """)
        else:
            if self.local: p(f"s_mov_b32 s{S_RD}, s{S_DMA}")
            else:
                p(f"""
                s_cmp_eq_u32 s{S_DMA}, 0
                s_cselect_b32 s{S_RD}, {SLOT * NSLOT}, s{S_DMA}
                s_sub_u32 s{S_RD}, s{S_RD}, {SLOT}
                """)
            self.setup(p, c)
        def e1(p):
            self.next_slot(p)
            if not c.opt.get('prenext', 1): self.pre_next(p, c)
            p("s_waitcnt vmcnt(0) lgkmcnt(0)\ns_barrier")
            hstep_stamp(p, c)
        def e3(p):
            p(f"s_mov_b32 s{S_DMA}, s{S_RD}")
            self.next_slot(p)
            p("s_waitcnt lgkmcnt(0)\ns_barrier")
            hstep_stamp(p, c)
            if H:
                p("s_setprio 1"); return
            a = Atoms()
            nxt.first_extra = nxt.h_late(a, c)
            p.add(nxt.dma_atoms(c))
            p.add(a.L)
        self.loop(p, c, {self.bars[0]: e1, self.bars[1]: e3}, lambda k: [], self.cont_in, H is not None)
        if not H: p("s_setprio 0")
        return H is None
    def loop(self, p, c, events, pf, cont_in=False, cont_out=False):
        if not c.opt.get('unr', 1): return AttnH.loop(self, p, c, events, pf, cont_in, cont_out)
        assert all(it % 2 == 1 for it in events) and self.NI % 2 == 0
        N2 = self.NI // 2
        L = c.lab("al"); Lm = c.lab("am"); Lx = c.lab("ax")
        mask = sum(1 << (N2 - it // 2) for it in events)
        p(f"s_mov_b32 s{S_CNT}, {N2 + (1 if cont_in else 0)}")
        if not cont_in: p(f"s_branch {Lm}")
        p(".p2align 5")
        p.label(L)
        p.add(self.tile(c, 2, 0))
        p.add(self.mix(self.tile(c, 3, 0), [f"s_sub_u32 s{S_CNT}, s{S_CNT}, 1" + ("" if cont_out else f"\ns_cmp_eq_u32 s{S_CNT}, 0")]))
        if not cont_out: p(f"s_cbranch_scc1 {Lx}")
        p.label(Lm)
        for t, o in ((0, 4096), (1, 4096), (2, 8192), (3, 8192), (0, 12288)): p.add(self.tile(c, t, o))
        p.add(self.mix(self.tile(c, 1, 12288), [f"s_bitcmp1_b32 {hex(mask)}, s{S_CNT}"]))
        p(f"v_add_u32 v{A_AD}, 16384, v{A_AD}")
        p(f"s_cbranch_scc0 {L}")
        its = sorted(events)
        for i, it in enumerate(its):
            Ln = c.lab("an")
            if i < len(its) - 1: p(f"s_cmp_eq_u32 s{S_CNT}, {N2 - it // 2}\ns_cbranch_scc0 {Ln}")
            events[it](p)
            if cont_out and i == len(its) - 1: return
            p(f"s_branch {L}")
            if i < len(its) - 1: p.label(Ln)
        p.label(Lx)
        self.drain(p)
    def pre_next(self, p, c):
        nxt = self.nxt
        nxt.h_setup(p, c)
        nxt.skip_stages(p, c, 2)
        if nxt.host: nxt.host.kv_setup(p, c, 2)
    def drain(self, p):
        if getattr(self.nxt, 'quiet', False): p("s_waitcnt lgkmcnt(0)")
        else: AttnH.drain(self, p)
    def h_epi(self, p, c):
        if not self.hosted: AttnH.h_epi(self, p, c)
    def epilogue(self, p, c): AttnH.h_epi(self, p, c)
```

```python
from common import *

SLOT = 49152
NSLOT = 3
L_X = SLOT * NSLOT
LDS_BYTES = 163840
L_MU = L_X + 4096
L_GW = L_X + 5888
L_CS = L_X + 10240
L_DUMMY = L_X + 11264

WS_ST1 = 41 * MB
WS_P2 = 42 * MB
WS_CSP = 43 * MB

S_A, S_B, S_WS, S_AUX = 8, 12, 16, 20
S_WID, S_WM, S_WN, S_XCD, S_IDX = 24, 25, 26, 27, 28
S_MT3, S_NT3, S_MT2, S_NT2, S_HEAD, S_BLK, S_QB = 29, 30, 54, 55, 51, 52, 41
S_POLL = 40
S_DBG = 88
S_FL = 88
S_CNT, S_RD, S_DELTA, S_DMA = 31, 32, 33, 34
S_SO = [35, 36]
S_LD = [37, 38]
S_OFFS = [42, 43, 44, 45, 46, 47, 92, 93, 94, 95, 98, 99]
S_NEG = 39
S_PTR = 64
def ptr(name): return S_PTR + KA[name] // 4
V_LANE, V_L16 = 0, 1
V_Q, V_O, V_L, V_M = 2, 10, 26, 30
V_AD = 32
V_FR = 48

def mfma16(d, a, b, c=None):
    cs = vr(d, 4) if c is None else (c if isinstance(c, str) else vr(c, 4))
    return f"v_mfma_f32_16x16x32_bf16 {vr(d,4)}, {vr(a,4)}, {vr(b,4)}, {cs}"

def tile_map(p, a_log2, S_MT, S_NT):
    a = 1 << a_log2; b = 32 // a
    nxm = 16 // a
    p(f"""
    s_and_b32 s3, s{S_XCD}, {nxm - 1}
    s_lshl_b32 s3, s3, {a_log2}
    s_and_b32 s4, s{S_IDX}, {a - 1}
    s_add_u32 s{S_MT}, s3, s4
    s_lshr_b32 s3, s{S_XCD}, {nxm.bit_length() - 1}
    s_lshl_b32 s3, s3, {b.bit_length() - 1}
    s_lshr_b32 s4, s{S_IDX}, {a_log2}
    s_add_u32 s{S_NT}, s3, s4
    """)

def slot_adv_rd():
    return [f"s_add_u32 s{S_RD}, s{S_RD}, {SLOT}", f"s_cmp_eq_u32 s{S_RD}, {SLOT * NSLOT}",
            f"s_cselect_b32 s{S_DELTA}, s{S_NEG}, {SLOT}", f"s_cselect_b32 s{S_RD}, 0, s{S_RD}"]
def slot_adv_dma():
    return [f"s_add_u32 s{S_DMA}, s{S_DMA}, {SLOT}", f"s_cmp_eq_u32 s{S_DMA}, {SLOT * NSLOT}",
            f"s_cselect_b32 s{S_DMA}, 0, s{S_DMA}"]

class Ctx:
    def __init__(self, name, opt):
        self.name = name; self.opt = opt; self.nlab = 0
        self.stamp_slot = {'g': 0, 'h': 0}
    def lab(self, s):
        self.nlab += 1
        return f"{self.name}_{s}{self.nlab}"
    def ST(self, p, role):
        if not self.opt.get('stamp'): return
        sl = self.stamp_slot[role]
        if sl >= 31: return
        self.stamp_slot[role] += 1
        stamp2(p, sl, self.opt['stamp'] - 1, self.stampv)

def hstep_stamp(p, c):
    if not c.opt.get('hstamp'): return
    p("""
    s_memtime s[56:57]
    s_waitcnt lgkmcnt(0)
    s_lshl_b64 exec, 1, s62
    s_cmp_ge_u32 s62, 64
    s_cselect_b64 s[58:59], 0, exec
    s_cselect_b64 s[60:61], exec, 0
    s_mov_b64 exec, s[58:59]
    v_mov_b32 v150, s56
    s_mov_b64 exec, s[60:61]
    v_mov_b32 v151, s56
    s_mov_b64 exec, -1
    s_add_u32 s62, s62, 1
    """)
def hstep_dump(p, c):
    if not c.opt.get('hstamp') and not c.opt.get('sstamp') and not c.opt.get('spincnt'): return
    p(f"""
    s_lshl_b32 s3, s2, 2
    s_add_u32 s3, s3, s{S_WM}
    s_lshl_b32 s3, s3, 9
    s_add_u32 s3, s3, {WS_STAMP + 2 * MB}
    v_lshlrev_b32 v152, 2, v0
    buffer_store_dword v150, v152, s[{S_WS}:{S_WS+3}], s3 offen
    buffer_store_dword v151, v152, s[{S_WS}:{S_WS+3}], s3 offen offset:256
    """)
NSTAMP = 32
def stamp2(p, slot, kidx, v=140):
    p(f"""
    s_memrealtime s[56:57]
    s_memtime s[58:59]
    s_add_u32 s60, s2, {kidx * 256}
    s_lshl_b32 s60, s60, 3
    s_add_u32 s60, s60, s{S_WID}
    s_lshl_b32 s60, s60, 8
    s_add_u32 s60, s60, {WS_STAMP + slot * 8}
    s_waitcnt lgkmcnt(0)
    v_mov_b32 v{v}, s56
    v_mov_b32 v{v+1}, s58
    v_mov_b32 v{v+2}, 0
    s_mov_b64 exec, 1
    buffer_store_dwordx2 v[{v}:{v+1}], v{v+2}, s[{S_WS}:{S_WS+3}], s60 offen
    s_mov_b64 exec, -1
    """)


class Atoms:
    def __init__(self): self.L = []
    def __call__(self, s):
        for line in s.split('\n'):
            line = line.strip()
            if line and not line.startswith(';'): self.L.append(line)
    def atom(self, s): self.L.append(s)
    def add(self, items):
        for x in items: self(x)

def spread(main, fill, start=0, end=None):
    n = len(main); end = n if end is None else end
    k = end - start
    slots = [0] * n
    for i in range(k): slots[start + i] = ((i + 1) * len(fill)) // k - (i * len(fill)) // k
    return interleave(main, fill, slots)

def nvm(D): return sum(x.count('buffer_') for x in D)

class Task:
    pubkind = None
    pubv = 136
    barpos = 6
    puball = False
    xbar = False
    pubstep = 3
    local = False
    exposed = False
    defer1 = False
    late = False
    poll = None
    def g_sites(self, c): return {}
    def h_post_dep(self, p, c): return
    def drain_n(self, c): return 0
    def h_indep(self, a, c): return 0
    def h_late(self, a, c): return 0
    def g_prev_site(self, p, c): return
    has_prev_site = False
    def early(self, p, c): return
    def h_epi(self, p, c): return
    def g_events(self, c, prev, unroll):
        E = {t: [f] for t, f in self.g_sites(c).items()}
        if prev is not None and prev.pubkind is not None and c.opt.get('persist'):
            t = self.pubstep
            if prev.puball:
                E.setdefault(t - unroll, []).append(lambda q: q("s_waitcnt vmcnt(0)"))
                E.setdefault(t, []).append(lambda q: publish(q, c, prev.pubkind, True, self.pubv))
            else:
                E.setdefault(t, []).append(lambda q: (q("s_waitcnt vmcnt(0)"), publish(q, c, prev.pubkind, False, self.pubv)))
        assert all(t % unroll == 0 for t in E)
        return E

class Gemm(Task):
    MT = 4
    fr0 = V_FR
    zero_first = False
    def acc(self, m, n): return 256 - 4 * self.MT * self.NT + 4 * (n * self.MT + m)
    def xf(self, s, m): return self.fr0 + s * 4 * (self.MT + self.NT) + 4 * m
    def wf(self, s, n): return self.fr0 + s * 4 * (self.MT + self.NT) + 4 * self.MT + 4 * n
    def swap(self, n): return False
    def reads(self, s, kk):
        rx = lambda m: "ds_read_b128 %s, v%d offset:%d" % ((vr(self.xf(s, m), 4),) + self.xaddr(kk, m))
        rw = lambda n, j: "ds_read_b64_tr_b16 %s, v%d offset:%d" % ((vr(self.wf(s, n) + 2 * j, 2),) + self.waddr(kk, n, j))
        R = [rx(0), rw(0, 0), rw(0, 1)] + [rx(m) for m in range(1, self.MT)]
        for n in range(1, self.NT): R += [rw(n, 0), rw(n, 1)]
        return R
    def mfmas(self, s, c0=None):
        M = []
        for n in range(self.NT):
            for m in (range(self.MT) if n % 2 == 0 else range(self.MT - 1, -1, -1)):
                if self.swap(n): M.append(mfma16(self.acc(m, n), self.xf(s, m), self.wf(s, n), c0))
                else: M.append(mfma16(self.acc(m, n), self.wf(s, n), self.xf(s, m), c0))
            M += self.extra_mfma(s, n)
        return M
    def extra_mfma(self, s, n): return []
    def g_loop_atoms(self, c): return []
    def g_zero(self, p):
        if self.zero_first: return
        for r in range(self.acc(0, 0), 256): p(f"v_mov_b32 v{r}, 0")
    chain = False
    host = None
    def g_body(self, p, c, prev):
        if self.chain and c.opt.get('chain', 1): self.g_loop_chain(p, c, self.nsteps, prev)
        else: self.g_loop(p, c, self.nsteps, prev)
    def g_loop_chain(self, p, c, nsteps, prev):
        KS, MT, NT = self.KS, self.MT, self.NT
        assert nsteps % 2 == 0
        xf = lambda s, m, kk: self.fr0 + 4 * (s * MT * KS + m * KS + kk)
        wf = lambda n, kk: self.fr0 + 8 * MT * KS + 4 * ((n % 4) * KS + kk)
        rx = lambda s, m: ["ds_read_b128 %s, v%d offset:%d" % ((vr(xf(s, m, kk), 4),) + self.xaddr(kk, m)) for kk in range(KS)]
        rw = lambda n: ["ds_read_b64_tr_b16 %s, v%d offset:%d" % ((vr(wf(n, kk) + 2 * j, 2),) + self.waddr(kk, n, j)) for kk in range(KS) for j in range(2)]
        def group(s, n, zero):
            M = []
            for i, m in enumerate(range(MT) if n % 2 == 0 else range(MT - 1, -1, -1)):
                for q, kk in enumerate(range(KS) if i % 2 == 0 else range(KS - 1, -1, -1)):
                    c0 = "0" if (zero and q == 0) else None
                    a, b = (xf(s, m, kk), wf(n, kk)) if self.swap(n) else (wf(n, kk), xf(s, m, kk))
                    M.append(mfma16(self.acc(m, n), a, b, c0))
            return M
        def first_reads(s):
            R = rx(s, 0) + rw(0)
            for m in range(1, MT): R += rx(s, m)
            return R + rw(1)
        xregs = sorted({self.xaddr(kk, 0)[0] for kk in range(KS)})
        def step(s, zero, tail):
            done = set()
            for n in range(NT - 2):
                F = rw(n + 2)
                if n == 0: F = F + slot_adv_rd()
                later = {self.waddr(0, k, 0)[0] for k in range(n + 3, NT)}
                if n >= 1 or NT == 3:
                    ready = [r for r in self.addr_regs if r not in later and r not in done]
                    if n < NT - 3: ready = ready[:2]
                    done |= set(ready)
                    F = F + [f"v_add_u32 v{r}, s{S_DELTA}, v{r}" for r in ready]
                G = group(s, n, zero)
                p(f"s_waitcnt lgkmcnt({(MT - 2) * KS + 2 * KS if n == 0 else 2 * KS})")
                p.add(interleave(G, F, [1] * len(G)) if len(F) <= len(G) else spread(G, F))
            assert done == set(self.addr_regs)
            G = group(s, NT - 2, zero) + group(s, NT - 1, zero)
            bp = c.opt.get('cbar', 0)
            p.add(G[:bp])
            fw = getattr(self, 'first_wait', None)
            assert fw is None or self.zero_first
            p("s_waitcnt " + (f"vmcnt({fw}) " if (zero and fw is not None) else "") + "lgkmcnt(0)\ns_barrier")
            p.add(spread(G[bp:], first_reads(s ^ 1) + tail))
        E = self.g_events(c, prev, 2)
        mask = sum(1 << k for k in range(1, nsteps) if nsteps - k not in E)
        L = c.lab("gl"); Le = c.lab("ge")
        p.add(first_reads(0))
        p(f"s_mov_b32 s{S_CNT}, {nsteps}")
        if self.zero_first:
            step(0, True, [])
            p(f"s_branch {Le}")
        p(".p2align 5")
        p.label(L)
        step(0, False, [])
        p.label(Le)
        step(1, False, [f"s_sub_u32 s{S_CNT}, s{S_CNT}, 2", f"s_bitcmp1_b32 {hex(mask)}, s{S_CNT}"])
        self.loop_end(p, c, L, E, nsteps)
    def g_loop(self, p, c, nsteps, prev):
        KS = self.KS
        nm = len(self.mfmas(0)); nr = len(self.reads(0, 0))
        big = nm >= 16 and not getattr(self, 'small', False)
        unroll = 2 if KS % 2 else 1
        assert nsteps % unroll == 0
        w0 = c.opt.get('w0', 4)
        p.add(self.reads(0, 0))
        p(f"s_mov_b32 s{S_CNT}, {nsteps}")
        L = c.lab("gl"); Le = c.lab("ge")
        if self.zero_first:
            p.add(interleave(self.mfmas(0, "0"), self.reads(1, 1), [1] * nm))
            p(f"s_branch {Le}")
        p(".p2align 5")
        p.label(L)
        par = 0
        E = self.g_events(c, prev, unroll)
        mask = sum(1 << k for k in range(1, nsteps) if nsteps - k not in E)
        for u in range(unroll):
            for kk in range(KS - 1):
                R = self.reads(par ^ 1, kk + 1)
                if kk == 0: R = R + self.g_loop_atoms(c)
                if big: p(f"s_waitcnt lgkmcnt({w0})")
                p.add(interleave(self.mfmas(par), R, [1] * nm))
                par ^= 1
                if u == 0 and kk == 0 and self.zero_first: p.label(Le)
            M = self.mfmas(par)
            upd = slot_adv_rd() + [f"v_add_u32 v{r}, s{S_DELTA}, v{r}" for r in self.addr_regs]
            tail = [f"s_sub_u32 s{S_CNT}, s{S_CNT}, {unroll}", f"s_bitcmp1_b32 {hex(mask)}, s{S_CNT}"] if u == unroll - 1 else []
            bp = min(c.opt.get('barpos', self.barpos), nm - nr) if big else c.opt.get('bp64', 4)
            if big: p(f"s_waitcnt lgkmcnt({w0})")
            p.add(spread(M[:bp], upd))
            fw = getattr(self, 'first_wait', None)
            p("s_waitcnt " + (f"vmcnt({fw}) " if fw is not None else "") + "lgkmcnt(0)")
            p("s_barrier")
            p.add(interleave(M[bp:], self.reads(par ^ 1, 0) + tail, [1 if big else 2] * nm))
            par ^= 1
        self.loop_end(p, c, L, E, nsteps)
    def loop_end(self, p, c, L, E, nsteps):
        p(f"s_cbranch_scc1 {L}")
        if E:
            Lo = c.lab("gev")
            p(f"s_cmp_lg_u32 s{S_CNT}, 0\ns_cbranch_scc1 {Lo}")
            def ool(q):
                q.label(Lo)
                ts = sorted(E)
                for i, t in enumerate(ts):
                    Ln = c.lab("gen")
                    if i < len(ts) - 1: q(f"s_cmp_eq_u32 s{S_CNT}, {nsteps - t}\ns_cbranch_scc0 {Ln}")
                    for f in E[t]: f(q)
                    q(f"s_branch {L}")
                    if i < len(ts) - 1: q.label(Ln)
            c.ool.append(ool)
    def dma_atoms(self, c):
        if c.opt.get('nodma'): return ["\n".join(slot_adv_dma())]
        ld = self.bflag(c)
        nA, nB = self.nA, self.nB
        D = []
        if self.rotated(c):
            A = [f"s_add_u32 m0, s{S_DMA}, s{S_OFFS[i]}\nbuffer_load_dwordx4 v{V_AD + i}, s[{S_A}:{S_A+3}], s{S_SO[0]} offen {self.aflag(c)} lds" for i in range(nA)]
            B = [f"s_add_u32 m0, s{S_DMA}, s{S_OFFS[nA + i]}\nbuffer_load_dwordx4 v{V_AD + nA + i}, s[{S_B}:{S_B+3}], s{S_SO[1]} offen {ld} lds" for i in range(nB)]
            D = [B[0], A[0]] + spread(A[1:], B[1:])
            nA = nB = 0
        if nA and c.opt.get('ilv', 0):
            A = [f"s_add_u32 m0, s92, {1024 * i}\nbuffer_load_dwordx4 v{V_AD + i}, s[{S_A}:{S_A+3}], s{S_SO[0]} offen {self.aflag(c)} lds" for i in range(nA)]
            B = [f"s_add_u32 m0, s93, {1024 * i}\nbuffer_load_dwordx4 v{V_AD + nA + i}, s[{S_B}:{S_B+3}], s{S_SO[1]} offen {ld} lds" for i in range(nB)]
            B += self.dma_extra(c)
            D = spread(A, B) if len(A) >= len(B) else spread(B, A)
            D[0] = f"s_add_u32 s92, s{S_DMA}, s{S_LD[0]}\ns_add_u32 s93, s{S_DMA}, s{S_LD[1]}\n" + D[0]
            nA = nB = 0
        elif nA: D = self.dma_extra(c)
        for i in range(nA):
            D.append((f"s_add_u32 m0, s{S_DMA}, s{S_LD[0]}" if i == 0 else "s_add_u32 m0, m0, 1024") +
                     f"\nbuffer_load_dwordx4 v{V_AD + i}, s[{S_A}:{S_A+3}], s{S_SO[0]} offen {self.aflag(c)} lds")
        for i in range(nB):
            D.append((f"s_add_u32 m0, s{S_DMA}, s{S_LD[1]}" if i == 0 else "s_add_u32 m0, m0, 1024") +
                     f"\nbuffer_load_dwordx4 v{V_AD + nA + i}, s[{S_B}:{S_B+3}], s{S_SO[1]} offen {ld} lds")
        t = []
        if not c.opt.get('step0'):
            t += [f"s_add_u32 s{S_SO[0]}, s{S_SO[0]}, {self.stepA}", f"s_add_u32 s{S_SO[1]}, s{S_SO[1]}, {self.stepB}"]
        D[-1] += "\n" + "\n".join(t + slot_adv_dma())
        return D
    def dma_part(self, c, k, slot):
        n0, n, r, fl, st = ((0, self.nA, S_A, self.aflag(c), self.stepA), (self.nA, self.nB, S_B, c.opt.get('ldflag', ''), self.stepB))[k]
        D = [(f"s_add_u32 m0, s{slot}, s{S_LD[k]}" if i == 0 else "s_add_u32 m0, m0, 1024") +
             f"\nbuffer_load_dwordx4 v{V_AD + n0 + i}, s[{r}:{r+3}], s{S_SO[k]} offen {fl} lds" for i in range(n)]
        D[-1] += f"\ns_add_u32 s{S_SO[k]}, s{S_SO[k]}, {st}"
        return D
    def aflag(self, c): return c.opt.get('hoflag', '')
    def rotated(self, c): return False
    def dma_extra(self, c): return []
    def skip_stages(self, p, c, n):
        p(f"s_add_u32 s{S_SO[0]}, s{S_SO[0]}, {n * self.stepA}\ns_add_u32 s{S_SO[1]}, s{S_SO[1]}, {n * self.stepB}")
    def bflag(self, c): return c.opt.get('ldflag', '')
    @property
    def nd(self): return self.nA + self.nB
    def h_post(self, p, c, t): pass
    def h_poll(self, c, t): return None
    def h_pre(self, p, c, t): pass
    def h_mix(self, a, c, t): pass
    def h_extra(self, p, c, t): return 0
    def h_tail(self, c): return []
    h_steps = ()
    def h_body(self, p, c, nxt, skip0=False):
        n = self.nsteps
        special = set(self.h_steps) | {n - 2, n - 1}
        if skip0 or self.xbar or getattr(self, 'first_extra', 0): special.add(0)
        pollstep = None
        real_nxt = nxt
        if nxt is not None and (nxt.exposed or nxt.local): nxt = None
        if nxt is not None and nxt.poll and c.opt.get('persist'):
            pollstep = n - 2 if nxt.late else n - 3
            special.add(pollstep)
        hs = self.host.hsteps if self.host else 0
        if self.host and self.host.final: special |= {hs - 1, hs, hs + 1}
        elif 0 < hs < n: special |= {hs - 2, hs - 1}
        def step(t, par=None):
            if t is not None and t < hs: par = t % 2
            ex = 0
            noex = t is None or c.opt.get('noextra')
            P1 = None
            if t is not None: P1 = nxt.poll(c) if t == pollstep else self.h_poll(c, t)
            if P1: P1.issue1(p)
            if not noex: self.h_pre(p, c, t)
            if t == n - 2 and n >= 16 and c.opt.get('cpf3', 1) and not P1: code_prefetch(p, c, True)
            if t == n - 1 and n >= 16 and c.opt.get('cpf3', 1) and self.h_poll(c, n - 2): code_prefetch(p, c, True)
            D = []; nd = 0
            if t == 0 and self.xbar: p("s_barrier")
            if t is None or t <= n - 3:
                nd = self.nd
                if not (t == 0 and skip0): D = self.dma_atoms(c)
                if par is not None and not (t is not None and t >= hs - (1 if self.host.final else 2)):
                    D = [self.host.kv_atom(c, S_DMA)] + D; nd += 1
            else:
                if t == n - 2: D = self.h_tail(c)
                if nxt is not None:
                    if t == (n - 1 if nxt.late else n - 2):
                        nxt.h_setup(p, c)
                        nxt.h_post_dep(p, c)
                    if t == (n - 1 if nxt.late else n - 2) or not nxt.defer1: D += nxt.dma_atoms(c)
                nd = 0 if (nxt is not None and nxt.late) else nvm(D)
            a = Atoms()
            if not noex: self.h_mix(a, c, t)
            if par is not None: self.host.step(p, c, par, D + a.L, t == hs - 1)
            elif self.host and self.host.final and t == hs: nd += self.host.finish(p, c, D)
            else: p.add(spread(D, a.L) if D else a.L)
            if not noex: ex = self.h_extra(p, c, t)
            if t == n - 1 and hasattr(real_nxt, 'pre_next') and c.opt.get('prenext', 1): real_nxt.pre_next(p, c)
            if t == 0: ex += getattr(self, 'first_extra', 0)
            p(f"s_waitcnt vmcnt({nd + ex})" + (" lgkmcnt(0)" if par is not None else ""))
            if P1: P1.check1(p)
            if self.host and self.host.final and t == hs + 1 and c.opt.get('hpub', 0): self.host.publish(p, c)
            if not noex: self.h_post(p, c, t)
            if t == n - 1 and nxt is not None and getattr(nxt, 'adv', 0) == 8192 and not self.host and not getattr(self, 'quiet', False): nxt.presetup(p, c)
            p("s_barrier")
            hstep_stamp(p, c)
        t = 0
        while t < n:
            if t in special:
                step(t); t += 1; continue
            e = t
            while e not in special: e += 1
            if t < hs:
                assert e <= hs and (e - t) % 2 == 0
                p(f"s_mov_b32 s{S_CNT}, {(e - t) // 2}")
                L = c.lab("hl")
                p.label(L)
                step(None, t % 2); step(None, (t + 1) % 2)
                p(f"s_sub_u32 s{S_CNT}, s{S_CNT}, 1\ns_cmp_lg_u32 s{S_CNT}, 0\ns_cbranch_scc1 {L}")
            elif e - t == 1: step(None)
            else:
                p(f"s_mov_b32 s{S_CNT}, {e - t}")
                L = c.lab("hl")
                p.label(L)
                step(None)
                p(f"s_sub_u32 s{S_CNT}, s{S_CNT}, 1\ns_cmp_lg_u32 s{S_CNT}, 0\ns_cbranch_scc1 {L}")
            t = e
        if real_nxt is not None and real_nxt.local:
            real_nxt.presetup(p, c)
            self.h_final(p, c)
            p("s_barrier")
            hstep_stamp(p, c)
        if real_nxt is not None and real_nxt.exposed:
            real_nxt.h_setup(p, c)
            L = c.lab("xp")
            p("s_barrier")
            p(f"s_cmp_eq_u32 s{S_WM}, 0\ns_cbranch_scc0 {L}")
            P = real_nxt.poll(c); P.issue(p); P.check(p)
            p.label(L)
            p("s_barrier")
            hstep_stamp(p, c)
            p.add(real_nxt.dma_atoms(c))
            p("s_waitcnt vmcnt(0)\ns_barrier")
            hstep_stamp(p, c)
        return False

WS_FLAG = 43 * MB + 512 * 1024
F_QKV, F_W1, F_W2, F_W3, F_ATT, F_XCH, F_ST, F_CS = 0, 1, 2, 3, 4, 5, 6, 7
NKIND = 8

class Poll:
    def __init__(self, c, addr, load, test):
        self.c, self.addr, self.load, self.test = c, addr, load, test
    def issue(self, p):
        if not self.c.opt.get('persist'): return
        p(self.addr); p(self.load)
    def issue1(self, p):
        if not self.c.opt.get('persist'): return
        L = self.c.lab("p1")
        p(f"s_cmp_eq_u32 s{S_WM}, 0\ns_cbranch_scc0 {L}")
        self.issue(p)
        p.label(L)
    def check1(self, p):
        if not self.c.opt.get('persist'): return
        L = self.c.lab("c1")
        p(f"s_cmp_eq_u32 s{S_WM}, 0\ns_cbranch_scc0 {L}")
        self.check(p)
        p.label(L)
    def group_wait(self, p):
        c = self.c
        if not c.opt.get('persist'): return
        c.gw = getattr(c, 'gw', 0) + 1
        Lo = c.lab("gw"); Le = c.lab("gwe"); Ls = c.lab("gws")
        p(f"v_mov_b32 v139, {L_GW}\ns_cmp_eq_u32 s{S_WID}, 0\ns_cbranch_scc0 {Lo}")
        self.issue(p); self.check(p, c.opt.get('gsleep', 12))
        p(f"v_mov_b32 v139, {L_GW}\nv_mov_b32 v137, {c.gw}\nds_write_b32 v139, v137\ns_branch {Le}")
        p.label(Lo)
        p(f"s_mov_b32 s5, {c.opt.get('spinmax', 100000) * 16}")
        p.label(Ls)
        p(f"""
        s_sleep 1
        ds_read_b32 v137, v139
        s_sub_u32 s5, s5, 1
        s_cmp_eq_u32 s5, 0
        s_cbranch_scc1 {Le}
        s_waitcnt lgkmcnt(0)
        v_cmp_gt_u32 vcc, {c.gw}, v137
        s_cbranch_vccnz {Ls}
        """)
        p.label(Le)
    def check(self, p, sleep=None):
        c = self.c
        if not c.opt.get('persist'): return
        L = c.lab("poll"); E = c.lab("pollx")
        p(f"s_mov_b32 s5, {c.opt.get('spinmax', 100000)}")
        p.label(L)
        p(self.test)
        p(f"""
        s_cbranch_vccz {E}
        s_sub_u32 s5, s5, 1
        s_cmp_eq_u32 s5, 0
        s_cbranch_scc1 {E}
        s_sleep {sleep or c.opt.get('spinsleep', 2)}
        s_mov_b64 exec, vcc
        """)
        p(self.load)
        p("s_mov_b64 exec, -1\ns_waitcnt vmcnt(0)")
        p(f"s_branch {L}")
        p.label(E)
        if c.opt.get('spincnt'):
            c.npoll = getattr(c, 'npoll', 0) + 1
            p(f"s_sub_u32 s5, {c.opt.get('spinmax', 100000)}, s5\nv_writelane_b32 v153, s5, {c.npoll - 1}")

def poll_init(c):
    return Poll(c, f"v_min_u32 v136, {4 * NKIND - 1}, v0\nv_lshlrev_b32 v136, 2, v136",
        f"buffer_load_dword v137, v136, s[{S_DBG}:{S_DBG+3}], 0 offen sc1", "v_cmp_eq_u32 vcc, 0, v137")

def poll_flags(c, kind, row_sgpr, shift=0, nprod=16, halo=False, single=None, col_sgpr=None):
    lg = nprod.bit_length() - 1
    a = f"v_and_b32 v136, {nprod - 1}, v0\n"
    if single is not None:
        a = f"s_xor_b32 s3, s{single}, 1\nv_mov_b32 v136, s3\n"
    if halo and c.local:
        a = f"""
        s_lshr_b32 s3, s{row_sgpr}, 1
        s_and_b32 s4, s{row_sgpr}, 1
        s_lshl_b32 s4, s4, 1
        s_add_u32 s4, s4, s3
        s_add_u32 s4, s4, 7
        s_and_b32 s4, s4, 7
        v_mov_b32 v136, s3
        v_mov_b32 v138, s4
        v_cmp_gt_u32 vcc, 32, v0
        v_cndmask_b32 v138, v138, v136, vcc
        v_and_b32 v136, 31, v0
        v_lshl_add_u32 v136, v138, 5, v136
        """
    elif halo:
        a += f"""
        v_lshrrev_b32 v138, 4, v0
        v_min_u32 v138, 2, v138
        s_add_u32 s3, s{row_sgpr}, 15
        v_add_u32 v138, s3, v138
        v_and_b32 v138, 15, v138
        v_lshl_add_u32 v136, v138, 4, v136
        """
    else:
        if col_sgpr is not None: a += f"v_and_b32 v138, 15, v0\nv_lshl_add_u32 v138, v138, 4, s{col_sgpr}\n"
        a += f"""
        s_lshr_b32 s3, s{row_sgpr}, {shift}
        s_lshl_b32 s3, s3, {lg}
        v_add_u32 v136, s3, v136
        """
        if col_sgpr is not None: a += "v_cmp_gt_u32 vcc, 32, v0\nv_cndmask_b32 v136, v138, v136, vcc\n"
    a += f"v_lshlrev_b32 v136, 7, v136\ns_mov_b32 s{S_POLL}, {WS_FLAG + kind * 32768}"
    return Poll(c, a, f"buffer_load_dwordx4 v[140:143], v136, s[{S_WS}:{S_WS+3}], s{S_POLL} offen sc1",
                "v_min3_u32 v137, v140, v141, v142\nv_min_u32 v137, v137, v143\nv_cmp_eq_u32 vcc, 0, v137")

def own_flags(p, c):
    if not c.opt.get('persist'): return
    L = c.lab("zf")
    p(f"""
    s_cmp_lt_u32 s2, {NKIND}
    s_cbranch_scc0 {L}
    s_lshl_b32 s4, s2, 2
    s_add_u32 s4, s4, s{S_WID}
    s_lshl_b32 s3, s4, 13
    s_add_u32 s3, s3, {WS_FLAG}
    v_lshlrev_b32 v136, 7, v0
    v_mov_b32 v137, 0
    v_mov_b32 v140, 0
    v_mov_b32 v141, 0
    v_mov_b32 v142, 0
    v_mov_b32 v143, 0
    buffer_store_dwordx4 v[140:143], v136, s[{S_WS}:{S_WS+3}], s3 offen sc1
    s_lshl_b32 s4, s4, 2
    v_mov_b32 v138, 1
    """)
    srd(p, S_AUX, ptr('dbg'), 256)
    p(f"""
    s_waitcnt vmcnt(0)
    s_mov_b64 exec, 1
    buffer_store_dword v138, v137, s[{S_AUX}:{S_AUX+3}], s4 offen sc1
    s_mov_b64 exec, -1
    """)
    p.label(L)

def own_offsets(p, c):
    if not c.opt.get('persist'): return
    for k, row, idx, lg in ((F_QKV, S_HEAD, S_QB, 3) if c.local else (F_QKV, S_NT3, S_MT3, 4),
                            (F_W1, S_QB, S_HEAD, 5) if c.local else (F_W1, S_MT3, S_NT3, 4) if c.merged else (F_W1, S_MT2, S_NT2, 4),
                            (F_W2, S_MT2, S_NT2, 4), (F_W3, S_MT3, S_NT3, 4),
                            (F_ATT, S_QB, S_HEAD, 5), (F_XCH, S_MT2, S_NT2, 4), (F_ST, S_MT3, S_NT3, 4), (F_CS, S_NT3, S_MT3, 4)):
        p(f"""
        s_lshl_b32 s3, s{row}, {lg}
        s_add_u32 s3, s3, s{idx}
        s_lshl_b32 s3, s3, 7
        s_add_u32 s{S_FL + k}, s3, {WS_FLAG + k * 32768}
        """)

def publish(p, c, kind, all4, v=136):
    if not c.opt.get('persist'): return
    W = f"s[{S_WS}:{S_WS+3}]"
    if all4:
        L = c.lab("pub")
        p(f"s_cmp_eq_u32 s{S_WID}, 0\ns_cbranch_scc0 {L}")
        p(f"v_lshlrev_b32 v{v}, 2, v0\nv_mov_b32 v{v+1}, 1\ns_mov_b64 exec, 15")
        p(f"buffer_store_dword v{v+1}, v{v}, {W}, s{S_FL + kind} offen sc1")
        p("s_mov_b64 exec, -1")
        p.label(L)
    else:
        p(f"s_lshl_b32 s3, s{S_WID}, 2\nv_mov_b32 v{v}, s3\nv_mov_b32 v{v+1}, 1\ns_mov_b64 exec, 1")
        p(f"buffer_store_dword v{v+1}, v{v}, {W}, s{S_FL + kind} offen sc1")
        p("s_mov_b64 exec, -1")

def gen_kernel(name, tasks, opt):
    c = Ctx(name, opt)
    c.ool = []
    c.stampv = 24
    c.merged = getattr(tasks[0], 'NT', 0) == 8
    c.local = c.merged and tasks[0].nA == 8
    for i, T in enumerate(tasks): T.nxt = tasks[i + 1] if i + 1 < len(tasks) else None
    for T in tasks:
        if hasattr(T, 'link'): T.link(c)
    p = Prog()
    def T(k):
        if opt.get('sstamp'): p(f"s_memrealtime s[{96 + 0}:{97}]\ns_waitcnt lgkmcnt(0)\nv_writelane_b32 v153, s96, {k}")
    p(f"""
    s_cmp_ge_u32 s2, 256
    s_cbranch_scc1 {name}_end
    """)
    T(0)
    if opt.get('entry'): p("s_memrealtime s[96:97]")
    p(f"""
    s_load_dwordx16 s[{S_PTR}:{S_PTR+15}], s[0:1], 0
    s_load_dwordx8 s[{S_PTR+16}:{S_PTR+23}], s[0:1], 64
    s_lshr_b32 s{S_IDX}, s2, 3
    """)
    code_prefetch(p, c)
    p(f"""
    v_lshrrev_b32 v1, 6, v0
    v_and_b32 v0, 63, v0
    v_readfirstlane_b32 s{S_WID}, v1
    v_lshlrev_b32 v{V_L16}, 4, v0
    s_and_b32 s{S_XCD}, s2, 7
    s_mov_b32 s{S_RD}, 0
    s_mov_b32 s{S_DMA}, 0
    """)
    tile_map(p, 3, S_MT3, S_NT3)
    ids = f"""
    s_mov_b32 s{S_NEG}, {-(NSLOT - 1) * SLOT & 0xffffffff}
    s_and_b32 s3, s{S_XCD}, 3
    s_lshl_b32 s3, s3, 2
    s_and_b32 s4, s{S_IDX}, 3
    s_add_u32 s{S_MT2}, s3, s4
    s_lshr_b32 s3, s{S_IDX}, 2
    s_lshl_b32 s3, s3, 1
    s_lshr_b32 s4, s{S_XCD}, 2
    s_add_u32 s{S_NT2}, s3, s4
    s_lshl_b32 s3, s{S_NT3}, 1
    s_and_b32 s4, s{S_IDX}, 1
    s_add_u32 s{S_HEAD}, s3, s4
    s_lshr_b32 s{S_QB}, s{S_MT3}, 1
    s_lshl_b32 s3, s{S_QB}, 3
    s_add_u32 s{S_BLK}, s3, s{S_WID}
    """
    T0 = tasks[0]
    lazy = hasattr(T0, 'h_first')
    ids_first = not lazy or getattr(T0, 'NT', 0) == 2 or c.local
    if ids_first: p(ids); ids = ''
    p(f"""
    s_cmp_lt_u32 s{S_WID}, 4
    s_cbranch_scc1 {name}_G
    """)
    p(f"s_sub_u32 s{S_WM}, s{S_WID}, 4")
    if lazy: T0.h_first(p, c)
    T0.h_setup(p, c, first=True)
    T(1)
    if not lazy: srd(p, S_WS, ptr('ws'), WS_SIZE)
    T0.h_post_dep(p, c)
    p.add(T0.dma_atoms(c))
    T(2)
    D1 = T0.dma_atoms(c)
    p.add(D1)
    ex = 0
    T(3)
    if lazy:
        p(ids)
        srd(p, S_WS, ptr('ws'), WS_SIZE)
    srd(p, S_DBG, ptr('dbg'), 256)
    T0.first_extra = ex
    p(f"s_waitcnt vmcnt({nvm(D1) + ex})")
    T(4)
    p("s_barrier")
    T(5)
    p("s_mov_b32 s62, 0")
    hstep_stamp(p, c)
    skip0 = False
    for i, Tk in enumerate(tasks):
        nxt = tasks[i + 1] if i + 1 < len(tasks) else None
        for _ in range(opt.get('hdelay', {}).get(i, 0)): p('s_sleep 8')
        skip0 = Tk.h_body(p, c, nxt, skip0)
        Tk.h_epi(p, c)
    T(6)
    if opt.get('sstamp') or opt.get('spincnt'): p("v_mov_b32 v150, v153")
    hstep_dump(p, c)
    p("s_endpgm")
    p.label(f"{name}_G")
    tlb_warm(p, c)
    p(f"v_mov_b32 v2, {L_GW}\nv_mov_b32 v3, 0\nds_write_b32 v2, v3")
    srd(p, S_WS, ptr('ws'), WS_SIZE)
    own_flags(p, c)
    if lazy:
        T0.g_first(p, c)
        p(ids)
    p(f"""
    s_and_b32 s{S_WM}, s{S_WID}, 1
    s_lshr_b32 s{S_WN}, s{S_WID}, 1
    """)
    c.ST(p, 'g')
    if opt.get('entry'):
        p(f"v_mov_b32 v140, s96\nv_mov_b32 v142, 0\ns_mov_b64 exec, 1\nbuffer_store_dword v140, v142, s[{S_WS}:{S_WS+3}], s60 offen offset:248\ns_mov_b64 exec, -1")
    own_offsets(p, c)
    if opt.get('gprio'): p(f"s_setprio {opt['gprio']}")
    for i, Tk in enumerate(tasks):
        c.stampv = 24
        if i == 0 and hasattr(Tk, 'g_pre_early'): Tk.g_pre_early(p, c)
        if i == 0: Tk.early(p, c)
        Tk.g_setup(p, c)
        if i == 0: p("s_waitcnt lgkmcnt(0)\ns_barrier")
        c.ST(p, 'g')
        for _ in range(opt.get('gdelay', {}).get(i, 0)): p('s_sleep 8')
        Tk.g_body(p, c, tasks[i - 1] if i > 0 else None)
        c.ST(p, 'g')
        if i + 1 < len(tasks): tasks[i + 1].early(p, c)
        Tk.g_epi(p, c)
        if i + 1 < len(tasks) and (tasks[i + 1].xbar or tasks[i + 1].exposed): p("s_barrier")
        if hasattr(Tk, 'g_after_bar'): Tk.g_after_bar(p, c)
    c.ST(p, 'g')
    if opt.get('stamp'):
        p("s_waitcnt vmcnt(0)")
        c.ST(p, 'g')
    p("s_endpgm")
    for f in c.ool: f(p)
    p.label(f"{name}_end")
    p("s_endpgm")
    p.finish(verbose=opt.get('verbose', False))
    return p, dict(grid=256, block=512, lds=LDS_BYTES, nstamp=c.stamp_slot['g'])

def g_prefetch(p, c, items, fl='', vdst=None):
    if not c.opt.get('pf', 1) or not items: return 0
    p(f"""
    s_lshl_b32 s3, s2, 2
    s_and_b32 s4, s{S_WID}, 3
    s_add_u32 s3, s3, s4
    s_mov_b32 m0, {L_DUMMY}
    """)
    for nm, tot, m0_, n in items:
        srd(p, S_AUX, ptr(nm), tot)
        p(f"s_mul_i32 s5, s3, {n * 1024}")
        if m0_: p(f"s_add_u32 s5, s5, {m0_ * MB}")
        for i in range(n):
            if vdst is None: p(f"buffer_load_dwordx4 v1, s[{S_AUX}:{S_AUX+3}], s5 offen {fl} lds")
            else:
                p(f"buffer_load_dwordx4 {vr(vdst, 4)}, v1, s[{S_AUX}:{S_AUX+3}], s5 offen {fl}"); vdst += 4
            if i < n - 1: p(f"s_add_u32 s5, s5, 1024")
    return sum(x[3] for x in items)

def code_prefetch(p, c, again=False):
    if not c.opt.get('cpf', 1) or (again and not c.opt.get('cpf2', 1)): return
    L = c.lab("pc")
    p("s_getpc_b64 s[4:5]")
    p.label(L)
    p(f"""
    s_sub_u32 s4, s4, {L}-{c.name}
    s_subb_u32 s5, s5, 0
    s_lshl_b32 s3, s{S_IDX}, 11
    """)
    if again: p(f"s_and_b32 s6, s{S_WID}, 3\ns_lshl_b32 s6, s6, 9\ns_add_u32 s3, s3, s6\nv_lshl_add_u32 v136, v0, 3, s3")
    else: p("v_lshl_add_u32 v136, v0, 2, s3")
    p(f"""
    s_mov_b32 s3, {c.name}_end-{c.name}
    v_min_u32 v136, s3, v136
    v_mov_b32 v137, s5
    v_add_co_u32 v136, vcc, s4, v136
    v_addc_co_u32 v137, vcc, 0, v137, vcc
    global_load_dword v138, v[136:137], off
    """)

def tlb_warm(p, c):
    if not c.opt.get('tlb', 0): return
    g = c.opt.get('tlbg', 2 * MB)
    def pages(nm, size): return [(nm, o) for o in range(0, size, g)]
    L = [pages('x', 4 * MB) + pages('wqkv', 6 * MB) + pages('gate', 1) + pages('w1', 2 * MB) + pages('dbg', 1) + pages('out', 4 * MB),
         pages('w2', 2 * MB) + pages('w3', 7 * MB) + pages('w4', 7 * MB) + pages('wo', 2 * MB)]
    ws = pages('ws', WS_SIZE)
    L += [ws[:len(ws) // 2], ws[len(ws) // 2:]]
    E = c.lab("tlbe")
    p("s_waitcnt lgkmcnt(0)")
    for w in range(4):
        N = c.lab("tlb")
        if w < 3: p(f"s_cmp_eq_u32 s{S_WID}, {w}\ns_cbranch_scc0 {N}")
        for nm, o in L[w]:
            if o: p(f"s_mov_b32 s3, {o}")
            p.I.append(Inst("s_nop 0"))
            p.I[-1].text = f"s_load_dword s98, s[{ptr(nm)}:{ptr(nm)+1}], " + ("s3" if o else "0")
        if w < 3:
            p(f"s_branch {E}")
            p.label(N)
    p.label(E)
    c.tlb_pending = True

def rot_pieces(p, n, first, rank_code, lds_base, emit):
    p(rank_code)
    for k in range(n):
        if k:
            p(f"s_add_u32 s6, s6, 1\ns_cmp_eq_u32 s6, {n}\ns_cselect_b32 s6, 0, s6")
        p(f"s_lshl_b32 s7, s6, 10\ns_add_u32 s{S_OFFS[first + k]}, s7, s{lds_base}")
        emit(k)
```

```python
from g1 import *
L_MU2 = L_X + 0
S_HB, S_NB = 63, 100
class G2(Gemm):
    NT = 8; KS = 2; nsteps = 16; nA = 8; nB = 3; fr0 = 32
    stepA = 128; stepB = 64 * 6144
    addr_regs = [8, 10, 11, 12, 13, 9]
    pubkind = F_W1
    chain = True
    h_steps = (0, 1, 2, 3, 4, 5, 6)
    def swap(self, n): return n in (4, 5)
    def xaddr(self, kk, m): return (8 + kk, m * 2048)
    def waddr(self, kk, n, j):
        if n < 6: return (10 + n % 2, (32 * kk + 4 * j) * 192 + (n // 2) * 64)
        return (12 + n % 2, (32 * kk + 4 * j) * 64)
    def aflag(self, c): return ''
    @property
    def nd(self): return 13 if self.coop else 12
    coop = True
    def dma_extra(self, c):
        return [f"s_add_u32 m0, s{S_DMA}, s50\nbuffer_load_dwordx4 v43, s[{S_B2}:{S_B2+3}], s53 offen lds\ns_add_u32 s53, s53, {64 * 2048}"] + \
               ([f"s_mov_b32 m0, {L_DUMMY}\nbuffer_load_dwordx4 v44, s[{S_B}:{S_B+3}], s{S_SO[1]} offen lds"] if self.coop else [])
    def dma_atoms(self, c):
        D = Gemm.dma_atoms(self, c)
        if c.opt.get('krot'):
            D[-1] += f"\ns_and_b32 s{S_SO[0]}, s{S_SO[0]}, 2047\ns_cselect_b32 s{S_SO[1]}, s{S_SO[1]}, 0\ns_cselect_b32 s53, s53, 0"
        return D
    def h_first(self, p, c): pass
    def h_setup(self, p, c, first=False):
        p(f"""
        v_lshrrev_b32 v{T0}, 3, v0
        v_and_b32 v{T0+1}, 7, v0
        s_lshl_b32 s3, s{S_QB}, 8
        s_lshl_b32 s4, s{S_WM}, 6
        s_add_u32 s3, s3, s4
        v_lshrrev_b32 v{T0+2}, 1, v{T0}
        v_xor_b32 v{T0+2}, v{T0+2}, v{T0+1}
        v_add_u32 v{T0+3}, s3, v{T0}
        v_lshlrev_b32 v{T0+3}, 11, v{T0+3}
        v_lshl_add_u32 v32, v{T0+2}, 4, v{T0+3}
        v_xor_b32 v{T0+2}, 64, v32
        """)
        for i in range(1, 8): p(f"v_add_u32 v{32 + i}, {i * 8 * 2048}, v{32 if i % 2 == 0 else T0 + 2}")
        p(f"""
        s_mul_i32 s3, s{S_WM}, 192
        s_lshl_b32 s4, s{S_HEAD}, 6
        v_and_b32 v{T0+5}, 3, v0
        """)
        for i in range(3):
            p(f"""
            v_add_u32 v{T0}, s3, v0
            v_add_u32 v{T0}, {64 * i}, v{T0}
            v_mul_u32_u24 v{T0+1}, 0x1556, v{T0}
            v_lshrrev_b32 v{T0+1}, 16, v{T0+1}
            v_mul_u32_u24 v{T0+2}, 12, v{T0+1}
            v_sub_u32 v{T0+2}, v{T0}, v{T0+2}
            v_lshrrev_b32 v{T0+3}, 2, v{T0+2}
            v_lshrrev_b32 v{T0+4}, 2, v{T0+1}
            v_and_b32 v{T0+4}, 2, v{T0+4}
            v_xor_b32 v{T0+2}, v{T0+5}, v{T0+4}
            v_mul_u32_u24 v{T0+1}, 6144, v{T0+1}
            v_lshl_add_u32 v{T0+1}, v{T0+3}, 11, v{T0+1}
            v_lshl_add_u32 v{T0+1}, v{T0+2}, 4, v{T0+1}
            v_add_u32 v{40 + i}, s4, v{T0+1}
            """)
        p(f"""
        v_lshrrev_b32 v{T0}, 2, v0
        v_lshrrev_b32 v{T0+1}, 4, v0
        v_and_b32 v{T0+1}, 2, v{T0+1}
        v_xor_b32 v{T0+1}, v{T0+5}, v{T0+1}
        s_lshl_b32 s3, s{S_WM}, 4
        v_add_u32 v{T0}, s3, v{T0}
        v_lshlrev_b32 v{T0}, 11, v{T0}
        v_lshl_add_u32 v{T0}, v{T0+1}, 4, v{T0}
        s_add_u32 s{S_HB}, s{S_HEAD}, {c.opt.get('hbshift', 2)}
        s_and_b32 s{S_HB}, s{S_HB}, 31
        s_lshr_b32 s{S_NB}, s{S_HB}, 1
        s_lshl_b32 s4, s{S_HB}, 6
        v_add_u32 v43, s4, v{T0}
        s_lshl_b32 s{S_LD[0]}, s{S_WM}, 13
        s_mul_i32 s{S_LD[1]}, s{S_WM}, 3072
        s_add_u32 s{S_LD[1]}, s{S_LD[1]}, 32768
        s_lshl_b32 s50, s{S_WM}, 10
        s_add_u32 s50, s50, 45056
        s_mov_b32 s{S_SO[0]}, 0
        s_mov_b32 s{S_SO[1]}, 0
        s_mov_b32 s53, 0
        """)
        if c.opt.get('krot'):
            a, b = c.opt['krot']
            p(f"""
            s_lshr_b32 s3, s{S_XCD}, 1
            s_mul_i32 s3, s3, {a}
            s_and_b32 s4, s{S_XCD}, 1
            s_mul_i32 s4, s4, {b}
            s_add_u32 s3, s3, s4
            s_and_b32 s3, s3, 15
            s_lshl_b32 s{S_SO[0]}, s3, 7
            s_mul_i32 s{S_SO[1]}, s3, {64 * 6144}
            s_lshl_b32 s53, s3, 17
            """)
        srd(p, S_A, ptr('x'), 2048 * 2048)
        srd(p, S_B, ptr('wqkv'), 1024 * 6144)
        srd(p, S_B2, ptr('w1'), 1024 * 2048)
        if self.coop:
            p(f"""
            s_or_b32 s4, s{S_NT3}, 3
            s_lshr_b32 s3, s{ptr('wqkv')}, 7
            s_add_u32 s3, s3, s4
            s_and_b32 s3, s3, 7
            s_lshl_b32 s4, s4, 7
            s_lshr_b32 s5, s{S_IDX}, 3
            s_lshl_b32 s6, s5, 11
            s_add_u32 s4, s4, s6
            s_and_b32 s6, s{S_IDX}, 7
            s_lshl_b32 s6, s6, 2
            s_add_u32 s6, s6, s{S_WM}
            s_mul_i32 s6, s6, {2 * 6144}
            s_add_u32 s4, s4, s6
            s_add_u32 s4, s4, {c.opt.get('coopa', 1) * self.stepB}
            s_cmp_eq_u32 s3, 3
            s_cselect_b32 s3, 16, 0
            s_cmp_eq_u32 s5, 3
            s_cselect_b32 s3, 0, s3
            v_lshrrev_b32 v{T0}, 3, v0
            v_mul_u32_u24 v{T0}, 6144, v{T0}
            v_and_b32 v{T0+1}, 7, v0
            v_lshl_add_u32 v{T0}, v{T0+1}, 4, v{T0}
            v_add_u32 v{T0}, s4, v{T0}
            v_mov_b32 v{T0+1}, 0x40000000
            v_cmp_gt_u32 vcc, s3, v0
            v_cndmask_b32 v44, v{T0+1}, v{T0}, vcc
            """)
    def pf_list(self, c): return [('wqkv', 6 * MB, i, 1) for i in c.opt.get('qorder', range(6))]
    def g_first(self, p, c):
        W1F.g_first(self, p, c, False)
        srd(p, S_B, ptr('w1'), 1024 * 2048)
        p(f"""
        v_lshrrev_b32 v{T0}, 3, v0
        v_and_b32 v{T0+1}, 7, v0
        v_lshlrev_b32 v{T0}, 11, v{T0}
        v_lshl_add_u32 v{T0}, v{T0+1}, 4, v{T0}
        s_lshl_b32 s3, s{S_MT3}, 2
        s_add_u32 s3, s3, s{S_WID}
        s_lshl_b32 s3, s3, 15
        s_lshl_b32 s4, s{S_NT3}, 7
        s_add_u32 s3, s3, s4
        s_add_u32 s4, s3, {8 * 2048}
        buffer_load_dwordx4 v[88:91], v{T0}, s[{S_B}:{S_B+3}], s3 offen
        buffer_load_dwordx4 v[92:95], v{T0}, s[{S_B}:{S_B+3}], s4 offen
        """)
        g_prefetch(p, c, self.pf_list(c)[:c.opt.get('pf0', 1)])
    def early(self, p, c):
        stats_code(p, c, 64, 80, S_WID)
        for d in range(4):
            p(f"""
            v_lshlrev_b32 v{96 + 2 * d}, 16, v{88 + d}
            v_and_b32 v{97 + 2 * d}, 0xffff0000, v{88 + d}
            v_lshlrev_b32 v104, 16, v{92 + d}
            v_and_b32 v105, 0xffff0000, v{92 + d}
            v_add_f32 v{96 + 2 * d}, v{96 + 2 * d}, v104
            v_add_f32 v{97 + 2 * d}, v{97 + 2 * d}, v105
            """)
        for i in range(4): p(f"v_permlane32_swap_b32 v{96 + i}, v{100 + i}")
        for i in range(4): p(f"v_add_f32 v{96 + i}, v{96 + i}, v{100 + i}")
        for i in range(2): p(f"v_permlane16_swap_b32 v{96 + i}, v{98 + i}")
        for i in range(2): p(f"v_add_f32 v{96 + i}, v{96 + i}, v{98 + i}")
        for i in range(2): p(f"v_add_f32_dpp v{96 + i}, v{96 + i}, v{96 + i} row_ror:8 row_mask:0xf bank_mask:0xf")
        p(f"""
        v_and_b32 v104, 7, v0
        v_lshrrev_b32 v105, 4, v0
        v_lshlrev_b32 v104, 5, v104
        v_lshl_add_u32 v104, v105, 3, v104
        s_lshl_b32 s3, s{S_NT3}, 4
        s_add_u32 s3, s3, s{S_MT3}
        s_lshl_b32 s3, s3, 2
        s_add_u32 s3, s3, s{S_WID}
        s_lshl_b32 s3, s3, 8
        s_add_u32 s3, s3, {WS_CS1}
        buffer_store_dwordx2 v[96:97], v104, s[{S_WS}:{S_WS+3}], s3 offen {c.opt.get('stflag', '')}
        """)
    def g_pre_early(self, p, c):
        U = 16
        lane_fields(p, U, U + 1, U + 2, U + 3)
        p(f"""
        v_lshrrev_b32 v{U+4}, 1, v{U}
        v_xor_b32 v{U+4}, v{U+4}, v{U+1}
        v_lshlrev_b32 v{U+4}, 4, v{U+4}
        v_lshl_or_b32 v{U+4}, v{U}, 7, v{U+4}
        s_lshl_b32 s3, s{S_WID}, 13
        v_add_u32 v8, s3, v{U+4}
        v_xor_b32 v9, 64, v8
        v_and_b32 v{U+5}, 1, v{U+1}
        v_lshlrev_b32 v{U+5}, 5, v{U+5}
        v_lshl_add_u32 v{U+5}, v{U+3}, 3, v{U+5}
        v_lshl_add_u32 v{U+4}, v{U+1}, 3, v{U+2}
        v_mul_u32_u24 v{U+6}, 192, v{U+4}
        v_add_u32 v{U+6}, v{U+6}, v{U+5}
        v_add_u32 v10, 32768, v{U+6}
        v_xor_b32 v11, 32, v10
        v_lshl_add_u32 v{U+6}, v{U+4}, 6, v{U+5}
        v_add_u32 v12, 45056, v{U+6}
        v_xor_b32 v13, 32, v12
        """)
        self.g_zero(p)
    def g_setup(self, p, c): pass
    def g_sites(self, c):
        def pub(p):
            p("s_waitcnt vmcnt(0)")
            publish(p, c, F_ST, False, 28)
        return {c.opt.get('stpub', 4): pub} if c.opt.get('persist') else {}
    def h_poll(self, c, t):
        if t == 2: return poll_init(c)
        if t == 14: return poll_flags(c, F_ST, S_QB, nprod=32, col_sgpr=S_NB)
    def h_extra(self, p, c, t):
        W = f"s[{S_WS}:{S_WS+3}]"
        ho = c.opt.get('hoflag', '')
        if t <= 6:
            rest = self.pf_list(c)[c.opt.get('pf0', 1):]
            k = c.opt.get('pfk', 1)
            return g_prefetch(p, c, rest[k * t:k * (t + 1)])
        if t == 15:
            p(f"""
            v_lshlrev_b32 v60, 2, v0
            s_lshl_b32 s3, s{S_QB}, 10
            s_lshl_b32 s4, s{S_WM}, 8
            s_add_u32 s3, s3, s4
            s_add_u32 s3, s3, {WS_ST1}
            s_add_u32 s5, s3, 8192
            s_add_u32 s4, s4, {L_MU2}
            v_add_u32 v58, s4, v60
            buffer_load_dword v59, v60, {W}, s3 offen {ho}
            buffer_load_dword v63, v60, {W}, s5 offen {ho}
            v_lshrrev_b32 v61, 2, v0
            v_and_b32 v62, 3, v0
            v_lshlrev_b32 v61, 8, v61
            v_lshl_add_u32 v61, v62, 4, v61
            s_lshl_b32 s3, s{S_NB}, 14
            s_lshl_b32 s4, s{S_WM}, 6
            s_add_u32 s3, s3, s4
            s_add_u32 s3, s3, {WS_CS1}
            """)
            for i in range(4):
                p(f"buffer_load_dwordx4 {vr(64 + 4 * i, 4)}, v61, {W}, s3 offen {ho}")
                if i < 3: p("s_add_u32 s3, s3, 4096")
            if c.opt.get('cs3at') == 15: self.npf += cs3_loads(p, c, S_MT2, S_NT2)
            return 6 + self.npf
        if t == 14 and not c.opt.get('post14', 0): return self.cold_loads(p, c)
        return 0
    def cold_loads(self, p, c):
        self.npf = cs3_loads(p, c) if c.opt.get('cs3') else 0
        if c.opt.get('cs3at') == 14: self.npf += cs3_loads(p, c, S_MT2, S_NT2)
        self.npf += g_prefetch(p, c, c.opt.get('g2pf', [('w2', 2 * MB, 0, 2)]), vdst=160)
        return self.npf
    def h_post(self, p, c, t):
        if t == 14 and c.opt.get('post14', 0): self.cold_loads(p, c)
    def h_final(self, p, c):
        p("ds_write_b32 v58, v63 offset:1024")
        G1.h_mix(self, p, c, 15)
        if c.opt.get('cs3'): cs3_math(p, c)
        if c.opt.get('cs3m'): cs3_math(p, c, S_MT2, S_NT2)
    def g_epi(self, p, c):
        st = c.opt.get('stflag', '')
        W = f"s[{S_WS}:{S_WS+3}]"
        R, G, U = 16, 17, 18
        p("s_setprio 2")
        lane_fields(p, R, G)
        p(f"""
        v_lshlrev_b32 v{U}, 9, v{G}
        v_lshl_or_b32 v8, v{R}, 4, v{U}
        v_and_b32 v{U+1}, 7, v{R}
        v_lshrrev_b32 v{U+2}, 3, v{R}
        v_lshl_or_b32 v{U}, v{U+2}, 8, v{U}
        v_lshl_or_b32 v9, v{U+1}, 4, v{U}
        s_add_u32 s{S_HB}, s{S_HEAD}, {c.opt.get('hbshift', 2)}
        s_and_b32 s{S_HB}, s{S_HB}, 31
        s_lshl_b32 s45, s{S_HB}, 10
        s_add_u32 s45, s45, {WS_HS}
        s_lshl_b32 s43, s{S_HEAD}, 18
        s_lshl_b32 s4, s{S_QB}, 15
        s_lshl_b32 s5, s{S_WID}, 13
        s_add_u32 s43, s43, s4
        s_add_u32 s43, s43, s5
        s_add_u32 s43, s43, {WS_KV}
        s_add_u32 s44, s43, 4096
        s_add_u32 s5, s5, s{S_RD}
        v_add_u32 v12, s5, v8
        v_add_u32 v13, s5, v9
        s_lshl_b32 s5, s{S_WID}, 12
        s_add_u32 s5, s5, s{S_RD}
        v_add_u32 v14, s5, v8
        s_mov_b32 s46, {hexf(QSCALE)}
        s_mov_b32 s47, {hexf(QSCALE)}
        s_and_b32 s3, s{S_HEAD}, 1
        s_lshl_b32 s3, s3, 7
        s_add_u32 s3, s3, {L_CS}
        v_lshl_add_u32 v10, v{G}, 4, s3
        s_lshl_b32 s3, s{S_WID}, 8
        s_add_u32 s3, s3, {L_MU2}
        v_lshl_add_u32 v11, v{R}, 2, s3
        """)
        t = 32
        S = []
        late = c.opt.get('kvlate', 0)
        def st_(x):
            if late: S.append(x)
            else: p(x)
        for m in range(4):
            a, b = self.acc(m, 2), self.acc(m, 3)
            for i, r in enumerate((a, a + 2, b, b + 2)): p(f"v_cvt_pk_bf16_f32 v{t + i}, v{r}, v{r + 1}")
            st_(f"buffer_store_dwordx4 {vr(t, 4)}, v9, {W}, s{43 + m // 2} offen offset:{(m % 2) * 128} {st}")
            p(f"ds_write_b128 v13, {vr(t, 4)} offset:{(m // 2) * 4096 + (m % 2) * 128}")
            t += 4
        for u in range(2):
            for nb in range(2):
                a = self.acc(2 * u, 4 + nb)
                for i in range(4): p(f"v_cvt_pk_bf16_f32 v{t + i}, v{a + 2 * i}, v{a + 2 * i + 1}")
                st_(f"buffer_store_dwordx4 {vr(t, 4)}, v8, {W}, s{43 + u} offen offset:{2048 + nb * 256} {st}")
                p(f"ds_write_b128 v12, {vr(t, 4)} offset:{u * 4096 + 2048 + nb * 256}")
                t += 4
        for m in range(4):
            a, b = self.acc(m, 0), self.acc(m, 1)
            for r in (a, a + 2, b, b + 2): p(f"v_pk_mul_f32 {vr(r, 2)}, {vr(r, 2)}, s[46:47]")
            for i, r in enumerate((a, a + 2, b, b + 2)): p(f"v_cvt_pk_bf16_f32 v{t + i}, v{r}, v{r + 1}")
            p(f"ds_write_b128 v14, {vr(t, 4)} offset:{32768 + (m // 2) * 2048 + (m % 2) * 256}")
            t += 4
        p.add(S[:2])
        p("s_waitcnt lgkmcnt(0)\ns_barrier")
        p("ds_read_b128 v[80:83], v10\nds_read_b128 v[84:87], v10 offset:64")
        for m in range(4):
            p(f"ds_read_b32 v{88 + 8 * m}, v11 offset:{64 * m}")
            p(f"ds_read_b32 v{89 + 8 * m}, v11 offset:{1024 + 64 * m}")
        p.add(S[2:])
        c.ST(p, 'g')
        for m in range(4): gelu_consts(p, 88 + 8 * m, False)
        p(f"""
        s_lshr_b32 s5, s{S_HB}, 3
        s_lshr_b32 s6, s5, 1
        s_add_u32 s6, s6, 1
        s_sub_u32 s7, 0, s6
        s_bitcmp1_b32 s5, 0
        s_cselect_b32 s6, s7, s6
        s_lshl_b32 s3, s{S_QB}, 8
        s_lshl_b32 s4, s{S_WID}, 6
        s_add_u32 s3, s3, s4
        s_add_u32 s6, s6, s3
        """)
        npub = c.opt.get('g1pub', 0)
        def pub():
            p("s_waitcnt vmcnt(%d)" % (1 if c.opt.get('stamp') else 0))
            publish(p, c, F_QKV, False, 28)
            if not c.opt.get('gfirst'): p("s_setprio 0")
            c.ST(p, 'g')
        for mp in range(2):
            if mp == npub: pub()
            items = []
            for m in (2 * mp, 2 * mp + 1):
                for n in range(2):
                    for h in range(2): items.append((self.acc(m, 6 + n) + 2 * h, 80 + 4 * n + 2 * h, 88 + 8 * m))
            gelu_block(p, items, 128, c.opt.get('pk', 1))
            for m in (2 * mp, 2 * mp + 1):
                a, b = self.acc(m, 6), self.acc(m, 7)
                t = 160 + 4 * m
                if m == 0:
                    p(f"""
                    v_add_u32 v{U}, s6, v{R}
                    v_and_b32 v{U+1}, 15, v{U}
                    v_lshl_add_u32 v{U+1}, v{G}, 4, v{U+1}
                    v_lshlrev_b32 v{U+1}, 4, v{U+1}
                    v_ashrrev_i32 v{U+2}, 4, v{U}
                    v_lshl_add_u32 v{U+1}, v{U+2}, 15, v{U+1}
                    v_and_b32 v176, 0x3fffff, v{U+1}
                    v_add_u32 v177, 32768, v{U+1}
                    v_add_u32 v178, 65536, v{U+1}
                    v_add_u32 v179, 98304, v{U+1}
                    v_and_b32 v179, 0x3fffff, v179
                    v_cmp_le_i32 vcc, 0, v{U}
                    """)
                if m == 3: p(f"v_cmp_gt_i32 vcc, 2000, v{U}")
                for i, r in enumerate((a, a + 2, b, b + 2)): p(f"v_cvt_pk_bf16_f32 v{t + i}, v{r}, v{r + 1}")
                if m in (0, 3):
                    for i in range(4): p(f"v_cndmask_b32 v{t + i}, 0, v{t + i}, vcc")
        if npub == 2: pub()
        self.deferred = [f"buffer_store_dwordx4 {vr(160 + 4 * m, 4)}, v{176 + m}, {W}, s45 offen {st}" for m in range(4)]
        if not c.opt.get('hslate', 0): p.add(self.deferred); self.deferred = []
        if not (self.nxt.adv == 8192 and c.opt.get('glow', 1)): p("s_setprio 0")

class G2N(G2):
    coop = False
```

```python
from fw import *

def lane_fields(p, r16=None, g=None, r4=None, c4=None):
    if r16 is not None: p(f"v_and_b32 v{r16}, 15, v0")
    if g is not None: p(f"v_lshrrev_b32 v{g}, 4, v0")
    if r4 is not None: p(f"v_bfe_u32 v{r4}, v0, 2, 2")
    if c4 is not None: p(f"v_and_b32 v{c4}, 3, v0")

T0 = 128

def h_xrows(p, regs, sub_off, S_MT):
    p(f"""
    v_lshrrev_b32 v{T0}, 3, v0
    v_and_b32 v{T0+1}, 7, v0
    s_lshl_b32 s3, s{S_MT}, 7
    s_lshl_b32 s4, s{S_WM}, 5
    s_add_u32 s3, s3, s4
    v_lshrrev_b32 v{T0+2}, 1, v{T0}
    v_xor_b32 v{T0+2}, v{T0+2}, v{T0+1}
    v_add_u32 v{T0+3}, s3, v{T0}
    v_lshlrev_b32 v{T0+3}, 11, v{T0+3}
    v_lshl_add_u32 v{regs[0]}, v{T0+2}, 4, v{T0+3}
    v_xor_b32 v{T0+2}, 64, v{regs[0]}
    """)
    for i, r in enumerate(regs):
        if i == 0: continue
        ii = i % 4
        src = regs[0] if ii % 2 == 0 else T0 + 2
        p(f"v_add_u32 v{r}, {ii * 8 * 2048 + sub_off(i)}, v{src}")

class QKV(Gemm):
    NT = 6; KS = 2; nsteps = 16; nA = 4; nB = 6
    stepA = 128; stepB = 64 * 6144
    addr_regs = [32, 34, 35, 33]
    pubkind = F_QKV
    h_steps = (0, 1, 2, 3, 4, 5, 6, 7)
    def swap(self, n): return n >= 4
    def xaddr(self, kk, m): return (32 + kk, m * 2048)
    def waddr(self, kk, n, j): return (34 + n % 2, (32 * kk + 4 * j) * 384 + (n // 2) * 128)
    def aflag(self, c): return c.opt.get('ldflag', '')
    def h_setup(self, p, c, first=False):
        h_xrows(p, [32, 33, 34, 35], lambda i: 0, S_MT3)
        p(f"""
        s_mul_i32 s3, s{S_WM}, 384
        s_lshl_b32 s4, s{S_NT3}, 7
        """)
        for i in range(3):
            p(f"""
            v_add_u32 v{T0}, s3, v0
            v_add_u32 v{T0}, {64 * i}, v{T0}
            v_mul_u32_u24 v{T0+1}, 0xaab, v{T0}
            v_lshrrev_b32 v{T0+1}, 16, v{T0+1}
            v_mul_u32_u24 v{T0+2}, 24, v{T0+1}
            v_sub_u32 v{T0+2}, v{T0}, v{T0+2}
            v_lshrrev_b32 v{T0+3}, 3, v{T0+2}
            v_and_b32 v{T0+2}, 7, v{T0+2}
            v_and_b32 v{T0+4}, 2, v{T0+1}
            v_xor_b32 v{T0+2}, v{T0+2}, v{T0+4}
            v_mul_u32_u24 v{T0+1}, 6144, v{T0+1}
            v_lshl_add_u32 v{T0+1}, v{T0+3}, 11, v{T0+1}
            v_lshl_add_u32 v{T0+1}, v{T0+2}, 4, v{T0+1}
            v_add_u32 v{36 + i}, s4, v{T0+1}
            v_xor_b32 v{T0+1}, 64, v{36 + i}
            v_add_u32 v{39 + i}, {8 * 6144}, v{T0+1}
            """)
        p(f"""
        s_lshl_b32 s{S_LD[0]}, s{S_WM}, 12
        s_mul_i32 s{S_LD[1]}, s{S_WM}, 6144
        s_add_u32 s{S_LD[1]}, s{S_LD[1]}, 16384
        s_mov_b32 s{S_SO[0]}, 0
        s_mov_b32 s{S_SO[1]}, 0
        """)
        srd(p, S_B, ptr('wqkv'), 1024 * 6144)
    def g_setup(self, p, c):
        lane_fields(p, T0, T0 + 1, T0 + 2, T0 + 3)
        p(f"""
        v_lshrrev_b32 v{T0+4}, 1, v{T0}
        v_xor_b32 v{T0+4}, v{T0+4}, v{T0+1}
        v_lshlrev_b32 v{T0+4}, 4, v{T0+4}
        v_lshl_or_b32 v{T0+4}, v{T0}, 7, v{T0+4}
        s_lshl_b32 s3, s{S_WM}, 13
        s_add_u32 s3, s3, s{S_RD}
        v_add_u32 v32, s3, v{T0+4}
        v_xor_b32 v33, 64, v32
        v_lshl_add_u32 v{T0+4}, v{T0+1}, 3, v{T0+2}
        v_mul_u32_u24 v{T0+4}, 384, v{T0+4}
        v_lshrrev_b32 v{T0+5}, 1, v{T0+2}
        v_and_b32 v{T0+6}, 1, v{T0+1}
        v_lshl_or_b32 v{T0+5}, v{T0+6}, 1, v{T0+5}
        s_lshl_b32 s3, s{S_WN}, 1
        v_xor_b32 v{T0+5}, s3, v{T0+5}
        v_lshl_add_u32 v{T0+4}, v{T0+5}, 5, v{T0+4}
        v_lshl_add_u32 v{T0+4}, v{T0+3}, 3, v{T0+4}
        s_add_u32 s3, s{S_RD}, 16384
        v_add_u32 v34, s3, v{T0+4}
        v_xor_b32 v35, 32, v34
        """)
        self.g_zero(p)
    def g_epi(self, p, c):
        st = c.opt.get('stflag', '')
        lane_fields(p, T0, T0 + 1)
        p(f"""
        s_waitcnt lgkmcnt(0)
        v_lshrrev_b32 v{T0+2}, 1, v{T0+1}
        v_and_b32 v{T0+3}, 1, v{T0+1}
        v_lshlrev_b32 v{T0+2}, 10, v{T0+2}
        v_lshl_or_b32 v{T0+2}, v{T0+3}, 9, v{T0+2}
        v_lshl_or_b32 v32, v{T0}, 4, v{T0+2}
        v_and_b32 v{T0+3}, 7, v{T0}
        v_lshrrev_b32 v{T0+4}, 3, v{T0}
        v_lshl_or_b32 v{T0+2}, v{T0+4}, 8, v{T0+2}
        v_lshl_or_b32 v33, v{T0+3}, 4, v{T0+2}
        s_lshl_b32 s3, s{S_NT3}, 1
        s_add_u32 s3, s3, s{S_WN}
        s_lshl_b32 s4, s{S_MT3}, 2
        s_lshl_b32 s5, s{S_WM}, 1
        s_add_u32 s4, s4, s5
        s_lshl_b32 s5, s3, 17
        s_lshl_b32 s6, s4, 11
        s_add_u32 s42, s5, s6
        s_lshl_b32 s43, s42, 1
        s_add_u32 s43, s43, {WS_KV}
        s_add_u32 s44, s43, 4096
        s_mov_b32 s46, {hexf(QSCALE)}
        s_mov_b32 s47, {hexf(QSCALE)}
        """)
        W = f"s[{S_WS}:{S_WS+3}]"
        st = c.opt.get('qkvst', st)
        t = V_FR
        for m in range(4):
            a, b = self.acc(m, 2), self.acc(m, 3)
            for i, r in enumerate((a, a + 2, b, b + 2)): p(f"v_cvt_pk_bf16_f32 v{t + i}, v{r}, v{r + 1}")
            p(f"buffer_store_dwordx4 {vr(t, 4)}, v33, {W}, s{43 + m // 2} offen offset:{(m % 2) * 128} {st}")
            t += 4
        for u in range(2):
            for nb in range(2):
                a = self.acc(2 * u, 4 + nb)
                for i in range(4): p(f"v_cvt_pk_bf16_f32 v{t + i}, v{a + 2 * i}, v{a + 2 * i + 1}")
                p(f"buffer_store_dwordx4 {vr(t, 4)}, v32, {W}, s{43 + u} offen offset:{2048 + nb * 256} {st}")
                t += 4
        for m in range(4):
            a, b = self.acc(m, 0), self.acc(m, 1)
            for r in (a, a + 2, b, b + 2): p(f"v_pk_mul_f32 {vr(r, 2)}, {vr(r, 2)}, s[46:47]")
            for i, r in enumerate((a, a + 2, b, b + 2)): p(f"v_cvt_pk_bf16_f32 v{t + i}, v{r}, v{r + 1}")
            p(f"buffer_store_dwordx4 {vr(t, 4)}, v32, {W}, s42 offen offset:{(m // 2) * 2048 + (m % 2) * 256} {st}")
            t += 4
    def h_first(self, p, c):
        srd(p, S_A, ptr('x'), 2048 * 2048)
        srd(p, S_AUX, ptr('gate'), 2048)
        p(f"""
        s_lshl_b32 s48, s{S_MT3}, 4
        s_add_u32 s48, s48, s{S_NT3}
        s_lshl_b32 s48, s48, 3
        s_lshl_b32 s3, s{S_WM}, 1
        s_add_u32 s48, s48, s3
        s_lshl_b32 s3, s48, 11
        buffer_load_dwordx4 v[64:67], v1, s[{S_A}:{S_A+3}], s3 offen
        buffer_load_dwordx4 v[68:71], v1, s[{S_A}:{S_A+3}], s3 offen offset:1024
        buffer_load_dwordx4 v[72:75], v1, s[{S_A}:{S_A+3}], s3 offen offset:2048
        buffer_load_dwordx4 v[76:79], v1, s[{S_A}:{S_A+3}], s3 offen offset:3072
        buffer_load_dwordx4 v[80:83], v1, s[{S_AUX}:{S_AUX+3}], 0 offen
        buffer_load_dwordx4 v[84:87], v1, s[{S_AUX}:{S_AUX+3}], 0 offen offset:1024
        """)
    def bflag(self, c): return c.opt.get('qbfl', '')
    def pf_list(self, c): return [('wqkv', 6 * MB, i, 1) for i in range(c.opt.get('nqpf', 6))] + [('w1', 2 * MB, i, 1) for i in range(2)]
    def g_first(self, p, c):
        n0 = c.opt.get('pf0', 1)
        g_prefetch(p, c, self.pf_list(c)[:n0])
        if c.opt.get('gpf', 0):
            srd(p, S_A, ptr('wqkv'), 6 * MB)
            srd(p, S_B, ptr('w1'), 2 * MB)
            p(f"""
            s_lshl_b32 s3, s3, 10
            s_add_u32 s{S_SO[0]}, s3, {n0 * MB}
            s_add_u32 s{S_SO[1]}, s3, {(-(6 - n0) * MB) & 0xffffffff}
            """)
    def g_loop_atoms(self, c):
        if not c.opt.get('gpf', 0) or not c.opt.get('pf', 1): return []
        L = []
        for k, r in enumerate((S_A, S_B)):
            L += [f"buffer_load_dwordx4 v1, s[{r}:{r+3}], s{S_SO[k]} offen lds", f"s_add_u32 s{S_SO[k]}, s{S_SO[k]}, {MB}"]
        return L
    def g_sites(self, c):
        if not c.opt.get('persist'): return {}
        return {9: lambda p: publish(p, c, F_ST, True)}
    def h_poll(self, c, t): return poll_init(c) if t == 6 else None
    def h_mix(self, p, c, t):
        t -= 1
        if 1 <= t <= 4:
            if t == 1:
                for a in range(48, 54): p(f"v_mov_b32 v{a}, 0")
            for i in (2 * t - 2, 2 * t - 1):
                p(f"v_lshlrev_b32 v58, 16, v{80 + i}")
                p(f"v_and_b32 v59, 0xffff0000, v{80 + i}")
                for row in range(2):
                    ag, as_, aq = 48 + row, 50 + row, 52 + row
                    x = 64 + 8 * row + i
                    p(f"""
                    v_lshlrev_b32 v56, 16, v{x}
                    v_and_b32 v57, 0xffff0000, v{x}
                    v_add_f32 v{as_}, v{as_}, v56
                    v_fmac_f32 v{aq}, v56, v56
                    v_add_f32 v{as_}, v{as_}, v57
                    v_fmac_f32 v{aq}, v57, v57
                    v_mul_f32 v56, v56, v58
                    v_mul_f32 v57, v57, v59
                    v_cvt_pk_bf16_f32 v56, v56, v57
                    v_lshlrev_b32 v57, 16, v56
                    v_and_b32 v56, 0xffff0000, v56
                    v_add_f32 v{ag}, v{ag}, v57
                    v_add_f32 v{ag}, v{ag}, v56
                    """)
        if t == 5:
            for a in (48, 50, 52): p(f"v_permlane32_swap_b32 v{a}, v{a + 1}")
            for a in (48, 50, 52): p(f"v_add_f32 v{a}, v{a}, v{a + 1}")
            for a in (48, 50, 52): p(f"v_mov_b32 v{a + 1}, v{a}")
            for a in (48, 50, 52): p(f"v_permlane16_swap_b32 v{a}, v{a + 1}")
            for a in (48, 50, 52): p(f"v_add_f32 v{a}, v{a}, v{a + 1}")
            for sh in (8, 4, 2, 1):
                for a in (48, 50, 52): p(f"v_add_f32_dpp v{a}, v{a}, v{a} row_ror:{sh} row_mask:0xf bank_mask:0xf")
        if t == 6:
            p(f"""
            v_mul_f32 v50, {hexf(1.0 / 1024)}, v50
            v_mul_f32 v52, {hexf(1.0 / 1024)}, v52
            v_fma_f32 v52, -v50, v50, v52
            v_max_f32 v52, 0, v52
            v_add_f32 v52, {hexf(1e-5)}, v52
            v_rsq_f32 v52, v52
            v_cvt_pk_bf16_f32 v48, v48, v48
            v_and_b32 v48, 0xffff0000, v48
            v_mul_f32 v48, {hexf(-LOG2E)}, v48
            v_exp_f32 v48, v48
            v_add_f32 v48, 1.0, v48
            v_rcp_f32 v48, v48
            v_cvt_pk_bf16_f32 v48, v48, v48
            v_and_b32 v48, 0xffff0000, v48
            v_sub_f32 v49, 1.0, v48
            v_cvt_pk_bf16_f32 v49, v49, v49
            v_and_b32 v49, 0xffff0000, v49
            v_lshrrev_b32 v56, 5, v0
            v_add_u32 v56, s48, v56
            v_lshlrev_b32 v56, 2, v56
            """)
    def h_extra(self, p, c, t):
        W = f"s[{S_WS}:{S_WS+3}]"
        st = c.opt.get('stflag', '')
        rest = self.pf_list(c)[c.opt.get('pf0', 1):]
        k = c.opt.get('pfk', 1)
        if t < 7:
            it = rest[k * t:k * (t + 1)] if not c.opt.get('gpf', 0) else []
            return g_prefetch(p, c, it, c.opt.get('pffl', '')) if it else 0
        if t == 7:
            p(f"""
            s_mov_b32 s3, {WS_G}
            s_mov_b32 s4, {WS_G + 8192}
            s_mov_b32 s5, {WS_ST1}
            s_mov_b32 s6, {WS_ST1 + 8192}
            s_mov_b32 exec_lo, 1
            s_mov_b32 exec_hi, 1
            buffer_store_dword v48, v56, {W}, s3 offen {st}
            buffer_store_dword v49, v56, {W}, s4 offen {st}
            buffer_store_dword v50, v56, {W}, s5 offen {st}
            buffer_store_dword v52, v56, {W}, s6 offen {st}
            s_mov_b64 exec, -1
            """)
            return 4
        return 0

class N64(Gemm):
    NT = 2; KS = 4; nA = 8; nB = 4
    stepB = 128 * 2048
    order = 'perm32'; bname = None; babytes = 1024 * 2048
    a_pitch = 32768; a_base = 0; a_size = 4 * MB
    stepA = 4096
    addr_regs = [32, 34, 35]
    def xaddr(self, kk, m): return (32, m * 4096 + kk * 1024)
    def waddr(self, kk, n, j):
        js = {'nat': 4, 'perm32': 16, 'perm32b': 8}[self.order]
        return (34 + n, (32 * kk + js * j) * 128)
    def g_body(self, p, c, prev):
        if not c.opt.get('chain64', 1) or self.order == 'nat': return Gemm.g_body(self, p, c, prev)
        xf = lambda s, m, h: 48 + 48 * s + 8 * m + 4 * h
        wf = lambda s, n, h: 48 + 48 * s + 32 + 8 * n + 4 * h
        def reads(s, kk):
            rx = lambda m: ["ds_read_b128 %s, v%d offset:%d" % ((vr(xf(s, m, h), 4),) + self.xaddr(2 * kk + h, m)) for h in range(2)]
            rw = lambda n: ["ds_read_b64_tr_b16 %s, v%d offset:%d" % ((vr(wf(s, n, h) + 2 * j, 2),) + self.waddr(2 * kk + h, n, j)) for h in range(2) for j in range(2)]
            return rx(0) + rw(0) + rx(1) + rx(2) + rx(3) + rw(1)
        def mfmas(s, c0=None):
            M = []
            for n in range(2):
                for i, m in enumerate(range(4) if n == 0 else range(3, -1, -1)):
                    for h in ((0, 1) if i % 2 == 0 else (1, 0)): M.append(mfma16(self.acc(m, n), wf(s, n, h), xf(s, m, h)))
            return M
        self.reads, self.mfmas, self.KS, self.small = reads, mfmas, 2, True
        Gemm.g_body(self, p, c, prev)
    def rotated(self, c): return c.opt.get('rot', 0)
    def h_setup_a(self, p, c):
        srd(p, S_A, ptr('ws'), self.a_size, self.a_base)
        p(f"""
        s_lshl_b32 s3, s{S_MT2}, 3
        s_lshl_b32 s4, s{S_WM}, 1
        s_add_u32 s3, s3, s4
        s_mul_i32 s3, s3, {self.a_pitch}
        """)
        if self.rotated(c):
            def emit(k):
                p(f"""
                s_lshr_b32 s4, s6, 2
                s_mul_i32 s4, s4, {self.a_pitch - 4096}
                s_add_u32 s4, s4, s7
                s_add_u32 s4, s4, s3
                v_add_u32 v{32 + k}, s4, v1
                """)
            rot_pieces(p, 8, 0, f"s_lshr_b32 s6, s{S_NT2}, 1", S_LD[0], emit)
        else:
            p("v_add_u32 v32, s3, v1")
            for i in range(1, 8): p(f"v_add_u32 v{32 + i}, {(i // 4) * self.a_pitch + (i % 4) * 1024}, v32")
        p(f"s_mov_b32 s{S_SO[0]}, {self.a_k0}")
    a_k0 = 0; b_k0 = 0
    def h_setup(self, p, c, first=False):
        p(f"""
        s_lshl_b32 s{S_LD[0]}, s{S_WM}, 13
        s_lshl_b32 s{S_LD[1]}, s{S_WM}, 12
        s_add_u32 s{S_LD[1]}, s{S_LD[1]}, 32768
        s_mov_b32 s{S_SO[1]}, {self.b_k0}
        """)
        self.h_setup_a(p, c)
        srd(p, S_B, ptr(self.bname), self.babytes)
        p(f"""
        v_lshrrev_b32 v{T0}, 3, v0
        v_and_b32 v{T0+1}, 7, v0
        v_and_b32 v{T0+2}, {2 if self.order == 'nat' else 6}, v{T0}
        v_xor_b32 v{T0+1}, v{T0+1}, v{T0+2}
        s_lshl_b32 s3, s{S_WM}, 5
        v_add_u32 v{T0}, s3, v{T0}
        v_lshlrev_b32 v{T0}, 11, v{T0}
        v_lshl_add_u32 v{T0}, v{T0+1}, 4, v{T0}
        s_lshl_b32 s4, s{S_NT2}, 7
        """)
        if self.rotated(c):
            p(f"v_add_u32 v{T0}, s4, v{T0}")
            def emit(k):
                p(f"s_lshl_b32 s4, s6, 14\nv_add_u32 v{40 + k}, s4, v{T0}")
                if self.order == 'nat': p(f"s_and_b32 s4, s6, 1\ns_lshl_b32 s4, s4, 6\nv_xor_b32 v{40 + k}, s4, v{40 + k}")
            rot_pieces(p, 4, 8, f"s_and_b32 s6, s{S_MT2}, 3", S_LD[1], emit)
        else:
            p(f"v_add_u32 v40, s4, v{T0}")
            if self.order == 'nat':
                p(f"v_xor_b32 v{T0}, 64, v40")
                p(f"v_add_u32 v41, {8 * 2048}, v{T0}\nv_add_u32 v42, {16 * 2048}, v40\nv_add_u32 v43, {24 * 2048}, v{T0}")
            else:
                for i in range(1, 4): p(f"v_add_u32 v{40 + i}, {8 * i * 2048}, v40")
    def g_setup_x(self, p, c):
        p(f"""
        s_lshl_b32 s3, s{S_WM}, 14
        s_add_u32 s3, s3, s{S_RD}
        v_add_u32 v32, s3, v1
        """)
    def g_setup(self, p, c):
        lane_fields(p, T0, T0 + 1, T0 + 2, T0 + 3)
        self.g_setup_x(p, c)
        if self.order == 'nat': p(f"v_lshl_add_u32 v{T0+4}, v{T0+1}, 3, v{T0+2}")
        elif self.order == 'perm32': p(f"v_lshl_add_u32 v{T0+4}, v{T0+1}, 2, v{T0+2}")
        else:
            p(f"""
            v_lshrrev_b32 v{T0+4}, 1, v{T0+1}
            v_lshl_add_u32 v{T0+4}, v{T0+4}, 4, v{T0+2}
            v_and_b32 v{T0+5}, 1, v{T0+1}
            v_lshl_add_u32 v{T0+4}, v{T0+5}, 2, v{T0+4}
            """)
        p(f"""
        v_lshlrev_b32 v{T0+4}, 7, v{T0+4}
        v_lshrrev_b32 v{T0+5}, 1, v{T0+2}
        v_and_b32 v{T0+6}, 1, v{T0+1}
        v_lshl_or_b32 v{T0+5}, v{T0+6}, 1, v{T0+5}
        s_lshl_b32 s3, s{S_WN}, 1
        v_xor_b32 v{T0+5}, s3, v{T0+5}
        v_lshl_add_u32 v{T0+4}, v{T0+5}, 5, v{T0+4}
        v_lshl_add_u32 v{T0+4}, v{T0+3}, 3, v{T0+4}
        s_add_u32 s3, s{S_RD}, 32768
        v_add_u32 v34, s3, v{T0+4}
        v_xor_b32 v35, 32, v34
        """)
        self.g_pre(p, c)
        self.g_zero(p)
    def g_pre(self, p, c): pass

def gelu_consts(p, b, has_og):
    rs, og, k1, k0, w, t = b + 1, b + 3, b + 2, b + 4, b + 6, b + 5
    p(f"""
    v_mul_f32 v{t}, v{rs}, v{rs}
    v_mul_f32 v{k0}, {hexf(GC0)}, v{rs}
    v_mul_f32 v{t}, v{t}, v{rs}
    v_mul_f32 v{k1}, {hexf(GC1)}, v{t}
    """)
    if has_og:
        p(f"""
        v_mul_f32 v{t}, v{og}, v{rs}
        v_rcp_f32 v{w}, v{t}
        """)
    else:
        p(f"v_rcp_f32 v{w}, v{rs}")
    p(f"v_min_f32 v{w}, {hexf(3e38)}, v{w}")

def gelu_block(p, items, tmp, pk=True):
    T = [tmp + 2 * i for i in range(len(items))]
    Z = list(zip(items, T))
    if pk:
        for (r, cs, b), t in Z: p(f"v_pk_fma_f32 {vr(r,2)}, {vr(cs,2)}, {vr(b,2)}, {vr(r,2)} op_sel_hi:[1,0,1] neg_lo:[1,0,0] neg_hi:[1,0,0]")
        for (r, cs, b), t in Z: p(f"v_pk_mul_f32 {vr(t,2)}, {vr(r,2)}, {vr(r,2)}")
        for (r, cs, b), t in Z: p(f"v_pk_fma_f32 {vr(t,2)}, {vr(t,2)}, {vr(b+2,2)}, {vr(b+4,2)} op_sel_hi:[1,0,0]")
        for (r, cs, b), t in Z: p(f"v_pk_mul_f32 {vr(t,2)}, {vr(t,2)}, {vr(r,2)}")
    else:
        for (r, cs, b), t in Z:
            for h in range(2): p(f"v_fma_f32 v{r+h}, -v{cs+h}, v{b}, v{r+h}")
        for (r, cs, b), t in Z:
            for h in range(2): p(f"v_mul_f32 v{t+h}, v{r+h}, v{r+h}")
        for (r, cs, b), t in Z:
            for h in range(2): p(f"v_fma_f32 v{t+h}, v{t+h}, v{b+2}, v{b+4}")
        for (r, cs, b), t in Z:
            for h in range(2): p(f"v_mul_f32 v{t+h}, v{t+h}, v{r+h}")
    for t in T:
        p(f"v_exp_f32 v{t}, v{t}"); p(f"v_exp_f32 v{t+1}, v{t+1}")
    for (r, cs, b), t in Z:
        if pk: p(f"v_pk_fma_f32 {vr(t,2)}, {vr(t,2)}, {vr(b+6,2)}, {vr(b+6,2)} op_sel_hi:[1,0,0]")
        else:
            for h in range(2): p(f"v_fma_f32 v{t+h}, v{t+h}, v{b+6}, v{b+6}")
    for t in T:
        p(f"v_rcp_f32 v{t}, v{t}"); p(f"v_rcp_f32 v{t+1}, v{t+1}")
    for (r, cs, b), t in Z:
        if pk: p(f"v_pk_mul_f32 {vr(r,2)}, {vr(r,2)}, {vr(t,2)}")
        else:
            for h in range(2): p(f"v_mul_f32 v{r+h}, v{r+h}, v{t+h}")

def read_tok_consts(p, base, vaddr, r16, has_og):
    p(f"""
    s_lshl_b32 s3, s{S_WM}, 8
    s_add_u32 s3, s3, {L_MU}
    v_lshl_add_u32 v{vaddr}, v{r16}, 2, s3
    """)
    for m in range(4):
        p(f"ds_read_b32 v{base + 8 * m}, v{vaddr} offset:{64 * m}")
        p(f"ds_read_b32 v{base + 8 * m + 1}, v{vaddr} offset:{512 + 64 * m}")
        if has_og: p(f"ds_read_b32 v{base + 8 * m + 3}, v{vaddr} offset:{1024 + 64 * m}")

class W1(N64):
    nsteps = 8; order = 'nat'; bname = 'w1'; stepA = 256
    addr_regs = [32, 34, 35, 33]
    pubkind = F_W1
    h_steps = (0, 1)
    xbar = True
    pubstep = 2
    def aflag(self, c): return c.opt.get('ldflag', '')
    def xaddr(self, kk, m): return (32 + kk % 2, (m // 2) * 8192 + (m % 2) * 2048 + (kk // 2) * 4096)
    def h_setup_a(self, p, c):
        srd(p, S_A, ptr('x'), 2048 * 2048)
        if self.rotated(c):
            h_xrows(p, [T0 + 4], lambda i: 0, S_MT2)
            def emit(k):
                p(f"""
                s_and_b32 s4, s6, 3
                s_lshl_b32 s4, s4, 14
                s_lshr_b32 s5, s6, 2
                s_lshl_b32 s5, s5, 7
                s_add_u32 s4, s4, s5
                v_add_u32 v{32 + k}, s4, v{T0+4}
                s_and_b32 s4, s6, 1
                s_lshl_b32 s4, s4, 6
                v_xor_b32 v{32 + k}, s4, v{32 + k}
                """)
            rot_pieces(p, 8, 0, f"s_lshr_b32 s6, s{S_NT2}, 1", S_LD[0], emit)
        else:
            h_xrows(p, list(range(32, 40)), lambda i: (i // 4) * 128, S_MT2)
        p(f"s_mov_b32 s{S_SO[0]}, 0")
    def g_setup_x(self, p, c):
        p(f"""
        v_lshrrev_b32 v{T0+4}, 1, v{T0}
        v_xor_b32 v{T0+4}, v{T0+4}, v{T0+1}
        v_lshlrev_b32 v{T0+4}, 4, v{T0+4}
        v_lshl_or_b32 v{T0+4}, v{T0}, 7, v{T0+4}
        s_lshl_b32 s3, s{S_WM}, 14
        s_add_u32 s3, s3, s{S_RD}
        v_add_u32 v32, s3, v{T0+4}
        v_xor_b32 v33, 64, v32
        """)
    lds_consts = True
    def extra_mfma(self, s, n): return [mfma16(112 + 4 * n, self.wf(s, n), 120)]
    def g_pre(self, p, c):
        for i in range(8): p(f"v_mov_b32 v{112 + i}, 0")
        for i in range(4): p(f"v_mov_b32 v{120 + i}, 0x3f803f80")
    def h_poll(self, c, t): return poll_flags(c, F_ST, S_MT2) if t == 0 else None
    def h_post(self, p, c, t):
        if t == (6 if self.nxt.late else 7): p("ds_write_b32 v58, v59\ns_waitcnt lgkmcnt(0)")
    def h_extra(self, p, c, t):
        W = f"s[{S_WS}:{S_WS+3}]"
        ho = c.opt.get('hoflag', ''); st = c.opt.get('stflag', '')
        if t == 1:
            p(f"""
            v_and_b32 v58, 31, v0
            v_lshrrev_b32 v59, 5, v0
            v_lshlrev_b32 v58, 2, v58
            v_lshl_add_u32 v60, v59, 13, v58
            v_lshl_add_u32 v58, v59, 9, v58
            s_lshl_b32 s3, s{S_MT2}, 9
            s_lshl_b32 s4, s{S_WM}, 7
            s_add_u32 s3, s3, s4
            s_add_u32 s3, s3, {WS_ST1}
            s_add_u32 s4, s4, {L_MU}
            v_add_u32 v58, s4, v58
            buffer_load_dword v59, v60, {W}, s3 offen {ho}
            """)
            return 1
        return 0
    def g_epi(self, p, c):
        st = c.opt.get('stflag', '')
        W = f"s[{S_WS}:{S_WS+3}]"
        lane_fields(p, T0, T0 + 1)
        p("s_waitcnt lgkmcnt(0)")
        if self.lds_consts: read_tok_consts(p, 144, 36, T0, False)
        for m in range(4): gelu_consts(p, 144 + 8 * m, False)
        p(f"""
        s_lshr_b32 s5, s{S_NT2}, 2
        s_lshr_b32 s6, s5, 1
        s_add_u32 s6, s6, 1
        s_sub_u32 s7, 0, s6
        s_bitcmp1_b32 s5, 0
        s_cselect_b32 s6, s7, s6
        s_lshl_b32 s3, s{S_MT2}, 7
        s_lshl_b32 s4, s{S_WM}, 6
        s_add_u32 s3, s3, s4
        s_add_u32 s6, s6, s3
        s_lshl_b32 s3, s{S_NT2}, 1
        s_add_u32 s3, s3, s{S_WN}
        s_lshl_b32 s42, s3, 10
        s_add_u32 s42, s42, {WS_HS}
        """)
        for mp in range(2):
            items = []
            for m in (2 * mp, 2 * mp + 1):
                for n in range(2):
                    for h in range(2): items.append((self.acc(m, n) + 2 * h, 112 + 4 * n + 2 * h, 144 + 8 * m))
            gelu_block(p, items, 56, c.opt.get('pk', 1))
            for m in (2 * mp, 2 * mp + 1):
                a, b = self.acc(m, 0), self.acc(m, 1)
                t = 72 + 4 * m
                p(f"""
                v_add_u32 v{T0+2}, s6, v{T0}
                v_add_u32 v{T0+2}, {16 * m}, v{T0+2}
                v_cmp_gt_u32 vcc, 2048, v{T0+2}
                v_and_b32 v{T0+2}, 2047, v{T0+2}
                v_lshrrev_b32 v{T0+3}, 4, v{T0+2}
                v_and_b32 v{T0+2}, 15, v{T0+2}
                v_lshl_add_u32 v{T0+2}, v{T0+1}, 4, v{T0+2}
                v_lshlrev_b32 v{T0+2}, 4, v{T0+2}
                v_lshl_add_u32 v{36 + m}, v{T0+3}, 15, v{T0+2}
                """)
                for i, r in enumerate((a, a + 2, b, b + 2)): p(f"v_cvt_pk_bf16_f32 v{t + i}, v{r}, v{r + 1}")
                for i in range(4): p(f"v_cndmask_b32 v{t + i}, 0, v{t + i}, vcc")
                p(f"buffer_store_dwordx4 {vr(t, 4)}, v{36 + m}, {W}, s42 offen {st}")

class W2(N64):
    nsteps = 8; order = 'perm32'; bname = 'w2'; a_base = WS_HS
    pubkind = F_W2
    def poll(self, c): return poll_flags(c, F_W1, S_MT2, halo=True)
    def h_tail(self, c):
        a = Atoms()
        h_xrows(a, [44, 45, 46, 47], lambda i: 0, S_MT2)
        srd(a, S_AUX, ptr('x'), 2048 * 2048)
        a(f"""
        s_lshl_b32 s5, s{S_NT2}, 7
        s_lshl_b32 s4, s{S_WM}, 12
        s_add_u32 s4, s4, s{S_DMA}
        s_add_u32 m0, s4, 32768
        """)
        D = [f"buffer_load_dwordx4 v{44 + i}, s[{S_AUX}:{S_AUX+3}], s5 offen lds" + ("\ns_add_u32 m0, m0, 1024" if i < 3 else "") for i in range(4)]
        D[0] = "\n".join(a.L) + "\n" + D[0]
        return D
    def g_epi(self, p, c):
        st = c.opt.get('stflag', '')
        W = f"s[{S_WS}:{S_WS+3}]"
        p(f"""
        s_waitcnt lgkmcnt(0)
        s_lshl_b32 s3, s{S_NT2}, 1
        s_add_u32 s3, s3, s{S_WN}
        s_lshl_b32 s4, s{S_MT2}, 3
        s_lshl_b32 s5, s{S_WM}, 2
        s_add_u32 s4, s4, s5
        s_lshl_b32 s42, s4, 15
        s_lshl_b32 s5, s3, 10
        s_add_u32 s42, s42, s5
        s_add_u32 s42, s42, {WS_X1}
        s_lshl_b32 s43, s3, 14
        s_lshl_b32 s5, s4, 7
        s_add_u32 s43, s43, s5
        s_add_u32 s43, s43, {WS_P2}
        """)
        lane_fields(p, T0, T0 + 1)
        p(f"""
        v_lshrrev_b32 v{T0+2}, 1, v{T0}
        v_lshrrev_b32 v{T0+3}, 1, v{T0+1}
        v_xor_b32 v{T0+2}, v{T0+2}, v{T0+3}
        s_lshl_b32 s3, s{S_WN}, 2
        v_xor_b32 v{T0+2}, s3, v{T0+2}
        v_lshlrev_b32 v{T0+2}, 4, v{T0+2}
        v_lshl_or_b32 v{T0+2}, v{T0}, 7, v{T0+2}
        v_and_b32 v{T0+3}, 1, v{T0+1}
        v_lshl_or_b32 v{T0+2}, v{T0+3}, 3, v{T0+2}
        s_lshl_b32 s3, s{S_WM}, 13
        s_add_u32 s3, s3, s{S_RD}
        v_add_u32 v37, s3, v{T0+2}
        v_xor_b32 v38, 32, v37
        """)
        for m in range(4):
            for n in range(2): p(f"ds_read_b64 {vr(160 + 4 * m + 2 * n, 2)}, v{37 + n} offset:{32768 + 2048 * m}")
        for m in range(4):
            for n in range(2):
                a = self.acc(m, n)
                for d in range(2):
                    x = 160 + 4 * m + 2 * n + d
                    p(f"v_lshlrev_b32 v48, 16, v{x}\nv_and_b32 v49, 0xffff0000, v{x}")
                    p(f"v_pk_add_f32 {vr(a + 2 * d, 2)}, {vr(a + 2 * d, 2)}, v[48:49]")
            a, b = self.acc(m, 0), self.acc(m, 1)
            t = 72 + 4 * m
            for i, r in enumerate((a, a + 2, b, b + 2)): p(f"v_cvt_pk_bf16_f32 v{t + i}, v{r}, v{r + 1}")
            p(f"buffer_store_dwordx4 {vr(t, 4)}, v1, {W}, s42 offen {st}")
            if m < 3: p(f"s_add_u32 s42, s42, 32768")
            p(f"""
            v_pk_add_f32 v[50:51], {vr(a, 2)}, {vr(a + 2, 2)}
            v_pk_mul_f32 v[52:53], {vr(a, 2)}, {vr(a, 2)}
            v_pk_add_f32 v[50:51], v[50:51], {vr(b, 2)}
            v_pk_fma_f32 v[52:53], {vr(a + 2, 2)}, {vr(a + 2, 2)}, v[52:53]
            v_pk_add_f32 v[50:51], v[50:51], {vr(b + 2, 2)}
            v_pk_fma_f32 v[52:53], {vr(b, 2)}, {vr(b, 2)}, v[52:53]
            v_pk_fma_f32 v[52:53], {vr(b + 2, 2)}, {vr(b + 2, 2)}, v[52:53]
            v_add_f32 v{56 + 2 * m}, v50, v51
            v_add_f32 v{57 + 2 * m}, v52, v53
            """)
        for i in range(4): p(f"v_permlane32_swap_b32 v{56 + i}, v{60 + i}")
        for i in range(4): p(f"v_add_f32 v{56 + i}, v{56 + i}, v{60 + i}")
        for i in range(2): p(f"v_permlane16_swap_b32 v{56 + i}, v{58 + i}")
        for i in range(2): p(f"v_add_f32 v{56 + i}, v{56 + i}, v{58 + i}")
        p(f"""
        v_lshlrev_b32 v36, 3, v0
        buffer_store_dwordx2 v[56:57], v36, {W}, s43 offen {st}
        """)

AF_PITCH = 144 * 1024
class W3(Gemm):
    NT = 7; KS = 2; nsteps = 16; nA = 4; nB = 8
    stepA = 2048; stepB = 64 * 7168
    addr_regs = [32, 33, 34, 35, 36, 37, 38, 39]
    pubkind = F_W3
    zero_first = True
    h_steps = tuple(range(1, 14))
    def poll(self, c): return poll_flags(c, F_W2, S_MT3)
    def g_sites(self, c):
        if not c.opt.get('persist'): return {}
        return {7: lambda p: publish(p, c, F_CS, True)}
    def h_poll(self, c, t): return poll_flags(c, F_CS, S_NT3) if t == 10 else None
    def h_post(self, p, c, t):
        if t == 15:
            p("""
            ds_write_b32 v56, v160
            ds_write_b32 v57, v64
            ds_write_b32 v57, v65 offset:512
            s_mov_b32 exec_hi, 0
            ds_write_b32 v58, v96 offset:1024
            s_mov_b32 exec_hi, -1
            s_waitcnt lgkmcnt(0)
            """)
    def xaddr(self, kk, m): return (32, m * 2048 + kk * 1024)
    def waddr(self, kk, n, j): return (33 + n, (32 * kk + 16 * j) * 512)
    def h_setup(self, p, c, first=False):
        srd(p, S_A, ptr('ws'), 4 * MB, WS_X1)
        srd(p, S_B, ptr('w3'), 1024 * 7168)
        p(f"""
        s_lshl_b32 s3, s{S_MT3}, 3
        s_lshl_b32 s4, s{S_WM}, 1
        s_add_u32 s3, s3, s4
        s_lshl_b32 s3, s3, 15
        v_add_u32 v32, s3, v1
        v_add_u32 v33, 1024, v32
        v_add_u32 v34, 32768, v32
        v_add_u32 v35, {32768 + 1024}, v32
        s_mul_i32 s4, s{S_NT3}, 448
        s_and_b32 s4, s4, {0xffffff80}
        s_mul_i32 s3, s{S_WM}, {16 * 7168}
        s_add_u32 s4, s4, s3
        v_lshrrev_b32 v{T0}, 5, v0
        v_and_b32 v{T0+1}, 31, v0
        v_mul_u32_u24 v{T0+2}, 7168, v{T0}
        v_add_u32 v{T0+2}, s4, v{T0+2}
        s_bitcmp1_b32 s{S_NT3}, 0
        s_cselect_b32 s5, {0 if c.opt.get('w3mask', 1) else 9}, {7 if c.opt.get('w3mask', 1) else 9}
        v_mov_b32 v{T0+5}, 0x40000000
        v_lshlrev_b32 v{T0}, 1, v{T0}
        v_xor_b32 v{T0+1}, v{T0+1}, v{T0}
        """)
        for i in range(4):
            p(f"""
            v_xor_b32 v{T0+3}, {4 * i}, v{T0+1}
            v_lshrrev_b32 v{T0+4}, 2, v{T0+3}
            v_lshl_add_u32 v{T0+3}, v{T0+3}, 4, v{T0+2}
            v_cmp_eq_u32 vcc, s5, v{T0+4}
            v_cndmask_b32 v{T0+3}, v{T0+3}, v{T0+5}, vcc
            v_add_u32 v{36 + i}, {2 * i * 7168}, v{T0+3}
            v_add_u32 v{40 + i}, {(2 * i + 8) * 7168}, v{T0+3}
            """)
        p(f"""
        s_lshl_b32 s{S_LD[0]}, s{S_WM}, 12
        s_lshl_b32 s{S_LD[1]}, s{S_WM}, 13
        s_add_u32 s{S_LD[1]}, s{S_LD[1]}, 16384
        s_mov_b32 s{S_SO[0]}, 0
        s_mov_b32 s{S_SO[1]}, 0
        """)
    def g_setup(self, p, c):
        lane_fields(p, None, T0 + 1, T0 + 2, T0 + 3)
        p(f"""
        s_lshl_b32 s3, s{S_WM}, 13
        s_add_u32 s3, s3, s{S_RD}
        v_add_u32 v32, s3, v1
        v_lshl_add_u32 v{T0+4}, v{T0+1}, 2, v{T0+2}
        v_and_b32 v{T0+5}, 7, v{T0+4}
        v_lshlrev_b32 v{T0+4}, 9, v{T0+4}
        v_lshl_add_u32 v{T0+4}, v{T0+3}, 3, v{T0+4}
        s_add_u32 s3, s{S_RD}, 16384
        v_add_u32 v{T0+4}, s3, v{T0+4}
        s_and_b32 s3, s{S_NT3}, 1
        s_lshl_b32 s3, s3, 1
        s_mul_i32 s4, s{S_WN}, 7
        s_add_u32 s3, s3, s4
        """)
        for n in range(7):
            p(f"""
            v_xor_b32 v{T0+6}, s3, v{T0+5}
            v_lshl_add_u32 v{33 + n}, v{T0+6}, 5, v{T0+4}
            s_add_u32 s3, s3, 1
            """)
        self.g_zero(p)
    def h_late(self, a, c):
        a.atom(f"""
        s_mul_i32 s53, s{S_NT3}, 448
        s_and_b32 s53, s53, {0xffffff80}
        s_lshl_b32 s4, s{S_WM}, 7
        s_add_u32 s53, s53, s4
        s_lshl_b32 s4, s{S_MT3}, 6
        v_lshrrev_b32 v{T0}, 3, v0
        v_add_u32 v{T0}, s4, v{T0}
        v_mul_u32_u24 v{T0}, 7168, v{T0}
        v_and_b32 v{T0+1}, 7, v0
        v_lshl_add_u32 v{T0}, v{T0+1}, 4, v{T0}
        """)
        for i in range(8):
            a.atom(f"buffer_load_dwordx4 {vr(160 + 4 * i, 4)}, v{T0}, s[{S_B}:{S_B+3}], s53 offen\ns_add_u32 s53, s53, {8 * 7168}")
        return 8
    def h_extra(self, p, c, t):
        W = f"s[{S_WS}:{S_WS+3}]"
        ho = c.opt.get('hoflag', ''); st = c.opt.get('stflag', '')
        n = 0
        if t == 1:
            p(f"""
            v_and_b32 v60, 15, v0
            v_lshrrev_b32 v61, 4, v0
            v_lshlrev_b32 v60, 4, v60
            v_lshl_add_u32 v62, v61, 10, v60
            v_lshl_add_u32 v63, v61, 17, v60
            v_lshlrev_b32 v60, 2, v0
            s_lshl_b32 s4, s{S_WM}, 8
            s_lshl_b32 s53, s{S_NT3}, 14
            s_add_u32 s53, s53, s4
            s_add_u32 s53, s53, {WS_CSP}
            s_lshl_b32 s49, s{S_MT3}, 10
            s_add_u32 s50, s49, s4
            s_add_u32 s49, s49, s53
            s_lshr_b32 s3, s50, 1
            s_add_u32 s3, s3, {WS_G + 8192}
            s_add_u32 s50, s50, {WS_P2}
            buffer_load_dword v96, v60, {W}, s3 offen {ho}
            """)
            n += 1
        if 1 <= t <= 8:
            p(f"buffer_load_dwordx4 {vr(64 + 4 * (t - 1), 4)}, v63, {W}, s50 offen {ho}\ns_add_u32 s50, s50, 16384")
            n += 1
        if t == 5:
            p(f"buffer_store_dwordx2 v[48:49], v56, {W}, s49 offen {st}")
            n += 1
        if t == 11:
            for i in range(4):
                p(f"buffer_load_dwordx4 {vr(160 + 4 * i, 4)}, v62, {W}, s53 offen {ho}\ns_add_u32 s53, s53, 4096")
            n += 4
        return n
    def h_mix(self, p, c, t):
        if t == 1:
            for i in range(8): p(f"v_mov_b32 v{48 + i}, 0")
        if 1 <= t <= 4:
            for i in (2 * t - 2, 2 * t - 1):
                for d in range(4):
                    x = 160 + 4 * i + d
                    p(f"""
                    v_lshlrev_b32 v56, 16, v{x}
                    v_and_b32 v57, 0xffff0000, v{x}
                    v_add_f32 v{48 + 2 * d}, v{48 + 2 * d}, v56
                    v_add_f32 v{49 + 2 * d}, v{49 + 2 * d}, v57
                    """)
        if t == 5:
            for i in range(4): p(f"v_permlane32_swap_b32 v{48 + i}, v{52 + i}")
            for i in range(4): p(f"v_add_f32 v{48 + i}, v{48 + i}, v{52 + i}")
            for i in range(2): p(f"v_permlane16_swap_b32 v{48 + i}, v{50 + i}")
            for i in range(2): p(f"v_add_f32 v{48 + i}, v{48 + i}, v{50 + i}")
            for i in range(2): p(f"v_add_f32_dpp v{48 + i}, v{48 + i}, v{48 + i} row_ror:8 row_mask:0xf bank_mask:0xf")
            p(f"""
            v_and_b32 v56, 7, v0
            v_lshrrev_b32 v57, 4, v0
            v_lshlrev_b32 v56, 5, v56
            v_lshl_add_u32 v56, v57, 3, v56
            """)
        if t == 10:
            for st_ in (4, 2, 1):
                for i in range(st_):
                    for d in range(4): p(f"v_add_f32 v{64 + 4 * i + d}, v{64 + 4 * i + d}, v{64 + 4 * (i + st_) + d}")
        if t == 11:
            p(f"""
            v_permlane32_swap_b32 v64, v66
            v_permlane32_swap_b32 v65, v67
            v_add_f32 v64, v64, v66
            v_add_f32 v65, v65, v67
            v_mov_b32 v66, v64
            v_mov_b32 v67, v65
            v_permlane16_swap_b32 v64, v66
            v_permlane16_swap_b32 v65, v67
            v_add_f32 v64, v64, v66
            v_add_f32 v65, v65, v67
            v_mul_f32 v64, {hexf(1.0 / 1024)}, v64
            v_mul_f32 v65, {hexf(1.0 / 1024)}, v65
            v_fma_f32 v65, -v64, v64, v65
            v_max_f32 v65, 0, v65
            v_add_f32 v65, {hexf(1e-5)}, v65
            v_rsq_f32 v65, v65
            """)
        if t == 12:
            p(f"""
            v_and_b32 v57, 15, v0
            v_lshrrev_b32 v58, 5, v0
            v_lshl_add_u32 v57, v57, 1, v58
            s_lshl_b32 s3, s{S_WM}, 7
            v_lshl_add_u32 v57, v57, 2, s3
            v_lshl_add_u32 v58, v0, 2, s3
            v_add_u32 v57, {L_MU}, v57
            v_add_u32 v58, {L_MU}, v58
            """)
        if t == 13:
            for st_ in (2, 1):
                for i in range(st_):
                    for d in range(4): p(f"v_add_f32 v{160 + 4 * i + d}, v{160 + 4 * i + d}, v{160 + 4 * (i + st_) + d}")
            p(f"""
            v_permlane32_swap_b32 v160, v162
            v_permlane32_swap_b32 v161, v163
            v_add_f32 v160, v160, v162
            v_add_f32 v161, v161, v163
            v_permlane16_swap_b32 v160, v161
            v_add_f32 v160, v160, v161
            v_and_b32 v56, 15, v0
            v_lshrrev_b32 v59, 4, v0
            v_lshl_add_u32 v56, v56, 2, v59
            s_lshl_b32 s3, s{S_WM}, 8
            v_lshl_add_u32 v56, v56, 2, s3
            v_add_u32 v56, {L_CS}, v56
            """)
    def g_epi(self, p, c):
        st = c.opt.get('stflag', '')
        W = f"s[{S_WS}:{S_WS+3}]"
        lane_fields(p, 40, 41)
        p(f"""
        s_waitcnt lgkmcnt(0)
        s_mul_i32 s3, s{S_WN}, 448
        s_and_b32 s4, s{S_NT3}, 1
        s_lshl_b32 s4, s4, 7
        s_add_u32 s3, s3, s4
        s_add_u32 s3, s3, {L_CS}
        v_lshl_add_u32 v36, v41, 4, s3
        """)
        read_tok_consts(p, 76, 37, 40, True)
        for n in range(7): p(f"ds_read_b128 {vr(48 + 4 * n, 4)}, v36 offset:{64 * n}")
        for m in range(4): gelu_consts(p, 76 + 8 * m, True)
        p(f"""
        v_lshrrev_b32 v38, 5, v0
        v_mul_u32_u24 v38, {AF_PITCH}, v38
        v_and_b32 v39, 31, v0
        v_lshl_add_u32 v38, v39, 4, v38
        s_lshl_b32 s3, s{S_MT3}, 3
        s_lshl_b32 s4, s{S_WM}, 2
        s_add_u32 s3, s3, s4
        s_mul_i32 s42, s3, {AF_PITCH}
        s_mul_i32 s3, s{S_NT3}, 14
        s_mul_i32 s4, s{S_WN}, 7
        s_add_u32 s3, s3, s4
        s_lshl_b32 s3, s3, 9
        s_add_u32 s42, s42, s3
        s_add_u32 s42, s42, {WS_AF}
        s_add_u32 s43, s42, {2 * AF_PITCH}
        """)
        for n in range(7):
            items = []
            for m in range(4):
                for h in range(2): items.append((self.acc(m, n) + 2 * h, 48 + 4 * n + 2 * h, 76 + 8 * m))
            gelu_block(p, items, 108 + 16 * (n % 2), c.opt.get('pk', 1))
            for u in range(2):
                a = self.acc(2 * u, n)
                for i in range(4): p(f"v_cvt_pk_bf16_f32 v{a + i}, v{a + 2 * i}, v{a + 2 * i + 1}")
            for u in range(2):
                a = self.acc(2 * u, n)
                p(f"v_permlane32_swap_b32 v{a}, v{a + 2}")
                p(f"v_permlane32_swap_b32 v{a + 1}, v{a + 3}")
            for u in range(2):
                a = self.acc(2 * u, n)
                p(f"buffer_store_dwordx4 {vr(a, 4)}, v38, {W}, s{42 + u} offen offset:{n * 512} {st}")

WS_XCH = 48 * MB
def xch_off(c, nt_code, wave, dst):
    if not c.opt.get('xreuse', 0):
        return f"""
        s_lshl_b32 s3, s{S_MT2}, 4
        {nt_code}
        s_add_u32 s3, s3, s4
        s_lshl_b32 s3, s3, 2
        s_add_u32 s3, s3, s{wave}
        s_lshl_b32 s3, s3, 13
        s_add_u32 s{dst}, s3, {WS_XCH}
        """
    return f"""
    {nt_code}
    s_lshl_b32 s4, s4, 1
    s_and_b32 s3, s{wave}, 1
    s_add_u32 s4, s4, s3
    s_lshl_b32 s3, s{S_MT2}, 5
    s_add_u32 s3, s3, s4
    s_lshl_b32 s3, s3, 13
    s_add_u32 s3, s3, {WS_HS}
    s_lshl_b32 s4, s4, 4
    s_add_u32 s4, s4, s{S_MT2}
    s_lshl_b32 s4, s4, 13
    s_cmp_lt_u32 s{wave}, 2
    s_cselect_b32 s{dst}, s3, s4
    """

class W4(Gemm):
    NT = 4; KS = 3; nA = 6; nB = 6
    h_steps = (15, 16)
    def __init__(self, xw=2): self.xw = xw; self.nsteps = 18 + xw
    def __call__(self): return self
    stepA = 3072; stepB = 96 * 2048
    addr_regs = [32, 33, 34, 35, 36]
    zero_first = True
    pubkind = F_XCH
    pubstep = 4
    chain = True; pubv = 28
    def poll(self, c): return poll_flags(c, F_W3, S_MT2)
    def h_poll(self, c, t): return poll_flags(c, F_ATT, S_MT2, shift=1, nprod=32) if t == 15 else None
    def h_pre(self, p, c, t):
        if t == 16:
            if not self.xw: return
            srd(p, S_B, ptr('wo'), 1024 * 2048)
            p(f"""
            s_and_b32 s3, s{S_NT2}, 1
            s_mul_i32 s{S_SO[0]}, s3, {3 * self.xw * 1024}
            s_add_u32 s{S_SO[0]}, s{S_SO[0]}, {112 * 1024}
            s_mul_i32 s{S_SO[1]}, s3, {3 * self.xw * 32 * 2048}
            """)
    def xaddr(self, kk, m): return (32, m * 3072 + kk * 1024)
    def waddr(self, kk, n, j): return (33 + n, (32 * kk + 8 * j) * 256)
    def h_setup(self, p, c, first=False):
        srd(p, S_A, ptr('ws'), 18 * MB, WS_AF)
        srd(p, S_B, ptr('w4'), 3584 * 2048)
        p(f"""
        s_lshl_b32 s3, s{S_MT2}, 3
        s_lshl_b32 s4, s{S_WM}, 1
        s_add_u32 s3, s3, s4
        s_mul_i32 s3, s3, {AF_PITCH}
        s_mul_i32 s{S_LD[0]}, s{S_WM}, 6144
        s_add_u32 s{S_LD[1]}, s{S_LD[0]}, 24576
        """)
        if self.rotated(c):
            def emit(k):
                p(f"""
                s_cmp_ge_u32 s6, 3
                s_cselect_b32 s4, {AF_PITCH - 3072}, 0
                s_add_u32 s4, s4, s7
                s_add_u32 s4, s4, s3
                v_add_u32 v{32 + k}, s4, v1
                """)
            rot_pieces(p, 6, 0, f"s_lshr_b32 s6, s{S_NT2}, 1\ns_mul_i32 s6, s6, 3\ns_lshr_b32 s6, s6, 2", S_LD[0], emit)
        else:
            p("v_add_u32 v32, s3, v1")
            for i in range(1, 6): p(f"v_add_u32 v{32 + i}, {(i // 3) * AF_PITCH + (i % 3) * 1024}, v32")
        p(f"""
        v_lshrrev_b32 v{T0}, 4, v0
        v_and_b32 v{T0+1}, 15, v0
        v_lshlrev_b32 v{T0+2}, 1, v{T0}
        v_xor_b32 v{T0+1}, v{T0+1}, v{T0+2}
        s_mul_i32 s3, s{S_WM}, 24
        v_add_u32 v{T0}, s3, v{T0}
        v_lshlrev_b32 v{T0}, 11, v{T0}
        v_lshl_add_u32 v{T0}, v{T0+1}, 4, v{T0}
        s_lshr_b32 s4, s{S_NT2}, 1
        s_lshl_b32 s4, s4, 8
        """)
        if self.rotated(c):
            p(f"v_add_u32 v{T0}, s4, v{T0}")
            def emit(k):
                p(f"s_lshl_b32 s4, s6, 13\nv_add_u32 v{38 + k}, s4, v{T0}\ns_and_b32 s4, s6, 1\ns_lshl_b32 s4, s4, 7\nv_xor_b32 v{38 + k}, s4, v{38 + k}")
            rot_pieces(p, 6, 6, f"s_and_b32 s6, s{S_MT2}, 3\ns_mul_i32 s6, s6, 3\ns_lshr_b32 s6, s6, 1", S_LD[1], emit)
        else:
            p(f"v_add_u32 v38, s4, v{T0}\nv_xor_b32 v{T0}, 128, v38")
            for i in range(1, 6): p(f"v_add_u32 v{38 + i}, {4 * i * 2048}, v{38 if i % 2 == 0 else T0}")
        p(f"""
        s_and_b32 s3, s{S_NT2}, 1
        s_mul_i32 s{S_SO[0]}, s3, {54 * 1024}
        s_mul_i32 s{S_SO[1]}, s3, {54 * 32 * 2048}
        """)
        self.coop = c.opt.get('coop4', 0)
        if self.coop:
            p(f"""
            s_lshr_b32 s3, s{ptr('w4')}, 7
            s_sub_u32 s3, 3, s3
            s_and_b32 s3, s3, 7
            s_lshr_b32 s4, s{S_NT2}, 1
            s_lshr_b32 s5, s3, 1
            s_sub_u32 s5, s4, s5
            s_and_b32 s5, s5, 3
            s_lshr_b32 s4, s4, 2
            s_lshl_b32 s4, s4, 10
            s_lshl_b32 s3, s3, 7
            s_add_u32 s4, s4, s3
            s_sub_u32 s6, s5, 1
            s_lshl_b32 s6, s6, 2
            s_and_b32 s3, s{S_MT2}, 3
            s_add_u32 s6, s6, s3
            s_lshl_b32 s6, s6, 2
            s_add_u32 s6, s6, s{S_WM}
            s_lshl_b32 s6, s6, 12
            s_add_u32 s4, s4, s6
            s_add_u32 s4, s4, {c.opt.get('coopa', 1) * self.stepB}
            s_cmp_eq_u32 s5, 0
            s_cselect_b32 s3, 0, 16
            v_lshrrev_b32 v{T0}, 3, v0
            v_lshlrev_b32 v{T0}, 11, v{T0}
            v_and_b32 v{T0+1}, 7, v0
            v_lshl_add_u32 v{T0}, v{T0+1}, 4, v{T0}
            v_add_u32 v{T0}, s4, v{T0}
            v_mov_b32 v{T0+1}, 0x40000000
            v_cmp_gt_u32 vcc, s3, v0
            v_cndmask_b32 v44, v{T0+1}, v{T0}, vcc
            """)
    @property
    def nd(self): return 13 if self.coop else 12
    def dma_extra(self, c):
        return [f"s_mov_b32 m0, {L_DUMMY}\nbuffer_load_dwordx4 v44, s[{S_B}:{S_B+3}], s{S_SO[1]} offen lds"] if self.coop else []
    def rotated(self, c): return c.opt.get('rot', 0)
    def g_setup(self, p, c):
        lane_fields(p, None, T0 + 1, T0 + 2, T0 + 3)
        p(f"""
        s_mul_i32 s3, s{S_WM}, 12288
        s_add_u32 s3, s3, s{S_RD}
        v_add_u32 v32, s3, v1
        v_and_b32 v{T0+5}, 1, v{T0+1}
        v_lshl_add_u32 v{T0+5}, v{T0+5}, 2, v{T0+2}
        v_lshrrev_b32 v{T0+4}, 1, v{T0+1}
        v_lshl_add_u32 v{T0+4}, v{T0+4}, 4, v{T0+5}
        v_lshlrev_b32 v{T0+4}, 8, v{T0+4}
        v_lshl_add_u32 v{T0+4}, v{T0+3}, 3, v{T0+4}
        s_add_u32 s3, s{S_RD}, 24576
        v_add_u32 v{T0+4}, s3, v{T0+4}
        s_and_b32 s3, s{S_NT2}, 1
        s_lshl_b32 s3, s3, 2
        s_lshl_b32 s4, s{S_WN}, 1
        s_add_u32 s3, s3, s4
        v_xor_b32 v{T0+6}, s3, v{T0+5}
        v_lshl_add_u32 v35, v{T0+6}, 5, v{T0+4}
        v_xor_b32 v36, 32, v35
        v_xor_b32 v33, 128, v35
        v_xor_b32 v34, 160, v35
        """)
    def g_epi(self, p, c):
        st = c.opt.get('stflag', '')
        p(xch_off(c, f"s_mov_b32 s4, s{S_NT2}", S_WID, 3))
        p("s_add_u32 s4, s3, 4096")
        if c.opt.get('xbf'):
            for m in range(4):
                a, b = self.acc(m, 0), self.acc(m, 1)
                for i, r in enumerate((a, a + 2, b, b + 2)): p(f"v_cvt_pk_bf16_f32 v{144 + 4 * m + i}, v{r}, v{r + 1}")
                if self.pubkind is None:
                    for i in range(4): p(f"v_min_u32 v{144 + 4 * m + i}, -2, v{144 + 4 * m + i}")
                p(f"buffer_store_dwordx4 {vr(144 + 4 * m, 4)}, v1, s[{S_WS}:{S_WS+3}], s3 offen offset:{m * 1024} {st}")
        else:
          for i in range(8):
            p(f"buffer_store_dwordx4 {vr(192 + 4 * i, 4)}, v1, s[{S_WS}:{S_WS+3}], s{3 + i // 4} offen offset:{(i % 4) * 1024} {st}")
        p("s_waitcnt lgkmcnt(0)")
        if c.opt.get('xpub0'):
            self.nxt.g_setup(p, c); self.nxt.g_setup = lambda p, c: None
            p("s_waitcnt vmcnt(4)")
            publish(p, c, F_XCH, False, 28)
            self.pubkind = None

class WO(N64):
    def __init__(self, xw=2, xbar=False, pubstep=2): self.xw = xw; self.nsteps = 9 - 3 * xw // 2; self.xbar = xbar; self.pubstep = pubstep
    def __call__(self): return self
    order = 'perm32b'; bname = 'w4'; babytes = 3584 * 2048
    a_base = WS_AF; a_size = 18 * MB; a_pitch = AF_PITCH; a_k0 = 108 * 1024
    b_k0 = 108 * 32 * 2048
    ncall = 0; pubv = 28
    def dma_atoms(self, c):
        D = N64.dma_atoms(self, c)
        if self.ncall == 0:
            a = Atoms(); srd(a, S_B, ptr('wo'), 1024 * 2048)
            a(f"s_mov_b32 s{S_SO[0]}, {(112 + 6 * self.xw) * 1024}\ns_mov_b32 s{S_SO[1]}, {6 * self.xw * 32 * 2048}")
            D[-1] += "\n" + "\n".join(a.L)
        self.ncall += 1
        return D
    def h_poll(self, c, t):
        m = c.opt.get('xmode', 0)
        if (m == 1 and t == self.nsteps - 2) or (m == 2 and t == self.nsteps - 1): return poll_flags(c, F_XCH, S_MT2, single=S_NT2)
    def h_pre(self, p, c, t):
        if t == self.nsteps - 2 and c.opt.get('xmode', 0) == 0: poll_flags(c, F_XCH, S_MT2, single=S_NT2).issue(p)
        if t == self.nsteps - 1 and c.opt.get('xmode', 0) == 3: poll_flags(c, F_XCH, S_MT2, single=S_NT2).issue(p)
    def h_extra(self, p, c, t):
        if t == self.nsteps - 1 and c.opt.get('xmode', 0) != 2:
            if c.opt.get('xmode', 0) in (0, 3): poll_flags(c, F_XCH, S_MT2, single=S_NT2).check(p)
            p.add(self.xch)
            return len(self.xch)
        return 0
    def h_epi(self, p, c):
        if c.opt.get('xmode', 0) == 2: p.add(self.xch)
        p("s_waitcnt vmcnt(0)\ns_barrier")
        hstep_stamp(p, c)
    def g_zero(self, p): pass
    def h_tail(self, c):
        ho = c.opt.get('hoflag', '')
        W = f"s[{S_WS}:{S_WS+3}]"
        pre = xch_off(c, f"s_xor_b32 s4, s{S_NT2}, 1", S_WM, 49) + f"""
        s_lshl_b32 s3, s{S_NT2}, 1
        s_lshr_b32 s4, s{S_WM}, 1
        s_add_u32 s3, s3, s4
        s_lshl_b32 s3, s3, 10
        s_lshl_b32 s4, s{S_MT2}, 1
        s_and_b32 s5, s{S_WM}, 1
        s_add_u32 s4, s4, s5
        s_lshl_b32 s4, s4, 17
        s_add_u32 s3, s3, s4
        s_add_u32 s50, s3, {WS_X1}
        s_mul_i32 s4, s{S_WM}, 12288
        s_add_u32 m0, s4, s{S_DMA}
        """
        D = []
        for m in range(4): D.append(f"buffer_load_dwordx4 v1, {W}, s50 offen {ho} lds\ns_add_u32 s50, s50, 32768\ns_add_u32 m0, m0, 1024")
        for i in range(8):
            D.append(f"buffer_load_dwordx4 v1, {W}, s49 offen offset:{(i % 4) * 1024} {ho} lds" + ("\ns_add_u32 s49, s49, 4096\ns_add_u32 m0, m0, 4096" if i == 3 else ""))
        D[0] = pre + D[0]
        self.xch = D[4:8] if c.opt.get('xbf') else D[4:]
        return D[:4]
    def g_pre(self, p, c):
        ho = c.opt.get('hoflag', '')
        p(f"""
        s_lshl_b32 s4, s{S_MT2}, 9
        s_lshl_b32 s5, s{S_WM}, 8
        s_add_u32 s4, s4, s5
        s_add_u32 s4, s4, {WS_G + 8192}
        v_lshlrev_b32 v36, 2, v{T0}
        """)
        for m in range(4): p(f"buffer_load_dword v{176 + 2 * m}, v36, s[{S_WS}:{S_WS+3}], s4 offen offset:{64 * m} {ho}")
    def g_epi(self, p, c):
        st = c.opt.get('outflag', '')
        p(f"""
        s_mul_i32 s3, s{S_WID}, 12288
        s_add_u32 s3, s3, s{S_RD}
        v_add_u32 v37, s3, v1
        """)
        for m in range(4): p(f"ds_read_b128 {vr(96 + 4 * m, 4)}, v37 offset:{1024 * m}")
        srd(p, S_AUX, ptr('out'), 2048 * 2048)
        lane_fields(p, T0, T0 + 1)
        p(f"""
        s_lshl_b32 s3, s{S_MT2}, 7
        s_lshl_b32 s4, s{S_WM}, 6
        s_add_u32 s3, s3, s4
        v_add_u32 v36, s3, v{T0}
        v_lshlrev_b32 v36, 11, v36
        v_and_b32 v{T0+2}, 1, v{T0+1}
        v_lshrrev_b32 v{T0+3}, 1, v{T0+1}
        v_lshl_add_u32 v36, v{T0+2}, 5, v36
        v_lshl_add_u32 v36, v{T0+3}, 4, v36
        s_lshl_b32 s3, s{S_NT2}, 7
        s_lshl_b32 s4, s{S_WN}, 6
        s_add_u32 s42, s3, s4
        """)
        for m in range(4):
            for n in range(2):
                a = self.acc(m, n)
                for d in range(2):
                    x = 96 + 4 * m + 2 * n + d
                    p(f"v_lshlrev_b32 v48, 16, v{x}\nv_and_b32 v49, 0xffff0000, v{x}")
                    p(f"v_pk_fma_f32 {vr(a + 2 * d, 2)}, v[48:49], {vr(176 + 2 * m, 2)}, {vr(a + 2 * d, 2)} op_sel_hi:[1,0,1]")
        if hasattr(self, 'xwait'): self.xwait(p, c)
        else: p("s_barrier")
        for m in range(0 if hasattr(self, 'xwait') else 4):
            for n in range(1 if c.opt.get('xbf') else 2): p(f"ds_read_b128 {vr(144 + 4 * (4 * n + m), 4)}, v37 offset:{4096 + 1024 * (4 * n + m)}")
        for m in range(4):
            a, b = self.acc(m, 0), self.acc(m, 1)
            if c.opt.get('xbf'):
                for i in range(4): p(f"v_lshlrev_b32 v{48 + 2 * i}, 16, v{144 + 4 * m + i}\nv_and_b32 v{49 + 2 * i}, 0xffff0000, v{144 + 4 * m + i}")
                for i, r in enumerate((a, a + 2, b, b + 2)): p(f"v_pk_add_f32 {vr(r, 2)}, {vr(r, 2)}, {vr(48 + 2 * i, 2)}")
            else:
                for r in (a, a + 2, b, b + 2): p(f"v_pk_add_f32 {vr(r, 2)}, {vr(r, 2)}, {vr(r - 80, 2)}")
            t = 72 + 4 * m
            for i, r in enumerate((a, a + 2, b, b + 2)): p(f"v_cvt_pk_bf16_f32 v{t + i}, v{r}, v{r + 1}")
            p(f"v_permlane16_swap_b32 v{t}, v{t + 2}")
            p(f"v_permlane16_swap_b32 v{t + 1}, v{t + 3}")
            p(f"buffer_store_dwordx4 {vr(t, 4)}, v36, s[{S_AUX}:{S_AUX+3}], s42 offen {st}")
            if m < 3: p(f"s_add_u32 s42, s42, {16 * 2048}")


def stats_code(p, c, xs, gs, wave):
    W = f"s[{S_WS}:{S_WS+3}]"
    st = c.opt.get('stflag', '')
    q = QKV()
    for t in range(2, 8): QKV.h_mix(q, p, c, t)
    QKV.h_extra(q, p, c, 7)

class W1F(W1):
    xbar = False
    h_steps = (0, 1, 2, 3, 4, 5)
    def h_first(self, p, c): pass
    def g_first(self, p, c, pf=True):
        srd(p, S_A, ptr('x'), 2048 * 2048)
        srd(p, S_B, ptr('gate'), 2048)
        p(f"""
        s_lshl_b32 s48, s{S_MT3}, 4
        s_add_u32 s48, s48, s{S_NT3}
        s_lshl_b32 s48, s48, 3
        s_lshl_b32 s3, s{S_WID}, 1
        s_add_u32 s48, s48, s3
        s_lshl_b32 s3, s48, 11
        buffer_load_dwordx4 v[64:67], v1, s[{S_A}:{S_A+3}], s3 offen
        buffer_load_dwordx4 v[68:71], v1, s[{S_A}:{S_A+3}], s3 offen offset:1024
        buffer_load_dwordx4 v[72:75], v1, s[{S_A}:{S_A+3}], s3 offen offset:2048
        buffer_load_dwordx4 v[76:79], v1, s[{S_A}:{S_A+3}], s3 offen offset:3072
        buffer_load_dwordx4 v[80:83], v1, s[{S_B}:{S_B+3}], 0 offen
        buffer_load_dwordx4 v[84:87], v1, s[{S_B}:{S_B+3}], 0 offen offset:1024
        """)
        if pf: g_prefetch(p, c, [('w1', 2 * MB, i, 1) for i in range(2)])
    def early(self, p, c): stats_code(p, c, 64, 80, S_WID)
    def h_poll(self, c, t):
        if t == 0: return poll_init(c)
        if t == 5: return poll_flags(c, F_ST, S_MT2)
    def h_post(self, p, c, t): pass
    def h_extra(self, p, c, t):
        L = c.opt.get('w1pf', {1: [0], 2: [1], 3: [2]})
        return g_prefetch(p, c, [('wqkv', 6 * MB, i, 1) for i in L[t]]) if t in L else 0
    def g_sites(self, c):
        def pub(p):
            p("s_waitcnt vmcnt(0)")
            publish(p, c, F_ST, False)
        def ld(p):
            ho = c.opt.get('hoflag', '')
            p(f"""
            s_lshl_b32 s3, s{S_MT2}, 9
            s_lshl_b32 s4, s{S_WM}, 8
            s_add_u32 s3, s3, s4
            s_add_u32 s3, s3, {WS_ST1}
            s_add_u32 s4, s3, 8192
            v_and_b32 v36, 15, v0
            v_lshlrev_b32 v36, 2, v36
            """)
            for m in range(4):
                p(f"buffer_load_dword v{144 + 8 * m}, v36, s[{S_WS}:{S_WS+3}], s3 offen offset:{64 * m} {ho}")
                p(f"buffer_load_dword v{145 + 8 * m}, v36, s[{S_WS}:{S_WS+3}], s4 offen offset:{64 * m} {ho}")
        return {1: pub, 6: ld}
    lds_consts = False

class QKV2(QKV):
    h_steps = (0,)
    zero_first = True
    def h_setup(self, p, c, first=False):
        srd(p, S_A, ptr('x'), 2048 * 2048)
        QKV.h_setup(self, p, c)
    def g_sites(self, c): return {}
    def h_poll(self, c, t): return None
    def h_mix(self, p, c, t): pass
    def h_extra(self, p, c, t):
        if t == 0: return g_prefetch(p, c, c.opt.get('qpf', [('wqkv', 6 * MB, 3, 3)]))
        if t == 9: return g_prefetch(p, c, [('w2', 2 * MB, 0, 2)])
        return 0
    h_steps = (0, 9)

class W2X(W2):
    xbar = True
    pubstep = 2

class QKVG(QKV):
    h_steps = (0, 1, 2, 3, 4, 5, 6)
    def h_first(self, p, c): srd(p, S_A, ptr('x'), 2048 * 2048)
    def g_first(self, p, c):
        W1F.g_first(self, p, c, False)
        QKV.g_first(self, p, c)
    def early(self, p, c): stats_code(p, c, 64, 80, S_WID)
    def h_mix(self, p, c, t): pass
    def h_extra(self, p, c, t): return QKV.h_extra(self, p, c, t) if t < 7 else 0
    def g_sites(self, c):
        def pub(p):
            p("s_waitcnt vmcnt(0)")
            publish(p, c, F_ST, False)
        return {7: pub}


def cs3_loads(a, c, S_MT3=S_MT3, S_NT3=S_NT3, dst=160):
    t = Atoms()
    srd(t, S_AUX, ptr('w3'), 1024 * 7168)
    t(f"""
    s_mul_i32 s6, s{S_NT3}, 448
    s_and_b32 s6, s6, {0xffffff80}
    s_lshl_b32 s4, s{S_WM}, 7
    s_add_u32 s6, s6, s4
    s_lshl_b32 s4, s{S_MT3}, 6
    v_lshrrev_b32 v{T0}, 3, v0
    v_add_u32 v{T0}, s4, v{T0}
    v_mul_u32_u24 v{T0}, 7168, v{T0}
    v_and_b32 v{T0+1}, 7, v0
    v_lshl_add_u32 v{T0}, v{T0+1}, 4, v{T0}
    """)
    a("\n".join(t.L))
    for i in range(8):
        a(f"buffer_load_dwordx4 {vr(dst + 4 * i, 4)}, v{T0}, s[{S_AUX}:{S_AUX+3}], s6 offen\ns_add_u32 s6, s6, {8 * 7168}")
    return 8
def cs3_math(p, c, *ids):
    q = W3()
    for t in range(1, 6): W3.h_mix(q, p, c, t)
    cs3_store(p, c, *ids)
def cs3_store(p, c, S_MT3=S_MT3, S_NT3=S_NT3):
    p(f"""
    s_lshl_b32 s3, s{S_NT3}, 4
    s_add_u32 s3, s3, s{S_MT3}
    s_lshl_b32 s3, s3, 2
    s_add_u32 s3, s3, s{S_WM}
    s_lshl_b32 s3, s3, 8
    s_add_u32 s3, s3, {WS_CSP}
    buffer_store_dwordx2 v[48:49], v56, s[{S_WS}:{S_WS+3}], s3 offen {c.opt.get('stflag', '')}
    """)

class W3E(W3):
    h_steps = (2, 3, 4, 5)
    chain = True
    def g_sites(self, c): return {}
    def h_poll(self, c, t): return None
    def poll(self, c):
        P = poll_flags(c, F_W2, S_MT3)
        P.addr += f"""
        v_and_b32 v138, 14, v0
        v_lshlrev_b32 v138, 4, v138
        v_and_b32 v139, 1, v0
        s_lshl_b32 s3, s{S_NT3}, 1
        v_add3_u32 v138, v138, v139, s3
        v_lshlrev_b32 v138, 7, v138
        v_add_u32 v136, {(F_W2 - F_W1) * 32768}, v136
        v_cmp_gt_u32 vcc, 32, v0
        v_cndmask_b32 v136, v138, v136, vcc
        s_mov_b32 s{S_POLL}, {WS_FLAG + F_W1 * 32768}
        """
        return P
    def h_late(self, a, c):
        W = f"s[{S_WS}:{S_WS+3}]"
        ho = c.opt.get('hoflag', '')
        a.atom(f"""
        v_and_b32 v{T0}, 15, v0
        v_lshrrev_b32 v{T0+1}, 4, v0
        v_lshlrev_b32 v{T0}, 4, v{T0}
        v_lshl_add_u32 v{T0+2}, v{T0+1}, 10, v{T0}
        v_lshl_add_u32 v{T0+3}, v{T0+1}, 17, v{T0}
        v_lshlrev_b32 v{T0+4}, 2, v0
        s_lshl_b32 s53, s{S_NT3}, 14
        s_lshl_b32 s4, s{S_WM}, 8
        s_add_u32 s53, s53, s4
        s_add_u32 s53, s53, {WS_CSP}
        s_lshl_b32 s50, s{S_MT3}, 10
        s_add_u32 s50, s50, s4
        s_lshr_b32 s49, s50, 1
        s_add_u32 s49, s49, {WS_G + 8192}
        s_add_u32 s50, s50, {WS_P2}
        """)
        for i in range(4): a.atom(f"buffer_load_dwordx4 {vr(160 + 4 * i, 4)}, v{T0+2}, {W}, s53 offen {ho}\ns_add_u32 s53, s53, 4096")
        for i in range(8): a.atom(f"buffer_load_dwordx4 {vr(176 + 4 * i, 4)}, v{T0+3}, {W}, s50 offen {ho}\ns_add_u32 s50, s50, 16384")
        a.atom(f"buffer_load_dword v208, v{T0+4}, {W}, s49 offen {ho}")
        return 13
    def h_extra(self, p, c, t): return 0
    def h_mix(self, p, c, t):
        if t == 2:
            for i in range(4):
                for d in range(4): p(f"v_add_f32 v{64 + 4 * i + d}, v{176 + 4 * i + d}, v{192 + 4 * i + d}")
            for st_ in (2, 1):
                for i in range(st_):
                    for d in range(4): p(f"v_add_f32 v{64 + 4 * i + d}, v{64 + 4 * i + d}, v{64 + 4 * (i + st_) + d}")
            p("v_mov_b32 v96, v208")
        if t in (3, 4, 5): W3.h_mix(self, p, c, t + 8)

class W2C(W2):
    h_steps = (1, 2, 3, 4, 5)
    def h_late(self, a, c):
        if c.opt.get('cs3at') != 'late': return 0
        t = Atoms(); n = cs3_loads(t, c, S_MT2, S_NT2); a.atom("\n".join(t.L)); return n
    def h_mix(self, p, c, t):
        if 1 <= t <= 5: W3.h_mix(self, p, c, t)
    def h_extra(self, p, c, t):
        if t == 5:
            cs3_store(p, c, S_MT2, S_NT2); return 1
        return 0
class W3F(W3E):
    def poll(self, c): return poll_flags(c, F_W2, S_MT3, col_sgpr=S_NT3)

class W3G(W3F):
    h_steps = tuple(range(1, 14))
    def h_late(self, a, c): return 0
    def h_extra(self, p, c, t):
        W = f"s[{S_WS}:{S_WS+3}]"
        ho = c.opt.get('hoflag', '')
        n = W3.h_extra(self, p, c, t) if (1 <= t <= 8 and t != 5) else 0
        if t == 5:
            p(f"buffer_load_dwordx4 {vr(64 + 4 * (t - 1), 4)}, v63, {W}, s50 offen {ho}\ns_add_u32 s50, s50, 16384"); n = 1
        if 8 <= t <= 11:
            p(f"buffer_load_dwordx4 {vr(160 + 4 * (t - 8), 4)}, v62, {W}, s53 offen {ho}\ns_add_u32 s53, s53, 4096"); n += 1
        return n
    def h_mix(self, p, c, t):
        if t >= 10: W3.h_mix(self, p, c, t)

class W3W(W3E):
    h_steps = (13,)
    pubv = 28
    def poll(self, c): return poll_flags(c, F_W2, S_MT3)
    def h_late(self, a, c): return 0
    def g_sites(self, c):
        return {2: lambda p: publish(p, c, F_CS, False, 28)} if c.opt.get('persist') else {}
    def h_poll(self, c, t): return poll_flags(c, F_CS, S_NT3) if t == 13 else None
    def w_indep(self, p, c): cs3_loads(p, c)
    def w_dep(self, p, c):
        for t in range(1, 9): W3G.h_extra(self, p, c, t) if t < 8 else W3.h_extra(self, p, c, t)
    def w_math(self, p, c):
        cs3_math(p, c)
        for t in (10, 11, 12): W3.h_mix(self, p, c, t)
    def w_fin(self, p, c):
        p("""
        ds_write_b32 v57, v64
        ds_write_b32 v57, v65 offset:512
        s_mov_b32 exec_hi, 0
        ds_write_b32 v58, v96 offset:1024
        s_mov_b32 exec_hi, -1
        s_waitcnt lgkmcnt(0)
        """)
    def h_pre(self, p, c, t):
        if t == 14:
            p(f"""
            v_and_b32 v60, 15, v0
            v_lshrrev_b32 v61, 4, v0
            v_lshlrev_b32 v60, 4, v60
            v_lshl_add_u32 v62, v61, 10, v60
            s_lshl_b32 s4, s{S_WM}, 8
            s_lshl_b32 s53, s{S_NT3}, 14
            s_add_u32 s53, s53, s4
            s_add_u32 s53, s53, {WS_CSP}
            """)
    def h_extra(self, p, c, t): return W3.h_extra(self, p, c, 11) if t == 14 else 0
    def h_mix(self, p, c, t):
        if t == 15: W3.h_mix(self, p, c, 13)
    def h_post(self, p, c, t):
        if t == 15: p("ds_write_b32 v56, v160\ns_waitcnt lgkmcnt(0)")

class W2D(W2):
    def w_last(self, p, c):
        if c.opt.get('xtag', 0):
            p(xch_off(c, f"s_mov_b32 s4, s{S_NT2}", S_WID, 3))
            for r in range(4): p(f"v_mov_b32 v{20 + r}, -1")
            for m in range(4): p(f"buffer_store_dwordx4 v[20:23], v1, s[{S_WS}:{S_WS+3}], s3 offen offset:{m * 1024} {c.opt.get('stflag', '')}")
        return cs3_loads(p, c, S_MT2, S_NT2, 176) + (4 if c.opt.get('xtag', 0) else 0)
    def g_epi(self, p, c):
        p(f"""
        v_and_b32 v8, 15, v0
        v_and_b32 v9, 1, v0
        v_lshlrev_b32 v9, 4, v9
        v_mov_b32 v10, 0x3f80
        v_lshlrev_b32 v9, v9, v10
        v_lshrrev_b32 v8, 1, v8
        """)
        for r in range(4): p(f"v_cmp_eq_u32 vcc, {r}, v8\nv_cndmask_b32 v{12 + r}, 0, v9, vcc")
        for i in range(8): p(mfma16(16, 12, 176 + 4 * i, "0" if i == 0 else None))
        W2.g_epi(self, p, c)
        for r in range(4): p(f"v_add_f32_dpp v{16 + r}, v{16 + r}, v{16 + r} row_ror:8 row_mask:0xf bank_mask:0xf")
        p(f"""
        v_and_b32 v8, 7, v0
        v_lshrrev_b32 v9, 4, v0
        v_lshlrev_b32 v8, 5, v8
        v_lshl_add_u32 v8, v9, 4, v8
        s_lshl_b32 s3, s{S_NT2}, 4
        s_add_u32 s3, s3, s{S_MT2}
        s_lshl_b32 s3, s3, 2
        s_add_u32 s3, s3, s{S_WID}
        s_lshl_b32 s3, s3, 8
        s_add_u32 s3, s3, {WS_CSP}
        s_mov_b32 exec_lo, 0x00ff00ff
        s_mov_b32 exec_hi, 0
        buffer_store_dwordx4 v[16:19], v8, s[{S_WS}:{S_WS+3}], s3 offen {c.opt.get('stflag', '')}
        s_mov_b64 exec, -1
        """)

class W3X(W3F):
    h_steps = ()
    quiet = True
    def h_late(self, a, c): return 0
    def h_mix(self, p, c, t): pass
    def h_post(self, p, c, t): pass
    def w_indep(self, p, c): pass
    def w_dep(self, p, c):
        for t in range(1, 12): W3G.h_extra(self, p, c, t)
    def w_math(self, p, c):
        for t in (10, 11, 12, 13): W3.h_mix(self, p, c, t)
    def w_fin(self, p, c): W3.h_post(self, p, c, 15)

class W4T(W4):
    pubkind = None
class WOT(WO):
    def h_poll(self, c, t): return None
    def h_pre(self, p, c, t): pass
    def h_extra(self, p, c, t): return 0
    def h_epi(self, p, c): pass
    def xloads(self, c):
        return [f"buffer_load_dwordx4 {vr(144 + 4 * m, 4)}, v1, s[{S_WS}:{S_WS+3}], s49 offen offset:{m * 1024} sc1" for m in range(4)]
    def g_sites(self, c):
        def f(p):
            p(xch_off(c, f"s_xor_b32 s4, s{S_NT2}, 1", S_WID, 49))
            p.add(self.xloads(c))
        return {c.opt.get('xat', 2): f}
    def xwait(self, p, c):
        L = c.lab("xw"); E = c.lab("xwe")
        p(f"s_mov_b32 s5, {c.opt.get('spinmax', 100000)}")
        p.label(L)
        p("v_max3_u32 v50, v144, v145, v146")
        for i in range(147, 159, 2): p(f"v_max3_u32 v50, v50, v{i}, v{i + 1}")
        p(f"""
        v_max_u32 v50, v50, v159
        v_cmp_eq_u32 vcc, -1, v50
        s_cbranch_vccz {E}
        s_sub_u32 s5, s5, 1
        s_cmp_eq_u32 s5, 0
        s_cbranch_scc1 {E}
        s_sleep 2
        """)
        p.add(self.xloads(c))
        p(f"s_waitcnt vmcnt(0)\ns_branch {L}")
        p.label(E)
```

```python
from mk import *
from attn import *
from g2 import *
from attn2 import *
from w4q import *
PF3 = ([('w2', 0, 2), ('w3', 0, 4)], [('w3', 4, 3), ('w4', 0, 1), ('w4', 3, 2)], [('w4', 1, 2), ('w4', 5, 2), ('wo', 0, 2)])
def P1(): return [[G1, Attn(0, (8, 12), True, pf=PF3[0]), W2, Attn(20, (8, 12), pf=PF3[1]), W3, Attn(40, (12, 12), pf=PF3[2]), W4(4), WO(4, True, 1)]]
def P2(Q=QKVG): return [[Q, W1, Attn(0, (8, 12), pf=PF3[0]), W2, Attn(20, (8, 12), pf=PF3[1]), W3, Attn(40, (12, 12), pf=PF3[2]), W4(4), WO(4, True, 1)]]
def P3(): return [[W1F, QKV2, W2X, Attn(0, (8, 12, 12), defer1=False, pf=[('w3', 0, 7), ('w4', 0, 1)]), W3,
                   Attn(32, (12, 8, 12), pf=[('w4', 3, 2), ('w4', 1, 2), ('w4', 5, 2), ('wo', 0, 2)]), W4(4), WO(4, True, 1)]]
def P4(G=G2, pf0=[('w3', 0, 4)], wo=(4, True, 1)): return [[G, Attn(0, (8, 12), local=True, pf=pf0), W2, Attn(20, (8, 12), pf=PF3[1]), W3, Attn(40, (12, 12), pf=PF3[2]), W4(wo[0]), WO(*wo)]]
def P5(): return [[G2, AttnH(0, (8, 12), local=True, pf=[('w3', 0, 4)]), W2, AttnH(20, (8, 12), pf=PF3[1]), W3, AttnH(40, (12, 12), pf=PF3[2]), W4(4), WO(4, True, 1)]]
PF4 = ([('w3', 0, 4)], [('w3', 4, 3), ('w4', 0, 3)], [('w4', 3, 4), ('wo', 0, 2)])
def P6(xw=1, xbar=True, ps=2, lead=1): return [[G2, Attn(0, (8, 12), local=True, pf=PF4[0]), W2, Attn(20, (8, 12), pf=PF4[1]), W3, Attn(40, (12, 12), pf=PF4[2]), W4Q(xw), WOQ(xw, xbar, ps, lead)]]
def P7(pf=([('w4', 0, 2)], [('w4', 2, 5)], [('wo', 0, 2)])): return [[G2, Attn(0, (8, 12), local=True, pf=pf[0]), W2, Attn(20, (8, 12), pf=pf[1]), W3E, Attn(40, (12, 12), pf=pf[2]), W4(4), WO(4, True, 1)]]
def P8(pf=([('w3', 0, 7)], [('w4', 0, 7)], [('wo', 0, 2)])): return [[G2, Attn(0, (8, 12), local=True, pf=pf[0]), W2C, Attn(20, (8, 12), pf=pf[1]), W3F, Attn(40, (12, 12), pf=pf[2]), W4(4), WO(4, True, 1)]]
def P9(xw=2, xbar=True, ps=1, lead=1, pf=([('w3', 0, 7)], [('w4', 0, 7)], [('wo', 0, 2)])): return [[G2, Attn(0, (8, 12), local=True, pf=pf[0]), W2C, Attn(20, (8, 12), pf=pf[1]), W3F, Attn(40, (12, 12), pf=pf[2]), W4Q(xw), WOQ(xw, xbar, ps, lead)]]
def PH(w=((8, 8), (8, 8), (8, 8)), h2=8, h4=8, pf=([('w4', 0, 3)], [('w4', 3, 4)], [('wo', 0, 2)])):
    b1 = sum(w[0]) + h2; b2 = b1 + sum(w[1])
    assert b2 + sum(w[2]) + h4 == 64
    return [[G2, AttnW(0, w[0], local=True, pf=pf[0], hosted=h2), W2, AttnW(b1, w[1], pf=pf[1], cont_in=h2 > 0), W3G,
             AttnW(b2, w[2], pf=pf[2], hosted=h4), W4(4), WO(4, True, 1)]]
def PW(w=((8, 8), (8, 8), (8, 8)), h2=8, h4=8, pf=([('w3', 2, 2)], [], [('w4', 1, 2), ('w4', 5, 2)]), pf2=([], [('w4', 0, 1), ('w4', 3, 2)], [('wo', 0, 2)])):
    b1 = sum(w[0]) + h2; b2 = b1 + sum(w[1])
    assert b2 + sum(w[2]) + h4 == 64
    return [[G2, AttnW(0, w[0], local=True, pf=pf[0], pf2=pf2[0], hosted=h2), W2, AttnW(b1, w[1], pf=pf[1], pf2=pf2[1], cont_in=h2 > 0), W3W,
             AttnW(b2, w[2], pf=pf[2], pf2=pf2[2], hosted=h4), W4(4), WO(4, True, 1)]]
def PX(w=((8, 8), (8, 8), (8, 8)), h2=8, h4=8, h3=0, pf=([('w3', 2, 2)], [('w4', 0, 5)], []), pf2=([], [('w4', 5, 2)], [('wo', 0, 2)]), xbar=True, tag=False):
    b1 = sum(w[0]) + h2; b2 = b1 + sum(w[1]) + h3
    assert b2 + sum(w[2]) + h4 == 64
    return [[G2, AttnW(0, w[0], local=True, pf=pf[0], pf2=pf2[0], hosted=h2), W2D, AttnW(b1, w[1], pf=pf[1], pf2=pf2[1], cont_in=h2 > 0, hosted=h3), W3X,
             AttnW(b2, w[2], pf=pf[2], pf2=pf2[2], hosted=h4, cont_in=h3 > 0), (W4T if tag else W4)(4), (WOT if tag else WO)(4, xbar, 1)]]
P = PX
base = dict(stflag='sc1', hoflag='sc1', persist=1, spinsleep=4, xbf=1, g1pub=1, gfirst=1, krot=(1, 0), g2pf=[('w2', 2 * MB, 0, 2), ('w3', 7 * MB, 0, 2)])
base5 = dict(base, hslate=1, g1pub=1)
if __name__ == "__main__":
    make("p4a.s", P(), dict(base, stamp=1))
    make("p4b.s", P(), dict(base, hstamp=1))
    make("p4f.s", P(), dict(base, final=1))
    make("p4s.s", P(), dict(base, sstamp=1))
    make("p4m.s", P(), dict(base, stamp=1, fine=1))
    make("p4c.s", P(), dict(base, spincnt=1))
```

```python
from attn import *
B_O, B_Q, B_L, B_M, B_G = (192, 208), (224, 232), (240, 244), (248, 249), (250, 251)
B_C, B_V0, B_V1 = (48, 2), (104, 108), (112, 116)

class AttnH(Attn):
    defer1 = True
    def __init__(self, b0, stages, pf=(), local=False):
        Attn.__init__(self, b0, stages, pf=pf, local=local, defer1=True)
        assert len(stages) == 2
        self.NI = sum(stages) // 2
        self.bars = [stages[0] // 2 - 1, self.NI - 1]
    def early(self, p, c): pass
    def h_post_dep(self, p, c):
        if self.last:
            p(f"""
            s_lshl_b32 s3, s{S_QB}, 10
            s_lshl_b32 s4, s{S_WM}, 8
            s_add_u32 s3, s3, s4
            s_add_u32 s3, s3, {WS_G}
            v_and_b32 v{T0}, 31, v0
            v_lshlrev_b32 v{T0}, 2, v{T0}
            buffer_load_dword v{B_G[0]}, v{T0}, s[{S_WS}:{S_WS+3}], s3 offen {c.opt.get('hoflag', '')}
            buffer_load_dword v{B_G[1]}, v{T0}, s[{S_WS}:{S_WS+3}], s3 offen offset:128 {c.opt.get('hoflag', '')}
            """)
    def LLq(self, q): return f"v_smfmac_f32_16x16x64_bf16 {vr(B_L[q], 4)}, {vr(A_SEL, 4)}, {vr(A_P[0], 8)}, v{A_IDX}"
    def cblocks(self, p, qs=(0, 1)):
        for q in qs:
            for i in range(16): p(f"v_mov_b32 v{B_C[q] + i}, v{B_M[q]}")
    def presetup(self, p, c):
        self.sel_setup(p)
        for i in range(8): p(f"v_mov_b32 v{A_P[0] + i}, 0")
        for i in range(4): p(f"v_mov_b32 v{B_V1[1] + i}, 0")
        if self.first:
            for i in range(32): p(f"v_mov_b32 v{B_O[0] + i}, 0")
            for i in range(8): p(f"v_mov_b32 v{B_L[0] + i}, 0")
        else: self.cblocks(p)
    def negmax(self, p, q, tmp):
        p(f"""
        v_mov_b32 v{tmp}, v{B_M[q]}
        v_permlane32_swap_b32 v{B_M[q]}, v{tmp}
        v_max_f32 v{B_M[q]}, v{B_M[q]}, v{tmp}
        v_sub_f32 v{B_M[q]}, 0, v{B_M[q]}
        """)
    def setup(self, p, c):
        p(f"v_add_u32 v{A_AD}, s{S_RD}, v1")
        p(f"""
        ds_read_b128 {vr(A_K, 4)}, v{A_AD}
        ds_read_b128 {vr(A_K + 4, 4)}, v{A_AD} offset:1024
        """)
        if self.first:
            p(f"s_lshl_b32 s3, s{S_WM}, 12\nv_add_u32 v{T0}, s3, v{A_AD}")
            for i in range(4): p(f"ds_read_b128 {vr(B_Q[0] + 4 * i, 4)}, v{T0} offset:{32768 + 1024 * i}")
        p(f"""
        ds_read_b128 {vr(B_V0[0], 4)}, v{A_AD} offset:2048
        ds_read_b128 {vr(B_V1[0], 4)}, v{A_AD} offset:3072
        """)
        if self.first:
            for q in range(2):
                p(mfma32(A_S[q], A_K, B_Q[q], "0"))
                p(mfma32(A_S[q], A_K + 4, B_Q[q] + 4))
            for q in range(2):
                self.rowmax(p, A_S[q], B_M[q])
                self.negmax(p, q, T0)
            self.cblocks(p)
        p(mfma32(A_S[0], A_K, B_Q[0], B_C[0]))
        p(mfma32(A_S[0], A_K + 4, B_Q[0] + 4))
        p("s_nop 9\ns_waitcnt lgkmcnt(0)")
    def tile(self, c, t, noff=None):
        q = t % 2; b = t // 2
        if noff is None: noff = 4096 if b == 0 else 0
        S = A_S[q]; Sn = A_S[q ^ 1]
        rd = lambda d, o: f"ds_read_b128 {vr(d, 4)}, v{A_AD} offset:{noff + o}"
        pb = b if q == 1 else b ^ 1
        d = dict(O1=mfma32(B_O[q ^ 1], B_V1[pb], A_P[1]), LL=self.LLq(q ^ 1), O0=mfma32(B_O[q], B_V0[b], A_P[0]),
                 Sa=mfma32(Sn, A_K, B_Q[q ^ 1], B_C[q ^ 1]), Sb=mfma32(Sn, A_K + 4, B_Q[q ^ 1] + 4))
        if q == 0: d.update(r0=rd(A_K, 0), r1=rd(A_K + 4, 1024), w="s_waitcnt lgkmcnt(0)")
        else: d.update(r0=rd(B_V0[b ^ 1], 2048), r1=rd(B_V1[b ^ 1], 3072), w=None)
        E = [f"v_exp_f32 v{S + i}, v{S + i}" for i in range(16)]
        C = [f"v_cvt_pk_bf16_f32 v{A_P[i // 4] + i % 4}, v{S + 2 * i}, v{S + 2 * i + 1}" for i in range(8)]
        L = []
        for x in c.opt.get('aorder', "Sa r0 e3 Sb r1 e3 LL e2 O1 c4 e4 w O0 e4 c4").split():
            if x[0] == 'e': L += E[:int(x[1:])]; E = E[int(x[1:]):]
            elif x[0] == 'c': L += C[:int(x[1:])]; C = C[int(x[1:]):]
            elif d[x]: L.append(d[x])
        return L
    adv = 8192
    def drain(self, p):
        p(mfma32(B_O[1], B_V1[1], A_P[1]))
        p(self.LLq(1))
        p("s_waitcnt lgkmcnt(0)")
    def g_body(self, p, c, prev):
        nxt = self.nxt
        p(f"""
        s_mov_b32 s{S_WM}, s{S_WID}
        s_mov_b32 s{S_DMA}, s{S_RD}
        """)
        p.add(slot_adv_dma())
        sv = self.local; self.local = True; self.h_setup(p, c); self.local = sv
        if self.local:
            P = self.poll(c); P.issue(p); P.check(p)
        self.ncall = 1
        p.add(self.dma_atoms(c))
        if getattr(prev, 'deferred', None): p.add(prev.deferred)
        nxt.h_setup(p, c)
        p("s_waitcnt vmcnt(0)")
        publish(p, c, prev.pubkind, False)
        self.prefetch(p, c)
        p.add(slot_adv_rd())
        p("s_barrier")
        P = nxt.poll(c); P.issue(p); P.check(p)
        p.add(nxt.dma_atoms(c))
        p.add(nxt.dma_atoms(c))
        p(f"s_and_b32 s{S_WM}, s{S_WID}, 1")
        p.add(slot_adv_rd())
        nxt.g_setup(p, c); nxt.g_setup = lambda p, c: None
        p("s_waitcnt vmcnt(0)\ns_barrier")
    def g_epi(self, p, c): pass
    def h_body(self, p, c, nxt, skip0=False):
        if self.local: p(f"s_mov_b32 s{S_RD}, s{S_DMA}")
        else:
            p(f"""
            s_cmp_eq_u32 s{S_DMA}, 0
            s_cselect_b32 s{S_RD}, {SLOT * NSLOT}, s{S_DMA}
            s_sub_u32 s{S_RD}, s{S_RD}, {SLOT}
            """)
        self.setup(p, c)
        def e1(p):
            self.next_slot(p)
            nxt.h_setup(p, c)
            nxt.skip_stages(p, c, 2)
            p("s_waitcnt lgkmcnt(0)\ns_barrier")
            hstep_stamp(p, c)
        def e3(p):
            p(f"s_mov_b32 s{S_DMA}, s{S_RD}")
            self.next_slot(p)
            p("s_waitcnt lgkmcnt(0)\ns_barrier")
            hstep_stamp(p, c)
            a = Atoms()
            nxt.first_extra = nxt.h_late(a, c)
            p.add(nxt.dma_atoms(c))
            p.add(a.L)
        self.loop(p, c, {self.bars[0]: e1, self.bars[1]: e3}, lambda k: [])
        return True
    def h_epi(self, p, c):
        if not self.last: return
        st = c.opt.get('stflag', '')
        W = f"s[{S_WS}:{S_WS+3}]"
        X = 18
        p(f"""
        v_and_b32 v{X+2}, 15, v0
        v_bfe_u32 v{X+3}, v0, 4, 1
        v_lshrrev_b32 v{X+4}, 5, v0
        v_mul_u32_u24 v{X+3}, {AF_PITCH}, v{X+3}
        v_lshl_add_u32 v{X+3}, v{X+2}, 4, v{X+3}
        v_lshl_add_u32 v{X+3}, v{X+4}, 8, v{X+3}
        s_lshl_b32 s3, s{S_QB}, 2
        s_add_u32 s3, s3, s{S_WM}
        s_mul_i32 s3, s3, {4 * AF_PITCH}
        s_lshl_b32 s4, s{S_HEAD}, 10
        s_add_u32 s3, s3, s4
        s_add_u32 s49, s3, {WS_AF + 112 * 1024}
        """)
        for q in range(2):
            Lok = c.lab("ok")
            p(f"v_add_f32 v{X}, v{B_L[q]}, v{B_L[q]+1}")
            for i in range(16): p(f"v_fma_f32 v{X}, v{B_O[q] + i}, 0, v{X}")
            p(f"""
            v_mov_b32 v{X+1}, {hexf(2.0 ** c.opt.get('lmaxlog', 64))}
            v_cmp_nlt_f32 vcc, v{X}, v{X+1}
            """)
            Lf = c.lab("fbk")
            p(f"s_cbranch_vccnz {Lf}")
            p.label(Lok)
            def ool(z, q=q, Lf=Lf, Lok=Lok):
                z.label(Lf)
                self.fallback(z, c, q)
                z(f"v_add_f32 v{X}, v{B_L[q]}, v{B_L[q]+1}\ns_branch {Lok}")
            c.ool.append(ool)
            p(f"v_rcp_f32 v{X}, v{X}\nv_mul_f32 v{X}, v{X}, v{B_G[q]}")
            for i in range(16): p(f"v_mul_f32 v{B_O[q] + i}, v{B_O[q] + i}, v{X}")
            for i in range(8): p(f"v_cvt_pk_bf16_f32 v{B_O[q] + i}, v{B_O[q] + 2 * i}, v{B_O[q] + 2 * i + 1}")
            for u in range(2):
                p(f"buffer_store_dwordx4 {vr(B_O[q] + 4 * u, 4)}, v{X+3}, {W}, s49 offen offset:{512 * u} {st}")
            if q == 0: p(f"s_add_u32 s49, s49, {2 * AF_PITCH}")
    def fallback(self, p, c, q):
        ho = c.opt.get('hoflag', '')
        W = f"s[{S_WS}:{S_WS+3}]"
        L1 = c.lab("fb"); L2 = c.lab("fb")
        S = A_S[0]
        p(f"""
        s_lshl_b32 s5, s{S_HEAD}, 18
        s_add_u32 s5, s5, {WS_KV}
        s_mov_b32 s6, s5
        s_mov_b32 s7, 64
        v_mov_b32 v{B_M[q]}, 0xff800000
        """)
        p.label(L1)
        p(f"""
        buffer_load_dwordx4 {vr(A_K, 4)}, v1, {W}, s6 offen {ho}
        buffer_load_dwordx4 {vr(A_K + 4, 4)}, v1, {W}, s6 offen offset:1024 {ho}
        s_waitcnt vmcnt(0)
        """)
        p(mfma32(S, A_K, B_Q[q], "0"))
        p(mfma32(S, A_K + 4, B_Q[q] + 4))
        self.rowmax(p, S, B_M[q], True)
        p(f"s_add_u32 s6, s6, 4096\ns_sub_u32 s7, s7, 1\ns_cmp_lg_u32 s7, 0\ns_cbranch_scc1 {L1}")
        self.negmax(p, q, T0)
        p("s_mov_b32 s7, 64")
        self.cblocks(p, (q,))
        for i in range(16): p(f"v_mov_b32 v{B_O[q] + i}, 0")
        for i in range(4): p(f"v_mov_b32 v{B_L[q] + i}, 0")
        p.label(L2)
        p(f"""
        buffer_load_dwordx4 {vr(A_K, 4)}, v1, {W}, s5 offen {ho}
        buffer_load_dwordx4 {vr(A_K + 4, 4)}, v1, {W}, s5 offen offset:1024 {ho}
        buffer_load_dwordx4 {vr(B_V0[0], 4)}, v1, {W}, s5 offen offset:2048 {ho}
        buffer_load_dwordx4 {vr(B_V1[0], 4)}, v1, {W}, s5 offen offset:3072 {ho}
        s_waitcnt vmcnt(0)
        """)
        p(mfma32(S, A_K, B_Q[q], B_C[q]))
        p(mfma32(S, A_K + 4, B_Q[q] + 4))
        for i in range(16): p(f"v_exp_f32 v{S + i}, v{S + i}")
        for i in range(8): p(f"v_cvt_pk_bf16_f32 v{A_P[i // 4] + i % 4}, v{S + 2 * i}, v{S + 2 * i + 1}")
        p(mfma32(B_O[q], B_V0[0], A_P[0]))
        p(mfma32(B_O[q], B_V1[0], A_P[1]))
        p(self.LLq(q))
        p(f"s_add_u32 s5, s5, 4096\ns_sub_u32 s7, s7, 1\ns_cmp_lg_u32 s7, 0\ns_cbranch_scc1 {L2}")


S_KV, S_KVO, S_KVS = 44, 63, 100
class Host:
    def __init__(self, att, d0, hsteps, final): self.att, self.d0, self.hsteps, self.final = att, d0, hsteps, final
    def kv_setup(self, p, c, skip):
        p(f"""
        s_lshl_b32 s3, s{S_HEAD}, 18
        s_add_u32 s3, s3, {WS_KV}
        s_add_u32 s{S_KV}, s{ptr('ws')}, s3
        s_addc_u32 s{S_KV+1}, s{ptr('ws')+1}, 0
        s_mov_b32 s{S_KV+2}, 0x40000
        s_mov_b32 s{S_KV+3}, 0x20000
        s_lshl_b32 s4, s{S_WM}, 10
        s_lshl_b32 s{S_KVS}, s{S_QB}, 15
        s_add_u32 s{S_KVS}, s{S_KVS}, s4
        s_add_u32 s{S_KVO}, s4, {(self.d0 + skip) * 4096}
        s_sub_u32 s3, s{S_KVO}, 32768
        s_cmp_ge_u32 s3, s{S_KVS}
        s_cselect_b32 s{S_KVO}, s{S_KVO}, s3
        s_add_u32 s48, s4, {L_X}
        """)
    def kv_atom(self, c, slot):
        return f"""
        s_lshr_b32 s3, s{slot}, 3
        s_add_u32 m0, s3, s48
        buffer_load_dwordx4 v1, s[{S_KV}:{S_KV+3}], s{S_KVO} offen {c.opt.get('hoflag', '')} lds
        s_add_u32 s{S_KVO}, s{S_KVO}, 4096
        s_cmp_eq_u32 s{S_KVO}, s{S_KVS}
        s_cselect_b32 s3, 32768, 0
        s_add_u32 s{S_KVO}, s{S_KVO}, s3
        """
    def step(self, p, c, par, D, last):
        A = self.att
        p(f"s_lshr_b32 s3, s{S_RD}, 3\ns_add_u32 s3, s3, {L_X}\nv_add_u32 v{A_AD}, s3, v1")
        p.add(D[:2])
        t0 = 2 if par == 0 else 0
        p.add(A.mix(A.tile(c, t0, 0) + A.tile(c, t0 + 1, 0), D[2:] + ["\n".join(slot_adv_rd())]))
        if last and self.final:
            A.drain(p)
            p("s_setprio 0")
    def finish(self, p, c):
        self.att.epilogue(p, c)
        return 4

class AttnW(AttnH):
    def __init__(self, b0, stages, pf=(), local=False, cont_in=False, hosted=0):
        AttnH.__init__(self, b0, stages, pf=pf, local=local)
        self.cont_in = cont_in; self.hosted = hosted
        self.last = b0 + sum(stages) + hosted == 64
        self.pubkind = F_ATT if self.last else None
    def link(self):
        if self.hosted:
            d0 = self.b0 + sum(self.stages)
            self.nxt.host = Host(self, d0, self.hosted + 1 if self.last else self.hosted, self.last)
            if self.last: self.nxt.pubstep = (self.hosted + 4) // 2 * 2
    def g_body(self, p, c, prev):
        nxt = self.nxt; H = nxt.host
        p(f"""
        s_mov_b32 s{S_WM}, s{S_WID}
        s_mov_b32 s{S_DMA}, s{S_RD}
        """)
        p.add(slot_adv_dma())
        sv = self.local; self.local = True; self.h_setup(p, c); self.local = sv
        if self.local:
            P = self.poll(c); P.issue(p); P.check(p)
        self.ncall = 1
        D = self.dma_atoms(c); p.add(D)
        p(f"s_waitcnt vmcnt({nvm(D)})")
        publish(p, c, prev.pubkind, False)
        nxt.h_setup(p, c)
        if H: H.kv_setup(p, c, 0)
        p(f"s_mov_b32 s42, s{S_DMA}")
        p.add(slot_adv_dma())
        p(f"s_mov_b32 s43, s{S_DMA}")
        a = Prog()
        a.add(nxt.dma_part(c, 1, 42))
        self.prefetch(a, c)
        p.I += a.I
        n = 1 + sum(1 for x in a.I if x.kind == 'vmem')
        p.add(slot_adv_rd())
        p(f"s_waitcnt vmcnt({n})\ns_barrier")
        p.add(nxt.dma_part(c, 1, 43))
        if H: p(H.kv_atom(c, 42)); p(H.kv_atom(c, 43))
        P = nxt.poll(c); P.issue(p); P.check(p)
        p.add(nxt.dma_part(c, 0, 42))
        p.add(nxt.dma_part(c, 0, 43))
        p(f"s_and_b32 s{S_WM}, s{S_WID}, 1")
        p.add(slot_adv_rd())
        nxt.g_setup(p, c); nxt.g_setup = lambda p, c: None
        p("s_waitcnt vmcnt(0)\ns_barrier")
    def h_body(self, p, c, nxt, skip0=False):
        H = nxt.host
        if self.cont_in:
            p(f"s_setprio 0\nv_add_u32 v{A_AD}, s{S_RD}, v1")
        else:
            if self.local: p(f"s_mov_b32 s{S_RD}, s{S_DMA}")
            else:
                p(f"""
                s_cmp_eq_u32 s{S_DMA}, 0
                s_cselect_b32 s{S_RD}, {SLOT * NSLOT}, s{S_DMA}
                s_sub_u32 s{S_RD}, s{S_RD}, {SLOT}
                """)
            self.setup(p, c)
        def e1(p):
            self.next_slot(p)
            nxt.h_setup(p, c)
            nxt.skip_stages(p, c, 2)
            if H: H.kv_setup(p, c, 2)
            p("s_waitcnt vmcnt(0) lgkmcnt(0)\ns_barrier")
            hstep_stamp(p, c)
        def e3(p):
            p(f"s_mov_b32 s{S_DMA}, s{S_RD}")
            self.next_slot(p)
            p("s_waitcnt lgkmcnt(0)\ns_barrier")
            hstep_stamp(p, c)
            if H:
                p("s_setprio 1"); return
            a = Atoms()
            nxt.first_extra = nxt.h_late(a, c)
            p.add(nxt.dma_atoms(c))
            p.add(a.L)
        self.loop(p, c, {self.bars[0]: e1, self.bars[1]: e3}, lambda k: [], self.cont_in, H is not None)
        return H is None
    def h_epi(self, p, c):
        if not self.hosted: AttnH.h_epi(self, p, c)
    def epilogue(self, p, c): AttnH.h_epi(self, p, c)
```

```python
from common import *

SLOT = 49152
NSLOT = 3
L_X = SLOT * NSLOT
LDS_BYTES = 163840
L_MU = L_X + 4096
L_CS = L_X + 10240
L_DUMMY = L_X + 11264

WS_ST1 = 41 * MB
WS_P2 = 42 * MB
WS_CSP = 43 * MB

S_A, S_B, S_WS, S_AUX = 8, 12, 16, 20
S_WID, S_WM, S_WN, S_XCD, S_IDX = 24, 25, 26, 27, 28
S_MT3, S_NT3, S_MT2, S_NT2, S_HEAD, S_BLK, S_QB = 29, 30, 54, 55, 51, 52, 41
S_POLL = 40
S_DBG = 88
S_FL = 88
S_CNT, S_RD, S_DELTA, S_DMA = 31, 32, 33, 34
S_SO = [35, 36]
S_LD = [37, 38]
S_OFFS = [42, 43, 44, 45, 46, 47, 92, 93, 94, 95, 98, 99]
S_NEG = 39
S_PTR = 64
def ptr(name): return S_PTR + KA[name] // 4
V_LANE, V_L16 = 0, 1
V_Q, V_O, V_L, V_M = 2, 10, 26, 30
V_AD = 32
V_FR = 48

def mfma16(d, a, b, c=None):
    cs = vr(d, 4) if c is None else (c if isinstance(c, str) else vr(c, 4))
    return f"v_mfma_f32_16x16x32_bf16 {vr(d,4)}, {vr(a,4)}, {vr(b,4)}, {cs}"

def tile_map(p, a_log2, S_MT, S_NT):
    a = 1 << a_log2; b = 32 // a
    nxm = 16 // a
    p(f"""
    s_and_b32 s3, s{S_XCD}, {nxm - 1}
    s_lshl_b32 s3, s3, {a_log2}
    s_and_b32 s4, s{S_IDX}, {a - 1}
    s_add_u32 s{S_MT}, s3, s4
    s_lshr_b32 s3, s{S_XCD}, {nxm.bit_length() - 1}
    s_lshl_b32 s3, s3, {b.bit_length() - 1}
    s_lshr_b32 s4, s{S_IDX}, {a_log2}
    s_add_u32 s{S_NT}, s3, s4
    """)

def slot_adv_rd():
    return [f"s_add_u32 s{S_RD}, s{S_RD}, {SLOT}", f"s_cmp_eq_u32 s{S_RD}, {SLOT * NSLOT}",
            f"s_cselect_b32 s{S_DELTA}, s{S_NEG}, {SLOT}", f"s_cselect_b32 s{S_RD}, 0, s{S_RD}"]
def slot_adv_dma():
    return [f"s_add_u32 s{S_DMA}, s{S_DMA}, {SLOT}", f"s_cmp_eq_u32 s{S_DMA}, {SLOT * NSLOT}",
            f"s_cselect_b32 s{S_DMA}, 0, s{S_DMA}"]

class Ctx:
    def __init__(self, name, opt):
        self.name = name; self.opt = opt; self.nlab = 0
        self.stamp_slot = {'g': 0, 'h': 0}
    def lab(self, s):
        self.nlab += 1
        return f"{self.name}_{s}{self.nlab}"
    def ST(self, p, role):
        if not self.opt.get('stamp'): return
        sl = self.stamp_slot[role]; self.stamp_slot[role] += 1
        stamp2(p, sl, self.opt['stamp'] - 1, self.stampv)

def hstep_stamp(p, c):
    if not c.opt.get('hstamp'): return
    p("""
    s_memtime s[56:57]
    s_waitcnt lgkmcnt(0)
    s_lshl_b64 exec, 1, s62
    s_cmp_ge_u32 s62, 64
    s_cselect_b64 s[58:59], 0, exec
    s_cselect_b64 s[60:61], exec, 0
    s_mov_b64 exec, s[58:59]
    v_mov_b32 v150, s56
    s_mov_b64 exec, s[60:61]
    v_mov_b32 v151, s56
    s_mov_b64 exec, -1
    s_add_u32 s62, s62, 1
    """)
def hstep_dump(p, c):
    if not c.opt.get('hstamp') and not c.opt.get('sstamp') and not c.opt.get('spincnt'): return
    p(f"""
    s_lshl_b32 s3, s2, 2
    s_add_u32 s3, s3, s{S_WM}
    s_lshl_b32 s3, s3, 9
    s_add_u32 s3, s3, {WS_STAMP + 2 * MB}
    v_lshlrev_b32 v152, 2, v0
    buffer_store_dword v150, v152, s[{S_WS}:{S_WS+3}], s3 offen
    buffer_store_dword v151, v152, s[{S_WS}:{S_WS+3}], s3 offen offset:256
    """)
NSTAMP = 32
def stamp2(p, slot, kidx, v=140):
    p(f"""
    s_memrealtime s[56:57]
    s_memtime s[58:59]
    s_add_u32 s60, s2, {kidx * 256}
    s_lshl_b32 s60, s60, 3
    s_add_u32 s60, s60, s{S_WID}
    s_lshl_b32 s60, s60, 8
    s_add_u32 s60, s60, {WS_STAMP + slot * 8}
    s_waitcnt lgkmcnt(0)
    v_mov_b32 v{v}, s56
    v_mov_b32 v{v+1}, s58
    v_mov_b32 v{v+2}, 0
    s_mov_b64 exec, 1
    buffer_store_dwordx2 v[{v}:{v+1}], v{v+2}, s[{S_WS}:{S_WS+3}], s60 offen
    s_mov_b64 exec, -1
    """)


class Atoms:
    def __init__(self): self.L = []
    def __call__(self, s):
        for line in s.split('\n'):
            line = line.strip()
            if line and not line.startswith(';'): self.L.append(line)
    def atom(self, s): self.L.append(s)
    def add(self, items):
        for x in items: self(x)

def spread(main, fill, start=0, end=None):
    n = len(main); end = n if end is None else end
    k = end - start
    slots = [0] * n
    for i in range(k): slots[start + i] = ((i + 1) * len(fill)) // k - (i * len(fill)) // k
    return interleave(main, fill, slots)

def nvm(D): return sum(x.count('buffer_') for x in D)

class Task:
    pubkind = None
    pubv = 136
    barpos = 6
    puball = False
    xbar = False
    pubstep = 3
    local = False
    exposed = False
    defer1 = False
    late = False
    poll = None
    def g_sites(self, c): return {}
    def h_post_dep(self, p, c): return
    def drain_n(self, c): return 0
    def h_indep(self, a, c): return 0
    def h_late(self, a, c): return 0
    def g_prev_site(self, p, c): return
    has_prev_site = False
    def early(self, p, c): return
    def h_epi(self, p, c): return
    def g_events(self, c, prev, unroll):
        E = {t: [f] for t, f in self.g_sites(c).items()}
        if prev is not None and prev.pubkind is not None and c.opt.get('persist'):
            t = self.pubstep
            if prev.puball:
                E.setdefault(t - unroll, []).append(lambda q: q("s_waitcnt vmcnt(0)"))
                E.setdefault(t, []).append(lambda q: publish(q, c, prev.pubkind, True, self.pubv))
            else:
                E.setdefault(t, []).append(lambda q: (q("s_waitcnt vmcnt(0)"), publish(q, c, prev.pubkind, False, self.pubv)))
        assert all(t % unroll == 0 for t in E)
        return E

class Gemm(Task):
    MT = 4
    fr0 = V_FR
    zero_first = False
    def acc(self, m, n): return 256 - 4 * self.MT * self.NT + 4 * (n * self.MT + m)
    def xf(self, s, m): return self.fr0 + s * 4 * (self.MT + self.NT) + 4 * m
    def wf(self, s, n): return self.fr0 + s * 4 * (self.MT + self.NT) + 4 * self.MT + 4 * n
    def swap(self, n): return False
    def reads(self, s, kk):
        rx = lambda m: "ds_read_b128 %s, v%d offset:%d" % ((vr(self.xf(s, m), 4),) + self.xaddr(kk, m))
        rw = lambda n, j: "ds_read_b64_tr_b16 %s, v%d offset:%d" % ((vr(self.wf(s, n) + 2 * j, 2),) + self.waddr(kk, n, j))
        R = [rx(0), rw(0, 0), rw(0, 1)] + [rx(m) for m in range(1, self.MT)]
        for n in range(1, self.NT): R += [rw(n, 0), rw(n, 1)]
        return R
    def mfmas(self, s, c0=None):
        M = []
        for n in range(self.NT):
            for m in (range(self.MT) if n % 2 == 0 else range(self.MT - 1, -1, -1)):
                if self.swap(n): M.append(mfma16(self.acc(m, n), self.xf(s, m), self.wf(s, n), c0))
                else: M.append(mfma16(self.acc(m, n), self.wf(s, n), self.xf(s, m), c0))
            M += self.extra_mfma(s, n)
        return M
    def extra_mfma(self, s, n): return []
    def g_loop_atoms(self, c): return []
    def g_zero(self, p):
        if self.zero_first: return
        for r in range(self.acc(0, 0), 256): p(f"v_mov_b32 v{r}, 0")
    chain = False
    host = None
    def g_body(self, p, c, prev):
        if self.chain and c.opt.get('chain', 1): self.g_loop_chain(p, c, self.nsteps, prev)
        else: self.g_loop(p, c, self.nsteps, prev)
    def g_loop_chain(self, p, c, nsteps, prev):
        KS, MT, NT = self.KS, self.MT, self.NT
        assert nsteps % 2 == 0
        xf = lambda s, m, kk: self.fr0 + 4 * (s * MT * KS + m * KS + kk)
        wf = lambda n, kk: self.fr0 + 8 * MT * KS + 4 * ((n % 4) * KS + kk)
        rx = lambda s, m: ["ds_read_b128 %s, v%d offset:%d" % ((vr(xf(s, m, kk), 4),) + self.xaddr(kk, m)) for kk in range(KS)]
        rw = lambda n: ["ds_read_b64_tr_b16 %s, v%d offset:%d" % ((vr(wf(n, kk) + 2 * j, 2),) + self.waddr(kk, n, j)) for kk in range(KS) for j in range(2)]
        def group(s, n, zero):
            M = []
            for i, m in enumerate(range(MT) if n % 2 == 0 else range(MT - 1, -1, -1)):
                for q, kk in enumerate(range(KS) if i % 2 == 0 else range(KS - 1, -1, -1)):
                    c0 = "0" if (zero and q == 0) else None
                    a, b = (xf(s, m, kk), wf(n, kk)) if self.swap(n) else (wf(n, kk), xf(s, m, kk))
                    M.append(mfma16(self.acc(m, n), a, b, c0))
            return M
        def first_reads(s):
            R = rx(s, 0) + rw(0)
            for m in range(1, MT): R += rx(s, m)
            return R + rw(1)
        xregs = sorted({self.xaddr(kk, 0)[0] for kk in range(KS)})
        def step(s, zero, tail):
            done = set()
            for n in range(NT - 2):
                F = rw(n + 2)
                if n == 0: F = F + slot_adv_rd()
                later = {self.waddr(0, k, 0)[0] for k in range(n + 3, NT)}
                if n >= 1 or NT == 3:
                    ready = [r for r in self.addr_regs if r not in later and r not in done]
                    if n < NT - 3: ready = ready[:2]
                    done |= set(ready)
                    F = F + [f"v_add_u32 v{r}, s{S_DELTA}, v{r}" for r in ready]
                G = group(s, n, zero)
                p(f"s_waitcnt lgkmcnt({(MT - 2) * KS + 2 * KS if n == 0 else 2 * KS})")
                p.add(interleave(G, F, [1] * len(G)) if len(F) <= len(G) else spread(G, F))
            assert done == set(self.addr_regs)
            G = group(s, NT - 2, zero) + group(s, NT - 1, zero)
            bp = c.opt.get('cbar', 0)
            p.add(G[:bp])
            p("s_waitcnt lgkmcnt(0)\ns_barrier")
            p.add(spread(G[bp:], first_reads(s ^ 1) + tail))
        E = self.g_events(c, prev, 2)
        mask = sum(1 << k for k in range(1, nsteps) if nsteps - k not in E)
        L = c.lab("gl"); Le = c.lab("ge")
        p.add(first_reads(0))
        p(f"s_mov_b32 s{S_CNT}, {nsteps}")
        if self.zero_first:
            step(0, True, [])
            p(f"s_branch {Le}")
        p(".p2align 5")
        p.label(L)
        step(0, False, [])
        p.label(Le)
        step(1, False, [f"s_sub_u32 s{S_CNT}, s{S_CNT}, 2", f"s_bitcmp1_b32 {hex(mask)}, s{S_CNT}"])
        self.loop_end(p, c, L, E, nsteps)
    def g_loop(self, p, c, nsteps, prev):
        KS = self.KS
        nm = len(self.mfmas(0)); nr = len(self.reads(0, 0))
        big = nm >= 16 and not getattr(self, 'small', False)
        unroll = 2 if KS % 2 else 1
        assert nsteps % unroll == 0
        w0 = c.opt.get('w0', 4)
        p.add(self.reads(0, 0))
        p(f"s_mov_b32 s{S_CNT}, {nsteps}")
        L = c.lab("gl"); Le = c.lab("ge")
        if self.zero_first:
            p.add(interleave(self.mfmas(0, "0"), self.reads(1, 1), [1] * nm))
            p(f"s_branch {Le}")
        p(".p2align 5")
        p.label(L)
        par = 0
        E = self.g_events(c, prev, unroll)
        mask = sum(1 << k for k in range(1, nsteps) if nsteps - k not in E)
        for u in range(unroll):
            for kk in range(KS - 1):
                R = self.reads(par ^ 1, kk + 1)
                if kk == 0: R = R + self.g_loop_atoms(c)
                if big: p(f"s_waitcnt lgkmcnt({w0})")
                p.add(interleave(self.mfmas(par), R, [1] * nm))
                par ^= 1
                if u == 0 and kk == 0 and self.zero_first: p.label(Le)
            M = self.mfmas(par)
            upd = slot_adv_rd() + [f"v_add_u32 v{r}, s{S_DELTA}, v{r}" for r in self.addr_regs]
            tail = [f"s_sub_u32 s{S_CNT}, s{S_CNT}, {unroll}", f"s_bitcmp1_b32 {hex(mask)}, s{S_CNT}"] if u == unroll - 1 else []
            bp = min(c.opt.get('barpos', self.barpos), nm - nr) if big else c.opt.get('bp64', 4)
            if big: p(f"s_waitcnt lgkmcnt({w0})")
            p.add(spread(M[:bp], upd))
            p("s_waitcnt lgkmcnt(0)")
            p("s_barrier")
            p.add(interleave(M[bp:], self.reads(par ^ 1, 0) + tail, [1 if big else 2] * nm))
            par ^= 1
        self.loop_end(p, c, L, E, nsteps)
    def loop_end(self, p, c, L, E, nsteps):
        p(f"s_cbranch_scc1 {L}")
        if E:
            Lo = c.lab("gev")
            p(f"s_cmp_lg_u32 s{S_CNT}, 0\ns_cbranch_scc1 {Lo}")
            def ool(q):
                q.label(Lo)
                ts = sorted(E)
                for i, t in enumerate(ts):
                    Ln = c.lab("gen")
                    if i < len(ts) - 1: q(f"s_cmp_eq_u32 s{S_CNT}, {nsteps - t}\ns_cbranch_scc0 {Ln}")
                    for f in E[t]: f(q)
                    q(f"s_branch {L}")
                    if i < len(ts) - 1: q.label(Ln)
            c.ool.append(ool)
    def dma_atoms(self, c):
        if c.opt.get('nodma'): return ["\n".join(slot_adv_dma())]
        ld = self.bflag(c)
        nA, nB = self.nA, self.nB
        D = []
        if self.rotated(c):
            A = [f"s_add_u32 m0, s{S_DMA}, s{S_OFFS[i]}\nbuffer_load_dwordx4 v{V_AD + i}, s[{S_A}:{S_A+3}], s{S_SO[0]} offen {self.aflag(c)} lds" for i in range(nA)]
            B = [f"s_add_u32 m0, s{S_DMA}, s{S_OFFS[nA + i]}\nbuffer_load_dwordx4 v{V_AD + nA + i}, s[{S_B}:{S_B+3}], s{S_SO[1]} offen {ld} lds" for i in range(nB)]
            D = [B[0], A[0]] + spread(A[1:], B[1:])
            nA = nB = 0
        if nA and c.opt.get('ilv', 0):
            A = [f"s_add_u32 m0, s92, {1024 * i}\nbuffer_load_dwordx4 v{V_AD + i}, s[{S_A}:{S_A+3}], s{S_SO[0]} offen {self.aflag(c)} lds" for i in range(nA)]
            B = [f"s_add_u32 m0, s93, {1024 * i}\nbuffer_load_dwordx4 v{V_AD + nA + i}, s[{S_B}:{S_B+3}], s{S_SO[1]} offen {ld} lds" for i in range(nB)]
            B += self.dma_extra(c)
            D = spread(A, B) if len(A) >= len(B) else spread(B, A)
            D[0] = f"s_add_u32 s92, s{S_DMA}, s{S_LD[0]}\ns_add_u32 s93, s{S_DMA}, s{S_LD[1]}\n" + D[0]
            nA = nB = 0
        elif nA: D = self.dma_extra(c)
        for i in range(nA):
            D.append((f"s_add_u32 m0, s{S_DMA}, s{S_LD[0]}" if i == 0 else "s_add_u32 m0, m0, 1024") +
                     f"\nbuffer_load_dwordx4 v{V_AD + i}, s[{S_A}:{S_A+3}], s{S_SO[0]} offen {self.aflag(c)} lds")
        for i in range(nB):
            D.append((f"s_add_u32 m0, s{S_DMA}, s{S_LD[1]}" if i == 0 else "s_add_u32 m0, m0, 1024") +
                     f"\nbuffer_load_dwordx4 v{V_AD + nA + i}, s[{S_B}:{S_B+3}], s{S_SO[1]} offen {ld} lds")
        t = []
        if not c.opt.get('step0'):
            t += [f"s_add_u32 s{S_SO[0]}, s{S_SO[0]}, {self.stepA}", f"s_add_u32 s{S_SO[1]}, s{S_SO[1]}, {self.stepB}"]
        D[-1] += "\n" + "\n".join(t + slot_adv_dma())
        return D
    def dma_part(self, c, k, slot):
        n0, n, r, fl, st = ((0, self.nA, S_A, self.aflag(c), self.stepA), (self.nA, self.nB, S_B, c.opt.get('ldflag', ''), self.stepB))[k]
        D = [(f"s_add_u32 m0, s{slot}, s{S_LD[k]}" if i == 0 else "s_add_u32 m0, m0, 1024") +
             f"\nbuffer_load_dwordx4 v{V_AD + n0 + i}, s[{r}:{r+3}], s{S_SO[k]} offen {fl} lds" for i in range(n)]
        D[-1] += f"\ns_add_u32 s{S_SO[k]}, s{S_SO[k]}, {st}"
        return D
    def aflag(self, c): return c.opt.get('hoflag', '')
    def rotated(self, c): return False
    def dma_extra(self, c): return []
    def skip_stages(self, p, c, n):
        p(f"s_add_u32 s{S_SO[0]}, s{S_SO[0]}, {n * self.stepA}\ns_add_u32 s{S_SO[1]}, s{S_SO[1]}, {n * self.stepB}")
    def bflag(self, c): return c.opt.get('ldflag', '')
    @property
    def nd(self): return self.nA + self.nB
    def h_post(self, p, c, t): pass
    def h_poll(self, c, t): return None
    def h_pre(self, p, c, t): pass
    def h_mix(self, a, c, t): pass
    def h_extra(self, p, c, t): return 0
    def h_tail(self, c): return []
    h_steps = ()
    def h_body(self, p, c, nxt, skip0=False):
        n = self.nsteps
        special = set(self.h_steps) | {n - 2, n - 1}
        if skip0 or self.xbar or getattr(self, 'first_extra', 0): special.add(0)
        pollstep = None
        real_nxt = nxt
        if nxt is not None and (nxt.exposed or nxt.local): nxt = None
        if nxt is not None and nxt.poll and c.opt.get('persist'):
            pollstep = n - 2 if nxt.late else n - 3
            special.add(pollstep)
        hs = self.host.hsteps if self.host else 0
        if self.host and self.host.final: special |= {hs - 1, hs}
        def step(t, par=None):
            if t is not None and t < hs: par = t % 2
            ex = 0
            noex = t is None or c.opt.get('noextra')
            P1 = None
            if t is not None: P1 = nxt.poll(c) if t == pollstep else self.h_poll(c, t)
            if P1: P1.issue1(p)
            if not noex: self.h_pre(p, c, t)
            if t == n - 2 and n >= 16 and c.opt.get('cpf3', 1) and not P1: code_prefetch(p, c, True)
            if t == n - 1 and n >= 16 and c.opt.get('cpf3', 1) and self.h_poll(c, n - 2): code_prefetch(p, c, True)
            D = []; nd = 0
            if t == 0 and self.xbar: p("s_barrier")
            if t is None or t <= n - 3:
                nd = self.nd
                if not (t == 0 and skip0): D = self.dma_atoms(c)
                if par is not None and not (self.host.final and t == hs - 1):
                    D = [self.host.kv_atom(c, S_DMA)] + D; nd += 1
            else:
                if t == n - 2: D = self.h_tail(c)
                if nxt is not None:
                    if t == (n - 1 if nxt.late else n - 2):
                        nxt.h_setup(p, c)
                        nxt.h_post_dep(p, c)
                    if t == (n - 1 if nxt.late else n - 2) or not nxt.defer1: D += nxt.dma_atoms(c)
                nd = 0 if (nxt is not None and nxt.late) else nvm(D)
            a = Atoms()
            if not noex: self.h_mix(a, c, t)
            if par is not None: self.host.step(p, c, par, D + a.L, t == hs - 1)
            else: p.add(spread(D, a.L) if D else a.L)
            if not noex: ex = self.h_extra(p, c, t)
            if self.host and self.host.final and t == hs: ex += self.host.finish(p, c)
            if t == 0: ex += getattr(self, 'first_extra', 0)
            p(f"s_waitcnt vmcnt({nd + ex})" + (" lgkmcnt(0)" if par is not None else ""))
            if P1: P1.check1(p)
            if not noex: self.h_post(p, c, t)
            if t == n - 1 and nxt is not None and getattr(nxt, 'adv', 0) == 8192 and not self.host: nxt.presetup(p, c)
            p("s_barrier")
            hstep_stamp(p, c)
        t = 0
        while t < n:
            if t in special:
                step(t); t += 1; continue
            e = t
            while e not in special: e += 1
            if t < hs:
                assert e <= hs and (e - t) % 2 == 0
                p(f"s_mov_b32 s{S_CNT}, {(e - t) // 2}")
                L = c.lab("hl")
                p.label(L)
                step(None, t % 2); step(None, (t + 1) % 2)
                p(f"s_sub_u32 s{S_CNT}, s{S_CNT}, 1\ns_cmp_lg_u32 s{S_CNT}, 0\ns_cbranch_scc1 {L}")
            elif e - t == 1: step(None)
            else:
                p(f"s_mov_b32 s{S_CNT}, {e - t}")
                L = c.lab("hl")
                p.label(L)
                step(None)
                p(f"s_sub_u32 s{S_CNT}, s{S_CNT}, 1\ns_cmp_lg_u32 s{S_CNT}, 0\ns_cbranch_scc1 {L}")
            t = e
        if real_nxt is not None and real_nxt.local:
            real_nxt.presetup(p, c)
            self.h_final(p, c)
            p("s_barrier")
            hstep_stamp(p, c)
        if real_nxt is not None and real_nxt.exposed:
            real_nxt.h_setup(p, c)
            L = c.lab("xp")
            p("s_barrier")
            p(f"s_cmp_eq_u32 s{S_WM}, 0\ns_cbranch_scc0 {L}")
            P = real_nxt.poll(c); P.issue(p); P.check(p)
            p.label(L)
            p("s_barrier")
            hstep_stamp(p, c)
            p.add(real_nxt.dma_atoms(c))
            p("s_waitcnt vmcnt(0)\ns_barrier")
            hstep_stamp(p, c)
        return False

WS_FLAG = 43 * MB + 512 * 1024
F_QKV, F_W1, F_W2, F_W3, F_ATT, F_XCH, F_ST, F_CS = 0, 1, 2, 3, 4, 5, 6, 7
NKIND = 8

class Poll:
    def __init__(self, c, addr, load, test):
        self.c, self.addr, self.load, self.test = c, addr, load, test
    def issue(self, p):
        if not self.c.opt.get('persist'): return
        p(self.addr); p(self.load)
    def issue1(self, p):
        if not self.c.opt.get('persist'): return
        L = self.c.lab("p1")
        p(f"s_cmp_eq_u32 s{S_WM}, 0\ns_cbranch_scc0 {L}")
        self.issue(p)
        p.label(L)
    def check1(self, p):
        if not self.c.opt.get('persist'): return
        L = self.c.lab("c1")
        p(f"s_cmp_eq_u32 s{S_WM}, 0\ns_cbranch_scc0 {L}")
        self.check(p)
        p.label(L)
    def check(self, p):
        c = self.c
        if not c.opt.get('persist'): return
        L = c.lab("poll"); E = c.lab("pollx")
        p(f"s_mov_b32 s5, {c.opt.get('spinmax', 100000)}")
        p.label(L)
        p(self.test)
        p(f"""
        s_cbranch_vccz {E}
        s_sub_u32 s5, s5, 1
        s_cmp_eq_u32 s5, 0
        s_cbranch_scc1 {E}
        s_sleep {c.opt.get('spinsleep', 2)}
        """)
        p(self.load)
        p("s_waitcnt vmcnt(0)")
        p(f"s_branch {L}")
        p.label(E)
        if c.opt.get('spincnt'):
            c.npoll = getattr(c, 'npoll', 0) + 1
            p(f"s_sub_u32 s5, {c.opt.get('spinmax', 100000)}, s5\nv_writelane_b32 v153, s5, {c.npoll - 1}")

def poll_init(c):
    return Poll(c, f"v_min_u32 v136, {4 * NKIND - 1}, v0\nv_lshlrev_b32 v136, 2, v136",
        f"buffer_load_dword v137, v136, s[{S_DBG}:{S_DBG+3}], 0 offen sc1", "v_cmp_eq_u32 vcc, 0, v137")

def poll_flags(c, kind, row_sgpr, shift=0, nprod=16, halo=False, single=None, col_sgpr=None):
    lg = nprod.bit_length() - 1
    a = f"v_and_b32 v136, {nprod - 1}, v0\n"
    if single is not None:
        a = f"s_xor_b32 s3, s{single}, 1\nv_mov_b32 v136, s3\n"
    if halo and c.local:
        a = f"""
        s_lshr_b32 s3, s{row_sgpr}, 1
        s_and_b32 s4, s{row_sgpr}, 1
        s_lshl_b32 s4, s4, 1
        s_add_u32 s4, s4, s3
        s_add_u32 s4, s4, 7
        s_and_b32 s4, s4, 7
        v_mov_b32 v136, s3
        v_mov_b32 v138, s4
        v_cmp_gt_u32 vcc, 32, v0
        v_cndmask_b32 v138, v138, v136, vcc
        v_and_b32 v136, 31, v0
        v_lshl_add_u32 v136, v138, 5, v136
        """
    elif halo:
        a += f"""
        v_lshrrev_b32 v138, 4, v0
        v_min_u32 v138, 2, v138
        s_add_u32 s3, s{row_sgpr}, 15
        v_add_u32 v138, s3, v138
        v_and_b32 v138, 15, v138
        v_lshl_add_u32 v136, v138, 4, v136
        """
    else:
        if col_sgpr is not None: a += f"v_and_b32 v138, 15, v0\nv_lshl_add_u32 v138, v138, 4, s{col_sgpr}\n"
        a += f"""
        s_lshr_b32 s3, s{row_sgpr}, {shift}
        s_lshl_b32 s3, s3, {lg}
        v_add_u32 v136, s3, v136
        """
        if col_sgpr is not None: a += "v_cmp_gt_u32 vcc, 32, v0\nv_cndmask_b32 v136, v138, v136, vcc\n"
    a += f"v_lshlrev_b32 v136, 7, v136\ns_mov_b32 s{S_POLL}, {WS_FLAG + kind * 32768}"
    return Poll(c, a, f"buffer_load_dwordx4 v[140:143], v136, s[{S_WS}:{S_WS+3}], s{S_POLL} offen sc1",
                "v_min3_u32 v137, v140, v141, v142\nv_min_u32 v137, v137, v143\nv_cmp_eq_u32 vcc, 0, v137")

def own_flags(p, c):
    if not c.opt.get('persist'): return
    L = c.lab("zf")
    p(f"""
    s_cmp_lt_u32 s2, {NKIND}
    s_cbranch_scc0 {L}
    s_lshl_b32 s4, s2, 2
    s_add_u32 s4, s4, s{S_WID}
    s_lshl_b32 s3, s4, 13
    s_add_u32 s3, s3, {WS_FLAG}
    v_lshlrev_b32 v136, 7, v0
    v_mov_b32 v137, 0
    v_mov_b32 v140, 0
    v_mov_b32 v141, 0
    v_mov_b32 v142, 0
    v_mov_b32 v143, 0
    buffer_store_dwordx4 v[140:143], v136, s[{S_WS}:{S_WS+3}], s3 offen sc1
    s_lshl_b32 s4, s4, 2
    v_mov_b32 v138, 1
    """)
    srd(p, S_AUX, ptr('dbg'), 256)
    p(f"""
    s_waitcnt vmcnt(0)
    s_mov_b64 exec, 1
    buffer_store_dword v138, v137, s[{S_AUX}:{S_AUX+3}], s4 offen sc1
    s_mov_b64 exec, -1
    """)
    p.label(L)

def own_offsets(p, c):
    if not c.opt.get('persist'): return
    for k, row, idx, lg in ((F_QKV, S_HEAD, S_QB, 3) if c.local else (F_QKV, S_NT3, S_MT3, 4),
                            (F_W1, S_QB, S_HEAD, 5) if c.local else (F_W1, S_MT3, S_NT3, 4) if c.merged else (F_W1, S_MT2, S_NT2, 4),
                            (F_W2, S_MT2, S_NT2, 4), (F_W3, S_MT3, S_NT3, 4),
                            (F_ATT, S_QB, S_HEAD, 5), (F_XCH, S_MT2, S_NT2, 4), (F_ST, S_MT3, S_NT3, 4), (F_CS, S_NT3, S_MT3, 4)):
        p(f"""
        s_lshl_b32 s3, s{row}, {lg}
        s_add_u32 s3, s3, s{idx}
        s_lshl_b32 s3, s3, 7
        s_add_u32 s{S_FL + k}, s3, {WS_FLAG + k * 32768}
        """)

def publish(p, c, kind, all4, v=136):
    if not c.opt.get('persist'): return
    W = f"s[{S_WS}:{S_WS+3}]"
    if all4:
        L = c.lab("pub")
        p(f"s_cmp_eq_u32 s{S_WID}, 0\ns_cbranch_scc0 {L}")
        p(f"v_lshlrev_b32 v{v}, 2, v0\nv_mov_b32 v{v+1}, 1\ns_mov_b64 exec, 15")
        p(f"buffer_store_dword v{v+1}, v{v}, {W}, s{S_FL + kind} offen sc1")
        p("s_mov_b64 exec, -1")
        p.label(L)
    else:
        p(f"s_lshl_b32 s3, s{S_WID}, 2\nv_mov_b32 v{v}, s3\nv_mov_b32 v{v+1}, 1\ns_mov_b64 exec, 1")
        p(f"buffer_store_dword v{v+1}, v{v}, {W}, s{S_FL + kind} offen sc1")
        p("s_mov_b64 exec, -1")

def gen_kernel(name, tasks, opt):
    c = Ctx(name, opt)
    c.ool = []
    c.stampv = 24
    c.merged = getattr(tasks[0], 'NT', 0) == 8
    c.local = c.merged and tasks[0].nA == 8
    for i, T in enumerate(tasks): T.nxt = tasks[i + 1] if i + 1 < len(tasks) else None
    for T in tasks:
        if hasattr(T, 'link'): T.link()
    p = Prog()
    def T(k):
        if opt.get('sstamp'): p(f"s_memrealtime s[{96 + 0}:{97}]\ns_waitcnt lgkmcnt(0)\nv_writelane_b32 v153, s96, {k}")
    p(f"""
    s_cmp_ge_u32 s2, 256
    s_cbranch_scc1 {name}_end
    """)
    T(0)
    if opt.get('entry'): p("s_memrealtime s[96:97]")
    p(f"""
    s_load_dwordx16 s[{S_PTR}:{S_PTR+15}], s[0:1], 0
    s_load_dwordx8 s[{S_PTR+16}:{S_PTR+23}], s[0:1], 64
    s_lshr_b32 s{S_IDX}, s2, 3
    """)
    code_prefetch(p, c)
    p(f"""
    v_lshrrev_b32 v1, 6, v0
    v_and_b32 v0, 63, v0
    v_readfirstlane_b32 s{S_WID}, v1
    v_lshlrev_b32 v{V_L16}, 4, v0
    s_and_b32 s{S_XCD}, s2, 7
    s_mov_b32 s{S_RD}, 0
    s_mov_b32 s{S_DMA}, 0
    """)
    tile_map(p, 3, S_MT3, S_NT3)
    ids = f"""
    s_mov_b32 s{S_NEG}, {-(NSLOT - 1) * SLOT & 0xffffffff}
    s_and_b32 s3, s{S_XCD}, 3
    s_lshl_b32 s3, s3, 2
    s_and_b32 s4, s{S_IDX}, 3
    s_add_u32 s{S_MT2}, s3, s4
    s_lshr_b32 s3, s{S_IDX}, 2
    s_lshl_b32 s3, s3, 1
    s_lshr_b32 s4, s{S_XCD}, 2
    s_add_u32 s{S_NT2}, s3, s4
    s_lshl_b32 s3, s{S_NT3}, 1
    s_and_b32 s4, s{S_IDX}, 1
    s_add_u32 s{S_HEAD}, s3, s4
    s_lshr_b32 s{S_QB}, s{S_MT3}, 1
    s_lshl_b32 s3, s{S_QB}, 3
    s_add_u32 s{S_BLK}, s3, s{S_WID}
    """
    T0 = tasks[0]
    lazy = hasattr(T0, 'h_first')
    ids_first = not lazy or getattr(T0, 'NT', 0) == 2 or c.local
    if ids_first: p(ids); ids = ''
    p(f"""
    s_cmp_lt_u32 s{S_WID}, 4
    s_cbranch_scc1 {name}_G
    """)
    p(f"s_sub_u32 s{S_WM}, s{S_WID}, 4")
    if lazy: T0.h_first(p, c)
    T0.h_setup(p, c, first=True)
    T(1)
    if not lazy: srd(p, S_WS, ptr('ws'), WS_SIZE)
    T0.h_post_dep(p, c)
    p.add(T0.dma_atoms(c))
    T(2)
    D1 = T0.dma_atoms(c)
    p.add(D1)
    ex = 0
    T(3)
    if lazy:
        p(ids)
        srd(p, S_WS, ptr('ws'), WS_SIZE)
    srd(p, S_DBG, ptr('dbg'), 256)
    T0.first_extra = ex
    p(f"s_waitcnt vmcnt({nvm(D1) + ex})")
    T(4)
    p("s_barrier")
    T(5)
    p("s_mov_b32 s62, 0")
    hstep_stamp(p, c)
    skip0 = False
    for i, Tk in enumerate(tasks):
        nxt = tasks[i + 1] if i + 1 < len(tasks) else None
        skip0 = Tk.h_body(p, c, nxt, skip0)
        Tk.h_epi(p, c)
    T(6)
    if opt.get('sstamp') or opt.get('spincnt'): p("v_mov_b32 v150, v153")
    hstep_dump(p, c)
    p("s_endpgm")
    p.label(f"{name}_G")
    tlb_warm(p, c)
    srd(p, S_WS, ptr('ws'), WS_SIZE)
    own_flags(p, c)
    if lazy:
        T0.g_first(p, c)
        p(ids)
    p(f"""
    s_and_b32 s{S_WM}, s{S_WID}, 1
    s_lshr_b32 s{S_WN}, s{S_WID}, 1
    """)
    c.ST(p, 'g')
    if opt.get('entry'):
        p(f"v_mov_b32 v140, s96\nv_mov_b32 v142, 0\ns_mov_b64 exec, 1\nbuffer_store_dword v140, v142, s[{S_WS}:{S_WS+3}], s60 offen offset:248\ns_mov_b64 exec, -1")
    own_offsets(p, c)
    if opt.get('gprio'): p(f"s_setprio {opt['gprio']}")
    for i, Tk in enumerate(tasks):
        c.stampv = 24 if getattr(Tk, 'NT', 0) == 8 else 140
        if i == 0 and hasattr(Tk, 'g_pre_early'): Tk.g_pre_early(p, c)
        if i == 0: Tk.early(p, c)
        Tk.g_setup(p, c)
        if i == 0: p("s_waitcnt lgkmcnt(0)\ns_barrier")
        c.ST(p, 'g')
        Tk.g_body(p, c, tasks[i - 1] if i > 0 else None)
        c.ST(p, 'g')
        if i + 1 < len(tasks): tasks[i + 1].early(p, c)
        Tk.g_epi(p, c)
        if i + 1 < len(tasks) and (tasks[i + 1].xbar or tasks[i + 1].exposed): p("s_barrier")
        if hasattr(Tk, 'g_after_bar'): Tk.g_after_bar(p, c)
    c.ST(p, 'g')
    if opt.get('stamp'):
        p("s_waitcnt vmcnt(0)")
        c.ST(p, 'g')
    p("s_endpgm")
    for f in c.ool: f(p)
    p.label(f"{name}_end")
    p("s_endpgm")
    p.finish(verbose=opt.get('verbose', False))
    return p, dict(grid=256, block=512, lds=LDS_BYTES, nstamp=c.stamp_slot['g'])

def g_prefetch(p, c, items, fl='', vdst=None):
    if not c.opt.get('pf', 1) or not items: return 0
    p(f"""
    s_lshl_b32 s3, s2, 2
    s_and_b32 s4, s{S_WID}, 3
    s_add_u32 s3, s3, s4
    s_mov_b32 m0, {L_DUMMY}
    """)
    for nm, tot, m0_, n in items:
        srd(p, S_AUX, ptr(nm), tot)
        p(f"s_mul_i32 s5, s3, {n * 1024}")
        if m0_: p(f"s_add_u32 s5, s5, {m0_ * MB}")
        for i in range(n):
            if vdst is None: p(f"buffer_load_dwordx4 v1, s[{S_AUX}:{S_AUX+3}], s5 offen {fl} lds")
            else:
                p(f"buffer_load_dwordx4 {vr(vdst, 4)}, v1, s[{S_AUX}:{S_AUX+3}], s5 offen {fl}"); vdst += 4
            if i < n - 1: p(f"s_add_u32 s5, s5, 1024")
    return sum(x[3] for x in items)

def code_prefetch(p, c, again=False):
    if not c.opt.get('cpf', 1) or (again and not c.opt.get('cpf2', 1)): return
    L = c.lab("pc")
    p("s_getpc_b64 s[4:5]")
    p.label(L)
    p(f"""
    s_sub_u32 s4, s4, {L}-{c.name}
    s_subb_u32 s5, s5, 0
    s_lshl_b32 s3, s{S_IDX}, 11
    """)
    if again: p(f"s_and_b32 s6, s{S_WID}, 3\ns_lshl_b32 s6, s6, 9\ns_add_u32 s3, s3, s6\nv_lshl_add_u32 v136, v0, 3, s3")
    else: p("v_lshl_add_u32 v136, v0, 2, s3")
    p(f"""
    s_mov_b32 s3, {c.name}_end-{c.name}
    v_min_u32 v136, s3, v136
    v_mov_b32 v137, s5
    v_add_co_u32 v136, vcc, s4, v136
    v_addc_co_u32 v137, vcc, 0, v137, vcc
    global_load_dword v138, v[136:137], off
    """)

def tlb_warm(p, c):
    if not c.opt.get('tlb', 0): return
    g = c.opt.get('tlbg', 2 * MB)
    def pages(nm, size): return [(nm, o) for o in range(0, size, g)]
    L = [pages('x', 4 * MB) + pages('wqkv', 6 * MB) + pages('gate', 1) + pages('w1', 2 * MB) + pages('dbg', 1) + pages('out', 4 * MB),
         pages('w2', 2 * MB) + pages('w3', 7 * MB) + pages('w4', 7 * MB) + pages('wo', 2 * MB)]
    ws = pages('ws', WS_SIZE)
    L += [ws[:len(ws) // 2], ws[len(ws) // 2:]]
    E = c.lab("tlbe")
    p("s_waitcnt lgkmcnt(0)")
    for w in range(4):
        N = c.lab("tlb")
        if w < 3: p(f"s_cmp_eq_u32 s{S_WID}, {w}\ns_cbranch_scc0 {N}")
        for nm, o in L[w]:
            if o: p(f"s_mov_b32 s3, {o}")
            p.I.append(Inst("s_nop 0"))
            p.I[-1].text = f"s_load_dword s98, s[{ptr(nm)}:{ptr(nm)+1}], " + ("s3" if o else "0")
        if w < 3:
            p(f"s_branch {E}")
            p.label(N)
    p.label(E)
    c.tlb_pending = True

def rot_pieces(p, n, first, rank_code, lds_base, emit):
    p(rank_code)
    for k in range(n):
        if k:
            p(f"s_add_u32 s6, s6, 1\ns_cmp_eq_u32 s6, {n}\ns_cselect_b32 s6, 0, s6")
        p(f"s_lshl_b32 s7, s6, 10\ns_add_u32 s{S_OFFS[first + k]}, s7, s{lds_base}")
        emit(k)
```

```python
from g1 import *
L_MU2 = L_X + 0
S_HB, S_NB = 63, 100
class G2(Gemm):
    NT = 8; KS = 2; nsteps = 16; nA = 8; nB = 3; fr0 = 32
    stepA = 128; stepB = 64 * 6144
    addr_regs = [8, 10, 11, 12, 13, 9]
    pubkind = F_W1
    chain = True
    h_steps = (0, 1, 2, 3, 4, 5, 6)
    def swap(self, n): return n in (4, 5)
    def xaddr(self, kk, m): return (8 + kk, m * 2048)
    def waddr(self, kk, n, j):
        if n < 6: return (10 + n % 2, (32 * kk + 4 * j) * 192 + (n // 2) * 64)
        return (12 + n % 2, (32 * kk + 4 * j) * 64)
    def aflag(self, c): return ''
    @property
    def nd(self): return 13 if self.coop else 12
    coop = True
    def dma_extra(self, c):
        return [f"s_add_u32 m0, s{S_DMA}, s50\nbuffer_load_dwordx4 v43, s[{S_B2}:{S_B2+3}], s53 offen lds\ns_add_u32 s53, s53, {64 * 2048}"] + \
               ([f"s_mov_b32 m0, {L_DUMMY}\nbuffer_load_dwordx4 v44, s[{S_B}:{S_B+3}], s{S_SO[1]} offen lds"] if self.coop else [])
    def h_first(self, p, c): pass
    def h_setup(self, p, c, first=False):
        p(f"""
        v_lshrrev_b32 v{T0}, 3, v0
        v_and_b32 v{T0+1}, 7, v0
        s_lshl_b32 s3, s{S_QB}, 8
        s_lshl_b32 s4, s{S_WM}, 6
        s_add_u32 s3, s3, s4
        v_lshrrev_b32 v{T0+2}, 1, v{T0}
        v_xor_b32 v{T0+2}, v{T0+2}, v{T0+1}
        v_add_u32 v{T0+3}, s3, v{T0}
        v_lshlrev_b32 v{T0+3}, 11, v{T0+3}
        v_lshl_add_u32 v32, v{T0+2}, 4, v{T0+3}
        v_xor_b32 v{T0+2}, 64, v32
        """)
        for i in range(1, 8): p(f"v_add_u32 v{32 + i}, {i * 8 * 2048}, v{32 if i % 2 == 0 else T0 + 2}")
        p(f"""
        s_mul_i32 s3, s{S_WM}, 192
        s_lshl_b32 s4, s{S_HEAD}, 6
        v_and_b32 v{T0+5}, 3, v0
        """)
        for i in range(3):
            p(f"""
            v_add_u32 v{T0}, s3, v0
            v_add_u32 v{T0}, {64 * i}, v{T0}
            v_mul_u32_u24 v{T0+1}, 0x1556, v{T0}
            v_lshrrev_b32 v{T0+1}, 16, v{T0+1}
            v_mul_u32_u24 v{T0+2}, 12, v{T0+1}
            v_sub_u32 v{T0+2}, v{T0}, v{T0+2}
            v_lshrrev_b32 v{T0+3}, 2, v{T0+2}
            v_lshrrev_b32 v{T0+4}, 2, v{T0+1}
            v_and_b32 v{T0+4}, 2, v{T0+4}
            v_xor_b32 v{T0+2}, v{T0+5}, v{T0+4}
            v_mul_u32_u24 v{T0+1}, 6144, v{T0+1}
            v_lshl_add_u32 v{T0+1}, v{T0+3}, 11, v{T0+1}
            v_lshl_add_u32 v{T0+1}, v{T0+2}, 4, v{T0+1}
            v_add_u32 v{40 + i}, s4, v{T0+1}
            """)
        p(f"""
        v_lshrrev_b32 v{T0}, 2, v0
        v_lshrrev_b32 v{T0+1}, 4, v0
        v_and_b32 v{T0+1}, 2, v{T0+1}
        v_xor_b32 v{T0+1}, v{T0+5}, v{T0+1}
        s_lshl_b32 s3, s{S_WM}, 4
        v_add_u32 v{T0}, s3, v{T0}
        v_lshlrev_b32 v{T0}, 11, v{T0}
        v_lshl_add_u32 v{T0}, v{T0+1}, 4, v{T0}
        s_add_u32 s{S_HB}, s{S_HEAD}, {c.opt.get('hbshift', 2)}
        s_and_b32 s{S_HB}, s{S_HB}, 31
        s_lshr_b32 s{S_NB}, s{S_HB}, 1
        s_lshl_b32 s4, s{S_HB}, 6
        v_add_u32 v43, s4, v{T0}
        s_lshl_b32 s{S_LD[0]}, s{S_WM}, 13
        s_mul_i32 s{S_LD[1]}, s{S_WM}, 3072
        s_add_u32 s{S_LD[1]}, s{S_LD[1]}, 32768
        s_lshl_b32 s50, s{S_WM}, 10
        s_add_u32 s50, s50, 45056
        s_mov_b32 s{S_SO[0]}, 0
        s_mov_b32 s{S_SO[1]}, 0
        s_mov_b32 s53, 0
        """)
        srd(p, S_A, ptr('x'), 2048 * 2048)
        srd(p, S_B, ptr('wqkv'), 1024 * 6144)
        srd(p, S_B2, ptr('w1'), 1024 * 2048)
        if self.coop:
            p(f"""
            s_or_b32 s4, s{S_NT3}, 3
            s_lshr_b32 s3, s{ptr('wqkv')}, 7
            s_add_u32 s3, s3, s4
            s_and_b32 s3, s3, 7
            s_lshl_b32 s4, s4, 7
            s_lshr_b32 s5, s{S_IDX}, 3
            s_lshl_b32 s6, s5, 11
            s_add_u32 s4, s4, s6
            s_and_b32 s6, s{S_IDX}, 7
            s_lshl_b32 s6, s6, 2
            s_add_u32 s6, s6, s{S_WM}
            s_mul_i32 s6, s6, {2 * 6144}
            s_add_u32 s4, s4, s6
            s_cmp_eq_u32 s3, 3
            s_cselect_b32 s3, 16, 0
            s_cmp_eq_u32 s5, 3
            s_cselect_b32 s3, 0, s3
            v_lshrrev_b32 v{T0}, 3, v0
            v_mul_u32_u24 v{T0}, 6144, v{T0}
            v_and_b32 v{T0+1}, 7, v0
            v_lshl_add_u32 v{T0}, v{T0+1}, 4, v{T0}
            v_add_u32 v{T0}, s4, v{T0}
            v_mov_b32 v{T0+1}, 0x40000000
            v_cmp_gt_u32 vcc, s3, v0
            v_cndmask_b32 v44, v{T0+1}, v{T0}, vcc
            """)
    def pf_list(self, c): return [('wqkv', 6 * MB, i, 1) for i in range(6)]
    def g_first(self, p, c):
        W1F.g_first(self, p, c, False)
        srd(p, S_B, ptr('w1'), 1024 * 2048)
        p(f"""
        v_lshrrev_b32 v{T0}, 3, v0
        v_and_b32 v{T0+1}, 7, v0
        v_lshlrev_b32 v{T0}, 11, v{T0}
        v_lshl_add_u32 v{T0}, v{T0+1}, 4, v{T0}
        s_lshl_b32 s3, s{S_MT3}, 2
        s_add_u32 s3, s3, s{S_WID}
        s_lshl_b32 s3, s3, 15
        s_lshl_b32 s4, s{S_NT3}, 7
        s_add_u32 s3, s3, s4
        s_add_u32 s4, s3, {8 * 2048}
        buffer_load_dwordx4 v[88:91], v{T0}, s[{S_B}:{S_B+3}], s3 offen
        buffer_load_dwordx4 v[92:95], v{T0}, s[{S_B}:{S_B+3}], s4 offen
        """)
        g_prefetch(p, c, self.pf_list(c)[:c.opt.get('pf0', 1)])
    def early(self, p, c):
        stats_code(p, c, 64, 80, S_WID)
        for d in range(4):
            p(f"""
            v_lshlrev_b32 v{96 + 2 * d}, 16, v{88 + d}
            v_and_b32 v{97 + 2 * d}, 0xffff0000, v{88 + d}
            v_lshlrev_b32 v104, 16, v{92 + d}
            v_and_b32 v105, 0xffff0000, v{92 + d}
            v_add_f32 v{96 + 2 * d}, v{96 + 2 * d}, v104
            v_add_f32 v{97 + 2 * d}, v{97 + 2 * d}, v105
            """)
        for i in range(4): p(f"v_permlane32_swap_b32 v{96 + i}, v{100 + i}")
        for i in range(4): p(f"v_add_f32 v{96 + i}, v{96 + i}, v{100 + i}")
        for i in range(2): p(f"v_permlane16_swap_b32 v{96 + i}, v{98 + i}")
        for i in range(2): p(f"v_add_f32 v{96 + i}, v{96 + i}, v{98 + i}")
        for i in range(2): p(f"v_add_f32_dpp v{96 + i}, v{96 + i}, v{96 + i} row_ror:8 row_mask:0xf bank_mask:0xf")
        p(f"""
        v_and_b32 v104, 7, v0
        v_lshrrev_b32 v105, 4, v0
        v_lshlrev_b32 v104, 5, v104
        v_lshl_add_u32 v104, v105, 3, v104
        s_lshl_b32 s3, s{S_NT3}, 4
        s_add_u32 s3, s3, s{S_MT3}
        s_lshl_b32 s3, s3, 2
        s_add_u32 s3, s3, s{S_WID}
        s_lshl_b32 s3, s3, 8
        s_add_u32 s3, s3, {WS_CS1}
        buffer_store_dwordx2 v[96:97], v104, s[{S_WS}:{S_WS+3}], s3 offen {c.opt.get('stflag', '')}
        """)
    def g_pre_early(self, p, c):
        U = 16
        lane_fields(p, U, U + 1, U + 2, U + 3)
        p(f"""
        v_lshrrev_b32 v{U+4}, 1, v{U}
        v_xor_b32 v{U+4}, v{U+4}, v{U+1}
        v_lshlrev_b32 v{U+4}, 4, v{U+4}
        v_lshl_or_b32 v{U+4}, v{U}, 7, v{U+4}
        s_lshl_b32 s3, s{S_WID}, 13
        v_add_u32 v8, s3, v{U+4}
        v_xor_b32 v9, 64, v8
        v_and_b32 v{U+5}, 1, v{U+1}
        v_lshlrev_b32 v{U+5}, 5, v{U+5}
        v_lshl_add_u32 v{U+5}, v{U+3}, 3, v{U+5}
        v_lshl_add_u32 v{U+4}, v{U+1}, 3, v{U+2}
        v_mul_u32_u24 v{U+6}, 192, v{U+4}
        v_add_u32 v{U+6}, v{U+6}, v{U+5}
        v_add_u32 v10, 32768, v{U+6}
        v_xor_b32 v11, 32, v10
        v_lshl_add_u32 v{U+6}, v{U+4}, 6, v{U+5}
        v_add_u32 v12, 45056, v{U+6}
        v_xor_b32 v13, 32, v12
        """)
        self.g_zero(p)
    def g_setup(self, p, c): pass
    def g_sites(self, c):
        def pub(p):
            p("s_waitcnt vmcnt(0)")
            publish(p, c, F_ST, False, 28)
        return {c.opt.get('stpub', 4): pub} if c.opt.get('persist') else {}
    def h_poll(self, c, t):
        if t == 2: return poll_init(c)
        if t == 14: return poll_flags(c, F_ST, S_QB, nprod=32, col_sgpr=S_NB)
    def h_extra(self, p, c, t):
        W = f"s[{S_WS}:{S_WS+3}]"
        ho = c.opt.get('hoflag', '')
        if t <= 6:
            rest = self.pf_list(c)[c.opt.get('pf0', 1):]
            k = c.opt.get('pfk', 1)
            return g_prefetch(p, c, rest[k * t:k * (t + 1)])
        if t == 15:
            p(f"""
            v_lshlrev_b32 v60, 2, v0
            s_lshl_b32 s3, s{S_QB}, 10
            s_lshl_b32 s4, s{S_WM}, 8
            s_add_u32 s3, s3, s4
            s_add_u32 s3, s3, {WS_ST1}
            s_add_u32 s5, s3, 8192
            s_add_u32 s4, s4, {L_MU2}
            v_add_u32 v58, s4, v60
            buffer_load_dword v59, v60, {W}, s3 offen {ho}
            buffer_load_dword v63, v60, {W}, s5 offen {ho}
            v_lshrrev_b32 v61, 2, v0
            v_and_b32 v62, 3, v0
            v_lshlrev_b32 v61, 8, v61
            v_lshl_add_u32 v61, v62, 4, v61
            s_lshl_b32 s3, s{S_NB}, 14
            s_lshl_b32 s4, s{S_WM}, 6
            s_add_u32 s3, s3, s4
            s_add_u32 s3, s3, {WS_CS1}
            """)
            for i in range(4):
                p(f"buffer_load_dwordx4 {vr(64 + 4 * i, 4)}, v61, {W}, s3 offen {ho}")
                if i < 3: p("s_add_u32 s3, s3, 4096")
            if c.opt.get('cs3at') == 15: self.npf += cs3_loads(p, c, S_MT2, S_NT2)
            return 6 + self.npf
        if t == 14 and not c.opt.get('post14', 0): return self.cold_loads(p, c)
        return 0
    def cold_loads(self, p, c):
        self.npf = cs3_loads(p, c) if c.opt.get('cs3') else 0
        if c.opt.get('cs3at') == 14: self.npf += cs3_loads(p, c, S_MT2, S_NT2)
        self.npf += g_prefetch(p, c, c.opt.get('g2pf', [('w2', 2 * MB, 0, 2)]), vdst=152)
        return self.npf
    def h_post(self, p, c, t):
        if t == 14 and c.opt.get('post14', 0): self.cold_loads(p, c)
    def h_final(self, p, c):
        p("ds_write_b32 v58, v63 offset:1024")
        G1.h_mix(self, p, c, 15)
        if c.opt.get('cs3'): cs3_math(p, c)
        if c.opt.get('cs3m'): cs3_math(p, c, S_MT2, S_NT2)
    def g_epi(self, p, c):
        st = c.opt.get('stflag', '')
        W = f"s[{S_WS}:{S_WS+3}]"
        R, G, U = 16, 17, 18
        p("s_setprio 2")
        lane_fields(p, R, G)
        p(f"""
        v_lshlrev_b32 v{U}, 9, v{G}
        v_lshl_or_b32 v8, v{R}, 4, v{U}
        v_and_b32 v{U+1}, 7, v{R}
        v_lshrrev_b32 v{U+2}, 3, v{R}
        v_lshl_or_b32 v{U}, v{U+2}, 8, v{U}
        v_lshl_or_b32 v9, v{U+1}, 4, v{U}
        s_add_u32 s{S_HB}, s{S_HEAD}, {c.opt.get('hbshift', 2)}
        s_and_b32 s{S_HB}, s{S_HB}, 31
        s_lshl_b32 s45, s{S_HB}, 10
        s_add_u32 s45, s45, {WS_HS}
        s_lshl_b32 s43, s{S_HEAD}, 18
        s_lshl_b32 s4, s{S_QB}, 15
        s_lshl_b32 s5, s{S_WID}, 13
        s_add_u32 s43, s43, s4
        s_add_u32 s43, s43, s5
        s_add_u32 s43, s43, {WS_KV}
        s_add_u32 s44, s43, 4096
        s_add_u32 s5, s5, s{S_RD}
        v_add_u32 v12, s5, v8
        v_add_u32 v13, s5, v9
        s_lshl_b32 s5, s{S_WID}, 12
        s_add_u32 s5, s5, s{S_RD}
        v_add_u32 v14, s5, v8
        s_mov_b32 s46, {hexf(QSCALE)}
        s_mov_b32 s47, {hexf(QSCALE)}
        s_and_b32 s3, s{S_HEAD}, 1
        s_lshl_b32 s3, s3, 7
        s_add_u32 s3, s3, {L_CS}
        v_lshl_add_u32 v10, v{G}, 4, s3
        s_lshl_b32 s3, s{S_WID}, 8
        s_add_u32 s3, s3, {L_MU2}
        v_lshl_add_u32 v11, v{R}, 2, s3
        """)
        t = 32
        S = []
        late = c.opt.get('kvlate', 0)
        def st_(x):
            if late: S.append(x)
            else: p(x)
        for m in range(4):
            a, b = self.acc(m, 2), self.acc(m, 3)
            for i, r in enumerate((a, a + 2, b, b + 2)): p(f"v_cvt_pk_bf16_f32 v{t + i}, v{r}, v{r + 1}")
            st_(f"buffer_store_dwordx4 {vr(t, 4)}, v9, {W}, s{43 + m // 2} offen offset:{(m % 2) * 128} {st}")
            p(f"ds_write_b128 v13, {vr(t, 4)} offset:{(m // 2) * 4096 + (m % 2) * 128}")
            t += 4
        for u in range(2):
            for nb in range(2):
                a = self.acc(2 * u, 4 + nb)
                for i in range(4): p(f"v_cvt_pk_bf16_f32 v{t + i}, v{a + 2 * i}, v{a + 2 * i + 1}")
                st_(f"buffer_store_dwordx4 {vr(t, 4)}, v8, {W}, s{43 + u} offen offset:{2048 + nb * 256} {st}")
                p(f"ds_write_b128 v12, {vr(t, 4)} offset:{u * 4096 + 2048 + nb * 256}")
                t += 4
        for m in range(4):
            a, b = self.acc(m, 0), self.acc(m, 1)
            for r in (a, a + 2, b, b + 2): p(f"v_pk_mul_f32 {vr(r, 2)}, {vr(r, 2)}, s[46:47]")
            for i, r in enumerate((a, a + 2, b, b + 2)): p(f"v_cvt_pk_bf16_f32 v{t + i}, v{r}, v{r + 1}")
            p(f"ds_write_b128 v14, {vr(t, 4)} offset:{32768 + (m // 2) * 2048 + (m % 2) * 256}")
            t += 4
        p.add(S[:2])
        p("s_waitcnt lgkmcnt(0)\ns_barrier")
        p("ds_read_b128 v[80:83], v10\nds_read_b128 v[84:87], v10 offset:64")
        for m in range(4):
            p(f"ds_read_b32 v{88 + 8 * m}, v11 offset:{64 * m}")
            p(f"ds_read_b32 v{89 + 8 * m}, v11 offset:{1024 + 64 * m}")
        p.add(S[2:])
        c.ST(p, 'g')
        for m in range(4): gelu_consts(p, 88 + 8 * m, False)
        p(f"""
        s_lshr_b32 s5, s{S_HB}, 3
        s_lshr_b32 s6, s5, 1
        s_add_u32 s6, s6, 1
        s_sub_u32 s7, 0, s6
        s_bitcmp1_b32 s5, 0
        s_cselect_b32 s6, s7, s6
        s_lshl_b32 s3, s{S_QB}, 8
        s_lshl_b32 s4, s{S_WID}, 6
        s_add_u32 s3, s3, s4
        s_add_u32 s6, s6, s3
        """)
        npub = c.opt.get('g1pub', 0)
        def pub():
            c.ST(p, 'g')
            p("s_waitcnt vmcnt(%d)" % (2 if c.opt.get('stamp') else 0))
            publish(p, c, F_QKV, False, 28)
            if not c.opt.get('gfirst'): p("s_setprio 0")
            c.ST(p, 'g')
        for mp in range(2):
            if mp == npub: pub()
            items = []
            for m in (2 * mp, 2 * mp + 1):
                for n in range(2):
                    for h in range(2): items.append((self.acc(m, 6 + n) + 2 * h, 80 + 4 * n + 2 * h, 88 + 8 * m))
            gelu_block(p, items, 128, c.opt.get('pk', 1))
            for m in (2 * mp, 2 * mp + 1):
                a, b = self.acc(m, 6), self.acc(m, 7)
                t = 160 + 4 * m
                if m == 0:
                    p(f"""
                    v_add_u32 v{U}, s6, v{R}
                    v_and_b32 v{U+1}, 15, v{U}
                    v_lshl_add_u32 v{U+1}, v{G}, 4, v{U+1}
                    v_lshlrev_b32 v{U+1}, 4, v{U+1}
                    v_ashrrev_i32 v{U+2}, 4, v{U}
                    v_lshl_add_u32 v{U+1}, v{U+2}, 15, v{U+1}
                    v_and_b32 v176, 0x3fffff, v{U+1}
                    v_add_u32 v177, 32768, v{U+1}
                    v_add_u32 v178, 65536, v{U+1}
                    v_add_u32 v179, 98304, v{U+1}
                    v_and_b32 v179, 0x3fffff, v179
                    v_cmp_le_i32 vcc, 0, v{U}
                    """)
                if m == 3: p(f"v_cmp_gt_i32 vcc, 2000, v{U}")
                for i, r in enumerate((a, a + 2, b, b + 2)): p(f"v_cvt_pk_bf16_f32 v{t + i}, v{r}, v{r + 1}")
                if m in (0, 3):
                    for i in range(4): p(f"v_cndmask_b32 v{t + i}, 0, v{t + i}, vcc")
        if npub == 2: pub()
        self.deferred = [f"buffer_store_dwordx4 {vr(160 + 4 * m, 4)}, v{176 + m}, {W}, s45 offen {st}" for m in range(4)]
        if not c.opt.get('hslate', 0): p.add(self.deferred); self.deferred = []
        p("s_setprio 0")

class G2N(G2):
    coop = False
```

```python
from mk import *
from attn import *
from g2 import *
from attn2 import *
from w4q import *
PF3 = ([('w2', 0, 2), ('w3', 0, 4)], [('w3', 4, 3), ('w4', 0, 1), ('w4', 3, 2)], [('w4', 1, 2), ('w4', 5, 2), ('wo', 0, 2)])
def P1(): return [[G1, Attn(0, (8, 12), True, pf=PF3[0]), W2, Attn(20, (8, 12), pf=PF3[1]), W3, Attn(40, (12, 12), pf=PF3[2]), W4(4), WO(4, True, 1)]]
def P2(Q=QKVG): return [[Q, W1, Attn(0, (8, 12), pf=PF3[0]), W2, Attn(20, (8, 12), pf=PF3[1]), W3, Attn(40, (12, 12), pf=PF3[2]), W4(4), WO(4, True, 1)]]
def P3(): return [[W1F, QKV2, W2X, Attn(0, (8, 12, 12), defer1=False, pf=[('w3', 0, 7), ('w4', 0, 1)]), W3,
                   Attn(32, (12, 8, 12), pf=[('w4', 3, 2), ('w4', 1, 2), ('w4', 5, 2), ('wo', 0, 2)]), W4(4), WO(4, True, 1)]]
def P4(G=G2, pf0=[('w3', 0, 4)], wo=(4, True, 1)): return [[G, Attn(0, (8, 12), local=True, pf=pf0), W2, Attn(20, (8, 12), pf=PF3[1]), W3, Attn(40, (12, 12), pf=PF3[2]), W4(wo[0]), WO(*wo)]]
def P5(): return [[G2, AttnH(0, (8, 12), local=True, pf=[('w3', 0, 4)]), W2, AttnH(20, (8, 12), pf=PF3[1]), W3, AttnH(40, (12, 12), pf=PF3[2]), W4(4), WO(4, True, 1)]]
PF4 = ([('w3', 0, 4)], [('w3', 4, 3), ('w4', 0, 3)], [('w4', 3, 4), ('wo', 0, 2)])
def P6(xw=1, xbar=True, ps=2, lead=1): return [[G2, Attn(0, (8, 12), local=True, pf=PF4[0]), W2, Attn(20, (8, 12), pf=PF4[1]), W3, Attn(40, (12, 12), pf=PF4[2]), W4Q(xw), WOQ(xw, xbar, ps, lead)]]
def P7(pf=([('w4', 0, 2)], [('w4', 2, 5)], [('wo', 0, 2)])): return [[G2, Attn(0, (8, 12), local=True, pf=pf[0]), W2, Attn(20, (8, 12), pf=pf[1]), W3E, Attn(40, (12, 12), pf=pf[2]), W4(4), WO(4, True, 1)]]
def P8(pf=([('w3', 0, 7)], [('w4', 0, 7)], [('wo', 0, 2)])): return [[G2, Attn(0, (8, 12), local=True, pf=pf[0]), W2C, Attn(20, (8, 12), pf=pf[1]), W3F, Attn(40, (12, 12), pf=pf[2]), W4(4), WO(4, True, 1)]]
def P9(xw=2, xbar=True, ps=1, lead=1, pf=([('w3', 0, 7)], [('w4', 0, 7)], [('wo', 0, 2)])): return [[G2, Attn(0, (8, 12), local=True, pf=pf[0]), W2C, Attn(20, (8, 12), pf=pf[1]), W3F, Attn(40, (12, 12), pf=pf[2]), W4Q(xw), WOQ(xw, xbar, ps, lead)]]
def PH(w=((8, 8), (8, 8), (8, 8)), h2=8, h4=8, pf=([('w4', 0, 3)], [('w4', 3, 4)], [('wo', 0, 2)])):
    b1 = sum(w[0]) + h2; b2 = b1 + sum(w[1])
    assert b2 + sum(w[2]) + h4 == 64
    return [[G2, AttnW(0, w[0], local=True, pf=pf[0], hosted=h2), W2, AttnW(b1, w[1], pf=pf[1], cont_in=h2 > 0), W3G,
             AttnW(b2, w[2], pf=pf[2], hosted=h4), W4(4), WO(4, True, 1)]]
P = P8
base = dict(stflag='sc1', hoflag='sc1', persist=1, spinsleep=4, xbf=1, g1pub=1, gfirst=1, cs3at='late')
base5 = dict(base, hslate=1, g1pub=1)
if __name__ == "__main__":
    make("p4a.s", P(), dict(base, stamp=1))
    make("p4b.s", P(), dict(base, hstamp=1))
    make("p4f.s", P(), dict(base, final=1))
    make("p4s.s", P(), dict(base, sstamp=1))
    make("p4m.s", P(), dict(base, hstamp=1, fine=1))
    make("p4c.s", P(), dict(base, spincnt=1))
```

```python
from fw import *

def lane_fields(p, r16=None, g=None, r4=None, c4=None):
    if r16 is not None: p(f"v_and_b32 v{r16}, 15, v0")
    if g is not None: p(f"v_lshrrev_b32 v{g}, 4, v0")
    if r4 is not None: p(f"v_bfe_u32 v{r4}, v0, 2, 2")
    if c4 is not None: p(f"v_and_b32 v{c4}, 3, v0")

T0 = 128

def h_xrows(p, regs, sub_off, S_MT):
    p(f"""
    v_lshrrev_b32 v{T0}, 3, v0
    v_and_b32 v{T0+1}, 7, v0
    s_lshl_b32 s3, s{S_MT}, 7
    s_lshl_b32 s4, s{S_WM}, 5
    s_add_u32 s3, s3, s4
    v_lshrrev_b32 v{T0+2}, 1, v{T0}
    v_xor_b32 v{T0+2}, v{T0+2}, v{T0+1}
    v_add_u32 v{T0+3}, s3, v{T0}
    v_lshlrev_b32 v{T0+3}, 11, v{T0+3}
    v_lshl_add_u32 v{regs[0]}, v{T0+2}, 4, v{T0+3}
    v_xor_b32 v{T0+2}, 64, v{regs[0]}
    """)
    for i, r in enumerate(regs):
        if i == 0: continue
        ii = i % 4
        src = regs[0] if ii % 2 == 0 else T0 + 2
        p(f"v_add_u32 v{r}, {ii * 8 * 2048 + sub_off(i)}, v{src}")

class QKV(Gemm):
    NT = 6; KS = 2; nsteps = 16; nA = 4; nB = 6
    stepA = 128; stepB = 64 * 6144
    addr_regs = [32, 34, 35, 33]
    pubkind = F_QKV
    h_steps = (0, 1, 2, 3, 4, 5, 6, 7)
    def swap(self, n): return n >= 4
    def xaddr(self, kk, m): return (32 + kk, m * 2048)
    def waddr(self, kk, n, j): return (34 + n % 2, (32 * kk + 4 * j) * 384 + (n // 2) * 128)
    def aflag(self, c): return c.opt.get('ldflag', '')
    def h_setup(self, p, c, first=False):
        h_xrows(p, [32, 33, 34, 35], lambda i: 0, S_MT3)
        p(f"""
        s_mul_i32 s3, s{S_WM}, 384
        s_lshl_b32 s4, s{S_NT3}, 7
        """)
        for i in range(3):
            p(f"""
            v_add_u32 v{T0}, s3, v0
            v_add_u32 v{T0}, {64 * i}, v{T0}
            v_mul_u32_u24 v{T0+1}, 0xaab, v{T0}
            v_lshrrev_b32 v{T0+1}, 16, v{T0+1}
            v_mul_u32_u24 v{T0+2}, 24, v{T0+1}
            v_sub_u32 v{T0+2}, v{T0}, v{T0+2}
            v_lshrrev_b32 v{T0+3}, 3, v{T0+2}
            v_and_b32 v{T0+2}, 7, v{T0+2}
            v_and_b32 v{T0+4}, 2, v{T0+1}
            v_xor_b32 v{T0+2}, v{T0+2}, v{T0+4}
            v_mul_u32_u24 v{T0+1}, 6144, v{T0+1}
            v_lshl_add_u32 v{T0+1}, v{T0+3}, 11, v{T0+1}
            v_lshl_add_u32 v{T0+1}, v{T0+2}, 4, v{T0+1}
            v_add_u32 v{36 + i}, s4, v{T0+1}
            v_xor_b32 v{T0+1}, 64, v{36 + i}
            v_add_u32 v{39 + i}, {8 * 6144}, v{T0+1}
            """)
        p(f"""
        s_lshl_b32 s{S_LD[0]}, s{S_WM}, 12
        s_mul_i32 s{S_LD[1]}, s{S_WM}, 6144
        s_add_u32 s{S_LD[1]}, s{S_LD[1]}, 16384
        s_mov_b32 s{S_SO[0]}, 0
        s_mov_b32 s{S_SO[1]}, 0
        """)
        srd(p, S_B, ptr('wqkv'), 1024 * 6144)
    def g_setup(self, p, c):
        lane_fields(p, T0, T0 + 1, T0 + 2, T0 + 3)
        p(f"""
        v_lshrrev_b32 v{T0+4}, 1, v{T0}
        v_xor_b32 v{T0+4}, v{T0+4}, v{T0+1}
        v_lshlrev_b32 v{T0+4}, 4, v{T0+4}
        v_lshl_or_b32 v{T0+4}, v{T0}, 7, v{T0+4}
        s_lshl_b32 s3, s{S_WM}, 13
        s_add_u32 s3, s3, s{S_RD}
        v_add_u32 v32, s3, v{T0+4}
        v_xor_b32 v33, 64, v32
        v_lshl_add_u32 v{T0+4}, v{T0+1}, 3, v{T0+2}
        v_mul_u32_u24 v{T0+4}, 384, v{T0+4}
        v_lshrrev_b32 v{T0+5}, 1, v{T0+2}
        v_and_b32 v{T0+6}, 1, v{T0+1}
        v_lshl_or_b32 v{T0+5}, v{T0+6}, 1, v{T0+5}
        s_lshl_b32 s3, s{S_WN}, 1
        v_xor_b32 v{T0+5}, s3, v{T0+5}
        v_lshl_add_u32 v{T0+4}, v{T0+5}, 5, v{T0+4}
        v_lshl_add_u32 v{T0+4}, v{T0+3}, 3, v{T0+4}
        s_add_u32 s3, s{S_RD}, 16384
        v_add_u32 v34, s3, v{T0+4}
        v_xor_b32 v35, 32, v34
        """)
        self.g_zero(p)
    def g_epi(self, p, c):
        st = c.opt.get('stflag', '')
        lane_fields(p, T0, T0 + 1)
        p(f"""
        s_waitcnt lgkmcnt(0)
        v_lshrrev_b32 v{T0+2}, 1, v{T0+1}
        v_and_b32 v{T0+3}, 1, v{T0+1}
        v_lshlrev_b32 v{T0+2}, 10, v{T0+2}
        v_lshl_or_b32 v{T0+2}, v{T0+3}, 9, v{T0+2}
        v_lshl_or_b32 v32, v{T0}, 4, v{T0+2}
        v_and_b32 v{T0+3}, 7, v{T0}
        v_lshrrev_b32 v{T0+4}, 3, v{T0}
        v_lshl_or_b32 v{T0+2}, v{T0+4}, 8, v{T0+2}
        v_lshl_or_b32 v33, v{T0+3}, 4, v{T0+2}
        s_lshl_b32 s3, s{S_NT3}, 1
        s_add_u32 s3, s3, s{S_WN}
        s_lshl_b32 s4, s{S_MT3}, 2
        s_lshl_b32 s5, s{S_WM}, 1
        s_add_u32 s4, s4, s5
        s_lshl_b32 s5, s3, 17
        s_lshl_b32 s6, s4, 11
        s_add_u32 s42, s5, s6
        s_lshl_b32 s43, s42, 1
        s_add_u32 s43, s43, {WS_KV}
        s_add_u32 s44, s43, 4096
        s_mov_b32 s46, {hexf(QSCALE)}
        s_mov_b32 s47, {hexf(QSCALE)}
        """)
        W = f"s[{S_WS}:{S_WS+3}]"
        st = c.opt.get('qkvst', st)
        t = V_FR
        for m in range(4):
            a, b = self.acc(m, 2), self.acc(m, 3)
            for i, r in enumerate((a, a + 2, b, b + 2)): p(f"v_cvt_pk_bf16_f32 v{t + i}, v{r}, v{r + 1}")
            p(f"buffer_store_dwordx4 {vr(t, 4)}, v33, {W}, s{43 + m // 2} offen offset:{(m % 2) * 128} {st}")
            t += 4
        for u in range(2):
            for nb in range(2):
                a = self.acc(2 * u, 4 + nb)
                for i in range(4): p(f"v_cvt_pk_bf16_f32 v{t + i}, v{a + 2 * i}, v{a + 2 * i + 1}")
                p(f"buffer_store_dwordx4 {vr(t, 4)}, v32, {W}, s{43 + u} offen offset:{2048 + nb * 256} {st}")
                t += 4
        for m in range(4):
            a, b = self.acc(m, 0), self.acc(m, 1)
            for r in (a, a + 2, b, b + 2): p(f"v_pk_mul_f32 {vr(r, 2)}, {vr(r, 2)}, s[46:47]")
            for i, r in enumerate((a, a + 2, b, b + 2)): p(f"v_cvt_pk_bf16_f32 v{t + i}, v{r}, v{r + 1}")
            p(f"buffer_store_dwordx4 {vr(t, 4)}, v32, {W}, s42 offen offset:{(m // 2) * 2048 + (m % 2) * 256} {st}")
            t += 4
    def h_first(self, p, c):
        srd(p, S_A, ptr('x'), 2048 * 2048)
        srd(p, S_AUX, ptr('gate'), 2048)
        p(f"""
        s_lshl_b32 s48, s{S_MT3}, 4
        s_add_u32 s48, s48, s{S_NT3}
        s_lshl_b32 s48, s48, 3
        s_lshl_b32 s3, s{S_WM}, 1
        s_add_u32 s48, s48, s3
        s_lshl_b32 s3, s48, 11
        buffer_load_dwordx4 v[64:67], v1, s[{S_A}:{S_A+3}], s3 offen
        buffer_load_dwordx4 v[68:71], v1, s[{S_A}:{S_A+3}], s3 offen offset:1024
        buffer_load_dwordx4 v[72:75], v1, s[{S_A}:{S_A+3}], s3 offen offset:2048
        buffer_load_dwordx4 v[76:79], v1, s[{S_A}:{S_A+3}], s3 offen offset:3072
        buffer_load_dwordx4 v[80:83], v1, s[{S_AUX}:{S_AUX+3}], 0 offen
        buffer_load_dwordx4 v[84:87], v1, s[{S_AUX}:{S_AUX+3}], 0 offen offset:1024
        """)
    def bflag(self, c): return c.opt.get('qbfl', '')
    def pf_list(self, c): return [('wqkv', 6 * MB, i, 1) for i in range(c.opt.get('nqpf', 6))] + [('w1', 2 * MB, i, 1) for i in range(2)]
    def g_first(self, p, c):
        n0 = c.opt.get('pf0', 1)
        g_prefetch(p, c, self.pf_list(c)[:n0])
        if c.opt.get('gpf', 0):
            srd(p, S_A, ptr('wqkv'), 6 * MB)
            srd(p, S_B, ptr('w1'), 2 * MB)
            p(f"""
            s_lshl_b32 s3, s3, 10
            s_add_u32 s{S_SO[0]}, s3, {n0 * MB}
            s_add_u32 s{S_SO[1]}, s3, {(-(6 - n0) * MB) & 0xffffffff}
            """)
    def g_loop_atoms(self, c):
        if not c.opt.get('gpf', 0) or not c.opt.get('pf', 1): return []
        L = []
        for k, r in enumerate((S_A, S_B)):
            L += [f"buffer_load_dwordx4 v1, s[{r}:{r+3}], s{S_SO[k]} offen lds", f"s_add_u32 s{S_SO[k]}, s{S_SO[k]}, {MB}"]
        return L
    def g_sites(self, c):
        if not c.opt.get('persist'): return {}
        return {9: lambda p: publish(p, c, F_ST, True)}
    def h_poll(self, c, t): return poll_init(c) if t == 6 else None
    def h_mix(self, p, c, t):
        t -= 1
        if 1 <= t <= 4:
            if t == 1:
                for a in range(48, 54): p(f"v_mov_b32 v{a}, 0")
            for i in (2 * t - 2, 2 * t - 1):
                p(f"v_lshlrev_b32 v58, 16, v{80 + i}")
                p(f"v_and_b32 v59, 0xffff0000, v{80 + i}")
                for row in range(2):
                    ag, as_, aq = 48 + row, 50 + row, 52 + row
                    x = 64 + 8 * row + i
                    p(f"""
                    v_lshlrev_b32 v56, 16, v{x}
                    v_and_b32 v57, 0xffff0000, v{x}
                    v_add_f32 v{as_}, v{as_}, v56
                    v_fmac_f32 v{aq}, v56, v56
                    v_add_f32 v{as_}, v{as_}, v57
                    v_fmac_f32 v{aq}, v57, v57
                    v_mul_f32 v56, v56, v58
                    v_mul_f32 v57, v57, v59
                    v_cvt_pk_bf16_f32 v56, v56, v57
                    v_lshlrev_b32 v57, 16, v56
                    v_and_b32 v56, 0xffff0000, v56
                    v_add_f32 v{ag}, v{ag}, v57
                    v_add_f32 v{ag}, v{ag}, v56
                    """)
        if t == 5:
            for a in (48, 50, 52): p(f"v_permlane32_swap_b32 v{a}, v{a + 1}")
            for a in (48, 50, 52): p(f"v_add_f32 v{a}, v{a}, v{a + 1}")
            for a in (48, 50, 52): p(f"v_mov_b32 v{a + 1}, v{a}")
            for a in (48, 50, 52): p(f"v_permlane16_swap_b32 v{a}, v{a + 1}")
            for a in (48, 50, 52): p(f"v_add_f32 v{a}, v{a}, v{a + 1}")
            for sh in (8, 4, 2, 1):
                for a in (48, 50, 52): p(f"v_add_f32_dpp v{a}, v{a}, v{a} row_ror:{sh} row_mask:0xf bank_mask:0xf")
        if t == 6:
            p(f"""
            v_mul_f32 v50, {hexf(1.0 / 1024)}, v50
            v_mul_f32 v52, {hexf(1.0 / 1024)}, v52
            v_fma_f32 v52, -v50, v50, v52
            v_max_f32 v52, 0, v52
            v_add_f32 v52, {hexf(1e-5)}, v52
            v_rsq_f32 v52, v52
            v_cvt_pk_bf16_f32 v48, v48, v48
            v_and_b32 v48, 0xffff0000, v48
            v_mul_f32 v48, {hexf(-LOG2E)}, v48
            v_exp_f32 v48, v48
            v_add_f32 v48, 1.0, v48
            v_rcp_f32 v48, v48
            v_cvt_pk_bf16_f32 v48, v48, v48
            v_and_b32 v48, 0xffff0000, v48
            v_sub_f32 v49, 1.0, v48
            v_cvt_pk_bf16_f32 v49, v49, v49
            v_and_b32 v49, 0xffff0000, v49
            v_lshrrev_b32 v56, 5, v0
            v_add_u32 v56, s48, v56
            v_lshlrev_b32 v56, 2, v56
            """)
    def h_extra(self, p, c, t):
        W = f"s[{S_WS}:{S_WS+3}]"
        st = c.opt.get('stflag', '')
        rest = self.pf_list(c)[c.opt.get('pf0', 1):]
        k = c.opt.get('pfk', 1)
        if t < 7:
            it = rest[k * t:k * (t + 1)] if not c.opt.get('gpf', 0) else []
            return g_prefetch(p, c, it, c.opt.get('pffl', '')) if it else 0
        if t == 7:
            p(f"""
            s_mov_b32 s3, {WS_G}
            s_mov_b32 s4, {WS_G + 8192}
            s_mov_b32 s5, {WS_ST1}
            s_mov_b32 s6, {WS_ST1 + 8192}
            s_mov_b32 exec_lo, 1
            s_mov_b32 exec_hi, 1
            buffer_store_dword v48, v56, {W}, s3 offen {st}
            buffer_store_dword v49, v56, {W}, s4 offen {st}
            buffer_store_dword v50, v56, {W}, s5 offen {st}
            buffer_store_dword v52, v56, {W}, s6 offen {st}
            s_mov_b64 exec, -1
            """)
            return 4
        return 0

class N64(Gemm):
    NT = 2; KS = 4; nA = 8; nB = 4
    stepB = 128 * 2048
    order = 'perm32'; bname = None; babytes = 1024 * 2048
    a_pitch = 32768; a_base = 0; a_size = 4 * MB
    stepA = 4096
    addr_regs = [32, 34, 35]
    def xaddr(self, kk, m): return (32, m * 4096 + kk * 1024)
    def waddr(self, kk, n, j):
        js = {'nat': 4, 'perm32': 16, 'perm32b': 8}[self.order]
        return (34 + n, (32 * kk + js * j) * 128)
    def g_body(self, p, c, prev):
        if not c.opt.get('chain64', 1) or self.order == 'nat': return Gemm.g_body(self, p, c, prev)
        xf = lambda s, m, h: 48 + 48 * s + 8 * m + 4 * h
        wf = lambda s, n, h: 48 + 48 * s + 32 + 8 * n + 4 * h
        def reads(s, kk):
            rx = lambda m: ["ds_read_b128 %s, v%d offset:%d" % ((vr(xf(s, m, h), 4),) + self.xaddr(2 * kk + h, m)) for h in range(2)]
            rw = lambda n: ["ds_read_b64_tr_b16 %s, v%d offset:%d" % ((vr(wf(s, n, h) + 2 * j, 2),) + self.waddr(2 * kk + h, n, j)) for h in range(2) for j in range(2)]
            return rx(0) + rw(0) + rx(1) + rx(2) + rx(3) + rw(1)
        def mfmas(s, c0=None):
            M = []
            for n in range(2):
                for i, m in enumerate(range(4) if n == 0 else range(3, -1, -1)):
                    for h in ((0, 1) if i % 2 == 0 else (1, 0)): M.append(mfma16(self.acc(m, n), wf(s, n, h), xf(s, m, h)))
            return M
        self.reads, self.mfmas, self.KS, self.small = reads, mfmas, 2, True
        Gemm.g_body(self, p, c, prev)
    def rotated(self, c): return c.opt.get('rot', 0)
    def h_setup_a(self, p, c):
        srd(p, S_A, ptr('ws'), self.a_size, self.a_base)
        p(f"""
        s_lshl_b32 s3, s{S_MT2}, 3
        s_lshl_b32 s4, s{S_WM}, 1
        s_add_u32 s3, s3, s4
        s_mul_i32 s3, s3, {self.a_pitch}
        """)
        if self.rotated(c):
            def emit(k):
                p(f"""
                s_lshr_b32 s4, s6, 2
                s_mul_i32 s4, s4, {self.a_pitch - 4096}
                s_add_u32 s4, s4, s7
                s_add_u32 s4, s4, s3
                v_add_u32 v{32 + k}, s4, v1
                """)
            rot_pieces(p, 8, 0, f"s_lshr_b32 s6, s{S_NT2}, 1", S_LD[0], emit)
        else:
            p("v_add_u32 v32, s3, v1")
            for i in range(1, 8): p(f"v_add_u32 v{32 + i}, {(i // 4) * self.a_pitch + (i % 4) * 1024}, v32")
        p(f"s_mov_b32 s{S_SO[0]}, {self.a_k0}")
    a_k0 = 0; b_k0 = 0
    def h_setup(self, p, c, first=False):
        p(f"""
        s_lshl_b32 s{S_LD[0]}, s{S_WM}, 13
        s_lshl_b32 s{S_LD[1]}, s{S_WM}, 12
        s_add_u32 s{S_LD[1]}, s{S_LD[1]}, 32768
        s_mov_b32 s{S_SO[1]}, {self.b_k0}
        """)
        self.h_setup_a(p, c)
        srd(p, S_B, ptr(self.bname), self.babytes)
        p(f"""
        v_lshrrev_b32 v{T0}, 3, v0
        v_and_b32 v{T0+1}, 7, v0
        v_and_b32 v{T0+2}, {2 if self.order == 'nat' else 6}, v{T0}
        v_xor_b32 v{T0+1}, v{T0+1}, v{T0+2}
        s_lshl_b32 s3, s{S_WM}, 5
        v_add_u32 v{T0}, s3, v{T0}
        v_lshlrev_b32 v{T0}, 11, v{T0}
        v_lshl_add_u32 v{T0}, v{T0+1}, 4, v{T0}
        s_lshl_b32 s4, s{S_NT2}, 7
        """)
        if self.rotated(c):
            p(f"v_add_u32 v{T0}, s4, v{T0}")
            def emit(k):
                p(f"s_lshl_b32 s4, s6, 14\nv_add_u32 v{40 + k}, s4, v{T0}")
                if self.order == 'nat': p(f"s_and_b32 s4, s6, 1\ns_lshl_b32 s4, s4, 6\nv_xor_b32 v{40 + k}, s4, v{40 + k}")
            rot_pieces(p, 4, 8, f"s_and_b32 s6, s{S_MT2}, 3", S_LD[1], emit)
        else:
            p(f"v_add_u32 v40, s4, v{T0}")
            if self.order == 'nat':
                p(f"v_xor_b32 v{T0}, 64, v40")
                p(f"v_add_u32 v41, {8 * 2048}, v{T0}\nv_add_u32 v42, {16 * 2048}, v40\nv_add_u32 v43, {24 * 2048}, v{T0}")
            else:
                for i in range(1, 4): p(f"v_add_u32 v{40 + i}, {8 * i * 2048}, v40")
    def g_setup_x(self, p, c):
        p(f"""
        s_lshl_b32 s3, s{S_WM}, 14
        s_add_u32 s3, s3, s{S_RD}
        v_add_u32 v32, s3, v1
        """)
    def g_setup(self, p, c):
        lane_fields(p, T0, T0 + 1, T0 + 2, T0 + 3)
        self.g_setup_x(p, c)
        if self.order == 'nat': p(f"v_lshl_add_u32 v{T0+4}, v{T0+1}, 3, v{T0+2}")
        elif self.order == 'perm32': p(f"v_lshl_add_u32 v{T0+4}, v{T0+1}, 2, v{T0+2}")
        else:
            p(f"""
            v_lshrrev_b32 v{T0+4}, 1, v{T0+1}
            v_lshl_add_u32 v{T0+4}, v{T0+4}, 4, v{T0+2}
            v_and_b32 v{T0+5}, 1, v{T0+1}
            v_lshl_add_u32 v{T0+4}, v{T0+5}, 2, v{T0+4}
            """)
        p(f"""
        v_lshlrev_b32 v{T0+4}, 7, v{T0+4}
        v_lshrrev_b32 v{T0+5}, 1, v{T0+2}
        v_and_b32 v{T0+6}, 1, v{T0+1}
        v_lshl_or_b32 v{T0+5}, v{T0+6}, 1, v{T0+5}
        s_lshl_b32 s3, s{S_WN}, 1
        v_xor_b32 v{T0+5}, s3, v{T0+5}
        v_lshl_add_u32 v{T0+4}, v{T0+5}, 5, v{T0+4}
        v_lshl_add_u32 v{T0+4}, v{T0+3}, 3, v{T0+4}
        s_add_u32 s3, s{S_RD}, 32768
        v_add_u32 v34, s3, v{T0+4}
        v_xor_b32 v35, 32, v34
        """)
        self.g_pre(p, c)
        self.g_zero(p)
    def g_pre(self, p, c): pass

def gelu_consts(p, b, has_og):
    rs, og, k1, k0, w, t = b + 1, b + 3, b + 2, b + 4, b + 6, b + 5
    p(f"""
    v_mul_f32 v{t}, v{rs}, v{rs}
    v_mul_f32 v{k0}, {hexf(GC0)}, v{rs}
    v_mul_f32 v{t}, v{t}, v{rs}
    v_mul_f32 v{k1}, {hexf(GC1)}, v{t}
    """)
    if has_og:
        p(f"""
        v_mul_f32 v{t}, v{og}, v{rs}
        v_rcp_f32 v{w}, v{t}
        """)
    else:
        p(f"v_rcp_f32 v{w}, v{rs}")
    p(f"v_min_f32 v{w}, {hexf(3e38)}, v{w}")

def gelu_block(p, items, tmp, pk=True):
    T = [tmp + 2 * i for i in range(len(items))]
    Z = list(zip(items, T))
    if pk:
        for (r, cs, b), t in Z: p(f"v_pk_fma_f32 {vr(r,2)}, {vr(cs,2)}, {vr(b,2)}, {vr(r,2)} op_sel_hi:[1,0,1] neg_lo:[1,0,0] neg_hi:[1,0,0]")
        for (r, cs, b), t in Z: p(f"v_pk_mul_f32 {vr(t,2)}, {vr(r,2)}, {vr(r,2)}")
        for (r, cs, b), t in Z: p(f"v_pk_fma_f32 {vr(t,2)}, {vr(t,2)}, {vr(b+2,2)}, {vr(b+4,2)} op_sel_hi:[1,0,0]")
        for (r, cs, b), t in Z: p(f"v_pk_mul_f32 {vr(t,2)}, {vr(t,2)}, {vr(r,2)}")
    else:
        for (r, cs, b), t in Z:
            for h in range(2): p(f"v_fma_f32 v{r+h}, -v{cs+h}, v{b}, v{r+h}")
        for (r, cs, b), t in Z:
            for h in range(2): p(f"v_mul_f32 v{t+h}, v{r+h}, v{r+h}")
        for (r, cs, b), t in Z:
            for h in range(2): p(f"v_fma_f32 v{t+h}, v{t+h}, v{b+2}, v{b+4}")
        for (r, cs, b), t in Z:
            for h in range(2): p(f"v_mul_f32 v{t+h}, v{t+h}, v{r+h}")
    for t in T:
        p(f"v_exp_f32 v{t}, v{t}"); p(f"v_exp_f32 v{t+1}, v{t+1}")
    for (r, cs, b), t in Z:
        if pk: p(f"v_pk_fma_f32 {vr(t,2)}, {vr(t,2)}, {vr(b+6,2)}, {vr(b+6,2)} op_sel_hi:[1,0,0]")
        else:
            for h in range(2): p(f"v_fma_f32 v{t+h}, v{t+h}, v{b+6}, v{b+6}")
    for t in T:
        p(f"v_rcp_f32 v{t}, v{t}"); p(f"v_rcp_f32 v{t+1}, v{t+1}")
    for (r, cs, b), t in Z:
        if pk: p(f"v_pk_mul_f32 {vr(r,2)}, {vr(r,2)}, {vr(t,2)}")
        else:
            for h in range(2): p(f"v_mul_f32 v{r+h}, v{r+h}, v{t+h}")

def read_tok_consts(p, base, vaddr, r16, has_og):
    p(f"""
    s_lshl_b32 s3, s{S_WM}, 8
    s_add_u32 s3, s3, {L_MU}
    v_lshl_add_u32 v{vaddr}, v{r16}, 2, s3
    """)
    for m in range(4):
        p(f"ds_read_b32 v{base + 8 * m}, v{vaddr} offset:{64 * m}")
        p(f"ds_read_b32 v{base + 8 * m + 1}, v{vaddr} offset:{512 + 64 * m}")
        if has_og: p(f"ds_read_b32 v{base + 8 * m + 3}, v{vaddr} offset:{1024 + 64 * m}")

class W1(N64):
    nsteps = 8; order = 'nat'; bname = 'w1'; stepA = 256
    addr_regs = [32, 34, 35, 33]
    pubkind = F_W1
    h_steps = (0, 1)
    xbar = True
    pubstep = 2
    def aflag(self, c): return c.opt.get('ldflag', '')
    def xaddr(self, kk, m): return (32 + kk % 2, (m // 2) * 8192 + (m % 2) * 2048 + (kk // 2) * 4096)
    def h_setup_a(self, p, c):
        srd(p, S_A, ptr('x'), 2048 * 2048)
        if self.rotated(c):
            h_xrows(p, [T0 + 4], lambda i: 0, S_MT2)
            def emit(k):
                p(f"""
                s_and_b32 s4, s6, 3
                s_lshl_b32 s4, s4, 14
                s_lshr_b32 s5, s6, 2
                s_lshl_b32 s5, s5, 7
                s_add_u32 s4, s4, s5
                v_add_u32 v{32 + k}, s4, v{T0+4}
                s_and_b32 s4, s6, 1
                s_lshl_b32 s4, s4, 6
                v_xor_b32 v{32 + k}, s4, v{32 + k}
                """)
            rot_pieces(p, 8, 0, f"s_lshr_b32 s6, s{S_NT2}, 1", S_LD[0], emit)
        else:
            h_xrows(p, list(range(32, 40)), lambda i: (i // 4) * 128, S_MT2)
        p(f"s_mov_b32 s{S_SO[0]}, 0")
    def g_setup_x(self, p, c):
        p(f"""
        v_lshrrev_b32 v{T0+4}, 1, v{T0}
        v_xor_b32 v{T0+4}, v{T0+4}, v{T0+1}
        v_lshlrev_b32 v{T0+4}, 4, v{T0+4}
        v_lshl_or_b32 v{T0+4}, v{T0}, 7, v{T0+4}
        s_lshl_b32 s3, s{S_WM}, 14
        s_add_u32 s3, s3, s{S_RD}
        v_add_u32 v32, s3, v{T0+4}
        v_xor_b32 v33, 64, v32
        """)
    lds_consts = True
    def extra_mfma(self, s, n): return [mfma16(112 + 4 * n, self.wf(s, n), 120)]
    def g_pre(self, p, c):
        for i in range(8): p(f"v_mov_b32 v{112 + i}, 0")
        for i in range(4): p(f"v_mov_b32 v{120 + i}, 0x3f803f80")
    def h_poll(self, c, t): return poll_flags(c, F_ST, S_MT2) if t == 0 else None
    def h_post(self, p, c, t):
        if t == (6 if self.nxt.late else 7): p("ds_write_b32 v58, v59\ns_waitcnt lgkmcnt(0)")
    def h_extra(self, p, c, t):
        W = f"s[{S_WS}:{S_WS+3}]"
        ho = c.opt.get('hoflag', ''); st = c.opt.get('stflag', '')
        if t == 1:
            p(f"""
            v_and_b32 v58, 31, v0
            v_lshrrev_b32 v59, 5, v0
            v_lshlrev_b32 v58, 2, v58
            v_lshl_add_u32 v60, v59, 13, v58
            v_lshl_add_u32 v58, v59, 9, v58
            s_lshl_b32 s3, s{S_MT2}, 9
            s_lshl_b32 s4, s{S_WM}, 7
            s_add_u32 s3, s3, s4
            s_add_u32 s3, s3, {WS_ST1}
            s_add_u32 s4, s4, {L_MU}
            v_add_u32 v58, s4, v58
            buffer_load_dword v59, v60, {W}, s3 offen {ho}
            """)
            return 1
        return 0
    def g_epi(self, p, c):
        st = c.opt.get('stflag', '')
        W = f"s[{S_WS}:{S_WS+3}]"
        lane_fields(p, T0, T0 + 1)
        p("s_waitcnt lgkmcnt(0)")
        if self.lds_consts: read_tok_consts(p, 144, 36, T0, False)
        for m in range(4): gelu_consts(p, 144 + 8 * m, False)
        p(f"""
        s_lshr_b32 s5, s{S_NT2}, 2
        s_lshr_b32 s6, s5, 1
        s_add_u32 s6, s6, 1
        s_sub_u32 s7, 0, s6
        s_bitcmp1_b32 s5, 0
        s_cselect_b32 s6, s7, s6
        s_lshl_b32 s3, s{S_MT2}, 7
        s_lshl_b32 s4, s{S_WM}, 6
        s_add_u32 s3, s3, s4
        s_add_u32 s6, s6, s3
        s_lshl_b32 s3, s{S_NT2}, 1
        s_add_u32 s3, s3, s{S_WN}
        s_lshl_b32 s42, s3, 10
        s_add_u32 s42, s42, {WS_HS}
        """)
        for mp in range(2):
            items = []
            for m in (2 * mp, 2 * mp + 1):
                for n in range(2):
                    for h in range(2): items.append((self.acc(m, n) + 2 * h, 112 + 4 * n + 2 * h, 144 + 8 * m))
            gelu_block(p, items, 56, c.opt.get('pk', 1))
            for m in (2 * mp, 2 * mp + 1):
                a, b = self.acc(m, 0), self.acc(m, 1)
                t = 72 + 4 * m
                p(f"""
                v_add_u32 v{T0+2}, s6, v{T0}
                v_add_u32 v{T0+2}, {16 * m}, v{T0+2}
                v_cmp_gt_u32 vcc, 2048, v{T0+2}
                v_and_b32 v{T0+2}, 2047, v{T0+2}
                v_lshrrev_b32 v{T0+3}, 4, v{T0+2}
                v_and_b32 v{T0+2}, 15, v{T0+2}
                v_lshl_add_u32 v{T0+2}, v{T0+1}, 4, v{T0+2}
                v_lshlrev_b32 v{T0+2}, 4, v{T0+2}
                v_lshl_add_u32 v{36 + m}, v{T0+3}, 15, v{T0+2}
                """)
                for i, r in enumerate((a, a + 2, b, b + 2)): p(f"v_cvt_pk_bf16_f32 v{t + i}, v{r}, v{r + 1}")
                for i in range(4): p(f"v_cndmask_b32 v{t + i}, 0, v{t + i}, vcc")
                p(f"buffer_store_dwordx4 {vr(t, 4)}, v{36 + m}, {W}, s42 offen {st}")

class W2(N64):
    nsteps = 8; order = 'perm32'; bname = 'w2'; a_base = WS_HS
    pubkind = F_W2
    def poll(self, c): return poll_flags(c, F_W1, S_MT2, halo=True)
    def h_tail(self, c):
        a = Atoms()
        h_xrows(a, [44, 45, 46, 47], lambda i: 0, S_MT2)
        srd(a, S_AUX, ptr('x'), 2048 * 2048)
        a(f"""
        s_lshl_b32 s5, s{S_NT2}, 7
        s_lshl_b32 s4, s{S_WM}, 12
        s_add_u32 s4, s4, s{S_DMA}
        s_add_u32 m0, s4, 32768
        """)
        D = [f"buffer_load_dwordx4 v{44 + i}, s[{S_AUX}:{S_AUX+3}], s5 offen lds" + ("\ns_add_u32 m0, m0, 1024" if i < 3 else "") for i in range(4)]
        D[0] = "\n".join(a.L) + "\n" + D[0]
        return D
    def g_epi(self, p, c):
        st = c.opt.get('stflag', '')
        W = f"s[{S_WS}:{S_WS+3}]"
        p(f"""
        s_waitcnt lgkmcnt(0)
        s_lshl_b32 s3, s{S_NT2}, 1
        s_add_u32 s3, s3, s{S_WN}
        s_lshl_b32 s4, s{S_MT2}, 3
        s_lshl_b32 s5, s{S_WM}, 2
        s_add_u32 s4, s4, s5
        s_lshl_b32 s42, s4, 15
        s_lshl_b32 s5, s3, 10
        s_add_u32 s42, s42, s5
        s_add_u32 s42, s42, {WS_X1}
        s_lshl_b32 s43, s3, 14
        s_lshl_b32 s5, s4, 7
        s_add_u32 s43, s43, s5
        s_add_u32 s43, s43, {WS_P2}
        """)
        lane_fields(p, T0, T0 + 1)
        p(f"""
        v_lshrrev_b32 v{T0+2}, 1, v{T0}
        v_lshrrev_b32 v{T0+3}, 1, v{T0+1}
        v_xor_b32 v{T0+2}, v{T0+2}, v{T0+3}
        s_lshl_b32 s3, s{S_WN}, 2
        v_xor_b32 v{T0+2}, s3, v{T0+2}
        v_lshlrev_b32 v{T0+2}, 4, v{T0+2}
        v_lshl_or_b32 v{T0+2}, v{T0}, 7, v{T0+2}
        v_and_b32 v{T0+3}, 1, v{T0+1}
        v_lshl_or_b32 v{T0+2}, v{T0+3}, 3, v{T0+2}
        s_lshl_b32 s3, s{S_WM}, 13
        s_add_u32 s3, s3, s{S_RD}
        v_add_u32 v37, s3, v{T0+2}
        v_xor_b32 v38, 32, v37
        """)
        for m in range(4):
            for n in range(2): p(f"ds_read_b64 {vr(160 + 4 * m + 2 * n, 2)}, v{37 + n} offset:{32768 + 2048 * m}")
        for m in range(4):
            for n in range(2):
                a = self.acc(m, n)
                for d in range(2):
                    x = 160 + 4 * m + 2 * n + d
                    p(f"v_lshlrev_b32 v48, 16, v{x}\nv_and_b32 v49, 0xffff0000, v{x}")
                    p(f"v_pk_add_f32 {vr(a + 2 * d, 2)}, {vr(a + 2 * d, 2)}, v[48:49]")
            a, b = self.acc(m, 0), self.acc(m, 1)
            t = 72 + 4 * m
            for i, r in enumerate((a, a + 2, b, b + 2)): p(f"v_cvt_pk_bf16_f32 v{t + i}, v{r}, v{r + 1}")
            p(f"buffer_store_dwordx4 {vr(t, 4)}, v1, {W}, s42 offen {st}")
            if m < 3: p(f"s_add_u32 s42, s42, 32768")
            p(f"""
            v_pk_add_f32 v[50:51], {vr(a, 2)}, {vr(a + 2, 2)}
            v_pk_mul_f32 v[52:53], {vr(a, 2)}, {vr(a, 2)}
            v_pk_add_f32 v[50:51], v[50:51], {vr(b, 2)}
            v_pk_fma_f32 v[52:53], {vr(a + 2, 2)}, {vr(a + 2, 2)}, v[52:53]
            v_pk_add_f32 v[50:51], v[50:51], {vr(b + 2, 2)}
            v_pk_fma_f32 v[52:53], {vr(b, 2)}, {vr(b, 2)}, v[52:53]
            v_pk_fma_f32 v[52:53], {vr(b + 2, 2)}, {vr(b + 2, 2)}, v[52:53]
            v_add_f32 v{56 + 2 * m}, v50, v51
            v_add_f32 v{57 + 2 * m}, v52, v53
            """)
        for i in range(4): p(f"v_permlane32_swap_b32 v{56 + i}, v{60 + i}")
        for i in range(4): p(f"v_add_f32 v{56 + i}, v{56 + i}, v{60 + i}")
        for i in range(2): p(f"v_permlane16_swap_b32 v{56 + i}, v{58 + i}")
        for i in range(2): p(f"v_add_f32 v{56 + i}, v{56 + i}, v{58 + i}")
        p(f"""
        v_lshlrev_b32 v36, 3, v0
        buffer_store_dwordx2 v[56:57], v36, {W}, s43 offen {st}
        """)

AF_PITCH = 144 * 1024
class W3(Gemm):
    NT = 7; KS = 2; nsteps = 16; nA = 4; nB = 8
    stepA = 2048; stepB = 64 * 7168
    addr_regs = [32, 33, 34, 35, 36, 37, 38, 39]
    pubkind = F_W3
    zero_first = True
    h_steps = tuple(range(1, 14))
    def poll(self, c): return poll_flags(c, F_W2, S_MT3)
    def g_sites(self, c):
        if not c.opt.get('persist'): return {}
        return {7: lambda p: publish(p, c, F_CS, True)}
    def h_poll(self, c, t): return poll_flags(c, F_CS, S_NT3) if t == 10 else None
    def h_post(self, p, c, t):
        if t == 15:
            p("""
            ds_write_b32 v56, v160
            ds_write_b32 v57, v64
            ds_write_b32 v57, v65 offset:512
            s_mov_b32 exec_hi, 0
            ds_write_b32 v58, v96 offset:1024
            s_mov_b32 exec_hi, -1
            s_waitcnt lgkmcnt(0)
            """)
    def xaddr(self, kk, m): return (32, m * 2048 + kk * 1024)
    def waddr(self, kk, n, j): return (33 + n, (32 * kk + 16 * j) * 512)
    def h_setup(self, p, c, first=False):
        srd(p, S_A, ptr('ws'), 4 * MB, WS_X1)
        srd(p, S_B, ptr('w3'), 1024 * 7168)
        p(f"""
        s_lshl_b32 s3, s{S_MT3}, 3
        s_lshl_b32 s4, s{S_WM}, 1
        s_add_u32 s3, s3, s4
        s_lshl_b32 s3, s3, 15
        v_add_u32 v32, s3, v1
        v_add_u32 v33, 1024, v32
        v_add_u32 v34, 32768, v32
        v_add_u32 v35, {32768 + 1024}, v32
        s_mul_i32 s4, s{S_NT3}, 448
        s_and_b32 s4, s4, {0xffffff80}
        s_mul_i32 s3, s{S_WM}, {16 * 7168}
        s_add_u32 s4, s4, s3
        v_lshrrev_b32 v{T0}, 5, v0
        v_and_b32 v{T0+1}, 31, v0
        v_mul_u32_u24 v{T0+2}, 7168, v{T0}
        v_add_u32 v{T0+2}, s4, v{T0+2}
        v_lshlrev_b32 v{T0}, 1, v{T0}
        v_xor_b32 v{T0+1}, v{T0+1}, v{T0}
        """)
        for i in range(4):
            p(f"""
            v_xor_b32 v{T0+3}, {4 * i}, v{T0+1}
            v_lshl_add_u32 v{T0+3}, v{T0+3}, 4, v{T0+2}
            v_add_u32 v{36 + i}, {2 * i * 7168}, v{T0+3}
            v_add_u32 v{40 + i}, {(2 * i + 8) * 7168}, v{T0+3}
            """)
        p(f"""
        s_lshl_b32 s{S_LD[0]}, s{S_WM}, 12
        s_lshl_b32 s{S_LD[1]}, s{S_WM}, 13
        s_add_u32 s{S_LD[1]}, s{S_LD[1]}, 16384
        s_mov_b32 s{S_SO[0]}, 0
        s_mov_b32 s{S_SO[1]}, 0
        """)
    def g_setup(self, p, c):
        lane_fields(p, None, T0 + 1, T0 + 2, T0 + 3)
        p(f"""
        s_lshl_b32 s3, s{S_WM}, 13
        s_add_u32 s3, s3, s{S_RD}
        v_add_u32 v32, s3, v1
        v_lshl_add_u32 v{T0+4}, v{T0+1}, 2, v{T0+2}
        v_and_b32 v{T0+5}, 7, v{T0+4}
        v_lshlrev_b32 v{T0+4}, 9, v{T0+4}
        v_lshl_add_u32 v{T0+4}, v{T0+3}, 3, v{T0+4}
        s_add_u32 s3, s{S_RD}, 16384
        v_add_u32 v{T0+4}, s3, v{T0+4}
        s_and_b32 s3, s{S_NT3}, 1
        s_lshl_b32 s3, s3, 1
        s_mul_i32 s4, s{S_WN}, 7
        s_add_u32 s3, s3, s4
        """)
        for n in range(7):
            p(f"""
            v_xor_b32 v{T0+6}, s3, v{T0+5}
            v_lshl_add_u32 v{33 + n}, v{T0+6}, 5, v{T0+4}
            s_add_u32 s3, s3, 1
            """)
        self.g_zero(p)
    def h_late(self, a, c):
        a.atom(f"""
        s_mul_i32 s53, s{S_NT3}, 448
        s_and_b32 s53, s53, {0xffffff80}
        s_lshl_b32 s4, s{S_WM}, 7
        s_add_u32 s53, s53, s4
        s_lshl_b32 s4, s{S_MT3}, 6
        v_lshrrev_b32 v{T0}, 3, v0
        v_add_u32 v{T0}, s4, v{T0}
        v_mul_u32_u24 v{T0}, 7168, v{T0}
        v_and_b32 v{T0+1}, 7, v0
        v_lshl_add_u32 v{T0}, v{T0+1}, 4, v{T0}
        """)
        for i in range(8):
            a.atom(f"buffer_load_dwordx4 {vr(160 + 4 * i, 4)}, v{T0}, s[{S_B}:{S_B+3}], s53 offen\ns_add_u32 s53, s53, {8 * 7168}")
        return 8
    def h_extra(self, p, c, t):
        W = f"s[{S_WS}:{S_WS+3}]"
        ho = c.opt.get('hoflag', ''); st = c.opt.get('stflag', '')
        n = 0
        if t == 1:
            p(f"""
            v_and_b32 v60, 15, v0
            v_lshrrev_b32 v61, 4, v0
            v_lshlrev_b32 v60, 4, v60
            v_lshl_add_u32 v62, v61, 10, v60
            v_lshl_add_u32 v63, v61, 17, v60
            v_lshlrev_b32 v60, 2, v0
            s_lshl_b32 s4, s{S_WM}, 8
            s_lshl_b32 s53, s{S_NT3}, 14
            s_add_u32 s53, s53, s4
            s_add_u32 s53, s53, {WS_CSP}
            s_lshl_b32 s49, s{S_MT3}, 10
            s_add_u32 s50, s49, s4
            s_add_u32 s49, s49, s53
            s_lshr_b32 s3, s50, 1
            s_add_u32 s3, s3, {WS_G + 8192}
            s_add_u32 s50, s50, {WS_P2}
            buffer_load_dword v96, v60, {W}, s3 offen {ho}
            """)
            n += 1
        if 1 <= t <= 8:
            p(f"buffer_load_dwordx4 {vr(64 + 4 * (t - 1), 4)}, v63, {W}, s50 offen {ho}\ns_add_u32 s50, s50, 16384")
            n += 1
        if t == 5:
            p(f"buffer_store_dwordx2 v[48:49], v56, {W}, s49 offen {st}")
            n += 1
        if t == 11:
            for i in range(4):
                p(f"buffer_load_dwordx4 {vr(160 + 4 * i, 4)}, v62, {W}, s53 offen {ho}\ns_add_u32 s53, s53, 4096")
            n += 4
        return n
    def h_mix(self, p, c, t):
        if t == 1:
            for i in range(8): p(f"v_mov_b32 v{48 + i}, 0")
        if 1 <= t <= 4:
            for i in (2 * t - 2, 2 * t - 1):
                for d in range(4):
                    x = 160 + 4 * i + d
                    p(f"""
                    v_lshlrev_b32 v56, 16, v{x}
                    v_and_b32 v57, 0xffff0000, v{x}
                    v_add_f32 v{48 + 2 * d}, v{48 + 2 * d}, v56
                    v_add_f32 v{49 + 2 * d}, v{49 + 2 * d}, v57
                    """)
        if t == 5:
            for i in range(4): p(f"v_permlane32_swap_b32 v{48 + i}, v{52 + i}")
            for i in range(4): p(f"v_add_f32 v{48 + i}, v{48 + i}, v{52 + i}")
            for i in range(2): p(f"v_permlane16_swap_b32 v{48 + i}, v{50 + i}")
            for i in range(2): p(f"v_add_f32 v{48 + i}, v{48 + i}, v{50 + i}")
            for i in range(2): p(f"v_add_f32_dpp v{48 + i}, v{48 + i}, v{48 + i} row_ror:8 row_mask:0xf bank_mask:0xf")
            p(f"""
            v_and_b32 v56, 7, v0
            v_lshrrev_b32 v57, 4, v0
            v_lshlrev_b32 v56, 5, v56
            v_lshl_add_u32 v56, v57, 3, v56
            """)
        if t == 10:
            for st_ in (4, 2, 1):
                for i in range(st_):
                    for d in range(4): p(f"v_add_f32 v{64 + 4 * i + d}, v{64 + 4 * i + d}, v{64 + 4 * (i + st_) + d}")
        if t == 11:
            p(f"""
            v_permlane32_swap_b32 v64, v66
            v_permlane32_swap_b32 v65, v67
            v_add_f32 v64, v64, v66
            v_add_f32 v65, v65, v67
            v_mov_b32 v66, v64
            v_mov_b32 v67, v65
            v_permlane16_swap_b32 v64, v66
            v_permlane16_swap_b32 v65, v67
            v_add_f32 v64, v64, v66
            v_add_f32 v65, v65, v67
            v_mul_f32 v64, {hexf(1.0 / 1024)}, v64
            v_mul_f32 v65, {hexf(1.0 / 1024)}, v65
            v_fma_f32 v65, -v64, v64, v65
            v_max_f32 v65, 0, v65
            v_add_f32 v65, {hexf(1e-5)}, v65
            v_rsq_f32 v65, v65
            """)
        if t == 12:
            p(f"""
            v_and_b32 v57, 15, v0
            v_lshrrev_b32 v58, 5, v0
            v_lshl_add_u32 v57, v57, 1, v58
            s_lshl_b32 s3, s{S_WM}, 7
            v_lshl_add_u32 v57, v57, 2, s3
            v_lshl_add_u32 v58, v0, 2, s3
            v_add_u32 v57, {L_MU}, v57
            v_add_u32 v58, {L_MU}, v58
            """)
        if t == 13:
            for st_ in (2, 1):
                for i in range(st_):
                    for d in range(4): p(f"v_add_f32 v{160 + 4 * i + d}, v{160 + 4 * i + d}, v{160 + 4 * (i + st_) + d}")
            p(f"""
            v_permlane32_swap_b32 v160, v162
            v_permlane32_swap_b32 v161, v163
            v_add_f32 v160, v160, v162
            v_add_f32 v161, v161, v163
            v_permlane16_swap_b32 v160, v161
            v_add_f32 v160, v160, v161
            v_and_b32 v56, 15, v0
            v_lshrrev_b32 v59, 4, v0
            v_lshl_add_u32 v56, v56, 2, v59
            s_lshl_b32 s3, s{S_WM}, 8
            v_lshl_add_u32 v56, v56, 2, s3
            v_add_u32 v56, {L_CS}, v56
            """)
    def g_epi(self, p, c):
        st = c.opt.get('stflag', '')
        W = f"s[{S_WS}:{S_WS+3}]"
        lane_fields(p, 40, 41)
        p(f"""
        s_waitcnt lgkmcnt(0)
        s_mul_i32 s3, s{S_WN}, 448
        s_and_b32 s4, s{S_NT3}, 1
        s_lshl_b32 s4, s4, 7
        s_add_u32 s3, s3, s4
        s_add_u32 s3, s3, {L_CS}
        v_lshl_add_u32 v36, v41, 4, s3
        """)
        read_tok_consts(p, 76, 37, 40, True)
        for n in range(7): p(f"ds_read_b128 {vr(48 + 4 * n, 4)}, v36 offset:{64 * n}")
        for m in range(4): gelu_consts(p, 76 + 8 * m, True)
        p(f"""
        v_lshrrev_b32 v38, 5, v0
        v_mul_u32_u24 v38, {AF_PITCH}, v38
        v_and_b32 v39, 31, v0
        v_lshl_add_u32 v38, v39, 4, v38
        s_lshl_b32 s3, s{S_MT3}, 3
        s_lshl_b32 s4, s{S_WM}, 2
        s_add_u32 s3, s3, s4
        s_mul_i32 s42, s3, {AF_PITCH}
        s_mul_i32 s3, s{S_NT3}, 14
        s_mul_i32 s4, s{S_WN}, 7
        s_add_u32 s3, s3, s4
        s_lshl_b32 s3, s3, 9
        s_add_u32 s42, s42, s3
        s_add_u32 s42, s42, {WS_AF}
        s_add_u32 s43, s42, {2 * AF_PITCH}
        """)
        for n in range(7):
            items = []
            for m in range(4):
                for h in range(2): items.append((self.acc(m, n) + 2 * h, 48 + 4 * n + 2 * h, 76 + 8 * m))
            gelu_block(p, items, 108 + 16 * (n % 2), c.opt.get('pk', 1))
            for u in range(2):
                a = self.acc(2 * u, n)
                for i in range(4): p(f"v_cvt_pk_bf16_f32 v{a + i}, v{a + 2 * i}, v{a + 2 * i + 1}")
            for u in range(2):
                a = self.acc(2 * u, n)
                p(f"v_permlane32_swap_b32 v{a}, v{a + 2}")
                p(f"v_permlane32_swap_b32 v{a + 1}, v{a + 3}")
            for u in range(2):
                a = self.acc(2 * u, n)
                p(f"buffer_store_dwordx4 {vr(a, 4)}, v38, {W}, s{42 + u} offen offset:{n * 512} {st}")

WS_XCH = 48 * MB
def xch_off(c, nt_code, wave, dst):
    if not c.opt.get('xreuse', 0):
        return f"""
        s_lshl_b32 s3, s{S_MT2}, 4
        {nt_code}
        s_add_u32 s3, s3, s4
        s_lshl_b32 s3, s3, 2
        s_add_u32 s3, s3, s{wave}
        s_lshl_b32 s3, s3, 13
        s_add_u32 s{dst}, s3, {WS_XCH}
        """
    return f"""
    {nt_code}
    s_lshl_b32 s4, s4, 1
    s_and_b32 s3, s{wave}, 1
    s_add_u32 s4, s4, s3
    s_lshl_b32 s3, s{S_MT2}, 5
    s_add_u32 s3, s3, s4
    s_lshl_b32 s3, s3, 13
    s_add_u32 s3, s3, {WS_HS}
    s_lshl_b32 s4, s4, 4
    s_add_u32 s4, s4, s{S_MT2}
    s_lshl_b32 s4, s4, 13
    s_cmp_lt_u32 s{wave}, 2
    s_cselect_b32 s{dst}, s3, s4
    """

class W4(Gemm):
    NT = 4; KS = 3; nA = 6; nB = 6
    h_steps = (15, 16)
    def __init__(self, xw=2): self.xw = xw; self.nsteps = 18 + xw
    def __call__(self): return self
    stepA = 3072; stepB = 96 * 2048
    addr_regs = [32, 33, 34, 35, 36]
    zero_first = True
    pubkind = F_XCH
    pubstep = 4
    chain = True; pubv = 28
    def poll(self, c): return poll_flags(c, F_W3, S_MT2)
    def h_poll(self, c, t): return poll_flags(c, F_ATT, S_MT2, shift=1, nprod=32) if t == 15 else None
    def h_pre(self, p, c, t):
        if t == 16:
            if not self.xw: return
            srd(p, S_B, ptr('wo'), 1024 * 2048)
            p(f"""
            s_and_b32 s3, s{S_NT2}, 1
            s_mul_i32 s{S_SO[0]}, s3, {3 * self.xw * 1024}
            s_add_u32 s{S_SO[0]}, s{S_SO[0]}, {112 * 1024}
            s_mul_i32 s{S_SO[1]}, s3, {3 * self.xw * 32 * 2048}
            """)
    def xaddr(self, kk, m): return (32, m * 3072 + kk * 1024)
    def waddr(self, kk, n, j): return (33 + n, (32 * kk + 8 * j) * 256)
    def h_setup(self, p, c, first=False):
        srd(p, S_A, ptr('ws'), 18 * MB, WS_AF)
        srd(p, S_B, ptr('w4'), 3584 * 2048)
        p(f"""
        s_lshl_b32 s3, s{S_MT2}, 3
        s_lshl_b32 s4, s{S_WM}, 1
        s_add_u32 s3, s3, s4
        s_mul_i32 s3, s3, {AF_PITCH}
        s_mul_i32 s{S_LD[0]}, s{S_WM}, 6144
        s_add_u32 s{S_LD[1]}, s{S_LD[0]}, 24576
        """)
        if self.rotated(c):
            def emit(k):
                p(f"""
                s_cmp_ge_u32 s6, 3
                s_cselect_b32 s4, {AF_PITCH - 3072}, 0
                s_add_u32 s4, s4, s7
                s_add_u32 s4, s4, s3
                v_add_u32 v{32 + k}, s4, v1
                """)
            rot_pieces(p, 6, 0, f"s_lshr_b32 s6, s{S_NT2}, 1\ns_mul_i32 s6, s6, 3\ns_lshr_b32 s6, s6, 2", S_LD[0], emit)
        else:
            p("v_add_u32 v32, s3, v1")
            for i in range(1, 6): p(f"v_add_u32 v{32 + i}, {(i // 3) * AF_PITCH + (i % 3) * 1024}, v32")
        p(f"""
        v_lshrrev_b32 v{T0}, 4, v0
        v_and_b32 v{T0+1}, 15, v0
        v_lshlrev_b32 v{T0+2}, 1, v{T0}
        v_xor_b32 v{T0+1}, v{T0+1}, v{T0+2}
        s_mul_i32 s3, s{S_WM}, 24
        v_add_u32 v{T0}, s3, v{T0}
        v_lshlrev_b32 v{T0}, 11, v{T0}
        v_lshl_add_u32 v{T0}, v{T0+1}, 4, v{T0}
        s_lshr_b32 s4, s{S_NT2}, 1
        s_lshl_b32 s4, s4, 8
        """)
        if self.rotated(c):
            p(f"v_add_u32 v{T0}, s4, v{T0}")
            def emit(k):
                p(f"s_lshl_b32 s4, s6, 13\nv_add_u32 v{38 + k}, s4, v{T0}\ns_and_b32 s4, s6, 1\ns_lshl_b32 s4, s4, 7\nv_xor_b32 v{38 + k}, s4, v{38 + k}")
            rot_pieces(p, 6, 6, f"s_and_b32 s6, s{S_MT2}, 3\ns_mul_i32 s6, s6, 3\ns_lshr_b32 s6, s6, 1", S_LD[1], emit)
        else:
            p(f"v_add_u32 v38, s4, v{T0}\nv_xor_b32 v{T0}, 128, v38")
            for i in range(1, 6): p(f"v_add_u32 v{38 + i}, {4 * i * 2048}, v{38 if i % 2 == 0 else T0}")
        p(f"""
        s_and_b32 s3, s{S_NT2}, 1
        s_mul_i32 s{S_SO[0]}, s3, {54 * 1024}
        s_mul_i32 s{S_SO[1]}, s3, {54 * 32 * 2048}
        """)
    def rotated(self, c): return c.opt.get('rot', 0)
    def g_setup(self, p, c):
        lane_fields(p, None, T0 + 1, T0 + 2, T0 + 3)
        p(f"""
        s_mul_i32 s3, s{S_WM}, 12288
        s_add_u32 s3, s3, s{S_RD}
        v_add_u32 v32, s3, v1
        v_and_b32 v{T0+5}, 1, v{T0+1}
        v_lshl_add_u32 v{T0+5}, v{T0+5}, 2, v{T0+2}
        v_lshrrev_b32 v{T0+4}, 1, v{T0+1}
        v_lshl_add_u32 v{T0+4}, v{T0+4}, 4, v{T0+5}
        v_lshlrev_b32 v{T0+4}, 8, v{T0+4}
        v_lshl_add_u32 v{T0+4}, v{T0+3}, 3, v{T0+4}
        s_add_u32 s3, s{S_RD}, 24576
        v_add_u32 v{T0+4}, s3, v{T0+4}
        s_and_b32 s3, s{S_NT2}, 1
        s_lshl_b32 s3, s3, 2
        s_lshl_b32 s4, s{S_WN}, 1
        s_add_u32 s3, s3, s4
        v_xor_b32 v{T0+6}, s3, v{T0+5}
        v_lshl_add_u32 v35, v{T0+6}, 5, v{T0+4}
        v_xor_b32 v36, 32, v35
        v_xor_b32 v33, 128, v35
        v_xor_b32 v34, 160, v35
        """)
    def g_epi(self, p, c):
        st = c.opt.get('stflag', '')
        p(xch_off(c, f"s_mov_b32 s4, s{S_NT2}", S_WID, 3))
        p("s_add_u32 s4, s3, 4096")
        if c.opt.get('xbf'):
            for m in range(4):
                a, b = self.acc(m, 0), self.acc(m, 1)
                for i, r in enumerate((a, a + 2, b, b + 2)): p(f"v_cvt_pk_bf16_f32 v{144 + 4 * m + i}, v{r}, v{r + 1}")
                p(f"buffer_store_dwordx4 {vr(144 + 4 * m, 4)}, v1, s[{S_WS}:{S_WS+3}], s3 offen offset:{m * 1024} {st}")
        else:
          for i in range(8):
            p(f"buffer_store_dwordx4 {vr(192 + 4 * i, 4)}, v1, s[{S_WS}:{S_WS+3}], s{3 + i // 4} offen offset:{(i % 4) * 1024} {st}")
        p("s_waitcnt lgkmcnt(0)")

class WO(N64):
    def __init__(self, xw=2, xbar=False, pubstep=2): self.xw = xw; self.nsteps = 9 - 3 * xw // 2; self.xbar = xbar; self.pubstep = pubstep
    def __call__(self): return self
    order = 'perm32b'; bname = 'w4'; babytes = 3584 * 2048
    a_base = WS_AF; a_size = 18 * MB; a_pitch = AF_PITCH; a_k0 = 108 * 1024
    b_k0 = 108 * 32 * 2048
    ncall = 0; pubv = 28
    def dma_atoms(self, c):
        D = N64.dma_atoms(self, c)
        if self.ncall == 0:
            a = Atoms(); srd(a, S_B, ptr('wo'), 1024 * 2048)
            a(f"s_mov_b32 s{S_SO[0]}, {(112 + 6 * self.xw) * 1024}\ns_mov_b32 s{S_SO[1]}, {6 * self.xw * 32 * 2048}")
            D[-1] += "\n" + "\n".join(a.L)
        self.ncall += 1
        return D
    def h_poll(self, c, t):
        m = c.opt.get('xmode', 0)
        if (m == 1 and t == self.nsteps - 2) or (m == 2 and t == self.nsteps - 1): return poll_flags(c, F_XCH, S_MT2, single=S_NT2)
    def h_pre(self, p, c, t):
        if t == self.nsteps - 2 and c.opt.get('xmode', 0) == 0: poll_flags(c, F_XCH, S_MT2, single=S_NT2).issue(p)
        if t == self.nsteps - 1 and c.opt.get('xmode', 0) == 3: poll_flags(c, F_XCH, S_MT2, single=S_NT2).issue(p)
    def h_extra(self, p, c, t):
        if t == self.nsteps - 1 and c.opt.get('xmode', 0) != 2:
            if c.opt.get('xmode', 0) in (0, 3): poll_flags(c, F_XCH, S_MT2, single=S_NT2).check(p)
            p.add(self.xch)
            return len(self.xch)
        return 0
    def h_epi(self, p, c):
        if c.opt.get('xmode', 0) == 2: p.add(self.xch)
        p("s_waitcnt vmcnt(0)\ns_barrier")
        hstep_stamp(p, c)
    def g_zero(self, p): pass
    def h_tail(self, c):
        ho = c.opt.get('hoflag', '')
        W = f"s[{S_WS}:{S_WS+3}]"
        pre = xch_off(c, f"s_xor_b32 s4, s{S_NT2}, 1", S_WM, 49) + f"""
        s_lshl_b32 s3, s{S_NT2}, 1
        s_lshr_b32 s4, s{S_WM}, 1
        s_add_u32 s3, s3, s4
        s_lshl_b32 s3, s3, 10
        s_lshl_b32 s4, s{S_MT2}, 1
        s_and_b32 s5, s{S_WM}, 1
        s_add_u32 s4, s4, s5
        s_lshl_b32 s4, s4, 17
        s_add_u32 s3, s3, s4
        s_add_u32 s50, s3, {WS_X1}
        s_mul_i32 s4, s{S_WM}, 12288
        s_add_u32 m0, s4, s{S_DMA}
        """
        D = []
        for m in range(4): D.append(f"buffer_load_dwordx4 v1, {W}, s50 offen {ho} lds\ns_add_u32 s50, s50, 32768\ns_add_u32 m0, m0, 1024")
        for i in range(8):
            D.append(f"buffer_load_dwordx4 v1, {W}, s49 offen offset:{(i % 4) * 1024} {ho} lds" + ("\ns_add_u32 s49, s49, 4096\ns_add_u32 m0, m0, 4096" if i == 3 else ""))
        D[0] = pre + D[0]
        self.xch = D[4:8] if c.opt.get('xbf') else D[4:]
        return D[:4]
    def g_pre(self, p, c):
        ho = c.opt.get('hoflag', '')
        p(f"""
        s_lshl_b32 s4, s{S_MT2}, 9
        s_lshl_b32 s5, s{S_WM}, 8
        s_add_u32 s4, s4, s5
        s_add_u32 s4, s4, {WS_G + 8192}
        v_lshlrev_b32 v36, 2, v{T0}
        """)
        for m in range(4): p(f"buffer_load_dword v{176 + 2 * m}, v36, s[{S_WS}:{S_WS+3}], s4 offen offset:{64 * m} {ho}")
    def g_epi(self, p, c):
        st = c.opt.get('outflag', '')
        p(f"""
        s_mul_i32 s3, s{S_WID}, 12288
        s_add_u32 s3, s3, s{S_RD}
        v_add_u32 v37, s3, v1
        """)
        for m in range(4): p(f"ds_read_b128 {vr(96 + 4 * m, 4)}, v37 offset:{1024 * m}")
        srd(p, S_AUX, ptr('out'), 2048 * 2048)
        lane_fields(p, T0, T0 + 1)
        p(f"""
        s_lshl_b32 s3, s{S_MT2}, 7
        s_lshl_b32 s4, s{S_WM}, 6
        s_add_u32 s3, s3, s4
        v_add_u32 v36, s3, v{T0}
        v_lshlrev_b32 v36, 11, v36
        v_and_b32 v{T0+2}, 1, v{T0+1}
        v_lshrrev_b32 v{T0+3}, 1, v{T0+1}
        v_lshl_add_u32 v36, v{T0+2}, 5, v36
        v_lshl_add_u32 v36, v{T0+3}, 4, v36
        s_lshl_b32 s3, s{S_NT2}, 7
        s_lshl_b32 s4, s{S_WN}, 6
        s_add_u32 s42, s3, s4
        """)
        for m in range(4):
            for n in range(2):
                a = self.acc(m, n)
                for d in range(2):
                    x = 96 + 4 * m + 2 * n + d
                    p(f"v_lshlrev_b32 v48, 16, v{x}\nv_and_b32 v49, 0xffff0000, v{x}")
                    p(f"v_pk_fma_f32 {vr(a + 2 * d, 2)}, v[48:49], {vr(176 + 2 * m, 2)}, {vr(a + 2 * d, 2)} op_sel_hi:[1,0,1]")
        p("s_barrier")
        for m in range(4):
            for n in range(1 if c.opt.get('xbf') else 2): p(f"ds_read_b128 {vr(144 + 4 * (4 * n + m), 4)}, v37 offset:{4096 + 1024 * (4 * n + m)}")
        for m in range(4):
            a, b = self.acc(m, 0), self.acc(m, 1)
            if c.opt.get('xbf'):
                for i in range(4): p(f"v_lshlrev_b32 v{48 + 2 * i}, 16, v{144 + 4 * m + i}\nv_and_b32 v{49 + 2 * i}, 0xffff0000, v{144 + 4 * m + i}")
                for i, r in enumerate((a, a + 2, b, b + 2)): p(f"v_pk_add_f32 {vr(r, 2)}, {vr(r, 2)}, {vr(48 + 2 * i, 2)}")
            else:
                for r in (a, a + 2, b, b + 2): p(f"v_pk_add_f32 {vr(r, 2)}, {vr(r, 2)}, {vr(r - 80, 2)}")
            t = 72 + 4 * m
            for i, r in enumerate((a, a + 2, b, b + 2)): p(f"v_cvt_pk_bf16_f32 v{t + i}, v{r}, v{r + 1}")
            p(f"v_permlane16_swap_b32 v{t}, v{t + 2}")
            p(f"v_permlane16_swap_b32 v{t + 1}, v{t + 3}")
            p(f"buffer_store_dwordx4 {vr(t, 4)}, v36, s[{S_AUX}:{S_AUX+3}], s42 offen {st}")
            if m < 3: p(f"s_add_u32 s42, s42, {16 * 2048}")


def stats_code(p, c, xs, gs, wave):
    W = f"s[{S_WS}:{S_WS+3}]"
    st = c.opt.get('stflag', '')
    q = QKV()
    for t in range(2, 8): QKV.h_mix(q, p, c, t)
    QKV.h_extra(q, p, c, 7)

class W1F(W1):
    xbar = False
    h_steps = (0, 1, 2, 3, 4, 5)
    def h_first(self, p, c): pass
    def g_first(self, p, c, pf=True):
        srd(p, S_A, ptr('x'), 2048 * 2048)
        srd(p, S_B, ptr('gate'), 2048)
        p(f"""
        s_lshl_b32 s48, s{S_MT3}, 4
        s_add_u32 s48, s48, s{S_NT3}
        s_lshl_b32 s48, s48, 3
        s_lshl_b32 s3, s{S_WID}, 1
        s_add_u32 s48, s48, s3
        s_lshl_b32 s3, s48, 11
        buffer_load_dwordx4 v[64:67], v1, s[{S_A}:{S_A+3}], s3 offen
        buffer_load_dwordx4 v[68:71], v1, s[{S_A}:{S_A+3}], s3 offen offset:1024
        buffer_load_dwordx4 v[72:75], v1, s[{S_A}:{S_A+3}], s3 offen offset:2048
        buffer_load_dwordx4 v[76:79], v1, s[{S_A}:{S_A+3}], s3 offen offset:3072
        buffer_load_dwordx4 v[80:83], v1, s[{S_B}:{S_B+3}], 0 offen
        buffer_load_dwordx4 v[84:87], v1, s[{S_B}:{S_B+3}], 0 offen offset:1024
        """)
        if pf: g_prefetch(p, c, [('w1', 2 * MB, i, 1) for i in range(2)])
    def early(self, p, c): stats_code(p, c, 64, 80, S_WID)
    def h_poll(self, c, t):
        if t == 0: return poll_init(c)
        if t == 5: return poll_flags(c, F_ST, S_MT2)
    def h_post(self, p, c, t): pass
    def h_extra(self, p, c, t):
        L = c.opt.get('w1pf', {1: [0], 2: [1], 3: [2]})
        return g_prefetch(p, c, [('wqkv', 6 * MB, i, 1) for i in L[t]]) if t in L else 0
    def g_sites(self, c):
        def pub(p):
            p("s_waitcnt vmcnt(0)")
            publish(p, c, F_ST, False)
        def ld(p):
            ho = c.opt.get('hoflag', '')
            p(f"""
            s_lshl_b32 s3, s{S_MT2}, 9
            s_lshl_b32 s4, s{S_WM}, 8
            s_add_u32 s3, s3, s4
            s_add_u32 s3, s3, {WS_ST1}
            s_add_u32 s4, s3, 8192
            v_and_b32 v36, 15, v0
            v_lshlrev_b32 v36, 2, v36
            """)
            for m in range(4):
                p(f"buffer_load_dword v{144 + 8 * m}, v36, s[{S_WS}:{S_WS+3}], s3 offen offset:{64 * m} {ho}")
                p(f"buffer_load_dword v{145 + 8 * m}, v36, s[{S_WS}:{S_WS+3}], s4 offen offset:{64 * m} {ho}")
        return {1: pub, 6: ld}
    lds_consts = False

class QKV2(QKV):
    h_steps = (0,)
    zero_first = True
    def h_setup(self, p, c, first=False):
        srd(p, S_A, ptr('x'), 2048 * 2048)
        QKV.h_setup(self, p, c)
    def g_sites(self, c): return {}
    def h_poll(self, c, t): return None
    def h_mix(self, p, c, t): pass
    def h_extra(self, p, c, t):
        if t == 0: return g_prefetch(p, c, c.opt.get('qpf', [('wqkv', 6 * MB, 3, 3)]))
        if t == 9: return g_prefetch(p, c, [('w2', 2 * MB, 0, 2)])
        return 0
    h_steps = (0, 9)

class W2X(W2):
    xbar = True
    pubstep = 2

class QKVG(QKV):
    h_steps = (0, 1, 2, 3, 4, 5, 6)
    def h_first(self, p, c): srd(p, S_A, ptr('x'), 2048 * 2048)
    def g_first(self, p, c):
        W1F.g_first(self, p, c, False)
        QKV.g_first(self, p, c)
    def early(self, p, c): stats_code(p, c, 64, 80, S_WID)
    def h_mix(self, p, c, t): pass
    def h_extra(self, p, c, t): return QKV.h_extra(self, p, c, t) if t < 7 else 0
    def g_sites(self, c):
        def pub(p):
            p("s_waitcnt vmcnt(0)")
            publish(p, c, F_ST, False)
        return {7: pub}


def cs3_loads(a, c, S_MT3=S_MT3, S_NT3=S_NT3):
    t = Atoms()
    srd(t, S_AUX, ptr('w3'), 1024 * 7168)
    t(f"""
    s_mul_i32 s6, s{S_NT3}, 448
    s_and_b32 s6, s6, {0xffffff80}
    s_lshl_b32 s4, s{S_WM}, 7
    s_add_u32 s6, s6, s4
    s_lshl_b32 s4, s{S_MT3}, 6
    v_lshrrev_b32 v{T0}, 3, v0
    v_add_u32 v{T0}, s4, v{T0}
    v_mul_u32_u24 v{T0}, 7168, v{T0}
    v_and_b32 v{T0+1}, 7, v0
    v_lshl_add_u32 v{T0}, v{T0+1}, 4, v{T0}
    """)
    a("\n".join(t.L))
    for i in range(8):
        a(f"buffer_load_dwordx4 {vr(160 + 4 * i, 4)}, v{T0}, s[{S_AUX}:{S_AUX+3}], s6 offen\ns_add_u32 s6, s6, {8 * 7168}")
    return 8
def cs3_math(p, c, *ids):
    q = W3()
    for t in range(1, 6): W3.h_mix(q, p, c, t)
    cs3_store(p, c, *ids)
def cs3_store(p, c, S_MT3=S_MT3, S_NT3=S_NT3):
    p(f"""
    s_lshl_b32 s3, s{S_NT3}, 4
    s_add_u32 s3, s3, s{S_MT3}
    s_lshl_b32 s3, s3, 2
    s_add_u32 s3, s3, s{S_WM}
    s_lshl_b32 s3, s3, 8
    s_add_u32 s3, s3, {WS_CSP}
    buffer_store_dwordx2 v[48:49], v56, s[{S_WS}:{S_WS+3}], s3 offen {c.opt.get('stflag', '')}
    """)

class W3E(W3):
    h_steps = (2, 3, 4, 5)
    chain = True
    def g_sites(self, c): return {}
    def h_poll(self, c, t): return None
    def poll(self, c):
        P = poll_flags(c, F_W2, S_MT3)
        P.addr += f"""
        v_and_b32 v138, 14, v0
        v_lshlrev_b32 v138, 4, v138
        v_and_b32 v139, 1, v0
        s_lshl_b32 s3, s{S_NT3}, 1
        v_add3_u32 v138, v138, v139, s3
        v_lshlrev_b32 v138, 7, v138
        v_add_u32 v136, {(F_W2 - F_W1) * 32768}, v136
        v_cmp_gt_u32 vcc, 32, v0
        v_cndmask_b32 v136, v138, v136, vcc
        s_mov_b32 s{S_POLL}, {WS_FLAG + F_W1 * 32768}
        """
        return P
    def h_late(self, a, c):
        W = f"s[{S_WS}:{S_WS+3}]"
        ho = c.opt.get('hoflag', '')
        a.atom(f"""
        v_and_b32 v{T0}, 15, v0
        v_lshrrev_b32 v{T0+1}, 4, v0
        v_lshlrev_b32 v{T0}, 4, v{T0}
        v_lshl_add_u32 v{T0+2}, v{T0+1}, 10, v{T0}
        v_lshl_add_u32 v{T0+3}, v{T0+1}, 17, v{T0}
        v_lshlrev_b32 v{T0+4}, 2, v0
        s_lshl_b32 s53, s{S_NT3}, 14
        s_lshl_b32 s4, s{S_WM}, 8
        s_add_u32 s53, s53, s4
        s_add_u32 s53, s53, {WS_CSP}
        s_lshl_b32 s50, s{S_MT3}, 10
        s_add_u32 s50, s50, s4
        s_lshr_b32 s49, s50, 1
        s_add_u32 s49, s49, {WS_G + 8192}
        s_add_u32 s50, s50, {WS_P2}
        """)
        for i in range(4): a.atom(f"buffer_load_dwordx4 {vr(160 + 4 * i, 4)}, v{T0+2}, {W}, s53 offen {ho}\ns_add_u32 s53, s53, 4096")
        for i in range(8): a.atom(f"buffer_load_dwordx4 {vr(176 + 4 * i, 4)}, v{T0+3}, {W}, s50 offen {ho}\ns_add_u32 s50, s50, 16384")
        a.atom(f"buffer_load_dword v208, v{T0+4}, {W}, s49 offen {ho}")
        return 13
    def h_extra(self, p, c, t): return 0
    def h_mix(self, p, c, t):
        if t == 2:
            for i in range(4):
                for d in range(4): p(f"v_add_f32 v{64 + 4 * i + d}, v{176 + 4 * i + d}, v{192 + 4 * i + d}")
            for st_ in (2, 1):
                for i in range(st_):
                    for d in range(4): p(f"v_add_f32 v{64 + 4 * i + d}, v{64 + 4 * i + d}, v{64 + 4 * (i + st_) + d}")
            p("v_mov_b32 v96, v208")
        if t in (3, 4, 5): W3.h_mix(self, p, c, t + 8)

class W2C(W2):
    h_steps = (1, 2, 3, 4, 5)
    def h_late(self, a, c):
        if c.opt.get('cs3at') != 'late': return 0
        t = Atoms(); n = cs3_loads(t, c, S_MT2, S_NT2); a.atom("\n".join(t.L)); return n
    def h_mix(self, p, c, t):
        if 1 <= t <= 5: W3.h_mix(self, p, c, t)
    def h_extra(self, p, c, t):
        if t == 5:
            cs3_store(p, c, S_MT2, S_NT2); return 1
        return 0
class W3F(W3E):
    def poll(self, c): return poll_flags(c, F_W2, S_MT3, col_sgpr=S_NT3)

class W3G(W3F):
    h_steps = tuple(range(1, 14))
    def h_late(self, a, c): return 0
    def h_extra(self, p, c, t):
        W = f"s[{S_WS}:{S_WS+3}]"
        ho = c.opt.get('hoflag', '')
        n = W3.h_extra(self, p, c, t) if (1 <= t <= 8 and t != 5) else 0
        if t == 5:
            p(f"buffer_load_dwordx4 {vr(64 + 4 * (t - 1), 4)}, v63, {W}, s50 offen {ho}\ns_add_u32 s50, s50, 16384"); n = 1
        if 8 <= t <= 11:
            p(f"buffer_load_dwordx4 {vr(160 + 4 * (t - 8), 4)}, v62, {W}, s53 offen {ho}\ns_add_u32 s53, s53, 4096"); n += 1
        return n
    def h_mix(self, p, c, t):
        if t >= 10: W3.h_mix(self, p, c, t)
```

```python
from mk4 import *
bh = dict(cs3m=1, cs3at=14)
V = {
 'a': (P8(), {}), 'b': (PH(), bh), 'c': (PH(((8, 12), (8, 8), (8, 12)), 8, 0), bh), 'd': (PH(((8, 12), (8, 12), (12, 12)), 0, 0), bh), 'e': (PH(((8, 12), (8, 8), (8, 8)), 8, 4), bh),
}
for k, (g, o) in V.items():
    make(f"p5{k}.s", g, dict(base, final=1, **o))
make("p4m.s", PH(((8, 12), (8, 8), (8, 8)), 8, 4), dict(base, hstamp=1, **bh))
make("p5f.s", PH(), dict(base, final=1, lmaxlog=3, **bh))
print(" ".join(f"mb/p5{k}.s" for k in V))
```

```python
from attn import *
B_O, B_Q, B_L, B_M, B_G = (192, 208), (224, 232), (240, 244), (248, 249), (250, 251)
B_C, B_V0, B_V1 = (48, 2), (104, 108), (112, 116)

class AttnH(Attn):
    defer1 = True
    def __init__(self, b0, stages, pf=(), local=False):
        Attn.__init__(self, b0, stages, pf=pf, local=local, defer1=True)
        assert len(stages) == 2
        self.NI = sum(stages) // 2
        self.bars = [stages[0] // 2 - 1, self.NI - 1]
    def early(self, p, c): pass
    def h_post_dep(self, p, c):
        if self.last:
            p(f"""
            s_lshl_b32 s3, s{S_QB}, 10
            s_lshl_b32 s4, s{S_WM}, 8
            s_add_u32 s3, s3, s4
            s_add_u32 s3, s3, {WS_G}
            v_and_b32 v{T0}, 31, v0
            v_lshlrev_b32 v{T0}, 2, v{T0}
            buffer_load_dword v{B_G[0]}, v{T0}, s[{S_WS}:{S_WS+3}], s3 offen {c.opt.get('hoflag', '')}
            buffer_load_dword v{B_G[1]}, v{T0}, s[{S_WS}:{S_WS+3}], s3 offen offset:128 {c.opt.get('hoflag', '')}
            """)
    def LLq(self, q): return f"v_smfmac_f32_16x16x64_bf16 {vr(B_L[q], 4)}, {vr(A_SEL, 4)}, {vr(A_P[0], 8)}, v{A_IDX}"
    def cblocks(self, p, qs=(0, 1)):
        for q in qs:
            for i in range(16): p(f"v_mov_b32 v{B_C[q] + i}, v{B_M[q]}")
    def presetup(self, p, c):
        self.sel_setup(p)
        for i in range(8): p(f"v_mov_b32 v{A_P[0] + i}, 0")
        for i in range(4): p(f"v_mov_b32 v{B_V1[1] + i}, 0")
        if self.first:
            for i in range(32): p(f"v_mov_b32 v{B_O[0] + i}, 0")
            for i in range(8): p(f"v_mov_b32 v{B_L[0] + i}, 0")
        else: self.cblocks(p)
    def negmax(self, p, q, tmp):
        p(f"""
        v_mov_b32 v{tmp}, v{B_M[q]}
        v_permlane32_swap_b32 v{B_M[q]}, v{tmp}
        v_max_f32 v{B_M[q]}, v{B_M[q]}, v{tmp}
        v_sub_f32 v{B_M[q]}, 0, v{B_M[q]}
        """)
    def setup(self, p, c):
        p(f"v_add_u32 v{A_AD}, s{S_RD}, v1")
        p(f"""
        ds_read_b128 {vr(A_K, 4)}, v{A_AD}
        ds_read_b128 {vr(A_K + 4, 4)}, v{A_AD} offset:1024
        """)
        if self.first:
            p(f"s_lshl_b32 s3, s{S_WM}, 12\nv_add_u32 v{T0}, s3, v{A_AD}")
            for i in range(4): p(f"ds_read_b128 {vr(B_Q[0] + 4 * i, 4)}, v{T0} offset:{32768 + 1024 * i}")
        p(f"""
        ds_read_b128 {vr(B_V0[0], 4)}, v{A_AD} offset:2048
        ds_read_b128 {vr(B_V1[0], 4)}, v{A_AD} offset:3072
        """)
        if self.first:
            for q in range(2):
                p(mfma32(A_S[q], A_K, B_Q[q], "0"))
                p(mfma32(A_S[q], A_K + 4, B_Q[q] + 4))
            for q in range(2):
                self.rowmax(p, A_S[q], B_M[q])
                self.negmax(p, q, T0)
            self.cblocks(p)
        p(mfma32(A_S[0], A_K, B_Q[0], B_C[0]))
        p(mfma32(A_S[0], A_K + 4, B_Q[0] + 4))
        p("s_nop 9\ns_waitcnt lgkmcnt(0)")
    def tile(self, c, t, noff=None, order=None):
        q = t % 2; b = t // 2
        if noff is None: noff = 4096 if b == 0 else 0
        S = A_S[q]; Sn = A_S[q ^ 1]
        rd = lambda d, o: f"ds_read_b128 {vr(d, 4)}, v{A_AD} offset:{noff + o}"
        pb = b if q == 1 else b ^ 1
        d = dict(O1=mfma32(B_O[q ^ 1], B_V1[pb], A_P[1]), LL=self.LLq(q ^ 1), O0=mfma32(B_O[q], B_V0[b], A_P[0]),
                 Sa=mfma32(Sn, A_K, B_Q[q ^ 1], B_C[q ^ 1]), Sb=mfma32(Sn, A_K + 4, B_Q[q ^ 1] + 4))
        if q == 0: d.update(r0=rd(A_K, 0), r1=rd(A_K + 4, 1024), w="s_waitcnt lgkmcnt(0)")
        else: d.update(r0=rd(B_V0[b ^ 1], 2048), r1=rd(B_V1[b ^ 1], 3072), w=None)
        E = [f"v_exp_f32 v{S + i}, v{S + i}" for i in range(16)]
        C = [f"v_cvt_pk_bf16_f32 v{A_P[i // 4] + i % 4}, v{S + 2 * i}, v{S + 2 * i + 1}" for i in range(8)]
        L = []
        d.update(p0="s_setprio 0", p1="s_setprio 1")
        for x in (order or c.opt.get('aorder', "Sa r0 e3 Sb r1 e3 LL e2 O1 c4 e4 w O0 e4 c4")).split():
            if x[0] == 'e': L += E[:int(x[1:])]; E = E[int(x[1:]):]
            elif x[0] == 'c': L += C[:int(x[1:])]; C = C[int(x[1:]):]
            elif d[x]: L.append(d[x])
        return L
    adv = 8192
    def drain(self, p):
        p(mfma32(B_O[1], B_V1[1], A_P[1]))
        p(self.LLq(1))
        p("s_waitcnt lgkmcnt(0)")
    def g_body(self, p, c, prev):
        nxt = self.nxt
        p(f"""
        s_mov_b32 s{S_WM}, s{S_WID}
        s_mov_b32 s{S_DMA}, s{S_RD}
        """)
        p.add(slot_adv_dma())
        sv = self.local; self.local = True; self.h_setup(p, c); self.local = sv
        if self.local:
            P = self.poll(c); P.issue(p); P.check(p)
        self.ncall = 1
        p.add(self.dma_atoms(c))
        if getattr(prev, 'deferred', None): p.add(prev.deferred)
        nxt.h_setup2(p, c)
        p("s_waitcnt vmcnt(0)")
        publish(p, c, prev.pubkind, False)
        self.prefetch(p, c)
        p.add(slot_adv_rd())
        p("s_barrier")
        P = nxt.poll(c); P.issue(p); P.check(p)
        p.add(nxt.dma_atoms(c))
        p.add(nxt.dma_atoms(c))
        p(f"s_and_b32 s{S_WM}, s{S_WID}, 1")
        p.add(slot_adv_rd())
        nxt.g_setup(p, c); nxt.g_setup = lambda p, c: None
        p("s_waitcnt vmcnt(0)\ns_barrier")
    def g_epi(self, p, c): pass
    def h_body(self, p, c, nxt, skip0=False):
        if self.local: p(f"s_mov_b32 s{S_RD}, s{S_DMA}")
        else:
            p(f"""
            s_cmp_eq_u32 s{S_DMA}, 0
            s_cselect_b32 s{S_RD}, {SLOT * NSLOT}, s{S_DMA}
            s_sub_u32 s{S_RD}, s{S_RD}, {SLOT}
            """)
        self.setup(p, c)
        def e1(p):
            self.next_slot(p)
            nxt.h_setup2(p, c)
            nxt.skip_stages(p, c, 2)
            p("s_waitcnt lgkmcnt(0)\ns_barrier")
            hstep_stamp(p, c)
        def e3(p):
            p(f"s_mov_b32 s{S_DMA}, s{S_RD}")
            self.next_slot(p)
            p("s_waitcnt lgkmcnt(0)\ns_barrier")
            hstep_stamp(p, c)
            a = Atoms()
            nxt.first_extra = nxt.h_late(a, c)
            p.add(nxt.dma_atoms(c))
            p.add(a.L)
        self.loop(p, c, {self.bars[0]: e1, self.bars[1]: e3}, lambda k: [])
        return True
    def h_epi(self, p, c):
        if not self.last: return
        a = Atoms(); self.epi_sums(a, c); p.add(a.L)
        self.epi_check(p, c)
        a = Atoms(); st = self.epi_atoms(a, c); p.add(a.L); p.add(st)
    X = 18
    def epi_sums(self, p, c):
        X = self.X
        for q in range(2):
            p(f"v_add_f32 v{X+q}, v{B_L[q]}, v{B_L[q]+1}")
        for i in range(16):
            for q in range(2): p(f"v_fma_f32 v{X+q}, v{B_O[q] + i}, 0, v{X+q}")
        p(f"v_mov_b32 v{X+2}, {hexf(2.0 ** c.opt.get('lmaxlog', 64))}")
    def epi_check(self, p, c):
        X = self.X
        for q in range(2):
            Lok = c.lab("ok"); Lf = c.lab("fbk")
            p(f"v_cmp_nlt_f32 vcc, v{X+q}, v{X+2}\ns_cbranch_vccnz {Lf}")
            p.label(Lok)
            def ool(z, q=q, Lf=Lf, Lok=Lok):
                z.label(Lf)
                self.fallback(z, c, q)
                z(f"v_add_f32 v{X+q}, v{B_L[q]}, v{B_L[q]+1}\ns_branch {Lok}")
            c.ool.append(ool)
    def epi_atoms(self, p, c):
        st = c.opt.get('stflag', '')
        W = f"s[{S_WS}:{S_WS+3}]"
        X = self.X
        for q in range(2): p(f"v_rcp_f32 v{X+q}, v{X+q}")
        p(f"""
        v_and_b32 v{X+2}, 15, v0
        v_bfe_u32 v{X+3}, v0, 4, 1
        v_lshrrev_b32 v{X+4}, 5, v0
        v_mul_u32_u24 v{X+3}, {AF_PITCH}, v{X+3}
        v_lshl_add_u32 v{X+3}, v{X+2}, 4, v{X+3}
        v_lshl_add_u32 v{X+3}, v{X+4}, 8, v{X+3}
        """)
        p.atom(f"""
        s_lshl_b32 s3, s{S_QB}, 2
        s_add_u32 s3, s3, s{S_WM}
        s_mul_i32 s3, s3, {4 * AF_PITCH}
        s_lshl_b32 s4, s{S_HEAD}, 10
        s_add_u32 s3, s3, s4
        s_add_u32 s49, s3, {WS_AF + 112 * 1024}
        s_add_u32 s50, s49, {2 * AF_PITCH}
        """)
        S = []
        for q in range(2):
            p(f"v_mul_f32 v{X+q}, v{X+q}, v{B_G[q]}")
        for q in range(2):
            for i in range(16): p(f"v_mul_f32 v{B_O[q] + i}, v{B_O[q] + i}, v{X+q}")
            for i in range(8): p(f"v_cvt_pk_bf16_f32 v{B_O[q] + i}, v{B_O[q] + 2 * i}, v{B_O[q] + 2 * i + 1}")
            for u in range(2): S.append(f"buffer_store_dwordx4 {vr(B_O[q] + 4 * u, 4)}, v{X+3}, {W}, s{49 + q} offen offset:{512 * u} {st}")
        return S
    def fallback(self, p, c, q):
        ho = c.opt.get('hoflag', '')
        W = f"s[{S_WS}:{S_WS+3}]"
        L1 = c.lab("fb"); L2 = c.lab("fb")
        S = A_S[0]
        p(f"""
        s_lshl_b32 s5, s{S_HEAD}, 18
        s_add_u32 s5, s5, {WS_KV}
        s_mov_b32 s6, s5
        s_mov_b32 s7, 64
        v_mov_b32 v{B_M[q]}, 0xff800000
        """)
        p.label(L1)
        p(f"""
        buffer_load_dwordx4 {vr(A_K, 4)}, v1, {W}, s6 offen {ho}
        buffer_load_dwordx4 {vr(A_K + 4, 4)}, v1, {W}, s6 offen offset:1024 {ho}
        s_waitcnt vmcnt(0)
        """)
        p(mfma32(S, A_K, B_Q[q], "0"))
        p(mfma32(S, A_K + 4, B_Q[q] + 4))
        self.rowmax(p, S, B_M[q], True)
        p(f"s_add_u32 s6, s6, 4096\ns_sub_u32 s7, s7, 1\ns_cmp_lg_u32 s7, 0\ns_cbranch_scc1 {L1}")
        self.negmax(p, q, T0)
        p("s_mov_b32 s7, 64")
        self.cblocks(p, (q,))
        for i in range(16): p(f"v_mov_b32 v{B_O[q] + i}, 0")
        for i in range(4): p(f"v_mov_b32 v{B_L[q] + i}, 0")
        p.label(L2)
        p(f"""
        buffer_load_dwordx4 {vr(A_K, 4)}, v1, {W}, s5 offen {ho}
        buffer_load_dwordx4 {vr(A_K + 4, 4)}, v1, {W}, s5 offen offset:1024 {ho}
        buffer_load_dwordx4 {vr(B_V0[0], 4)}, v1, {W}, s5 offen offset:2048 {ho}
        buffer_load_dwordx4 {vr(B_V1[0], 4)}, v1, {W}, s5 offen offset:3072 {ho}
        s_waitcnt vmcnt(0)
        """)
        p(mfma32(S, A_K, B_Q[q], B_C[q]))
        p(mfma32(S, A_K + 4, B_Q[q] + 4))
        for i in range(16): p(f"v_exp_f32 v{S + i}, v{S + i}")
        for i in range(8): p(f"v_cvt_pk_bf16_f32 v{A_P[i // 4] + i % 4}, v{S + 2 * i}, v{S + 2 * i + 1}")
        p(mfma32(B_O[q], B_V0[0], A_P[0]))
        p(mfma32(B_O[q], B_V1[0], A_P[1]))
        p(self.LLq(q))
        p(f"s_add_u32 s5, s5, 4096\ns_sub_u32 s7, s7, 1\ns_cmp_lg_u32 s7, 0\ns_cbranch_scc1 {L2}")


S_KV, S_KVO, S_KVS = 44, 63, 100
class Host:
    def __init__(self, att, d0, hsteps, final): self.att, self.d0, self.hsteps, self.final = att, d0, hsteps, final
    def kv_setup(self, p, c, skip):
        p(f"""
        s_lshl_b32 s3, s{S_HEAD}, 18
        s_add_u32 s3, s3, {WS_KV}
        s_add_u32 s{S_KV}, s{ptr('ws')}, s3
        s_addc_u32 s{S_KV+1}, s{ptr('ws')+1}, 0
        s_mov_b32 s{S_KV+2}, 0x40000
        s_mov_b32 s{S_KV+3}, 0x20000
        s_lshl_b32 s4, s{S_WM}, 10
        s_lshl_b32 s{S_KVS}, s{S_QB}, 15
        s_add_u32 s{S_KVS}, s{S_KVS}, s4
        s_add_u32 s{S_KVO}, s4, {(self.d0 + skip) * 4096}
        s_sub_u32 s3, s{S_KVO}, 32768
        s_cmp_ge_u32 s3, s{S_KVS}
        s_cselect_b32 s{S_KVO}, s{S_KVO}, s3
        s_add_u32 s48, s4, {L_X}
        """)
    def kv_atom(self, c, slot):
        return f"""
        s_lshr_b32 s3, s{slot}, 3
        s_add_u32 m0, s3, s48
        buffer_load_dwordx4 v1, s[{S_KV}:{S_KV+3}], s{S_KVO} offen {c.opt.get('hoflag', '')} lds
        s_add_u32 s{S_KVO}, s{S_KVO}, 4096
        s_cmp_eq_u32 s{S_KVO}, s{S_KVS}
        s_cselect_b32 s3, 32768, 0
        s_add_u32 s{S_KVO}, s{S_KVO}, s3
        """
    def step(self, p, c, par, D, last):
        A = self.att
        p(f"s_lshr_b32 s3, s{S_RD}, 3\ns_add_u32 s3, s3, {L_X}\nv_add_u32 v{A_AD}, s3, v1")
        p.add(D[:2])
        t0 = 2 if par == 0 else 0
        ho = c.opt.get('horder')
        T = A.mix(A.tile(c, t0, 0, ho) + A.tile(c, t0 + 1, 0, ho), D[2:] + ["\n".join(slot_adv_rd())])
        if c.opt.get('tog'):
            T = sum(([["s_setprio 1", x, "s_setprio 0"] if (x.startswith('v_mfma') or x.startswith('v_smfmac')) else [x]][0] for x in T), [])
        p.add(T)
        if last and self.final: A.drain(p)
        if last: p("s_setprio 0")
    def finish(self, p, c, D):
        A = self.att
        if not c.opt.get('finmix', 1):
            p.add(D); A.epilogue(p, c); return 4
        a = Atoms(); A.epi_sums(a, c)
        p.add(spread(D[:4], a.L))
        A.epi_check(p, c)
        a = Atoms(); st = A.epi_atoms(a, c)
        p.add(spread(D[4:], a.L)); p.add(st)
        return 4
    def publish(self, p, c):
        p(f"""
        s_lshl_b32 s3, s{S_QB}, 5
        s_add_u32 s3, s3, s{S_HEAD}
        s_lshl_b32 s3, s3, 7
        s_lshl_b32 s4, s{S_WM}, 2
        s_add_u32 s3, s3, s4
        s_add_u32 s3, s3, {WS_FLAG + F_ATT * 32768}
        v_mov_b32 v18, 0
        v_mov_b32 v19, 1
        s_mov_b64 exec, 1
        buffer_store_dword v19, v18, s[{S_WS}:{S_WS+3}], s3 offen sc1
        s_mov_b64 exec, -1
        """)

class AttnW(AttnH):
    def __init__(self, b0, stages, pf=(), local=False, cont_in=False, hosted=0, pf2=()):
        self.pf2 = pf2
        AttnH.__init__(self, b0, stages, pf=pf, local=local)
        self.cont_in = cont_in; self.hosted = hosted
        self.last = b0 + sum(stages) + hosted == 64
        self.pubkind = F_ATT if self.last else None
    def link(self, c):
        if self.hosted:
            d0 = self.b0 + sum(self.stages)
            self.nxt.host = Host(self, d0, self.hosted + 1 if self.last else self.hosted, self.last)
            if self.last and c.opt.get('hpub', 0): self.pubkind = None
            elif self.last: self.nxt.pubstep = (self.hosted + 4) // 2 * 2
    def g_body(self, p, c, prev):
        nxt = self.nxt; H = nxt.host
        p(f"""
        s_mov_b32 s{S_WM}, s{S_WID}
        s_mov_b32 s{S_DMA}, s{S_RD}
        """)
        p.add(slot_adv_dma())
        sv = self.local; self.local = True; self.h_setup(p, c); self.local = sv
        if self.local:
            self.poll(c).group_wait(p)
        self.ncall = 1
        D = self.dma_atoms(c); p.add(D)
        p(f"s_waitcnt vmcnt({nvm(D)})")
        publish(p, c, prev.pubkind, False)
        fine = lambda: c.ST(p, 'g') if c.opt.get('fine') else None
        fine()
        W = hasattr(nxt, 'w_math')
        nxt.h_setup2(p, c)
        if H: H.kv_setup(p, c, 0)
        p(f"s_mov_b32 s42, s{S_DMA}")
        p.add(slot_adv_dma())
        p(f"s_mov_b32 s43, s{S_DMA}")
        a = Prog()
        a.add(nxt.dma_part(c, 1, 42))
        if W: nxt.w_indep(a, c)
        if hasattr(nxt, 'w_l2'): nxt.w_l2(a, c)
        self.prefetch(a, c)
        p.I += a.I
        n = 1 + sum(1 for x in a.I if x.kind == 'vmem')
        p.add(slot_adv_rd())
        p(f"s_waitcnt vmcnt({n})\ns_barrier")
        fine()
        p.add(nxt.dma_part(c, 1, 43))
        if H: p(H.kv_atom(c, 42)); p(H.kv_atom(c, 43))
        nxt.poll(c).group_wait(p)
        fine()
        if W and c.opt.get('depfirst', 1): nxt.w_dep(p, c)
        p.add(nxt.dma_part(c, 0, 42))
        p.add(nxt.dma_part(c, 0, 43))
        if W and not c.opt.get('depfirst', 1): nxt.w_dep(p, c)
        n2 = g_prefetch(p, c, [(nm, {'w2': 2, 'wo': 2, 'w3': 7, 'w4': 7}[nm] * MB, a_, n_) for nm, a_, n_ in self.pf2], vdst=4)
        if hasattr(nxt, 'w_last'): n2 += nxt.w_last(p, c)
        if c.opt.get('glow', 1) == 1: p("s_setprio 0")
        if W: nxt.w_math(p, c)
        p(f"s_and_b32 s{S_WM}, s{S_WID}, 1")
        p.add(slot_adv_rd())
        nxt.g_setup(p, c); nxt.g_setup = lambda p, c: None
        if c.opt.get('glow', 1) == 2: p("s_setprio 0")
        if not W and c.opt.get('a0only', 1):
            nxt.first_wait = n2; n2 += nxt.nA
        p(f"s_waitcnt vmcnt({n2 if getattr(nxt, 'quiet', not W) else 0})")
        if W: nxt.w_fin(p, c)
        fine()
        p("s_barrier")
    def early(self, p, c):
        if c.opt.get('glow', 1): p("s_setprio 2")
    def h_body(self, p, c, nxt, skip0=False):
        H = nxt.host
        if c.opt.get('glow', 1): p("s_setprio 1")
        if self.cont_in:
            p(f"""
            s_cmp_eq_u32 s{S_DMA}, 0
            s_cselect_b32 s{S_RD}, {SLOT * NSLOT}, s{S_DMA}
            s_sub_u32 s{S_RD}, s{S_RD}, {SLOT}
            v_add_u32 v{A_AD}, s{S_RD}, v1
            """)
        else:
            if self.local: p(f"s_mov_b32 s{S_RD}, s{S_DMA}")
            else:
                p(f"""
                s_cmp_eq_u32 s{S_DMA}, 0
                s_cselect_b32 s{S_RD}, {SLOT * NSLOT}, s{S_DMA}
                s_sub_u32 s{S_RD}, s{S_RD}, {SLOT}
                """)
            self.setup(p, c)
        def e1(p):
            self.next_slot(p)
            if not c.opt.get('prenext', 1): self.pre_next(p, c)
            p("s_waitcnt vmcnt(0) lgkmcnt(0)\ns_barrier")
            hstep_stamp(p, c)
        def e3(p):
            p(f"s_mov_b32 s{S_DMA}, s{S_RD}")
            self.next_slot(p)
            p("s_waitcnt lgkmcnt(0)\ns_barrier")
            hstep_stamp(p, c)
            if H:
                p("s_setprio 1"); return
            a = Atoms()
            nxt.first_extra = nxt.h_late(a, c)
            p.add(nxt.dma_atoms(c))
            p.add(a.L)
        self.loop(p, c, {self.bars[0]: e1, self.bars[1]: e3}, lambda k: [], self.cont_in, H is not None)
        if not H: p("s_setprio 0")
        return H is None
    def loop(self, p, c, events, pf, cont_in=False, cont_out=False):
        if not c.opt.get('unr', 1): return AttnH.loop(self, p, c, events, pf, cont_in, cont_out)
        assert all(it % 2 == 1 for it in events) and self.NI % 2 == 0
        N2 = self.NI // 2
        L = c.lab("al"); Lm = c.lab("am"); Lx = c.lab("ax")
        mask = sum(1 << (N2 - it // 2) for it in events)
        p(f"s_mov_b32 s{S_CNT}, {N2 + (1 if cont_in else 0)}")
        if not cont_in: p(f"s_branch {Lm}")
        p(f".p2align {c.opt.get('align', 5)}")
        p.label(L)
        p.add(self.tile(c, 2, 0))
        p.add(self.mix(self.tile(c, 3, 0), [f"s_sub_u32 s{S_CNT}, s{S_CNT}, 1" + ("" if cont_out else f"\ns_cmp_eq_u32 s{S_CNT}, 0")]))
        if not cont_out: p(f"s_cbranch_scc1 {Lx}")
        p.label(Lm)
        for t, o in ((0, 4096), (1, 4096), (2, 8192), (3, 8192), (0, 12288)): p.add(self.tile(c, t, o))
        p.add(self.mix(self.tile(c, 1, 12288), [f"s_bitcmp1_b32 {hex(mask)}, s{S_CNT}"]))
        p(f"v_add_u32 v{A_AD}, 16384, v{A_AD}")
        p(f"s_cbranch_scc0 {L}")
        its = sorted(events)
        for i, it in enumerate(its):
            Ln = c.lab("an")
            if i < len(its) - 1: p(f"s_cmp_eq_u32 s{S_CNT}, {N2 - it // 2}\ns_cbranch_scc0 {Ln}")
            events[it](p)
            if cont_out and i == len(its) - 1: return
            p(f"s_branch {L}")
            if i < len(its) - 1: p.label(Ln)
        p.label(Lx)
        self.drain(p)
    def pre_next(self, p, c):
        nxt = self.nxt
        nxt.h_setup2(p, c)
        nxt.skip_stages(p, c, 2)
        if nxt.host: nxt.host.kv_setup(p, c, 2)
    def drain(self, p):
        if getattr(self.nxt, 'quiet', False): p("s_waitcnt lgkmcnt(0)")
        else: AttnH.drain(self, p)
    def h_epi(self, p, c):
        if not self.hosted: AttnH.h_epi(self, p, c)
    def epilogue(self, p, c): AttnH.h_epi(self, p, c)
```

```python
from common import *

SLOT = 49152
NSLOT = 3
L_X = SLOT * NSLOT
LDS_BYTES = 163840
L_MU = L_X + 4096
L_GW = L_X + 5888
L_CS = L_X + 10240
L_DUMMY = L_X + 11264

WS_ST1 = 41 * MB
WS_P2 = 42 * MB
WS_CSP = 43 * MB

S_A, S_B, S_WS, S_AUX = 8, 12, 16, 20
S_WID, S_WM, S_WN, S_XCD, S_IDX = 24, 25, 26, 27, 28
S_MT3, S_NT3, S_MT2, S_NT2, S_HEAD, S_BLK, S_QB = 29, 30, 54, 55, 51, 52, 41
S_POLL = 40
S_DBG = 88
S_FL = 88
S_CNT, S_RD, S_DELTA, S_DMA = 31, 32, 33, 34
S_SO = [35, 36]
S_LD = [37, 38]
S_OFFS = [42, 43, 44, 45, 46, 47, 92, 93, 94, 95, 98, 99]
S_NEG = 39
S_PTR = 64
def ptr(name): return S_PTR + KA[name] // 4
V_LANE, V_L16 = 0, 1
V_Q, V_O, V_L, V_M = 2, 10, 26, 30
V_AD = 32
V_FR = 48

def mfma16(d, a, b, c=None):
    cs = vr(d, 4) if c is None else (c if isinstance(c, str) else vr(c, 4))
    return f"v_mfma_f32_16x16x32_bf16 {vr(d,4)}, {vr(a,4)}, {vr(b,4)}, {cs}"

def tile_map(p, a_log2, S_MT, S_NT):
    a = 1 << a_log2; b = 32 // a
    nxm = 16 // a
    p(f"""
    s_and_b32 s3, s{S_XCD}, {nxm - 1}
    s_lshl_b32 s3, s3, {a_log2}
    s_and_b32 s4, s{S_IDX}, {a - 1}
    s_add_u32 s{S_MT}, s3, s4
    s_lshr_b32 s3, s{S_XCD}, {nxm.bit_length() - 1}
    s_lshl_b32 s3, s3, {b.bit_length() - 1}
    s_lshr_b32 s4, s{S_IDX}, {a_log2}
    s_add_u32 s{S_NT}, s3, s4
    """)

def slot_adv_rd():
    return [f"s_add_u32 s{S_RD}, s{S_RD}, {SLOT}", f"s_cmp_eq_u32 s{S_RD}, {SLOT * NSLOT}",
            f"s_cselect_b32 s{S_DELTA}, s{S_NEG}, {SLOT}", f"s_cselect_b32 s{S_RD}, 0, s{S_RD}"]
def slot_adv_dma():
    return [f"s_add_u32 s{S_DMA}, s{S_DMA}, {SLOT}", f"s_cmp_eq_u32 s{S_DMA}, {SLOT * NSLOT}",
            f"s_cselect_b32 s{S_DMA}, 0, s{S_DMA}"]

class Ctx:
    def __init__(self, name, opt):
        self.name = name; self.opt = opt; self.nlab = 0
        self.stamp_slot = {'g': 0, 'h': 0}
    def lab(self, s):
        self.nlab += 1
        return f"{self.name}_{s}{self.nlab}"
    def ST(self, p, role):
        if not self.opt.get('stamp'): return
        sl = self.stamp_slot[role]
        if sl >= 31: return
        self.stamp_slot[role] += 1
        stamp2(p, sl, self.opt['stamp'] - 1, self.stampv)

def hstep_stamp(p, c):
    if not c.opt.get('hstamp'): return
    p("""
    s_memtime s[56:57]
    s_waitcnt lgkmcnt(0)
    s_lshl_b64 exec, 1, s62
    s_cmp_ge_u32 s62, 64
    s_cselect_b64 s[58:59], 0, exec
    s_cselect_b64 s[60:61], exec, 0
    s_mov_b64 exec, s[58:59]
    v_mov_b32 v150, s56
    s_mov_b64 exec, s[60:61]
    v_mov_b32 v151, s56
    s_mov_b64 exec, -1
    s_add_u32 s62, s62, 1
    """)
def hstep_dump(p, c):
    if not c.opt.get('hstamp') and not c.opt.get('sstamp') and not c.opt.get('spincnt'): return
    p(f"""
    s_lshl_b32 s3, s2, 2
    s_add_u32 s3, s3, s{S_WM}
    s_lshl_b32 s3, s3, 9
    s_add_u32 s3, s3, {WS_STAMP + 2 * MB}
    v_lshlrev_b32 v152, 2, v0
    buffer_store_dword v150, v152, s[{S_WS}:{S_WS+3}], s3 offen
    buffer_store_dword v151, v152, s[{S_WS}:{S_WS+3}], s3 offen offset:256
    """)
NSTAMP = 32
def stamp2(p, slot, kidx, v=140):
    p(f"""
    s_memrealtime s[56:57]
    s_memtime s[58:59]
    s_add_u32 s60, s2, {kidx * 256}
    s_lshl_b32 s60, s60, 3
    s_add_u32 s60, s60, s{S_WID}
    s_lshl_b32 s60, s60, 8
    s_add_u32 s60, s60, {WS_STAMP + slot * 8}
    s_waitcnt lgkmcnt(0)
    v_mov_b32 v{v}, s56
    v_mov_b32 v{v+1}, s58
    v_mov_b32 v{v+2}, 0
    s_mov_b64 exec, 1
    buffer_store_dwordx2 v[{v}:{v+1}], v{v+2}, s[{S_WS}:{S_WS+3}], s60 offen
    s_mov_b64 exec, -1
    """)


class Atoms:
    def __init__(self): self.L = []
    def __call__(self, s):
        for line in s.split('\n'):
            line = line.strip()
            if line and not line.startswith(';'): self.L.append(line)
    def atom(self, s): self.L.append(s)
    def add(self, items):
        for x in items: self(x)

def spread(main, fill, start=0, end=None):
    n = len(main); end = n if end is None else end
    k = end - start
    slots = [0] * n
    for i in range(k): slots[start + i] = ((i + 1) * len(fill)) // k - (i * len(fill)) // k
    return interleave(main, fill, slots)

def nvm(D): return sum(x.count('buffer_') for x in D)

class Task:
    pubkind = None
    pubv = 136
    barpos = 6
    puball = False
    xbar = False
    pubstep = 3
    local = False
    exposed = False
    defer1 = False
    late = False
    poll = None
    def g_sites(self, c): return {}
    def h_post_dep(self, p, c): return
    def h_setup2(self, p, c, first=False): self.h_setup(p, c, first)
    def drain_n(self, c): return 0
    def h_indep(self, a, c): return 0
    def h_late(self, a, c): return 0
    def g_prev_site(self, p, c): return
    has_prev_site = False
    def early(self, p, c): return
    def h_epi(self, p, c): return
    def g_events(self, c, prev, unroll):
        E = {t: [f] for t, f in self.g_sites(c).items()}
        if prev is not None and prev.pubkind is not None and c.opt.get('persist'):
            t = self.pubstep
            if prev.puball:
                E.setdefault(t - unroll, []).append(lambda q: q("s_waitcnt vmcnt(0)"))
                E.setdefault(t, []).append(lambda q: publish(q, c, prev.pubkind, True, self.pubv))
            else:
                E.setdefault(t, []).append(lambda q: (q("s_waitcnt vmcnt(0)"), publish(q, c, prev.pubkind, False, self.pubv)))
        assert all(t % unroll == 0 for t in E)
        return E

class Gemm(Task):
    MT = 4
    fr0 = V_FR
    zero_first = False
    def acc(self, m, n): return 256 - 4 * self.MT * self.NT + 4 * (n * self.MT + m)
    def xf(self, s, m): return self.fr0 + s * 4 * (self.MT + self.NT) + 4 * m
    def wf(self, s, n): return self.fr0 + s * 4 * (self.MT + self.NT) + 4 * self.MT + 4 * n
    def swap(self, n): return False
    def reads(self, s, kk):
        rx = lambda m: "ds_read_b128 %s, v%d offset:%d" % ((vr(self.xf(s, m), 4),) + self.xaddr(kk, m))
        rw = lambda n, j: "ds_read_b64_tr_b16 %s, v%d offset:%d" % ((vr(self.wf(s, n) + 2 * j, 2),) + self.waddr(kk, n, j))
        R = [rx(0), rw(0, 0), rw(0, 1)] + [rx(m) for m in range(1, self.MT)]
        for n in range(1, self.NT): R += [rw(n, 0), rw(n, 1)]
        return R
    def mfmas(self, s, c0=None):
        M = []
        for n in range(self.NT):
            for m in (range(self.MT) if n % 2 == 0 else range(self.MT - 1, -1, -1)):
                if self.swap(n): M.append(mfma16(self.acc(m, n), self.xf(s, m), self.wf(s, n), c0))
                else: M.append(mfma16(self.acc(m, n), self.wf(s, n), self.xf(s, m), c0))
            M += self.extra_mfma(s, n)
        return M
    def extra_mfma(self, s, n): return []
    def g_loop_atoms(self, c): return []
    def g_zero(self, p):
        if self.zero_first: return
        for r in range(self.acc(0, 0), 256): p(f"v_mov_b32 v{r}, 0")
    chain = False
    host = None
    def g_body(self, p, c, prev):
        if self.chain and c.opt.get('chain', 1): self.g_loop_chain(p, c, self.nsteps, prev)
        else: self.g_loop(p, c, self.nsteps, prev)
    def g_loop_chain(self, p, c, nsteps, prev):
        KS, MT, NT = self.KS, self.MT, self.NT
        assert nsteps % 2 == 0
        xf = lambda s, m, kk: self.fr0 + 4 * (s * MT * KS + m * KS + kk)
        wf = lambda n, kk: self.fr0 + 8 * MT * KS + 4 * ((n % 4) * KS + kk)
        rx = lambda s, m: ["ds_read_b128 %s, v%d offset:%d" % ((vr(xf(s, m, kk), 4),) + self.xaddr(kk, m)) for kk in range(KS)]
        rw = lambda n: ["ds_read_b64_tr_b16 %s, v%d offset:%d" % ((vr(wf(n, kk) + 2 * j, 2),) + self.waddr(kk, n, j)) for kk in range(KS) for j in range(2)]
        def group(s, n, zero):
            M = []
            for i, m in enumerate(range(MT) if n % 2 == 0 else range(MT - 1, -1, -1)):
                for q, kk in enumerate(range(KS) if i % 2 == 0 else range(KS - 1, -1, -1)):
                    c0 = "0" if (zero and q == 0) else None
                    a, b = (xf(s, m, kk), wf(n, kk)) if self.swap(n) else (wf(n, kk), xf(s, m, kk))
                    M.append(mfma16(self.acc(m, n), a, b, c0))
            return M
        def first_reads(s):
            R = rx(s, 0) + rw(0)
            for m in range(1, MT): R += rx(s, m)
            return R + rw(1)
        xregs = sorted({self.xaddr(kk, 0)[0] for kk in range(KS)})
        def step(s, zero, tail):
            done = set()
            for n in range(NT - 2):
                F = rw(n + 2)
                if n == 0: F = F + slot_adv_rd()
                later = {self.waddr(0, k, 0)[0] for k in range(n + 3, NT)}
                if n >= 1 or NT == 3:
                    ready = [r for r in self.addr_regs if r not in later and r not in done]
                    if n < NT - 3: ready = ready[:2]
                    done |= set(ready)
                    F = F + [f"v_add_u32 v{r}, s{S_DELTA}, v{r}" for r in ready]
                G = group(s, n, zero)
                p(f"s_waitcnt lgkmcnt({(MT - 2) * KS + 2 * KS if n == 0 else 2 * KS})")
                p.add(interleave(G, F, [1] * len(G)) if len(F) <= len(G) else spread(G, F))
            assert done == set(self.addr_regs)
            G = group(s, NT - 2, zero) + group(s, NT - 1, zero)
            bp = c.opt.get('cbar', 0)
            p.add(G[:bp])
            fw = getattr(self, 'first_wait', None)
            assert fw is None or self.zero_first
            p("s_waitcnt " + (f"vmcnt({fw}) " if (zero and fw is not None) else "") + "lgkmcnt(0)\ns_barrier")
            p.add(spread(G[bp:], first_reads(s ^ 1) + tail))
        E = self.g_events(c, prev, 2)
        mask = sum(1 << k for k in range(1, nsteps) if nsteps - k not in E)
        L = c.lab("gl"); Le = c.lab("ge")
        p.add(first_reads(0))
        p(f"s_mov_b32 s{S_CNT}, {nsteps}")
        if self.zero_first:
            step(0, True, [])
            p(f"s_branch {Le}")
        p(f".p2align {c.opt.get('align', 5)}")
        p.label(L)
        step(0, False, [])
        p.label(Le)
        step(1, False, [f"s_sub_u32 s{S_CNT}, s{S_CNT}, 2", f"s_bitcmp1_b32 {hex(mask)}, s{S_CNT}"])
        self.loop_end(p, c, L, E, nsteps)
    def g_loop(self, p, c, nsteps, prev):
        KS = self.KS
        nm = len(self.mfmas(0)); nr = len(self.reads(0, 0))
        big = nm >= 16 and not getattr(self, 'small', False)
        unroll = 2 if KS % 2 else 1
        assert nsteps % unroll == 0
        w0 = c.opt.get('w0', 4)
        p.add(self.reads(0, 0))
        p(f"s_mov_b32 s{S_CNT}, {nsteps}")
        L = c.lab("gl"); Le = c.lab("ge")
        if self.zero_first:
            p.add(interleave(self.mfmas(0, "0"), self.reads(1, 1), [1] * nm))
            p(f"s_branch {Le}")
        p(f".p2align {c.opt.get('align', 5)}")
        p.label(L)
        par = 0
        E = self.g_events(c, prev, unroll)
        mask = sum(1 << k for k in range(1, nsteps) if nsteps - k not in E)
        for u in range(unroll):
            for kk in range(KS - 1):
                R = self.reads(par ^ 1, kk + 1)
                if kk == 0: R = R + self.g_loop_atoms(c)
                if big: p(f"s_waitcnt lgkmcnt({w0})")
                p.add(interleave(self.mfmas(par), R, [1] * nm))
                par ^= 1
                if u == 0 and kk == 0 and self.zero_first: p.label(Le)
            M = self.mfmas(par)
            upd = slot_adv_rd() + [f"v_add_u32 v{r}, s{S_DELTA}, v{r}" for r in self.addr_regs]
            tail = [f"s_sub_u32 s{S_CNT}, s{S_CNT}, {unroll}", f"s_bitcmp1_b32 {hex(mask)}, s{S_CNT}"] if u == unroll - 1 else []
            bp = min(c.opt.get('barpos', self.barpos), nm - nr) if big else c.opt.get('bp64', 4)
            if big: p(f"s_waitcnt lgkmcnt({w0})")
            p.add(spread(M[:bp], upd))
            fw = getattr(self, 'first_wait', None)
            p("s_waitcnt " + (f"vmcnt({fw}) " if fw is not None else "") + "lgkmcnt(0)")
            p("s_barrier")
            p.add(interleave(M[bp:], self.reads(par ^ 1, 0) + tail, [1 if big else 2] * nm))
            par ^= 1
        self.loop_end(p, c, L, E, nsteps)
    def loop_end(self, p, c, L, E, nsteps):
        p(f"s_cbranch_scc1 {L}")
        if E:
            Lo = c.lab("gev")
            p(f"s_cmp_lg_u32 s{S_CNT}, 0\ns_cbranch_scc1 {Lo}")
            def ool(q):
                q.label(Lo)
                ts = sorted(E)
                for i, t in enumerate(ts):
                    Ln = c.lab("gen")
                    if i < len(ts) - 1: q(f"s_cmp_eq_u32 s{S_CNT}, {nsteps - t}\ns_cbranch_scc0 {Ln}")
                    for f in E[t]: f(q)
                    q(f"s_branch {L}")
                    if i < len(ts) - 1: q.label(Ln)
            c.ool.append(ool)
    def dma_atoms(self, c):
        if c.opt.get('nodma'): return ["\n".join(slot_adv_dma())]
        ld = self.bflag(c)
        nA, nB = self.nA, self.nB
        D = []
        if self.rotated(c):
            A = [f"s_add_u32 m0, s{S_DMA}, s{S_OFFS[i]}\nbuffer_load_dwordx4 v{V_AD + i}, s[{S_A}:{S_A+3}], s{S_SO[0]} offen {self.aflag(c)} lds" for i in range(nA)]
            B = [f"s_add_u32 m0, s{S_DMA}, s{S_OFFS[nA + i]}\nbuffer_load_dwordx4 v{V_AD + nA + i}, s[{S_B}:{S_B+3}], s{S_SO[1]} offen {ld} lds" for i in range(nB)]
            D = [B[0], A[0]] + spread(A[1:], B[1:])
            nA = nB = 0
        if nA and c.opt.get('ilv', 0):
            A = [f"s_add_u32 m0, s92, {1024 * i}\nbuffer_load_dwordx4 v{V_AD + i}, s[{S_A}:{S_A+3}], s{S_SO[0]} offen {self.aflag(c)} lds" for i in range(nA)]
            B = [f"s_add_u32 m0, s93, {1024 * i}\nbuffer_load_dwordx4 v{V_AD + nA + i}, s[{S_B}:{S_B+3}], s{S_SO[1]} offen {ld} lds" for i in range(nB)]
            B += self.dma_extra(c)
            D = spread(A, B) if len(A) >= len(B) else spread(B, A)
            D[0] = f"s_add_u32 s92, s{S_DMA}, s{S_LD[0]}\ns_add_u32 s93, s{S_DMA}, s{S_LD[1]}\n" + D[0]
            nA = nB = 0
        elif nA: D = self.dma_extra(c)
        if nA: D += self.part_atoms(c, 0, S_DMA) + self.part_atoms(c, 1, S_DMA)
        t = []
        if not c.opt.get('step0'):
            t += [f"s_add_u32 s{S_SO[0]}, s{S_SO[0]}, {self.stepA}", f"s_add_u32 s{S_SO[1]}, s{S_SO[1]}, {self.stepB}"]
        D[-1] += "\n" + "\n".join(t + slot_adv_dma())
        return D
    def part_atoms(self, c, k, slot):
        n0, n, r, fl = ((0, self.nA, S_A, self.aflag(c)), (self.nA, self.nB, S_B, self.bflag(c)))[k]
        D = []
        for i in range(n):
            if c.opt.get('ioff', 1):
                m = f"s_add_u32 m0, s{slot}, s{S_LD[k]}\n" if i == 0 else ("s_add_u32 m0, m0, 4096\n" if i % 4 == 0 else "")
                D.append(m + f"buffer_load_dwordx4 v{V_AD + n0 + i}, s[{r}:{r+3}], s{S_SO[k]} offen offset:{(i % 4) * 1024} {fl} lds")
            else:
                D.append((f"s_add_u32 m0, s{slot}, s{S_LD[k]}" if i == 0 else "s_add_u32 m0, m0, 1024") +
                         f"\nbuffer_load_dwordx4 v{V_AD + n0 + i}, s[{r}:{r+3}], s{S_SO[k]} offen {fl} lds")
        return D
    def h_setup2(self, p, c, first=False):
        self.h_setup(p, c, first)
        if c.opt.get('ioff', 1):
            for n0, n in ((0, self.nA), (self.nA, self.nB)):
                for i in range(n):
                    if i % 4: p(f"v_subrev_u32 v{V_AD + n0 + i}, {(i % 4) * 1024}, v{V_AD + n0 + i}")
    def dma_part(self, c, k, slot):
        D = self.part_atoms(c, k, slot)
        D[-1] += f"\ns_add_u32 s{S_SO[k]}, s{S_SO[k]}, {(self.stepA, self.stepB)[k]}"
        return D
    def aflag(self, c): return c.opt.get('hoflag', '')
    def rotated(self, c): return False
    def dma_extra(self, c): return []
    def skip_stages(self, p, c, n):
        p(f"s_add_u32 s{S_SO[0]}, s{S_SO[0]}, {n * self.stepA}\ns_add_u32 s{S_SO[1]}, s{S_SO[1]}, {n * self.stepB}")
    def bflag(self, c): return c.opt.get('ldflag', '')
    @property
    def nd(self): return self.nA + self.nB
    def h_post(self, p, c, t): pass
    def h_poll(self, c, t): return None
    def h_every(self, p, c, t): pass
    def h_pre(self, p, c, t): pass
    def h_mix(self, a, c, t): pass
    def h_extra(self, p, c, t): return 0
    def h_tail(self, c): return []
    h_steps = ()
    def h_body(self, p, c, nxt, skip0=False):
        n = self.nsteps
        special = set(self.h_steps) | {n - 2, n - 1}
        if skip0 or self.xbar or getattr(self, 'first_extra', 0): special.add(0)
        pollstep = None
        real_nxt = nxt
        if nxt is not None and (nxt.exposed or nxt.local): nxt = None
        if nxt is not None and nxt.poll and c.opt.get('persist'):
            pollstep = n - 2 if nxt.late else n - 3
            special.add(pollstep)
        hs = self.host.hsteps if self.host else 0
        if self.host and self.host.final: special |= {hs - 1, hs, hs + 1}
        elif 0 < hs < n: special |= {hs - 2, hs - 1}
        def step(t, par=None):
            if t is not None and t < hs: par = t % 2
            ex = 0
            noex = t is None or c.opt.get('noextra')
            P1 = None
            if t is not None: P1 = nxt.poll(c) if t == pollstep else self.h_poll(c, t)
            if P1: P1.issue1(p)
            if not noex: self.h_pre(p, c, t)
            if t == n - 2 and n >= 16 and c.opt.get('cpf3', 1) and not P1 and not getattr(self, 'cpf_late', False): code_prefetch(p, c, True)
            if t == n - 1 and n >= 16 and c.opt.get('cpf3', 1) and (self.h_poll(c, n - 2) or getattr(self, 'cpf_late', False)): code_prefetch(p, c, True)
            D = []; nd = 0
            if t == 0 and self.xbar: p("s_barrier")
            if t is None or t <= n - 3:
                nd = self.nd
                if not (t == 0 and skip0): D = self.dma_atoms(c)
                if par is not None and not (t is not None and t >= hs - (1 if self.host.final else 2)):
                    D = [self.host.kv_atom(c, S_DMA)] + D; nd += 1
            else:
                if t == n - 2: D = self.h_tail(c)
                if nxt is not None:
                    if t == (n - 1 if nxt.late else n - 2):
                        nxt.h_setup2(p, c)
                        nxt.h_post_dep(p, c)
                    if t == (n - 1 if nxt.late else n - 2) or not nxt.defer1: D += nxt.dma_atoms(c)
                nd = 0 if (nxt is not None and nxt.late) else nvm(D)
            a = Atoms()
            if not noex: self.h_mix(a, c, t)
            if par is not None: self.host.step(p, c, par, D + a.L, t == hs - 1)
            elif self.host and self.host.final and t == hs: nd += self.host.finish(p, c, D)
            else: p.add(spread(D, a.L) if D else a.L)
            if not noex: ex = self.h_extra(p, c, t)
            self.in_host = par is not None
            self.h_every(p, c, t)
            if t == n - 1 and hasattr(real_nxt, 'pre_next') and c.opt.get('prenext', 1): real_nxt.pre_next(p, c)
            if t == 0: ex += getattr(self, 'first_extra', 0)
            p(f"s_waitcnt vmcnt({nd + ex})" + (" lgkmcnt(0)" if par is not None else ""))
            if P1: P1.check1(p)
            if self.host and self.host.final and t == hs + 1 and c.opt.get('hpub', 0): self.host.publish(p, c)
            if not noex: self.h_post(p, c, t)
            if t == n - 1 and nxt is not None and getattr(nxt, 'adv', 0) == 8192 and not self.host and not getattr(self, 'quiet', False): nxt.presetup(p, c)
            p("s_barrier")
            hstep_stamp(p, c)
        t = 0
        while t < n:
            if t in special:
                step(t); t += 1; continue
            e = t
            while e not in special: e += 1
            if t < hs:
                assert e <= hs and (e - t) % 2 == 0
                p(f"s_mov_b32 s{S_CNT}, {(e - t) // 2}")
                L = c.lab("hl")
                if c.opt.get('halign'): p(f".p2align {c.opt['halign']}")
                p.label(L)
                step(None, t % 2); step(None, (t + 1) % 2)
                p(f"s_sub_u32 s{S_CNT}, s{S_CNT}, 1\ns_cmp_lg_u32 s{S_CNT}, 0\ns_cbranch_scc1 {L}")
            elif e - t == 1: step(None)
            else:
                p(f"s_mov_b32 s{S_CNT}, {e - t}")
                L = c.lab("hl")
                p.label(L)
                step(None)
                p(f"s_sub_u32 s{S_CNT}, s{S_CNT}, 1\ns_cmp_lg_u32 s{S_CNT}, 0\ns_cbranch_scc1 {L}")
            t = e
        if real_nxt is not None and real_nxt.local:
            real_nxt.presetup(p, c)
            self.h_final(p, c)
            p("s_barrier")
            hstep_stamp(p, c)
        if real_nxt is not None and real_nxt.exposed:
            real_nxt.h_setup2(p, c)
            L = c.lab("xp")
            p("s_barrier")
            p(f"s_cmp_eq_u32 s{S_WM}, 0\ns_cbranch_scc0 {L}")
            P = real_nxt.poll(c); P.issue(p); P.check(p)
            p.label(L)
            p("s_barrier")
            hstep_stamp(p, c)
            p.add(real_nxt.dma_atoms(c))
            p("s_waitcnt vmcnt(0)\ns_barrier")
            hstep_stamp(p, c)
        return False

WS_FLAG = 43 * MB + 512 * 1024
F_QKV, F_W1, F_W2, F_W3, F_ATT, F_XCH, F_ST, F_CS = 0, 1, 2, 3, 4, 5, 6, 7
NKIND = 8

class Poll:
    def __init__(self, c, addr, load, test):
        self.c, self.addr, self.load, self.test = c, addr, load, test
    def issue(self, p):
        if not self.c.opt.get('persist'): return
        p(self.addr); p(self.load)
    def issue1(self, p):
        if not self.c.opt.get('persist'): return
        L = self.c.lab("p1")
        p(f"s_cmp_eq_u32 s{S_WM}, 0\ns_cbranch_scc0 {L}")
        self.issue(p)
        p.label(L)
    def check1(self, p):
        if not self.c.opt.get('persist'): return
        L = self.c.lab("c1")
        p(f"s_cmp_eq_u32 s{S_WM}, 0\ns_cbranch_scc0 {L}")
        self.check(p)
        p.label(L)
    def group_wait(self, p, H=False):
        c = self.c
        if not c.opt.get('persist'): return
        if not H: c.gw = getattr(c, 'gw', 0) + 1
        val = 1 if H else c.gw
        word = L_GW + (4 if H else 0)
        Lo = c.lab("gw"); Le = c.lab("gwe"); Ls = c.lab("gws")
        p(f"v_mov_b32 v139, {word}\ns_cmp_eq_u32 s{S_WID}, {4 if H else 0}\ns_cbranch_scc0 {Lo}")
        if not H: self.issue(p)
        self.check(p, c.opt.get('gsleep', 12))
        p(f"v_mov_b32 v139, {word}\nv_mov_b32 v137, {val}\nds_write_b32 v139, v137\ns_branch {Le}")
        p.label(Lo)
        p(f"s_mov_b32 s5, {c.opt.get('spinmax', 100000) * 16}")
        p.label(Ls)
        p(f"""
        s_sleep 1
        ds_read_b32 v137, v139
        s_sub_u32 s5, s5, 1
        s_cmp_eq_u32 s5, 0
        s_cbranch_scc1 {Le}
        s_waitcnt lgkmcnt(0)
        v_cmp_gt_u32 vcc, {val}, v137
        s_cbranch_vccnz {Ls}
        """)
        p.label(Le)
    def check(self, p, sleep=None):
        c = self.c
        if not c.opt.get('persist'): return
        L = c.lab("poll"); E = c.lab("pollx")
        p(f"s_mov_b32 s5, {c.opt.get('spinmax', 100000)}")
        p.label(L)
        p(self.test)
        p(f"""
        s_cbranch_vccz {E}
        s_sub_u32 s5, s5, 1
        s_cmp_eq_u32 s5, 0
        s_cbranch_scc1 {E}
        s_sleep {sleep or c.opt.get('spinsleep', 2)}
        s_mov_b64 exec, vcc
        """)
        p(self.load)
        p("s_mov_b64 exec, -1\ns_waitcnt vmcnt(0)")
        p(f"s_branch {L}")
        p.label(E)
        if c.opt.get('spincnt'):
            c.npoll = getattr(c, 'npoll', 0) + 1
            p(f"s_sub_u32 s5, {c.opt.get('spinmax', 100000)}, s5\nv_writelane_b32 v153, s5, {c.npoll - 1}")

def poll_init(c):
    return Poll(c, f"v_min_u32 v136, {4 * NKIND - 1}, v0\nv_lshlrev_b32 v136, 2, v136",
        f"buffer_load_dword v137, v136, s[{S_DBG}:{S_DBG+3}], 0 offen sc1", "v_cmp_eq_u32 vcc, 0, v137")

def poll_flags(c, kind, row_sgpr, shift=0, nprod=16, halo=False, single=None, col_sgpr=None):
    lg = nprod.bit_length() - 1
    a = f"v_and_b32 v136, {nprod - 1}, v0\n"
    if single is not None:
        a = f"s_xor_b32 s3, s{single}, 1\nv_mov_b32 v136, s3\n"
    if halo and c.local:
        a = f"""
        s_lshr_b32 s3, s{row_sgpr}, 1
        s_and_b32 s4, s{row_sgpr}, 1
        s_lshl_b32 s4, s4, 1
        s_add_u32 s4, s4, s3
        s_add_u32 s4, s4, 7
        s_and_b32 s4, s4, 7
        v_mov_b32 v136, s3
        v_mov_b32 v138, s4
        v_cmp_gt_u32 vcc, 32, v0
        v_cndmask_b32 v138, v138, v136, vcc
        v_and_b32 v136, 31, v0
        v_lshl_add_u32 v136, v138, 5, v136
        """
    elif halo:
        a += f"""
        v_lshrrev_b32 v138, 4, v0
        v_min_u32 v138, 2, v138
        s_add_u32 s3, s{row_sgpr}, 15
        v_add_u32 v138, s3, v138
        v_and_b32 v138, 15, v138
        v_lshl_add_u32 v136, v138, 4, v136
        """
    else:
        if col_sgpr is not None: a += f"v_and_b32 v138, 15, v0\nv_lshl_add_u32 v138, v138, 4, s{col_sgpr}\n"
        a += f"""
        s_lshr_b32 s3, s{row_sgpr}, {shift}
        s_lshl_b32 s3, s3, {lg}
        v_add_u32 v136, s3, v136
        """
        if col_sgpr is not None: a += "v_cmp_gt_u32 vcc, 32, v0\nv_cndmask_b32 v136, v138, v136, vcc\n"
    a += f"v_lshlrev_b32 v136, 7, v136\ns_mov_b32 s{S_POLL}, {WS_FLAG + kind * 32768}"
    return Poll(c, a, f"buffer_load_dwordx4 v[140:143], v136, s[{S_WS}:{S_WS+3}], s{S_POLL} offen sc1",
                "v_min3_u32 v137, v140, v141, v142\nv_min_u32 v137, v137, v143\nv_cmp_eq_u32 vcc, 0, v137")

def own_flags(p, c):
    if not c.opt.get('persist'): return
    L = c.lab("zf")
    p(f"""
    s_cmp_lt_u32 s2, {NKIND}
    s_cbranch_scc0 {L}
    s_lshl_b32 s4, s2, 2
    s_add_u32 s4, s4, s{S_WID}
    s_lshl_b32 s3, s4, 13
    s_add_u32 s3, s3, {WS_FLAG}
    v_lshlrev_b32 v136, 7, v0
    v_mov_b32 v137, 0
    v_mov_b32 v140, 0
    v_mov_b32 v141, 0
    v_mov_b32 v142, 0
    v_mov_b32 v143, 0
    buffer_store_dwordx4 v[140:143], v136, s[{S_WS}:{S_WS+3}], s3 offen sc1
    s_lshl_b32 s4, s4, 2
    v_mov_b32 v138, 1
    """)
    srd(p, S_AUX, ptr('dbg'), 256)
    p(f"""
    s_waitcnt vmcnt(0)
    s_mov_b64 exec, 1
    buffer_store_dword v138, v137, s[{S_AUX}:{S_AUX+3}], s4 offen sc1
    s_mov_b64 exec, -1
    """)
    p.label(L)

def own_offsets(p, c):
    if not c.opt.get('persist'): return
    for k, row, idx, lg in ((F_QKV, S_HEAD, S_QB, 3) if c.local else (F_QKV, S_NT3, S_MT3, 4),
                            (F_W1, S_QB, S_HEAD, 5) if c.local else (F_W1, S_MT3, S_NT3, 4) if c.merged else (F_W1, S_MT2, S_NT2, 4),
                            (F_W2, S_MT2, S_NT2, 4), (F_W3, S_MT3, S_NT3, 4),
                            (F_ATT, S_QB, S_HEAD, 5), (F_XCH, S_MT2, S_NT2, 4), (F_ST, S_MT3, S_NT3, 4), (F_CS, S_NT3, S_MT3, 4)):
        p(f"""
        s_lshl_b32 s3, s{row}, {lg}
        s_add_u32 s3, s3, s{idx}
        s_lshl_b32 s3, s3, 7
        s_add_u32 s{S_FL + k}, s3, {WS_FLAG + k * 32768}
        """)

def publish(p, c, kind, all4, v=136):
    if not c.opt.get('persist'): return
    W = f"s[{S_WS}:{S_WS+3}]"
    if all4:
        L = c.lab("pub")
        p(f"s_cmp_eq_u32 s{S_WID}, 0\ns_cbranch_scc0 {L}")
        p(f"v_lshlrev_b32 v{v}, 2, v0\nv_mov_b32 v{v+1}, 1\ns_mov_b64 exec, 15")
        p(f"buffer_store_dword v{v+1}, v{v}, {W}, s{S_FL + kind} offen sc1")
        p("s_mov_b64 exec, -1")
        p.label(L)
    else:
        p(f"s_lshl_b32 s3, s{S_WID}, 2\nv_mov_b32 v{v}, s3\nv_mov_b32 v{v+1}, 1\ns_mov_b64 exec, 1")
        p(f"buffer_store_dword v{v+1}, v{v}, {W}, s{S_FL + kind} offen sc1")
        p("s_mov_b64 exec, -1")

def gen_kernel(name, tasks, opt):
    c = Ctx(name, opt)
    c.ool = []
    c.stampv = 24
    c.merged = getattr(tasks[0], 'NT', 0) == 8
    c.local = c.merged and tasks[0].nA == 8
    for i, T in enumerate(tasks): T.nxt = tasks[i + 1] if i + 1 < len(tasks) else None
    for T in tasks:
        if hasattr(T, 'link'): T.link(c)
    p = Prog()
    def T(k):
        if opt.get('sstamp'): p(f"s_memrealtime s[{96 + 0}:{97}]\ns_waitcnt lgkmcnt(0)\nv_writelane_b32 v153, s96, {k}")
    p(f"""
    s_cmp_ge_u32 s2, 256
    s_cbranch_scc1 {name}_end
    """)
    T(0)
    if opt.get('entry'): p("s_memrealtime s[96:97]")
    p(f"""
    s_load_dwordx16 s[{S_PTR}:{S_PTR+15}], s[0:1], 0
    s_load_dwordx8 s[{S_PTR+16}:{S_PTR+23}], s[0:1], 64
    s_lshr_b32 s{S_IDX}, s2, 3
    """)
    code_prefetch(p, c)
    p(f"""
    v_lshrrev_b32 v1, 6, v0
    v_and_b32 v0, 63, v0
    v_readfirstlane_b32 s{S_WID}, v1
    v_lshlrev_b32 v{V_L16}, 4, v0
    s_and_b32 s{S_XCD}, s2, 7
    s_mov_b32 s{S_RD}, 0
    s_mov_b32 s{S_DMA}, 0
    """)
    tile_map(p, 3, S_MT3, S_NT3)
    ids = f"""
    s_mov_b32 s{S_NEG}, {-(NSLOT - 1) * SLOT & 0xffffffff}
    s_and_b32 s3, s{S_XCD}, 3
    s_lshl_b32 s3, s3, 2
    s_and_b32 s4, s{S_IDX}, 3
    s_add_u32 s{S_MT2}, s3, s4
    s_lshr_b32 s3, s{S_IDX}, 2
    s_lshl_b32 s3, s3, 1
    s_lshr_b32 s4, s{S_XCD}, 2
    s_add_u32 s{S_NT2}, s3, s4
    s_lshl_b32 s3, s{S_NT3}, 1
    s_and_b32 s4, s{S_IDX}, 1
    s_add_u32 s{S_HEAD}, s3, s4
    s_lshr_b32 s{S_QB}, s{S_MT3}, 1
    s_lshl_b32 s3, s{S_QB}, 3
    s_add_u32 s{S_BLK}, s3, s{S_WID}
    """
    T0 = tasks[0]
    lazy = hasattr(T0, 'h_first')
    ids_first = not lazy or getattr(T0, 'NT', 0) == 2 or c.local
    if ids_first: p(ids); ids = ''
    p(f"""
    s_cmp_lt_u32 s{S_WID}, 4
    s_cbranch_scc1 {name}_G
    """)
    p(f"s_sub_u32 s{S_WM}, s{S_WID}, 4")
    if lazy: T0.h_first(p, c)
    T0.h_setup2(p, c, first=True)
    T(1)
    if not lazy: srd(p, S_WS, ptr('ws'), WS_SIZE)
    T0.h_post_dep(p, c)
    p.add(T0.dma_atoms(c))
    T(2)
    D1 = T0.dma_atoms(c)
    p.add(D1)
    ex = 0
    T(3)
    if lazy:
        p(ids)
        srd(p, S_WS, ptr('ws'), WS_SIZE)
    srd(p, S_DBG, ptr('dbg'), 256)
    T0.first_extra = ex
    p(f"s_waitcnt vmcnt({nvm(D1) + ex})")
    T(4)
    p("s_barrier")
    T(5)
    p("s_mov_b32 s62, 0")
    hstep_stamp(p, c)
    skip0 = False
    for i, Tk in enumerate(tasks):
        nxt = tasks[i + 1] if i + 1 < len(tasks) else None
        for _ in range(opt.get('hdelay', {}).get(i, 0)): p('s_sleep 8')
        skip0 = Tk.h_body(p, c, nxt, skip0)
        Tk.h_epi(p, c)
    T(6)
    if opt.get('sstamp') or opt.get('spincnt'): p("v_mov_b32 v150, v153")
    hstep_dump(p, c)
    p("s_endpgm")
    p.label(f"{name}_G")
    tlb_warm(p, c)
    p(f"v_mov_b32 v2, {L_GW}\nv_mov_b32 v3, 0\nds_write_b32 v2, v3\nds_write_b32 v2, v3 offset:4")
    srd(p, S_WS, ptr('ws'), WS_SIZE)
    own_flags(p, c)
    if lazy:
        T0.g_first(p, c)
        p(ids)
    p(f"""
    s_and_b32 s{S_WM}, s{S_WID}, 1
    s_lshr_b32 s{S_WN}, s{S_WID}, 1
    """)
    c.ST(p, 'g')
    if opt.get('entry'):
        p(f"v_mov_b32 v140, s96\nv_mov_b32 v142, 0\ns_mov_b64 exec, 1\nbuffer_store_dword v140, v142, s[{S_WS}:{S_WS+3}], s60 offen offset:248\ns_mov_b64 exec, -1")
    own_offsets(p, c)
    if opt.get('gprio'): p(f"s_setprio {opt['gprio']}")
    for i, Tk in enumerate(tasks):
        c.stampv = 24
        if i == 0 and hasattr(Tk, 'g_pre_early'): Tk.g_pre_early(p, c)
        if i == 0: Tk.early(p, c)
        Tk.g_setup(p, c)
        if i == 0: p("s_waitcnt lgkmcnt(0)\ns_barrier")
        c.ST(p, 'g')
        for _ in range(opt.get('gdelay', {}).get(i, 0)): p('s_sleep 8')
        Tk.g_body(p, c, tasks[i - 1] if i > 0 else None)
        c.ST(p, 'g')
        if i + 1 < len(tasks): tasks[i + 1].early(p, c)
        Tk.g_epi(p, c)
        if i + 1 < len(tasks) and (tasks[i + 1].xbar or tasks[i + 1].exposed): p("s_barrier")
        if hasattr(Tk, 'g_after_bar'): Tk.g_after_bar(p, c)
    c.ST(p, 'g')
    if opt.get('stamp'):
        p("s_waitcnt vmcnt(0)")
        c.ST(p, 'g')
    p("s_endpgm")
    for f in c.ool: f(p)
    p.label(f"{name}_end")
    p("s_endpgm")
    p.finish(verbose=opt.get('verbose', False))
    return p, dict(grid=256, block=512, lds=LDS_BYTES, nstamp=c.stamp_slot['g'])

def g_prefetch(p, c, items, fl='', vdst=None):
    if not c.opt.get('pf', 1) or not items: return 0
    p(f"""
    s_lshl_b32 s3, s2, 2
    s_and_b32 s4, s{S_WID}, 3
    s_add_u32 s3, s3, s4
    s_mov_b32 m0, {L_DUMMY}
    """)
    for nm, tot, m0_, n in items:
        srd(p, S_AUX, ptr(nm), tot)
        p(f"s_mul_i32 s5, s3, {n * 1024}")
        if m0_: p(f"s_add_u32 s5, s5, {m0_ * MB}")
        for i in range(n):
            if vdst is None: p(f"buffer_load_dwordx4 v1, s[{S_AUX}:{S_AUX+3}], s5 offen {fl} lds")
            else:
                p(f"buffer_load_dwordx4 {vr(vdst, 4)}, v1, s[{S_AUX}:{S_AUX+3}], s5 offen {fl}"); vdst += 4
            if i < n - 1: p(f"s_add_u32 s5, s5, 1024")
    return sum(x[3] for x in items)

def code_prefetch(p, c, again=False):
    if not c.opt.get('cpf', 1) or (again and not c.opt.get('cpf2', 1)): return
    L = c.lab("pc")
    p("s_getpc_b64 s[4:5]")
    p.label(L)
    p(f"""
    s_sub_u32 s4, s4, {L}-{c.name}
    s_subb_u32 s5, s5, 0
    s_lshl_b32 s3, s{S_IDX}, 11
    """)
    if again: p(f"s_and_b32 s6, s{S_WID}, 3\ns_lshl_b32 s6, s6, 9\ns_add_u32 s3, s3, s6\nv_lshl_add_u32 v136, v0, 3, s3")
    else: p("v_lshl_add_u32 v136, v0, 2, s3")
    p(f"""
    s_mov_b32 s3, {c.name}_end-{c.name}
    v_min_u32 v136, s3, v136
    v_mov_b32 v137, s5
    v_add_co_u32 v136, vcc, s4, v136
    v_addc_co_u32 v137, vcc, 0, v137, vcc
    global_load_dword v138, v[136:137], off
    """)

def tlb_warm(p, c):
    if not c.opt.get('tlb', 0): return
    g = c.opt.get('tlbg', 2 * MB)
    def pages(nm, size): return [(nm, o) for o in range(0, size, g)]
    L = [pages('x', 4 * MB) + pages('wqkv', 6 * MB) + pages('gate', 1) + pages('w1', 2 * MB) + pages('dbg', 1) + pages('out', 4 * MB),
         pages('w2', 2 * MB) + pages('w3', 7 * MB) + pages('w4', 7 * MB) + pages('wo', 2 * MB)]
    ws = pages('ws', WS_SIZE)
    L += [ws[:len(ws) // 2], ws[len(ws) // 2:]]
    E = c.lab("tlbe")
    p("s_waitcnt lgkmcnt(0)")
    for w in range(4):
        N = c.lab("tlb")
        if w < 3: p(f"s_cmp_eq_u32 s{S_WID}, {w}\ns_cbranch_scc0 {N}")
        for nm, o in L[w]:
            if o: p(f"s_mov_b32 s3, {o}")
            p.I.append(Inst("s_nop 0"))
            p.I[-1].text = f"s_load_dword s98, s[{ptr(nm)}:{ptr(nm)+1}], " + ("s3" if o else "0")
        if w < 3:
            p(f"s_branch {E}")
            p.label(N)
    p.label(E)
    c.tlb_pending = True

def rot_pieces(p, n, first, rank_code, lds_base, emit):
    p(rank_code)
    for k in range(n):
        if k:
            p(f"s_add_u32 s6, s6, 1\ns_cmp_eq_u32 s6, {n}\ns_cselect_b32 s6, 0, s6")
        p(f"s_lshl_b32 s7, s6, 10\ns_add_u32 s{S_OFFS[first + k]}, s7, s{lds_base}")
        emit(k)
```

```python
from g1 import *
L_MU2 = L_X + 0
S_HB, S_NB = 63, 100
def s_prefetch(p, base, n):
    p(f"""
    s_lshl_b32 s3, s2, 2
    s_and_b32 s4, s{S_WID}, 3
    s_add_u32 s3, s3, s4
    s_mul_i32 s3, s3, {n * 64}
    s_add_u32 s3, s3, {base}
    s_add_u32 s6, s{ptr('wqkv')}, s3
    s_addc_u32 s7, s{ptr('wqkv')+1}, 0
    """)
    for i in range(n):
        p.I.append(Inst("s_nop 0")); p.I[-1].text = f"s_load_dword s98, s[6:7], {i * 64}"

class G2(Gemm):
    NT = 8; KS = 2; nsteps = 16; nA = 8; nB = 3; fr0 = 32
    stepA = 128; stepB = 64 * 6144
    addr_regs = [8, 10, 11, 12, 13, 9]
    pubkind = F_W1
    chain = True
    h_steps = (0, 1, 2, 3, 4, 5, 6)
    def swap(self, n): return n in (4, 5)
    def xaddr(self, kk, m): return (8 + kk, m * 2048)
    def waddr(self, kk, n, j):
        if n < 6: return (10 + n % 2, (32 * kk + 4 * j) * 192 + (n // 2) * 64)
        return (12 + n % 2, (32 * kk + 4 * j) * 64)
    def aflag(self, c): return ''
    @property
    def nd(self): return 13 if self.coop else 12
    coop = True
    def dma_extra(self, c):
        return [f"s_add_u32 m0, s{S_DMA}, s50\nbuffer_load_dwordx4 v43, s[{S_B2}:{S_B2+3}], s53 offen lds\ns_add_u32 s53, s53, {64 * 2048}"] + \
               ([f"s_mov_b32 m0, {L_DUMMY}\nbuffer_load_dwordx4 v44, s[{S_B}:{S_B+3}], s{S_SO[1]} offen lds"] if self.coop else [])
    def dma_atoms(self, c):
        D = Gemm.dma_atoms(self, c)
        if c.opt.get('krot'):
            D[-1] += f"\ns_and_b32 s{S_SO[0]}, s{S_SO[0]}, 2047\ns_cselect_b32 s{S_SO[1]}, s{S_SO[1]}, 0\ns_cselect_b32 s53, s53, 0"
        return D
    def h_first(self, p, c): pass
    def h_setup(self, p, c, first=False):
        if c.opt.get('spf'): self.h_steps = tuple(range(13))
        p(f"""
        v_lshrrev_b32 v{T0}, 3, v0
        v_and_b32 v{T0+1}, 7, v0
        s_lshl_b32 s3, s{S_QB}, 8
        s_lshl_b32 s4, s{S_WM}, 6
        s_add_u32 s3, s3, s4
        v_lshrrev_b32 v{T0+2}, 1, v{T0}
        v_xor_b32 v{T0+2}, v{T0+2}, v{T0+1}
        v_add_u32 v{T0+3}, s3, v{T0}
        v_lshlrev_b32 v{T0+3}, 11, v{T0+3}
        v_lshl_add_u32 v32, v{T0+2}, 4, v{T0+3}
        v_xor_b32 v{T0+2}, 64, v32
        """)
        for i in range(1, 8): p(f"v_add_u32 v{32 + i}, {i * 8 * 2048}, v{32 if i % 2 == 0 else T0 + 2}")
        p(f"""
        s_mul_i32 s3, s{S_WM}, 192
        s_lshl_b32 s4, s{S_HEAD}, 6
        v_and_b32 v{T0+5}, 3, v0
        """)
        for i in range(3):
            p(f"""
            v_add_u32 v{T0}, s3, v0
            v_add_u32 v{T0}, {64 * i}, v{T0}
            v_mul_u32_u24 v{T0+1}, 0x1556, v{T0}
            v_lshrrev_b32 v{T0+1}, 16, v{T0+1}
            v_mul_u32_u24 v{T0+2}, 12, v{T0+1}
            v_sub_u32 v{T0+2}, v{T0}, v{T0+2}
            v_lshrrev_b32 v{T0+3}, 2, v{T0+2}
            v_lshrrev_b32 v{T0+4}, 2, v{T0+1}
            v_and_b32 v{T0+4}, 2, v{T0+4}
            v_xor_b32 v{T0+2}, v{T0+5}, v{T0+4}
            v_mul_u32_u24 v{T0+1}, 6144, v{T0+1}
            v_lshl_add_u32 v{T0+1}, v{T0+3}, 11, v{T0+1}
            v_lshl_add_u32 v{T0+1}, v{T0+2}, 4, v{T0+1}
            v_add_u32 v{40 + i}, s4, v{T0+1}
            """)
        p(f"""
        v_lshrrev_b32 v{T0}, 2, v0
        v_lshrrev_b32 v{T0+1}, 4, v0
        v_and_b32 v{T0+1}, 2, v{T0+1}
        v_xor_b32 v{T0+1}, v{T0+5}, v{T0+1}
        s_lshl_b32 s3, s{S_WM}, 4
        v_add_u32 v{T0}, s3, v{T0}
        v_lshlrev_b32 v{T0}, 11, v{T0}
        v_lshl_add_u32 v{T0}, v{T0+1}, 4, v{T0}
        s_add_u32 s{S_HB}, s{S_HEAD}, {c.opt.get('hbshift', 2)}
        s_and_b32 s{S_HB}, s{S_HB}, 31
        s_lshr_b32 s{S_NB}, s{S_HB}, 1
        s_lshl_b32 s4, s{S_HB}, 6
        v_add_u32 v43, s4, v{T0}
        s_lshl_b32 s{S_LD[0]}, s{S_WM}, 13
        s_mul_i32 s{S_LD[1]}, s{S_WM}, 3072
        s_add_u32 s{S_LD[1]}, s{S_LD[1]}, 32768
        s_lshl_b32 s50, s{S_WM}, 10
        s_add_u32 s50, s50, 45056
        s_mov_b32 s{S_SO[0]}, 0
        s_mov_b32 s{S_SO[1]}, 0
        s_mov_b32 s53, 0
        """)
        if c.opt.get('krot'):
            a, b = c.opt['krot']
            p(f"""
            s_lshr_b32 s3, s{S_XCD}, 1
            s_mul_i32 s3, s3, {a}
            s_and_b32 s4, s{S_XCD}, 1
            s_mul_i32 s4, s4, {b}
            s_add_u32 s3, s3, s4
            s_and_b32 s3, s3, 15
            s_lshl_b32 s{S_SO[0]}, s3, 7
            s_mul_i32 s{S_SO[1]}, s3, {64 * 6144}
            s_lshl_b32 s53, s3, 17
            """)
        srd(p, S_A, ptr('x'), 2048 * 2048)
        srd(p, S_B, ptr('wqkv'), 1024 * 6144)
        srd(p, S_B2, ptr('w1'), 1024 * 2048)
        if self.coop:
            p(f"""
            s_or_b32 s4, s{S_NT3}, 3
            s_lshr_b32 s3, s{ptr('wqkv')}, 7
            s_add_u32 s3, s3, s4
            s_and_b32 s3, s3, 7
            s_lshl_b32 s4, s4, 7
            s_lshr_b32 s5, s{S_IDX}, 3
            s_lshl_b32 s6, s5, 11
            s_add_u32 s4, s4, s6
            s_and_b32 s6, s{S_IDX}, 7
            s_lshl_b32 s6, s6, 2
            s_add_u32 s6, s6, s{S_WM}
            s_mul_i32 s6, s6, {2 * 6144}
            s_add_u32 s4, s4, s6
            s_add_u32 s4, s4, {c.opt.get('coopa', 1) * self.stepB}
            s_cmp_eq_u32 s3, 3
            s_cselect_b32 s3, 16, 0
            s_cmp_eq_u32 s5, 3
            s_cselect_b32 s3, 0, s3
            v_lshrrev_b32 v{T0}, 3, v0
            v_mul_u32_u24 v{T0}, 6144, v{T0}
            v_and_b32 v{T0+1}, 7, v0
            v_lshl_add_u32 v{T0}, v{T0+1}, 4, v{T0}
            v_add_u32 v{T0}, s4, v{T0}
            v_mov_b32 v{T0+1}, 0x40000000
            v_cmp_gt_u32 vcc, s3, v0
            v_cndmask_b32 v44, v{T0+1}, v{T0}, vcc
            """)
    def pf_list(self, c): return [('wqkv', 6 * MB, i, 1) for i in c.opt.get('qorder', range(6))]
    def g_first(self, p, c):
        W1F.g_first(self, p, c, False)
        srd(p, S_B, ptr('w1'), 1024 * 2048)
        p(f"""
        v_lshrrev_b32 v{T0}, 3, v0
        v_and_b32 v{T0+1}, 7, v0
        v_lshlrev_b32 v{T0}, 11, v{T0}
        v_lshl_add_u32 v{T0}, v{T0+1}, 4, v{T0}
        s_lshl_b32 s3, s{S_MT3}, 2
        s_add_u32 s3, s3, s{S_WID}
        s_lshl_b32 s3, s3, 15
        s_lshl_b32 s4, s{S_NT3}, 7
        s_add_u32 s3, s3, s4
        s_add_u32 s4, s3, {8 * 2048}
        buffer_load_dwordx4 v[88:91], v{T0}, s[{S_B}:{S_B+3}], s3 offen
        buffer_load_dwordx4 v[92:95], v{T0}, s[{S_B}:{S_B+3}], s4 offen
        """)
        g_prefetch(p, c, self.pf_list(c)[:c.opt.get('pf0', 1)])
        if c.opt.get('spf'): s_prefetch(p, c.opt.get('pf0', 1) * MB, c.opt['spf'][0])
    def early(self, p, c):
        stats_code(p, c, 64, 80, S_WID)
        for d in range(4):
            p(f"""
            v_lshlrev_b32 v{96 + 2 * d}, 16, v{88 + d}
            v_and_b32 v{97 + 2 * d}, 0xffff0000, v{88 + d}
            v_lshlrev_b32 v104, 16, v{92 + d}
            v_and_b32 v105, 0xffff0000, v{92 + d}
            v_add_f32 v{96 + 2 * d}, v{96 + 2 * d}, v104
            v_add_f32 v{97 + 2 * d}, v{97 + 2 * d}, v105
            """)
        for i in range(4): p(f"v_permlane32_swap_b32 v{96 + i}, v{100 + i}")
        for i in range(4): p(f"v_add_f32 v{96 + i}, v{96 + i}, v{100 + i}")
        for i in range(2): p(f"v_permlane16_swap_b32 v{96 + i}, v{98 + i}")
        for i in range(2): p(f"v_add_f32 v{96 + i}, v{96 + i}, v{98 + i}")
        for i in range(2): p(f"v_add_f32_dpp v{96 + i}, v{96 + i}, v{96 + i} row_ror:8 row_mask:0xf bank_mask:0xf")
        p(f"""
        v_and_b32 v104, 7, v0
        v_lshrrev_b32 v105, 4, v0
        v_lshlrev_b32 v104, 5, v104
        v_lshl_add_u32 v104, v105, 3, v104
        s_lshl_b32 s3, s{S_NT3}, 4
        s_add_u32 s3, s3, s{S_MT3}
        s_lshl_b32 s3, s3, 2
        s_add_u32 s3, s3, s{S_WID}
        s_lshl_b32 s3, s3, 8
        s_add_u32 s3, s3, {WS_CS1}
        buffer_store_dwordx2 v[96:97], v104, s[{S_WS}:{S_WS+3}], s3 offen {c.opt.get('stflag', '')}
        """)
    def g_pre_early(self, p, c):
        U = 16
        lane_fields(p, U, U + 1, U + 2, U + 3)
        p(f"""
        v_lshrrev_b32 v{U+4}, 1, v{U}
        v_xor_b32 v{U+4}, v{U+4}, v{U+1}
        v_lshlrev_b32 v{U+4}, 4, v{U+4}
        v_lshl_or_b32 v{U+4}, v{U}, 7, v{U+4}
        s_lshl_b32 s3, s{S_WID}, 13
        v_add_u32 v8, s3, v{U+4}
        v_xor_b32 v9, 64, v8
        v_and_b32 v{U+5}, 1, v{U+1}
        v_lshlrev_b32 v{U+5}, 5, v{U+5}
        v_lshl_add_u32 v{U+5}, v{U+3}, 3, v{U+5}
        v_lshl_add_u32 v{U+4}, v{U+1}, 3, v{U+2}
        v_mul_u32_u24 v{U+6}, 192, v{U+4}
        v_add_u32 v{U+6}, v{U+6}, v{U+5}
        v_add_u32 v10, 32768, v{U+6}
        v_xor_b32 v11, 32, v10
        v_lshl_add_u32 v{U+6}, v{U+4}, 6, v{U+5}
        v_add_u32 v12, 45056, v{U+6}
        v_xor_b32 v13, 32, v12
        """)
        self.g_zero(p)
    def g_setup(self, p, c): pass
    def g_sites(self, c):
        def pub(p):
            p("s_waitcnt vmcnt(0)")
            publish(p, c, F_ST, False, 28)
        return {c.opt.get('stpub', 4): pub} if c.opt.get('persist') else {}
    def h_poll(self, c, t):
        if t == 2: return poll_init(c)
        if t == 14 and not c.opt.get('stsplit', 1): return self.st_poll(c)
    cpf_late = True
    def st_poll(self, c): return poll_flags(c, F_ST, S_QB, nprod=32, col_sgpr=S_NB)
    def h_pre(self, p, c, t):
        if t == 14 and c.opt.get('spf'): p('s_waitcnt lgkmcnt(0)')
        if t == 15 and c.opt.get('stsplit', 1): self.st_poll(c).group_wait(p, True)
    def h_extra(self, p, c, t):
        W = f"s[{S_WS}:{S_WS+3}]"
        ho = c.opt.get('hoflag', '')
        if c.opt.get('spf') and t <= 12:
            g, k = c.opt['spf']
            b = c.opt.get('pf0', 1) * MB + (g + k * t) * 65536
            n = min(k, (6 * MB - b) // 65536)
            if n > 0: s_prefetch(p, b, n)
            return 0
        if t <= 6:
            rest = self.pf_list(c)[c.opt.get('pf0', 1):]
            k = c.opt.get('pfk', 1)
            return g_prefetch(p, c, rest[k * t:k * (t + 1)])
        if t == 15:
            p(f"""
            v_lshlrev_b32 v60, 2, v0
            s_lshl_b32 s3, s{S_QB}, 10
            s_lshl_b32 s4, s{S_WM}, 8
            s_add_u32 s3, s3, s4
            s_add_u32 s3, s3, {WS_ST1}
            s_add_u32 s5, s3, 8192
            s_add_u32 s4, s4, {L_MU2}
            v_add_u32 v58, s4, v60
            buffer_load_dword v59, v60, {W}, s3 offen {ho}
            buffer_load_dword v63, v60, {W}, s5 offen {ho}
            v_lshrrev_b32 v61, 2, v0
            v_and_b32 v62, 3, v0
            v_lshlrev_b32 v61, 8, v61
            v_lshl_add_u32 v61, v62, 4, v61
            s_lshl_b32 s3, s{S_NB}, 14
            s_lshl_b32 s4, s{S_WM}, 6
            s_add_u32 s3, s3, s4
            s_add_u32 s3, s3, {WS_CS1}
            """)
            for i in range(4):
                p(f"buffer_load_dwordx4 {vr(64 + 4 * i, 4)}, v61, {W}, s3 offen {ho}")
                if i < 3: p("s_add_u32 s3, s3, 4096")
            if c.opt.get('cs3at') == 15: self.npf += cs3_loads(p, c, S_MT2, S_NT2)
            return 6 + self.npf
        if t == 14 and c.opt.get('stsplit', 1):
            P = self.st_poll(c); p(P.addr)
            p(f"s_cmp_eq_u32 s{S_WM}, 0\ns_cselect_b32 s{S_POLL}, s{S_POLL}, {WS_SIZE}")
            p(P.load)
            self.npf = self.cold_loads(p, c) + 1
            return self.npf
        if t == 14 and not c.opt.get('post14', 0): return self.cold_loads(p, c)
        return 0
    def cold_loads(self, p, c):
        self.npf = cs3_loads(p, c) if c.opt.get('cs3') else 0
        if c.opt.get('cs3at') == 14: self.npf += cs3_loads(p, c, S_MT2, S_NT2)
        self.npf += g_prefetch(p, c, c.opt.get('g2pf', [('w2', 2 * MB, 0, 2)]), vdst=160)
        return self.npf
    def h_post(self, p, c, t):
        if t == 14 and c.opt.get('post14', 0): self.cold_loads(p, c)
    def h_final(self, p, c):
        p("ds_write_b32 v58, v63 offset:1024")
        G1.h_mix(self, p, c, 15)
        if c.opt.get('cs3'): cs3_math(p, c)
        if c.opt.get('cs3m'): cs3_math(p, c, S_MT2, S_NT2)
    def g_epi(self, p, c):
        st = c.opt.get('stflag', '')
        W = f"s[{S_WS}:{S_WS+3}]"
        R, G, U = 16, 17, 18
        p("s_setprio 2")
        lane_fields(p, R, G)
        p(f"""
        v_lshlrev_b32 v{U}, 9, v{G}
        v_lshl_or_b32 v8, v{R}, 4, v{U}
        v_and_b32 v{U+1}, 7, v{R}
        v_lshrrev_b32 v{U+2}, 3, v{R}
        v_lshl_or_b32 v{U}, v{U+2}, 8, v{U}
        v_lshl_or_b32 v9, v{U+1}, 4, v{U}
        s_add_u32 s{S_HB}, s{S_HEAD}, {c.opt.get('hbshift', 2)}
        s_and_b32 s{S_HB}, s{S_HB}, 31
        s_lshl_b32 s45, s{S_HB}, 10
        s_add_u32 s45, s45, {WS_HS}
        s_lshl_b32 s43, s{S_HEAD}, 18
        s_lshl_b32 s4, s{S_QB}, 15
        s_lshl_b32 s5, s{S_WID}, 13
        s_add_u32 s43, s43, s4
        s_add_u32 s43, s43, s5
        s_add_u32 s43, s43, {WS_KV}
        s_add_u32 s44, s43, 4096
        s_add_u32 s5, s5, s{S_RD}
        v_add_u32 v12, s5, v8
        v_add_u32 v13, s5, v9
        s_lshl_b32 s5, s{S_WID}, 12
        s_add_u32 s5, s5, s{S_RD}
        v_add_u32 v14, s5, v8
        s_mov_b32 s46, {hexf(QSCALE)}
        s_mov_b32 s47, {hexf(QSCALE)}
        s_and_b32 s3, s{S_HEAD}, 1
        s_lshl_b32 s3, s3, 7
        s_add_u32 s3, s3, {L_CS}
        v_lshl_add_u32 v10, v{G}, 4, s3
        s_lshl_b32 s3, s{S_WID}, 8
        s_add_u32 s3, s3, {L_MU2}
        v_lshl_add_u32 v11, v{R}, 2, s3
        """)
        t = 32
        S = []
        late = c.opt.get('kvlate', 0)
        def st_(x):
            if late: S.append(x)
            else: p(x)
        for m in range(4):
            a, b = self.acc(m, 2), self.acc(m, 3)
            for i, r in enumerate((a, a + 2, b, b + 2)): p(f"v_cvt_pk_bf16_f32 v{t + i}, v{r}, v{r + 1}")
            st_(f"buffer_store_dwordx4 {vr(t, 4)}, v9, {W}, s{43 + m // 2} offen offset:{(m % 2) * 128} {st}")
            p(f"ds_write_b128 v13, {vr(t, 4)} offset:{(m // 2) * 4096 + (m % 2) * 128}")
            t += 4
        for u in range(2):
            for nb in range(2):
                a = self.acc(2 * u, 4 + nb)
                for i in range(4): p(f"v_cvt_pk_bf16_f32 v{t + i}, v{a + 2 * i}, v{a + 2 * i + 1}")
                st_(f"buffer_store_dwordx4 {vr(t, 4)}, v8, {W}, s{43 + u} offen offset:{2048 + nb * 256} {st}")
                p(f"ds_write_b128 v12, {vr(t, 4)} offset:{u * 4096 + 2048 + nb * 256}")
                t += 4
        for m in range(4):
            a, b = self.acc(m, 0), self.acc(m, 1)
            for r in (a, a + 2, b, b + 2): p(f"v_pk_mul_f32 {vr(r, 2)}, {vr(r, 2)}, s[46:47]")
            for i, r in enumerate((a, a + 2, b, b + 2)): p(f"v_cvt_pk_bf16_f32 v{t + i}, v{r}, v{r + 1}")
            p(f"ds_write_b128 v14, {vr(t, 4)} offset:{32768 + (m // 2) * 2048 + (m % 2) * 256}")
            t += 4
        p.add(S[:2])
        p("s_waitcnt lgkmcnt(0)\ns_barrier")
        p("ds_read_b128 v[80:83], v10\nds_read_b128 v[84:87], v10 offset:64")
        for m in range(4):
            p(f"ds_read_b32 v{88 + 8 * m}, v11 offset:{64 * m}")
            p(f"ds_read_b32 v{89 + 8 * m}, v11 offset:{1024 + 64 * m}")
        p.add(S[2:])
        c.ST(p, 'g')
        for m in range(4): gelu_consts(p, 88 + 8 * m, False)
        p(f"""
        s_lshr_b32 s5, s{S_HB}, 3
        s_lshr_b32 s6, s5, 1
        s_add_u32 s6, s6, 1
        s_sub_u32 s7, 0, s6
        s_bitcmp1_b32 s5, 0
        s_cselect_b32 s6, s7, s6
        s_lshl_b32 s3, s{S_QB}, 8
        s_lshl_b32 s4, s{S_WID}, 6
        s_add_u32 s3, s3, s4
        s_add_u32 s6, s6, s3
        """)
        npub = c.opt.get('g1pub', 0)
        def pub():
            p("s_waitcnt vmcnt(%d)" % (1 if c.opt.get('stamp') else 0))
            publish(p, c, F_QKV, False, 28)
            if not c.opt.get('gfirst'): p("s_setprio 0")
            c.ST(p, 'g')
        for mp in range(2):
            if mp == npub: pub()
            items = []
            for m in (2 * mp, 2 * mp + 1):
                for n in range(2):
                    for h in range(2): items.append((self.acc(m, 6 + n) + 2 * h, 80 + 4 * n + 2 * h, 88 + 8 * m))
            gelu_block(p, items, 128, c.opt.get('pk', 1))
            for m in (2 * mp, 2 * mp + 1):
                a, b = self.acc(m, 6), self.acc(m, 7)
                t = 160 + 4 * m
                if m == 0:
                    p(f"""
                    v_add_u32 v{U}, s6, v{R}
                    v_and_b32 v{U+1}, 15, v{U}
                    v_lshl_add_u32 v{U+1}, v{G}, 4, v{U+1}
                    v_lshlrev_b32 v{U+1}, 4, v{U+1}
                    v_ashrrev_i32 v{U+2}, 4, v{U}
                    v_lshl_add_u32 v{U+1}, v{U+2}, 15, v{U+1}
                    v_and_b32 v176, 0x3fffff, v{U+1}
                    v_add_u32 v177, 32768, v{U+1}
                    v_add_u32 v178, 65536, v{U+1}
                    v_add_u32 v179, 98304, v{U+1}
                    v_and_b32 v179, 0x3fffff, v179
                    v_cmp_le_i32 vcc, 0, v{U}
                    """)
                if m == 3: p(f"v_cmp_gt_i32 vcc, 2000, v{U}")
                for i, r in enumerate((a, a + 2, b, b + 2)): p(f"v_cvt_pk_bf16_f32 v{t + i}, v{r}, v{r + 1}")
                if m in (0, 3):
                    for i in range(4): p(f"v_cndmask_b32 v{t + i}, 0, v{t + i}, vcc")
        if npub == 2: pub()
        self.deferred = [f"buffer_store_dwordx4 {vr(160 + 4 * m, 4)}, v{176 + m}, {W}, s45 offen {st}" for m in range(4)]
        if not c.opt.get('hslate', 0): p.add(self.deferred); self.deferred = []
        if not (self.nxt.adv == 8192 and c.opt.get('glow', 1)): p("s_setprio 0")

class G2N(G2):
    coop = False
```

```python
from fw import *

def lane_fields(p, r16=None, g=None, r4=None, c4=None):
    if r16 is not None: p(f"v_and_b32 v{r16}, 15, v0")
    if g is not None: p(f"v_lshrrev_b32 v{g}, 4, v0")
    if r4 is not None: p(f"v_bfe_u32 v{r4}, v0, 2, 2")
    if c4 is not None: p(f"v_and_b32 v{c4}, 3, v0")

T0 = 128

def h_xrows(p, regs, sub_off, S_MT):
    p(f"""
    v_lshrrev_b32 v{T0}, 3, v0
    v_and_b32 v{T0+1}, 7, v0
    s_lshl_b32 s3, s{S_MT}, 7
    s_lshl_b32 s4, s{S_WM}, 5
    s_add_u32 s3, s3, s4
    v_lshrrev_b32 v{T0+2}, 1, v{T0}
    v_xor_b32 v{T0+2}, v{T0+2}, v{T0+1}
    v_add_u32 v{T0+3}, s3, v{T0}
    v_lshlrev_b32 v{T0+3}, 11, v{T0+3}
    v_lshl_add_u32 v{regs[0]}, v{T0+2}, 4, v{T0+3}
    v_xor_b32 v{T0+2}, 64, v{regs[0]}
    """)
    for i, r in enumerate(regs):
        if i == 0: continue
        ii = i % 4
        src = regs[0] if ii % 2 == 0 else T0 + 2
        p(f"v_add_u32 v{r}, {ii * 8 * 2048 + sub_off(i)}, v{src}")

class QKV(Gemm):
    NT = 6; KS = 2; nsteps = 16; nA = 4; nB = 6
    stepA = 128; stepB = 64 * 6144
    addr_regs = [32, 34, 35, 33]
    pubkind = F_QKV
    h_steps = (0, 1, 2, 3, 4, 5, 6, 7)
    def swap(self, n): return n >= 4
    def xaddr(self, kk, m): return (32 + kk, m * 2048)
    def waddr(self, kk, n, j): return (34 + n % 2, (32 * kk + 4 * j) * 384 + (n // 2) * 128)
    def aflag(self, c): return c.opt.get('ldflag', '')
    def h_setup(self, p, c, first=False):
        h_xrows(p, [32, 33, 34, 35], lambda i: 0, S_MT3)
        p(f"""
        s_mul_i32 s3, s{S_WM}, 384
        s_lshl_b32 s4, s{S_NT3}, 7
        """)
        for i in range(3):
            p(f"""
            v_add_u32 v{T0}, s3, v0
            v_add_u32 v{T0}, {64 * i}, v{T0}
            v_mul_u32_u24 v{T0+1}, 0xaab, v{T0}
            v_lshrrev_b32 v{T0+1}, 16, v{T0+1}
            v_mul_u32_u24 v{T0+2}, 24, v{T0+1}
            v_sub_u32 v{T0+2}, v{T0}, v{T0+2}
            v_lshrrev_b32 v{T0+3}, 3, v{T0+2}
            v_and_b32 v{T0+2}, 7, v{T0+2}
            v_and_b32 v{T0+4}, 2, v{T0+1}
            v_xor_b32 v{T0+2}, v{T0+2}, v{T0+4}
            v_mul_u32_u24 v{T0+1}, 6144, v{T0+1}
            v_lshl_add_u32 v{T0+1}, v{T0+3}, 11, v{T0+1}
            v_lshl_add_u32 v{T0+1}, v{T0+2}, 4, v{T0+1}
            v_add_u32 v{36 + i}, s4, v{T0+1}
            v_xor_b32 v{T0+1}, 64, v{36 + i}
            v_add_u32 v{39 + i}, {8 * 6144}, v{T0+1}
            """)
        p(f"""
        s_lshl_b32 s{S_LD[0]}, s{S_WM}, 12
        s_mul_i32 s{S_LD[1]}, s{S_WM}, 6144
        s_add_u32 s{S_LD[1]}, s{S_LD[1]}, 16384
        s_mov_b32 s{S_SO[0]}, 0
        s_mov_b32 s{S_SO[1]}, 0
        """)
        srd(p, S_B, ptr('wqkv'), 1024 * 6144)
    def g_setup(self, p, c):
        lane_fields(p, T0, T0 + 1, T0 + 2, T0 + 3)
        p(f"""
        v_lshrrev_b32 v{T0+4}, 1, v{T0}
        v_xor_b32 v{T0+4}, v{T0+4}, v{T0+1}
        v_lshlrev_b32 v{T0+4}, 4, v{T0+4}
        v_lshl_or_b32 v{T0+4}, v{T0}, 7, v{T0+4}
        s_lshl_b32 s3, s{S_WM}, 13
        s_add_u32 s3, s3, s{S_RD}
        v_add_u32 v32, s3, v{T0+4}
        v_xor_b32 v33, 64, v32
        v_lshl_add_u32 v{T0+4}, v{T0+1}, 3, v{T0+2}
        v_mul_u32_u24 v{T0+4}, 384, v{T0+4}
        v_lshrrev_b32 v{T0+5}, 1, v{T0+2}
        v_and_b32 v{T0+6}, 1, v{T0+1}
        v_lshl_or_b32 v{T0+5}, v{T0+6}, 1, v{T0+5}
        s_lshl_b32 s3, s{S_WN}, 1
        v_xor_b32 v{T0+5}, s3, v{T0+5}
        v_lshl_add_u32 v{T0+4}, v{T0+5}, 5, v{T0+4}
        v_lshl_add_u32 v{T0+4}, v{T0+3}, 3, v{T0+4}
        s_add_u32 s3, s{S_RD}, 16384
        v_add_u32 v34, s3, v{T0+4}
        v_xor_b32 v35, 32, v34
        """)
        self.g_zero(p)
    def g_epi(self, p, c):
        st = c.opt.get('stflag', '')
        lane_fields(p, T0, T0 + 1)
        p(f"""
        s_waitcnt lgkmcnt(0)
        v_lshrrev_b32 v{T0+2}, 1, v{T0+1}
        v_and_b32 v{T0+3}, 1, v{T0+1}
        v_lshlrev_b32 v{T0+2}, 10, v{T0+2}
        v_lshl_or_b32 v{T0+2}, v{T0+3}, 9, v{T0+2}
        v_lshl_or_b32 v32, v{T0}, 4, v{T0+2}
        v_and_b32 v{T0+3}, 7, v{T0}
        v_lshrrev_b32 v{T0+4}, 3, v{T0}
        v_lshl_or_b32 v{T0+2}, v{T0+4}, 8, v{T0+2}
        v_lshl_or_b32 v33, v{T0+3}, 4, v{T0+2}
        s_lshl_b32 s3, s{S_NT3}, 1
        s_add_u32 s3, s3, s{S_WN}
        s_lshl_b32 s4, s{S_MT3}, 2
        s_lshl_b32 s5, s{S_WM}, 1
        s_add_u32 s4, s4, s5
        s_lshl_b32 s5, s3, 17
        s_lshl_b32 s6, s4, 11
        s_add_u32 s42, s5, s6
        s_lshl_b32 s43, s42, 1
        s_add_u32 s43, s43, {WS_KV}
        s_add_u32 s44, s43, 4096
        s_mov_b32 s46, {hexf(QSCALE)}
        s_mov_b32 s47, {hexf(QSCALE)}
        """)
        W = f"s[{S_WS}:{S_WS+3}]"
        st = c.opt.get('qkvst', st)
        t = V_FR
        for m in range(4):
            a, b = self.acc(m, 2), self.acc(m, 3)
            for i, r in enumerate((a, a + 2, b, b + 2)): p(f"v_cvt_pk_bf16_f32 v{t + i}, v{r}, v{r + 1}")
            p(f"buffer_store_dwordx4 {vr(t, 4)}, v33, {W}, s{43 + m // 2} offen offset:{(m % 2) * 128} {st}")
            t += 4
        for u in range(2):
            for nb in range(2):
                a = self.acc(2 * u, 4 + nb)
                for i in range(4): p(f"v_cvt_pk_bf16_f32 v{t + i}, v{a + 2 * i}, v{a + 2 * i + 1}")
                p(f"buffer_store_dwordx4 {vr(t, 4)}, v32, {W}, s{43 + u} offen offset:{2048 + nb * 256} {st}")
                t += 4
        for m in range(4):
            a, b = self.acc(m, 0), self.acc(m, 1)
            for r in (a, a + 2, b, b + 2): p(f"v_pk_mul_f32 {vr(r, 2)}, {vr(r, 2)}, s[46:47]")
            for i, r in enumerate((a, a + 2, b, b + 2)): p(f"v_cvt_pk_bf16_f32 v{t + i}, v{r}, v{r + 1}")
            p(f"buffer_store_dwordx4 {vr(t, 4)}, v32, {W}, s42 offen offset:{(m // 2) * 2048 + (m % 2) * 256} {st}")
            t += 4
    def h_first(self, p, c):
        srd(p, S_A, ptr('x'), 2048 * 2048)
        srd(p, S_AUX, ptr('gate'), 2048)
        p(f"""
        s_lshl_b32 s48, s{S_MT3}, 4
        s_add_u32 s48, s48, s{S_NT3}
        s_lshl_b32 s48, s48, 3
        s_lshl_b32 s3, s{S_WM}, 1
        s_add_u32 s48, s48, s3
        s_lshl_b32 s3, s48, 11
        buffer_load_dwordx4 v[64:67], v1, s[{S_A}:{S_A+3}], s3 offen
        buffer_load_dwordx4 v[68:71], v1, s[{S_A}:{S_A+3}], s3 offen offset:1024
        buffer_load_dwordx4 v[72:75], v1, s[{S_A}:{S_A+3}], s3 offen offset:2048
        buffer_load_dwordx4 v[76:79], v1, s[{S_A}:{S_A+3}], s3 offen offset:3072
        buffer_load_dwordx4 v[80:83], v1, s[{S_AUX}:{S_AUX+3}], 0 offen
        buffer_load_dwordx4 v[84:87], v1, s[{S_AUX}:{S_AUX+3}], 0 offen offset:1024
        """)
    def bflag(self, c): return c.opt.get('qbfl', '')
    def pf_list(self, c): return [('wqkv', 6 * MB, i, 1) for i in range(c.opt.get('nqpf', 6))] + [('w1', 2 * MB, i, 1) for i in range(2)]
    def g_first(self, p, c):
        n0 = c.opt.get('pf0', 1)
        g_prefetch(p, c, self.pf_list(c)[:n0])
        if c.opt.get('gpf', 0):
            srd(p, S_A, ptr('wqkv'), 6 * MB)
            srd(p, S_B, ptr('w1'), 2 * MB)
            p(f"""
            s_lshl_b32 s3, s3, 10
            s_add_u32 s{S_SO[0]}, s3, {n0 * MB}
            s_add_u32 s{S_SO[1]}, s3, {(-(6 - n0) * MB) & 0xffffffff}
            """)
    def g_loop_atoms(self, c):
        if not c.opt.get('gpf', 0) or not c.opt.get('pf', 1): return []
        L = []
        for k, r in enumerate((S_A, S_B)):
            L += [f"buffer_load_dwordx4 v1, s[{r}:{r+3}], s{S_SO[k]} offen lds", f"s_add_u32 s{S_SO[k]}, s{S_SO[k]}, {MB}"]
        return L
    def g_sites(self, c):
        if not c.opt.get('persist'): return {}
        return {9: lambda p: publish(p, c, F_ST, True)}
    def h_poll(self, c, t): return poll_init(c) if t == 6 else None
    def h_mix(self, p, c, t):
        t -= 1
        if 1 <= t <= 4:
            if t == 1:
                for a in range(48, 54): p(f"v_mov_b32 v{a}, 0")
            for i in (2 * t - 2, 2 * t - 1):
                p(f"v_lshlrev_b32 v58, 16, v{80 + i}")
                p(f"v_and_b32 v59, 0xffff0000, v{80 + i}")
                for row in range(2):
                    ag, as_, aq = 48 + row, 50 + row, 52 + row
                    x = 64 + 8 * row + i
                    p(f"""
                    v_lshlrev_b32 v56, 16, v{x}
                    v_and_b32 v57, 0xffff0000, v{x}
                    v_add_f32 v{as_}, v{as_}, v56
                    v_fmac_f32 v{aq}, v56, v56
                    v_add_f32 v{as_}, v{as_}, v57
                    v_fmac_f32 v{aq}, v57, v57
                    v_mul_f32 v56, v56, v58
                    v_mul_f32 v57, v57, v59
                    v_cvt_pk_bf16_f32 v56, v56, v57
                    v_lshlrev_b32 v57, 16, v56
                    v_and_b32 v56, 0xffff0000, v56
                    v_add_f32 v{ag}, v{ag}, v57
                    v_add_f32 v{ag}, v{ag}, v56
                    """)
        if t == 5:
            for a in (48, 50, 52): p(f"v_permlane32_swap_b32 v{a}, v{a + 1}")
            for a in (48, 50, 52): p(f"v_add_f32 v{a}, v{a}, v{a + 1}")
            for a in (48, 50, 52): p(f"v_mov_b32 v{a + 1}, v{a}")
            for a in (48, 50, 52): p(f"v_permlane16_swap_b32 v{a}, v{a + 1}")
            for a in (48, 50, 52): p(f"v_add_f32 v{a}, v{a}, v{a + 1}")
            for sh in (8, 4, 2, 1):
                for a in (48, 50, 52): p(f"v_add_f32_dpp v{a}, v{a}, v{a} row_ror:{sh} row_mask:0xf bank_mask:0xf")
        if t == 6:
            p(f"""
            v_mul_f32 v50, {hexf(1.0 / 1024)}, v50
            v_mul_f32 v52, {hexf(1.0 / 1024)}, v52
            v_fma_f32 v52, -v50, v50, v52
            v_max_f32 v52, 0, v52
            v_add_f32 v52, {hexf(1e-5)}, v52
            v_rsq_f32 v52, v52
            v_cvt_pk_bf16_f32 v48, v48, v48
            v_and_b32 v48, 0xffff0000, v48
            v_mul_f32 v48, {hexf(-LOG2E)}, v48
            v_exp_f32 v48, v48
            v_add_f32 v48, 1.0, v48
            v_rcp_f32 v48, v48
            v_cvt_pk_bf16_f32 v48, v48, v48
            v_and_b32 v48, 0xffff0000, v48
            v_sub_f32 v49, 1.0, v48
            v_cvt_pk_bf16_f32 v49, v49, v49
            v_and_b32 v49, 0xffff0000, v49
            v_lshrrev_b32 v56, 5, v0
            v_add_u32 v56, s48, v56
            v_lshlrev_b32 v56, 2, v56
            """)
    def h_extra(self, p, c, t):
        W = f"s[{S_WS}:{S_WS+3}]"
        st = c.opt.get('stflag', '')
        rest = self.pf_list(c)[c.opt.get('pf0', 1):]
        k = c.opt.get('pfk', 1)
        if t < 7:
            it = rest[k * t:k * (t + 1)] if not c.opt.get('gpf', 0) else []
            return g_prefetch(p, c, it, c.opt.get('pffl', '')) if it else 0
        if t == 7:
            p(f"""
            s_mov_b32 s3, {WS_G}
            s_mov_b32 s4, {WS_G + 8192}
            s_mov_b32 s5, {WS_ST1}
            s_mov_b32 s6, {WS_ST1 + 8192}
            s_mov_b32 exec_lo, 1
            s_mov_b32 exec_hi, 1
            buffer_store_dword v48, v56, {W}, s3 offen {st}
            buffer_store_dword v49, v56, {W}, s4 offen {st}
            buffer_store_dword v50, v56, {W}, s5 offen {st}
            buffer_store_dword v52, v56, {W}, s6 offen {st}
            s_mov_b64 exec, -1
            """)
            return 4
        return 0

class N64(Gemm):
    NT = 2; KS = 4; nA = 8; nB = 4
    stepB = 128 * 2048
    order = 'perm32'; bname = None; babytes = 1024 * 2048
    a_pitch = 32768; a_base = 0; a_size = 4 * MB
    stepA = 4096
    addr_regs = [32, 34, 35]
    def xaddr(self, kk, m): return (32, m * 4096 + kk * 1024)
    def waddr(self, kk, n, j):
        js = {'nat': 4, 'perm32': 16, 'perm32b': 8}[self.order]
        return (34 + n, (32 * kk + js * j) * 128)
    def g_body(self, p, c, prev):
        if not c.opt.get('chain64', 1) or self.order == 'nat': return Gemm.g_body(self, p, c, prev)
        xf = lambda s, m, h: 48 + 48 * s + 8 * m + 4 * h
        wf = lambda s, n, h: 48 + 48 * s + 32 + 8 * n + 4 * h
        def reads(s, kk):
            rx = lambda m: ["ds_read_b128 %s, v%d offset:%d" % ((vr(xf(s, m, h), 4),) + self.xaddr(2 * kk + h, m)) for h in range(2)]
            rw = lambda n: ["ds_read_b64_tr_b16 %s, v%d offset:%d" % ((vr(wf(s, n, h) + 2 * j, 2),) + self.waddr(2 * kk + h, n, j)) for h in range(2) for j in range(2)]
            return rx(0) + rw(0) + rx(1) + rx(2) + rx(3) + rw(1)
        def mfmas(s, c0=None):
            M = []
            for n in range(2):
                for i, m in enumerate(range(4) if n == 0 else range(3, -1, -1)):
                    for h in ((0, 1) if i % 2 == 0 else (1, 0)): M.append(mfma16(self.acc(m, n), wf(s, n, h), xf(s, m, h)))
            return M
        self.reads, self.mfmas, self.KS, self.small = reads, mfmas, 2, True
        Gemm.g_body(self, p, c, prev)
    def rotated(self, c): return c.opt.get('rot', 0)
    def h_setup_a(self, p, c):
        srd(p, S_A, ptr('ws'), self.a_size, self.a_base)
        p(f"""
        s_lshl_b32 s3, s{S_MT2}, 3
        s_lshl_b32 s4, s{S_WM}, 1
        s_add_u32 s3, s3, s4
        s_mul_i32 s3, s3, {self.a_pitch}
        """)
        if self.rotated(c):
            def emit(k):
                p(f"""
                s_lshr_b32 s4, s6, 2
                s_mul_i32 s4, s4, {self.a_pitch - 4096}
                s_add_u32 s4, s4, s7
                s_add_u32 s4, s4, s3
                v_add_u32 v{32 + k}, s4, v1
                """)
            rot_pieces(p, 8, 0, f"s_lshr_b32 s6, s{S_NT2}, 1", S_LD[0], emit)
        else:
            p("v_add_u32 v32, s3, v1")
            for i in range(1, 8): p(f"v_add_u32 v{32 + i}, {(i // 4) * self.a_pitch + (i % 4) * 1024}, v32")
        p(f"s_mov_b32 s{S_SO[0]}, {self.a_k0}")
    a_k0 = 0; b_k0 = 0
    def h_setup(self, p, c, first=False):
        p(f"""
        s_lshl_b32 s{S_LD[0]}, s{S_WM}, 13
        s_lshl_b32 s{S_LD[1]}, s{S_WM}, 12
        s_add_u32 s{S_LD[1]}, s{S_LD[1]}, 32768
        s_mov_b32 s{S_SO[1]}, {self.b_k0}
        """)
        self.h_setup_a(p, c)
        srd(p, S_B, ptr(self.bname), self.babytes)
        p(f"""
        v_lshrrev_b32 v{T0}, 3, v0
        v_and_b32 v{T0+1}, 7, v0
        v_and_b32 v{T0+2}, {2 if self.order == 'nat' else 6}, v{T0}
        v_xor_b32 v{T0+1}, v{T0+1}, v{T0+2}
        s_lshl_b32 s3, s{S_WM}, 5
        v_add_u32 v{T0}, s3, v{T0}
        v_lshlrev_b32 v{T0}, 11, v{T0}
        v_lshl_add_u32 v{T0}, v{T0+1}, 4, v{T0}
        s_lshl_b32 s4, s{S_NT2}, 7
        """)
        if self.rotated(c):
            p(f"v_add_u32 v{T0}, s4, v{T0}")
            def emit(k):
                p(f"s_lshl_b32 s4, s6, 14\nv_add_u32 v{40 + k}, s4, v{T0}")
                if self.order == 'nat': p(f"s_and_b32 s4, s6, 1\ns_lshl_b32 s4, s4, 6\nv_xor_b32 v{40 + k}, s4, v{40 + k}")
            rot_pieces(p, 4, 8, f"s_and_b32 s6, s{S_MT2}, 3", S_LD[1], emit)
        else:
            p(f"v_add_u32 v40, s4, v{T0}")
            if self.order == 'nat':
                p(f"v_xor_b32 v{T0}, 64, v40")
                p(f"v_add_u32 v41, {8 * 2048}, v{T0}\nv_add_u32 v42, {16 * 2048}, v40\nv_add_u32 v43, {24 * 2048}, v{T0}")
            else:
                for i in range(1, 4): p(f"v_add_u32 v{40 + i}, {8 * i * 2048}, v40")
    def g_setup_x(self, p, c):
        p(f"""
        s_lshl_b32 s3, s{S_WM}, 14
        s_add_u32 s3, s3, s{S_RD}
        v_add_u32 v32, s3, v1
        """)
    def g_setup(self, p, c):
        lane_fields(p, T0, T0 + 1, T0 + 2, T0 + 3)
        self.g_setup_x(p, c)
        if self.order == 'nat': p(f"v_lshl_add_u32 v{T0+4}, v{T0+1}, 3, v{T0+2}")
        elif self.order == 'perm32': p(f"v_lshl_add_u32 v{T0+4}, v{T0+1}, 2, v{T0+2}")
        else:
            p(f"""
            v_lshrrev_b32 v{T0+4}, 1, v{T0+1}
            v_lshl_add_u32 v{T0+4}, v{T0+4}, 4, v{T0+2}
            v_and_b32 v{T0+5}, 1, v{T0+1}
            v_lshl_add_u32 v{T0+4}, v{T0+5}, 2, v{T0+4}
            """)
        p(f"""
        v_lshlrev_b32 v{T0+4}, 7, v{T0+4}
        v_lshrrev_b32 v{T0+5}, 1, v{T0+2}
        v_and_b32 v{T0+6}, 1, v{T0+1}
        v_lshl_or_b32 v{T0+5}, v{T0+6}, 1, v{T0+5}
        s_lshl_b32 s3, s{S_WN}, 1
        v_xor_b32 v{T0+5}, s3, v{T0+5}
        v_lshl_add_u32 v{T0+4}, v{T0+5}, 5, v{T0+4}
        v_lshl_add_u32 v{T0+4}, v{T0+3}, 3, v{T0+4}
        s_add_u32 s3, s{S_RD}, 32768
        v_add_u32 v34, s3, v{T0+4}
        v_xor_b32 v35, 32, v34
        """)
        self.g_pre(p, c)
        self.g_zero(p)
    def g_pre(self, p, c): pass

def gelu_consts(p, b, has_og):
    rs, og, k1, k0, w, t = b + 1, b + 3, b + 2, b + 4, b + 6, b + 5
    p(f"""
    v_mul_f32 v{t}, v{rs}, v{rs}
    v_mul_f32 v{k0}, {hexf(GC0)}, v{rs}
    v_mul_f32 v{t}, v{t}, v{rs}
    v_mul_f32 v{k1}, {hexf(GC1)}, v{t}
    """)
    if has_og:
        p(f"""
        v_mul_f32 v{t}, v{og}, v{rs}
        v_rcp_f32 v{w}, v{t}
        """)
    else:
        p(f"v_rcp_f32 v{w}, v{rs}")
    p(f"v_min_f32 v{w}, {hexf(3e38)}, v{w}")

def gelu_block(p, items, tmp, pk=True):
    T = [tmp + 2 * i for i in range(len(items))]
    Z = list(zip(items, T))
    if pk:
        for (r, cs, b), t in Z: p(f"v_pk_fma_f32 {vr(r,2)}, {vr(cs,2)}, {vr(b,2)}, {vr(r,2)} op_sel_hi:[1,0,1] neg_lo:[1,0,0] neg_hi:[1,0,0]")
        for (r, cs, b), t in Z: p(f"v_pk_mul_f32 {vr(t,2)}, {vr(r,2)}, {vr(r,2)}")
        for (r, cs, b), t in Z: p(f"v_pk_fma_f32 {vr(t,2)}, {vr(t,2)}, {vr(b+2,2)}, {vr(b+4,2)} op_sel_hi:[1,0,0]")
        for (r, cs, b), t in Z: p(f"v_pk_mul_f32 {vr(t,2)}, {vr(t,2)}, {vr(r,2)}")
    else:
        for (r, cs, b), t in Z:
            for h in range(2): p(f"v_fma_f32 v{r+h}, -v{cs+h}, v{b}, v{r+h}")
        for (r, cs, b), t in Z:
            for h in range(2): p(f"v_mul_f32 v{t+h}, v{r+h}, v{r+h}")
        for (r, cs, b), t in Z:
            for h in range(2): p(f"v_fma_f32 v{t+h}, v{t+h}, v{b+2}, v{b+4}")
        for (r, cs, b), t in Z:
            for h in range(2): p(f"v_mul_f32 v{t+h}, v{t+h}, v{r+h}")
    for t in T:
        p(f"v_exp_f32 v{t}, v{t}"); p(f"v_exp_f32 v{t+1}, v{t+1}")
    for (r, cs, b), t in Z:
        if pk: p(f"v_pk_fma_f32 {vr(t,2)}, {vr(t,2)}, {vr(b+6,2)}, {vr(b+6,2)} op_sel_hi:[1,0,0]")
        else:
            for h in range(2): p(f"v_fma_f32 v{t+h}, v{t+h}, v{b+6}, v{b+6}")
    for t in T:
        p(f"v_rcp_f32 v{t}, v{t}"); p(f"v_rcp_f32 v{t+1}, v{t+1}")
    for (r, cs, b), t in Z:
        if pk: p(f"v_pk_mul_f32 {vr(r,2)}, {vr(r,2)}, {vr(t,2)}")
        else:
            for h in range(2): p(f"v_mul_f32 v{r+h}, v{r+h}, v{t+h}")

def read_tok_consts(p, base, vaddr, r16, has_og):
    p(f"""
    s_lshl_b32 s3, s{S_WM}, 8
    s_add_u32 s3, s3, {L_MU}
    v_lshl_add_u32 v{vaddr}, v{r16}, 2, s3
    """)
    for m in range(4):
        p(f"ds_read_b32 v{base + 8 * m}, v{vaddr} offset:{64 * m}")
        p(f"ds_read_b32 v{base + 8 * m + 1}, v{vaddr} offset:{512 + 64 * m}")
        if has_og: p(f"ds_read_b32 v{base + 8 * m + 3}, v{vaddr} offset:{1024 + 64 * m}")

class W1(N64):
    nsteps = 8; order = 'nat'; bname = 'w1'; stepA = 256
    addr_regs = [32, 34, 35, 33]
    pubkind = F_W1
    h_steps = (0, 1)
    xbar = True
    pubstep = 2
    def aflag(self, c): return c.opt.get('ldflag', '')
    def xaddr(self, kk, m): return (32 + kk % 2, (m // 2) * 8192 + (m % 2) * 2048 + (kk // 2) * 4096)
    def h_setup_a(self, p, c):
        srd(p, S_A, ptr('x'), 2048 * 2048)
        if self.rotated(c):
            h_xrows(p, [T0 + 4], lambda i: 0, S_MT2)
            def emit(k):
                p(f"""
                s_and_b32 s4, s6, 3
                s_lshl_b32 s4, s4, 14
                s_lshr_b32 s5, s6, 2
                s_lshl_b32 s5, s5, 7
                s_add_u32 s4, s4, s5
                v_add_u32 v{32 + k}, s4, v{T0+4}
                s_and_b32 s4, s6, 1
                s_lshl_b32 s4, s4, 6
                v_xor_b32 v{32 + k}, s4, v{32 + k}
                """)
            rot_pieces(p, 8, 0, f"s_lshr_b32 s6, s{S_NT2}, 1", S_LD[0], emit)
        else:
            h_xrows(p, list(range(32, 40)), lambda i: (i // 4) * 128, S_MT2)
        p(f"s_mov_b32 s{S_SO[0]}, 0")
    def g_setup_x(self, p, c):
        p(f"""
        v_lshrrev_b32 v{T0+4}, 1, v{T0}
        v_xor_b32 v{T0+4}, v{T0+4}, v{T0+1}
        v_lshlrev_b32 v{T0+4}, 4, v{T0+4}
        v_lshl_or_b32 v{T0+4}, v{T0}, 7, v{T0+4}
        s_lshl_b32 s3, s{S_WM}, 14
        s_add_u32 s3, s3, s{S_RD}
        v_add_u32 v32, s3, v{T0+4}
        v_xor_b32 v33, 64, v32
        """)
    lds_consts = True
    def extra_mfma(self, s, n): return [mfma16(112 + 4 * n, self.wf(s, n), 120)]
    def g_pre(self, p, c):
        for i in range(8): p(f"v_mov_b32 v{112 + i}, 0")
        for i in range(4): p(f"v_mov_b32 v{120 + i}, 0x3f803f80")
    def h_poll(self, c, t): return poll_flags(c, F_ST, S_MT2) if t == 0 else None
    def h_post(self, p, c, t):
        if t == (6 if self.nxt.late else 7): p("ds_write_b32 v58, v59\ns_waitcnt lgkmcnt(0)")
    def h_extra(self, p, c, t):
        W = f"s[{S_WS}:{S_WS+3}]"
        ho = c.opt.get('hoflag', ''); st = c.opt.get('stflag', '')
        if t == 1:
            p(f"""
            v_and_b32 v58, 31, v0
            v_lshrrev_b32 v59, 5, v0
            v_lshlrev_b32 v58, 2, v58
            v_lshl_add_u32 v60, v59, 13, v58
            v_lshl_add_u32 v58, v59, 9, v58
            s_lshl_b32 s3, s{S_MT2}, 9
            s_lshl_b32 s4, s{S_WM}, 7
            s_add_u32 s3, s3, s4
            s_add_u32 s3, s3, {WS_ST1}
            s_add_u32 s4, s4, {L_MU}
            v_add_u32 v58, s4, v58
            buffer_load_dword v59, v60, {W}, s3 offen {ho}
            """)
            return 1
        return 0
    def g_epi(self, p, c):
        st = c.opt.get('stflag', '')
        W = f"s[{S_WS}:{S_WS+3}]"
        lane_fields(p, T0, T0 + 1)
        p("s_waitcnt lgkmcnt(0)")
        if self.lds_consts: read_tok_consts(p, 144, 36, T0, False)
        for m in range(4): gelu_consts(p, 144 + 8 * m, False)
        p(f"""
        s_lshr_b32 s5, s{S_NT2}, 2
        s_lshr_b32 s6, s5, 1
        s_add_u32 s6, s6, 1
        s_sub_u32 s7, 0, s6
        s_bitcmp1_b32 s5, 0
        s_cselect_b32 s6, s7, s6
        s_lshl_b32 s3, s{S_MT2}, 7
        s_lshl_b32 s4, s{S_WM}, 6
        s_add_u32 s3, s3, s4
        s_add_u32 s6, s6, s3
        s_lshl_b32 s3, s{S_NT2}, 1
        s_add_u32 s3, s3, s{S_WN}
        s_lshl_b32 s42, s3, 10
        s_add_u32 s42, s42, {WS_HS}
        """)
        for mp in range(2):
            items = []
            for m in (2 * mp, 2 * mp + 1):
                for n in range(2):
                    for h in range(2): items.append((self.acc(m, n) + 2 * h, 112 + 4 * n + 2 * h, 144 + 8 * m))
            gelu_block(p, items, 56, c.opt.get('pk', 1))
            for m in (2 * mp, 2 * mp + 1):
                a, b = self.acc(m, 0), self.acc(m, 1)
                t = 72 + 4 * m
                p(f"""
                v_add_u32 v{T0+2}, s6, v{T0}
                v_add_u32 v{T0+2}, {16 * m}, v{T0+2}
                v_cmp_gt_u32 vcc, 2048, v{T0+2}
                v_and_b32 v{T0+2}, 2047, v{T0+2}
                v_lshrrev_b32 v{T0+3}, 4, v{T0+2}
                v_and_b32 v{T0+2}, 15, v{T0+2}
                v_lshl_add_u32 v{T0+2}, v{T0+1}, 4, v{T0+2}
                v_lshlrev_b32 v{T0+2}, 4, v{T0+2}
                v_lshl_add_u32 v{36 + m}, v{T0+3}, 15, v{T0+2}
                """)
                for i, r in enumerate((a, a + 2, b, b + 2)): p(f"v_cvt_pk_bf16_f32 v{t + i}, v{r}, v{r + 1}")
                for i in range(4): p(f"v_cndmask_b32 v{t + i}, 0, v{t + i}, vcc")
                p(f"buffer_store_dwordx4 {vr(t, 4)}, v{36 + m}, {W}, s42 offen {st}")

class W2(N64):
    nsteps = 8; order = 'perm32'; bname = 'w2'; a_base = WS_HS
    pubkind = F_W2
    def poll(self, c): return poll_flags(c, F_W1, S_MT2, halo=True)
    def h_tail(self, c):
        a = Atoms()
        h_xrows(a, [44, 45, 46, 47], lambda i: 0, S_MT2)
        srd(a, S_AUX, ptr('x'), 2048 * 2048)
        a(f"""
        s_lshl_b32 s5, s{S_NT2}, 7
        s_lshl_b32 s4, s{S_WM}, 12
        s_add_u32 s4, s4, s{S_DMA}
        s_add_u32 m0, s4, 32768
        """)
        D = [f"buffer_load_dwordx4 v{44 + i}, s[{S_AUX}:{S_AUX+3}], s5 offen lds" + ("\ns_add_u32 m0, m0, 1024" if i < 3 else "") for i in range(4)]
        D[0] = "\n".join(a.L) + "\n" + D[0]
        return D
    def g_epi(self, p, c):
        st = c.opt.get('stflag', '')
        W = f"s[{S_WS}:{S_WS+3}]"
        p(f"""
        s_waitcnt lgkmcnt(0)
        s_lshl_b32 s3, s{S_NT2}, 1
        s_add_u32 s3, s3, s{S_WN}
        s_lshl_b32 s4, s{S_MT2}, 3
        s_lshl_b32 s5, s{S_WM}, 2
        s_add_u32 s4, s4, s5
        s_lshl_b32 s42, s4, 15
        s_lshl_b32 s5, s3, 10
        s_add_u32 s42, s42, s5
        s_add_u32 s42, s42, {WS_X1}
        s_lshl_b32 s43, s3, 14
        s_lshl_b32 s5, s4, 7
        s_add_u32 s43, s43, s5
        s_add_u32 s43, s43, {WS_P2}
        """)
        lane_fields(p, T0, T0 + 1)
        p(f"""
        v_lshrrev_b32 v{T0+2}, 1, v{T0}
        v_lshrrev_b32 v{T0+3}, 1, v{T0+1}
        v_xor_b32 v{T0+2}, v{T0+2}, v{T0+3}
        s_lshl_b32 s3, s{S_WN}, 2
        v_xor_b32 v{T0+2}, s3, v{T0+2}
        v_lshlrev_b32 v{T0+2}, 4, v{T0+2}
        v_lshl_or_b32 v{T0+2}, v{T0}, 7, v{T0+2}
        v_and_b32 v{T0+3}, 1, v{T0+1}
        v_lshl_or_b32 v{T0+2}, v{T0+3}, 3, v{T0+2}
        s_lshl_b32 s3, s{S_WM}, 13
        s_add_u32 s3, s3, s{S_RD}
        v_add_u32 v37, s3, v{T0+2}
        v_xor_b32 v38, 32, v37
        """)
        for m in range(4):
            for n in range(2): p(f"ds_read_b64 {vr(160 + 4 * m + 2 * n, 2)}, v{37 + n} offset:{32768 + 2048 * m}")
        for m in range(4):
            for n in range(2):
                a = self.acc(m, n)
                for d in range(2):
                    x = 160 + 4 * m + 2 * n + d
                    p(f"v_lshlrev_b32 v48, 16, v{x}\nv_and_b32 v49, 0xffff0000, v{x}")
                    p(f"v_pk_add_f32 {vr(a + 2 * d, 2)}, {vr(a + 2 * d, 2)}, v[48:49]")
            a, b = self.acc(m, 0), self.acc(m, 1)
            t = 72 + 4 * m
            for i, r in enumerate((a, a + 2, b, b + 2)): p(f"v_cvt_pk_bf16_f32 v{t + i}, v{r}, v{r + 1}")
            p(f"buffer_store_dwordx4 {vr(t, 4)}, v1, {W}, s42 offen {st}")
            if m < 3: p(f"s_add_u32 s42, s42, 32768")
            p(f"""
            v_pk_add_f32 v[50:51], {vr(a, 2)}, {vr(a + 2, 2)}
            v_pk_mul_f32 v[52:53], {vr(a, 2)}, {vr(a, 2)}
            v_pk_add_f32 v[50:51], v[50:51], {vr(b, 2)}
            v_pk_fma_f32 v[52:53], {vr(a + 2, 2)}, {vr(a + 2, 2)}, v[52:53]
            v_pk_add_f32 v[50:51], v[50:51], {vr(b + 2, 2)}
            v_pk_fma_f32 v[52:53], {vr(b, 2)}, {vr(b, 2)}, v[52:53]
            v_pk_fma_f32 v[52:53], {vr(b + 2, 2)}, {vr(b + 2, 2)}, v[52:53]
            v_add_f32 v{56 + 2 * m}, v50, v51
            v_add_f32 v{57 + 2 * m}, v52, v53
            """)
        for i in range(4): p(f"v_permlane32_swap_b32 v{56 + i}, v{60 + i}")
        for i in range(4): p(f"v_add_f32 v{56 + i}, v{56 + i}, v{60 + i}")
        for i in range(2): p(f"v_permlane16_swap_b32 v{56 + i}, v{58 + i}")
        for i in range(2): p(f"v_add_f32 v{56 + i}, v{56 + i}, v{58 + i}")
        p(f"""
        v_lshlrev_b32 v36, 3, v0
        buffer_store_dwordx2 v[56:57], v36, {W}, s43 offen {st}
        """)

AF_PITCH = 144 * 1024
class W3(Gemm):
    NT = 7; KS = 2; nsteps = 16; nA = 4; nB = 8
    stepA = 2048; stepB = 64 * 7168
    addr_regs = [32, 33, 34, 35, 36, 37, 38, 39]
    pubkind = F_W3
    zero_first = True
    h_steps = tuple(range(1, 14))
    def poll(self, c): return poll_flags(c, F_W2, S_MT3)
    def g_sites(self, c):
        if not c.opt.get('persist'): return {}
        return {7: lambda p: publish(p, c, F_CS, True)}
    def h_poll(self, c, t): return poll_flags(c, F_CS, S_NT3) if t == 10 else None
    def h_post(self, p, c, t):
        if t == 15:
            p("""
            ds_write_b32 v56, v160
            ds_write_b32 v57, v64
            ds_write_b32 v57, v65 offset:512
            s_mov_b32 exec_hi, 0
            ds_write_b32 v58, v96 offset:1024
            s_mov_b32 exec_hi, -1
            s_waitcnt lgkmcnt(0)
            """)
    def xaddr(self, kk, m): return (32, m * 2048 + kk * 1024)
    def waddr(self, kk, n, j): return (33 + n, (32 * kk + 16 * j) * 512)
    def h_setup(self, p, c, first=False):
        srd(p, S_A, ptr('ws'), 4 * MB, WS_X1)
        srd(p, S_B, ptr('w3'), 1024 * 7168)
        p(f"""
        s_lshl_b32 s3, s{S_MT3}, 3
        s_lshl_b32 s4, s{S_WM}, 1
        s_add_u32 s3, s3, s4
        s_lshl_b32 s3, s3, 15
        v_add_u32 v32, s3, v1
        v_add_u32 v33, 1024, v32
        v_add_u32 v34, 32768, v32
        v_add_u32 v35, {32768 + 1024}, v32
        s_mul_i32 s4, s{S_NT3}, 448
        s_and_b32 s4, s4, {0xffffff80}
        s_mul_i32 s3, s{S_WM}, {16 * 7168}
        s_add_u32 s4, s4, s3
        v_lshrrev_b32 v{T0}, 5, v0
        v_and_b32 v{T0+1}, 31, v0
        v_mul_u32_u24 v{T0+2}, 7168, v{T0}
        v_add_u32 v{T0+2}, s4, v{T0+2}
        s_bitcmp1_b32 s{S_NT3}, 0
        s_cselect_b32 s5, {0 if c.opt.get('w3mask', 1) else 9}, {7 if c.opt.get('w3mask', 1) else 9}
        v_mov_b32 v{T0+5}, 0x40000000
        v_lshlrev_b32 v{T0}, 1, v{T0}
        v_xor_b32 v{T0+1}, v{T0+1}, v{T0}
        """)
        for i in range(4):
            p(f"""
            v_xor_b32 v{T0+3}, {4 * i}, v{T0+1}
            v_lshrrev_b32 v{T0+4}, 2, v{T0+3}
            v_lshl_add_u32 v{T0+3}, v{T0+3}, 4, v{T0+2}
            v_cmp_eq_u32 vcc, s5, v{T0+4}
            v_cndmask_b32 v{T0+3}, v{T0+3}, v{T0+5}, vcc
            v_add_u32 v{36 + i}, {2 * i * 7168}, v{T0+3}
            v_add_u32 v{40 + i}, {(2 * i + 8) * 7168}, v{T0+3}
            """)
        p(f"""
        s_lshl_b32 s{S_LD[0]}, s{S_WM}, 12
        s_lshl_b32 s{S_LD[1]}, s{S_WM}, 13
        s_add_u32 s{S_LD[1]}, s{S_LD[1]}, 16384
        s_mov_b32 s{S_SO[0]}, 0
        s_mov_b32 s{S_SO[1]}, 0
        """)
    def g_setup(self, p, c):
        lane_fields(p, None, T0 + 1, T0 + 2, T0 + 3)
        p(f"""
        s_lshl_b32 s3, s{S_WM}, 13
        s_add_u32 s3, s3, s{S_RD}
        v_add_u32 v32, s3, v1
        v_lshl_add_u32 v{T0+4}, v{T0+1}, 2, v{T0+2}
        v_and_b32 v{T0+5}, 7, v{T0+4}
        v_lshlrev_b32 v{T0+4}, 9, v{T0+4}
        v_lshl_add_u32 v{T0+4}, v{T0+3}, 3, v{T0+4}
        s_add_u32 s3, s{S_RD}, 16384
        v_add_u32 v{T0+4}, s3, v{T0+4}
        s_and_b32 s3, s{S_NT3}, 1
        s_lshl_b32 s3, s3, 1
        s_mul_i32 s4, s{S_WN}, 7
        s_add_u32 s3, s3, s4
        """)
        for n in range(7):
            p(f"""
            v_xor_b32 v{T0+6}, s3, v{T0+5}
            v_lshl_add_u32 v{33 + n}, v{T0+6}, 5, v{T0+4}
            s_add_u32 s3, s3, 1
            """)
        self.g_zero(p)
    def h_late(self, a, c):
        a.atom(f"""
        s_mul_i32 s53, s{S_NT3}, 448
        s_and_b32 s53, s53, {0xffffff80}
        s_lshl_b32 s4, s{S_WM}, 7
        s_add_u32 s53, s53, s4
        s_lshl_b32 s4, s{S_MT3}, 6
        v_lshrrev_b32 v{T0}, 3, v0
        v_add_u32 v{T0}, s4, v{T0}
        v_mul_u32_u24 v{T0}, 7168, v{T0}
        v_and_b32 v{T0+1}, 7, v0
        v_lshl_add_u32 v{T0}, v{T0+1}, 4, v{T0}
        """)
        for i in range(8):
            a.atom(f"buffer_load_dwordx4 {vr(160 + 4 * i, 4)}, v{T0}, s[{S_B}:{S_B+3}], s53 offen\ns_add_u32 s53, s53, {8 * 7168}")
        return 8
    def h_extra(self, p, c, t):
        W = f"s[{S_WS}:{S_WS+3}]"
        ho = c.opt.get('hoflag', ''); st = c.opt.get('stflag', '')
        n = 0
        if t == 1:
            p(f"""
            v_and_b32 v60, 15, v0
            v_lshrrev_b32 v61, 4, v0
            v_lshlrev_b32 v60, 4, v60
            v_lshl_add_u32 v62, v61, 10, v60
            v_lshl_add_u32 v63, v61, 17, v60
            v_lshlrev_b32 v60, 2, v0
            s_lshl_b32 s4, s{S_WM}, 8
            s_lshl_b32 s53, s{S_NT3}, 14
            s_add_u32 s53, s53, s4
            s_add_u32 s53, s53, {WS_CSP}
            s_lshl_b32 s49, s{S_MT3}, 10
            s_add_u32 s50, s49, s4
            s_add_u32 s49, s49, s53
            s_lshr_b32 s3, s50, 1
            s_add_u32 s3, s3, {WS_G + 8192}
            s_add_u32 s50, s50, {WS_P2}
            buffer_load_dword v96, v60, {W}, s3 offen {ho}
            """)
            n += 1
        if 1 <= t <= 8:
            p(f"buffer_load_dwordx4 {vr(64 + 4 * (t - 1), 4)}, v63, {W}, s50 offen {ho}\ns_add_u32 s50, s50, 16384")
            n += 1
        if t == 5:
            p(f"buffer_store_dwordx2 v[48:49], v56, {W}, s49 offen {st}")
            n += 1
        if t == 11:
            for i in range(4):
                p(f"buffer_load_dwordx4 {vr(160 + 4 * i, 4)}, v62, {W}, s53 offen {ho}\ns_add_u32 s53, s53, 4096")
            n += 4
        return n
    def h_mix(self, p, c, t):
        if t == 1:
            for i in range(8): p(f"v_mov_b32 v{48 + i}, 0")
        if 1 <= t <= 4:
            for i in (2 * t - 2, 2 * t - 1):
                for d in range(4):
                    x = 160 + 4 * i + d
                    p(f"""
                    v_lshlrev_b32 v56, 16, v{x}
                    v_and_b32 v57, 0xffff0000, v{x}
                    v_add_f32 v{48 + 2 * d}, v{48 + 2 * d}, v56
                    v_add_f32 v{49 + 2 * d}, v{49 + 2 * d}, v57
                    """)
        if t == 5:
            for i in range(4): p(f"v_permlane32_swap_b32 v{48 + i}, v{52 + i}")
            for i in range(4): p(f"v_add_f32 v{48 + i}, v{48 + i}, v{52 + i}")
            for i in range(2): p(f"v_permlane16_swap_b32 v{48 + i}, v{50 + i}")
            for i in range(2): p(f"v_add_f32 v{48 + i}, v{48 + i}, v{50 + i}")
            for i in range(2): p(f"v_add_f32_dpp v{48 + i}, v{48 + i}, v{48 + i} row_ror:8 row_mask:0xf bank_mask:0xf")
            p(f"""
            v_and_b32 v56, 7, v0
            v_lshrrev_b32 v57, 4, v0
            v_lshlrev_b32 v56, 5, v56
            v_lshl_add_u32 v56, v57, 3, v56
            """)
        if t == 10:
            for st_ in (4, 2, 1):
                for i in range(st_):
                    for d in range(4): p(f"v_add_f32 v{64 + 4 * i + d}, v{64 + 4 * i + d}, v{64 + 4 * (i + st_) + d}")
        if t == 11:
            p(f"""
            v_permlane32_swap_b32 v64, v66
            v_permlane32_swap_b32 v65, v67
            v_add_f32 v64, v64, v66
            v_add_f32 v65, v65, v67
            v_mov_b32 v66, v64
            v_mov_b32 v67, v65
            v_permlane16_swap_b32 v64, v66
            v_permlane16_swap_b32 v65, v67
            v_add_f32 v64, v64, v66
            v_add_f32 v65, v65, v67
            v_mul_f32 v64, {hexf(1.0 / 1024)}, v64
            v_mul_f32 v65, {hexf(1.0 / 1024)}, v65
            v_fma_f32 v65, -v64, v64, v65
            v_max_f32 v65, 0, v65
            v_add_f32 v65, {hexf(1e-5)}, v65
            v_rsq_f32 v65, v65
            """)
        if t == 12:
            p(f"""
            v_and_b32 v57, 15, v0
            v_lshrrev_b32 v58, 5, v0
            v_lshl_add_u32 v57, v57, 1, v58
            s_lshl_b32 s3, s{S_WM}, 7
            v_lshl_add_u32 v57, v57, 2, s3
            v_lshl_add_u32 v58, v0, 2, s3
            v_add_u32 v57, {L_MU}, v57
            v_add_u32 v58, {L_MU}, v58
            """)
        if t == 13:
            for st_ in (2, 1):
                for i in range(st_):
                    for d in range(4): p(f"v_add_f32 v{160 + 4 * i + d}, v{160 + 4 * i + d}, v{160 + 4 * (i + st_) + d}")
            p(f"""
            v_permlane32_swap_b32 v160, v162
            v_permlane32_swap_b32 v161, v163
            v_add_f32 v160, v160, v162
            v_add_f32 v161, v161, v163
            v_permlane16_swap_b32 v160, v161
            v_add_f32 v160, v160, v161
            v_and_b32 v56, 15, v0
            v_lshrrev_b32 v59, 4, v0
            v_lshl_add_u32 v56, v56, 2, v59
            s_lshl_b32 s3, s{S_WM}, 8
            v_lshl_add_u32 v56, v56, 2, s3
            v_add_u32 v56, {L_CS}, v56
            """)
    def g_epi(self, p, c):
        st = c.opt.get('stflag', '')
        W = f"s[{S_WS}:{S_WS+3}]"
        lane_fields(p, 40, 41)
        p(f"""
        s_waitcnt lgkmcnt(0)
        s_mul_i32 s3, s{S_WN}, 448
        s_and_b32 s4, s{S_NT3}, 1
        s_lshl_b32 s4, s4, 7
        s_add_u32 s3, s3, s4
        s_add_u32 s3, s3, {L_CS}
        v_lshl_add_u32 v36, v41, 4, s3
        """)
        read_tok_consts(p, 76, 37, 40, True)
        for n in range(7): p(f"ds_read_b128 {vr(48 + 4 * n, 4)}, v36 offset:{64 * n}")
        for m in range(4): gelu_consts(p, 76 + 8 * m, True)
        p(f"""
        v_lshrrev_b32 v38, 5, v0
        v_mul_u32_u24 v38, {AF_PITCH}, v38
        v_and_b32 v39, 31, v0
        v_lshl_add_u32 v38, v39, 4, v38
        s_lshl_b32 s3, s{S_MT3}, 3
        s_lshl_b32 s4, s{S_WM}, 2
        s_add_u32 s3, s3, s4
        s_mul_i32 s42, s3, {AF_PITCH}
        s_mul_i32 s3, s{S_NT3}, 14
        s_mul_i32 s4, s{S_WN}, 7
        s_add_u32 s3, s3, s4
        s_lshl_b32 s3, s3, 9
        s_add_u32 s42, s42, s3
        s_add_u32 s42, s42, {WS_AF}
        s_add_u32 s43, s42, {2 * AF_PITCH}
        """)
        for n in range(7):
            items = []
            for m in range(4):
                for h in range(2): items.append((self.acc(m, n) + 2 * h, 48 + 4 * n + 2 * h, 76 + 8 * m))
            gelu_block(p, items, 108 + 16 * (n % 2), c.opt.get('pk', 1))
            for u in range(2):
                a = self.acc(2 * u, n)
                for i in range(4): p(f"v_cvt_pk_bf16_f32 v{a + i}, v{a + 2 * i}, v{a + 2 * i + 1}")
            for u in range(2):
                a = self.acc(2 * u, n)
                p(f"v_permlane32_swap_b32 v{a}, v{a + 2}")
                p(f"v_permlane32_swap_b32 v{a + 1}, v{a + 3}")
            for u in range(2):
                a = self.acc(2 * u, n)
                p(f"buffer_store_dwordx4 {vr(a, 4)}, v38, {W}, s{42 + u} offen offset:{n * 512} {st}")

WS_XCH = 48 * MB
def xch_off(c, nt_code, wave, dst):
    if not c.opt.get('xreuse', 0):
        return f"""
        s_lshl_b32 s3, s{S_MT2}, 4
        {nt_code}
        s_add_u32 s3, s3, s4
        s_lshl_b32 s3, s3, 2
        s_add_u32 s3, s3, s{wave}
        s_lshl_b32 s3, s3, 13
        s_add_u32 s{dst}, s3, {WS_XCH}
        """
    return f"""
    {nt_code}
    s_lshl_b32 s4, s4, 1
    s_and_b32 s3, s{wave}, 1
    s_add_u32 s4, s4, s3
    s_lshl_b32 s3, s{S_MT2}, 5
    s_add_u32 s3, s3, s4
    s_lshl_b32 s3, s3, 13
    s_add_u32 s3, s3, {WS_HS}
    s_lshl_b32 s4, s4, 4
    s_add_u32 s4, s4, s{S_MT2}
    s_lshl_b32 s4, s4, 13
    s_cmp_lt_u32 s{wave}, 2
    s_cselect_b32 s{dst}, s3, s4
    """

class W4(Gemm):
    NT = 4; KS = 3; nA = 6; nB = 6
    h_steps = (15, 16)
    def __init__(self, xw=2): self.xw = xw; self.nsteps = 18 + xw
    def __call__(self): return self
    stepA = 3072; stepB = 96 * 2048
    addr_regs = [32, 33, 34, 35, 36]
    zero_first = True
    pubkind = F_XCH
    pubstep = 4
    chain = True; pubv = 28
    def poll(self, c): return poll_flags(c, F_W3, S_MT2)
    def h_poll(self, c, t): return poll_flags(c, F_ATT, S_MT2, shift=1, nprod=32) if t == 15 else None
    def h_pre(self, p, c, t):
        if t == 16:
            if not self.xw: return
            srd(p, S_B, ptr('wo'), 1024 * 2048)
            p(f"""
            s_and_b32 s3, s{S_NT2}, 1
            s_mul_i32 s{S_SO[0]}, s3, {3 * self.xw * 1024}
            s_add_u32 s{S_SO[0]}, s{S_SO[0]}, {112 * 1024}
            s_mul_i32 s{S_SO[1]}, s3, {3 * self.xw * 32 * 2048}
            """)
    def xaddr(self, kk, m): return (32, m * 3072 + kk * 1024)
    def waddr(self, kk, n, j): return (33 + n, (32 * kk + 8 * j) * 256)
    def h_setup(self, p, c, first=False):
        srd(p, S_A, ptr('ws'), 18 * MB, WS_AF)
        srd(p, S_B, ptr('w4'), 3584 * 2048)
        p(f"""
        s_lshl_b32 s3, s{S_MT2}, 3
        s_lshl_b32 s4, s{S_WM}, 1
        s_add_u32 s3, s3, s4
        s_mul_i32 s3, s3, {AF_PITCH}
        s_mul_i32 s{S_LD[0]}, s{S_WM}, 6144
        s_add_u32 s{S_LD[1]}, s{S_LD[0]}, 24576
        """)
        if self.rotated(c):
            def emit(k):
                p(f"""
                s_cmp_ge_u32 s6, 3
                s_cselect_b32 s4, {AF_PITCH - 3072}, 0
                s_add_u32 s4, s4, s7
                s_add_u32 s4, s4, s3
                v_add_u32 v{32 + k}, s4, v1
                """)
            rot_pieces(p, 6, 0, f"s_lshr_b32 s6, s{S_NT2}, 1\ns_mul_i32 s6, s6, 3\ns_lshr_b32 s6, s6, 2", S_LD[0], emit)
        else:
            p("v_add_u32 v32, s3, v1")
            for i in range(1, 6): p(f"v_add_u32 v{32 + i}, {(i // 3) * AF_PITCH + (i % 3) * 1024}, v32")
        p(f"""
        v_lshrrev_b32 v{T0}, 4, v0
        v_and_b32 v{T0+1}, 15, v0
        v_lshlrev_b32 v{T0+2}, 1, v{T0}
        v_xor_b32 v{T0+1}, v{T0+1}, v{T0+2}
        s_mul_i32 s3, s{S_WM}, 24
        v_add_u32 v{T0}, s3, v{T0}
        v_lshlrev_b32 v{T0}, 11, v{T0}
        v_lshl_add_u32 v{T0}, v{T0+1}, 4, v{T0}
        s_lshr_b32 s4, s{S_NT2}, 1
        s_lshl_b32 s4, s4, 8
        """)
        if self.rotated(c):
            p(f"v_add_u32 v{T0}, s4, v{T0}")
            def emit(k):
                p(f"s_lshl_b32 s4, s6, 13\nv_add_u32 v{38 + k}, s4, v{T0}\ns_and_b32 s4, s6, 1\ns_lshl_b32 s4, s4, 7\nv_xor_b32 v{38 + k}, s4, v{38 + k}")
            rot_pieces(p, 6, 6, f"s_and_b32 s6, s{S_MT2}, 3\ns_mul_i32 s6, s6, 3\ns_lshr_b32 s6, s6, 1", S_LD[1], emit)
        else:
            p(f"v_add_u32 v38, s4, v{T0}\nv_xor_b32 v{T0}, 128, v38")
            for i in range(1, 6): p(f"v_add_u32 v{38 + i}, {4 * i * 2048}, v{38 if i % 2 == 0 else T0}")
        p(f"""
        s_and_b32 s3, s{S_NT2}, 1
        s_mul_i32 s{S_SO[0]}, s3, {54 * 1024}
        s_mul_i32 s{S_SO[1]}, s3, {54 * 32 * 2048}
        """)
        self.coop = c.opt.get('coop4', 0)
        if self.coop or c.opt.get('scoop4'):
            p(f"""
            s_lshr_b32 s3, s{ptr('w4')}, 7
            s_sub_u32 s3, 3, s3
            s_and_b32 s3, s3, 7
            s_lshr_b32 s4, s{S_NT2}, 1
            s_lshr_b32 s5, s3, 1
            s_sub_u32 s5, s4, s5
            s_and_b32 s5, s5, 3
            s_lshr_b32 s4, s4, 2
            s_lshl_b32 s4, s4, 10
            s_lshl_b32 s3, s3, 7
            s_add_u32 s4, s4, s3
            s_sub_u32 s6, s5, 1
            s_lshl_b32 s6, s6, 2
            s_and_b32 s3, s{S_MT2}, 3
            s_add_u32 s6, s6, s3
            s_lshl_b32 s6, s6, 2
            s_add_u32 s6, s6, s{S_WM}
            s_lshl_b32 s6, s6, 12
            s_add_u32 s4, s4, s6
            s_add_u32 s4, s4, {c.opt.get('coopa', 1) * self.stepB}
            s_cmp_eq_u32 s5, 0
            s_cselect_b32 s3, 0, 16
            s_cselect_b32 s99, 0x40000000, s4
            """)
        if self.coop:
            p(f"""
            v_lshrrev_b32 v{T0}, 3, v0
            v_lshlrev_b32 v{T0}, 11, v{T0}
            v_and_b32 v{T0+1}, 7, v0
            v_lshl_add_u32 v{T0}, v{T0+1}, 4, v{T0}
            v_add_u32 v{T0}, s4, v{T0}
            v_mov_b32 v{T0+1}, 0x40000000
            v_cmp_gt_u32 vcc, s3, v0
            v_cndmask_b32 v44, v{T0+1}, v{T0}, vcc
            """)
    def h_every(self, p, c, t):
        if not c.opt.get('scoop4') or self.in_host: return
        if t is None or t <= self.nsteps - 4:
            p(f"s_add_u32 s3, s99, s{S_SO[1]}")
            if c.opt['scoop4'] == 2: p(f"s_sub_u32 s3, s3, {self.stepB}")
            p(f"s_sub_u32 s4, s{S_B+2}, 4096\ns_min_u32 s3, s3, s4")
            for o in (0, 64, 2048, 2112):
                p.I.append(Inst("s_nop 0")); p.I[-1].text = f"s_buffer_load_dword s98, s[{S_B}:{S_B+3}], s3 offset:{hex(o)}"
    def w_l2(self, p, c):
        s0, ns = c.opt.get('l2w4', (0, 0))
        if not ns: return
        p(f"""
        s_and_b32 s3, s{S_MT2}, 3
        s_lshl_b32 s3, s3, 2
        s_add_u32 s3, s3, s{S_WM}
        s_mul_i32 s3, s3, {6 * ns * 2048}
        s_and_b32 s4, s{S_NT2}, 1
        s_mul_i32 s4, s4, {54 * 32 * 2048}
        s_add_u32 s3, s3, s4
        s_lshr_b32 s4, s{S_NT2}, 1
        s_lshl_b32 s4, s4, 8
        s_add_u32 s3, s3, s4
        s_add_u32 s3, s3, {s0 * self.stepB}
        v_lshrrev_b32 v{T0}, 4, v0
        v_and_b32 v{T0+1}, 15, v0
        v_lshlrev_b32 v{T0}, 11, v{T0}
        v_lshl_add_u32 v{T0}, v{T0+1}, 4, v{T0}
        s_mov_b32 m0, {L_DUMMY}
        """)
        for i in range(6 * ns // 4): p(f"buffer_load_dwordx4 v{T0}, s[{S_B}:{S_B+3}], s3 offen lds\ns_add_u32 s3, s3, {4 * 2048}")
    @property
    def nd(self): return 13 if self.coop else 12
    def dma_extra(self, c):
        return [f"s_mov_b32 m0, {L_DUMMY}\nbuffer_load_dwordx4 v44, s[{S_B}:{S_B+3}], s{S_SO[1]} offen lds"] if self.coop else []
    def rotated(self, c): return c.opt.get('rot', 0)
    def g_setup(self, p, c):
        lane_fields(p, None, T0 + 1, T0 + 2, T0 + 3)
        p(f"""
        s_mul_i32 s3, s{S_WM}, 12288
        s_add_u32 s3, s3, s{S_RD}
        v_add_u32 v32, s3, v1
        v_and_b32 v{T0+5}, 1, v{T0+1}
        v_lshl_add_u32 v{T0+5}, v{T0+5}, 2, v{T0+2}
        v_lshrrev_b32 v{T0+4}, 1, v{T0+1}
        v_lshl_add_u32 v{T0+4}, v{T0+4}, 4, v{T0+5}
        v_lshlrev_b32 v{T0+4}, 8, v{T0+4}
        v_lshl_add_u32 v{T0+4}, v{T0+3}, 3, v{T0+4}
        s_add_u32 s3, s{S_RD}, 24576
        v_add_u32 v{T0+4}, s3, v{T0+4}
        s_and_b32 s3, s{S_NT2}, 1
        s_lshl_b32 s3, s3, 2
        s_lshl_b32 s4, s{S_WN}, 1
        s_add_u32 s3, s3, s4
        v_xor_b32 v{T0+6}, s3, v{T0+5}
        v_lshl_add_u32 v35, v{T0+6}, 5, v{T0+4}
        v_xor_b32 v36, 32, v35
        v_xor_b32 v33, 128, v35
        v_xor_b32 v34, 160, v35
        """)
    def g_epi(self, p, c):
        st = c.opt.get('stflag', '')
        p(xch_off(c, f"s_mov_b32 s4, s{S_NT2}", S_WID, 3))
        p("s_add_u32 s4, s3, 4096")
        if c.opt.get('xbf'):
            for m in range(4):
                a, b = self.acc(m, 0), self.acc(m, 1)
                for i, r in enumerate((a, a + 2, b, b + 2)): p(f"v_cvt_pk_bf16_f32 v{144 + 4 * m + i}, v{r}, v{r + 1}")
                if self.pubkind is None:
                    for i in range(4): p(f"v_min_u32 v{144 + 4 * m + i}, -2, v{144 + 4 * m + i}")
                p(f"buffer_store_dwordx4 {vr(144 + 4 * m, 4)}, v1, s[{S_WS}:{S_WS+3}], s3 offen offset:{m * 1024} {st}")
        else:
          for i in range(8):
            p(f"buffer_store_dwordx4 {vr(192 + 4 * i, 4)}, v1, s[{S_WS}:{S_WS+3}], s{3 + i // 4} offen offset:{(i % 4) * 1024} {st}")
        p("s_waitcnt lgkmcnt(0)")
        if c.opt.get('xpub0'):
            self.nxt.g_setup(p, c); self.nxt.g_setup = lambda p, c: None
            p("s_waitcnt vmcnt(4)")
            publish(p, c, F_XCH, False, 28)
            self.pubkind = None

class WO(N64):
    def __init__(self, xw=2, xbar=False, pubstep=2): self.xw = xw; self.nsteps = 9 - 3 * xw // 2; self.xbar = xbar; self.pubstep = pubstep
    def __call__(self): return self
    order = 'perm32b'; bname = 'w4'; babytes = 3584 * 2048
    a_base = WS_AF; a_size = 18 * MB; a_pitch = AF_PITCH; a_k0 = 108 * 1024
    b_k0 = 108 * 32 * 2048
    ncall = 0; pubv = 28
    def dma_atoms(self, c):
        D = N64.dma_atoms(self, c)
        if self.ncall == 0:
            a = Atoms(); srd(a, S_B, ptr('wo'), 1024 * 2048)
            a(f"s_mov_b32 s{S_SO[0]}, {(112 + 6 * self.xw) * 1024}\ns_mov_b32 s{S_SO[1]}, {6 * self.xw * 32 * 2048}")
            D[-1] += "\n" + "\n".join(a.L)
        self.ncall += 1
        return D
    def h_poll(self, c, t):
        m = c.opt.get('xmode', 0)
        if (m == 1 and t == self.nsteps - 2) or (m == 2 and t == self.nsteps - 1): return poll_flags(c, F_XCH, S_MT2, single=S_NT2)
    def h_pre(self, p, c, t):
        if t == self.nsteps - 2 and c.opt.get('xmode', 0) == 0: poll_flags(c, F_XCH, S_MT2, single=S_NT2).issue(p)
        if t == self.nsteps - 1 and c.opt.get('xmode', 0) == 3: poll_flags(c, F_XCH, S_MT2, single=S_NT2).issue(p)
    def h_extra(self, p, c, t):
        if t == self.nsteps - 1 and c.opt.get('xmode', 0) != 2:
            if c.opt.get('xmode', 0) in (0, 3): poll_flags(c, F_XCH, S_MT2, single=S_NT2).check(p)
            p.add(self.xch)
            return len(self.xch)
        return 0
    def h_epi(self, p, c):
        if c.opt.get('xmode', 0) == 2: p.add(self.xch)
        p("s_waitcnt vmcnt(0)\ns_barrier")
        hstep_stamp(p, c)
    def g_zero(self, p): pass
    def h_tail(self, c):
        ho = c.opt.get('hoflag', '')
        W = f"s[{S_WS}:{S_WS+3}]"
        pre = xch_off(c, f"s_xor_b32 s4, s{S_NT2}, 1", S_WM, 49) + f"""
        s_lshl_b32 s3, s{S_NT2}, 1
        s_lshr_b32 s4, s{S_WM}, 1
        s_add_u32 s3, s3, s4
        s_lshl_b32 s3, s3, 10
        s_lshl_b32 s4, s{S_MT2}, 1
        s_and_b32 s5, s{S_WM}, 1
        s_add_u32 s4, s4, s5
        s_lshl_b32 s4, s4, 17
        s_add_u32 s3, s3, s4
        s_add_u32 s50, s3, {WS_X1}
        s_mul_i32 s4, s{S_WM}, 12288
        s_add_u32 m0, s4, s{S_DMA}
        """
        D = []
        for m in range(4): D.append(f"buffer_load_dwordx4 v1, {W}, s50 offen {ho} lds\ns_add_u32 s50, s50, 32768\ns_add_u32 m0, m0, 1024")
        for i in range(8):
            D.append(f"buffer_load_dwordx4 v1, {W}, s49 offen offset:{(i % 4) * 1024} {ho} lds" + ("\ns_add_u32 s49, s49, 4096\ns_add_u32 m0, m0, 4096" if i == 3 else ""))
        D[0] = pre + D[0]
        self.xch = D[4:8] if c.opt.get('xbf') else D[4:]
        return D[:4]
    def g_pre(self, p, c):
        ho = c.opt.get('hoflag', '')
        p(f"""
        s_lshl_b32 s4, s{S_MT2}, 9
        s_lshl_b32 s5, s{S_WM}, 8
        s_add_u32 s4, s4, s5
        s_add_u32 s4, s4, {WS_G + 8192}
        v_lshlrev_b32 v36, 2, v{T0}
        """)
        for m in range(4): p(f"buffer_load_dword v{176 + 2 * m}, v36, s[{S_WS}:{S_WS+3}], s4 offen offset:{64 * m} {ho}")
    def g_epi(self, p, c):
        st = c.opt.get('outflag', '')
        p(f"""
        s_mul_i32 s3, s{S_WID}, 12288
        s_add_u32 s3, s3, s{S_RD}
        v_add_u32 v37, s3, v1
        """)
        for m in range(4): p(f"ds_read_b128 {vr(96 + 4 * m, 4)}, v37 offset:{1024 * m}")
        srd(p, S_AUX, ptr('out'), 2048 * 2048)
        lane_fields(p, T0, T0 + 1)
        p(f"""
        s_lshl_b32 s3, s{S_MT2}, 7
        s_lshl_b32 s4, s{S_WM}, 6
        s_add_u32 s3, s3, s4
        v_add_u32 v36, s3, v{T0}
        v_lshlrev_b32 v36, 11, v36
        v_and_b32 v{T0+2}, 1, v{T0+1}
        v_lshrrev_b32 v{T0+3}, 1, v{T0+1}
        v_lshl_add_u32 v36, v{T0+2}, 5, v36
        v_lshl_add_u32 v36, v{T0+3}, 4, v36
        s_lshl_b32 s3, s{S_NT2}, 7
        s_lshl_b32 s4, s{S_WN}, 6
        s_add_u32 s42, s3, s4
        """)
        for m in range(4):
            for n in range(2):
                a = self.acc(m, n)
                for d in range(2):
                    x = 96 + 4 * m + 2 * n + d
                    p(f"v_lshlrev_b32 v48, 16, v{x}\nv_and_b32 v49, 0xffff0000, v{x}")
                    p(f"v_pk_fma_f32 {vr(a + 2 * d, 2)}, v[48:49], {vr(176 + 2 * m, 2)}, {vr(a + 2 * d, 2)} op_sel_hi:[1,0,1]")
        if hasattr(self, 'xwait'): self.xwait(p, c)
        else: p("s_barrier")
        for m in range(0 if hasattr(self, 'xwait') else 4):
            for n in range(1 if c.opt.get('xbf') else 2): p(f"ds_read_b128 {vr(144 + 4 * (4 * n + m), 4)}, v37 offset:{4096 + 1024 * (4 * n + m)}")
        for m in range(4):
            a, b = self.acc(m, 0), self.acc(m, 1)
            if c.opt.get('xbf'):
                for i in range(4): p(f"v_lshlrev_b32 v{48 + 2 * i}, 16, v{144 + 4 * m + i}\nv_and_b32 v{49 + 2 * i}, 0xffff0000, v{144 + 4 * m + i}")
                for i, r in enumerate((a, a + 2, b, b + 2)): p(f"v_pk_add_f32 {vr(r, 2)}, {vr(r, 2)}, {vr(48 + 2 * i, 2)}")
            else:
                for r in (a, a + 2, b, b + 2): p(f"v_pk_add_f32 {vr(r, 2)}, {vr(r, 2)}, {vr(r - 80, 2)}")
            t = 72 + 4 * m
            for i, r in enumerate((a, a + 2, b, b + 2)): p(f"v_cvt_pk_bf16_f32 v{t + i}, v{r}, v{r + 1}")
            p(f"v_permlane16_swap_b32 v{t}, v{t + 2}")
            p(f"v_permlane16_swap_b32 v{t + 1}, v{t + 3}")
            p(f"buffer_store_dwordx4 {vr(t, 4)}, v36, s[{S_AUX}:{S_AUX+3}], s42 offen {st}")
            if m < 3: p(f"s_add_u32 s42, s42, {16 * 2048}")


def stats_code(p, c, xs, gs, wave):
    W = f"s[{S_WS}:{S_WS+3}]"
    st = c.opt.get('stflag', '')
    q = QKV()
    for t in range(2, 8): QKV.h_mix(q, p, c, t)
    QKV.h_extra(q, p, c, 7)

class W1F(W1):
    xbar = False
    h_steps = (0, 1, 2, 3, 4, 5)
    def h_first(self, p, c): pass
    def g_first(self, p, c, pf=True):
        srd(p, S_A, ptr('x'), 2048 * 2048)
        srd(p, S_B, ptr('gate'), 2048)
        p(f"""
        s_lshl_b32 s48, s{S_MT3}, 4
        s_add_u32 s48, s48, s{S_NT3}
        s_lshl_b32 s48, s48, 3
        s_lshl_b32 s3, s{S_WID}, 1
        s_add_u32 s48, s48, s3
        s_lshl_b32 s3, s48, 11
        buffer_load_dwordx4 v[64:67], v1, s[{S_A}:{S_A+3}], s3 offen
        buffer_load_dwordx4 v[68:71], v1, s[{S_A}:{S_A+3}], s3 offen offset:1024
        buffer_load_dwordx4 v[72:75], v1, s[{S_A}:{S_A+3}], s3 offen offset:2048
        buffer_load_dwordx4 v[76:79], v1, s[{S_A}:{S_A+3}], s3 offen offset:3072
        buffer_load_dwordx4 v[80:83], v1, s[{S_B}:{S_B+3}], 0 offen
        buffer_load_dwordx4 v[84:87], v1, s[{S_B}:{S_B+3}], 0 offen offset:1024
        """)
        if pf: g_prefetch(p, c, [('w1', 2 * MB, i, 1) for i in range(2)])
    def early(self, p, c): stats_code(p, c, 64, 80, S_WID)
    def h_poll(self, c, t):
        if t == 0: return poll_init(c)
        if t == 5: return poll_flags(c, F_ST, S_MT2)
    def h_post(self, p, c, t): pass
    def h_extra(self, p, c, t):
        L = c.opt.get('w1pf', {1: [0], 2: [1], 3: [2]})
        return g_prefetch(p, c, [('wqkv', 6 * MB, i, 1) for i in L[t]]) if t in L else 0
    def g_sites(self, c):
        def pub(p):
            p("s_waitcnt vmcnt(0)")
            publish(p, c, F_ST, False)
        def ld(p):
            ho = c.opt.get('hoflag', '')
            p(f"""
            s_lshl_b32 s3, s{S_MT2}, 9
            s_lshl_b32 s4, s{S_WM}, 8
            s_add_u32 s3, s3, s4
            s_add_u32 s3, s3, {WS_ST1}
            s_add_u32 s4, s3, 8192
            v_and_b32 v36, 15, v0
            v_lshlrev_b32 v36, 2, v36
            """)
            for m in range(4):
                p(f"buffer_load_dword v{144 + 8 * m}, v36, s[{S_WS}:{S_WS+3}], s3 offen offset:{64 * m} {ho}")
                p(f"buffer_load_dword v{145 + 8 * m}, v36, s[{S_WS}:{S_WS+3}], s4 offen offset:{64 * m} {ho}")
        return {1: pub, 6: ld}
    lds_consts = False

class QKV2(QKV):
    h_steps = (0,)
    zero_first = True
    def h_setup(self, p, c, first=False):
        srd(p, S_A, ptr('x'), 2048 * 2048)
        QKV.h_setup(self, p, c)
    def g_sites(self, c): return {}
    def h_poll(self, c, t): return None
    def h_mix(self, p, c, t): pass
    def h_extra(self, p, c, t):
        if t == 0: return g_prefetch(p, c, c.opt.get('qpf', [('wqkv', 6 * MB, 3, 3)]))
        if t == 9: return g_prefetch(p, c, [('w2', 2 * MB, 0, 2)])
        return 0
    h_steps = (0, 9)

class W2X(W2):
    xbar = True
    pubstep = 2

class QKVG(QKV):
    h_steps = (0, 1, 2, 3, 4, 5, 6)
    def h_first(self, p, c): srd(p, S_A, ptr('x'), 2048 * 2048)
    def g_first(self, p, c):
        W1F.g_first(self, p, c, False)
        QKV.g_first(self, p, c)
    def early(self, p, c): stats_code(p, c, 64, 80, S_WID)
    def h_mix(self, p, c, t): pass
    def h_extra(self, p, c, t): return QKV.h_extra(self, p, c, t) if t < 7 else 0
    def g_sites(self, c):
        def pub(p):
            p("s_waitcnt vmcnt(0)")
            publish(p, c, F_ST, False)
        return {7: pub}


def cs3_loads(a, c, S_MT3=S_MT3, S_NT3=S_NT3, dst=160):
    t = Atoms()
    srd(t, S_AUX, ptr('w3'), 1024 * 7168)
    t(f"""
    s_mul_i32 s6, s{S_NT3}, 448
    s_and_b32 s6, s6, {0xffffff80}
    s_lshl_b32 s4, s{S_WM}, 7
    s_add_u32 s6, s6, s4
    s_lshl_b32 s4, s{S_MT3}, 6
    v_lshrrev_b32 v{T0}, 3, v0
    v_add_u32 v{T0}, s4, v{T0}
    v_mul_u32_u24 v{T0}, 7168, v{T0}
    v_and_b32 v{T0+1}, 7, v0
    v_lshl_add_u32 v{T0}, v{T0+1}, 4, v{T0}
    """)
    a("\n".join(t.L))
    for i in range(8):
        a(f"buffer_load_dwordx4 {vr(dst + 4 * i, 4)}, v{T0}, s[{S_AUX}:{S_AUX+3}], s6 offen\ns_add_u32 s6, s6, {8 * 7168}")
    return 8
def cs3_math(p, c, *ids):
    q = W3()
    for t in range(1, 6): W3.h_mix(q, p, c, t)
    cs3_store(p, c, *ids)
def cs3_store(p, c, S_MT3=S_MT3, S_NT3=S_NT3):
    p(f"""
    s_lshl_b32 s3, s{S_NT3}, 4
    s_add_u32 s3, s3, s{S_MT3}
    s_lshl_b32 s3, s3, 2
    s_add_u32 s3, s3, s{S_WM}
    s_lshl_b32 s3, s3, 8
    s_add_u32 s3, s3, {WS_CSP}
    buffer_store_dwordx2 v[48:49], v56, s[{S_WS}:{S_WS+3}], s3 offen {c.opt.get('stflag', '')}
    """)

class W3E(W3):
    h_steps = (2, 3, 4, 5)
    chain = True
    def g_sites(self, c): return {}
    def h_poll(self, c, t): return None
    def poll(self, c):
        P = poll_flags(c, F_W2, S_MT3)
        P.addr += f"""
        v_and_b32 v138, 14, v0
        v_lshlrev_b32 v138, 4, v138
        v_and_b32 v139, 1, v0
        s_lshl_b32 s3, s{S_NT3}, 1
        v_add3_u32 v138, v138, v139, s3
        v_lshlrev_b32 v138, 7, v138
        v_add_u32 v136, {(F_W2 - F_W1) * 32768}, v136
        v_cmp_gt_u32 vcc, 32, v0
        v_cndmask_b32 v136, v138, v136, vcc
        s_mov_b32 s{S_POLL}, {WS_FLAG + F_W1 * 32768}
        """
        return P
    def h_late(self, a, c):
        W = f"s[{S_WS}:{S_WS+3}]"
        ho = c.opt.get('hoflag', '')
        a.atom(f"""
        v_and_b32 v{T0}, 15, v0
        v_lshrrev_b32 v{T0+1}, 4, v0
        v_lshlrev_b32 v{T0}, 4, v{T0}
        v_lshl_add_u32 v{T0+2}, v{T0+1}, 10, v{T0}
        v_lshl_add_u32 v{T0+3}, v{T0+1}, 17, v{T0}
        v_lshlrev_b32 v{T0+4}, 2, v0
        s_lshl_b32 s53, s{S_NT3}, 14
        s_lshl_b32 s4, s{S_WM}, 8
        s_add_u32 s53, s53, s4
        s_add_u32 s53, s53, {WS_CSP}
        s_lshl_b32 s50, s{S_MT3}, 10
        s_add_u32 s50, s50, s4
        s_lshr_b32 s49, s50, 1
        s_add_u32 s49, s49, {WS_G + 8192}
        s_add_u32 s50, s50, {WS_P2}
        """)
        for i in range(4): a.atom(f"buffer_load_dwordx4 {vr(160 + 4 * i, 4)}, v{T0+2}, {W}, s53 offen {ho}\ns_add_u32 s53, s53, 4096")
        for i in range(8): a.atom(f"buffer_load_dwordx4 {vr(176 + 4 * i, 4)}, v{T0+3}, {W}, s50 offen {ho}\ns_add_u32 s50, s50, 16384")
        a.atom(f"buffer_load_dword v208, v{T0+4}, {W}, s49 offen {ho}")
        return 13
    def h_extra(self, p, c, t): return 0
    def h_mix(self, p, c, t):
        if t == 2:
            for i in range(4):
                for d in range(4): p(f"v_add_f32 v{64 + 4 * i + d}, v{176 + 4 * i + d}, v{192 + 4 * i + d}")
            for st_ in (2, 1):
                for i in range(st_):
                    for d in range(4): p(f"v_add_f32 v{64 + 4 * i + d}, v{64 + 4 * i + d}, v{64 + 4 * (i + st_) + d}")
            p("v_mov_b32 v96, v208")
        if t in (3, 4, 5): W3.h_mix(self, p, c, t + 8)

class W2C(W2):
    h_steps = (1, 2, 3, 4, 5)
    def h_late(self, a, c):
        if c.opt.get('cs3at') != 'late': return 0
        t = Atoms(); n = cs3_loads(t, c, S_MT2, S_NT2); a.atom("\n".join(t.L)); return n
    def h_mix(self, p, c, t):
        if 1 <= t <= 5: W3.h_mix(self, p, c, t)
    def h_extra(self, p, c, t):
        if t == 5:
            cs3_store(p, c, S_MT2, S_NT2); return 1
        return 0
class W3F(W3E):
    def poll(self, c): return poll_flags(c, F_W2, S_MT3, col_sgpr=S_NT3)

class W3G(W3F):
    h_steps = tuple(range(1, 14))
    def h_late(self, a, c): return 0
    def h_extra(self, p, c, t):
        W = f"s[{S_WS}:{S_WS+3}]"
        ho = c.opt.get('hoflag', '')
        n = W3.h_extra(self, p, c, t) if (1 <= t <= 8 and t != 5) else 0
        if t == 5:
            p(f"buffer_load_dwordx4 {vr(64 + 4 * (t - 1), 4)}, v63, {W}, s50 offen {ho}\ns_add_u32 s50, s50, 16384"); n = 1
        if 8 <= t <= 11:
            p(f"buffer_load_dwordx4 {vr(160 + 4 * (t - 8), 4)}, v62, {W}, s53 offen {ho}\ns_add_u32 s53, s53, 4096"); n += 1
        return n
    def h_mix(self, p, c, t):
        if t >= 10: W3.h_mix(self, p, c, t)

class W3W(W3E):
    h_steps = (13,)
    pubv = 28
    def poll(self, c): return poll_flags(c, F_W2, S_MT3)
    def h_late(self, a, c): return 0
    def g_sites(self, c):
        return {2: lambda p: publish(p, c, F_CS, False, 28)} if c.opt.get('persist') else {}
    def h_poll(self, c, t): return poll_flags(c, F_CS, S_NT3) if t == 13 else None
    def w_indep(self, p, c): cs3_loads(p, c)
    def w_dep(self, p, c):
        for t in range(1, 9): W3G.h_extra(self, p, c, t) if t < 8 else W3.h_extra(self, p, c, t)
    def w_math(self, p, c):
        cs3_math(p, c)
        for t in (10, 11, 12): W3.h_mix(self, p, c, t)
    def w_fin(self, p, c):
        p("""
        ds_write_b32 v57, v64
        ds_write_b32 v57, v65 offset:512
        s_mov_b32 exec_hi, 0
        ds_write_b32 v58, v96 offset:1024
        s_mov_b32 exec_hi, -1
        s_waitcnt lgkmcnt(0)
        """)
    def h_pre(self, p, c, t):
        if t == 14:
            p(f"""
            v_and_b32 v60, 15, v0
            v_lshrrev_b32 v61, 4, v0
            v_lshlrev_b32 v60, 4, v60
            v_lshl_add_u32 v62, v61, 10, v60
            s_lshl_b32 s4, s{S_WM}, 8
            s_lshl_b32 s53, s{S_NT3}, 14
            s_add_u32 s53, s53, s4
            s_add_u32 s53, s53, {WS_CSP}
            """)
    def h_extra(self, p, c, t): return W3.h_extra(self, p, c, 11) if t == 14 else 0
    def h_mix(self, p, c, t):
        if t == 15: W3.h_mix(self, p, c, 13)
    def h_post(self, p, c, t):
        if t == 15: p("ds_write_b32 v56, v160\ns_waitcnt lgkmcnt(0)")

class W2D(W2):
    def w_l2(self, p, c):
        if not c.opt.get('l2w2', 0): return
        p(f"""
        s_and_b32 s3, s{S_MT2}, 3
        s_lshl_b32 s3, s3, 14
        s_add_u32 s3, s3, {2 * self.stepB}
        s_mov_b32 m0, {L_DUMMY}
        """)
        for i in range(6): p(f"buffer_load_dwordx4 v40, s[{S_B}:{S_B+3}], s3 offen lds\ns_add_u32 s3, s3, {self.stepB}")
    def w_last(self, p, c):
        if c.opt.get('xtag', 0):
            p(xch_off(c, f"s_mov_b32 s4, s{S_NT2}", S_WID, 3))
            for r in range(4): p(f"v_mov_b32 v{20 + r}, -1")
            for m in range(4): p(f"buffer_store_dwordx4 v[20:23], v1, s[{S_WS}:{S_WS+3}], s3 offen offset:{m * 1024} {c.opt.get('stflag', '')}")
        return cs3_loads(p, c, S_MT2, S_NT2, 176) + (4 if c.opt.get('xtag', 0) else 0)
    def g_epi(self, p, c):
        p(f"""
        v_and_b32 v8, 15, v0
        v_and_b32 v9, 1, v0
        v_lshlrev_b32 v9, 4, v9
        v_mov_b32 v10, 0x3f80
        v_lshlrev_b32 v9, v9, v10
        v_lshrrev_b32 v8, 1, v8
        """)
        for r in range(4): p(f"v_cmp_eq_u32 vcc, {r}, v8\nv_cndmask_b32 v{12 + r}, 0, v9, vcc")
        for i in range(8): p(mfma16(16, 12, 176 + 4 * i, "0" if i == 0 else None))
        W2.g_epi(self, p, c)
        for r in range(4): p(f"v_add_f32_dpp v{16 + r}, v{16 + r}, v{16 + r} row_ror:8 row_mask:0xf bank_mask:0xf")
        p(f"""
        v_and_b32 v8, 7, v0
        v_lshrrev_b32 v9, 4, v0
        v_lshlrev_b32 v8, 5, v8
        v_lshl_add_u32 v8, v9, 4, v8
        s_lshl_b32 s3, s{S_NT2}, 4
        s_add_u32 s3, s3, s{S_MT2}
        s_lshl_b32 s3, s3, 2
        s_add_u32 s3, s3, s{S_WID}
        s_lshl_b32 s3, s3, 8
        s_add_u32 s3, s3, {WS_CSP}
        s_mov_b32 exec_lo, 0x00ff00ff
        s_mov_b32 exec_hi, 0
        buffer_store_dwordx4 v[16:19], v8, s[{S_WS}:{S_WS+3}], s3 offen {c.opt.get('stflag', '')}
        s_mov_b64 exec, -1
        """)

class W3X(W3F):
    h_steps = ()
    quiet = True
    def h_late(self, a, c): return 0
    def h_mix(self, p, c, t): pass
    def h_post(self, p, c, t): pass
    def w_indep(self, p, c): pass
    def w_dep(self, p, c):
        for t in range(1, 12): W3G.h_extra(self, p, c, t)
    def w_math(self, p, c):
        for t in (10, 11, 12, 13): W3.h_mix(self, p, c, t)
    def w_fin(self, p, c): W3.h_post(self, p, c, 15)
    def h_every(self, p, c, t):
        if not c.opt.get('spf4'): return
        if t == 0:
            p(f"""
            s_lshl_b32 s3, s2, 2
            s_add_u32 s3, s3, s{S_WM}
            s_mul_i32 s3, s3, 7168
            s_add_u32 s94, s{ptr('w4')}, s3
            s_addc_u32 s95, s{ptr('w4')+1}, 0
            """)
        if t is None or t <= 13:
            for i in range(8):
                p.I.append(Inst("s_nop 0")); p.I[-1].text = f"s_load_dword s98, s[94:95], {i * 64}"
            p("s_add_u32 s94, s94, 512\ns_addc_u32 s95, s95, 0")
        if t == 15: p("s_waitcnt lgkmcnt(0)")

class W4T(W4):
    pubkind = None
class WOT(WO):
    def h_poll(self, c, t): return None
    def h_pre(self, p, c, t): pass
    def h_extra(self, p, c, t): return 0
    def h_epi(self, p, c): pass
    def xloads(self, c):
        return [f"buffer_load_dwordx4 {vr(144 + 4 * m, 4)}, v1, s[{S_WS}:{S_WS+3}], s49 offen offset:{m * 1024} sc1" for m in range(4)]
    def g_sites(self, c):
        def f(p):
            p(xch_off(c, f"s_xor_b32 s4, s{S_NT2}, 1", S_WID, 49))
            p.add(self.xloads(c))
        return {c.opt.get('xat', 2): f}
    def xwait(self, p, c):
        L = c.lab("xw"); E = c.lab("xwe")
        p(f"s_mov_b32 s5, {c.opt.get('spinmax', 100000)}")
        p.label(L)
        p("v_max3_u32 v50, v144, v145, v146")
        for i in range(147, 159, 2): p(f"v_max3_u32 v50, v50, v{i}, v{i + 1}")
        p(f"""
        v_max_u32 v50, v50, v159
        v_cmp_eq_u32 vcc, -1, v50
        s_cbranch_vccz {E}
        s_sub_u32 s5, s5, 1
        s_cmp_eq_u32 s5, 0
        s_cbranch_scc1 {E}
        s_sleep 2
        """)
        p.add(self.xloads(c))
        p(f"s_waitcnt vmcnt(0)\ns_branch {L}")
        p.label(E)
```

```python
from mk import *
from attn import *
from g2 import *
from attn2 import *
from w4q import *
PF3 = ([('w2', 0, 2), ('w3', 0, 4)], [('w3', 4, 3), ('w4', 0, 1), ('w4', 3, 2)], [('w4', 1, 2), ('w4', 5, 2), ('wo', 0, 2)])
def P1(): return [[G1, Attn(0, (8, 12), True, pf=PF3[0]), W2, Attn(20, (8, 12), pf=PF3[1]), W3, Attn(40, (12, 12), pf=PF3[2]), W4(4), WO(4, True, 1)]]
def P2(Q=QKVG): return [[Q, W1, Attn(0, (8, 12), pf=PF3[0]), W2, Attn(20, (8, 12), pf=PF3[1]), W3, Attn(40, (12, 12), pf=PF3[2]), W4(4), WO(4, True, 1)]]
def P3(): return [[W1F, QKV2, W2X, Attn(0, (8, 12, 12), defer1=False, pf=[('w3', 0, 7), ('w4', 0, 1)]), W3,
                   Attn(32, (12, 8, 12), pf=[('w4', 3, 2), ('w4', 1, 2), ('w4', 5, 2), ('wo', 0, 2)]), W4(4), WO(4, True, 1)]]
def P4(G=G2, pf0=[('w3', 0, 4)], wo=(4, True, 1)): return [[G, Attn(0, (8, 12), local=True, pf=pf0), W2, Attn(20, (8, 12), pf=PF3[1]), W3, Attn(40, (12, 12), pf=PF3[2]), W4(wo[0]), WO(*wo)]]
def P5(): return [[G2, AttnH(0, (8, 12), local=True, pf=[('w3', 0, 4)]), W2, AttnH(20, (8, 12), pf=PF3[1]), W3, AttnH(40, (12, 12), pf=PF3[2]), W4(4), WO(4, True, 1)]]
PF4 = ([('w3', 0, 4)], [('w3', 4, 3), ('w4', 0, 3)], [('w4', 3, 4), ('wo', 0, 2)])
def P6(xw=1, xbar=True, ps=2, lead=1): return [[G2, Attn(0, (8, 12), local=True, pf=PF4[0]), W2, Attn(20, (8, 12), pf=PF4[1]), W3, Attn(40, (12, 12), pf=PF4[2]), W4Q(xw), WOQ(xw, xbar, ps, lead)]]
def P7(pf=([('w4', 0, 2)], [('w4', 2, 5)], [('wo', 0, 2)])): return [[G2, Attn(0, (8, 12), local=True, pf=pf[0]), W2, Attn(20, (8, 12), pf=pf[1]), W3E, Attn(40, (12, 12), pf=pf[2]), W4(4), WO(4, True, 1)]]
def P8(pf=([('w3', 0, 7)], [('w4', 0, 7)], [('wo', 0, 2)])): return [[G2, Attn(0, (8, 12), local=True, pf=pf[0]), W2C, Attn(20, (8, 12), pf=pf[1]), W3F, Attn(40, (12, 12), pf=pf[2]), W4(4), WO(4, True, 1)]]
def P9(xw=2, xbar=True, ps=1, lead=1, pf=([('w3', 0, 7)], [('w4', 0, 7)], [('wo', 0, 2)])): return [[G2, Attn(0, (8, 12), local=True, pf=pf[0]), W2C, Attn(20, (8, 12), pf=pf[1]), W3F, Attn(40, (12, 12), pf=pf[2]), W4Q(xw), WOQ(xw, xbar, ps, lead)]]
def PH(w=((8, 8), (8, 8), (8, 8)), h2=8, h4=8, pf=([('w4', 0, 3)], [('w4', 3, 4)], [('wo', 0, 2)])):
    b1 = sum(w[0]) + h2; b2 = b1 + sum(w[1])
    assert b2 + sum(w[2]) + h4 == 64
    return [[G2, AttnW(0, w[0], local=True, pf=pf[0], hosted=h2), W2, AttnW(b1, w[1], pf=pf[1], cont_in=h2 > 0), W3G,
             AttnW(b2, w[2], pf=pf[2], hosted=h4), W4(4), WO(4, True, 1)]]
def PW(w=((8, 8), (8, 8), (8, 8)), h2=8, h4=8, pf=([('w3', 2, 2)], [], [('w4', 1, 2), ('w4', 5, 2)]), pf2=([], [('w4', 0, 1), ('w4', 3, 2)], [('wo', 0, 2)])):
    b1 = sum(w[0]) + h2; b2 = b1 + sum(w[1])
    assert b2 + sum(w[2]) + h4 == 64
    return [[G2, AttnW(0, w[0], local=True, pf=pf[0], pf2=pf2[0], hosted=h2), W2, AttnW(b1, w[1], pf=pf[1], pf2=pf2[1], cont_in=h2 > 0), W3W,
             AttnW(b2, w[2], pf=pf[2], pf2=pf2[2], hosted=h4), W4(4), WO(4, True, 1)]]
def PX(w=((8, 8), (8, 8), (8, 8)), h2=8, h4=8, h3=0, pf=([('w3', 2, 2)], [('w4', 0, 5)], []), pf2=([], [('w4', 5, 2)], [('wo', 0, 2)]), xbar=True, tag=False):
    b1 = sum(w[0]) + h2; b2 = b1 + sum(w[1]) + h3
    assert b2 + sum(w[2]) + h4 == 64
    return [[G2, AttnW(0, w[0], local=True, pf=pf[0], pf2=pf2[0], hosted=h2), W2D, AttnW(b1, w[1], pf=pf[1], pf2=pf2[1], cont_in=h2 > 0, hosted=h3), W3X,
             AttnW(b2, w[2], pf=pf[2], pf2=pf2[2], hosted=h4, cont_in=h3 > 0), (W4T if tag else W4)(4), (WOT if tag else WO)(4, xbar, 1)]]
P = PX
base = dict(stflag='sc1', hoflag='sc1', persist=1, spinsleep=4, xbf=1, g1pub=1, gfirst=1, spf=(8, 6), g2pf=[('w2', 2 * MB, 0, 2), ('w3', 7 * MB, 0, 2)])
base5 = dict(base, hslate=1, g1pub=1)
if __name__ == "__main__":
    make("p4a.s", P(), dict(base, stamp=1))
    make("p4b.s", P(), dict(base, hstamp=1))
    make("p4f.s", P(), dict(base, final=1))
    make("p4s.s", P(), dict(base, sstamp=1))
    make("p4m.s", P(), dict(base, stamp=1, fine=1))
    make("p4c.s", P(), dict(base, spincnt=1))
```

```python
from attn import *
B_O, B_Q, B_L, B_M, B_G = (192, 208), (224, 232), (240, 244), (248, 249), (250, 251)
B_C, B_V0, B_V1 = (48, 2), (104, 108), (112, 116)

class AttnH(Attn):
    defer1 = True
    def __init__(self, b0, stages, pf=(), local=False):
        Attn.__init__(self, b0, stages, pf=pf, local=local, defer1=True)
        assert len(stages) == 2
        self.NI = sum(stages) // 2
        self.bars = [stages[0] // 2 - 1, self.NI - 1]
    def early(self, p, c): pass
    def h_post_dep(self, p, c):
        if self.last:
            p(f"""
            s_lshl_b32 s3, s{S_QB}, 10
            s_lshl_b32 s4, s{S_WM}, 8
            s_add_u32 s3, s3, s4
            s_lshl_b32 s3, s3, 2
            s_add_u32 s3, s3, {WS_ST1 + 8}
            v_and_b32 v{T0}, 31, v0
            v_lshlrev_b32 v{T0}, 4, v{T0}
            buffer_load_dword v{B_G[0]}, v{T0}, s[{S_WS}:{S_WS+3}], s3 offen {c.opt.get('hoflag', '')}
            buffer_load_dword v{B_G[1]}, v{T0}, s[{S_WS}:{S_WS+3}], s3 offen offset:512 {c.opt.get('hoflag', '')}
            """)
    def LLq(self, q): return f"v_smfmac_f32_16x16x64_bf16 {vr(B_L[q], 4)}, {vr(A_SEL, 4)}, {vr(A_P[0], 8)}, v{A_IDX}"
    def cblocks(self, p, qs=(0, 1)):
        for q in qs:
            for i in range(16): p(f"v_mov_b32 v{B_C[q] + i}, v{B_M[q]}")
    def presetup(self, p, c):
        self.sel_setup(p)
        for i in range(8): p(f"v_mov_b32 v{A_P[0] + i}, 0")
        for i in range(4): p(f"v_mov_b32 v{B_V1[1] + i}, 0")
        if self.first:
            for i in range(32): p(f"v_mov_b32 v{B_O[0] + i}, 0")
            for i in range(8): p(f"v_mov_b32 v{B_L[0] + i}, 0")
        else: self.cblocks(p)
    def negmax(self, p, q, tmp):
        p(f"""
        v_mov_b32 v{tmp}, v{B_M[q]}
        v_permlane32_swap_b32 v{B_M[q]}, v{tmp}
        v_max_f32 v{B_M[q]}, v{B_M[q]}, v{tmp}
        v_sub_f32 v{B_M[q]}, 0, v{B_M[q]}
        """)
    def setup(self, p, c):
        p(f"v_add_u32 v{A_AD}, s{S_RD}, v1")
        p(f"""
        ds_read_b128 {vr(A_K, 4)}, v{A_AD}
        ds_read_b128 {vr(A_K + 4, 4)}, v{A_AD} offset:1024
        """)
        if self.first:
            p(f"s_lshl_b32 s3, s{S_WM}, 12\nv_add_u32 v{T0}, s3, v{A_AD}")
            for i in range(4): p(f"ds_read_b128 {vr(B_Q[0] + 4 * i, 4)}, v{T0} offset:{32768 + 1024 * i}")
        p(f"""
        ds_read_b128 {vr(B_V0[0], 4)}, v{A_AD} offset:2048
        ds_read_b128 {vr(B_V1[0], 4)}, v{A_AD} offset:3072
        """)
        if self.first:
            for q in range(2):
                p(mfma32(A_S[q], A_K, B_Q[q], "0"))
                p(mfma32(A_S[q], A_K + 4, B_Q[q] + 4))
            for q in range(2):
                self.rowmax(p, A_S[q], B_M[q])
                self.negmax(p, q, T0)
            self.cblocks(p)
        p(mfma32(A_S[0], A_K, B_Q[0], B_C[0]))
        p(mfma32(A_S[0], A_K + 4, B_Q[0] + 4))
        p("s_nop 9\ns_waitcnt lgkmcnt(0)")
    def tile(self, c, t, noff=None, order=None):
        q = t % 2; b = t // 2
        if noff is None: noff = 4096 if b == 0 else 0
        S = A_S[q]; Sn = A_S[q ^ 1]
        rd = lambda d, o: f"ds_read_b128 {vr(d, 4)}, v{A_AD} offset:{noff + o}"
        pb = b if q == 1 else b ^ 1
        d = dict(O1=mfma32(B_O[q ^ 1], B_V1[pb], A_P[1]), LL=self.LLq(q ^ 1), O0=mfma32(B_O[q], B_V0[b], A_P[0]),
                 Sa=mfma32(Sn, A_K, B_Q[q ^ 1], B_C[q ^ 1]), Sb=mfma32(Sn, A_K + 4, B_Q[q ^ 1] + 4))
        if q == 0: d.update(r0=rd(A_K, 0), r1=rd(A_K + 4, 1024), w="s_waitcnt lgkmcnt(0)")
        else: d.update(r0=rd(B_V0[b ^ 1], 2048), r1=rd(B_V1[b ^ 1], 3072), w=None)
        E = [f"v_exp_f32 v{S + i}, v{S + i}" for i in range(16)]
        C = [f"v_cvt_pk_bf16_f32 v{A_P[i // 4] + i % 4}, v{S + 2 * i}, v{S + 2 * i + 1}" for i in range(8)]
        L = []
        d.update(p0="s_setprio 0", p1="s_setprio 1")
        for x in (order or c.opt.get('aorder', "Sa r0 e3 Sb r1 e3 LL e2 O1 c4 e4 w O0 e4 c4")).split():
            if x[0] == 'e': L += E[:int(x[1:])]; E = E[int(x[1:]):]
            elif x[0] == 'c': L += C[:int(x[1:])]; C = C[int(x[1:]):]
            elif d[x]: L.append(d[x])
        return L
    adv = 8192
    def drain(self, p):
        p(mfma32(B_O[1], B_V1[1], A_P[1]))
        p(self.LLq(1))
        p("s_waitcnt lgkmcnt(0)")
    def g_body(self, p, c, prev):
        nxt = self.nxt
        p(f"""
        s_mov_b32 s{S_WM}, s{S_WID}
        s_mov_b32 s{S_DMA}, s{S_RD}
        """)
        p.add(slot_adv_dma())
        sv = self.local; self.local = True; self.h_setup(p, c); self.local = sv
        if self.local:
            P = self.poll(c); P.issue(p); P.check(p)
        self.ncall = 1
        p.add(self.dma_atoms(c))
        if getattr(prev, 'deferred', None): p.add(prev.deferred)
        nxt.h_setup2(p, c)
        p("s_waitcnt vmcnt(0)")
        publish(p, c, prev.pubkind, False)
        self.prefetch(p, c)
        p.add(slot_adv_rd())
        p("s_barrier")
        P = nxt.poll(c); P.issue(p); P.check(p)
        p.add(nxt.dma_atoms(c))
        p.add(nxt.dma_atoms(c))
        p(f"s_and_b32 s{S_WM}, s{S_WID}, 1")
        p.add(slot_adv_rd())
        nxt.g_setup(p, c); nxt.g_setup = lambda p, c: None
        p("s_waitcnt vmcnt(0)\ns_barrier")
    def g_epi(self, p, c): pass
    def h_body(self, p, c, nxt, skip0=False):
        if self.local: p(f"s_mov_b32 s{S_RD}, s{S_DMA}")
        else:
            p(f"""
            s_cmp_eq_u32 s{S_DMA}, 0
            s_cselect_b32 s{S_RD}, {SLOT * NSLOT}, s{S_DMA}
            s_sub_u32 s{S_RD}, s{S_RD}, {SLOT}
            """)
        self.setup(p, c)
        def e1(p):
            self.next_slot(p)
            nxt.h_setup2(p, c)
            nxt.skip_stages(p, c, 2)
            p("s_waitcnt lgkmcnt(0)\ns_barrier")
            hstep_stamp(p, c)
        def e3(p):
            p(f"s_mov_b32 s{S_DMA}, s{S_RD}")
            self.next_slot(p)
            p("s_waitcnt lgkmcnt(0)\ns_barrier")
            hstep_stamp(p, c)
            a = Atoms()
            nxt.first_extra = nxt.h_late(a, c)
            p.add(nxt.dma_atoms(c))
            p.add(a.L)
        self.loop(p, c, {self.bars[0]: e1, self.bars[1]: e3}, lambda k: [])
        return True
    def h_epi(self, p, c):
        if not self.last: return
        a = Atoms(); self.epi_sums(a, c); p.add(a.L)
        self.epi_check(p, c)
        a = Atoms(); st = self.epi_atoms(a, c); p.add(a.L); p.add(st)
    X = 18
    def epi_sums(self, p, c):
        X = self.X
        for q in range(2):
            p(f"v_add_f32 v{X+q}, v{B_L[q]}, v{B_L[q]+1}")
        for i in range(16):
            for q in range(2): p(f"v_fma_f32 v{X+q}, v{B_O[q] + i}, 0, v{X+q}")
        p(f"v_mov_b32 v{X+2}, {hexf(2.0 ** c.opt.get('lmaxlog', 64))}")
    def epi_check(self, p, c):
        X = self.X
        for q in range(2):
            Lok = c.lab("ok"); Lf = c.lab("fbk")
            p(f"v_cmp_nlt_f32 vcc, v{X+q}, v{X+2}\ns_cbranch_vccnz {Lf}")
            p.label(Lok)
            def ool(z, q=q, Lf=Lf, Lok=Lok):
                z.label(Lf)
                self.fallback(z, c, q)
                z(f"v_add_f32 v{X+q}, v{B_L[q]}, v{B_L[q]+1}\ns_branch {Lok}")
            c.ool.append(ool)
    def epi_atoms(self, p, c):
        st = c.opt.get('stflag', '')
        W = f"s[{S_WS}:{S_WS+3}]"
        X = self.X
        for q in range(2): p(f"v_rcp_f32 v{X+q}, v{X+q}")
        p(f"""
        v_and_b32 v{X+2}, 15, v0
        v_bfe_u32 v{X+3}, v0, 4, 1
        v_lshrrev_b32 v{X+4}, 5, v0
        v_mul_u32_u24 v{X+3}, {AF_PITCH}, v{X+3}
        v_lshl_add_u32 v{X+3}, v{X+2}, 4, v{X+3}
        v_lshl_add_u32 v{X+3}, v{X+4}, 8, v{X+3}
        """)
        p.atom(f"""
        s_lshl_b32 s3, s{S_QB}, 2
        s_add_u32 s3, s3, s{S_WM}
        s_mul_i32 s3, s3, {4 * AF_PITCH}
        s_lshl_b32 s4, s{S_HEAD}, 10
        s_add_u32 s3, s3, s4
        s_add_u32 s49, s3, {WS_AF + 112 * 1024}
        s_add_u32 s50, s49, {2 * AF_PITCH}
        """)
        S = []
        for q in range(2):
            p(f"v_mul_f32 v{X+q}, v{X+q}, v{B_G[q]}")
        for q in range(2):
            for i in range(16): p(f"v_mul_f32 v{B_O[q] + i}, v{B_O[q] + i}, v{X+q}")
            for i in range(8): p(f"v_cvt_pk_bf16_f32 v{B_O[q] + i}, v{B_O[q] + 2 * i}, v{B_O[q] + 2 * i + 1}")
            for u in range(2): S.append(f"buffer_store_dwordx4 {vr(B_O[q] + 4 * u, 4)}, v{X+3}, {W}, s{49 + q} offen offset:{512 * u} {st}")
        return S
    def fallback(self, p, c, q):
        ho = c.opt.get('hoflag', '')
        W = f"s[{S_WS}:{S_WS+3}]"
        L1 = c.lab("fb"); L2 = c.lab("fb")
        S = A_S[0]
        p(f"""
        s_lshl_b32 s5, s{S_HEAD}, 18
        s_add_u32 s5, s5, {WS_KV}
        s_mov_b32 s6, s5
        s_mov_b32 s7, 64
        v_mov_b32 v{B_M[q]}, 0xff800000
        """)
        p.label(L1)
        p(f"""
        buffer_load_dwordx4 {vr(A_K, 4)}, v1, {W}, s6 offen {ho}
        buffer_load_dwordx4 {vr(A_K + 4, 4)}, v1, {W}, s6 offen offset:1024 {ho}
        s_waitcnt vmcnt(0)
        """)
        p(mfma32(S, A_K, B_Q[q], "0"))
        p(mfma32(S, A_K + 4, B_Q[q] + 4))
        self.rowmax(p, S, B_M[q], True)
        p(f"s_add_u32 s6, s6, 4096\ns_sub_u32 s7, s7, 1\ns_cmp_lg_u32 s7, 0\ns_cbranch_scc1 {L1}")
        self.negmax(p, q, T0)
        p("s_mov_b32 s7, 64")
        self.cblocks(p, (q,))
        for i in range(16): p(f"v_mov_b32 v{B_O[q] + i}, 0")
        for i in range(4): p(f"v_mov_b32 v{B_L[q] + i}, 0")
        p.label(L2)
        p(f"""
        buffer_load_dwordx4 {vr(A_K, 4)}, v1, {W}, s5 offen {ho}
        buffer_load_dwordx4 {vr(A_K + 4, 4)}, v1, {W}, s5 offen offset:1024 {ho}
        buffer_load_dwordx4 {vr(B_V0[0], 4)}, v1, {W}, s5 offen offset:2048 {ho}
        buffer_load_dwordx4 {vr(B_V1[0], 4)}, v1, {W}, s5 offen offset:3072 {ho}
        s_waitcnt vmcnt(0)
        """)
        p(mfma32(S, A_K, B_Q[q], B_C[q]))
        p(mfma32(S, A_K + 4, B_Q[q] + 4))
        for i in range(16): p(f"v_exp_f32 v{S + i}, v{S + i}")
        for i in range(8): p(f"v_cvt_pk_bf16_f32 v{A_P[i // 4] + i % 4}, v{S + 2 * i}, v{S + 2 * i + 1}")
        p(mfma32(B_O[q], B_V0[0], A_P[0]))
        p(mfma32(B_O[q], B_V1[0], A_P[1]))
        p(self.LLq(q))
        p(f"s_add_u32 s5, s5, 4096\ns_sub_u32 s7, s7, 1\ns_cmp_lg_u32 s7, 0\ns_cbranch_scc1 {L2}")


S_KV, S_KVO, S_KVS = 44, 63, 100
class Host:
    def __init__(self, att, d0, hsteps, final): self.att, self.d0, self.hsteps, self.final = att, d0, hsteps, final
    def kv_setup(self, p, c, skip):
        p(f"""
        s_lshl_b32 s3, s{S_HEAD}, 18
        s_add_u32 s3, s3, {WS_KV}
        s_add_u32 s{S_KV}, s{ptr('ws')}, s3
        s_addc_u32 s{S_KV+1}, s{ptr('ws')+1}, 0
        s_mov_b32 s{S_KV+2}, 0x40000
        s_mov_b32 s{S_KV+3}, 0x20000
        s_lshl_b32 s4, s{S_WM}, 10
        s_lshl_b32 s{S_KVS}, s{S_QB}, 15
        s_add_u32 s{S_KVS}, s{S_KVS}, s4
        s_add_u32 s{S_KVO}, s4, {(self.d0 + skip) * 4096}
        s_sub_u32 s3, s{S_KVO}, 32768
        s_cmp_ge_u32 s3, s{S_KVS}
        s_cselect_b32 s{S_KVO}, s{S_KVO}, s3
        s_add_u32 s48, s4, {L_X}
        """)
    def kv_atom(self, c, slot):
        return f"""
        s_lshr_b32 s3, s{slot}, 3
        s_add_u32 m0, s3, s48
        buffer_load_dwordx4 v1, s[{S_KV}:{S_KV+3}], s{S_KVO} offen {c.opt.get('hoflag', '')} lds
        s_add_u32 s{S_KVO}, s{S_KVO}, 4096
        s_cmp_eq_u32 s{S_KVO}, s{S_KVS}
        s_cselect_b32 s3, 32768, 0
        s_add_u32 s{S_KVO}, s{S_KVO}, s3
        """
    def step(self, p, c, par, D, last):
        A = self.att
        p(f"s_lshr_b32 s3, s{S_RD}, 3\ns_add_u32 s3, s3, {L_X}\nv_add_u32 v{A_AD}, s3, v1")
        p.add(D[:2])
        t0 = 2 if par == 0 else 0
        ho = c.opt.get('horder')
        T = A.mix(A.tile(c, t0, 0, ho) + A.tile(c, t0 + 1, 0, ho), D[2:] + ["\n".join(slot_adv_rd())])
        if c.opt.get('tog'):
            T = sum(([["s_setprio 1", x, "s_setprio 0"] if (x.startswith('v_mfma') or x.startswith('v_smfmac')) else [x]][0] for x in T), [])
        p.add(T)
        if last and self.final: A.drain(p)
        if last: p("s_setprio 0")
    def finish(self, p, c, D):
        A = self.att
        if not c.opt.get('finmix', 1):
            p.add(D); A.epilogue(p, c); return 4
        a = Atoms(); A.epi_sums(a, c)
        p.add(spread(D[:4], a.L))
        A.epi_check(p, c)
        a = Atoms(); st = A.epi_atoms(a, c)
        p.add(spread(D[4:], a.L)); p.add(st)
        return 4
    def publish(self, p, c):
        p(f"""
        s_lshl_b32 s3, s{S_QB}, 5
        s_add_u32 s3, s3, s{S_HEAD}
        s_lshl_b32 s3, s3, 7
        s_lshl_b32 s4, s{S_WM}, 2
        s_add_u32 s3, s3, s4
        s_add_u32 s3, s3, {WS_FLAG + F_ATT * 32768}
        v_mov_b32 v18, 0
        v_mov_b32 v19, 1
        s_mov_b64 exec, 1
        buffer_store_dword v19, v18, s[{S_WS}:{S_WS+3}], s3 offen sc1
        s_mov_b64 exec, -1
        """)

class AttnW(AttnH):
    def __init__(self, b0, stages, pf=(), local=False, cont_in=False, hosted=0, pf2=()):
        self.pf2 = pf2
        AttnH.__init__(self, b0, stages, pf=pf, local=local)
        self.cont_in = cont_in; self.hosted = hosted
        self.last = b0 + sum(stages) + hosted == 64
        self.pubkind = F_ATT if self.last else None
    def link(self, c):
        if self.hosted:
            d0 = self.b0 + sum(self.stages)
            self.nxt.host = Host(self, d0, self.hosted + 1 if self.last else self.hosted, self.last)
            if self.last and c.opt.get('hpub', 0): self.pubkind = None
            elif self.last: self.nxt.pubstep = (self.hosted + 4) // 2 * 2
    def g_body(self, p, c, prev):
        nxt = self.nxt; H = nxt.host
        p(f"""
        s_mov_b32 s{S_WM}, s{S_WID}
        s_mov_b32 s{S_DMA}, s{S_RD}
        """)
        p.add(slot_adv_dma())
        sv = self.local; self.local = True; self.h_setup(p, c); self.local = sv
        if self.local:
            self.poll(c).group_wait(p)
        self.ncall = 1
        D = self.dma_atoms(c); p.add(D)
        p(f"s_waitcnt vmcnt({nvm(D)})")
        publish(p, c, prev.pubkind, False)
        fine = lambda: c.ST(p, 'g') if c.opt.get('fine') else None
        fine()
        W = hasattr(nxt, 'w_math')
        nxt.h_setup2(p, c)
        if H: H.kv_setup(p, c, 0)
        p(f"s_mov_b32 s42, s{S_DMA}")
        p.add(slot_adv_dma())
        p(f"s_mov_b32 s43, s{S_DMA}")
        a = Prog()
        a.add(nxt.dma_part(c, 1, 42))
        if W: nxt.w_indep(a, c)
        if hasattr(nxt, 'w_l2'): nxt.w_l2(a, c)
        self.prefetch(a, c)
        p.I += a.I
        n = 1 + sum(1 for x in a.I if x.kind == 'vmem')
        p.add(slot_adv_rd())
        p(f"s_waitcnt vmcnt({n})\ns_barrier")
        fine()
        p.add(nxt.dma_part(c, 1, 43))
        if H: p(H.kv_atom(c, 42)); p(H.kv_atom(c, 43))
        nxt.poll(c).group_wait(p)
        fine()
        if W and c.opt.get('depfirst', 1): nxt.w_dep(p, c)
        p.add(nxt.dma_part(c, 0, 42))
        p.add(nxt.dma_part(c, 0, 43))
        if W and not c.opt.get('depfirst', 1): nxt.w_dep(p, c)
        n2 = g_prefetch(p, c, [(nm, {'w2': 2, 'wo': 2, 'w3': 7, 'w4': 7}[nm] * MB, a_, n_) for nm, a_, n_ in self.pf2], vdst=4)
        if hasattr(nxt, 'w_last'): n2 += nxt.w_last(p, c)
        if c.opt.get('glow', 1) == 1: p("s_setprio 0")
        if W: nxt.w_math(p, c)
        p(f"s_and_b32 s{S_WM}, s{S_WID}, 1")
        p.add(slot_adv_rd())
        nxt.g_setup(p, c); nxt.g_setup = lambda p, c: None
        if c.opt.get('glow', 1) == 2: p("s_setprio 0")
        if not W and c.opt.get('a0only', 1):
            nxt.first_wait = n2; n2 += nxt.nA
        p(f"s_waitcnt vmcnt({n2 if getattr(nxt, 'quiet', not W) else 0})")
        if W: nxt.w_fin(p, c)
        fine()
        p("s_barrier")
    def early(self, p, c):
        if c.opt.get('glow', 1): p("s_setprio 2")
    def h_body(self, p, c, nxt, skip0=False):
        H = nxt.host
        if c.opt.get('glow', 1): p("s_setprio 1")
        if self.cont_in:
            p(f"""
            s_cmp_eq_u32 s{S_DMA}, 0
            s_cselect_b32 s{S_RD}, {SLOT * NSLOT}, s{S_DMA}
            s_sub_u32 s{S_RD}, s{S_RD}, {SLOT}
            v_add_u32 v{A_AD}, s{S_RD}, v1
            """)
        else:
            if self.local: p(f"s_mov_b32 s{S_RD}, s{S_DMA}")
            else:
                p(f"""
                s_cmp_eq_u32 s{S_DMA}, 0
                s_cselect_b32 s{S_RD}, {SLOT * NSLOT}, s{S_DMA}
                s_sub_u32 s{S_RD}, s{S_RD}, {SLOT}
                """)
            self.setup(p, c)
        def e1(p):
            self.next_slot(p)
            if not c.opt.get('prenext', 1): self.pre_next(p, c)
            p("s_waitcnt vmcnt(0) lgkmcnt(0)\ns_barrier")
            hstep_stamp(p, c)
        def e3(p):
            p(f"s_mov_b32 s{S_DMA}, s{S_RD}")
            self.next_slot(p)
            p("s_waitcnt lgkmcnt(0)\ns_barrier")
            hstep_stamp(p, c)
            if H:
                p("s_setprio 1"); return
            a = Atoms()
            nxt.first_extra = nxt.h_late(a, c)
            p.add(nxt.dma_atoms(c))
            p.add(a.L)
        self.loop(p, c, {self.bars[0]: e1, self.bars[1]: e3}, lambda k: [], self.cont_in, H is not None)
        if not H: p("s_setprio 0")
        return H is None
    def loop(self, p, c, events, pf, cont_in=False, cont_out=False):
        if not c.opt.get('unr', 1): return AttnH.loop(self, p, c, events, pf, cont_in, cont_out)
        assert all(it % 2 == 1 for it in events) and self.NI % 2 == 0
        N2 = self.NI // 2
        L = c.lab("al"); Lm = c.lab("am"); Lx = c.lab("ax")
        mask = sum(1 << (N2 - it // 2) for it in events)
        p(f"s_mov_b32 s{S_CNT}, {N2 + (1 if cont_in else 0)}")
        if not cont_in: p(f"s_branch {Lm}")
        p(f".p2align {c.opt.get('align', 5)}")
        p.label(L)
        p.add(self.tile(c, 2, 0))
        p.add(self.mix(self.tile(c, 3, 0), [f"s_sub_u32 s{S_CNT}, s{S_CNT}, 1" + ("" if cont_out else f"\ns_cmp_eq_u32 s{S_CNT}, 0")]))
        if not cont_out: p(f"s_cbranch_scc1 {Lx}")
        p.label(Lm)
        for t, o in ((0, 4096), (1, 4096), (2, 8192), (3, 8192), (0, 12288)): p.add(self.tile(c, t, o))
        p.add(self.mix(self.tile(c, 1, 12288), [f"s_bitcmp1_b32 {hex(mask)}, s{S_CNT}"]))
        p(f"v_add_u32 v{A_AD}, 16384, v{A_AD}")
        p(f"s_cbranch_scc0 {L}")
        its = sorted(events)
        for i, it in enumerate(its):
            Ln = c.lab("an")
            if i < len(its) - 1: p(f"s_cmp_eq_u32 s{S_CNT}, {N2 - it // 2}\ns_cbranch_scc0 {Ln}")
            events[it](p)
            if cont_out and i == len(its) - 1: return
            p(f"s_branch {L}")
            if i < len(its) - 1: p.label(Ln)
        p.label(Lx)
        self.drain(p)
    def pre_next(self, p, c):
        nxt = self.nxt
        nxt.h_setup2(p, c)
        nxt.skip_stages(p, c, 2)
        if nxt.host: nxt.host.kv_setup(p, c, 2)
    def drain(self, p):
        if getattr(self.nxt, 'quiet', False): p("s_waitcnt lgkmcnt(0)")
        else: AttnH.drain(self, p)
    def h_epi(self, p, c):
        if not self.hosted: AttnH.h_epi(self, p, c)
    def epilogue(self, p, c): AttnH.h_epi(self, p, c)
```

```python
from g1 import *
L_MU2 = L_X + 0
S_HB, S_NB = 63, 100
def s_prefetch(p, base, n, nm='wqkv'):
    p(f"""
    s_lshl_b32 s3, s2, 2
    s_and_b32 s4, s{S_WID}, 3
    s_add_u32 s3, s3, s4
    s_mul_i32 s3, s3, {n * 64}
    s_add_u32 s3, s3, {base}
    s_add_u32 s6, s{ptr(nm)}, s3
    s_addc_u32 s7, s{ptr(nm)+1}, 0
    """)
    for i in range(n):
        p.I.append(Inst("s_nop 0")); p.I[-1].text = f"s_load_dword s98, s[6:7], {i * 64}"

class G2(Gemm):
    NT = 8; KS = 2; nsteps = 16; nA = 8; nB = 3; fr0 = 32
    stepA = 128; stepB = 64 * 6144
    addr_regs = [8, 10, 11, 12, 13, 9]
    pubkind = F_W1
    chain = True
    h_steps = (0, 1, 2, 3, 4, 5, 6)
    def swap(self, n): return n in (4, 5)
    def xaddr(self, kk, m): return (8 + kk, m * 2048)
    def waddr(self, kk, n, j):
        if n < 6: return (10 + n % 2, (32 * kk + 4 * j) * 192 + (n // 2) * 64)
        return (12 + n % 2, (32 * kk + 4 * j) * 64)
    def aflag(self, c): return ''
    @property
    def nd(self): return 13 if self.coop else 12
    coop = True
    def dma_extra(self, c):
        return [f"s_add_u32 m0, s{S_DMA}, s50\nbuffer_load_dwordx4 v43, s[{S_B2}:{S_B2+3}], s53 offen lds\ns_add_u32 s53, s53, {64 * 2048}"] + \
               ([f"s_mov_b32 m0, {L_DUMMY}\nbuffer_load_dwordx4 v44, s[{S_B}:{S_B+3}], s{S_SO[1]} offen lds"] if self.coop else [])
    def dma_atoms(self, c):
        D = Gemm.dma_atoms(self, c)
        if c.opt.get('krot'):
            D[-1] += f"\ns_and_b32 s{S_SO[0]}, s{S_SO[0]}, 2047\ns_cselect_b32 s{S_SO[1]}, s{S_SO[1]}, 0\ns_cselect_b32 s53, s53, 0"
        return D
    def h_first(self, p, c): pass
    def h_setup(self, p, c, first=False):
        if c.opt.get('spf'): self.h_steps = tuple(range(14 if c.opt.get('spf2') else 13))
        p(f"""
        v_lshrrev_b32 v{T0}, 3, v0
        v_and_b32 v{T0+1}, 7, v0
        s_lshl_b32 s3, s{S_QB}, 8
        s_lshl_b32 s4, s{S_WM}, 6
        s_add_u32 s3, s3, s4
        v_lshrrev_b32 v{T0+2}, 1, v{T0}
        v_xor_b32 v{T0+2}, v{T0+2}, v{T0+1}
        v_add_u32 v{T0+3}, s3, v{T0}
        v_lshlrev_b32 v{T0+3}, 11, v{T0+3}
        v_lshl_add_u32 v32, v{T0+2}, 4, v{T0+3}
        v_xor_b32 v{T0+2}, 64, v32
        """)
        for i in range(1, 8): p(f"v_add_u32 v{32 + i}, {i * 8 * 2048}, v{32 if i % 2 == 0 else T0 + 2}")
        p(f"""
        s_mul_i32 s3, s{S_WM}, 192
        s_lshl_b32 s4, s{S_HEAD}, 6
        v_and_b32 v{T0+5}, 3, v0
        """)
        for i in range(3):
            p(f"""
            v_add_u32 v{T0}, s3, v0
            v_add_u32 v{T0}, {64 * i}, v{T0}
            v_mul_u32_u24 v{T0+1}, 0x1556, v{T0}
            v_lshrrev_b32 v{T0+1}, 16, v{T0+1}
            v_mul_u32_u24 v{T0+2}, 12, v{T0+1}
            v_sub_u32 v{T0+2}, v{T0}, v{T0+2}
            v_lshrrev_b32 v{T0+3}, 2, v{T0+2}
            v_lshrrev_b32 v{T0+4}, 2, v{T0+1}
            v_and_b32 v{T0+4}, 2, v{T0+4}
            v_xor_b32 v{T0+2}, v{T0+5}, v{T0+4}
            v_mul_u32_u24 v{T0+1}, 6144, v{T0+1}
            v_lshl_add_u32 v{T0+1}, v{T0+3}, 11, v{T0+1}
            v_lshl_add_u32 v{T0+1}, v{T0+2}, 4, v{T0+1}
            v_add_u32 v{40 + i}, s4, v{T0+1}
            """)
        p(f"""
        v_lshrrev_b32 v{T0}, 2, v0
        v_lshrrev_b32 v{T0+1}, 4, v0
        v_and_b32 v{T0+1}, 2, v{T0+1}
        v_xor_b32 v{T0+1}, v{T0+5}, v{T0+1}
        s_lshl_b32 s3, s{S_WM}, 4
        v_add_u32 v{T0}, s3, v{T0}
        v_lshlrev_b32 v{T0}, 11, v{T0}
        v_lshl_add_u32 v{T0}, v{T0+1}, 4, v{T0}
        s_add_u32 s{S_HB}, s{S_HEAD}, {c.opt.get('hbshift', 2)}
        s_and_b32 s{S_HB}, s{S_HB}, 31
        s_lshr_b32 s{S_NB}, s{S_HB}, 1
        s_lshl_b32 s4, s{S_HB}, 6
        v_add_u32 v43, s4, v{T0}
        s_lshl_b32 s{S_LD[0]}, s{S_WM}, 13
        s_mul_i32 s{S_LD[1]}, s{S_WM}, 3072
        s_add_u32 s{S_LD[1]}, s{S_LD[1]}, 32768
        s_lshl_b32 s50, s{S_WM}, 10
        s_add_u32 s50, s50, 45056
        s_mov_b32 s{S_SO[0]}, 0
        s_mov_b32 s{S_SO[1]}, 0
        s_mov_b32 s53, 0
        """)
        if c.opt.get('krot'):
            a, b = c.opt['krot']
            p(f"""
            s_lshr_b32 s3, s{S_XCD}, 1
            s_mul_i32 s3, s3, {a}
            s_and_b32 s4, s{S_XCD}, 1
            s_mul_i32 s4, s4, {b}
            s_add_u32 s3, s3, s4
            s_and_b32 s3, s3, 15
            s_lshl_b32 s{S_SO[0]}, s3, 7
            s_mul_i32 s{S_SO[1]}, s3, {64 * 6144}
            s_lshl_b32 s53, s3, 17
            """)
        srd(p, S_A, ptr('x'), 2048 * 2048)
        srd(p, S_B, ptr('wqkv'), 1024 * 6144)
        srd(p, S_B2, ptr('w1'), 1024 * 2048)
        if self.coop:
            p(f"""
            s_or_b32 s4, s{S_NT3}, 3
            s_lshr_b32 s3, s{ptr('wqkv')}, 7
            s_add_u32 s3, s3, s4
            s_and_b32 s3, s3, 7
            s_lshl_b32 s4, s4, 7
            s_lshr_b32 s5, s{S_IDX}, 3
            s_lshl_b32 s6, s5, 11
            s_add_u32 s4, s4, s6
            s_and_b32 s6, s{S_IDX}, 7
            s_lshl_b32 s6, s6, 2
            s_add_u32 s6, s6, s{S_WM}
            s_mul_i32 s6, s6, {2 * 6144}
            s_add_u32 s4, s4, s6
            s_add_u32 s4, s4, {c.opt.get('coopa', 1) * self.stepB}
            s_cmp_eq_u32 s3, 3
            s_cselect_b32 s3, 16, 0
            s_cmp_eq_u32 s5, 3
            s_cselect_b32 s3, 0, s3
            v_lshrrev_b32 v{T0}, 3, v0
            v_mul_u32_u24 v{T0}, 6144, v{T0}
            v_and_b32 v{T0+1}, 7, v0
            v_lshl_add_u32 v{T0}, v{T0+1}, 4, v{T0}
            v_add_u32 v{T0}, s4, v{T0}
            v_mov_b32 v{T0+1}, 0x40000000
            v_cmp_gt_u32 vcc, s3, v0
            v_cndmask_b32 v44, v{T0+1}, v{T0}, vcc
            """)
    def pf_list(self, c): return [('wqkv', 6 * MB, i, 1) for i in c.opt.get('qorder', range(6))]
    def g_first(self, p, c):
        W1F.g_first(self, p, c, False)
        srd(p, S_B, ptr('w1'), 1024 * 2048)
        p(f"""
        v_lshrrev_b32 v{T0}, 3, v0
        v_and_b32 v{T0+1}, 7, v0
        v_lshlrev_b32 v{T0}, 11, v{T0}
        v_lshl_add_u32 v{T0}, v{T0+1}, 4, v{T0}
        s_lshl_b32 s3, s{S_MT3}, 2
        s_add_u32 s3, s3, s{S_WID}
        s_lshl_b32 s3, s3, 15
        s_lshl_b32 s4, s{S_NT3}, 7
        s_add_u32 s3, s3, s4
        s_add_u32 s4, s3, {8 * 2048}
        buffer_load_dwordx4 v[88:91], v{T0}, s[{S_B}:{S_B+3}], s3 offen
        buffer_load_dwordx4 v[92:95], v{T0}, s[{S_B}:{S_B+3}], s4 offen
        """)
        g_prefetch(p, c, self.pf_list(c)[:c.opt.get('pf0', 1)])
        if c.opt.get('spf'): s_prefetch(p, c.opt.get('pf0', 1) * MB, c.opt['spf'][0])
    def early(self, p, c):
        stats_code(p, c, 64, 80, S_WID)
        for d in range(4):
            p(f"""
            v_lshlrev_b32 v{96 + 2 * d}, 16, v{88 + d}
            v_and_b32 v{97 + 2 * d}, 0xffff0000, v{88 + d}
            v_lshlrev_b32 v104, 16, v{92 + d}
            v_and_b32 v105, 0xffff0000, v{92 + d}
            v_add_f32 v{96 + 2 * d}, v{96 + 2 * d}, v104
            v_add_f32 v{97 + 2 * d}, v{97 + 2 * d}, v105
            """)
        for i in range(4): p(f"v_permlane32_swap_b32 v{96 + i}, v{100 + i}")
        for i in range(4): p(f"v_add_f32 v{96 + i}, v{96 + i}, v{100 + i}")
        for i in range(2): p(f"v_permlane16_swap_b32 v{96 + i}, v{98 + i}")
        for i in range(2): p(f"v_add_f32 v{96 + i}, v{96 + i}, v{98 + i}")
        for i in range(2): p(f"v_add_f32_dpp v{96 + i}, v{96 + i}, v{96 + i} row_ror:8 row_mask:0xf bank_mask:0xf")
        p(f"""
        v_and_b32 v104, 7, v0
        v_lshrrev_b32 v105, 4, v0
        v_lshlrev_b32 v104, 5, v104
        v_lshl_add_u32 v104, v105, 3, v104
        s_lshl_b32 s3, s{S_NT3}, 4
        s_add_u32 s3, s3, s{S_MT3}
        s_lshl_b32 s3, s3, 2
        s_add_u32 s3, s3, s{S_WID}
        s_lshl_b32 s3, s3, 8
        s_add_u32 s3, s3, {WS_CS1}
        buffer_store_dwordx2 v[96:97], v104, s[{S_WS}:{S_WS+3}], s3 offen {c.opt.get('stflag', '')}
        """)
    def g_pre_early(self, p, c):
        U = 16
        lane_fields(p, U, U + 1, U + 2, U + 3)
        p(f"""
        v_lshrrev_b32 v{U+4}, 1, v{U}
        v_xor_b32 v{U+4}, v{U+4}, v{U+1}
        v_lshlrev_b32 v{U+4}, 4, v{U+4}
        v_lshl_or_b32 v{U+4}, v{U}, 7, v{U+4}
        s_lshl_b32 s3, s{S_WID}, 13
        v_add_u32 v8, s3, v{U+4}
        v_xor_b32 v9, 64, v8
        v_and_b32 v{U+5}, 1, v{U+1}
        v_lshlrev_b32 v{U+5}, 5, v{U+5}
        v_lshl_add_u32 v{U+5}, v{U+3}, 3, v{U+5}
        v_lshl_add_u32 v{U+4}, v{U+1}, 3, v{U+2}
        v_mul_u32_u24 v{U+6}, 192, v{U+4}
        v_add_u32 v{U+6}, v{U+6}, v{U+5}
        v_add_u32 v10, 32768, v{U+6}
        v_xor_b32 v11, 32, v10
        v_lshl_add_u32 v{U+6}, v{U+4}, 6, v{U+5}
        v_add_u32 v12, 45056, v{U+6}
        v_xor_b32 v13, 32, v12
        """)
        self.g_zero(p)
    def g_setup(self, p, c): pass
    def g_sites(self, c):
        def pub(p):
            p("s_waitcnt vmcnt(0)")
            publish(p, c, F_ST, False, 28)
        if c.opt.get('stall4', 0): return {2: lambda p: p("s_waitcnt vmcnt(0)"), 4: lambda p: publish(p, c, F_ST, True, 28)}
        return {c.opt.get('stpub', 4): pub} if c.opt.get('persist') else {}
    def h_poll(self, c, t):
        if t == 2: return poll_init(c)
        if t == 14 and not c.opt.get('stsplit', 1): return self.st_poll(c)
    cpf_late = True
    def st_poll(self, c): return poll_flags(c, F_ST, S_QB, nprod=32, col_sgpr=S_NB)
    def h_pre(self, p, c, t):
        if t == 15 and c.opt.get('spf'): p('s_waitcnt lgkmcnt(0)')
        if t == 15 and c.opt.get('stsplit', 1): self.st_poll(c).group_wait(p, True)
    def h_extra(self, p, c, t):
        W = f"s[{S_WS}:{S_WS+3}]"
        ho = c.opt.get('hoflag', '')
        if c.opt.get('spf') and t <= 13:
            g, k = c.opt['spf']
            b = c.opt.get('pf0', 1) * MB + (g + k * t) * 65536
            n = min(k, (6 * MB - b) // 65536)
            if n > 0: s_prefetch(p, b, n)
            elif c.opt.get('spf2'):
                self.w2done = getattr(self, 'w2done', 0)
                n = min(k, 32 - self.w2done)
                if n > 0: s_prefetch(p, self.w2done * 65536, n, 'w2'); self.w2done += n
            return 0
        if t <= 6:
            rest = self.pf_list(c)[c.opt.get('pf0', 1):]
            k = c.opt.get('pfk', 1)
            return g_prefetch(p, c, rest[k * t:k * (t + 1)])
        if t == 15:
            p(f"""
            v_lshlrev_b32 v60, 2, v0
            s_lshl_b32 s3, s{S_QB}, 10
            s_lshl_b32 s4, s{S_WM}, 8
            s_add_u32 s3, s3, s4
            s_lshl_b32 s3, s3, 2
            s_add_u32 s3, s3, {WS_ST1}
            s_add_u32 s4, s4, {L_MU2}
            v_add_u32 v58, s4, v60
            buffer_load_dwordx2 v[80:81], v1, {W}, s3 offen {ho}
            v_lshrrev_b32 v61, 2, v0
            v_and_b32 v62, 3, v0
            v_lshlrev_b32 v61, 8, v61
            v_lshl_add_u32 v61, v62, 4, v61
            s_lshl_b32 s3, s{S_NB}, 14
            s_lshl_b32 s4, s{S_WM}, 6
            s_add_u32 s3, s3, s4
            s_add_u32 s3, s3, {WS_CS1}
            """)
            for i in range(4):
                p(f"buffer_load_dwordx4 {vr(64 + 4 * i, 4)}, v61, {W}, s3 offen {ho}")
                if i < 3: p("s_add_u32 s3, s3, 4096")
            if c.opt.get('cs3at') == 15: self.npf += cs3_loads(p, c, S_MT2, S_NT2)
            return 5 + self.npf
        if t == 14 and c.opt.get('stsplit', 1):
            P = self.st_poll(c); p(P.addr)
            p(f"s_cmp_eq_u32 s{S_WM}, 0\ns_cselect_b32 s{S_POLL}, s{S_POLL}, {WS_SIZE}")
            p(P.load)
            self.npf = self.cold_loads(p, c) + 1
            return self.npf
        if t == 14 and not c.opt.get('post14', 0): return self.cold_loads(p, c)
        return 0
    def cold_loads(self, p, c):
        self.npf = cs3_loads(p, c) if c.opt.get('cs3') else 0
        if c.opt.get('cs3at') == 14: self.npf += cs3_loads(p, c, S_MT2, S_NT2)
        self.npf += g_prefetch(p, c, c.opt.get('g2pf', [('w2', 2 * MB, 0, 2)]), vdst=160)
        return self.npf
    def h_post(self, p, c, t):
        if t == 14 and c.opt.get('post14', 0): self.cold_loads(p, c)
    def h_final(self, p, c):
        p("ds_write_b32 v58, v81 offset:1024\nv_mov_b32 v59, v80")
        G1.h_mix(self, p, c, 15)
        if c.opt.get('cs3'): cs3_math(p, c)
        if c.opt.get('cs3m'): cs3_math(p, c, S_MT2, S_NT2)
    def g_epi(self, p, c):
        st = c.opt.get('stflag', '')
        W = f"s[{S_WS}:{S_WS+3}]"
        R, G, U = 16, 17, 18
        p("s_setprio 2")
        lane_fields(p, R, G)
        p(f"""
        v_lshlrev_b32 v{U}, 9, v{G}
        v_lshl_or_b32 v8, v{R}, 4, v{U}
        v_and_b32 v{U+1}, 7, v{R}
        v_lshrrev_b32 v{U+2}, 3, v{R}
        v_lshl_or_b32 v{U}, v{U+2}, 8, v{U}
        v_lshl_or_b32 v9, v{U+1}, 4, v{U}
        s_add_u32 s{S_HB}, s{S_HEAD}, {c.opt.get('hbshift', 2)}
        s_and_b32 s{S_HB}, s{S_HB}, 31
        s_lshl_b32 s45, s{S_HB}, 10
        s_add_u32 s45, s45, {WS_HS}
        s_lshl_b32 s43, s{S_HEAD}, 18
        s_lshl_b32 s4, s{S_QB}, 15
        s_lshl_b32 s5, s{S_WID}, 13
        s_add_u32 s43, s43, s4
        s_add_u32 s43, s43, s5
        s_add_u32 s43, s43, {WS_KV}
        s_add_u32 s44, s43, 4096
        s_add_u32 s5, s5, s{S_RD}
        v_add_u32 v12, s5, v8
        v_add_u32 v13, s5, v9
        s_lshl_b32 s5, s{S_WID}, 12
        s_add_u32 s5, s5, s{S_RD}
        v_add_u32 v14, s5, v8
        s_mov_b32 s46, {hexf(QSCALE)}
        s_mov_b32 s47, {hexf(QSCALE)}
        s_and_b32 s3, s{S_HEAD}, 1
        s_lshl_b32 s3, s3, 7
        s_add_u32 s3, s3, {L_CS}
        v_lshl_add_u32 v10, v{G}, 4, s3
        s_lshl_b32 s3, s{S_WID}, 8
        s_add_u32 s3, s3, {L_MU2}
        v_lshl_add_u32 v11, v{R}, 2, s3
        """)
        t = 32
        S = []
        late = c.opt.get('kvlate', 0)
        def st_(x):
            if late: S.append(x)
            else: p(x)
        for m in range(4):
            a, b = self.acc(m, 2), self.acc(m, 3)
            for i, r in enumerate((a, a + 2, b, b + 2)): p(f"v_cvt_pk_bf16_f32 v{t + i}, v{r}, v{r + 1}")
            st_(f"buffer_store_dwordx4 {vr(t, 4)}, v9, {W}, s{43 + m // 2} offen offset:{(m % 2) * 128} {st}")
            p(f"ds_write_b128 v13, {vr(t, 4)} offset:{(m // 2) * 4096 + (m % 2) * 128}")
            t += 4
        for u in range(2):
            for nb in range(2):
                a = self.acc(2 * u, 4 + nb)
                for i in range(4): p(f"v_cvt_pk_bf16_f32 v{t + i}, v{a + 2 * i}, v{a + 2 * i + 1}")
                st_(f"buffer_store_dwordx4 {vr(t, 4)}, v8, {W}, s{43 + u} offen offset:{2048 + nb * 256} {st}")
                p(f"ds_write_b128 v12, {vr(t, 4)} offset:{u * 4096 + 2048 + nb * 256}")
                t += 4
        for m in range(4):
            a, b = self.acc(m, 0), self.acc(m, 1)
            for r in (a, a + 2, b, b + 2): p(f"v_pk_mul_f32 {vr(r, 2)}, {vr(r, 2)}, s[46:47]")
            for i, r in enumerate((a, a + 2, b, b + 2)): p(f"v_cvt_pk_bf16_f32 v{t + i}, v{r}, v{r + 1}")
            p(f"ds_write_b128 v14, {vr(t, 4)} offset:{32768 + (m // 2) * 2048 + (m % 2) * 256}")
            t += 4
        p.add(S[:2])
        p("s_waitcnt lgkmcnt(0)\ns_barrier")
        p("ds_read_b128 v[80:83], v10\nds_read_b128 v[84:87], v10 offset:64")
        for m in range(4):
            p(f"ds_read_b32 v{88 + 8 * m}, v11 offset:{64 * m}")
            p(f"ds_read_b32 v{89 + 8 * m}, v11 offset:{1024 + 64 * m}")
        p.add(S[2:])
        c.ST(p, 'g')
        for m in range(4): gelu_consts(p, 88 + 8 * m, False)
        p(f"""
        s_lshr_b32 s5, s{S_HB}, 3
        s_lshr_b32 s6, s5, 1
        s_add_u32 s6, s6, 1
        s_sub_u32 s7, 0, s6
        s_bitcmp1_b32 s5, 0
        s_cselect_b32 s6, s7, s6
        s_lshl_b32 s3, s{S_QB}, 8
        s_lshl_b32 s4, s{S_WID}, 6
        s_add_u32 s3, s3, s4
        s_add_u32 s6, s6, s3
        """)
        npub = c.opt.get('g1pub', 0)
        def pub():
            p("s_waitcnt vmcnt(%d)" % (1 if c.opt.get('stamp') else 0))
            publish(p, c, F_QKV, False, 28)
            if not c.opt.get('gfirst'): p("s_setprio 0")
            c.ST(p, 'g')
        for mp in range(2):
            if mp == npub: pub()
            items = []
            for m in (2 * mp, 2 * mp + 1):
                for n in range(2):
                    for h in range(2): items.append((self.acc(m, 6 + n) + 2 * h, 80 + 4 * n + 2 * h, 88 + 8 * m))
            gelu_block(p, items, 128, c.opt.get('pk', 1))
            for m in (2 * mp, 2 * mp + 1):
                a, b = self.acc(m, 6), self.acc(m, 7)
                t = 160 + 4 * m
                if m == 0:
                    p(f"""
                    v_add_u32 v{U}, s6, v{R}
                    v_and_b32 v{U+1}, 15, v{U}
                    v_lshl_add_u32 v{U+1}, v{G}, 4, v{U+1}
                    v_lshlrev_b32 v{U+1}, 4, v{U+1}
                    v_ashrrev_i32 v{U+2}, 4, v{U}
                    v_lshl_add_u32 v{U+1}, v{U+2}, 15, v{U+1}
                    v_and_b32 v176, 0x3fffff, v{U+1}
                    v_add_u32 v177, 32768, v{U+1}
                    v_add_u32 v178, 65536, v{U+1}
                    v_add_u32 v179, 98304, v{U+1}
                    v_and_b32 v179, 0x3fffff, v179
                    v_cmp_le_i32 vcc, 0, v{U}
                    """)
                if m == 3: p(f"v_cmp_gt_i32 vcc, 2000, v{U}")
                for i, r in enumerate((a, a + 2, b, b + 2)): p(f"v_cvt_pk_bf16_f32 v{t + i}, v{r}, v{r + 1}")
                if m in (0, 3):
                    for i in range(4): p(f"v_cndmask_b32 v{t + i}, 0, v{t + i}, vcc")
        if npub == 2: pub()
        self.deferred = [f"buffer_store_dwordx4 {vr(160 + 4 * m, 4)}, v{176 + m}, {W}, s45 offen {st}" for m in range(4)]
        if not c.opt.get('hslate', 0): p.add(self.deferred); self.deferred = []
        if not (self.nxt.adv == 8192 and c.opt.get('glow', 1)): p("s_setprio 0")

class G2N(G2):
    coop = False
```

```python
from fw import *

def lane_fields(p, r16=None, g=None, r4=None, c4=None):
    if r16 is not None: p(f"v_and_b32 v{r16}, 15, v0")
    if g is not None: p(f"v_lshrrev_b32 v{g}, 4, v0")
    if r4 is not None: p(f"v_bfe_u32 v{r4}, v0, 2, 2")
    if c4 is not None: p(f"v_and_b32 v{c4}, 3, v0")

T0 = 128

def h_xrows(p, regs, sub_off, S_MT):
    p(f"""
    v_lshrrev_b32 v{T0}, 3, v0
    v_and_b32 v{T0+1}, 7, v0
    s_lshl_b32 s3, s{S_MT}, 7
    s_lshl_b32 s4, s{S_WM}, 5
    s_add_u32 s3, s3, s4
    v_lshrrev_b32 v{T0+2}, 1, v{T0}
    v_xor_b32 v{T0+2}, v{T0+2}, v{T0+1}
    v_add_u32 v{T0+3}, s3, v{T0}
    v_lshlrev_b32 v{T0+3}, 11, v{T0+3}
    v_lshl_add_u32 v{regs[0]}, v{T0+2}, 4, v{T0+3}
    v_xor_b32 v{T0+2}, 64, v{regs[0]}
    """)
    for i, r in enumerate(regs):
        if i == 0: continue
        ii = i % 4
        src = regs[0] if ii % 2 == 0 else T0 + 2
        p(f"v_add_u32 v{r}, {ii * 8 * 2048 + sub_off(i)}, v{src}")

class QKV(Gemm):
    NT = 6; KS = 2; nsteps = 16; nA = 4; nB = 6
    stepA = 128; stepB = 64 * 6144
    addr_regs = [32, 34, 35, 33]
    pubkind = F_QKV
    h_steps = (0, 1, 2, 3, 4, 5, 6, 7)
    def swap(self, n): return n >= 4
    def xaddr(self, kk, m): return (32 + kk, m * 2048)
    def waddr(self, kk, n, j): return (34 + n % 2, (32 * kk + 4 * j) * 384 + (n // 2) * 128)
    def aflag(self, c): return c.opt.get('ldflag', '')
    def h_setup(self, p, c, first=False):
        h_xrows(p, [32, 33, 34, 35], lambda i: 0, S_MT3)
        p(f"""
        s_mul_i32 s3, s{S_WM}, 384
        s_lshl_b32 s4, s{S_NT3}, 7
        """)
        for i in range(3):
            p(f"""
            v_add_u32 v{T0}, s3, v0
            v_add_u32 v{T0}, {64 * i}, v{T0}
            v_mul_u32_u24 v{T0+1}, 0xaab, v{T0}
            v_lshrrev_b32 v{T0+1}, 16, v{T0+1}
            v_mul_u32_u24 v{T0+2}, 24, v{T0+1}
            v_sub_u32 v{T0+2}, v{T0}, v{T0+2}
            v_lshrrev_b32 v{T0+3}, 3, v{T0+2}
            v_and_b32 v{T0+2}, 7, v{T0+2}
            v_and_b32 v{T0+4}, 2, v{T0+1}
            v_xor_b32 v{T0+2}, v{T0+2}, v{T0+4}
            v_mul_u32_u24 v{T0+1}, 6144, v{T0+1}
            v_lshl_add_u32 v{T0+1}, v{T0+3}, 11, v{T0+1}
            v_lshl_add_u32 v{T0+1}, v{T0+2}, 4, v{T0+1}
            v_add_u32 v{36 + i}, s4, v{T0+1}
            v_xor_b32 v{T0+1}, 64, v{36 + i}
            v_add_u32 v{39 + i}, {8 * 6144}, v{T0+1}
            """)
        p(f"""
        s_lshl_b32 s{S_LD[0]}, s{S_WM}, 12
        s_mul_i32 s{S_LD[1]}, s{S_WM}, 6144
        s_add_u32 s{S_LD[1]}, s{S_LD[1]}, 16384
        s_mov_b32 s{S_SO[0]}, 0
        s_mov_b32 s{S_SO[1]}, 0
        """)
        srd(p, S_B, ptr('wqkv'), 1024 * 6144)
    def g_setup(self, p, c):
        lane_fields(p, T0, T0 + 1, T0 + 2, T0 + 3)
        p(f"""
        v_lshrrev_b32 v{T0+4}, 1, v{T0}
        v_xor_b32 v{T0+4}, v{T0+4}, v{T0+1}
        v_lshlrev_b32 v{T0+4}, 4, v{T0+4}
        v_lshl_or_b32 v{T0+4}, v{T0}, 7, v{T0+4}
        s_lshl_b32 s3, s{S_WM}, 13
        s_add_u32 s3, s3, s{S_RD}
        v_add_u32 v32, s3, v{T0+4}
        v_xor_b32 v33, 64, v32
        v_lshl_add_u32 v{T0+4}, v{T0+1}, 3, v{T0+2}
        v_mul_u32_u24 v{T0+4}, 384, v{T0+4}
        v_lshrrev_b32 v{T0+5}, 1, v{T0+2}
        v_and_b32 v{T0+6}, 1, v{T0+1}
        v_lshl_or_b32 v{T0+5}, v{T0+6}, 1, v{T0+5}
        s_lshl_b32 s3, s{S_WN}, 1
        v_xor_b32 v{T0+5}, s3, v{T0+5}
        v_lshl_add_u32 v{T0+4}, v{T0+5}, 5, v{T0+4}
        v_lshl_add_u32 v{T0+4}, v{T0+3}, 3, v{T0+4}
        s_add_u32 s3, s{S_RD}, 16384
        v_add_u32 v34, s3, v{T0+4}
        v_xor_b32 v35, 32, v34
        """)
        self.g_zero(p)
    def g_epi(self, p, c):
        st = c.opt.get('stflag', '')
        lane_fields(p, T0, T0 + 1)
        p(f"""
        s_waitcnt lgkmcnt(0)
        v_lshrrev_b32 v{T0+2}, 1, v{T0+1}
        v_and_b32 v{T0+3}, 1, v{T0+1}
        v_lshlrev_b32 v{T0+2}, 10, v{T0+2}
        v_lshl_or_b32 v{T0+2}, v{T0+3}, 9, v{T0+2}
        v_lshl_or_b32 v32, v{T0}, 4, v{T0+2}
        v_and_b32 v{T0+3}, 7, v{T0}
        v_lshrrev_b32 v{T0+4}, 3, v{T0}
        v_lshl_or_b32 v{T0+2}, v{T0+4}, 8, v{T0+2}
        v_lshl_or_b32 v33, v{T0+3}, 4, v{T0+2}
        s_lshl_b32 s3, s{S_NT3}, 1
        s_add_u32 s3, s3, s{S_WN}
        s_lshl_b32 s4, s{S_MT3}, 2
        s_lshl_b32 s5, s{S_WM}, 1
        s_add_u32 s4, s4, s5
        s_lshl_b32 s5, s3, 17
        s_lshl_b32 s6, s4, 11
        s_add_u32 s42, s5, s6
        s_lshl_b32 s43, s42, 1
        s_add_u32 s43, s43, {WS_KV}
        s_add_u32 s44, s43, 4096
        s_mov_b32 s46, {hexf(QSCALE)}
        s_mov_b32 s47, {hexf(QSCALE)}
        """)
        W = f"s[{S_WS}:{S_WS+3}]"
        st = c.opt.get('qkvst', st)
        t = V_FR
        for m in range(4):
            a, b = self.acc(m, 2), self.acc(m, 3)
            for i, r in enumerate((a, a + 2, b, b + 2)): p(f"v_cvt_pk_bf16_f32 v{t + i}, v{r}, v{r + 1}")
            p(f"buffer_store_dwordx4 {vr(t, 4)}, v33, {W}, s{43 + m // 2} offen offset:{(m % 2) * 128} {st}")
            t += 4
        for u in range(2):
            for nb in range(2):
                a = self.acc(2 * u, 4 + nb)
                for i in range(4): p(f"v_cvt_pk_bf16_f32 v{t + i}, v{a + 2 * i}, v{a + 2 * i + 1}")
                p(f"buffer_store_dwordx4 {vr(t, 4)}, v32, {W}, s{43 + u} offen offset:{2048 + nb * 256} {st}")
                t += 4
        for m in range(4):
            a, b = self.acc(m, 0), self.acc(m, 1)
            for r in (a, a + 2, b, b + 2): p(f"v_pk_mul_f32 {vr(r, 2)}, {vr(r, 2)}, s[46:47]")
            for i, r in enumerate((a, a + 2, b, b + 2)): p(f"v_cvt_pk_bf16_f32 v{t + i}, v{r}, v{r + 1}")
            p(f"buffer_store_dwordx4 {vr(t, 4)}, v32, {W}, s42 offen offset:{(m // 2) * 2048 + (m % 2) * 256} {st}")
            t += 4
    def h_first(self, p, c):
        srd(p, S_A, ptr('x'), 2048 * 2048)
        srd(p, S_AUX, ptr('gate'), 2048)
        p(f"""
        s_lshl_b32 s48, s{S_MT3}, 4
        s_add_u32 s48, s48, s{S_NT3}
        s_lshl_b32 s48, s48, 3
        s_lshl_b32 s3, s{S_WM}, 1
        s_add_u32 s48, s48, s3
        s_lshl_b32 s3, s48, 11
        buffer_load_dwordx4 v[64:67], v1, s[{S_A}:{S_A+3}], s3 offen
        buffer_load_dwordx4 v[68:71], v1, s[{S_A}:{S_A+3}], s3 offen offset:1024
        buffer_load_dwordx4 v[72:75], v1, s[{S_A}:{S_A+3}], s3 offen offset:2048
        buffer_load_dwordx4 v[76:79], v1, s[{S_A}:{S_A+3}], s3 offen offset:3072
        buffer_load_dwordx4 v[80:83], v1, s[{S_AUX}:{S_AUX+3}], 0 offen
        buffer_load_dwordx4 v[84:87], v1, s[{S_AUX}:{S_AUX+3}], 0 offen offset:1024
        """)
    def bflag(self, c): return c.opt.get('qbfl', '')
    def pf_list(self, c): return [('wqkv', 6 * MB, i, 1) for i in range(c.opt.get('nqpf', 6))] + [('w1', 2 * MB, i, 1) for i in range(2)]
    def g_first(self, p, c):
        n0 = c.opt.get('pf0', 1)
        g_prefetch(p, c, self.pf_list(c)[:n0])
        if c.opt.get('gpf', 0):
            srd(p, S_A, ptr('wqkv'), 6 * MB)
            srd(p, S_B, ptr('w1'), 2 * MB)
            p(f"""
            s_lshl_b32 s3, s3, 10
            s_add_u32 s{S_SO[0]}, s3, {n0 * MB}
            s_add_u32 s{S_SO[1]}, s3, {(-(6 - n0) * MB) & 0xffffffff}
            """)
    def g_loop_atoms(self, c):
        if not c.opt.get('gpf', 0) or not c.opt.get('pf', 1): return []
        L = []
        for k, r in enumerate((S_A, S_B)):
            L += [f"buffer_load_dwordx4 v1, s[{r}:{r+3}], s{S_SO[k]} offen lds", f"s_add_u32 s{S_SO[k]}, s{S_SO[k]}, {MB}"]
        return L
    def g_sites(self, c):
        if not c.opt.get('persist'): return {}
        return {9: lambda p: publish(p, c, F_ST, True)}
    def h_poll(self, c, t): return poll_init(c) if t == 6 else None
    def h_mix(self, p, c, t):
        t -= 1
        if 1 <= t <= 4:
            if t == 1:
                for a in range(48, 54): p(f"v_mov_b32 v{a}, 0")
            for i in (2 * t - 2, 2 * t - 1):
                p(f"v_lshlrev_b32 v58, 16, v{80 + i}")
                p(f"v_and_b32 v59, 0xffff0000, v{80 + i}")
                for row in range(2):
                    ag, as_, aq = 48 + row, 50 + row, 52 + row
                    x = 64 + 8 * row + i
                    p(f"""
                    v_lshlrev_b32 v56, 16, v{x}
                    v_and_b32 v57, 0xffff0000, v{x}
                    v_add_f32 v{as_}, v{as_}, v56
                    v_fmac_f32 v{aq}, v56, v56
                    v_add_f32 v{as_}, v{as_}, v57
                    v_fmac_f32 v{aq}, v57, v57
                    v_mul_f32 v56, v56, v58
                    v_mul_f32 v57, v57, v59
                    v_cvt_pk_bf16_f32 v56, v56, v57
                    v_lshlrev_b32 v57, 16, v56
                    v_and_b32 v56, 0xffff0000, v56
                    v_add_f32 v{ag}, v{ag}, v57
                    v_add_f32 v{ag}, v{ag}, v56
                    """)
        if t == 5:
            for a in (48, 50, 52): p(f"v_permlane32_swap_b32 v{a}, v{a + 1}")
            for a in (48, 50, 52): p(f"v_add_f32 v{a}, v{a}, v{a + 1}")
            for a in (48, 50, 52): p(f"v_mov_b32 v{a + 1}, v{a}")
            for a in (48, 50, 52): p(f"v_permlane16_swap_b32 v{a}, v{a + 1}")
            for a in (48, 50, 52): p(f"v_add_f32 v{a}, v{a}, v{a + 1}")
            for sh in (8, 4, 2, 1):
                for a in (48, 50, 52): p(f"v_add_f32_dpp v{a}, v{a}, v{a} row_ror:{sh} row_mask:0xf bank_mask:0xf")
        if t == 6:
            p(f"""
            v_mul_f32 v50, {hexf(1.0 / 1024)}, v50
            v_mul_f32 v52, {hexf(1.0 / 1024)}, v52
            v_fma_f32 v52, -v50, v50, v52
            v_max_f32 v52, 0, v52
            v_add_f32 v52, {hexf(1e-5)}, v52
            v_rsq_f32 v52, v52
            v_cvt_pk_bf16_f32 v48, v48, v48
            v_and_b32 v48, 0xffff0000, v48
            v_mul_f32 v48, {hexf(-LOG2E)}, v48
            v_exp_f32 v48, v48
            v_add_f32 v48, 1.0, v48
            v_rcp_f32 v48, v48
            v_cvt_pk_bf16_f32 v48, v48, v48
            v_and_b32 v48, 0xffff0000, v48
            v_sub_f32 v49, 1.0, v48
            v_cvt_pk_bf16_f32 v49, v49, v49
            v_and_b32 v49, 0xffff0000, v49
            v_lshrrev_b32 v56, 5, v0
            v_add_u32 v56, s48, v56
            v_lshlrev_b32 v56, 2, v56
            """)
    def h_extra(self, p, c, t):
        W = f"s[{S_WS}:{S_WS+3}]"
        st = c.opt.get('stflag', '')
        rest = self.pf_list(c)[c.opt.get('pf0', 1):]
        k = c.opt.get('pfk', 1)
        if t < 7:
            it = rest[k * t:k * (t + 1)] if not c.opt.get('gpf', 0) else []
            return g_prefetch(p, c, it, c.opt.get('pffl', '')) if it else 0
        if t == 7:
            p(f"""
            s_mov_b32 s3, {WS_G}
            s_mov_b32 s4, {WS_G + 8192}
            s_mov_b32 s5, {WS_ST1}
            s_mov_b32 s6, {WS_ST1 + 8192}
            s_mov_b32 exec_lo, 1
            s_mov_b32 exec_hi, 1
            buffer_store_dword v48, v56, {W}, s3 offen {st}
            buffer_store_dword v49, v56, {W}, s4 offen {st}
            buffer_store_dword v50, v56, {W}, s5 offen {st}
            buffer_store_dword v52, v56, {W}, s6 offen {st}
            s_mov_b64 exec, -1
            """)
            return 4
        return 0

class N64(Gemm):
    NT = 2; KS = 4; nA = 8; nB = 4
    stepB = 128 * 2048
    order = 'perm32'; bname = None; babytes = 1024 * 2048
    a_pitch = 32768; a_base = 0; a_size = 4 * MB
    stepA = 4096
    addr_regs = [32, 34, 35]
    def xaddr(self, kk, m): return (32, m * 4096 + kk * 1024)
    def waddr(self, kk, n, j):
        js = {'nat': 4, 'perm32': 16, 'perm32b': 8}[self.order]
        return (34 + n, (32 * kk + js * j) * 128)
    def g_body(self, p, c, prev):
        if not c.opt.get('chain64', 1) or self.order == 'nat': return Gemm.g_body(self, p, c, prev)
        xf = lambda s, m, h: 48 + 48 * s + 8 * m + 4 * h
        wf = lambda s, n, h: 48 + 48 * s + 32 + 8 * n + 4 * h
        def reads(s, kk):
            rx = lambda m: ["ds_read_b128 %s, v%d offset:%d" % ((vr(xf(s, m, h), 4),) + self.xaddr(2 * kk + h, m)) for h in range(2)]
            rw = lambda n: ["ds_read_b64_tr_b16 %s, v%d offset:%d" % ((vr(wf(s, n, h) + 2 * j, 2),) + self.waddr(2 * kk + h, n, j)) for h in range(2) for j in range(2)]
            return rx(0) + rw(0) + rx(1) + rx(2) + rx(3) + rw(1)
        def mfmas(s, c0=None):
            M = []
            for n in range(2):
                for i, m in enumerate(range(4) if n == 0 else range(3, -1, -1)):
                    for h in ((0, 1) if i % 2 == 0 else (1, 0)): M.append(mfma16(self.acc(m, n), wf(s, n, h), xf(s, m, h)))
            return M
        self.reads, self.mfmas, self.KS, self.small = reads, mfmas, 2, True
        Gemm.g_body(self, p, c, prev)
    def rotated(self, c): return c.opt.get('rot', 0)
    def h_setup_a(self, p, c):
        srd(p, S_A, ptr('ws'), self.a_size, self.a_base)
        p(f"""
        s_lshl_b32 s3, s{S_MT2}, 3
        s_lshl_b32 s4, s{S_WM}, 1
        s_add_u32 s3, s3, s4
        s_mul_i32 s3, s3, {self.a_pitch}
        """)
        if self.rotated(c):
            def emit(k):
                p(f"""
                s_lshr_b32 s4, s6, 2
                s_mul_i32 s4, s4, {self.a_pitch - 4096}
                s_add_u32 s4, s4, s7
                s_add_u32 s4, s4, s3
                v_add_u32 v{32 + k}, s4, v1
                """)
            rot_pieces(p, 8, 0, f"s_lshr_b32 s6, s{S_NT2}, 1", S_LD[0], emit)
        else:
            p("v_add_u32 v32, s3, v1")
            for i in range(1, 8): p(f"v_add_u32 v{32 + i}, {(i // 4) * self.a_pitch + (i % 4) * 1024}, v32")
        p(f"s_mov_b32 s{S_SO[0]}, {self.a_k0}")
    a_k0 = 0; b_k0 = 0
    def h_setup(self, p, c, first=False):
        p(f"""
        s_lshl_b32 s{S_LD[0]}, s{S_WM}, 13
        s_lshl_b32 s{S_LD[1]}, s{S_WM}, 12
        s_add_u32 s{S_LD[1]}, s{S_LD[1]}, 32768
        s_mov_b32 s{S_SO[1]}, {self.b_k0}
        """)
        self.h_setup_a(p, c)
        srd(p, S_B, ptr(self.bname), self.babytes)
        p(f"""
        v_lshrrev_b32 v{T0}, 3, v0
        v_and_b32 v{T0+1}, 7, v0
        v_and_b32 v{T0+2}, {2 if self.order == 'nat' else 6}, v{T0}
        v_xor_b32 v{T0+1}, v{T0+1}, v{T0+2}
        s_lshl_b32 s3, s{S_WM}, 5
        v_add_u32 v{T0}, s3, v{T0}
        v_lshlrev_b32 v{T0}, 11, v{T0}
        v_lshl_add_u32 v{T0}, v{T0+1}, 4, v{T0}
        s_lshl_b32 s4, s{S_NT2}, 7
        """)
        if self.rotated(c):
            p(f"v_add_u32 v{T0}, s4, v{T0}")
            def emit(k):
                p(f"s_lshl_b32 s4, s6, 14\nv_add_u32 v{40 + k}, s4, v{T0}")
                if self.order == 'nat': p(f"s_and_b32 s4, s6, 1\ns_lshl_b32 s4, s4, 6\nv_xor_b32 v{40 + k}, s4, v{40 + k}")
            rot_pieces(p, 4, 8, f"s_and_b32 s6, s{S_MT2}, 3", S_LD[1], emit)
        else:
            p(f"v_add_u32 v40, s4, v{T0}")
            if self.order == 'nat':
                p(f"v_xor_b32 v{T0}, 64, v40")
                p(f"v_add_u32 v41, {8 * 2048}, v{T0}\nv_add_u32 v42, {16 * 2048}, v40\nv_add_u32 v43, {24 * 2048}, v{T0}")
            else:
                for i in range(1, 4): p(f"v_add_u32 v{40 + i}, {8 * i * 2048}, v40")
    def g_setup_x(self, p, c):
        p(f"""
        s_lshl_b32 s3, s{S_WM}, 14
        s_add_u32 s3, s3, s{S_RD}
        v_add_u32 v32, s3, v1
        """)
    def g_setup(self, p, c):
        lane_fields(p, T0, T0 + 1, T0 + 2, T0 + 3)
        self.g_setup_x(p, c)
        if self.order == 'nat': p(f"v_lshl_add_u32 v{T0+4}, v{T0+1}, 3, v{T0+2}")
        elif self.order == 'perm32': p(f"v_lshl_add_u32 v{T0+4}, v{T0+1}, 2, v{T0+2}")
        else:
            p(f"""
            v_lshrrev_b32 v{T0+4}, 1, v{T0+1}
            v_lshl_add_u32 v{T0+4}, v{T0+4}, 4, v{T0+2}
            v_and_b32 v{T0+5}, 1, v{T0+1}
            v_lshl_add_u32 v{T0+4}, v{T0+5}, 2, v{T0+4}
            """)
        p(f"""
        v_lshlrev_b32 v{T0+4}, 7, v{T0+4}
        v_lshrrev_b32 v{T0+5}, 1, v{T0+2}
        v_and_b32 v{T0+6}, 1, v{T0+1}
        v_lshl_or_b32 v{T0+5}, v{T0+6}, 1, v{T0+5}
        s_lshl_b32 s3, s{S_WN}, 1
        v_xor_b32 v{T0+5}, s3, v{T0+5}
        v_lshl_add_u32 v{T0+4}, v{T0+5}, 5, v{T0+4}
        v_lshl_add_u32 v{T0+4}, v{T0+3}, 3, v{T0+4}
        s_add_u32 s3, s{S_RD}, 32768
        v_add_u32 v34, s3, v{T0+4}
        v_xor_b32 v35, 32, v34
        """)
        self.g_pre(p, c)
        self.g_zero(p)
    def g_pre(self, p, c): pass

def gelu_consts(p, b, has_og):
    rs, og, k1, k0, w, t = b + 1, b + 3, b + 2, b + 4, b + 6, b + 5
    p(f"""
    v_mul_f32 v{t}, v{rs}, v{rs}
    v_mul_f32 v{k0}, {hexf(GC0)}, v{rs}
    v_mul_f32 v{t}, v{t}, v{rs}
    v_mul_f32 v{k1}, {hexf(GC1)}, v{t}
    """)
    if has_og:
        p(f"""
        v_mul_f32 v{t}, v{og}, v{rs}
        v_rcp_f32 v{w}, v{t}
        """)
    else:
        p(f"v_rcp_f32 v{w}, v{rs}")
    p(f"v_min_f32 v{w}, {hexf(3e38)}, v{w}")

def gelu_block(p, items, tmp, pk=True):
    T = [tmp + 2 * i for i in range(len(items))]
    Z = list(zip(items, T))
    if pk:
        for (r, cs, b), t in Z: p(f"v_pk_fma_f32 {vr(r,2)}, {vr(cs,2)}, {vr(b,2)}, {vr(r,2)} op_sel_hi:[1,0,1] neg_lo:[1,0,0] neg_hi:[1,0,0]")
        for (r, cs, b), t in Z: p(f"v_pk_mul_f32 {vr(t,2)}, {vr(r,2)}, {vr(r,2)}")
        for (r, cs, b), t in Z: p(f"v_pk_fma_f32 {vr(t,2)}, {vr(t,2)}, {vr(b+2,2)}, {vr(b+4,2)} op_sel_hi:[1,0,0]")
        for (r, cs, b), t in Z: p(f"v_pk_mul_f32 {vr(t,2)}, {vr(t,2)}, {vr(r,2)}")
    else:
        for (r, cs, b), t in Z:
            for h in range(2): p(f"v_fma_f32 v{r+h}, -v{cs+h}, v{b}, v{r+h}")
        for (r, cs, b), t in Z:
            for h in range(2): p(f"v_mul_f32 v{t+h}, v{r+h}, v{r+h}")
        for (r, cs, b), t in Z:
            for h in range(2): p(f"v_fma_f32 v{t+h}, v{t+h}, v{b+2}, v{b+4}")
        for (r, cs, b), t in Z:
            for h in range(2): p(f"v_mul_f32 v{t+h}, v{t+h}, v{r+h}")
    for t in T:
        p(f"v_exp_f32 v{t}, v{t}"); p(f"v_exp_f32 v{t+1}, v{t+1}")
    for (r, cs, b), t in Z:
        if pk: p(f"v_pk_fma_f32 {vr(t,2)}, {vr(t,2)}, {vr(b+6,2)}, {vr(b+6,2)} op_sel_hi:[1,0,0]")
        else:
            for h in range(2): p(f"v_fma_f32 v{t+h}, v{t+h}, v{b+6}, v{b+6}")
    for t in T:
        p(f"v_rcp_f32 v{t}, v{t}"); p(f"v_rcp_f32 v{t+1}, v{t+1}")
    for (r, cs, b), t in Z:
        if pk: p(f"v_pk_mul_f32 {vr(r,2)}, {vr(r,2)}, {vr(t,2)}")
        else:
            for h in range(2): p(f"v_mul_f32 v{r+h}, v{r+h}, v{t+h}")

def read_tok_consts(p, base, vaddr, r16, has_og):
    p(f"""
    s_lshl_b32 s3, s{S_WM}, 8
    s_add_u32 s3, s3, {L_MU}
    v_lshl_add_u32 v{vaddr}, v{r16}, 2, s3
    """)
    for m in range(4):
        p(f"ds_read_b32 v{base + 8 * m}, v{vaddr} offset:{64 * m}")
        p(f"ds_read_b32 v{base + 8 * m + 1}, v{vaddr} offset:{512 + 64 * m}")
        if has_og: p(f"ds_read_b32 v{base + 8 * m + 3}, v{vaddr} offset:{1024 + 64 * m}")

class W1(N64):
    nsteps = 8; order = 'nat'; bname = 'w1'; stepA = 256
    addr_regs = [32, 34, 35, 33]
    pubkind = F_W1
    h_steps = (0, 1)
    xbar = True
    pubstep = 2
    def aflag(self, c): return c.opt.get('ldflag', '')
    def xaddr(self, kk, m): return (32 + kk % 2, (m // 2) * 8192 + (m % 2) * 2048 + (kk // 2) * 4096)
    def h_setup_a(self, p, c):
        srd(p, S_A, ptr('x'), 2048 * 2048)
        if self.rotated(c):
            h_xrows(p, [T0 + 4], lambda i: 0, S_MT2)
            def emit(k):
                p(f"""
                s_and_b32 s4, s6, 3
                s_lshl_b32 s4, s4, 14
                s_lshr_b32 s5, s6, 2
                s_lshl_b32 s5, s5, 7
                s_add_u32 s4, s4, s5
                v_add_u32 v{32 + k}, s4, v{T0+4}
                s_and_b32 s4, s6, 1
                s_lshl_b32 s4, s4, 6
                v_xor_b32 v{32 + k}, s4, v{32 + k}
                """)
            rot_pieces(p, 8, 0, f"s_lshr_b32 s6, s{S_NT2}, 1", S_LD[0], emit)
        else:
            h_xrows(p, list(range(32, 40)), lambda i: (i // 4) * 128, S_MT2)
        p(f"s_mov_b32 s{S_SO[0]}, 0")
    def g_setup_x(self, p, c):
        p(f"""
        v_lshrrev_b32 v{T0+4}, 1, v{T0}
        v_xor_b32 v{T0+4}, v{T0+4}, v{T0+1}
        v_lshlrev_b32 v{T0+4}, 4, v{T0+4}
        v_lshl_or_b32 v{T0+4}, v{T0}, 7, v{T0+4}
        s_lshl_b32 s3, s{S_WM}, 14
        s_add_u32 s3, s3, s{S_RD}
        v_add_u32 v32, s3, v{T0+4}
        v_xor_b32 v33, 64, v32
        """)
    lds_consts = True
    def extra_mfma(self, s, n): return [mfma16(112 + 4 * n, self.wf(s, n), 120)]
    def g_pre(self, p, c):
        for i in range(8): p(f"v_mov_b32 v{112 + i}, 0")
        for i in range(4): p(f"v_mov_b32 v{120 + i}, 0x3f803f80")
    def h_poll(self, c, t): return poll_flags(c, F_ST, S_MT2) if t == 0 else None
    def h_post(self, p, c, t):
        if t == (6 if self.nxt.late else 7): p("ds_write_b32 v58, v59\ns_waitcnt lgkmcnt(0)")
    def h_extra(self, p, c, t):
        W = f"s[{S_WS}:{S_WS+3}]"
        ho = c.opt.get('hoflag', ''); st = c.opt.get('stflag', '')
        if t == 1:
            p(f"""
            v_and_b32 v58, 31, v0
            v_lshrrev_b32 v59, 5, v0
            v_lshlrev_b32 v58, 2, v58
            v_lshl_add_u32 v60, v59, 13, v58
            v_lshl_add_u32 v58, v59, 9, v58
            s_lshl_b32 s3, s{S_MT2}, 9
            s_lshl_b32 s4, s{S_WM}, 7
            s_add_u32 s3, s3, s4
            s_add_u32 s3, s3, {WS_ST1}
            s_add_u32 s4, s4, {L_MU}
            v_add_u32 v58, s4, v58
            buffer_load_dword v59, v60, {W}, s3 offen {ho}
            """)
            return 1
        return 0
    def g_epi(self, p, c):
        st = c.opt.get('stflag', '')
        W = f"s[{S_WS}:{S_WS+3}]"
        lane_fields(p, T0, T0 + 1)
        p("s_waitcnt lgkmcnt(0)")
        if self.lds_consts: read_tok_consts(p, 144, 36, T0, False)
        for m in range(4): gelu_consts(p, 144 + 8 * m, False)
        p(f"""
        s_lshr_b32 s5, s{S_NT2}, 2
        s_lshr_b32 s6, s5, 1
        s_add_u32 s6, s6, 1
        s_sub_u32 s7, 0, s6
        s_bitcmp1_b32 s5, 0
        s_cselect_b32 s6, s7, s6
        s_lshl_b32 s3, s{S_MT2}, 7
        s_lshl_b32 s4, s{S_WM}, 6
        s_add_u32 s3, s3, s4
        s_add_u32 s6, s6, s3
        s_lshl_b32 s3, s{S_NT2}, 1
        s_add_u32 s3, s3, s{S_WN}
        s_lshl_b32 s42, s3, 10
        s_add_u32 s42, s42, {WS_HS}
        """)
        for mp in range(2):
            items = []
            for m in (2 * mp, 2 * mp + 1):
                for n in range(2):
                    for h in range(2): items.append((self.acc(m, n) + 2 * h, 112 + 4 * n + 2 * h, 144 + 8 * m))
            gelu_block(p, items, 56, c.opt.get('pk', 1))
            for m in (2 * mp, 2 * mp + 1):
                a, b = self.acc(m, 0), self.acc(m, 1)
                t = 72 + 4 * m
                p(f"""
                v_add_u32 v{T0+2}, s6, v{T0}
                v_add_u32 v{T0+2}, {16 * m}, v{T0+2}
                v_cmp_gt_u32 vcc, 2048, v{T0+2}
                v_and_b32 v{T0+2}, 2047, v{T0+2}
                v_lshrrev_b32 v{T0+3}, 4, v{T0+2}
                v_and_b32 v{T0+2}, 15, v{T0+2}
                v_lshl_add_u32 v{T0+2}, v{T0+1}, 4, v{T0+2}
                v_lshlrev_b32 v{T0+2}, 4, v{T0+2}
                v_lshl_add_u32 v{36 + m}, v{T0+3}, 15, v{T0+2}
                """)
                for i, r in enumerate((a, a + 2, b, b + 2)): p(f"v_cvt_pk_bf16_f32 v{t + i}, v{r}, v{r + 1}")
                for i in range(4): p(f"v_cndmask_b32 v{t + i}, 0, v{t + i}, vcc")
                p(f"buffer_store_dwordx4 {vr(t, 4)}, v{36 + m}, {W}, s42 offen {st}")

class W2(N64):
    nsteps = 8; order = 'perm32'; bname = 'w2'; a_base = WS_HS
    pubkind = F_W2
    def poll(self, c): return poll_flags(c, F_W1, S_MT2, halo=True)
    def h_tail(self, c):
        a = Atoms()
        h_xrows(a, [44, 45, 46, 47], lambda i: 0, S_MT2)
        srd(a, S_AUX, ptr('x'), 2048 * 2048)
        a(f"""
        s_lshl_b32 s5, s{S_NT2}, 7
        s_lshl_b32 s4, s{S_WM}, 12
        s_add_u32 s4, s4, s{S_DMA}
        s_add_u32 m0, s4, 32768
        """)
        D = [f"buffer_load_dwordx4 v{44 + i}, s[{S_AUX}:{S_AUX+3}], s5 offen lds" + ("\ns_add_u32 m0, m0, 1024" if i < 3 else "") for i in range(4)]
        D[0] = "\n".join(a.L) + "\n" + D[0]
        return D
    def g_epi(self, p, c):
        st = c.opt.get('stflag', '')
        W = f"s[{S_WS}:{S_WS+3}]"
        p(f"""
        s_waitcnt lgkmcnt(0)
        s_lshl_b32 s3, s{S_NT2}, 1
        s_add_u32 s3, s3, s{S_WN}
        s_lshl_b32 s4, s{S_MT2}, 3
        s_lshl_b32 s5, s{S_WM}, 2
        s_add_u32 s4, s4, s5
        s_lshl_b32 s42, s4, 15
        s_lshl_b32 s5, s3, 10
        s_add_u32 s42, s42, s5
        s_add_u32 s42, s42, {WS_X1}
        s_lshl_b32 s43, s3, 14
        s_lshl_b32 s5, s4, 7
        s_add_u32 s43, s43, s5
        s_add_u32 s43, s43, {WS_P2}
        """)
        lane_fields(p, T0, T0 + 1)
        p(f"""
        v_lshrrev_b32 v{T0+2}, 1, v{T0}
        v_lshrrev_b32 v{T0+3}, 1, v{T0+1}
        v_xor_b32 v{T0+2}, v{T0+2}, v{T0+3}
        s_lshl_b32 s3, s{S_WN}, 2
        v_xor_b32 v{T0+2}, s3, v{T0+2}
        v_lshlrev_b32 v{T0+2}, 4, v{T0+2}
        v_lshl_or_b32 v{T0+2}, v{T0}, 7, v{T0+2}
        v_and_b32 v{T0+3}, 1, v{T0+1}
        v_lshl_or_b32 v{T0+2}, v{T0+3}, 3, v{T0+2}
        s_lshl_b32 s3, s{S_WM}, 13
        s_add_u32 s3, s3, s{S_RD}
        v_add_u32 v37, s3, v{T0+2}
        v_xor_b32 v38, 32, v37
        """)
        for m in range(4):
            for n in range(2): p(f"ds_read_b64 {vr(160 + 4 * m + 2 * n, 2)}, v{37 + n} offset:{32768 + 2048 * m}")
        for m in range(4):
            for n in range(2):
                a = self.acc(m, n)
                for d in range(2):
                    x = 160 + 4 * m + 2 * n + d
                    p(f"v_lshlrev_b32 v48, 16, v{x}\nv_and_b32 v49, 0xffff0000, v{x}")
                    p(f"v_pk_add_f32 {vr(a + 2 * d, 2)}, {vr(a + 2 * d, 2)}, v[48:49]")
            a, b = self.acc(m, 0), self.acc(m, 1)
            t = 72 + 4 * m
            for i, r in enumerate((a, a + 2, b, b + 2)): p(f"v_cvt_pk_bf16_f32 v{t + i}, v{r}, v{r + 1}")
            p(f"buffer_store_dwordx4 {vr(t, 4)}, v1, {W}, s42 offen {st}")
            if m < 3: p(f"s_add_u32 s42, s42, 32768")
            p(f"""
            v_pk_add_f32 v[50:51], {vr(a, 2)}, {vr(a + 2, 2)}
            v_pk_mul_f32 v[52:53], {vr(a, 2)}, {vr(a, 2)}
            v_pk_add_f32 v[50:51], v[50:51], {vr(b, 2)}
            v_pk_fma_f32 v[52:53], {vr(a + 2, 2)}, {vr(a + 2, 2)}, v[52:53]
            v_pk_add_f32 v[50:51], v[50:51], {vr(b + 2, 2)}
            v_pk_fma_f32 v[52:53], {vr(b, 2)}, {vr(b, 2)}, v[52:53]
            v_pk_fma_f32 v[52:53], {vr(b + 2, 2)}, {vr(b + 2, 2)}, v[52:53]
            v_add_f32 v{56 + 2 * m}, v50, v51
            v_add_f32 v{57 + 2 * m}, v52, v53
            """)
        for i in range(4): p(f"v_permlane32_swap_b32 v{56 + i}, v{60 + i}")
        for i in range(4): p(f"v_add_f32 v{56 + i}, v{56 + i}, v{60 + i}")
        for i in range(2): p(f"v_permlane16_swap_b32 v{56 + i}, v{58 + i}")
        for i in range(2): p(f"v_add_f32 v{56 + i}, v{56 + i}, v{58 + i}")
        p(f"""
        v_lshlrev_b32 v36, 3, v0
        buffer_store_dwordx2 v[56:57], v36, {W}, s43 offen {st}
        """)

AF_PITCH = 144 * 1024
class W3(Gemm):
    NT = 7; KS = 2; nsteps = 16; nA = 4; nB = 8
    stepA = 2048; stepB = 64 * 7168
    addr_regs = [32, 33, 34, 35, 36, 37, 38, 39]
    pubkind = F_W3
    zero_first = True
    h_steps = tuple(range(1, 14))
    def poll(self, c): return poll_flags(c, F_W2, S_MT3)
    def g_sites(self, c):
        if not c.opt.get('persist'): return {}
        return {7: lambda p: publish(p, c, F_CS, True)}
    def h_poll(self, c, t): return poll_flags(c, F_CS, S_NT3) if t == 10 else None
    def h_post(self, p, c, t):
        if t == 15:
            p("""
            ds_write_b32 v56, v160
            ds_write_b32 v57, v64
            ds_write_b32 v57, v65 offset:512
            s_mov_b32 exec_hi, 0
            ds_write_b32 v58, v96 offset:1024
            s_mov_b32 exec_hi, -1
            s_waitcnt lgkmcnt(0)
            """)
    def xaddr(self, kk, m): return (32, m * 2048 + kk * 1024)
    def waddr(self, kk, n, j): return (33 + n, (32 * kk + 16 * j) * 512)
    def h_setup(self, p, c, first=False):
        srd(p, S_A, ptr('ws'), 4 * MB, WS_X1)
        srd(p, S_B, ptr('w3'), 1024 * 7168)
        p(f"""
        s_lshl_b32 s3, s{S_MT3}, 3
        s_lshl_b32 s4, s{S_WM}, 1
        s_add_u32 s3, s3, s4
        s_lshl_b32 s3, s3, 15
        v_add_u32 v32, s3, v1
        v_add_u32 v33, 1024, v32
        v_add_u32 v34, 32768, v32
        v_add_u32 v35, {32768 + 1024}, v32
        s_mul_i32 s4, s{S_NT3}, 448
        s_and_b32 s4, s4, {0xffffff80}
        s_mul_i32 s3, s{S_WM}, {16 * 7168}
        s_add_u32 s4, s4, s3
        v_lshrrev_b32 v{T0}, 5, v0
        v_and_b32 v{T0+1}, 31, v0
        v_mul_u32_u24 v{T0+2}, 7168, v{T0}
        v_add_u32 v{T0+2}, s4, v{T0+2}
        s_bitcmp1_b32 s{S_NT3}, 0
        s_cselect_b32 s5, {0 if c.opt.get('w3mask', 1) else 9}, {7 if c.opt.get('w3mask', 1) else 9}
        v_mov_b32 v{T0+5}, 0x40000000
        v_lshlrev_b32 v{T0}, 1, v{T0}
        v_xor_b32 v{T0+1}, v{T0+1}, v{T0}
        """)
        for i in range(4):
            p(f"""
            v_xor_b32 v{T0+3}, {4 * i}, v{T0+1}
            v_lshrrev_b32 v{T0+4}, 2, v{T0+3}
            v_lshl_add_u32 v{T0+3}, v{T0+3}, 4, v{T0+2}
            v_cmp_eq_u32 vcc, s5, v{T0+4}
            v_cndmask_b32 v{T0+3}, v{T0+3}, v{T0+5}, vcc
            v_add_u32 v{36 + i}, {2 * i * 7168}, v{T0+3}
            v_add_u32 v{40 + i}, {(2 * i + 8) * 7168}, v{T0+3}
            """)
        p(f"""
        s_lshl_b32 s{S_LD[0]}, s{S_WM}, 12
        s_lshl_b32 s{S_LD[1]}, s{S_WM}, 13
        s_add_u32 s{S_LD[1]}, s{S_LD[1]}, 16384
        s_mov_b32 s{S_SO[0]}, 0
        s_mov_b32 s{S_SO[1]}, 0
        """)
    def g_setup(self, p, c):
        lane_fields(p, None, T0 + 1, T0 + 2, T0 + 3)
        p(f"""
        s_lshl_b32 s3, s{S_WM}, 13
        s_add_u32 s3, s3, s{S_RD}
        v_add_u32 v32, s3, v1
        v_lshl_add_u32 v{T0+4}, v{T0+1}, 2, v{T0+2}
        v_and_b32 v{T0+5}, 7, v{T0+4}
        v_lshlrev_b32 v{T0+4}, 9, v{T0+4}
        v_lshl_add_u32 v{T0+4}, v{T0+3}, 3, v{T0+4}
        s_add_u32 s3, s{S_RD}, 16384
        v_add_u32 v{T0+4}, s3, v{T0+4}
        s_and_b32 s3, s{S_NT3}, 1
        s_lshl_b32 s3, s3, 1
        s_mul_i32 s4, s{S_WN}, 7
        s_add_u32 s3, s3, s4
        """)
        for n in range(7):
            p(f"""
            v_xor_b32 v{T0+6}, s3, v{T0+5}
            v_lshl_add_u32 v{33 + n}, v{T0+6}, 5, v{T0+4}
            s_add_u32 s3, s3, 1
            """)
        self.g_zero(p)
    def h_late(self, a, c):
        a.atom(f"""
        s_mul_i32 s53, s{S_NT3}, 448
        s_and_b32 s53, s53, {0xffffff80}
        s_lshl_b32 s4, s{S_WM}, 7
        s_add_u32 s53, s53, s4
        s_lshl_b32 s4, s{S_MT3}, 6
        v_lshrrev_b32 v{T0}, 3, v0
        v_add_u32 v{T0}, s4, v{T0}
        v_mul_u32_u24 v{T0}, 7168, v{T0}
        v_and_b32 v{T0+1}, 7, v0
        v_lshl_add_u32 v{T0}, v{T0+1}, 4, v{T0}
        """)
        for i in range(8):
            a.atom(f"buffer_load_dwordx4 {vr(160 + 4 * i, 4)}, v{T0}, s[{S_B}:{S_B+3}], s53 offen\ns_add_u32 s53, s53, {8 * 7168}")
        return 8
    def h_extra(self, p, c, t):
        W = f"s[{S_WS}:{S_WS+3}]"
        ho = c.opt.get('hoflag', ''); st = c.opt.get('stflag', '')
        n = 0
        if t == 1:
            p(f"""
            v_and_b32 v60, 15, v0
            v_lshrrev_b32 v61, 4, v0
            v_lshlrev_b32 v60, 4, v60
            v_lshl_add_u32 v62, v61, 10, v60
            v_lshl_add_u32 v63, v61, 17, v60
            v_lshlrev_b32 v60, 2, v0
            s_lshl_b32 s4, s{S_WM}, 8
            s_lshl_b32 s53, s{S_NT3}, 14
            s_add_u32 s53, s53, s4
            s_add_u32 s53, s53, {WS_CSP}
            s_lshl_b32 s49, s{S_MT3}, 10
            s_add_u32 s50, s49, s4
            s_add_u32 s49, s49, s53
            s_lshl_b32 s3, s50, 1
            s_add_u32 s3, s3, {WS_ST1 + 12}
            s_add_u32 s50, s50, {WS_P2}
            buffer_load_dword v96, v1, {W}, s3 offen {ho}
            """)
            n += 1
        if 1 <= t <= 8:
            p(f"buffer_load_dwordx4 {vr(64 + 4 * (t - 1), 4)}, v63, {W}, s50 offen {ho}\ns_add_u32 s50, s50, 16384")
            n += 1
        if t == 5:
            p(f"buffer_store_dwordx2 v[48:49], v56, {W}, s49 offen {st}")
            n += 1
        if t == 11:
            for i in range(4):
                p(f"buffer_load_dwordx4 {vr(160 + 4 * i, 4)}, v62, {W}, s53 offen {ho}\ns_add_u32 s53, s53, 4096")
            n += 4
        return n
    def h_mix(self, p, c, t):
        if t == 1:
            for i in range(8): p(f"v_mov_b32 v{48 + i}, 0")
        if 1 <= t <= 4:
            for i in (2 * t - 2, 2 * t - 1):
                for d in range(4):
                    x = 160 + 4 * i + d
                    p(f"""
                    v_lshlrev_b32 v56, 16, v{x}
                    v_and_b32 v57, 0xffff0000, v{x}
                    v_add_f32 v{48 + 2 * d}, v{48 + 2 * d}, v56
                    v_add_f32 v{49 + 2 * d}, v{49 + 2 * d}, v57
                    """)
        if t == 5:
            for i in range(4): p(f"v_permlane32_swap_b32 v{48 + i}, v{52 + i}")
            for i in range(4): p(f"v_add_f32 v{48 + i}, v{48 + i}, v{52 + i}")
            for i in range(2): p(f"v_permlane16_swap_b32 v{48 + i}, v{50 + i}")
            for i in range(2): p(f"v_add_f32 v{48 + i}, v{48 + i}, v{50 + i}")
            for i in range(2): p(f"v_add_f32_dpp v{48 + i}, v{48 + i}, v{48 + i} row_ror:8 row_mask:0xf bank_mask:0xf")
            p(f"""
            v_and_b32 v56, 7, v0
            v_lshrrev_b32 v57, 4, v0
            v_lshlrev_b32 v56, 5, v56
            v_lshl_add_u32 v56, v57, 3, v56
            """)
        if t == 10:
            for st_ in (4, 2, 1):
                for i in range(st_):
                    for d in range(4): p(f"v_add_f32 v{64 + 4 * i + d}, v{64 + 4 * i + d}, v{64 + 4 * (i + st_) + d}")
        if t == 11:
            p(f"""
            v_permlane32_swap_b32 v64, v66
            v_permlane32_swap_b32 v65, v67
            v_add_f32 v64, v64, v66
            v_add_f32 v65, v65, v67
            v_mov_b32 v66, v64
            v_mov_b32 v67, v65
            v_permlane16_swap_b32 v64, v66
            v_permlane16_swap_b32 v65, v67
            v_add_f32 v64, v64, v66
            v_add_f32 v65, v65, v67
            v_mul_f32 v64, {hexf(1.0 / 1024)}, v64
            v_mul_f32 v65, {hexf(1.0 / 1024)}, v65
            v_fma_f32 v65, -v64, v64, v65
            v_max_f32 v65, 0, v65
            v_add_f32 v65, {hexf(1e-5)}, v65
            v_rsq_f32 v65, v65
            """)
        if t == 12:
            p(f"""
            v_and_b32 v57, 15, v0
            v_lshrrev_b32 v58, 5, v0
            v_lshl_add_u32 v57, v57, 1, v58
            s_lshl_b32 s3, s{S_WM}, 7
            v_lshl_add_u32 v57, v57, 2, s3
            v_lshl_add_u32 v58, v0, 2, s3
            v_add_u32 v57, {L_MU}, v57
            v_add_u32 v58, {L_MU}, v58
            """)
        if t == 13:
            for st_ in (2, 1):
                for i in range(st_):
                    for d in range(4): p(f"v_add_f32 v{160 + 4 * i + d}, v{160 + 4 * i + d}, v{160 + 4 * (i + st_) + d}")
            p(f"""
            v_permlane32_swap_b32 v160, v162
            v_permlane32_swap_b32 v161, v163
            v_add_f32 v160, v160, v162
            v_add_f32 v161, v161, v163
            v_permlane16_swap_b32 v160, v161
            v_add_f32 v160, v160, v161
            v_and_b32 v56, 15, v0
            v_lshrrev_b32 v59, 4, v0
            v_lshl_add_u32 v56, v56, 2, v59
            s_lshl_b32 s3, s{S_WM}, 8
            v_lshl_add_u32 v56, v56, 2, s3
            v_add_u32 v56, {L_CS}, v56
            """)
    def g_epi(self, p, c):
        st = c.opt.get('stflag', '')
        W = f"s[{S_WS}:{S_WS+3}]"
        lane_fields(p, 40, 41)
        p(f"""
        s_waitcnt lgkmcnt(0)
        s_mul_i32 s3, s{S_WN}, 448
        s_and_b32 s4, s{S_NT3}, 1
        s_lshl_b32 s4, s4, 7
        s_add_u32 s3, s3, s4
        s_add_u32 s3, s3, {L_CS}
        v_lshl_add_u32 v36, v41, 4, s3
        """)
        read_tok_consts(p, 76, 37, 40, True)
        for n in range(7): p(f"ds_read_b128 {vr(48 + 4 * n, 4)}, v36 offset:{64 * n}")
        for m in range(4): gelu_consts(p, 76 + 8 * m, True)
        p(f"""
        v_lshrrev_b32 v38, 5, v0
        v_mul_u32_u24 v38, {AF_PITCH}, v38
        v_and_b32 v39, 31, v0
        v_lshl_add_u32 v38, v39, 4, v38
        s_lshl_b32 s3, s{S_MT3}, 3
        s_lshl_b32 s4, s{S_WM}, 2
        s_add_u32 s3, s3, s4
        s_mul_i32 s42, s3, {AF_PITCH}
        s_mul_i32 s3, s{S_NT3}, 14
        s_mul_i32 s4, s{S_WN}, 7
        s_add_u32 s3, s3, s4
        s_lshl_b32 s3, s3, 9
        s_add_u32 s42, s42, s3
        s_add_u32 s42, s42, {WS_AF}
        s_add_u32 s43, s42, {2 * AF_PITCH}
        """)
        for n in range(7):
            items = []
            for m in range(4):
                for h in range(2): items.append((self.acc(m, n) + 2 * h, 48 + 4 * n + 2 * h, 76 + 8 * m))
            gelu_block(p, items, 108 + 16 * (n % 2), c.opt.get('pk', 1))
            for u in range(2):
                a = self.acc(2 * u, n)
                for i in range(4): p(f"v_cvt_pk_bf16_f32 v{a + i}, v{a + 2 * i}, v{a + 2 * i + 1}")
            for u in range(2):
                a = self.acc(2 * u, n)
                p(f"v_permlane32_swap_b32 v{a}, v{a + 2}")
                p(f"v_permlane32_swap_b32 v{a + 1}, v{a + 3}")
            for u in range(2):
                a = self.acc(2 * u, n)
                p(f"buffer_store_dwordx4 {vr(a, 4)}, v38, {W}, s{42 + u} offen offset:{n * 512} {st}")

WS_XCH = 48 * MB
def xch_off(c, nt_code, wave, dst):
    if not c.opt.get('xreuse', 0):
        return f"""
        s_lshl_b32 s3, s{S_MT2}, 4
        {nt_code}
        s_add_u32 s3, s3, s4
        s_lshl_b32 s3, s3, 2
        s_add_u32 s3, s3, s{wave}
        s_lshl_b32 s3, s3, 13
        s_add_u32 s{dst}, s3, {WS_XCH}
        """
    return f"""
    {nt_code}
    s_lshl_b32 s4, s4, 1
    s_and_b32 s3, s{wave}, 1
    s_add_u32 s4, s4, s3
    s_lshl_b32 s3, s{S_MT2}, 5
    s_add_u32 s3, s3, s4
    s_lshl_b32 s3, s3, 13
    s_add_u32 s3, s3, {WS_HS}
    s_lshl_b32 s4, s4, 4
    s_add_u32 s4, s4, s{S_MT2}
    s_lshl_b32 s4, s4, 13
    s_cmp_lt_u32 s{wave}, 2
    s_cselect_b32 s{dst}, s3, s4
    """

class W4(Gemm):
    NT = 4; KS = 3; nA = 6; nB = 6
    h_steps = (15, 16)
    def __init__(self, xw=2): self.xw = xw; self.nsteps = 18 + xw
    def __call__(self): return self
    stepA = 3072; stepB = 96 * 2048
    addr_regs = [32, 33, 34, 35, 36]
    zero_first = True
    pubkind = F_XCH
    pubstep = 4
    chain = True; pubv = 28
    def poll(self, c): return poll_flags(c, F_W3, S_MT2)
    def h_poll(self, c, t): return poll_flags(c, F_ATT, S_MT2, shift=1, nprod=32) if t == 15 else None
    def h_pre(self, p, c, t):
        if t == 16:
            if not self.xw: return
            srd(p, S_B, ptr('wo'), 1024 * 2048)
            p(f"""
            s_and_b32 s3, s{S_NT2}, 1
            s_mul_i32 s{S_SO[0]}, s3, {3 * self.xw * 1024}
            s_add_u32 s{S_SO[0]}, s{S_SO[0]}, {112 * 1024}
            s_mul_i32 s{S_SO[1]}, s3, {3 * self.xw * 32 * 2048}
            """)
    def xaddr(self, kk, m): return (32, m * 3072 + kk * 1024)
    def waddr(self, kk, n, j): return (33 + n, (32 * kk + 8 * j) * 256)
    def h_setup(self, p, c, first=False):
        srd(p, S_A, ptr('ws'), 18 * MB, WS_AF)
        srd(p, S_B, ptr('w4'), 3584 * 2048)
        p(f"""
        s_lshl_b32 s3, s{S_MT2}, 3
        s_lshl_b32 s4, s{S_WM}, 1
        s_add_u32 s3, s3, s4
        s_mul_i32 s3, s3, {AF_PITCH}
        s_mul_i32 s{S_LD[0]}, s{S_WM}, 6144
        s_add_u32 s{S_LD[1]}, s{S_LD[0]}, 24576
        """)
        if self.rotated(c):
            def emit(k):
                p(f"""
                s_cmp_ge_u32 s6, 3
                s_cselect_b32 s4, {AF_PITCH - 3072}, 0
                s_add_u32 s4, s4, s7
                s_add_u32 s4, s4, s3
                v_add_u32 v{32 + k}, s4, v1
                """)
            rot_pieces(p, 6, 0, f"s_lshr_b32 s6, s{S_NT2}, 1\ns_mul_i32 s6, s6, 3\ns_lshr_b32 s6, s6, 2", S_LD[0], emit)
        else:
            p("v_add_u32 v32, s3, v1")
            for i in range(1, 6): p(f"v_add_u32 v{32 + i}, {(i // 3) * AF_PITCH + (i % 3) * 1024}, v32")
        p(f"""
        v_lshrrev_b32 v{T0}, 4, v0
        v_and_b32 v{T0+1}, 15, v0
        v_lshlrev_b32 v{T0+2}, 1, v{T0}
        v_xor_b32 v{T0+1}, v{T0+1}, v{T0+2}
        s_mul_i32 s3, s{S_WM}, 24
        v_add_u32 v{T0}, s3, v{T0}
        v_lshlrev_b32 v{T0}, 11, v{T0}
        v_lshl_add_u32 v{T0}, v{T0+1}, 4, v{T0}
        s_lshr_b32 s4, s{S_NT2}, 1
        s_lshl_b32 s4, s4, 8
        """)
        if self.rotated(c):
            p(f"v_add_u32 v{T0}, s4, v{T0}")
            def emit(k):
                p(f"s_lshl_b32 s4, s6, 13\nv_add_u32 v{38 + k}, s4, v{T0}\ns_and_b32 s4, s6, 1\ns_lshl_b32 s4, s4, 7\nv_xor_b32 v{38 + k}, s4, v{38 + k}")
            rot_pieces(p, 6, 6, f"s_and_b32 s6, s{S_MT2}, 3\ns_mul_i32 s6, s6, 3\ns_lshr_b32 s6, s6, 1", S_LD[1], emit)
        else:
            p(f"v_add_u32 v38, s4, v{T0}\nv_xor_b32 v{T0}, 128, v38")
            for i in range(1, 6): p(f"v_add_u32 v{38 + i}, {4 * i * 2048}, v{38 if i % 2 == 0 else T0}")
        p(f"""
        s_and_b32 s3, s{S_NT2}, 1
        s_mul_i32 s{S_SO[0]}, s3, {54 * 1024}
        s_mul_i32 s{S_SO[1]}, s3, {54 * 32 * 2048}
        """)
        self.coop = c.opt.get('coop4', 0)
        if self.coop or c.opt.get('scoop4'):
            p(f"""
            s_lshr_b32 s3, s{ptr('w4')}, 7
            s_sub_u32 s3, 3, s3
            s_and_b32 s3, s3, 7
            s_lshr_b32 s4, s{S_NT2}, 1
            s_lshr_b32 s5, s3, 1
            s_sub_u32 s5, s4, s5
            s_and_b32 s5, s5, 3
            s_lshr_b32 s4, s4, 2
            s_lshl_b32 s4, s4, 10
            s_lshl_b32 s3, s3, 7
            s_add_u32 s4, s4, s3
            s_sub_u32 s6, s5, 1
            s_lshl_b32 s6, s6, 2
            s_and_b32 s3, s{S_MT2}, 3
            s_add_u32 s6, s6, s3
            s_lshl_b32 s6, s6, 2
            s_add_u32 s6, s6, s{S_WM}
            s_lshl_b32 s6, s6, 12
            s_add_u32 s4, s4, s6
            s_add_u32 s4, s4, {c.opt.get('coopa', 1) * self.stepB}
            s_cmp_eq_u32 s5, 0
            s_cselect_b32 s3, 0, 16
            s_cselect_b32 s99, 0x40000000, s4
            """)
        if self.coop:
            p(f"""
            v_lshrrev_b32 v{T0}, 3, v0
            v_lshlrev_b32 v{T0}, 11, v{T0}
            v_and_b32 v{T0+1}, 7, v0
            v_lshl_add_u32 v{T0}, v{T0+1}, 4, v{T0}
            v_add_u32 v{T0}, s4, v{T0}
            v_mov_b32 v{T0+1}, 0x40000000
            v_cmp_gt_u32 vcc, s3, v0
            v_cndmask_b32 v44, v{T0+1}, v{T0}, vcc
            """)
    def h_every(self, p, c, t):
        if not c.opt.get('scoop4') or self.in_host: return
        if t is None or t <= self.nsteps - 4:
            p(f"s_add_u32 s3, s99, s{S_SO[1]}")
            if c.opt['scoop4'] == 2: p(f"s_sub_u32 s3, s3, {self.stepB}")
            p(f"s_sub_u32 s4, s{S_B+2}, 4096\ns_min_u32 s3, s3, s4")
            for o in (0, 64, 2048, 2112):
                p.I.append(Inst("s_nop 0")); p.I[-1].text = f"s_buffer_load_dword s98, s[{S_B}:{S_B+3}], s3 offset:{hex(o)}"
    def w_l2(self, p, c):
        s0, ns = c.opt.get('l2w4', (0, 0))
        if not ns: return
        p(f"""
        s_and_b32 s3, s{S_MT2}, 3
        s_lshl_b32 s3, s3, 2
        s_add_u32 s3, s3, s{S_WM}
        s_mul_i32 s3, s3, {6 * ns * 2048}
        s_and_b32 s4, s{S_NT2}, 1
        s_mul_i32 s4, s4, {54 * 32 * 2048}
        s_add_u32 s3, s3, s4
        s_lshr_b32 s4, s{S_NT2}, 1
        s_lshl_b32 s4, s4, 8
        s_add_u32 s3, s3, s4
        s_add_u32 s3, s3, {s0 * self.stepB}
        v_lshrrev_b32 v{T0}, 4, v0
        v_and_b32 v{T0+1}, 15, v0
        v_lshlrev_b32 v{T0}, 11, v{T0}
        v_lshl_add_u32 v{T0}, v{T0+1}, 4, v{T0}
        s_mov_b32 m0, {L_DUMMY}
        """)
        for i in range(6 * ns // 4): p(f"buffer_load_dwordx4 v{T0}, s[{S_B}:{S_B+3}], s3 offen lds\ns_add_u32 s3, s3, {4 * 2048}")
    @property
    def nd(self): return 13 if self.coop else 12
    def dma_extra(self, c):
        return [f"s_mov_b32 m0, {L_DUMMY}\nbuffer_load_dwordx4 v44, s[{S_B}:{S_B+3}], s{S_SO[1]} offen lds"] if self.coop else []
    def rotated(self, c): return c.opt.get('rot', 0)
    def g_setup(self, p, c):
        lane_fields(p, None, T0 + 1, T0 + 2, T0 + 3)
        p(f"""
        s_mul_i32 s3, s{S_WM}, 12288
        s_add_u32 s3, s3, s{S_RD}
        v_add_u32 v32, s3, v1
        v_and_b32 v{T0+5}, 1, v{T0+1}
        v_lshl_add_u32 v{T0+5}, v{T0+5}, 2, v{T0+2}
        v_lshrrev_b32 v{T0+4}, 1, v{T0+1}
        v_lshl_add_u32 v{T0+4}, v{T0+4}, 4, v{T0+5}
        v_lshlrev_b32 v{T0+4}, 8, v{T0+4}
        v_lshl_add_u32 v{T0+4}, v{T0+3}, 3, v{T0+4}
        s_add_u32 s3, s{S_RD}, 24576
        v_add_u32 v{T0+4}, s3, v{T0+4}
        s_and_b32 s3, s{S_NT2}, 1
        s_lshl_b32 s3, s3, 2
        s_lshl_b32 s4, s{S_WN}, 1
        s_add_u32 s3, s3, s4
        v_xor_b32 v{T0+6}, s3, v{T0+5}
        v_lshl_add_u32 v35, v{T0+6}, 5, v{T0+4}
        v_xor_b32 v36, 32, v35
        v_xor_b32 v33, 128, v35
        v_xor_b32 v34, 160, v35
        """)
    def g_epi(self, p, c):
        st = c.opt.get('stflag', '')
        p(xch_off(c, f"s_mov_b32 s4, s{S_NT2}", S_WID, 3))
        p("s_add_u32 s4, s3, 4096")
        if c.opt.get('xbf'):
            for m in range(4):
                a, b = self.acc(m, 0), self.acc(m, 1)
                for i, r in enumerate((a, a + 2, b, b + 2)): p(f"v_cvt_pk_bf16_f32 v{144 + 4 * m + i}, v{r}, v{r + 1}")
                if self.pubkind is None:
                    for i in range(4): p(f"v_min_u32 v{144 + 4 * m + i}, -2, v{144 + 4 * m + i}")
                p(f"buffer_store_dwordx4 {vr(144 + 4 * m, 4)}, v1, s[{S_WS}:{S_WS+3}], s3 offen offset:{m * 1024} {st}")
        else:
          for i in range(8):
            p(f"buffer_store_dwordx4 {vr(192 + 4 * i, 4)}, v1, s[{S_WS}:{S_WS+3}], s{3 + i // 4} offen offset:{(i % 4) * 1024} {st}")
        p("s_waitcnt lgkmcnt(0)")
        if c.opt.get('xpub0'):
            self.nxt.g_setup(p, c); self.nxt.g_setup = lambda p, c: None
            p("s_waitcnt vmcnt(4)")
            publish(p, c, F_XCH, False, 28)
            self.pubkind = None

class WO(N64):
    def __init__(self, xw=2, xbar=False, pubstep=2): self.xw = xw; self.nsteps = 9 - 3 * xw // 2; self.xbar = xbar; self.pubstep = pubstep
    def __call__(self): return self
    order = 'perm32b'; bname = 'w4'; babytes = 3584 * 2048
    a_base = WS_AF; a_size = 18 * MB; a_pitch = AF_PITCH; a_k0 = 108 * 1024
    b_k0 = 108 * 32 * 2048
    ncall = 0; pubv = 28
    def dma_atoms(self, c):
        D = N64.dma_atoms(self, c)
        if self.ncall == 0:
            a = Atoms(); srd(a, S_B, ptr('wo'), 1024 * 2048)
            a(f"s_mov_b32 s{S_SO[0]}, {(112 + 6 * self.xw) * 1024}\ns_mov_b32 s{S_SO[1]}, {6 * self.xw * 32 * 2048}")
            D[-1] += "\n" + "\n".join(a.L)
        self.ncall += 1
        return D
    def h_poll(self, c, t):
        m = c.opt.get('xmode', 0)
        if (m == 1 and t == self.nsteps - 2) or (m == 2 and t == self.nsteps - 1): return poll_flags(c, F_XCH, S_MT2, single=S_NT2)
    def h_pre(self, p, c, t):
        if t == self.nsteps - 2 and c.opt.get('xmode', 0) == 0: poll_flags(c, F_XCH, S_MT2, single=S_NT2).issue(p)
        if t == self.nsteps - 1 and c.opt.get('xmode', 0) == 3: poll_flags(c, F_XCH, S_MT2, single=S_NT2).issue(p)
    def h_extra(self, p, c, t):
        if t == self.nsteps - 1 and c.opt.get('xmode', 0) != 2:
            if c.opt.get('xmode', 0) in (0, 3): poll_flags(c, F_XCH, S_MT2, single=S_NT2).check(p)
            p.add(self.xch)
            return len(self.xch)
        return 0
    def h_epi(self, p, c):
        if c.opt.get('xmode', 0) == 2: p.add(self.xch)
        p("s_waitcnt vmcnt(0)\ns_barrier")
        hstep_stamp(p, c)
    def g_zero(self, p): pass
    def h_tail(self, c):
        ho = c.opt.get('hoflag', '')
        W = f"s[{S_WS}:{S_WS+3}]"
        pre = xch_off(c, f"s_xor_b32 s4, s{S_NT2}, 1", S_WM, 49) + f"""
        s_lshl_b32 s3, s{S_NT2}, 1
        s_lshr_b32 s4, s{S_WM}, 1
        s_add_u32 s3, s3, s4
        s_lshl_b32 s3, s3, 10
        s_lshl_b32 s4, s{S_MT2}, 1
        s_and_b32 s5, s{S_WM}, 1
        s_add_u32 s4, s4, s5
        s_lshl_b32 s4, s4, 17
        s_add_u32 s3, s3, s4
        s_add_u32 s50, s3, {WS_X1}
        s_mul_i32 s4, s{S_WM}, 12288
        s_add_u32 m0, s4, s{S_DMA}
        """
        D = []
        for m in range(4): D.append(f"buffer_load_dwordx4 v1, {W}, s50 offen {ho} lds\ns_add_u32 s50, s50, 32768\ns_add_u32 m0, m0, 1024")
        for i in range(8):
            D.append(f"buffer_load_dwordx4 v1, {W}, s49 offen offset:{(i % 4) * 1024} {ho} lds" + ("\ns_add_u32 s49, s49, 4096\ns_add_u32 m0, m0, 4096" if i == 3 else ""))
        D[0] = pre + D[0]
        self.xch = D[4:8] if c.opt.get('xbf') else D[4:]
        return D[:4]
    def g_pre(self, p, c):
        ho = c.opt.get('hoflag', '')
        p(f"""
        s_lshl_b32 s4, s{S_MT2}, 11
        s_lshl_b32 s5, s{S_WM}, 10
        s_add_u32 s4, s4, s5
        s_add_u32 s4, s4, {WS_ST1 + 12}
        v_lshlrev_b32 v36, 4, v{T0}
        """)
        for m in range(4): p(f"buffer_load_dword v{176 + 2 * m}, v36, s[{S_WS}:{S_WS+3}], s4 offen offset:{256 * m} {ho}")
    def g_epi(self, p, c):
        st = c.opt.get('outflag', '')
        p(f"""
        s_mul_i32 s3, s{S_WID}, 12288
        s_add_u32 s3, s3, s{S_RD}
        v_add_u32 v37, s3, v1
        """)
        for m in range(4): p(f"ds_read_b128 {vr(96 + 4 * m, 4)}, v37 offset:{1024 * m}")
        srd(p, S_AUX, ptr('out'), 2048 * 2048)
        lane_fields(p, T0, T0 + 1)
        p(f"""
        s_lshl_b32 s3, s{S_MT2}, 7
        s_lshl_b32 s4, s{S_WM}, 6
        s_add_u32 s3, s3, s4
        v_add_u32 v36, s3, v{T0}
        v_lshlrev_b32 v36, 11, v36
        v_and_b32 v{T0+2}, 1, v{T0+1}
        v_lshrrev_b32 v{T0+3}, 1, v{T0+1}
        v_lshl_add_u32 v36, v{T0+2}, 5, v36
        v_lshl_add_u32 v36, v{T0+3}, 4, v36
        s_lshl_b32 s3, s{S_NT2}, 7
        s_lshl_b32 s4, s{S_WN}, 6
        s_add_u32 s42, s3, s4
        """)
        for m in range(4):
            for n in range(2):
                a = self.acc(m, n)
                for d in range(2):
                    x = 96 + 4 * m + 2 * n + d
                    p(f"v_lshlrev_b32 v48, 16, v{x}\nv_and_b32 v49, 0xffff0000, v{x}")
                    p(f"v_pk_fma_f32 {vr(a + 2 * d, 2)}, v[48:49], {vr(176 + 2 * m, 2)}, {vr(a + 2 * d, 2)} op_sel_hi:[1,0,1]")
        if hasattr(self, 'xwait'): self.xwait(p, c)
        else: p("s_barrier")
        for m in range(0 if hasattr(self, 'xwait') else 4):
            for n in range(1 if c.opt.get('xbf') else 2): p(f"ds_read_b128 {vr(144 + 4 * (4 * n + m), 4)}, v37 offset:{4096 + 1024 * (4 * n + m)}")
        for m in range(4):
            a, b = self.acc(m, 0), self.acc(m, 1)
            if c.opt.get('xbf'):
                for i in range(4): p(f"v_lshlrev_b32 v{48 + 2 * i}, 16, v{144 + 4 * m + i}\nv_and_b32 v{49 + 2 * i}, 0xffff0000, v{144 + 4 * m + i}")
                for i, r in enumerate((a, a + 2, b, b + 2)): p(f"v_pk_add_f32 {vr(r, 2)}, {vr(r, 2)}, {vr(48 + 2 * i, 2)}")
            else:
                for r in (a, a + 2, b, b + 2): p(f"v_pk_add_f32 {vr(r, 2)}, {vr(r, 2)}, {vr(r - 80, 2)}")
            t = 72 + 4 * m
            for i, r in enumerate((a, a + 2, b, b + 2)): p(f"v_cvt_pk_bf16_f32 v{t + i}, v{r}, v{r + 1}")
            p(f"v_permlane16_swap_b32 v{t}, v{t + 2}")
            p(f"v_permlane16_swap_b32 v{t + 1}, v{t + 3}")
            p(f"buffer_store_dwordx4 {vr(t, 4)}, v36, s[{S_AUX}:{S_AUX+3}], s42 offen {st}")
            if m < 3: p(f"s_add_u32 s42, s42, {16 * 2048}")


def stats_code(p, c, xs, gs, wave):
    W = f"s[{S_WS}:{S_WS+3}]"
    st = c.opt.get('stflag', '')
    q = QKV()
    for t in range(2, 8): QKV.h_mix(q, p, c, t)
    p(f"""
    v_mov_b32 v51, v52
    v_mov_b32 v52, v48
    v_mov_b32 v53, v49
    v_lshlrev_b32 v56, 2, v56
    s_mov_b32 s5, {WS_ST1}
    s_mov_b32 exec_lo, 1
    s_mov_b32 exec_hi, 1
    buffer_store_dwordx4 v[50:53], v56, {W}, s5 offen {st}
    s_mov_b64 exec, -1
    """)

class W1F(W1):
    xbar = False
    h_steps = (0, 1, 2, 3, 4, 5)
    def h_first(self, p, c): pass
    def g_first(self, p, c, pf=True):
        srd(p, S_A, ptr('x'), 2048 * 2048)
        srd(p, S_B, ptr('gate'), 2048)
        p(f"""
        s_lshl_b32 s48, s{S_MT3}, 4
        s_add_u32 s48, s48, s{S_NT3}
        s_lshl_b32 s48, s48, 3
        s_lshl_b32 s3, s{S_WID}, 1
        s_add_u32 s48, s48, s3
        s_lshl_b32 s3, s48, 11
        buffer_load_dwordx4 v[64:67], v1, s[{S_A}:{S_A+3}], s3 offen
        buffer_load_dwordx4 v[68:71], v1, s[{S_A}:{S_A+3}], s3 offen offset:1024
        buffer_load_dwordx4 v[72:75], v1, s[{S_A}:{S_A+3}], s3 offen offset:2048
        buffer_load_dwordx4 v[76:79], v1, s[{S_A}:{S_A+3}], s3 offen offset:3072
        buffer_load_dwordx4 v[80:83], v1, s[{S_B}:{S_B+3}], 0 offen
        buffer_load_dwordx4 v[84:87], v1, s[{S_B}:{S_B+3}], 0 offen offset:1024
        """)
        if pf: g_prefetch(p, c, [('w1', 2 * MB, i, 1) for i in range(2)])
    def early(self, p, c): stats_code(p, c, 64, 80, S_WID)
    def h_poll(self, c, t):
        if t == 0: return poll_init(c)
        if t == 5: return poll_flags(c, F_ST, S_MT2)
    def h_post(self, p, c, t): pass
    def h_extra(self, p, c, t):
        L = c.opt.get('w1pf', {1: [0], 2: [1], 3: [2]})
        return g_prefetch(p, c, [('wqkv', 6 * MB, i, 1) for i in L[t]]) if t in L else 0
    def g_sites(self, c):
        def pub(p):
            p("s_waitcnt vmcnt(0)")
            publish(p, c, F_ST, False)
        def ld(p):
            ho = c.opt.get('hoflag', '')
            p(f"""
            s_lshl_b32 s3, s{S_MT2}, 9
            s_lshl_b32 s4, s{S_WM}, 8
            s_add_u32 s3, s3, s4
            s_add_u32 s3, s3, {WS_ST1}
            s_add_u32 s4, s3, 8192
            v_and_b32 v36, 15, v0
            v_lshlrev_b32 v36, 2, v36
            """)
            for m in range(4):
                p(f"buffer_load_dword v{144 + 8 * m}, v36, s[{S_WS}:{S_WS+3}], s3 offen offset:{64 * m} {ho}")
                p(f"buffer_load_dword v{145 + 8 * m}, v36, s[{S_WS}:{S_WS+3}], s4 offen offset:{64 * m} {ho}")
        return {1: pub, 6: ld}
    lds_consts = False

class QKV2(QKV):
    h_steps = (0,)
    zero_first = True
    def h_setup(self, p, c, first=False):
        srd(p, S_A, ptr('x'), 2048 * 2048)
        QKV.h_setup(self, p, c)
    def g_sites(self, c): return {}
    def h_poll(self, c, t): return None
    def h_mix(self, p, c, t): pass
    def h_extra(self, p, c, t):
        if t == 0: return g_prefetch(p, c, c.opt.get('qpf', [('wqkv', 6 * MB, 3, 3)]))
        if t == 9: return g_prefetch(p, c, [('w2', 2 * MB, 0, 2)])
        return 0
    h_steps = (0, 9)

class W2X(W2):
    xbar = True
    pubstep = 2

class QKVG(QKV):
    h_steps = (0, 1, 2, 3, 4, 5, 6)
    def h_first(self, p, c): srd(p, S_A, ptr('x'), 2048 * 2048)
    def g_first(self, p, c):
        W1F.g_first(self, p, c, False)
        QKV.g_first(self, p, c)
    def early(self, p, c): stats_code(p, c, 64, 80, S_WID)
    def h_mix(self, p, c, t): pass
    def h_extra(self, p, c, t): return QKV.h_extra(self, p, c, t) if t < 7 else 0
    def g_sites(self, c):
        def pub(p):
            p("s_waitcnt vmcnt(0)")
            publish(p, c, F_ST, False)
        return {7: pub}


def cs3_loads(a, c, S_MT3=S_MT3, S_NT3=S_NT3, dst=160):
    t = Atoms()
    srd(t, S_AUX, ptr('w3'), 1024 * 7168)
    t(f"""
    s_mul_i32 s6, s{S_NT3}, 448
    s_and_b32 s6, s6, {0xffffff80}
    s_lshl_b32 s4, s{S_WM}, 7
    s_add_u32 s6, s6, s4
    s_lshl_b32 s4, s{S_MT3}, 6
    v_lshrrev_b32 v{T0}, 3, v0
    v_add_u32 v{T0}, s4, v{T0}
    v_mul_u32_u24 v{T0}, 7168, v{T0}
    v_and_b32 v{T0+1}, 7, v0
    v_lshl_add_u32 v{T0}, v{T0+1}, 4, v{T0}
    """)
    a("\n".join(t.L))
    for i in range(8):
        a(f"buffer_load_dwordx4 {vr(dst + 4 * i, 4)}, v{T0}, s[{S_AUX}:{S_AUX+3}], s6 offen\ns_add_u32 s6, s6, {8 * 7168}")
    return 8
def cs3_math(p, c, *ids):
    q = W3()
    for t in range(1, 6): W3.h_mix(q, p, c, t)
    cs3_store(p, c, *ids)
def cs3_store(p, c, S_MT3=S_MT3, S_NT3=S_NT3):
    p(f"""
    s_lshl_b32 s3, s{S_NT3}, 4
    s_add_u32 s3, s3, s{S_MT3}
    s_lshl_b32 s3, s3, 2
    s_add_u32 s3, s3, s{S_WM}
    s_lshl_b32 s3, s3, 8
    s_add_u32 s3, s3, {WS_CSP}
    buffer_store_dwordx2 v[48:49], v56, s[{S_WS}:{S_WS+3}], s3 offen {c.opt.get('stflag', '')}
    """)

class W3E(W3):
    h_steps = (2, 3, 4, 5)
    chain = True
    def g_sites(self, c): return {}
    def h_poll(self, c, t): return None
    def poll(self, c):
        P = poll_flags(c, F_W2, S_MT3)
        P.addr += f"""
        v_and_b32 v138, 14, v0
        v_lshlrev_b32 v138, 4, v138
        v_and_b32 v139, 1, v0
        s_lshl_b32 s3, s{S_NT3}, 1
        v_add3_u32 v138, v138, v139, s3
        v_lshlrev_b32 v138, 7, v138
        v_add_u32 v136, {(F_W2 - F_W1) * 32768}, v136
        v_cmp_gt_u32 vcc, 32, v0
        v_cndmask_b32 v136, v138, v136, vcc
        s_mov_b32 s{S_POLL}, {WS_FLAG + F_W1 * 32768}
        """
        return P
    def h_late(self, a, c):
        W = f"s[{S_WS}:{S_WS+3}]"
        ho = c.opt.get('hoflag', '')
        a.atom(f"""
        v_and_b32 v{T0}, 15, v0
        v_lshrrev_b32 v{T0+1}, 4, v0
        v_lshlrev_b32 v{T0}, 4, v{T0}
        v_lshl_add_u32 v{T0+2}, v{T0+1}, 10, v{T0}
        v_lshl_add_u32 v{T0+3}, v{T0+1}, 17, v{T0}
        v_lshlrev_b32 v{T0+4}, 2, v0
        s_lshl_b32 s53, s{S_NT3}, 14
        s_lshl_b32 s4, s{S_WM}, 8
        s_add_u32 s53, s53, s4
        s_add_u32 s53, s53, {WS_CSP}
        s_lshl_b32 s50, s{S_MT3}, 10
        s_add_u32 s50, s50, s4
        s_lshr_b32 s49, s50, 1
        s_add_u32 s49, s49, {WS_G + 8192}
        s_add_u32 s50, s50, {WS_P2}
        """)
        for i in range(4): a.atom(f"buffer_load_dwordx4 {vr(160 + 4 * i, 4)}, v{T0+2}, {W}, s53 offen {ho}\ns_add_u32 s53, s53, 4096")
        for i in range(8): a.atom(f"buffer_load_dwordx4 {vr(176 + 4 * i, 4)}, v{T0+3}, {W}, s50 offen {ho}\ns_add_u32 s50, s50, 16384")
        a.atom(f"buffer_load_dword v208, v{T0+4}, {W}, s49 offen {ho}")
        return 13
    def h_extra(self, p, c, t): return 0
    def h_mix(self, p, c, t):
        if t == 2:
            for i in range(4):
                for d in range(4): p(f"v_add_f32 v{64 + 4 * i + d}, v{176 + 4 * i + d}, v{192 + 4 * i + d}")
            for st_ in (2, 1):
                for i in range(st_):
                    for d in range(4): p(f"v_add_f32 v{64 + 4 * i + d}, v{64 + 4 * i + d}, v{64 + 4 * (i + st_) + d}")
            p("v_mov_b32 v96, v208")
        if t in (3, 4, 5): W3.h_mix(self, p, c, t + 8)

class W2C(W2):
    h_steps = (1, 2, 3, 4, 5)
    def h_late(self, a, c):
        if c.opt.get('cs3at') != 'late': return 0
        t = Atoms(); n = cs3_loads(t, c, S_MT2, S_NT2); a.atom("\n".join(t.L)); return n
    def h_mix(self, p, c, t):
        if 1 <= t <= 5: W3.h_mix(self, p, c, t)
    def h_extra(self, p, c, t):
        if t == 5:
            cs3_store(p, c, S_MT2, S_NT2); return 1
        return 0
class W3F(W3E):
    def poll(self, c): return poll_flags(c, F_W2, S_MT3, col_sgpr=S_NT3)

class W3G(W3F):
    h_steps = tuple(range(1, 14))
    def h_late(self, a, c): return 0
    def h_extra(self, p, c, t):
        W = f"s[{S_WS}:{S_WS+3}]"
        ho = c.opt.get('hoflag', '')
        n = W3.h_extra(self, p, c, t) if (1 <= t <= 8 and t != 5) else 0
        if t == 5:
            p(f"buffer_load_dwordx4 {vr(64 + 4 * (t - 1), 4)}, v63, {W}, s50 offen {ho}\ns_add_u32 s50, s50, 16384"); n = 1
        if 8 <= t <= 11:
            p(f"buffer_load_dwordx4 {vr(160 + 4 * (t - 8), 4)}, v62, {W}, s53 offen {ho}\ns_add_u32 s53, s53, 4096"); n += 1
        return n
    def h_mix(self, p, c, t):
        if t >= 10: W3.h_mix(self, p, c, t)

class W3W(W3E):
    h_steps = (13,)
    pubv = 28
    def poll(self, c): return poll_flags(c, F_W2, S_MT3)
    def h_late(self, a, c): return 0
    def g_sites(self, c):
        return {2: lambda p: publish(p, c, F_CS, False, 28)} if c.opt.get('persist') else {}
    def h_poll(self, c, t): return poll_flags(c, F_CS, S_NT3) if t == 13 else None
    def w_indep(self, p, c): cs3_loads(p, c)
    def w_dep(self, p, c):
        for t in range(1, 9): W3G.h_extra(self, p, c, t) if t < 8 else W3.h_extra(self, p, c, t)
    def w_math(self, p, c):
        cs3_math(p, c)
        for t in (10, 11, 12): W3.h_mix(self, p, c, t)
    def w_fin(self, p, c):
        p("""
        ds_write_b32 v57, v64
        ds_write_b32 v57, v65 offset:512
        s_mov_b32 exec_hi, 0
        ds_write_b32 v58, v96 offset:1024
        s_mov_b32 exec_hi, -1
        s_waitcnt lgkmcnt(0)
        """)
    def h_pre(self, p, c, t):
        if t == 14:
            p(f"""
            v_and_b32 v60, 15, v0
            v_lshrrev_b32 v61, 4, v0
            v_lshlrev_b32 v60, 4, v60
            v_lshl_add_u32 v62, v61, 10, v60
            s_lshl_b32 s4, s{S_WM}, 8
            s_lshl_b32 s53, s{S_NT3}, 14
            s_add_u32 s53, s53, s4
            s_add_u32 s53, s53, {WS_CSP}
            """)
    def h_extra(self, p, c, t): return W3.h_extra(self, p, c, 11) if t == 14 else 0
    def h_mix(self, p, c, t):
        if t == 15: W3.h_mix(self, p, c, 13)
    def h_post(self, p, c, t):
        if t == 15: p("ds_write_b32 v56, v160\ns_waitcnt lgkmcnt(0)")

class W2D(W2):
    def w_l2(self, p, c):
        if not c.opt.get('l2w2', 0): return
        p(f"""
        s_and_b32 s3, s{S_MT2}, 3
        s_lshl_b32 s3, s3, 14
        s_add_u32 s3, s3, {2 * self.stepB}
        s_mov_b32 m0, {L_DUMMY}
        """)
        for i in range(6): p(f"buffer_load_dwordx4 v40, s[{S_B}:{S_B+3}], s3 offen lds\ns_add_u32 s3, s3, {self.stepB}")
    def w_last(self, p, c):
        if c.opt.get('xtag', 0):
            p(xch_off(c, f"s_mov_b32 s4, s{S_NT2}", S_WID, 3))
            for r in range(4): p(f"v_mov_b32 v{20 + r}, -1")
            for m in range(4): p(f"buffer_store_dwordx4 v[20:23], v1, s[{S_WS}:{S_WS+3}], s3 offen offset:{m * 1024} {c.opt.get('stflag', '')}")
        return cs3_loads(p, c, S_MT2, S_NT2, 176) + (4 if c.opt.get('xtag', 0) else 0)
    def g_epi(self, p, c):
        p(f"""
        v_and_b32 v8, 15, v0
        v_and_b32 v9, 1, v0
        v_lshlrev_b32 v9, 4, v9
        v_mov_b32 v10, 0x3f80
        v_lshlrev_b32 v9, v9, v10
        v_lshrrev_b32 v8, 1, v8
        """)
        for r in range(4): p(f"v_cmp_eq_u32 vcc, {r}, v8\nv_cndmask_b32 v{12 + r}, 0, v9, vcc")
        for i in range(8): p(mfma16(16, 12, 176 + 4 * i, "0" if i == 0 else None))
        W2.g_epi(self, p, c)
        for r in range(4): p(f"v_add_f32_dpp v{16 + r}, v{16 + r}, v{16 + r} row_ror:8 row_mask:0xf bank_mask:0xf")
        p(f"""
        v_and_b32 v8, 7, v0
        v_lshrrev_b32 v9, 4, v0
        v_lshlrev_b32 v8, 5, v8
        v_lshl_add_u32 v8, v9, 4, v8
        s_lshl_b32 s3, s{S_NT2}, 4
        s_add_u32 s3, s3, s{S_MT2}
        s_lshl_b32 s3, s3, 2
        s_add_u32 s3, s3, s{S_WID}
        s_lshl_b32 s3, s3, 8
        s_add_u32 s3, s3, {WS_CSP}
        s_mov_b32 exec_lo, 0x00ff00ff
        s_mov_b32 exec_hi, 0
        buffer_store_dwordx4 v[16:19], v8, s[{S_WS}:{S_WS+3}], s3 offen {c.opt.get('stflag', '')}
        s_mov_b64 exec, -1
        """)

class W3X(W3F):
    h_steps = ()
    quiet = True
    def h_late(self, a, c): return 0
    def h_mix(self, p, c, t): pass
    def h_post(self, p, c, t): pass
    def w_indep(self, p, c): pass
    def w_dep(self, p, c):
        for t in range(1, 12): W3G.h_extra(self, p, c, t)
    def w_math(self, p, c):
        for t in (10, 11, 12, 13): W3.h_mix(self, p, c, t)
    def w_fin(self, p, c): W3.h_post(self, p, c, 15)
    def h_every(self, p, c, t):
        if not c.opt.get('spf4'): return
        if t == 0:
            p(f"""
            s_lshl_b32 s3, s2, 2
            s_add_u32 s3, s3, s{S_WM}
            s_mul_i32 s3, s3, 7168
            s_add_u32 s94, s{ptr('w4')}, s3
            s_addc_u32 s95, s{ptr('w4')+1}, 0
            """)
        if t is None or t <= 13:
            for i in range(8):
                p.I.append(Inst("s_nop 0")); p.I[-1].text = f"s_load_dword s98, s[94:95], {i * 64}"
            p("s_add_u32 s94, s94, 512\ns_addc_u32 s95, s95, 0")
        if t == 15: p("s_waitcnt lgkmcnt(0)")

class W4T(W4):
    pubkind = None
class WOT(WO):
    def h_poll(self, c, t): return None
    def h_pre(self, p, c, t): pass
    def h_extra(self, p, c, t): return 0
    def h_epi(self, p, c): pass
    def xloads(self, c):
        return [f"buffer_load_dwordx4 {vr(144 + 4 * m, 4)}, v1, s[{S_WS}:{S_WS+3}], s49 offen offset:{m * 1024} sc1" for m in range(4)]
    def g_sites(self, c):
        def f(p):
            p(xch_off(c, f"s_xor_b32 s4, s{S_NT2}, 1", S_WID, 49))
            p.add(self.xloads(c))
        return {c.opt.get('xat', 2): f}
    def xwait(self, p, c):
        L = c.lab("xw"); E = c.lab("xwe")
        p(f"s_mov_b32 s5, {c.opt.get('spinmax', 100000)}")
        p.label(L)
        p("v_max3_u32 v50, v144, v145, v146")
        for i in range(147, 159, 2): p(f"v_max3_u32 v50, v50, v{i}, v{i + 1}")
        p(f"""
        v_max_u32 v50, v50, v159
        v_cmp_eq_u32 vcc, -1, v50
        s_cbranch_vccz {E}
        s_sub_u32 s5, s5, 1
        s_cmp_eq_u32 s5, 0
        s_cbranch_scc1 {E}
        s_sleep 2
        """)
        p.add(self.xloads(c))
        p(f"s_waitcnt vmcnt(0)\ns_branch {L}")
        p.label(E)
```

```python
from attn import *
B_O, B_Q, B_L, B_M, B_G = (192, 208), (224, 232), (240, 244), (248, 249), (250, 251)
B_C, B_V0, B_V1 = (48, 2), (104, 108), (112, 116)

class AttnH(Attn):
    defer1 = True
    def __init__(self, b0, stages, pf=(), local=False):
        Attn.__init__(self, b0, stages, pf=pf, local=local, defer1=True)
        assert len(stages) == 2
        self.NI = sum(stages) // 2
        self.bars = [stages[0] // 2 - 1, self.NI - 1]
    def early(self, p, c): pass
    def h_post_dep(self, p, c):
        if self.last:
            p(f"""
            s_lshl_b32 s3, s{S_QB}, 10
            s_lshl_b32 s4, s{S_WM}, 8
            s_add_u32 s3, s3, s4
            s_lshl_b32 s3, s3, 2
            s_add_u32 s3, s3, {WS_ST1 + 8}
            v_and_b32 v{T0}, 31, v0
            v_lshlrev_b32 v{T0}, 4, v{T0}
            buffer_load_dword v{B_G[0]}, v{T0}, s[{S_WS}:{S_WS+3}], s3 offen {c.opt.get('hoflag', '')}
            buffer_load_dword v{B_G[1]}, v{T0}, s[{S_WS}:{S_WS+3}], s3 offen offset:512 {c.opt.get('hoflag', '')}
            """)
    def LLq(self, q): return f"v_smfmac_f32_16x16x64_bf16 {vr(B_L[q], 4)}, {vr(A_SEL, 4)}, {vr(A_P[0], 8)}, v{A_IDX}"
    def cblocks(self, p, qs=(0, 1)):
        for q in qs:
            for i in range(16): p(f"v_mov_b32 v{B_C[q] + i}, v{B_M[q]}")
    def presetup(self, p, c):
        self.sel_setup(p)
        for i in range(8): p(f"v_mov_b32 v{A_P[0] + i}, 0")
        for i in range(4): p(f"v_mov_b32 v{B_V1[1] + i}, 0")
        if self.first:
            for i in range(32): p(f"v_mov_b32 v{B_O[0] + i}, 0")
            for i in range(8): p(f"v_mov_b32 v{B_L[0] + i}, 0")
        else: self.cblocks(p)
    def negmax(self, p, q, tmp):
        p(f"""
        v_mov_b32 v{tmp}, v{B_M[q]}
        v_permlane32_swap_b32 v{B_M[q]}, v{tmp}
        v_max_f32 v{B_M[q]}, v{B_M[q]}, v{tmp}
        v_sub_f32 v{B_M[q]}, 0, v{B_M[q]}
        """)
    def setup(self, p, c):
        p(f"v_add_u32 v{A_AD}, s{S_RD}, v1")
        p(f"""
        ds_read_b128 {vr(A_K, 4)}, v{A_AD}
        ds_read_b128 {vr(A_K + 4, 4)}, v{A_AD} offset:1024
        """)
        if self.first:
            p(f"s_lshl_b32 s3, s{S_WM}, 12\nv_add_u32 v{T0}, s3, v{A_AD}")
            for i in range(4): p(f"ds_read_b128 {vr(B_Q[0] + 4 * i, 4)}, v{T0} offset:{32768 + 1024 * i}")
        p(f"""
        ds_read_b128 {vr(B_V0[0], 4)}, v{A_AD} offset:2048
        ds_read_b128 {vr(B_V1[0], 4)}, v{A_AD} offset:3072
        """)
        if self.first:
            for q in range(2):
                p(mfma32(A_S[q], A_K, B_Q[q], "0"))
                p(mfma32(A_S[q], A_K + 4, B_Q[q] + 4))
            for q in range(2):
                self.rowmax(p, A_S[q], B_M[q])
                self.negmax(p, q, T0)
            self.cblocks(p)
        p(mfma32(A_S[0], A_K, B_Q[0], B_C[0]))
        p(mfma32(A_S[0], A_K + 4, B_Q[0] + 4))
        p("s_nop 9\ns_waitcnt lgkmcnt(0)")
    def tile(self, c, t, noff=None, order=None):
        q = t % 2; b = t // 2
        if noff is None: noff = 4096 if b == 0 else 0
        S = A_S[q]; Sn = A_S[q ^ 1]
        rd = lambda d, o: f"ds_read_b128 {vr(d, 4)}, v{A_AD} offset:{noff + o}"
        pb = b if q == 1 else b ^ 1
        d = dict(O1=mfma32(B_O[q ^ 1], B_V1[pb], A_P[1]), LL=self.LLq(q ^ 1), O0=mfma32(B_O[q], B_V0[b], A_P[0]),
                 Sa=mfma32(Sn, A_K, B_Q[q ^ 1], B_C[q ^ 1]), Sb=mfma32(Sn, A_K + 4, B_Q[q ^ 1] + 4))
        if q == 0: d.update(r0=rd(A_K, 0), r1=rd(A_K + 4, 1024), w="s_waitcnt lgkmcnt(0)")
        else: d.update(r0=rd(B_V0[b ^ 1], 2048), r1=rd(B_V1[b ^ 1], 3072), w=None)
        E = [f"v_exp_f32 v{S + i}, v{S + i}" for i in range(16)]
        C = [f"v_cvt_pk_bf16_f32 v{A_P[i // 4] + i % 4}, v{S + 2 * i}, v{S + 2 * i + 1}" for i in range(8)]
        L = []
        d.update(p0="s_setprio 0", p1="s_setprio 1")
        for x in (order or c.opt.get('aorder', "Sa r0 e3 Sb r1 e3 LL e2 O1 c4 e4 w O0 e4 c4")).split():
            if x[0] == 'e': L += E[:int(x[1:])]; E = E[int(x[1:]):]
            elif x[0] == 'c': L += C[:int(x[1:])]; C = C[int(x[1:]):]
            elif d[x]: L.append(d[x])
        return L
    adv = 8192
    def drain(self, p):
        p(mfma32(B_O[1], B_V1[1], A_P[1]))
        p(self.LLq(1))
        p("s_waitcnt lgkmcnt(0)")
    def g_body(self, p, c, prev):
        nxt = self.nxt
        p(f"""
        s_mov_b32 s{S_WM}, s{S_WID}
        s_mov_b32 s{S_DMA}, s{S_RD}
        """)
        p.add(slot_adv_dma())
        sv = self.local; self.local = True; self.h_setup(p, c); self.local = sv
        if self.local:
            P = self.poll(c); P.issue(p); P.check(p)
        self.ncall = 1
        p.add(self.dma_atoms(c))
        if getattr(prev, 'deferred', None): p.add(prev.deferred)
        nxt.h_setup2(p, c)
        p("s_waitcnt vmcnt(0)")
        publish(p, c, prev.pubkind, False)
        self.prefetch(p, c)
        p.add(slot_adv_rd())
        p("s_barrier")
        P = nxt.poll(c); P.issue(p); P.check(p)
        p.add(nxt.dma_atoms(c))
        p.add(nxt.dma_atoms(c))
        p(f"s_and_b32 s{S_WM}, s{S_WID}, 1")
        p.add(slot_adv_rd())
        nxt.g_setup(p, c); nxt.g_setup = lambda p, c: None
        p("s_waitcnt vmcnt(0)\ns_barrier")
    def g_epi(self, p, c): pass
    def h_body(self, p, c, nxt, skip0=False):
        if self.local: p(f"s_mov_b32 s{S_RD}, s{S_DMA}")
        else:
            p(f"""
            s_cmp_eq_u32 s{S_DMA}, 0
            s_cselect_b32 s{S_RD}, {SLOT * NSLOT}, s{S_DMA}
            s_sub_u32 s{S_RD}, s{S_RD}, {SLOT}
            """)
        self.setup(p, c)
        def e1(p):
            self.next_slot(p)
            nxt.h_setup2(p, c)
            nxt.skip_stages(p, c, 2)
            p("s_waitcnt lgkmcnt(0)\ns_barrier")
            hstep_stamp(p, c)
        def e3(p):
            p(f"s_mov_b32 s{S_DMA}, s{S_RD}")
            self.next_slot(p)
            p("s_waitcnt lgkmcnt(0)\ns_barrier")
            hstep_stamp(p, c)
            a = Atoms()
            nxt.first_extra = nxt.h_late(a, c)
            p.add(nxt.dma_atoms(c))
            p.add(a.L)
        self.loop(p, c, {self.bars[0]: e1, self.bars[1]: e3}, lambda k: [])
        return True
    def h_epi(self, p, c):
        if not self.last: return
        a = Atoms(); self.epi_sums(a, c); p.add(a.L)
        self.epi_check(p, c)
        a = Atoms(); st = self.epi_atoms(a, c); p.add(a.L); p.add(st)
    X = 18
    def epi_sums(self, p, c):
        X = self.X
        for q in range(2):
            p(f"v_add_f32 v{X+q}, v{B_L[q]}, v{B_L[q]+1}")
        for i in range(16):
            for q in range(2): p(f"v_fma_f32 v{X+q}, v{B_O[q] + i}, 0, v{X+q}")
        p(f"v_mov_b32 v{X+2}, {hexf(2.0 ** c.opt.get('lmaxlog', 64))}")
    def epi_check(self, p, c):
        X = self.X
        for q in range(2):
            Lok = c.lab("ok"); Lf = c.lab("fbk")
            p(f"v_cmp_nlt_f32 vcc, v{X+q}, v{X+2}\ns_cbranch_vccnz {Lf}")
            p.label(Lok)
            def ool(z, q=q, Lf=Lf, Lok=Lok):
                z.label(Lf)
                self.fallback(z, c, q)
                z(f"v_add_f32 v{X+q}, v{B_L[q]}, v{B_L[q]+1}\ns_branch {Lok}")
            c.ool.append(ool)
    def epi_atoms(self, p, c):
        st = c.opt.get('stflag', '')
        W = f"s[{S_WS}:{S_WS+3}]"
        X = self.X
        for q in range(2): p(f"v_rcp_f32 v{X+q}, v{X+q}")
        p(f"""
        v_and_b32 v{X+2}, 15, v0
        v_bfe_u32 v{X+3}, v0, 4, 1
        v_lshrrev_b32 v{X+4}, 5, v0
        v_mul_u32_u24 v{X+3}, {AF_PITCH}, v{X+3}
        v_lshl_add_u32 v{X+3}, v{X+2}, 4, v{X+3}
        v_lshl_add_u32 v{X+3}, v{X+4}, 8, v{X+3}
        """)
        p.atom(f"""
        s_lshl_b32 s3, s{S_QB}, 2
        s_add_u32 s3, s3, s{S_WM}
        s_mul_i32 s3, s3, {4 * AF_PITCH}
        s_lshl_b32 s4, s{S_HEAD}, 10
        s_add_u32 s3, s3, s4
        s_add_u32 s49, s3, {WS_AF + 112 * 1024}
        s_add_u32 s50, s49, {2 * AF_PITCH}
        """)
        S = []
        for q in range(2):
            p(f"v_mul_f32 v{X+q}, v{X+q}, v{B_G[q]}")
        for q in range(2):
            for i in range(16): p(f"v_mul_f32 v{B_O[q] + i}, v{B_O[q] + i}, v{X+q}")
            for i in range(8): p(f"v_cvt_pk_bf16_f32 v{B_O[q] + i}, v{B_O[q] + 2 * i}, v{B_O[q] + 2 * i + 1}")
            for u in range(2): S.append(f"buffer_store_dwordx4 {vr(B_O[q] + 4 * u, 4)}, v{X+3}, {W}, s{49 + q} offen offset:{512 * u} {st}")
        return S
    def fallback(self, p, c, q):
        ho = c.opt.get('hoflag', '')
        W = f"s[{S_WS}:{S_WS+3}]"
        L1 = c.lab("fb"); L2 = c.lab("fb")
        S = A_S[0]
        p(f"""
        s_lshl_b32 s5, s{S_HEAD}, 18
        s_add_u32 s5, s5, {WS_KV}
        s_mov_b32 s6, s5
        s_mov_b32 s7, 64
        v_mov_b32 v{B_M[q]}, 0xff800000
        """)
        p.label(L1)
        p(f"""
        buffer_load_dwordx4 {vr(A_K, 4)}, v1, {W}, s6 offen {ho}
        buffer_load_dwordx4 {vr(A_K + 4, 4)}, v1, {W}, s6 offen offset:1024 {ho}
        s_waitcnt vmcnt(0)
        """)
        p(mfma32(S, A_K, B_Q[q], "0"))
        p(mfma32(S, A_K + 4, B_Q[q] + 4))
        self.rowmax(p, S, B_M[q], True)
        p(f"s_add_u32 s6, s6, 4096\ns_sub_u32 s7, s7, 1\ns_cmp_lg_u32 s7, 0\ns_cbranch_scc1 {L1}")
        self.negmax(p, q, T0)
        p("s_mov_b32 s7, 64")
        self.cblocks(p, (q,))
        for i in range(16): p(f"v_mov_b32 v{B_O[q] + i}, 0")
        for i in range(4): p(f"v_mov_b32 v{B_L[q] + i}, 0")
        p.label(L2)
        p(f"""
        buffer_load_dwordx4 {vr(A_K, 4)}, v1, {W}, s5 offen {ho}
        buffer_load_dwordx4 {vr(A_K + 4, 4)}, v1, {W}, s5 offen offset:1024 {ho}
        buffer_load_dwordx4 {vr(B_V0[0], 4)}, v1, {W}, s5 offen offset:2048 {ho}
        buffer_load_dwordx4 {vr(B_V1[0], 4)}, v1, {W}, s5 offen offset:3072 {ho}
        s_waitcnt vmcnt(0)
        """)
        p(mfma32(S, A_K, B_Q[q], B_C[q]))
        p(mfma32(S, A_K + 4, B_Q[q] + 4))
        for i in range(16): p(f"v_exp_f32 v{S + i}, v{S + i}")
        for i in range(8): p(f"v_cvt_pk_bf16_f32 v{A_P[i // 4] + i % 4}, v{S + 2 * i}, v{S + 2 * i + 1}")
        p(mfma32(B_O[q], B_V0[0], A_P[0]))
        p(mfma32(B_O[q], B_V1[0], A_P[1]))
        p(self.LLq(q))
        p(f"s_add_u32 s5, s5, 4096\ns_sub_u32 s7, s7, 1\ns_cmp_lg_u32 s7, 0\ns_cbranch_scc1 {L2}")


S_KV, S_KVO, S_KVS = 44, 63, 100
class Host:
    def __init__(self, att, d0, hsteps, final): self.att, self.d0, self.hsteps, self.final = att, d0, hsteps, final
    def kv_setup(self, p, c, skip):
        p(f"""
        s_lshl_b32 s3, s{S_HEAD}, 18
        s_add_u32 s3, s3, {WS_KV}
        s_add_u32 s{S_KV}, s{ptr('ws')}, s3
        s_addc_u32 s{S_KV+1}, s{ptr('ws')+1}, 0
        s_mov_b32 s{S_KV+2}, 0x40000
        s_mov_b32 s{S_KV+3}, 0x20000
        s_lshl_b32 s4, s{S_WM}, 10
        s_lshl_b32 s{S_KVS}, s{S_QB}, 15
        s_add_u32 s{S_KVS}, s{S_KVS}, s4
        s_add_u32 s{S_KVO}, s4, {(self.d0 + skip) * 4096}
        s_sub_u32 s3, s{S_KVO}, 32768
        s_cmp_ge_u32 s3, s{S_KVS}
        s_cselect_b32 s{S_KVO}, s{S_KVO}, s3
        s_add_u32 s48, s4, {L_X}
        """)
    def kv_atom(self, c, slot):
        return f"""
        s_lshr_b32 s3, s{slot}, 3
        s_add_u32 m0, s3, s48
        buffer_load_dwordx4 v1, s[{S_KV}:{S_KV+3}], s{S_KVO} offen {c.opt.get('hoflag', '')} lds
        s_add_u32 s{S_KVO}, s{S_KVO}, 4096
        s_cmp_eq_u32 s{S_KVO}, s{S_KVS}
        s_cselect_b32 s3, 32768, 0
        s_add_u32 s{S_KVO}, s{S_KVO}, s3
        """
    def step(self, p, c, par, D, last):
        A = self.att
        p(f"s_lshr_b32 s3, s{S_RD}, 3\ns_add_u32 s3, s3, {L_X}\nv_add_u32 v{A_AD}, s3, v1")
        p.add(D[:2])
        t0 = 2 if par == 0 else 0
        ho = c.opt.get('horder')
        T = A.mix(A.tile(c, t0, 0, ho) + A.tile(c, t0 + 1, 0, ho), D[2:] + ["\n".join(slot_adv_rd())])
        if c.opt.get('tog'):
            T = sum(([["s_setprio 1", x, "s_setprio 0"] if (x.startswith('v_mfma') or x.startswith('v_smfmac')) else [x]][0] for x in T), [])
        p.add(T)
        if last and self.final: A.drain(p)
        if last and not c.opt.get('hhigh'): p("s_setprio 0")
    def finish(self, p, c, D):
        A = self.att
        if not c.opt.get('finmix', 1):
            p.add(D); A.epilogue(p, c); return 4
        a = Atoms(); A.epi_sums(a, c)
        p.add(spread(D[:4], a.L))
        A.epi_check(p, c)
        a = Atoms(); st = A.epi_atoms(a, c)
        p.add(spread(D[4:], a.L)); p.add(st)
        return 4
    def publish(self, p, c):
        p(f"""
        s_lshl_b32 s3, s{S_QB}, 5
        s_add_u32 s3, s3, s{S_HEAD}
        s_lshl_b32 s3, s3, 7
        s_lshl_b32 s4, s{S_WM}, 2
        s_add_u32 s3, s3, s4
        s_add_u32 s3, s3, {WS_FLAG + F_ATT * 32768}
        v_mov_b32 v18, 0
        v_mov_b32 v19, 1
        s_mov_b64 exec, 1
        buffer_store_dword v19, v18, s[{S_WS}:{S_WS+3}], s3 offen sc1
        s_mov_b64 exec, -1
        """)

class AttnW(AttnH):
    def __init__(self, b0, stages, pf=(), local=False, cont_in=False, hosted=0, pf2=()):
        self.pf2 = pf2
        AttnH.__init__(self, b0, stages, pf=pf, local=local)
        self.cont_in = cont_in; self.hosted = hosted
        self.last = b0 + sum(stages) + hosted == 64
        self.pubkind = F_ATT if self.last else None
    def link(self, c):
        if self.hosted:
            d0 = self.b0 + sum(self.stages)
            self.nxt.host = Host(self, d0, self.hosted + 1 if self.last else self.hosted, self.last)
            if self.last and c.opt.get('hpub', 0): self.pubkind = None
            elif self.last: self.nxt.pubstep = self.hosted + 4 - self.nxt.nsteps % 2
    def g_body(self, p, c, prev):
        nxt = self.nxt; H = nxt.host
        p(f"""
        s_mov_b32 s{S_WM}, s{S_WID}
        s_mov_b32 s{S_DMA}, s{S_RD}
        """)
        p.add(slot_adv_dma())
        sv = self.local; self.local = True; self.h_setup(p, c); self.local = sv
        if self.local:
            self.poll(c).group_wait(p)
        self.ncall = 1
        D = self.dma_atoms(c); p.add(D)
        p(f"s_waitcnt vmcnt({nvm(D)})")
        publish(p, c, prev.pubkind, False)
        fine = lambda: c.ST(p, 'g') if c.opt.get('fine') else None
        fine()
        W = hasattr(nxt, 'w_math')
        nxt.h_setup2(p, c)
        if H: H.kv_setup(p, c, 0)
        p(f"s_mov_b32 s42, s{S_DMA}")
        p.add(slot_adv_dma())
        p(f"s_mov_b32 s43, s{S_DMA}")
        a = Prog()
        a.add(nxt.dma_part(c, 1, 42))
        if W: nxt.w_indep(a, c)
        if hasattr(nxt, 'w_l2'): nxt.w_l2(a, c)
        if hasattr(nxt, 'w_last') and c.opt.get('csat', 0) == 0: nxt.w_last(a, c)
        self.prefetch(a, c)
        p.I += a.I
        n = 1 + sum(1 for x in a.I if x.kind == 'vmem')
        p.add(slot_adv_rd())
        p(f"s_waitcnt vmcnt({n})\ns_barrier")
        fine()
        pm = c.opt.get('pollfirst', (0, 0, 0))[0 if self.local else 1 if W else 2]
        if pm == 1: nxt.poll(c).issue1(p)
        if pm != 2: p.add(nxt.dma_part(c, 1, 43))
        if H: p(H.kv_atom(c, 42)); p(H.kv_atom(c, 43))
        if hasattr(nxt, 'w_last') and c.opt.get('csat', 0) == 1: nxt.w_last(p, c)
        nxt.poll(c).group_wait(p, issued=pm == 1)
        fine()
        if W and c.opt.get('depfirst', 1): nxt.w_dep(p, c)
        p.add(nxt.dma_part(c, 0, 42))
        if pm == 2: p.add(nxt.dma_part(c, 1, 43))
        p.add(nxt.dma_part(c, 0, 43))
        if W and not c.opt.get('depfirst', 1): nxt.w_dep(p, c)
        n2 = g_prefetch(p, c, [(nm, {'w2': 2, 'wo': 2, 'w3': 7, 'w4': 7}[nm] * MB, a_, n_) for nm, a_, n_ in self.pf2], vdst=4)
        if hasattr(nxt, 'w_last') and c.opt.get('csat', 0) == 2: n2 += nxt.w_last(p, c)
        if c.opt.get('glow', 1) == 1: p("s_setprio 0")
        if W: nxt.w_math(p, c)
        p(f"s_and_b32 s{S_WM}, s{S_WID}, 1")
        p.add(slot_adv_rd())
        nxt.g_setup(p, c); nxt.g_setup = lambda p, c: None
        if c.opt.get('glow', 1) == 2: p("s_setprio 0")
        if not W and c.opt.get('a0only', 1):
            nxt.first_wait = n2; n2 += nxt.nA + (nxt.nB if pm == 2 else 0)
        p(f"s_waitcnt vmcnt({n2 if getattr(nxt, 'quiet', not W) else 0})")
        if W: nxt.w_fin(p, c)
        fine()
        p("s_barrier")
    def early(self, p, c):
        if c.opt.get('glow', 1): p("s_setprio 2")
    def h_body(self, p, c, nxt, skip0=False):
        H = nxt.host
        if c.opt.get('glow', 1): p("s_setprio 1")
        if self.cont_in:
            p(f"""
            s_cmp_eq_u32 s{S_DMA}, 0
            s_cselect_b32 s{S_RD}, {SLOT * NSLOT}, s{S_DMA}
            s_sub_u32 s{S_RD}, s{S_RD}, {SLOT}
            v_add_u32 v{A_AD}, s{S_RD}, v1
            """)
        else:
            if self.local: p(f"s_mov_b32 s{S_RD}, s{S_DMA}")
            else:
                p(f"""
                s_cmp_eq_u32 s{S_DMA}, 0
                s_cselect_b32 s{S_RD}, {SLOT * NSLOT}, s{S_DMA}
                s_sub_u32 s{S_RD}, s{S_RD}, {SLOT}
                """)
            self.setup(p, c)
        def e1(p):
            self.next_slot(p)
            if not c.opt.get('prenext', 1): self.pre_next(p, c)
            p("s_waitcnt vmcnt(0) lgkmcnt(0)\ns_barrier")
            hstep_stamp(p, c)
        def e3(p):
            p(f"s_mov_b32 s{S_DMA}, s{S_RD}")
            self.next_slot(p)
            p("s_waitcnt lgkmcnt(0)\ns_barrier")
            hstep_stamp(p, c)
            if H:
                p("s_setprio 1"); return
            a = Atoms()
            nxt.first_extra = nxt.h_late(a, c)
            p.add(nxt.dma_atoms(c))
            p.add(a.L)
        self.loop(p, c, {self.bars[0]: e1, self.bars[1]: e3}, lambda k: [], self.cont_in, H is not None)
        if not H and not c.opt.get('hhigh'): p("s_setprio 0")
        return H is None
    def loop(self, p, c, events, pf, cont_in=False, cont_out=False):
        if not c.opt.get('unr', 1): return AttnH.loop(self, p, c, events, pf, cont_in, cont_out)
        assert all(it % 2 == 1 for it in events) and self.NI % 2 == 0
        N2 = self.NI // 2
        L = c.lab("al"); Lm = c.lab("am"); Lx = c.lab("ax")
        mask = sum(1 << (N2 - it // 2) for it in events)
        p(f"s_mov_b32 s{S_CNT}, {N2 + (1 if cont_in else 0)}")
        if not cont_in: p(f"s_branch {Lm}")
        p(f".p2align {c.opt.get('align', 5)}")
        p.label(L)
        p.add(self.tile(c, 2, 0))
        p.add(self.mix(self.tile(c, 3, 0), [f"s_sub_u32 s{S_CNT}, s{S_CNT}, 1" + ("" if cont_out else f"\ns_cmp_eq_u32 s{S_CNT}, 0")]))
        if not cont_out: p(f"s_cbranch_scc1 {Lx}")
        p.label(Lm)
        for t, o in ((0, 4096), (1, 4096), (2, 8192), (3, 8192), (0, 12288)): p.add(self.tile(c, t, o))
        p.add(self.mix(self.tile(c, 1, 12288), [f"s_bitcmp1_b32 {hex(mask)}, s{S_CNT}"]))
        p(f"v_add_u32 v{A_AD}, 16384, v{A_AD}")
        p(f"s_cbranch_scc0 {L}")
        its = sorted(events)
        for i, it in enumerate(its):
            Ln = c.lab("an")
            if i < len(its) - 1: p(f"s_cmp_eq_u32 s{S_CNT}, {N2 - it // 2}\ns_cbranch_scc0 {Ln}")
            events[it](p)
            if cont_out and i == len(its) - 1: return
            p(f"s_branch {L}")
            if i < len(its) - 1: p.label(Ln)
        p.label(Lx)
        self.drain(p)
    def pre_next(self, p, c):
        nxt = self.nxt
        nxt.h_setup2(p, c)
        nxt.skip_stages(p, c, 2)
        if nxt.host: nxt.host.kv_setup(p, c, 2)
    def drain(self, p):
        if getattr(self.nxt, 'quiet', False): p("s_waitcnt lgkmcnt(0)")
        else: AttnH.drain(self, p)
    def h_epi(self, p, c):
        if not self.hosted: AttnH.h_epi(self, p, c)
    def epilogue(self, p, c): AttnH.h_epi(self, p, c)
```

```python
from common import *

SLOT = 49152
NSLOT = 3
L_X = SLOT * NSLOT
LDS_BYTES = 163840
L_MU = L_X + 4096
L_GW = L_X + 5888
L_CS = L_X + 10240
L_DUMMY = L_X + 11264

WS_ST1 = 41 * MB
WS_P2 = 42 * MB
WS_CSP = 43 * MB

S_A, S_B, S_WS, S_AUX = 8, 12, 16, 20
S_WID, S_WM, S_WN, S_XCD, S_IDX = 24, 25, 26, 27, 28
S_MT3, S_NT3, S_MT2, S_NT2, S_HEAD, S_BLK, S_QB = 29, 30, 54, 55, 51, 52, 41
S_POLL = 40
S_DBG = 88
S_FL = 88
S_CNT, S_RD, S_DELTA, S_DMA = 31, 32, 33, 34
S_SO = [35, 36]
S_LD = [37, 38]
S_OFFS = [42, 43, 44, 45, 46, 47, 92, 93, 94, 95, 98, 99]
S_NEG = 39
S_PTR = 64
def ptr(name): return S_PTR + KA[name] // 4
V_LANE, V_L16 = 0, 1
V_Q, V_O, V_L, V_M = 2, 10, 26, 30
V_AD = 32
V_FR = 48

def mfma16(d, a, b, c=None):
    cs = vr(d, 4) if c is None else (c if isinstance(c, str) else vr(c, 4))
    return f"v_mfma_f32_16x16x32_bf16 {vr(d,4)}, {vr(a,4)}, {vr(b,4)}, {cs}"

def tile_map(p, a_log2, S_MT, S_NT):
    a = 1 << a_log2; b = 32 // a
    nxm = 16 // a
    p(f"""
    s_and_b32 s3, s{S_XCD}, {nxm - 1}
    s_lshl_b32 s3, s3, {a_log2}
    s_and_b32 s4, s{S_IDX}, {a - 1}
    s_add_u32 s{S_MT}, s3, s4
    s_lshr_b32 s3, s{S_XCD}, {nxm.bit_length() - 1}
    s_lshl_b32 s3, s3, {b.bit_length() - 1}
    s_lshr_b32 s4, s{S_IDX}, {a_log2}
    s_add_u32 s{S_NT}, s3, s4
    """)

def slot_adv_rd():
    return [f"s_add_u32 s{S_RD}, s{S_RD}, {SLOT}", f"s_cmp_eq_u32 s{S_RD}, {SLOT * NSLOT}",
            f"s_cselect_b32 s{S_DELTA}, s{S_NEG}, {SLOT}", f"s_cselect_b32 s{S_RD}, 0, s{S_RD}"]
def slot_adv_dma():
    return [f"s_add_u32 s{S_DMA}, s{S_DMA}, {SLOT}", f"s_cmp_eq_u32 s{S_DMA}, {SLOT * NSLOT}",
            f"s_cselect_b32 s{S_DMA}, 0, s{S_DMA}"]

class Ctx:
    def __init__(self, name, opt):
        self.name = name; self.opt = opt; self.nlab = 0
        self.stamp_slot = {'g': 0, 'h': 0}
    def lab(self, s):
        self.nlab += 1
        return f"{self.name}_{s}{self.nlab}"
    def ST(self, p, role):
        if not self.opt.get('stamp'): return
        sl = self.stamp_slot[role]
        if sl >= 31: return
        self.stamp_slot[role] += 1
        stamp2(p, sl, self.opt['stamp'] - 1, self.stampv)

def hstep_stamp(p, c):
    if not c.opt.get('hstamp'): return
    p("""
    s_memtime s[56:57]
    s_waitcnt lgkmcnt(0)
    s_lshl_b64 exec, 1, s62
    s_cmp_ge_u32 s62, 64
    s_cselect_b64 s[58:59], 0, exec
    s_cselect_b64 s[60:61], exec, 0
    s_mov_b64 exec, s[58:59]
    v_mov_b32 v150, s56
    s_mov_b64 exec, s[60:61]
    v_mov_b32 v151, s56
    s_mov_b64 exec, -1
    s_add_u32 s62, s62, 1
    """)
def hstep_dump(p, c):
    if not c.opt.get('hstamp') and not c.opt.get('sstamp') and not c.opt.get('spincnt'): return
    p(f"""
    s_lshl_b32 s3, s2, 2
    s_add_u32 s3, s3, s{S_WM}
    s_lshl_b32 s3, s3, 9
    s_add_u32 s3, s3, {WS_STAMP + 2 * MB}
    v_lshlrev_b32 v152, 2, v0
    buffer_store_dword v150, v152, s[{S_WS}:{S_WS+3}], s3 offen
    buffer_store_dword v151, v152, s[{S_WS}:{S_WS+3}], s3 offen offset:256
    """)
NSTAMP = 32
def stamp2(p, slot, kidx, v=140):
    p(f"""
    s_memrealtime s[56:57]
    s_memtime s[58:59]
    s_add_u32 s60, s2, {kidx * 256}
    s_lshl_b32 s60, s60, 3
    s_add_u32 s60, s60, s{S_WID}
    s_lshl_b32 s60, s60, 8
    s_add_u32 s60, s60, {WS_STAMP + slot * 8}
    s_waitcnt lgkmcnt(0)
    v_mov_b32 v{v}, s56
    v_mov_b32 v{v+1}, s58
    v_mov_b32 v{v+2}, 0
    s_mov_b64 exec, 1
    buffer_store_dwordx2 v[{v}:{v+1}], v{v+2}, s[{S_WS}:{S_WS+3}], s60 offen
    s_mov_b64 exec, -1
    """)


class Atoms:
    def __init__(self): self.L = []
    def __call__(self, s):
        for line in s.split('\n'):
            line = line.strip()
            if line and not line.startswith(';'): self.L.append(line)
    def atom(self, s): self.L.append(s)
    def add(self, items):
        for x in items: self(x)

def spread(main, fill, start=0, end=None):
    n = len(main); end = n if end is None else end
    k = end - start
    slots = [0] * n
    for i in range(k): slots[start + i] = ((i + 1) * len(fill)) // k - (i * len(fill)) // k
    return interleave(main, fill, slots)

def nvm(D): return sum(x.count('buffer_') for x in D)

class Task:
    pubkind = None
    pubv = 136
    barpos = 6
    puball = False
    xbar = False
    pubstep = 3
    local = False
    exposed = False
    defer1 = False
    late = False
    poll = None
    def g_sites(self, c): return {}
    def h_post_dep(self, p, c): return
    def h_setup2(self, p, c, first=False): self.h_setup(p, c, first)
    def drain_n(self, c): return 0
    def h_indep(self, a, c): return 0
    def h_late(self, a, c): return 0
    def g_prev_site(self, p, c): return
    has_prev_site = False
    def early(self, p, c): return
    def h_epi(self, p, c): return
    def g_events(self, c, prev, unroll, odd=0):
        E = {t: [f] for t, f in self.g_sites(c).items()}
        if prev is not None and prev.pubkind is not None and c.opt.get('persist'):
            t = self.pubstep
            if prev.puball:
                E.setdefault(t - unroll, []).append(lambda q: q("s_waitcnt vmcnt(0)"))
                E.setdefault(t, []).append(lambda q: publish(q, c, prev.pubkind, True, self.pubv))
            else:
                E.setdefault(t, []).append(lambda q: (q("s_waitcnt vmcnt(0)"), publish(q, c, prev.pubkind, False, self.pubv)))
        assert all(t % unroll == odd for t in E), E
        return E

class Gemm(Task):
    MT = 4
    fr0 = V_FR
    zero_first = False
    def acc(self, m, n): return 256 - 4 * self.MT * self.NT + 4 * (n * self.MT + m)
    def xf(self, s, m): return self.fr0 + s * 4 * (self.MT + self.NT) + 4 * m
    def wf(self, s, n): return self.fr0 + s * 4 * (self.MT + self.NT) + 4 * self.MT + 4 * n
    def swap(self, n): return False
    def reads(self, s, kk):
        rx = lambda m: "ds_read_b128 %s, v%d offset:%d" % ((vr(self.xf(s, m), 4),) + self.xaddr(kk, m))
        rw = lambda n, j: "ds_read_b64_tr_b16 %s, v%d offset:%d" % ((vr(self.wf(s, n) + 2 * j, 2),) + self.waddr(kk, n, j))
        R = [rx(0), rw(0, 0), rw(0, 1)] + [rx(m) for m in range(1, self.MT)]
        for n in range(1, self.NT): R += [rw(n, 0), rw(n, 1)]
        return R
    def mfmas(self, s, c0=None):
        M = []
        for n in range(self.NT):
            for m in (range(self.MT) if n % 2 == 0 else range(self.MT - 1, -1, -1)):
                if self.swap(n): M.append(mfma16(self.acc(m, n), self.xf(s, m), self.wf(s, n), c0))
                else: M.append(mfma16(self.acc(m, n), self.wf(s, n), self.xf(s, m), c0))
            M += self.extra_mfma(s, n)
        return M
    def extra_mfma(self, s, n): return []
    def g_loop_atoms(self, c): return []
    def g_zero(self, p):
        if self.zero_first: return
        for r in range(self.acc(0, 0), 256): p(f"v_mov_b32 v{r}, 0")
    chain = False
    host = None
    def g_body(self, p, c, prev):
        if self.chain and c.opt.get('chain', 1): self.g_loop_chain(p, c, self.nsteps, prev)
        else: self.g_loop(p, c, self.nsteps, prev)
    def g_loop_chain(self, p, c, nsteps, prev):
        KS, MT, NT = self.KS, self.MT, self.NT
        odd = nsteps % 2
        assert not odd or self.zero_first
        xf = lambda s, m, kk: self.fr0 + 4 * (s * MT * KS + m * KS + kk)
        wf = lambda n, kk: self.fr0 + 8 * MT * KS + 4 * ((n % 4) * KS + kk)
        rx = lambda s, m: ["ds_read_b128 %s, v%d offset:%d" % ((vr(xf(s, m, kk), 4),) + self.xaddr(kk, m)) for kk in range(KS)]
        rw = lambda n: ["ds_read_b64_tr_b16 %s, v%d offset:%d" % ((vr(wf(n, kk) + 2 * j, 2),) + self.waddr(kk, n, j)) for kk in range(KS) for j in range(2)]
        def group(s, n, zero):
            M = []
            for i, m in enumerate(range(MT) if n % 2 == 0 else range(MT - 1, -1, -1)):
                for q, kk in enumerate(range(KS) if i % 2 == 0 else range(KS - 1, -1, -1)):
                    c0 = "0" if (zero and q == 0) else None
                    a, b = (xf(s, m, kk), wf(n, kk)) if self.swap(n) else (wf(n, kk), xf(s, m, kk))
                    M.append(mfma16(self.acc(m, n), a, b, c0))
            return M
        def first_reads(s):
            R = rx(s, 0) + rw(0)
            for m in range(1, MT): R += rx(s, m)
            return R + rw(1)
        xregs = sorted({self.xaddr(kk, 0)[0] for kk in range(KS)})
        def step(s, zero, tail):
            done = set()
            for n in range(NT - 2):
                F = rw(n + 2)
                if n == 0: F = F + slot_adv_rd()
                later = {self.waddr(0, k, 0)[0] for k in range(n + 3, NT)}
                if n >= 1 or NT == 3:
                    ready = [r for r in self.addr_regs if r not in later and r not in done]
                    if n < NT - 3: ready = ready[:2]
                    done |= set(ready)
                    F = F + [f"v_add_u32 v{r}, s{S_DELTA}, v{r}" for r in ready]
                G = group(s, n, zero)
                p(f"s_waitcnt lgkmcnt({(MT - 2) * KS + 2 * KS if n == 0 else 2 * KS})")
                p.add(interleave(G, F, [1] * len(G)) if len(F) <= len(G) else spread(G, F))
            assert done == set(self.addr_regs)
            G = group(s, NT - 2, zero) + group(s, NT - 1, zero)
            bp = c.opt.get('cbar', 0)
            p.add(G[:bp])
            fw = getattr(self, 'first_wait', None)
            assert fw is None or self.zero_first
            p("s_waitcnt " + (f"vmcnt({fw}) " if (zero and fw is not None) else "") + "lgkmcnt(0)\ns_barrier")
            p.add(spread(G[bp:], first_reads(s ^ 1) + tail))
        E = self.g_events(c, prev, 2, odd)
        mask = sum(1 << k for k in range(1, nsteps) if nsteps - k not in E)
        L = c.lab("gl"); Le = c.lab("ge")
        p.add(first_reads(0))
        p(f"s_mov_b32 s{S_CNT}, {nsteps - odd}")
        if self.zero_first:
            step(0, True, [])
            if not odd: p(f"s_branch {Le}")
        p(f".p2align {c.opt.get('align', 5)}")
        p.label(L)
        step(odd, False, [])
        p.label(Le)
        step(1 - odd, False, [f"s_sub_u32 s{S_CNT}, s{S_CNT}, 2", f"s_bitcmp1_b32 {hex(mask)}, s{S_CNT}"])
        self.loop_end(p, c, L, E, nsteps)
    def g_loop(self, p, c, nsteps, prev):
        KS = self.KS
        nm = len(self.mfmas(0)); nr = len(self.reads(0, 0))
        big = nm >= 16 and not getattr(self, 'small', False)
        unroll = 2 if KS % 2 else 1
        assert nsteps % unroll == 0
        w0 = c.opt.get('w0', 4)
        p.add(self.reads(0, 0))
        p(f"s_mov_b32 s{S_CNT}, {nsteps}")
        L = c.lab("gl"); Le = c.lab("ge")
        if self.zero_first:
            p.add(interleave(self.mfmas(0, "0"), self.reads(1, 1), [1] * nm))
            p(f"s_branch {Le}")
        p(f".p2align {c.opt.get('align', 5)}")
        p.label(L)
        par = 0
        E = self.g_events(c, prev, unroll)
        mask = sum(1 << k for k in range(1, nsteps) if nsteps - k not in E)
        for u in range(unroll):
            for kk in range(KS - 1):
                R = self.reads(par ^ 1, kk + 1)
                if kk == 0: R = R + self.g_loop_atoms(c)
                if big: p(f"s_waitcnt lgkmcnt({w0})")
                p.add(interleave(self.mfmas(par), R, [1] * nm))
                par ^= 1
                if u == 0 and kk == 0 and self.zero_first: p.label(Le)
            M = self.mfmas(par)
            upd = slot_adv_rd() + [f"v_add_u32 v{r}, s{S_DELTA}, v{r}" for r in self.addr_regs]
            tail = [f"s_sub_u32 s{S_CNT}, s{S_CNT}, {unroll}", f"s_bitcmp1_b32 {hex(mask)}, s{S_CNT}"] if u == unroll - 1 else []
            bp = min(c.opt.get('barpos', self.barpos), nm - nr) if big else c.opt.get('bp64', 4)
            if big: p(f"s_waitcnt lgkmcnt({w0})")
            p.add(spread(M[:bp], upd))
            fw = getattr(self, 'first_wait', None)
            p("s_waitcnt " + (f"vmcnt({fw}) " if fw is not None else "") + "lgkmcnt(0)")
            p("s_barrier")
            p.add(interleave(M[bp:], self.reads(par ^ 1, 0) + tail, [1 if big else 2] * nm))
            par ^= 1
        self.loop_end(p, c, L, E, nsteps)
    def loop_end(self, p, c, L, E, nsteps):
        p(f"s_cbranch_scc1 {L}")
        if E:
            Lo = c.lab("gev")
            p(f"s_cmp_lg_u32 s{S_CNT}, 0\ns_cbranch_scc1 {Lo}")
            def ool(q):
                q.label(Lo)
                ts = sorted(E)
                for i, t in enumerate(ts):
                    Ln = c.lab("gen")
                    if i < len(ts) - 1: q(f"s_cmp_eq_u32 s{S_CNT}, {nsteps - t}\ns_cbranch_scc0 {Ln}")
                    for f in E[t]: f(q)
                    q(f"s_branch {L}")
                    if i < len(ts) - 1: q.label(Ln)
            c.ool.append(ool)
    def dma_atoms(self, c):
        if c.opt.get('nodma'): return ["\n".join(slot_adv_dma())]
        ld = self.bflag(c)
        nA, nB = self.nA, self.nB
        D = []
        if self.rotated(c):
            A = [f"s_add_u32 m0, s{S_DMA}, s{S_OFFS[i]}\nbuffer_load_dwordx4 v{V_AD + i}, s[{S_A}:{S_A+3}], s{S_SO[0]} offen {self.aflag(c)} lds" for i in range(nA)]
            B = [f"s_add_u32 m0, s{S_DMA}, s{S_OFFS[nA + i]}\nbuffer_load_dwordx4 v{V_AD + nA + i}, s[{S_B}:{S_B+3}], s{S_SO[1]} offen {ld} lds" for i in range(nB)]
            D = [B[0], A[0]] + spread(A[1:], B[1:])
            nA = nB = 0
        if nA and c.opt.get('ilv', 0):
            A = [f"s_add_u32 m0, s92, {1024 * i}\nbuffer_load_dwordx4 v{V_AD + i}, s[{S_A}:{S_A+3}], s{S_SO[0]} offen {self.aflag(c)} lds" for i in range(nA)]
            B = [f"s_add_u32 m0, s93, {1024 * i}\nbuffer_load_dwordx4 v{V_AD + nA + i}, s[{S_B}:{S_B+3}], s{S_SO[1]} offen {ld} lds" for i in range(nB)]
            B += self.dma_extra(c)
            D = spread(A, B) if len(A) >= len(B) else spread(B, A)
            D[0] = f"s_add_u32 s92, s{S_DMA}, s{S_LD[0]}\ns_add_u32 s93, s{S_DMA}, s{S_LD[1]}\n" + D[0]
            nA = nB = 0
        elif nA: D = self.dma_extra(c)
        if nA: D += self.part_atoms(c, 0, S_DMA) + self.part_atoms(c, 1, S_DMA)
        t = []
        if not c.opt.get('step0'):
            t += [f"s_add_u32 s{S_SO[0]}, s{S_SO[0]}, {self.stepA}", f"s_add_u32 s{S_SO[1]}, s{S_SO[1]}, {self.stepB}"]
        D[-1] += "\n" + "\n".join(t + slot_adv_dma())
        return D
    def part_atoms(self, c, k, slot):
        n0, n, r, fl = ((0, self.nA, S_A, self.aflag(c)), (self.nA, self.nB, S_B, self.bflag(c)))[k]
        D = []
        for i in range(n):
            if c.opt.get('ioff', 1):
                m = f"s_add_u32 m0, s{slot}, s{S_LD[k]}\n" if i == 0 else ("s_add_u32 m0, m0, 4096\n" if i % 4 == 0 else "")
                D.append(m + f"buffer_load_dwordx4 v{V_AD + n0 + i}, s[{r}:{r+3}], s{S_SO[k]} offen offset:{(i % 4) * 1024} {fl} lds")
            else:
                D.append((f"s_add_u32 m0, s{slot}, s{S_LD[k]}" if i == 0 else "s_add_u32 m0, m0, 1024") +
                         f"\nbuffer_load_dwordx4 v{V_AD + n0 + i}, s[{r}:{r+3}], s{S_SO[k]} offen {fl} lds")
        return D
    def h_setup2(self, p, c, first=False):
        self.h_setup(p, c, first)
        if c.opt.get('ioff', 1):
            for n0, n in ((0, self.nA), (self.nA, self.nB)):
                for i in range(n):
                    if i % 4: p(f"v_subrev_u32 v{V_AD + n0 + i}, {(i % 4) * 1024}, v{V_AD + n0 + i}")
    def dma_part(self, c, k, slot):
        D = self.part_atoms(c, k, slot)
        D[-1] += f"\ns_add_u32 s{S_SO[k]}, s{S_SO[k]}, {(self.stepA, self.stepB)[k]}"
        return D
    def aflag(self, c): return c.opt.get('hoflag', '')
    def rotated(self, c): return False
    def dma_extra(self, c): return []
    def skip_stages(self, p, c, n):
        p(f"s_add_u32 s{S_SO[0]}, s{S_SO[0]}, {n * self.stepA}\ns_add_u32 s{S_SO[1]}, s{S_SO[1]}, {n * self.stepB}")
    def bflag(self, c): return c.opt.get('ldflag', '')
    @property
    def nd(self): return self.nA + self.nB
    def h_post(self, p, c, t): pass
    def h_poll(self, c, t): return None
    def h_every(self, p, c, t): pass
    def h_pre(self, p, c, t): pass
    def h_mix(self, a, c, t): pass
    def h_extra(self, p, c, t): return 0
    def h_tail(self, c): return []
    h_steps = ()
    def h_body(self, p, c, nxt, skip0=False):
        n = self.nsteps
        special = set(self.h_steps) | {n - 2, n - 1}
        if skip0 or self.xbar or getattr(self, 'first_extra', 0): special.add(0)
        pollstep = None
        real_nxt = nxt
        if nxt is not None and (nxt.exposed or nxt.local): nxt = None
        if nxt is not None and nxt.poll and c.opt.get('persist'):
            pollstep = n - 2 if nxt.late else n - 3
            special.add(pollstep)
        cpt = n - c.opt['cpfat'] if (c.opt.get('cpfat') and n >= 16) else None
        if cpt: special.add(cpt)
        hs = self.host.hsteps if self.host else 0
        if self.host and self.host.final: special |= {hs - 1, hs, hs + 1}
        elif 0 < hs < n: special |= {hs - 2, hs - 1}
        def step(t, par=None):
            if t is not None and t < hs: par = t % 2
            ex = 0
            noex = t is None or c.opt.get('noextra')
            P1 = None
            if t is not None: P1 = nxt.poll(c) if t == pollstep else self.h_poll(c, t)
            if P1: P1.issue1(p)
            if not noex: self.h_pre(p, c, t)
            i0 = len(p.I)
            if not cpt:
                if t == n - 2 and n >= 16 and c.opt.get('cpf3', 1) and not P1 and not getattr(self, 'cpf_late', False): code_prefetch(p, c, True)
                if t == n - 1 and n >= 16 and c.opt.get('cpf3', 1) and (self.h_poll(c, n - 2) or getattr(self, 'cpf_late', False)): code_prefetch(p, c, True)
            D = []; nd = 0
            if t == 0 and self.xbar: p("s_barrier")
            if t is None or t <= n - 3:
                nd = self.nd
                if not (t == 0 and skip0): D = self.dma_atoms(c)
                if par is not None and not (t is not None and t >= hs - (1 if self.host.final else 2)):
                    D = [self.host.kv_atom(c, S_DMA)] + D; nd += 1
            else:
                if t == n - 2: D = self.h_tail(c)
                if nxt is not None:
                    if t == (n - 1 if nxt.late else n - 2):
                        nxt.h_setup2(p, c)
                        nxt.h_post_dep(p, c)
                    if t == (n - 1 if nxt.late else n - 2) or not nxt.defer1: D += nxt.dma_atoms(c)
                nd = 0 if (nxt is not None and nxt.late) else nvm(D)
                if t == n - 2 and D and c.opt.get('cntpre', 1): nd += sum(1 for x in p.I[i0:] if x.kind == 'vmem')
            a = Atoms()
            if not noex: self.h_mix(a, c, t)
            if par is not None: self.host.step(p, c, par, D + a.L, t == hs - 1)
            elif self.host and self.host.final and t == hs: nd += self.host.finish(p, c, D)
            else: p.add(spread(D, a.L) if D else a.L)
            if not noex: ex = self.h_extra(p, c, t)
            if cpt and t == cpt:
                code_prefetch(p, c, True); ex += 1
            self.in_host = par is not None
            self.h_every(p, c, t)
            if t == n - 1 and hasattr(real_nxt, 'pre_next') and c.opt.get('prenext', 1): real_nxt.pre_next(p, c)
            if t == 0: ex += getattr(self, 'first_extra', 0)
            p(f"s_waitcnt vmcnt({nd + ex})" + (" lgkmcnt(0)" if par is not None else ""))
            if P1: P1.check1(p)
            if self.host and self.host.final and t == hs + 1 and c.opt.get('hpub', 0): self.host.publish(p, c)
            if not noex: self.h_post(p, c, t)
            if t == n - 1 and nxt is not None and getattr(nxt, 'adv', 0) == 8192 and not self.host and not getattr(self, 'quiet', False): nxt.presetup(p, c)
            p("s_barrier")
            hstep_stamp(p, c)
        t = 0
        while t < n:
            if t in special:
                step(t); t += 1; continue
            e = t
            while e not in special: e += 1
            if t < hs:
                assert e <= hs and (e - t) % 2 == 0
                p(f"s_mov_b32 s{S_CNT}, {(e - t) // 2}")
                L = c.lab("hl")
                if c.opt.get('halign'): p(f".p2align {c.opt['halign']}")
                p.label(L)
                step(None, t % 2); step(None, (t + 1) % 2)
                p(f"s_sub_u32 s{S_CNT}, s{S_CNT}, 1\ns_cmp_lg_u32 s{S_CNT}, 0\ns_cbranch_scc1 {L}")
            elif e - t == 1: step(None)
            else:
                p(f"s_mov_b32 s{S_CNT}, {e - t}")
                L = c.lab("hl")
                p.label(L)
                step(None)
                p(f"s_sub_u32 s{S_CNT}, s{S_CNT}, 1\ns_cmp_lg_u32 s{S_CNT}, 0\ns_cbranch_scc1 {L}")
            t = e
        if real_nxt is not None and real_nxt.local:
            real_nxt.presetup(p, c)
            self.h_final(p, c)
            p("s_barrier")
            hstep_stamp(p, c)
        if real_nxt is not None and real_nxt.exposed:
            real_nxt.h_setup2(p, c)
            L = c.lab("xp")
            p("s_barrier")
            p(f"s_cmp_eq_u32 s{S_WM}, 0\ns_cbranch_scc0 {L}")
            P = real_nxt.poll(c); P.issue(p); P.check(p)
            p.label(L)
            p("s_barrier")
            hstep_stamp(p, c)
            p.add(real_nxt.dma_atoms(c))
            p("s_waitcnt vmcnt(0)\ns_barrier")
            hstep_stamp(p, c)
        return False

WS_FLAG = 43 * MB + 512 * 1024
F_QKV, F_W1, F_W2, F_W3, F_ATT, F_XCH, F_ST, F_CS = 0, 1, 2, 3, 4, 5, 6, 7
NKIND = 8

class Poll:
    def __init__(self, c, addr, load, test):
        self.c, self.addr, self.load, self.test = c, addr, load, test
    def issue(self, p):
        if not self.c.opt.get('persist'): return
        p(self.addr); p(self.load)
    def issue1(self, p):
        if not self.c.opt.get('persist'): return
        L = self.c.lab("p1")
        p(f"s_cmp_eq_u32 s{S_WM}, 0\ns_cbranch_scc0 {L}")
        self.issue(p)
        p.label(L)
    def check1(self, p):
        if not self.c.opt.get('persist'): return
        L = self.c.lab("c1")
        p(f"s_cmp_eq_u32 s{S_WM}, 0\ns_cbranch_scc0 {L}")
        self.check(p)
        p.label(L)
    def group_wait(self, p, H=False, issued=False):
        c = self.c
        if not c.opt.get('persist'): return
        if not H: c.gw = getattr(c, 'gw', 0) + 1
        val = 1 if H else c.gw
        word = L_GW + (4 if H else 0)
        Lo = c.lab("gw"); Le = c.lab("gwe"); Ls = c.lab("gws")
        p(f"v_mov_b32 v139, {word}\ns_cmp_eq_u32 s{S_WID}, {4 if H else 0}\ns_cbranch_scc0 {Lo}")
        if not H and not issued: self.issue(p)
        self.check(p, c.opt.get('gsleep', 12))
        p(f"v_mov_b32 v139, {word}\nv_mov_b32 v137, {val}\nds_write_b32 v139, v137\ns_branch {Le}")
        p.label(Lo)
        p(f"s_mov_b32 s5, {c.opt.get('spinmax', 100000) * 16}")
        p.label(Ls)
        p(f"""
        s_sleep 1
        ds_read_b32 v137, v139
        s_sub_u32 s5, s5, 1
        s_cmp_eq_u32 s5, 0
        s_cbranch_scc1 {Le}
        s_waitcnt lgkmcnt(0)
        v_cmp_gt_u32 vcc, {val}, v137
        s_cbranch_vccnz {Ls}
        """)
        p.label(Le)
    def check(self, p, sleep=None):
        c = self.c
        if not c.opt.get('persist'): return
        L = c.lab("poll"); E = c.lab("pollx")
        p(f"s_mov_b32 s5, {c.opt.get('spinmax', 100000)}")
        p.label(L)
        p(self.test)
        p(f"""
        s_cbranch_vccz {E}
        s_sub_u32 s5, s5, 1
        s_cmp_eq_u32 s5, 0
        s_cbranch_scc1 {E}
        s_sleep {sleep or c.opt.get('spinsleep', 2)}
        s_mov_b64 exec, vcc
        """)
        p(self.load)
        p("s_mov_b64 exec, -1\ns_waitcnt vmcnt(0)")
        p(f"s_branch {L}")
        p.label(E)
        if c.opt.get('spincnt'):
            c.npoll = getattr(c, 'npoll', 0) + 1
            p(f"s_sub_u32 s5, {c.opt.get('spinmax', 100000)}, s5\nv_writelane_b32 v153, s5, {c.npoll - 1}")

def poll_init(c):
    return Poll(c, f"v_min_u32 v136, {4 * NKIND - 1}, v0\nv_lshlrev_b32 v136, 2, v136",
        f"buffer_load_dword v137, v136, s[{S_DBG}:{S_DBG+3}], 0 offen sc1", "v_cmp_eq_u32 vcc, 0, v137")

def poll_flags(c, kind, row_sgpr, shift=0, nprod=16, halo=False, single=None, col_sgpr=None):
    lg = nprod.bit_length() - 1
    a = f"v_and_b32 v136, {nprod - 1}, v0\n"
    if single is not None:
        a = f"s_xor_b32 s3, s{single}, 1\nv_mov_b32 v136, s3\n"
    if halo and c.local:
        a = f"""
        s_lshr_b32 s3, s{row_sgpr}, 1
        s_and_b32 s4, s{row_sgpr}, 1
        s_lshl_b32 s4, s4, 1
        s_add_u32 s4, s4, s3
        s_add_u32 s4, s4, 7
        s_and_b32 s4, s4, 7
        v_mov_b32 v136, s3
        v_mov_b32 v138, s4
        v_cmp_gt_u32 vcc, 32, v0
        v_cndmask_b32 v138, v138, v136, vcc
        v_and_b32 v136, 31, v0
        v_lshl_add_u32 v136, v138, 5, v136
        """
    elif halo:
        a += f"""
        v_lshrrev_b32 v138, 4, v0
        v_min_u32 v138, 2, v138
        s_add_u32 s3, s{row_sgpr}, 15
        v_add_u32 v138, s3, v138
        v_and_b32 v138, 15, v138
        v_lshl_add_u32 v136, v138, 4, v136
        """
    else:
        if col_sgpr is not None: a += f"v_and_b32 v138, 15, v0\nv_lshl_add_u32 v138, v138, 4, s{col_sgpr}\n"
        a += f"""
        s_lshr_b32 s3, s{row_sgpr}, {shift}
        s_lshl_b32 s3, s3, {lg}
        v_add_u32 v136, s3, v136
        """
        if col_sgpr is not None: a += "v_cmp_gt_u32 vcc, 32, v0\nv_cndmask_b32 v136, v138, v136, vcc\n"
    a += f"v_lshlrev_b32 v136, 7, v136\ns_mov_b32 s{S_POLL}, {WS_FLAG + kind * 32768}"
    return Poll(c, a, f"buffer_load_dwordx4 v[140:143], v136, s[{S_WS}:{S_WS+3}], s{S_POLL} offen sc1",
                "v_min3_u32 v137, v140, v141, v142\nv_min_u32 v137, v137, v143\nv_cmp_eq_u32 vcc, 0, v137")

def own_flags(p, c):
    if not c.opt.get('persist'): return
    L = c.lab("zf")
    p(f"""
    s_cmp_lt_u32 s2, {NKIND}
    s_cbranch_scc0 {L}
    s_lshl_b32 s4, s2, 2
    s_add_u32 s4, s4, s{S_WID}
    s_lshl_b32 s3, s4, 13
    s_add_u32 s3, s3, {WS_FLAG}
    v_lshlrev_b32 v136, 7, v0
    v_mov_b32 v137, 0
    v_mov_b32 v140, 0
    v_mov_b32 v141, 0
    v_mov_b32 v142, 0
    v_mov_b32 v143, 0
    buffer_store_dwordx4 v[140:143], v136, s[{S_WS}:{S_WS+3}], s3 offen sc1
    s_lshl_b32 s4, s4, 2
    v_mov_b32 v138, 1
    """)
    srd(p, S_AUX, ptr('dbg'), 256)
    p(f"""
    s_waitcnt vmcnt(0)
    s_mov_b64 exec, 1
    buffer_store_dword v138, v137, s[{S_AUX}:{S_AUX+3}], s4 offen sc1
    s_mov_b64 exec, -1
    """)
    p.label(L)

def own_offsets(p, c):
    if not c.opt.get('persist'): return
    for k, row, idx, lg in ((F_QKV, S_HEAD, S_QB, 3) if c.local else (F_QKV, S_NT3, S_MT3, 4),
                            (F_W1, S_QB, S_HEAD, 5) if c.local else (F_W1, S_MT3, S_NT3, 4) if c.merged else (F_W1, S_MT2, S_NT2, 4),
                            (F_W2, S_MT2, S_NT2, 4), (F_W3, S_MT3, S_NT3, 4),
                            (F_ATT, S_QB, S_HEAD, 5), (F_XCH, S_MT2, S_NT2, 4), (F_ST, S_MT3, S_NT3, 4), (F_CS, S_NT3, S_MT3, 4)):
        p(f"""
        s_lshl_b32 s3, s{row}, {lg}
        s_add_u32 s3, s3, s{idx}
        s_lshl_b32 s3, s3, 7
        s_add_u32 s{S_FL + k}, s3, {WS_FLAG + k * 32768}
        """)

def publish(p, c, kind, all4, v=136):
    if not c.opt.get('persist'): return
    W = f"s[{S_WS}:{S_WS+3}]"
    if all4:
        L = c.lab("pub")
        p(f"s_cmp_eq_u32 s{S_WID}, 0\ns_cbranch_scc0 {L}")
        p(f"v_lshlrev_b32 v{v}, 2, v0\nv_mov_b32 v{v+1}, 1\ns_mov_b64 exec, 15")
        p(f"buffer_store_dword v{v+1}, v{v}, {W}, s{S_FL + kind} offen sc1")
        p("s_mov_b64 exec, -1")
        p.label(L)
    else:
        p(f"s_lshl_b32 s3, s{S_WID}, 2\nv_mov_b32 v{v}, s3\nv_mov_b32 v{v+1}, 1\ns_mov_b64 exec, 1")
        p(f"buffer_store_dword v{v+1}, v{v}, {W}, s{S_FL + kind} offen sc1")
        p("s_mov_b64 exec, -1")

def gen_kernel(name, tasks, opt):
    c = Ctx(name, opt)
    c.ool = []
    c.stampv = 24
    c.merged = getattr(tasks[0], 'NT', 0) == 8
    c.local = c.merged and tasks[0].nA == 8
    for i, T in enumerate(tasks): T.nxt = tasks[i + 1] if i + 1 < len(tasks) else None
    for T in tasks:
        if hasattr(T, 'link'): T.link(c)
    p = Prog()
    def T(k):
        if opt.get('sstamp'): p(f"s_memrealtime s[{96 + 0}:{97}]\ns_waitcnt lgkmcnt(0)\nv_writelane_b32 v153, s96, {k}")
    p(f"""
    s_cmp_ge_u32 s2, 256
    s_cbranch_scc1 {name}_end
    """)
    T(0)
    if opt.get('entry'): p("s_memrealtime s[96:97]")
    p(f"""
    s_load_dwordx16 s[{S_PTR}:{S_PTR+15}], s[0:1], 0
    s_load_dwordx8 s[{S_PTR+16}:{S_PTR+23}], s[0:1], 64
    s_lshr_b32 s{S_IDX}, s2, 3
    """)
    code_prefetch(p, c)
    p(f"""
    v_lshrrev_b32 v1, 6, v0
    v_and_b32 v0, 63, v0
    v_readfirstlane_b32 s{S_WID}, v1
    v_lshlrev_b32 v{V_L16}, 4, v0
    s_and_b32 s{S_XCD}, s2, 7
    s_mov_b32 s{S_RD}, 0
    s_mov_b32 s{S_DMA}, 0
    """)
    tile_map(p, 3, S_MT3, S_NT3)
    ids = f"""
    s_mov_b32 s{S_NEG}, {-(NSLOT - 1) * SLOT & 0xffffffff}
    s_and_b32 s3, s{S_XCD}, 3
    s_lshl_b32 s3, s3, 2
    s_and_b32 s4, s{S_IDX}, 3
    s_add_u32 s{S_MT2}, s3, s4
    s_lshr_b32 s3, s{S_IDX}, 2
    s_lshl_b32 s3, s3, 1
    s_lshr_b32 s4, s{S_XCD}, 2
    s_add_u32 s{S_NT2}, s3, s4
    s_lshl_b32 s3, s{S_NT3}, 1
    s_and_b32 s4, s{S_IDX}, 1
    s_add_u32 s{S_HEAD}, s3, s4
    s_lshr_b32 s{S_QB}, s{S_MT3}, 1
    s_lshl_b32 s3, s{S_QB}, 3
    s_add_u32 s{S_BLK}, s3, s{S_WID}
    """
    T0 = tasks[0]
    lazy = hasattr(T0, 'h_first')
    ids_first = not lazy or getattr(T0, 'NT', 0) == 2 or c.local
    if ids_first: p(ids); ids = ''
    p(f"""
    s_cmp_lt_u32 s{S_WID}, 4
    s_cbranch_scc1 {name}_G
    """)
    p(f"s_sub_u32 s{S_WM}, s{S_WID}, 4")
    if opt.get('hhigh') == 2: p("s_setprio 1")
    if lazy: T0.h_first(p, c)
    T0.h_setup2(p, c, first=True)
    T(1)
    if not lazy: srd(p, S_WS, ptr('ws'), WS_SIZE)
    T0.h_post_dep(p, c)
    p.add(T0.dma_atoms(c))
    T(2)
    D1 = T0.dma_atoms(c)
    p.add(D1)
    ex = 0
    T(3)
    if lazy:
        p(ids)
        srd(p, S_WS, ptr('ws'), WS_SIZE)
    srd(p, S_DBG, ptr('dbg'), 256)
    T0.first_extra = ex
    p(f"s_waitcnt vmcnt({nvm(D1) + ex})")
    T(4)
    p("s_barrier")
    T(5)
    p("s_mov_b32 s62, 0")
    hstep_stamp(p, c)
    skip0 = False
    for i, Tk in enumerate(tasks):
        nxt = tasks[i + 1] if i + 1 < len(tasks) else None
        for _ in range(opt.get('hdelay', {}).get(i, 0)): p('s_sleep 8')
        skip0 = Tk.h_body(p, c, nxt, skip0)
        Tk.h_epi(p, c)
    T(6)
    if opt.get('sstamp') or opt.get('spincnt'): p("v_mov_b32 v150, v153")
    hstep_dump(p, c)
    p("s_endpgm")
    p.label(f"{name}_G")
    tlb_warm(p, c)
    p(f"v_mov_b32 v2, {L_GW}\nv_mov_b32 v3, 0\nds_write_b32 v2, v3\nds_write_b32 v2, v3 offset:4")
    srd(p, S_WS, ptr('ws'), WS_SIZE)
    own_flags(p, c)
    if lazy:
        T0.g_first(p, c)
        p(ids)
    p(f"""
    s_and_b32 s{S_WM}, s{S_WID}, 1
    s_lshr_b32 s{S_WN}, s{S_WID}, 1
    """)
    c.ST(p, 'g')
    if opt.get('entry'):
        p(f"v_mov_b32 v140, s96\nv_mov_b32 v142, 0\ns_mov_b64 exec, 1\nbuffer_store_dword v140, v142, s[{S_WS}:{S_WS+3}], s60 offen offset:248\ns_mov_b64 exec, -1")
    own_offsets(p, c)
    if opt.get('gprio'): p(f"s_setprio {opt['gprio']}")
    for i, Tk in enumerate(tasks):
        c.stampv = 24
        if i == 0 and hasattr(Tk, 'g_pre_early'): Tk.g_pre_early(p, c)
        if i == 0: Tk.early(p, c)
        Tk.g_setup(p, c)
        if i == 0: p("s_waitcnt lgkmcnt(0)\ns_barrier")
        c.ST(p, 'g')
        for _ in range(opt.get('gdelay', {}).get(i, 0)): p('s_sleep 8')
        Tk.g_body(p, c, tasks[i - 1] if i > 0 else None)
        c.ST(p, 'g')
        if i + 1 < len(tasks): tasks[i + 1].early(p, c)
        Tk.g_epi(p, c)
        if i + 1 < len(tasks) and (tasks[i + 1].xbar or tasks[i + 1].exposed): p("s_barrier")
        if hasattr(Tk, 'g_after_bar'): Tk.g_after_bar(p, c)
    c.ST(p, 'g')
    if opt.get('stamp'):
        p("s_waitcnt vmcnt(0)")
        c.ST(p, 'g')
    p("s_endpgm")
    for f in c.ool: f(p)
    p.label(f"{name}_end")
    p("s_endpgm")
    p.finish(verbose=opt.get('verbose', False))
    return p, dict(grid=256, block=512, lds=LDS_BYTES, nstamp=c.stamp_slot['g'])

def g_prefetch(p, c, items, fl='', vdst=None):
    if not c.opt.get('pf', 1) or not items: return 0
    p(f"""
    s_lshl_b32 s3, s2, 2
    s_and_b32 s4, s{S_WID}, 3
    s_add_u32 s3, s3, s4
    s_mov_b32 m0, {L_DUMMY}
    """)
    for nm, tot, m0_, n in items:
        srd(p, S_AUX, ptr(nm), tot)
        p(f"s_mul_i32 s5, s3, {n * 1024}")
        if m0_: p(f"s_add_u32 s5, s5, {m0_ * MB}")
        for i in range(n):
            if vdst is None: p(f"buffer_load_dwordx4 v1, s[{S_AUX}:{S_AUX+3}], s5 offen {fl} lds")
            else:
                p(f"buffer_load_dwordx4 {vr(vdst, 4)}, v1, s[{S_AUX}:{S_AUX+3}], s5 offen {fl}"); vdst += 4
            if i < n - 1: p(f"s_add_u32 s5, s5, 1024")
    return sum(x[3] for x in items)

def code_prefetch(p, c, again=False):
    if not c.opt.get('cpf', 1) or (again and not c.opt.get('cpf2', 1)): return
    L = c.lab("pc")
    p("s_getpc_b64 s[4:5]")
    p.label(L)
    p(f"""
    s_sub_u32 s4, s4, {L}-{c.name}
    s_subb_u32 s5, s5, 0
    s_lshl_b32 s3, s{S_IDX}, 11
    """)
    if again: p(f"s_and_b32 s6, s{S_WID}, 3\ns_lshl_b32 s6, s6, 9\ns_add_u32 s3, s3, s6\nv_lshl_add_u32 v136, v0, 3, s3")
    else: p("v_lshl_add_u32 v136, v0, 2, s3")
    p(f"""
    s_mov_b32 s3, {c.name}_end-{c.name}
    v_min_u32 v136, s3, v136
    v_mov_b32 v137, s5
    v_add_co_u32 v136, vcc, s4, v136
    v_addc_co_u32 v137, vcc, 0, v137, vcc
    global_load_dword v138, v[136:137], off
    """)

def tlb_warm(p, c):
    if not c.opt.get('tlb', 0): return
    g = c.opt.get('tlbg', 2 * MB)
    def pages(nm, size): return [(nm, o) for o in range(0, size, g)]
    L = [pages('x', 4 * MB) + pages('wqkv', 6 * MB) + pages('gate', 1) + pages('w1', 2 * MB) + pages('dbg', 1) + pages('out', 4 * MB),
         pages('w2', 2 * MB) + pages('w3', 7 * MB) + pages('w4', 7 * MB) + pages('wo', 2 * MB)]
    ws = pages('ws', WS_SIZE)
    L += [ws[:len(ws) // 2], ws[len(ws) // 2:]]
    E = c.lab("tlbe")
    p("s_waitcnt lgkmcnt(0)")
    for w in range(4):
        N = c.lab("tlb")
        if w < 3: p(f"s_cmp_eq_u32 s{S_WID}, {w}\ns_cbranch_scc0 {N}")
        for nm, o in L[w]:
            if o: p(f"s_mov_b32 s3, {o}")
            p.I.append(Inst("s_nop 0"))
            p.I[-1].text = f"s_load_dword s98, s[{ptr(nm)}:{ptr(nm)+1}], " + ("s3" if o else "0")
        if w < 3:
            p(f"s_branch {E}")
            p.label(N)
    p.label(E)
    c.tlb_pending = True

def rot_pieces(p, n, first, rank_code, lds_base, emit):
    p(rank_code)
    for k in range(n):
        if k:
            p(f"s_add_u32 s6, s6, 1\ns_cmp_eq_u32 s6, {n}\ns_cselect_b32 s6, 0, s6")
        p(f"s_lshl_b32 s7, s6, 10\ns_add_u32 s{S_OFFS[first + k]}, s7, s{lds_base}")
        emit(k)
```

```python
from fw import *

def lane_fields(p, r16=None, g=None, r4=None, c4=None):
    if r16 is not None: p(f"v_and_b32 v{r16}, 15, v0")
    if g is not None: p(f"v_lshrrev_b32 v{g}, 4, v0")
    if r4 is not None: p(f"v_bfe_u32 v{r4}, v0, 2, 2")
    if c4 is not None: p(f"v_and_b32 v{c4}, 3, v0")

T0 = 128

def h_xrows(p, regs, sub_off, S_MT):
    p(f"""
    v_lshrrev_b32 v{T0}, 3, v0
    v_and_b32 v{T0+1}, 7, v0
    s_lshl_b32 s3, s{S_MT}, 7
    s_lshl_b32 s4, s{S_WM}, 5
    s_add_u32 s3, s3, s4
    v_lshrrev_b32 v{T0+2}, 1, v{T0}
    v_xor_b32 v{T0+2}, v{T0+2}, v{T0+1}
    v_add_u32 v{T0+3}, s3, v{T0}
    v_lshlrev_b32 v{T0+3}, 11, v{T0+3}
    v_lshl_add_u32 v{regs[0]}, v{T0+2}, 4, v{T0+3}
    v_xor_b32 v{T0+2}, 64, v{regs[0]}
    """)
    for i, r in enumerate(regs):
        if i == 0: continue
        ii = i % 4
        src = regs[0] if ii % 2 == 0 else T0 + 2
        p(f"v_add_u32 v{r}, {ii * 8 * 2048 + sub_off(i)}, v{src}")

class QKV(Gemm):
    NT = 6; KS = 2; nsteps = 16; nA = 4; nB = 6
    stepA = 128; stepB = 64 * 6144
    addr_regs = [32, 34, 35, 33]
    pubkind = F_QKV
    h_steps = (0, 1, 2, 3, 4, 5, 6, 7)
    def swap(self, n): return n >= 4
    def xaddr(self, kk, m): return (32 + kk, m * 2048)
    def waddr(self, kk, n, j): return (34 + n % 2, (32 * kk + 4 * j) * 384 + (n // 2) * 128)
    def aflag(self, c): return c.opt.get('ldflag', '')
    def h_setup(self, p, c, first=False):
        h_xrows(p, [32, 33, 34, 35], lambda i: 0, S_MT3)
        p(f"""
        s_mul_i32 s3, s{S_WM}, 384
        s_lshl_b32 s4, s{S_NT3}, 7
        """)
        for i in range(3):
            p(f"""
            v_add_u32 v{T0}, s3, v0
            v_add_u32 v{T0}, {64 * i}, v{T0}
            v_mul_u32_u24 v{T0+1}, 0xaab, v{T0}
            v_lshrrev_b32 v{T0+1}, 16, v{T0+1}
            v_mul_u32_u24 v{T0+2}, 24, v{T0+1}
            v_sub_u32 v{T0+2}, v{T0}, v{T0+2}
            v_lshrrev_b32 v{T0+3}, 3, v{T0+2}
            v_and_b32 v{T0+2}, 7, v{T0+2}
            v_and_b32 v{T0+4}, 2, v{T0+1}
            v_xor_b32 v{T0+2}, v{T0+2}, v{T0+4}
            v_mul_u32_u24 v{T0+1}, 6144, v{T0+1}
            v_lshl_add_u32 v{T0+1}, v{T0+3}, 11, v{T0+1}
            v_lshl_add_u32 v{T0+1}, v{T0+2}, 4, v{T0+1}
            v_add_u32 v{36 + i}, s4, v{T0+1}
            v_xor_b32 v{T0+1}, 64, v{36 + i}
            v_add_u32 v{39 + i}, {8 * 6144}, v{T0+1}
            """)
        p(f"""
        s_lshl_b32 s{S_LD[0]}, s{S_WM}, 12
        s_mul_i32 s{S_LD[1]}, s{S_WM}, 6144
        s_add_u32 s{S_LD[1]}, s{S_LD[1]}, 16384
        s_mov_b32 s{S_SO[0]}, 0
        s_mov_b32 s{S_SO[1]}, 0
        """)
        srd(p, S_B, ptr('wqkv'), 1024 * 6144)
    def g_setup(self, p, c):
        lane_fields(p, T0, T0 + 1, T0 + 2, T0 + 3)
        p(f"""
        v_lshrrev_b32 v{T0+4}, 1, v{T0}
        v_xor_b32 v{T0+4}, v{T0+4}, v{T0+1}
        v_lshlrev_b32 v{T0+4}, 4, v{T0+4}
        v_lshl_or_b32 v{T0+4}, v{T0}, 7, v{T0+4}
        s_lshl_b32 s3, s{S_WM}, 13
        s_add_u32 s3, s3, s{S_RD}
        v_add_u32 v32, s3, v{T0+4}
        v_xor_b32 v33, 64, v32
        v_lshl_add_u32 v{T0+4}, v{T0+1}, 3, v{T0+2}
        v_mul_u32_u24 v{T0+4}, 384, v{T0+4}
        v_lshrrev_b32 v{T0+5}, 1, v{T0+2}
        v_and_b32 v{T0+6}, 1, v{T0+1}
        v_lshl_or_b32 v{T0+5}, v{T0+6}, 1, v{T0+5}
        s_lshl_b32 s3, s{S_WN}, 1
        v_xor_b32 v{T0+5}, s3, v{T0+5}
        v_lshl_add_u32 v{T0+4}, v{T0+5}, 5, v{T0+4}
        v_lshl_add_u32 v{T0+4}, v{T0+3}, 3, v{T0+4}
        s_add_u32 s3, s{S_RD}, 16384
        v_add_u32 v34, s3, v{T0+4}
        v_xor_b32 v35, 32, v34
        """)
        self.g_zero(p)
    def g_epi(self, p, c):
        st = c.opt.get('stflag', '')
        lane_fields(p, T0, T0 + 1)
        p(f"""
        s_waitcnt lgkmcnt(0)
        v_lshrrev_b32 v{T0+2}, 1, v{T0+1}
        v_and_b32 v{T0+3}, 1, v{T0+1}
        v_lshlrev_b32 v{T0+2}, 10, v{T0+2}
        v_lshl_or_b32 v{T0+2}, v{T0+3}, 9, v{T0+2}
        v_lshl_or_b32 v32, v{T0}, 4, v{T0+2}
        v_and_b32 v{T0+3}, 7, v{T0}
        v_lshrrev_b32 v{T0+4}, 3, v{T0}
        v_lshl_or_b32 v{T0+2}, v{T0+4}, 8, v{T0+2}
        v_lshl_or_b32 v33, v{T0+3}, 4, v{T0+2}
        s_lshl_b32 s3, s{S_NT3}, 1
        s_add_u32 s3, s3, s{S_WN}
        s_lshl_b32 s4, s{S_MT3}, 2
        s_lshl_b32 s5, s{S_WM}, 1
        s_add_u32 s4, s4, s5
        s_lshl_b32 s5, s3, 17
        s_lshl_b32 s6, s4, 11
        s_add_u32 s42, s5, s6
        s_lshl_b32 s43, s42, 1
        s_add_u32 s43, s43, {WS_KV}
        s_add_u32 s44, s43, 4096
        s_mov_b32 s46, {hexf(QSCALE)}
        s_mov_b32 s47, {hexf(QSCALE)}
        """)
        W = f"s[{S_WS}:{S_WS+3}]"
        st = c.opt.get('qkvst', st)
        t = V_FR
        for m in range(4):
            a, b = self.acc(m, 2), self.acc(m, 3)
            for i, r in enumerate((a, a + 2, b, b + 2)): p(f"v_cvt_pk_bf16_f32 v{t + i}, v{r}, v{r + 1}")
            p(f"buffer_store_dwordx4 {vr(t, 4)}, v33, {W}, s{43 + m // 2} offen offset:{(m % 2) * 128} {st}")
            t += 4
        for u in range(2):
            for nb in range(2):
                a = self.acc(2 * u, 4 + nb)
                for i in range(4): p(f"v_cvt_pk_bf16_f32 v{t + i}, v{a + 2 * i}, v{a + 2 * i + 1}")
                p(f"buffer_store_dwordx4 {vr(t, 4)}, v32, {W}, s{43 + u} offen offset:{2048 + nb * 256} {st}")
                t += 4
        for m in range(4):
            a, b = self.acc(m, 0), self.acc(m, 1)
            for r in (a, a + 2, b, b + 2): p(f"v_pk_mul_f32 {vr(r, 2)}, {vr(r, 2)}, s[46:47]")
            for i, r in enumerate((a, a + 2, b, b + 2)): p(f"v_cvt_pk_bf16_f32 v{t + i}, v{r}, v{r + 1}")
            p(f"buffer_store_dwordx4 {vr(t, 4)}, v32, {W}, s42 offen offset:{(m // 2) * 2048 + (m % 2) * 256} {st}")
            t += 4
    def h_first(self, p, c):
        srd(p, S_A, ptr('x'), 2048 * 2048)
        srd(p, S_AUX, ptr('gate'), 2048)
        p(f"""
        s_lshl_b32 s48, s{S_MT3}, 4
        s_add_u32 s48, s48, s{S_NT3}
        s_lshl_b32 s48, s48, 3
        s_lshl_b32 s3, s{S_WM}, 1
        s_add_u32 s48, s48, s3
        s_lshl_b32 s3, s48, 11
        buffer_load_dwordx4 v[64:67], v1, s[{S_A}:{S_A+3}], s3 offen
        buffer_load_dwordx4 v[68:71], v1, s[{S_A}:{S_A+3}], s3 offen offset:1024
        buffer_load_dwordx4 v[72:75], v1, s[{S_A}:{S_A+3}], s3 offen offset:2048
        buffer_load_dwordx4 v[76:79], v1, s[{S_A}:{S_A+3}], s3 offen offset:3072
        buffer_load_dwordx4 v[80:83], v1, s[{S_AUX}:{S_AUX+3}], 0 offen
        buffer_load_dwordx4 v[84:87], v1, s[{S_AUX}:{S_AUX+3}], 0 offen offset:1024
        """)
    def bflag(self, c): return c.opt.get('qbfl', '')
    def pf_list(self, c): return [('wqkv', 6 * MB, i, 1) for i in range(c.opt.get('nqpf', 6))] + [('w1', 2 * MB, i, 1) for i in range(2)]
    def g_first(self, p, c):
        n0 = c.opt.get('pf0', 1)
        g_prefetch(p, c, self.pf_list(c)[:n0])
        if c.opt.get('gpf', 0):
            srd(p, S_A, ptr('wqkv'), 6 * MB)
            srd(p, S_B, ptr('w1'), 2 * MB)
            p(f"""
            s_lshl_b32 s3, s3, 10
            s_add_u32 s{S_SO[0]}, s3, {n0 * MB}
            s_add_u32 s{S_SO[1]}, s3, {(-(6 - n0) * MB) & 0xffffffff}
            """)
    def g_loop_atoms(self, c):
        if not c.opt.get('gpf', 0) or not c.opt.get('pf', 1): return []
        L = []
        for k, r in enumerate((S_A, S_B)):
            L += [f"buffer_load_dwordx4 v1, s[{r}:{r+3}], s{S_SO[k]} offen lds", f"s_add_u32 s{S_SO[k]}, s{S_SO[k]}, {MB}"]
        return L
    def g_sites(self, c):
        if not c.opt.get('persist'): return {}
        return {9: lambda p: publish(p, c, F_ST, True)}
    def h_poll(self, c, t): return poll_init(c) if t == 6 else None
    def h_mix(self, p, c, t):
        t -= 1
        if 1 <= t <= 4:
            if t == 1:
                for a in range(48, 54): p(f"v_mov_b32 v{a}, 0")
            for i in (2 * t - 2, 2 * t - 1):
                p(f"v_lshlrev_b32 v58, 16, v{80 + i}")
                p(f"v_and_b32 v59, 0xffff0000, v{80 + i}")
                for row in range(2):
                    ag, as_, aq = 48 + row, 50 + row, 52 + row
                    x = 64 + 8 * row + i
                    p(f"""
                    v_lshlrev_b32 v56, 16, v{x}
                    v_and_b32 v57, 0xffff0000, v{x}
                    v_add_f32 v{as_}, v{as_}, v56
                    v_fmac_f32 v{aq}, v56, v56
                    v_add_f32 v{as_}, v{as_}, v57
                    v_fmac_f32 v{aq}, v57, v57
                    v_mul_f32 v56, v56, v58
                    v_mul_f32 v57, v57, v59
                    v_cvt_pk_bf16_f32 v56, v56, v57
                    v_lshlrev_b32 v57, 16, v56
                    v_and_b32 v56, 0xffff0000, v56
                    v_add_f32 v{ag}, v{ag}, v57
                    v_add_f32 v{ag}, v{ag}, v56
                    """)
        if t == 5:
            for a in (48, 50, 52): p(f"v_permlane32_swap_b32 v{a}, v{a + 1}")
            for a in (48, 50, 52): p(f"v_add_f32 v{a}, v{a}, v{a + 1}")
            for a in (48, 50, 52): p(f"v_mov_b32 v{a + 1}, v{a}")
            for a in (48, 50, 52): p(f"v_permlane16_swap_b32 v{a}, v{a + 1}")
            for a in (48, 50, 52): p(f"v_add_f32 v{a}, v{a}, v{a + 1}")
            for sh in (8, 4, 2, 1):
                for a in (48, 50, 52): p(f"v_add_f32_dpp v{a}, v{a}, v{a} row_ror:{sh} row_mask:0xf bank_mask:0xf")
        if t == 6:
            p(f"""
            v_mul_f32 v50, {hexf(1.0 / 1024)}, v50
            v_mul_f32 v52, {hexf(1.0 / 1024)}, v52
            v_fma_f32 v52, -v50, v50, v52
            v_max_f32 v52, 0, v52
            v_add_f32 v52, {hexf(1e-5)}, v52
            v_rsq_f32 v52, v52
            v_cvt_pk_bf16_f32 v48, v48, v48
            v_and_b32 v48, 0xffff0000, v48
            v_mul_f32 v48, {hexf(-LOG2E)}, v48
            v_exp_f32 v48, v48
            v_add_f32 v48, 1.0, v48
            v_rcp_f32 v48, v48
            v_cvt_pk_bf16_f32 v48, v48, v48
            v_and_b32 v48, 0xffff0000, v48
            v_sub_f32 v49, 1.0, v48
            v_cvt_pk_bf16_f32 v49, v49, v49
            v_and_b32 v49, 0xffff0000, v49
            v_lshrrev_b32 v56, 5, v0
            v_add_u32 v56, s48, v56
            v_lshlrev_b32 v56, 2, v56
            """)
    def h_extra(self, p, c, t):
        W = f"s[{S_WS}:{S_WS+3}]"
        st = c.opt.get('stflag', '')
        rest = self.pf_list(c)[c.opt.get('pf0', 1):]
        k = c.opt.get('pfk', 1)
        if t < 7:
            it = rest[k * t:k * (t + 1)] if not c.opt.get('gpf', 0) else []
            return g_prefetch(p, c, it, c.opt.get('pffl', '')) if it else 0
        if t == 7:
            p(f"""
            s_mov_b32 s3, {WS_G}
            s_mov_b32 s4, {WS_G + 8192}
            s_mov_b32 s5, {WS_ST1}
            s_mov_b32 s6, {WS_ST1 + 8192}
            s_mov_b32 exec_lo, 1
            s_mov_b32 exec_hi, 1
            buffer_store_dword v48, v56, {W}, s3 offen {st}
            buffer_store_dword v49, v56, {W}, s4 offen {st}
            buffer_store_dword v50, v56, {W}, s5 offen {st}
            buffer_store_dword v52, v56, {W}, s6 offen {st}
            s_mov_b64 exec, -1
            """)
            return 4
        return 0

class N64(Gemm):
    NT = 2; KS = 4; nA = 8; nB = 4
    stepB = 128 * 2048
    order = 'perm32'; bname = None; babytes = 1024 * 2048
    a_pitch = 32768; a_base = 0; a_size = 4 * MB
    stepA = 4096
    addr_regs = [32, 34, 35]
    def xaddr(self, kk, m): return (32, m * 4096 + kk * 1024)
    def waddr(self, kk, n, j):
        js = {'nat': 4, 'perm32': 16, 'perm32b': 8}[self.order]
        return (34 + n, (32 * kk + js * j) * 128)
    def g_body(self, p, c, prev):
        if not c.opt.get('chain64', 1) or self.order == 'nat': return Gemm.g_body(self, p, c, prev)
        xf = lambda s, m, h: 48 + 48 * s + 8 * m + 4 * h
        wf = lambda s, n, h: 48 + 48 * s + 32 + 8 * n + 4 * h
        def reads(s, kk):
            rx = lambda m: ["ds_read_b128 %s, v%d offset:%d" % ((vr(xf(s, m, h), 4),) + self.xaddr(2 * kk + h, m)) for h in range(2)]
            rw = lambda n: ["ds_read_b64_tr_b16 %s, v%d offset:%d" % ((vr(wf(s, n, h) + 2 * j, 2),) + self.waddr(2 * kk + h, n, j)) for h in range(2) for j in range(2)]
            return rx(0) + rw(0) + rx(1) + rx(2) + rx(3) + rw(1)
        def mfmas(s, c0=None):
            M = []
            for n in range(2):
                for i, m in enumerate(range(4) if n == 0 else range(3, -1, -1)):
                    for h in ((0, 1) if i % 2 == 0 else (1, 0)): M.append(mfma16(self.acc(m, n), wf(s, n, h), xf(s, m, h)))
            return M
        self.reads, self.mfmas, self.KS, self.small = reads, mfmas, 2, True
        if getattr(self, 'xw', 0) == 5 and hasattr(self, 'xwait') and c.opt.get('short', 1):
            upd = slot_adv_rd() + [f"v_add_u32 v{r}, s{S_DELTA}, v{r}" for r in self.addr_regs]
            p.add(reads(0, 0))
            p.add(interleave(mfmas(0), reads(1, 1), [1] * 16))
            M = mfmas(1)
            p.add(spread(M[:4], upd))
            p("s_waitcnt lgkmcnt(0)\ns_barrier")
            p.add(interleave(M[4:], reads(0, 1), [2] * 16))
            self.g_sites(c); self.xf_(p)
            p.add(slot_adv_rd())
            p.add(mfmas(0))
            p("s_barrier")
            return
        Gemm.g_body(self, p, c, prev)
    def rotated(self, c): return c.opt.get('rot', 0)
    def h_setup_a(self, p, c):
        srd(p, S_A, ptr('ws'), self.a_size, self.a_base)
        p(f"""
        s_lshl_b32 s3, s{S_MT2}, 3
        s_lshl_b32 s4, s{S_WM}, 1
        s_add_u32 s3, s3, s4
        s_mul_i32 s3, s3, {self.a_pitch}
        """)
        if self.rotated(c):
            def emit(k):
                p(f"""
                s_lshr_b32 s4, s6, 2
                s_mul_i32 s4, s4, {self.a_pitch - 4096}
                s_add_u32 s4, s4, s7
                s_add_u32 s4, s4, s3
                v_add_u32 v{32 + k}, s4, v1
                """)
            rot_pieces(p, 8, 0, f"s_lshr_b32 s6, s{S_NT2}, 1", S_LD[0], emit)
        else:
            p("v_add_u32 v32, s3, v1")
            for i in range(1, 8): p(f"v_add_u32 v{32 + i}, {(i // 4) * self.a_pitch + (i % 4) * 1024}, v32")
        p(f"s_mov_b32 s{S_SO[0]}, {self.a_k0}")
    a_k0 = 0; b_k0 = 0
    def h_setup(self, p, c, first=False):
        p(f"""
        s_lshl_b32 s{S_LD[0]}, s{S_WM}, 13
        s_lshl_b32 s{S_LD[1]}, s{S_WM}, 12
        s_add_u32 s{S_LD[1]}, s{S_LD[1]}, 32768
        s_mov_b32 s{S_SO[1]}, {self.b_k0}
        """)
        self.h_setup_a(p, c)
        srd(p, S_B, ptr(self.bname), self.babytes)
        p(f"""
        v_lshrrev_b32 v{T0}, 3, v0
        v_and_b32 v{T0+1}, 7, v0
        v_and_b32 v{T0+2}, {2 if self.order == 'nat' else 6}, v{T0}
        v_xor_b32 v{T0+1}, v{T0+1}, v{T0+2}
        s_lshl_b32 s3, s{S_WM}, 5
        v_add_u32 v{T0}, s3, v{T0}
        v_lshlrev_b32 v{T0}, 11, v{T0}
        v_lshl_add_u32 v{T0}, v{T0+1}, 4, v{T0}
        s_lshl_b32 s4, s{S_NT2}, 7
        """)
        if self.rotated(c):
            p(f"v_add_u32 v{T0}, s4, v{T0}")
            def emit(k):
                p(f"s_lshl_b32 s4, s6, 14\nv_add_u32 v{40 + k}, s4, v{T0}")
                if self.order == 'nat': p(f"s_and_b32 s4, s6, 1\ns_lshl_b32 s4, s4, 6\nv_xor_b32 v{40 + k}, s4, v{40 + k}")
            rot_pieces(p, 4, 8, f"s_and_b32 s6, s{S_MT2}, 3", S_LD[1], emit)
        else:
            p(f"v_add_u32 v40, s4, v{T0}")
            if self.order == 'nat':
                p(f"v_xor_b32 v{T0}, 64, v40")
                p(f"v_add_u32 v41, {8 * 2048}, v{T0}\nv_add_u32 v42, {16 * 2048}, v40\nv_add_u32 v43, {24 * 2048}, v{T0}")
            else:
                for i in range(1, 4): p(f"v_add_u32 v{40 + i}, {8 * i * 2048}, v40")
    def g_setup_x(self, p, c):
        p(f"""
        s_lshl_b32 s3, s{S_WM}, 14
        s_add_u32 s3, s3, s{S_RD}
        v_add_u32 v32, s3, v1
        """)
    def g_setup(self, p, c):
        lane_fields(p, T0, T0 + 1, T0 + 2, T0 + 3)
        self.g_setup_x(p, c)
        if self.order == 'nat': p(f"v_lshl_add_u32 v{T0+4}, v{T0+1}, 3, v{T0+2}")
        elif self.order == 'perm32': p(f"v_lshl_add_u32 v{T0+4}, v{T0+1}, 2, v{T0+2}")
        else:
            p(f"""
            v_lshrrev_b32 v{T0+4}, 1, v{T0+1}
            v_lshl_add_u32 v{T0+4}, v{T0+4}, 4, v{T0+2}
            v_and_b32 v{T0+5}, 1, v{T0+1}
            v_lshl_add_u32 v{T0+4}, v{T0+5}, 2, v{T0+4}
            """)
        p(f"""
        v_lshlrev_b32 v{T0+4}, 7, v{T0+4}
        v_lshrrev_b32 v{T0+5}, 1, v{T0+2}
        v_and_b32 v{T0+6}, 1, v{T0+1}
        v_lshl_or_b32 v{T0+5}, v{T0+6}, 1, v{T0+5}
        s_lshl_b32 s3, s{S_WN}, 1
        v_xor_b32 v{T0+5}, s3, v{T0+5}
        v_lshl_add_u32 v{T0+4}, v{T0+5}, 5, v{T0+4}
        v_lshl_add_u32 v{T0+4}, v{T0+3}, 3, v{T0+4}
        s_add_u32 s3, s{S_RD}, 32768
        v_add_u32 v34, s3, v{T0+4}
        v_xor_b32 v35, 32, v34
        """)
        self.g_pre(p, c)
        self.g_zero(p)
    def g_pre(self, p, c): pass

def gelu_consts(p, b, has_og):
    rs, og, k1, k0, w, t = b + 1, b + 3, b + 2, b + 4, b + 6, b + 5
    p(f"""
    v_mul_f32 v{t}, v{rs}, v{rs}
    v_mul_f32 v{k0}, {hexf(GC0)}, v{rs}
    v_mul_f32 v{t}, v{t}, v{rs}
    v_mul_f32 v{k1}, {hexf(GC1)}, v{t}
    """)
    if has_og:
        p(f"""
        v_mul_f32 v{t}, v{og}, v{rs}
        v_rcp_f32 v{w}, v{t}
        """)
    else:
        p(f"v_rcp_f32 v{w}, v{rs}")
    p(f"v_min_f32 v{w}, {hexf(3e38)}, v{w}")

def gelu_block(p, items, tmp, pk=True):
    T = [tmp + 2 * i for i in range(len(items))]
    Z = list(zip(items, T))
    if pk:
        for (r, cs, b), t in Z: p(f"v_pk_fma_f32 {vr(r,2)}, {vr(cs,2)}, {vr(b,2)}, {vr(r,2)} op_sel_hi:[1,0,1] neg_lo:[1,0,0] neg_hi:[1,0,0]")
        for (r, cs, b), t in Z: p(f"v_pk_mul_f32 {vr(t,2)}, {vr(r,2)}, {vr(r,2)}")
        for (r, cs, b), t in Z: p(f"v_pk_fma_f32 {vr(t,2)}, {vr(t,2)}, {vr(b+2,2)}, {vr(b+4,2)} op_sel_hi:[1,0,0]")
        for (r, cs, b), t in Z: p(f"v_pk_mul_f32 {vr(t,2)}, {vr(t,2)}, {vr(r,2)}")
    else:
        for (r, cs, b), t in Z:
            for h in range(2): p(f"v_fma_f32 v{r+h}, -v{cs+h}, v{b}, v{r+h}")
        for (r, cs, b), t in Z:
            for h in range(2): p(f"v_mul_f32 v{t+h}, v{r+h}, v{r+h}")
        for (r, cs, b), t in Z:
            for h in range(2): p(f"v_fma_f32 v{t+h}, v{t+h}, v{b+2}, v{b+4}")
        for (r, cs, b), t in Z:
            for h in range(2): p(f"v_mul_f32 v{t+h}, v{t+h}, v{r+h}")
    for t in T:
        p(f"v_exp_f32 v{t}, v{t}"); p(f"v_exp_f32 v{t+1}, v{t+1}")
    for (r, cs, b), t in Z:
        if pk: p(f"v_pk_fma_f32 {vr(t,2)}, {vr(t,2)}, {vr(b+6,2)}, {vr(b+6,2)} op_sel_hi:[1,0,0]")
        else:
            for h in range(2): p(f"v_fma_f32 v{t+h}, v{t+h}, v{b+6}, v{b+6}")
    for t in T:
        p(f"v_rcp_f32 v{t}, v{t}"); p(f"v_rcp_f32 v{t+1}, v{t+1}")
    for (r, cs, b), t in Z:
        if pk: p(f"v_pk_mul_f32 {vr(r,2)}, {vr(r,2)}, {vr(t,2)}")
        else:
            for h in range(2): p(f"v_mul_f32 v{r+h}, v{r+h}, v{t+h}")

def read_tok_consts(p, base, vaddr, r16, has_og):
    p(f"""
    s_lshl_b32 s3, s{S_WM}, 8
    s_add_u32 s3, s3, {L_MU}
    v_lshl_add_u32 v{vaddr}, v{r16}, 2, s3
    """)
    for m in range(4):
        p(f"ds_read_b32 v{base + 8 * m}, v{vaddr} offset:{64 * m}")
        p(f"ds_read_b32 v{base + 8 * m + 1}, v{vaddr} offset:{512 + 64 * m}")
        if has_og: p(f"ds_read_b32 v{base + 8 * m + 3}, v{vaddr} offset:{1024 + 64 * m}")

class W1(N64):
    nsteps = 8; order = 'nat'; bname = 'w1'; stepA = 256
    addr_regs = [32, 34, 35, 33]
    pubkind = F_W1
    h_steps = (0, 1)
    xbar = True
    pubstep = 2
    def aflag(self, c): return c.opt.get('ldflag', '')
    def xaddr(self, kk, m): return (32 + kk % 2, (m // 2) * 8192 + (m % 2) * 2048 + (kk // 2) * 4096)
    def h_setup_a(self, p, c):
        srd(p, S_A, ptr('x'), 2048 * 2048)
        if self.rotated(c):
            h_xrows(p, [T0 + 4], lambda i: 0, S_MT2)
            def emit(k):
                p(f"""
                s_and_b32 s4, s6, 3
                s_lshl_b32 s4, s4, 14
                s_lshr_b32 s5, s6, 2
                s_lshl_b32 s5, s5, 7
                s_add_u32 s4, s4, s5
                v_add_u32 v{32 + k}, s4, v{T0+4}
                s_and_b32 s4, s6, 1
                s_lshl_b32 s4, s4, 6
                v_xor_b32 v{32 + k}, s4, v{32 + k}
                """)
            rot_pieces(p, 8, 0, f"s_lshr_b32 s6, s{S_NT2}, 1", S_LD[0], emit)
        else:
            h_xrows(p, list(range(32, 40)), lambda i: (i // 4) * 128, S_MT2)
        p(f"s_mov_b32 s{S_SO[0]}, 0")
    def g_setup_x(self, p, c):
        p(f"""
        v_lshrrev_b32 v{T0+4}, 1, v{T0}
        v_xor_b32 v{T0+4}, v{T0+4}, v{T0+1}
        v_lshlrev_b32 v{T0+4}, 4, v{T0+4}
        v_lshl_or_b32 v{T0+4}, v{T0}, 7, v{T0+4}
        s_lshl_b32 s3, s{S_WM}, 14
        s_add_u32 s3, s3, s{S_RD}
        v_add_u32 v32, s3, v{T0+4}
        v_xor_b32 v33, 64, v32
        """)
    lds_consts = True
    def extra_mfma(self, s, n): return [mfma16(112 + 4 * n, self.wf(s, n), 120)]
    def g_pre(self, p, c):
        for i in range(8): p(f"v_mov_b32 v{112 + i}, 0")
        for i in range(4): p(f"v_mov_b32 v{120 + i}, 0x3f803f80")
    def h_poll(self, c, t): return poll_flags(c, F_ST, S_MT2) if t == 0 else None
    def h_post(self, p, c, t):
        if t == (6 if self.nxt.late else 7): p("ds_write_b32 v58, v59\ns_waitcnt lgkmcnt(0)")
    def h_extra(self, p, c, t):
        W = f"s[{S_WS}:{S_WS+3}]"
        ho = c.opt.get('hoflag', ''); st = c.opt.get('stflag', '')
        if t == 1:
            p(f"""
            v_and_b32 v58, 31, v0
            v_lshrrev_b32 v59, 5, v0
            v_lshlrev_b32 v58, 2, v58
            v_lshl_add_u32 v60, v59, 13, v58
            v_lshl_add_u32 v58, v59, 9, v58
            s_lshl_b32 s3, s{S_MT2}, 9
            s_lshl_b32 s4, s{S_WM}, 7
            s_add_u32 s3, s3, s4
            s_add_u32 s3, s3, {WS_ST1}
            s_add_u32 s4, s4, {L_MU}
            v_add_u32 v58, s4, v58
            buffer_load_dword v59, v60, {W}, s3 offen {ho}
            """)
            return 1
        return 0
    def g_epi(self, p, c):
        st = c.opt.get('stflag', '')
        W = f"s[{S_WS}:{S_WS+3}]"
        lane_fields(p, T0, T0 + 1)
        p("s_waitcnt lgkmcnt(0)")
        if self.lds_consts: read_tok_consts(p, 144, 36, T0, False)
        for m in range(4): gelu_consts(p, 144 + 8 * m, False)
        p(f"""
        s_lshr_b32 s5, s{S_NT2}, 2
        s_lshr_b32 s6, s5, 1
        s_add_u32 s6, s6, 1
        s_sub_u32 s7, 0, s6
        s_bitcmp1_b32 s5, 0
        s_cselect_b32 s6, s7, s6
        s_lshl_b32 s3, s{S_MT2}, 7
        s_lshl_b32 s4, s{S_WM}, 6
        s_add_u32 s3, s3, s4
        s_add_u32 s6, s6, s3
        s_lshl_b32 s3, s{S_NT2}, 1
        s_add_u32 s3, s3, s{S_WN}
        s_lshl_b32 s42, s3, 10
        s_add_u32 s42, s42, {WS_HS}
        """)
        for mp in range(2):
            items = []
            for m in (2 * mp, 2 * mp + 1):
                for n in range(2):
                    for h in range(2): items.append((self.acc(m, n) + 2 * h, 112 + 4 * n + 2 * h, 144 + 8 * m))
            gelu_block(p, items, 56, c.opt.get('pk', 1))
            for m in (2 * mp, 2 * mp + 1):
                a, b = self.acc(m, 0), self.acc(m, 1)
                t = 72 + 4 * m
                p(f"""
                v_add_u32 v{T0+2}, s6, v{T0}
                v_add_u32 v{T0+2}, {16 * m}, v{T0+2}
                v_cmp_gt_u32 vcc, 2048, v{T0+2}
                v_and_b32 v{T0+2}, 2047, v{T0+2}
                v_lshrrev_b32 v{T0+3}, 4, v{T0+2}
                v_and_b32 v{T0+2}, 15, v{T0+2}
                v_lshl_add_u32 v{T0+2}, v{T0+1}, 4, v{T0+2}
                v_lshlrev_b32 v{T0+2}, 4, v{T0+2}
                v_lshl_add_u32 v{36 + m}, v{T0+3}, 15, v{T0+2}
                """)
                for i, r in enumerate((a, a + 2, b, b + 2)): p(f"v_cvt_pk_bf16_f32 v{t + i}, v{r}, v{r + 1}")
                for i in range(4): p(f"v_cndmask_b32 v{t + i}, 0, v{t + i}, vcc")
                p(f"buffer_store_dwordx4 {vr(t, 4)}, v{36 + m}, {W}, s42 offen {st}")

class W2(N64):
    nsteps = 8; order = 'perm32'; bname = 'w2'; a_base = WS_HS
    pubkind = F_W2
    def poll(self, c): return poll_flags(c, F_W1, S_MT2, halo=True)
    def h_tail(self, c):
        a = Atoms()
        h_xrows(a, [44, 45, 46, 47], lambda i: 0, S_MT2)
        srd(a, S_AUX, ptr('x'), 2048 * 2048)
        a(f"""
        s_lshl_b32 s5, s{S_NT2}, 7
        s_lshl_b32 s4, s{S_WM}, 12
        s_add_u32 s4, s4, s{S_DMA}
        s_add_u32 m0, s4, 32768
        """)
        D = [f"buffer_load_dwordx4 v{44 + i}, s[{S_AUX}:{S_AUX+3}], s5 offen lds" + ("\ns_add_u32 m0, m0, 1024" if i < 3 else "") for i in range(4)]
        D[0] = "\n".join(a.L) + "\n" + D[0]
        return D
    def g_epi(self, p, c):
        st = c.opt.get('stflag', '')
        W = f"s[{S_WS}:{S_WS+3}]"
        p(f"""
        s_waitcnt lgkmcnt(0)
        s_lshl_b32 s3, s{S_NT2}, 1
        s_add_u32 s3, s3, s{S_WN}
        s_lshl_b32 s4, s{S_MT2}, 3
        s_lshl_b32 s5, s{S_WM}, 2
        s_add_u32 s4, s4, s5
        s_lshl_b32 s42, s4, 15
        s_lshl_b32 s5, s3, 10
        s_add_u32 s42, s42, s5
        s_add_u32 s42, s42, {WS_X1}
        s_lshl_b32 s43, s3, 14
        s_lshl_b32 s5, s4, 7
        s_add_u32 s43, s43, s5
        s_add_u32 s43, s43, {WS_P2}
        """)
        lane_fields(p, T0, T0 + 1)
        p(f"""
        v_lshrrev_b32 v{T0+2}, 1, v{T0}
        v_lshrrev_b32 v{T0+3}, 1, v{T0+1}
        v_xor_b32 v{T0+2}, v{T0+2}, v{T0+3}
        s_lshl_b32 s3, s{S_WN}, 2
        v_xor_b32 v{T0+2}, s3, v{T0+2}
        v_lshlrev_b32 v{T0+2}, 4, v{T0+2}
        v_lshl_or_b32 v{T0+2}, v{T0}, 7, v{T0+2}
        v_and_b32 v{T0+3}, 1, v{T0+1}
        v_lshl_or_b32 v{T0+2}, v{T0+3}, 3, v{T0+2}
        s_lshl_b32 s3, s{S_WM}, 13
        s_add_u32 s3, s3, s{S_RD}
        v_add_u32 v37, s3, v{T0+2}
        v_xor_b32 v38, 32, v37
        """)
        for m in range(4):
            for n in range(2): p(f"ds_read_b64 {vr(160 + 4 * m + 2 * n, 2)}, v{37 + n} offset:{32768 + 2048 * m}")
        for m in range(4):
            for n in range(2):
                a = self.acc(m, n)
                for d in range(2):
                    x = 160 + 4 * m + 2 * n + d
                    p(f"v_lshlrev_b32 v48, 16, v{x}\nv_and_b32 v49, 0xffff0000, v{x}")
                    p(f"v_pk_add_f32 {vr(a + 2 * d, 2)}, {vr(a + 2 * d, 2)}, v[48:49]")
            a, b = self.acc(m, 0), self.acc(m, 1)
            t = 72 + 4 * m
            for i, r in enumerate((a, a + 2, b, b + 2)): p(f"v_cvt_pk_bf16_f32 v{t + i}, v{r}, v{r + 1}")
            p(f"buffer_store_dwordx4 {vr(t, 4)}, v1, {W}, s42 offen {st}")
            if m < 3: p(f"s_add_u32 s42, s42, 32768")
            p(f"""
            v_pk_add_f32 v[50:51], {vr(a, 2)}, {vr(a + 2, 2)}
            v_pk_mul_f32 v[52:53], {vr(a, 2)}, {vr(a, 2)}
            v_pk_add_f32 v[50:51], v[50:51], {vr(b, 2)}
            v_pk_fma_f32 v[52:53], {vr(a + 2, 2)}, {vr(a + 2, 2)}, v[52:53]
            v_pk_add_f32 v[50:51], v[50:51], {vr(b + 2, 2)}
            v_pk_fma_f32 v[52:53], {vr(b, 2)}, {vr(b, 2)}, v[52:53]
            v_pk_fma_f32 v[52:53], {vr(b + 2, 2)}, {vr(b + 2, 2)}, v[52:53]
            v_add_f32 v{56 + 2 * m}, v50, v51
            v_add_f32 v{57 + 2 * m}, v52, v53
            """)
        for i in range(4): p(f"v_permlane32_swap_b32 v{56 + i}, v{60 + i}")
        for i in range(4): p(f"v_add_f32 v{56 + i}, v{56 + i}, v{60 + i}")
        for i in range(2): p(f"v_permlane16_swap_b32 v{56 + i}, v{58 + i}")
        for i in range(2): p(f"v_add_f32 v{56 + i}, v{56 + i}, v{58 + i}")
        p(f"""
        v_lshlrev_b32 v36, 3, v0
        buffer_store_dwordx2 v[56:57], v36, {W}, s43 offen {st}
        """)

AF_PITCH = 144 * 1024
class W3(Gemm):
    NT = 7; KS = 2; nsteps = 16; nA = 4; nB = 8
    stepA = 2048; stepB = 64 * 7168
    addr_regs = [32, 33, 34, 35, 36, 37, 38, 39]
    pubkind = F_W3
    zero_first = True
    h_steps = tuple(range(1, 14))
    def poll(self, c): return poll_flags(c, F_W2, S_MT3)
    def g_sites(self, c):
        if not c.opt.get('persist'): return {}
        return {7: lambda p: publish(p, c, F_CS, True)}
    def h_poll(self, c, t): return poll_flags(c, F_CS, S_NT3) if t == 10 else None
    def h_post(self, p, c, t):
        if t == 15:
            p("""
            ds_write_b32 v56, v160
            ds_write_b32 v57, v64
            ds_write_b32 v57, v65 offset:512
            s_mov_b32 exec_hi, 0
            ds_write_b32 v58, v96 offset:1024
            s_mov_b32 exec_hi, -1
            s_waitcnt lgkmcnt(0)
            """)
    def xaddr(self, kk, m): return (32, m * 2048 + kk * 1024)
    def waddr(self, kk, n, j): return (33 + n, (32 * kk + 16 * j) * 512)
    def h_setup(self, p, c, first=False):
        srd(p, S_A, ptr('ws'), 4 * MB, WS_X1)
        srd(p, S_B, ptr('w3'), 1024 * 7168)
        p(f"""
        s_lshl_b32 s3, s{S_MT3}, 3
        s_lshl_b32 s4, s{S_WM}, 1
        s_add_u32 s3, s3, s4
        s_lshl_b32 s3, s3, 15
        v_add_u32 v32, s3, v1
        v_add_u32 v33, 1024, v32
        v_add_u32 v34, 32768, v32
        v_add_u32 v35, {32768 + 1024}, v32
        s_mul_i32 s4, s{S_NT3}, 448
        s_and_b32 s4, s4, {0xffffff80}
        s_mul_i32 s3, s{S_WM}, {16 * 7168}
        s_add_u32 s4, s4, s3
        v_lshrrev_b32 v{T0}, 5, v0
        v_and_b32 v{T0+1}, 31, v0
        v_mul_u32_u24 v{T0+2}, 7168, v{T0}
        v_add_u32 v{T0+2}, s4, v{T0+2}
        s_bitcmp1_b32 s{S_NT3}, 0
        s_cselect_b32 s5, {0 if c.opt.get('w3mask', 1) else 9}, {7 if c.opt.get('w3mask', 1) else 9}
        v_mov_b32 v{T0+5}, 0x40000000
        v_lshlrev_b32 v{T0}, 1, v{T0}
        v_xor_b32 v{T0+1}, v{T0+1}, v{T0}
        """)
        for i in range(4):
            p(f"""
            v_xor_b32 v{T0+3}, {4 * i}, v{T0+1}
            v_lshrrev_b32 v{T0+4}, 2, v{T0+3}
            v_lshl_add_u32 v{T0+3}, v{T0+3}, 4, v{T0+2}
            v_cmp_eq_u32 vcc, s5, v{T0+4}
            v_cndmask_b32 v{T0+3}, v{T0+3}, v{T0+5}, vcc
            v_add_u32 v{36 + i}, {2 * i * 7168}, v{T0+3}
            v_add_u32 v{40 + i}, {(2 * i + 8) * 7168}, v{T0+3}
            """)
        p(f"""
        s_lshl_b32 s{S_LD[0]}, s{S_WM}, 12
        s_lshl_b32 s{S_LD[1]}, s{S_WM}, 13
        s_add_u32 s{S_LD[1]}, s{S_LD[1]}, 16384
        s_mov_b32 s{S_SO[0]}, 0
        s_mov_b32 s{S_SO[1]}, 0
        """)
    def g_setup(self, p, c):
        lane_fields(p, None, T0 + 1, T0 + 2, T0 + 3)
        p(f"""
        s_lshl_b32 s3, s{S_WM}, 13
        s_add_u32 s3, s3, s{S_RD}
        v_add_u32 v32, s3, v1
        v_lshl_add_u32 v{T0+4}, v{T0+1}, 2, v{T0+2}
        v_and_b32 v{T0+5}, 7, v{T0+4}
        v_lshlrev_b32 v{T0+4}, 9, v{T0+4}
        v_lshl_add_u32 v{T0+4}, v{T0+3}, 3, v{T0+4}
        s_add_u32 s3, s{S_RD}, 16384
        v_add_u32 v{T0+4}, s3, v{T0+4}
        s_and_b32 s3, s{S_NT3}, 1
        s_lshl_b32 s3, s3, 1
        s_mul_i32 s4, s{S_WN}, 7
        s_add_u32 s3, s3, s4
        """)
        for n in range(7):
            p(f"""
            v_xor_b32 v{T0+6}, s3, v{T0+5}
            v_lshl_add_u32 v{33 + n}, v{T0+6}, 5, v{T0+4}
            s_add_u32 s3, s3, 1
            """)
        self.g_zero(p)
    def h_late(self, a, c):
        a.atom(f"""
        s_mul_i32 s53, s{S_NT3}, 448
        s_and_b32 s53, s53, {0xffffff80}
        s_lshl_b32 s4, s{S_WM}, 7
        s_add_u32 s53, s53, s4
        s_lshl_b32 s4, s{S_MT3}, 6
        v_lshrrev_b32 v{T0}, 3, v0
        v_add_u32 v{T0}, s4, v{T0}
        v_mul_u32_u24 v{T0}, 7168, v{T0}
        v_and_b32 v{T0+1}, 7, v0
        v_lshl_add_u32 v{T0}, v{T0+1}, 4, v{T0}
        """)
        for i in range(8):
            a.atom(f"buffer_load_dwordx4 {vr(160 + 4 * i, 4)}, v{T0}, s[{S_B}:{S_B+3}], s53 offen\ns_add_u32 s53, s53, {8 * 7168}")
        return 8
    def h_extra(self, p, c, t):
        W = f"s[{S_WS}:{S_WS+3}]"
        ho = c.opt.get('hoflag', ''); st = c.opt.get('stflag', '')
        n = 0
        if t == 1:
            p(f"""
            v_and_b32 v60, 15, v0
            v_lshrrev_b32 v61, 4, v0
            v_lshlrev_b32 v60, 4, v60
            v_lshl_add_u32 v62, v61, 10, v60
            v_lshl_add_u32 v63, v61, 17, v60
            v_lshlrev_b32 v60, 2, v0
            s_lshl_b32 s4, s{S_WM}, 8
            s_lshl_b32 s53, s{S_NT3}, 14
            s_add_u32 s53, s53, s4
            s_add_u32 s53, s53, {WS_CSP}
            s_lshl_b32 s49, s{S_MT3}, 10
            s_add_u32 s50, s49, s4
            s_add_u32 s49, s49, s53
            s_lshl_b32 s3, s50, 1
            s_add_u32 s3, s3, {WS_ST1 + 12}
            s_add_u32 s50, s50, {WS_P2}
            buffer_load_dword v96, v1, {W}, s3 offen {ho}
            """)
            n += 1
        if 1 <= t <= 8:
            p(f"buffer_load_dwordx4 {vr(64 + 4 * (t - 1), 4)}, v63, {W}, s50 offen {ho}\ns_add_u32 s50, s50, 16384")
            n += 1
        if t == 5:
            p(f"buffer_store_dwordx2 v[48:49], v56, {W}, s49 offen {st}")
            n += 1
        if t == 11:
            for i in range(4):
                p(f"buffer_load_dwordx4 {vr(160 + 4 * i, 4)}, v62, {W}, s53 offen {ho}\ns_add_u32 s53, s53, 4096")
            n += 4
        return n
    def h_mix(self, p, c, t):
        if t == 1:
            for i in range(8): p(f"v_mov_b32 v{48 + i}, 0")
        if 1 <= t <= 4:
            for i in (2 * t - 2, 2 * t - 1):
                for d in range(4):
                    x = 160 + 4 * i + d
                    p(f"""
                    v_lshlrev_b32 v56, 16, v{x}
                    v_and_b32 v57, 0xffff0000, v{x}
                    v_add_f32 v{48 + 2 * d}, v{48 + 2 * d}, v56
                    v_add_f32 v{49 + 2 * d}, v{49 + 2 * d}, v57
                    """)
        if t == 5:
            for i in range(4): p(f"v_permlane32_swap_b32 v{48 + i}, v{52 + i}")
            for i in range(4): p(f"v_add_f32 v{48 + i}, v{48 + i}, v{52 + i}")
            for i in range(2): p(f"v_permlane16_swap_b32 v{48 + i}, v{50 + i}")
            for i in range(2): p(f"v_add_f32 v{48 + i}, v{48 + i}, v{50 + i}")
            for i in range(2): p(f"v_add_f32_dpp v{48 + i}, v{48 + i}, v{48 + i} row_ror:8 row_mask:0xf bank_mask:0xf")
            p(f"""
            v_and_b32 v56, 7, v0
            v_lshrrev_b32 v57, 4, v0
            v_lshlrev_b32 v56, 5, v56
            v_lshl_add_u32 v56, v57, 3, v56
            """)
        if t == 10:
            for st_ in (4, 2, 1):
                for i in range(st_):
                    for d in range(4): p(f"v_add_f32 v{64 + 4 * i + d}, v{64 + 4 * i + d}, v{64 + 4 * (i + st_) + d}")
        if t == 11:
            p(f"""
            v_permlane32_swap_b32 v64, v66
            v_permlane32_swap_b32 v65, v67
            v_add_f32 v64, v64, v66
            v_add_f32 v65, v65, v67
            v_mov_b32 v66, v64
            v_mov_b32 v67, v65
            v_permlane16_swap_b32 v64, v66
            v_permlane16_swap_b32 v65, v67
            v_add_f32 v64, v64, v66
            v_add_f32 v65, v65, v67
            v_mul_f32 v64, {hexf(1.0 / 1024)}, v64
            v_mul_f32 v65, {hexf(1.0 / 1024)}, v65
            v_fma_f32 v65, -v64, v64, v65
            v_max_f32 v65, 0, v65
            v_add_f32 v65, {hexf(1e-5)}, v65
            v_rsq_f32 v65, v65
            """)
        if t == 12:
            p(f"""
            v_and_b32 v57, 15, v0
            v_lshrrev_b32 v58, 5, v0
            v_lshl_add_u32 v57, v57, 1, v58
            s_lshl_b32 s3, s{S_WM}, 7
            v_lshl_add_u32 v57, v57, 2, s3
            v_lshl_add_u32 v58, v0, 2, s3
            v_add_u32 v57, {L_MU}, v57
            v_add_u32 v58, {L_MU}, v58
            """)
        if t == 13:
            for st_ in (2, 1):
                for i in range(st_):
                    for d in range(4): p(f"v_add_f32 v{160 + 4 * i + d}, v{160 + 4 * i + d}, v{160 + 4 * (i + st_) + d}")
            p(f"""
            v_permlane32_swap_b32 v160, v162
            v_permlane32_swap_b32 v161, v163
            v_add_f32 v160, v160, v162
            v_add_f32 v161, v161, v163
            v_permlane16_swap_b32 v160, v161
            v_add_f32 v160, v160, v161
            v_and_b32 v56, 15, v0
            v_lshrrev_b32 v59, 4, v0
            v_lshl_add_u32 v56, v56, 2, v59
            s_lshl_b32 s3, s{S_WM}, 8
            v_lshl_add_u32 v56, v56, 2, s3
            v_add_u32 v56, {L_CS}, v56
            """)
    def g_epi(self, p, c):
        st = c.opt.get('stflag', '')
        W = f"s[{S_WS}:{S_WS+3}]"
        lane_fields(p, 40, 41)
        p(f"""
        s_waitcnt lgkmcnt(0)
        s_mul_i32 s3, s{S_WN}, 448
        s_and_b32 s4, s{S_NT3}, 1
        s_lshl_b32 s4, s4, 7
        s_add_u32 s3, s3, s4
        s_add_u32 s3, s3, {L_CS}
        v_lshl_add_u32 v36, v41, 4, s3
        """)
        read_tok_consts(p, 76, 37, 40, True)
        for n in range(7): p(f"ds_read_b128 {vr(48 + 4 * n, 4)}, v36 offset:{64 * n}")
        for m in range(4): gelu_consts(p, 76 + 8 * m, True)
        p(f"""
        v_lshrrev_b32 v38, 5, v0
        v_mul_u32_u24 v38, {AF_PITCH}, v38
        v_and_b32 v39, 31, v0
        v_lshl_add_u32 v38, v39, 4, v38
        s_lshl_b32 s3, s{S_MT3}, 3
        s_lshl_b32 s4, s{S_WM}, 2
        s_add_u32 s3, s3, s4
        s_mul_i32 s42, s3, {AF_PITCH}
        s_mul_i32 s3, s{S_NT3}, 14
        s_mul_i32 s4, s{S_WN}, 7
        s_add_u32 s3, s3, s4
        s_lshl_b32 s3, s3, 9
        s_add_u32 s42, s42, s3
        s_add_u32 s42, s42, {WS_AF}
        s_add_u32 s43, s42, {2 * AF_PITCH}
        """)
        for n in range(7):
            items = []
            for m in range(4):
                for h in range(2): items.append((self.acc(m, n) + 2 * h, 48 + 4 * n + 2 * h, 76 + 8 * m))
            gelu_block(p, items, 108 + 16 * (n % 2), c.opt.get('pk', 1))
            for u in range(2):
                a = self.acc(2 * u, n)
                for i in range(4): p(f"v_cvt_pk_bf16_f32 v{a + i}, v{a + 2 * i}, v{a + 2 * i + 1}")
            for u in range(2):
                a = self.acc(2 * u, n)
                p(f"v_permlane32_swap_b32 v{a}, v{a + 2}")
                p(f"v_permlane32_swap_b32 v{a + 1}, v{a + 3}")
            for u in range(2):
                a = self.acc(2 * u, n)
                p(f"buffer_store_dwordx4 {vr(a, 4)}, v38, {W}, s{42 + u} offen offset:{n * 512} {st}")

WS_XCH = 48 * MB
def xch_off(c, nt_code, wave, dst):
    if not c.opt.get('xreuse', 0):
        return f"""
        s_lshl_b32 s3, s{S_MT2}, 4
        {nt_code}
        s_add_u32 s3, s3, s4
        s_lshl_b32 s3, s3, 2
        s_add_u32 s3, s3, s{wave}
        s_lshl_b32 s3, s3, 13
        s_add_u32 s{dst}, s3, {WS_XCH}
        """
    return f"""
    {nt_code}
    s_lshl_b32 s4, s4, 1
    s_and_b32 s3, s{wave}, 1
    s_add_u32 s4, s4, s3
    s_lshl_b32 s3, s{S_MT2}, 5
    s_add_u32 s3, s3, s4
    s_lshl_b32 s3, s3, 13
    s_add_u32 s3, s3, {WS_HS}
    s_lshl_b32 s4, s4, 4
    s_add_u32 s4, s4, s{S_MT2}
    s_lshl_b32 s4, s4, 13
    s_cmp_lt_u32 s{wave}, 2
    s_cselect_b32 s{dst}, s3, s4
    """

class W4(Gemm):
    NT = 4; KS = 3; nA = 6; nB = 6
    h_steps = (15, 16)
    def __init__(self, xw=2): self.xw = xw; self.nsteps = 18 + xw
    def __call__(self): return self
    stepA = 3072; stepB = 96 * 2048
    addr_regs = [32, 33, 34, 35, 36]
    zero_first = True
    pubkind = F_XCH
    pubstep = 4
    chain = True; pubv = 28
    def poll(self, c): return poll_flags(c, F_W3, S_MT2)
    def h_poll(self, c, t): return poll_flags(c, F_ATT, S_MT2, shift=1, nprod=32) if t == 15 else None
    def h_pre(self, p, c, t):
        if t == 16:
            if not self.xw: return
            srd(p, S_B, ptr('wo'), 1024 * 2048)
            p(f"""
            s_and_b32 s3, s{S_NT2}, 1
            s_mul_i32 s{S_SO[0]}, s3, {3 * self.xw * 1024}
            s_add_u32 s{S_SO[0]}, s{S_SO[0]}, {112 * 1024}
            s_mul_i32 s{S_SO[1]}, s3, {3 * self.xw * 32 * 2048}
            """)
    def xaddr(self, kk, m): return (32, m * 3072 + kk * 1024)
    def waddr(self, kk, n, j): return (33 + n, (32 * kk + 8 * j) * 256)
    def h_setup(self, p, c, first=False):
        srd(p, S_A, ptr('ws'), 18 * MB, WS_AF)
        srd(p, S_B, ptr('w4'), 3584 * 2048)
        p(f"""
        s_lshl_b32 s3, s{S_MT2}, 3
        s_lshl_b32 s4, s{S_WM}, 1
        s_add_u32 s3, s3, s4
        s_mul_i32 s3, s3, {AF_PITCH}
        s_mul_i32 s{S_LD[0]}, s{S_WM}, 6144
        s_add_u32 s{S_LD[1]}, s{S_LD[0]}, 24576
        """)
        if self.rotated(c):
            def emit(k):
                p(f"""
                s_cmp_ge_u32 s6, 3
                s_cselect_b32 s4, {AF_PITCH - 3072}, 0
                s_add_u32 s4, s4, s7
                s_add_u32 s4, s4, s3
                v_add_u32 v{32 + k}, s4, v1
                """)
            rot_pieces(p, 6, 0, f"s_lshr_b32 s6, s{S_NT2}, 1\ns_mul_i32 s6, s6, 3\ns_lshr_b32 s6, s6, 2", S_LD[0], emit)
        else:
            p("v_add_u32 v32, s3, v1")
            for i in range(1, 6): p(f"v_add_u32 v{32 + i}, {(i // 3) * AF_PITCH + (i % 3) * 1024}, v32")
        p(f"""
        v_lshrrev_b32 v{T0}, 4, v0
        v_and_b32 v{T0+1}, 15, v0
        v_lshlrev_b32 v{T0+2}, 1, v{T0}
        v_xor_b32 v{T0+1}, v{T0+1}, v{T0+2}
        s_mul_i32 s3, s{S_WM}, 24
        v_add_u32 v{T0}, s3, v{T0}
        v_lshlrev_b32 v{T0}, 11, v{T0}
        v_lshl_add_u32 v{T0}, v{T0+1}, 4, v{T0}
        s_lshr_b32 s4, s{S_NT2}, 1
        s_lshl_b32 s4, s4, 8
        """)
        if self.rotated(c):
            p(f"v_add_u32 v{T0}, s4, v{T0}")
            def emit(k):
                p(f"s_lshl_b32 s4, s6, 13\nv_add_u32 v{38 + k}, s4, v{T0}\ns_and_b32 s4, s6, 1\ns_lshl_b32 s4, s4, 7\nv_xor_b32 v{38 + k}, s4, v{38 + k}")
            rot_pieces(p, 6, 6, f"s_and_b32 s6, s{S_MT2}, 3\ns_mul_i32 s6, s6, 3\ns_lshr_b32 s6, s6, 1", S_LD[1], emit)
        else:
            p(f"v_add_u32 v38, s4, v{T0}\nv_xor_b32 v{T0}, 128, v38")
            for i in range(1, 6): p(f"v_add_u32 v{38 + i}, {4 * i * 2048}, v{38 if i % 2 == 0 else T0}")
        p(f"""
        s_and_b32 s3, s{S_NT2}, 1
        s_mul_i32 s{S_SO[0]}, s3, {54 * 1024}
        s_mul_i32 s{S_SO[1]}, s3, {54 * 32 * 2048}
        """)
        self.coop = c.opt.get('coop4', 0)
        if c.opt.get('spfo'): self.h_steps = (11, 12, 15, 16)
        if self.coop or c.opt.get('scoop4'):
            p(f"""
            s_lshr_b32 s3, s{ptr('w4')}, 7
            s_sub_u32 s3, 3, s3
            s_and_b32 s3, s3, 7
            s_lshr_b32 s4, s{S_NT2}, 1
            s_lshr_b32 s5, s3, 1
            s_sub_u32 s5, s4, s5
            s_and_b32 s5, s5, 3
            s_lshr_b32 s4, s4, 2
            s_lshl_b32 s4, s4, 10
            s_lshl_b32 s3, s3, 7
            s_add_u32 s4, s4, s3
            s_sub_u32 s6, s5, 1
            s_lshl_b32 s6, s6, 2
            s_and_b32 s3, s{S_MT2}, 3
            s_add_u32 s6, s6, s3
            s_lshl_b32 s6, s6, 2
            s_add_u32 s6, s6, s{S_WM}
            s_lshl_b32 s6, s6, 12
            s_add_u32 s4, s4, s6
            s_add_u32 s4, s4, {c.opt.get('coopa', 1) * self.stepB}
            s_cmp_eq_u32 s5, 0
            s_cselect_b32 s3, 0, 16
            s_cselect_b32 s99, 0x40000000, s4
            """)
        if self.coop:
            p(f"""
            v_lshrrev_b32 v{T0}, 3, v0
            v_lshlrev_b32 v{T0}, 11, v{T0}
            v_and_b32 v{T0+1}, 7, v0
            v_lshl_add_u32 v{T0}, v{T0+1}, 4, v{T0}
            v_add_u32 v{T0}, s4, v{T0}
            v_mov_b32 v{T0+1}, 0x40000000
            v_cmp_gt_u32 vcc, s3, v0
            v_cndmask_b32 v44, v{T0+1}, v{T0}, vcc
            """)
    def h_every(self, p, c, t):
        if c.opt.get('spfo') and t in (9, 10, 11, 12):
            p(f"""
            s_lshl_b32 s3, s2, 2
            s_add_u32 s3, s3, s{S_WM}
            s_lshl_b32 s3, s3, 11
            s_add_u32 s6, s{ptr('wo')}, s3
            s_addc_u32 s7, s{ptr('wo')+1}, 0
            """)
            for i in range(8):
                p.I.append(Inst("s_nop 0")); p.I[-1].text = f"s_load_dword s98, s[6:7], {(t - 9) * 512 + i * 64}"
        if not c.opt.get('scoop4') or self.in_host: return
        if t is None or t <= self.nsteps - 4:
            p(f"s_add_u32 s3, s99, s{S_SO[1]}")
            if c.opt['scoop4'] == 2: p(f"s_sub_u32 s3, s3, {self.stepB}")
            p(f"s_sub_u32 s4, s{S_B+2}, 4096\ns_min_u32 s3, s3, s4")
            for o in (0, 64, 2048, 2112):
                p.I.append(Inst("s_nop 0")); p.I[-1].text = f"s_buffer_load_dword s98, s[{S_B}:{S_B+3}], s3 offset:{hex(o)}"
    def w_l2(self, p, c):
        s0, ns = c.opt.get('l2w4', (0, 0))
        if not ns: return
        p(f"""
        s_and_b32 s3, s{S_MT2}, 3
        s_lshl_b32 s3, s3, 2
        s_add_u32 s3, s3, s{S_WM}
        s_mul_i32 s3, s3, {6 * ns * 2048}
        s_and_b32 s4, s{S_NT2}, 1
        s_mul_i32 s4, s4, {54 * 32 * 2048}
        s_add_u32 s3, s3, s4
        s_lshr_b32 s4, s{S_NT2}, 1
        s_lshl_b32 s4, s4, 8
        s_add_u32 s3, s3, s4
        s_add_u32 s3, s3, {s0 * self.stepB}
        v_lshrrev_b32 v{T0}, 4, v0
        v_and_b32 v{T0+1}, 15, v0
        v_lshlrev_b32 v{T0}, 11, v{T0}
        v_lshl_add_u32 v{T0}, v{T0+1}, 4, v{T0}
        s_mov_b32 m0, {L_DUMMY}
        """)
        for i in range(6 * ns // 4): p(f"buffer_load_dwordx4 v{T0}, s[{S_B}:{S_B+3}], s3 offen lds\ns_add_u32 s3, s3, {4 * 2048}")
    @property
    def nd(self): return 13 if self.coop else 12
    def dma_extra(self, c):
        return [f"s_mov_b32 m0, {L_DUMMY}\nbuffer_load_dwordx4 v44, s[{S_B}:{S_B+3}], s{S_SO[1]} offen lds"] if self.coop else []
    def rotated(self, c): return c.opt.get('rot', 0)
    def g_setup(self, p, c):
        lane_fields(p, None, T0 + 1, T0 + 2, T0 + 3)
        p(f"""
        s_mul_i32 s3, s{S_WM}, 12288
        s_add_u32 s3, s3, s{S_RD}
        v_add_u32 v32, s3, v1
        v_and_b32 v{T0+5}, 1, v{T0+1}
        v_lshl_add_u32 v{T0+5}, v{T0+5}, 2, v{T0+2}
        v_lshrrev_b32 v{T0+4}, 1, v{T0+1}
        v_lshl_add_u32 v{T0+4}, v{T0+4}, 4, v{T0+5}
        v_lshlrev_b32 v{T0+4}, 8, v{T0+4}
        v_lshl_add_u32 v{T0+4}, v{T0+3}, 3, v{T0+4}
        s_add_u32 s3, s{S_RD}, 24576
        v_add_u32 v{T0+4}, s3, v{T0+4}
        s_and_b32 s3, s{S_NT2}, 1
        s_lshl_b32 s3, s3, 2
        s_lshl_b32 s4, s{S_WN}, 1
        s_add_u32 s3, s3, s4
        v_xor_b32 v{T0+6}, s3, v{T0+5}
        v_lshl_add_u32 v35, v{T0+6}, 5, v{T0+4}
        v_xor_b32 v36, 32, v35
        v_xor_b32 v33, 128, v35
        v_xor_b32 v34, 160, v35
        """)
    def g_epi(self, p, c):
        st = c.opt.get('stflag', '')
        p(xch_off(c, f"s_mov_b32 s4, s{S_NT2}", S_WID, 3))
        p("s_add_u32 s4, s3, 4096")
        if c.opt.get('xbf'):
            for m in range(4):
                a, b = self.acc(m, 0), self.acc(m, 1)
                for i, r in enumerate((a, a + 2, b, b + 2)): p(f"v_cvt_pk_bf16_f32 v{144 + 4 * m + i}, v{r}, v{r + 1}")
                if self.pubkind is None:
                    for i in range(4): p(f"v_min_u32 v{144 + 4 * m + i}, -2, v{144 + 4 * m + i}")
                p(f"buffer_store_dwordx4 {vr(144 + 4 * m, 4)}, v1, s[{S_WS}:{S_WS+3}], s3 offen offset:{m * 1024} {st}")
        else:
          for i in range(8):
            p(f"buffer_store_dwordx4 {vr(192 + 4 * i, 4)}, v1, s[{S_WS}:{S_WS+3}], s{3 + i // 4} offen offset:{(i % 4) * 1024} {st}")
        p("s_waitcnt lgkmcnt(0)")
        if c.opt.get('xpub0'):
            self.nxt.g_setup(p, c); self.nxt.g_setup = lambda p, c: None
            p("s_waitcnt vmcnt(4)")
            publish(p, c, F_XCH, False, 28)
            self.pubkind = None

class WO(N64):
    def __init__(self, xw=2, xbar=False, pubstep=2): self.xw = xw; self.nsteps = 9 - (3 * xw) // 2; self.xbar = xbar; self.pubstep = pubstep
    def __call__(self): return self
    order = 'perm32b'; bname = 'w4'; babytes = 3584 * 2048
    a_base = WS_AF; a_size = 18 * MB; a_pitch = AF_PITCH; a_k0 = 108 * 1024
    b_k0 = 108 * 32 * 2048
    ncall = 0; pubv = 28
    def dma_atoms(self, c):
        D = N64.dma_atoms(self, c)
        if self.ncall == 0:
            a = Atoms(); srd(a, S_B, ptr('wo'), 1024 * 2048)
            a(f"s_mov_b32 s{S_SO[0]}, {(112 + 6 * self.xw) * 1024}\ns_mov_b32 s{S_SO[1]}, {6 * self.xw * 32 * 2048}")
            if self.xw == 5:
                a(f"s_mov_b32 s{S_SO[0]}, {140 * 1024}\ns_mov_b32 s3, {28 * 32 * 2048}\ns_cmp_lt_u32 s{S_WM}, 2\ns_cselect_b32 s{S_SO[1]}, 0x40000000, s3")
            D[-1] += "\n" + "\n".join(a.L)
        elif self.xw == 5 and hasattr(self, 'xwait') and c.opt.get('short', 1):
            for i in (0, 1, 4, 5): D[i] = "\n".join(x for x in D[i].split("\n") if 'buffer_' not in x)
        self.ncall += 1
        return D
    def h_poll(self, c, t):
        m = c.opt.get('xmode', 0)
        if (m == 1 and t == self.nsteps - 2) or (m == 2 and t == self.nsteps - 1): return poll_flags(c, F_XCH, S_MT2, single=S_NT2)
    def h_pre(self, p, c, t):
        if t == self.nsteps - 2 and c.opt.get('xmode', 0) == 0: poll_flags(c, F_XCH, S_MT2, single=S_NT2).issue(p)
        if t == self.nsteps - 1 and c.opt.get('xmode', 0) == 3: poll_flags(c, F_XCH, S_MT2, single=S_NT2).issue(p)
    def h_extra(self, p, c, t):
        if t == self.nsteps - 1 and c.opt.get('xmode', 0) != 2:
            if c.opt.get('xmode', 0) in (0, 3): poll_flags(c, F_XCH, S_MT2, single=S_NT2).check(p)
            p.add(self.xch)
            return len(self.xch)
        return 0
    def h_epi(self, p, c):
        if c.opt.get('xmode', 0) == 2: p.add(self.xch)
        p("s_waitcnt vmcnt(0)\ns_barrier")
        hstep_stamp(p, c)
    def g_zero(self, p): pass
    def h_tail(self, c):
        ho = c.opt.get('hoflag', '')
        W = f"s[{S_WS}:{S_WS+3}]"
        pre = xch_off(c, f"s_xor_b32 s4, s{S_NT2}, 1", S_WM, 49) + f"""
        s_lshl_b32 s3, s{S_NT2}, 1
        s_lshr_b32 s4, s{S_WM}, 1
        s_add_u32 s3, s3, s4
        s_lshl_b32 s3, s3, 10
        s_lshl_b32 s4, s{S_MT2}, 1
        s_and_b32 s5, s{S_WM}, 1
        s_add_u32 s4, s4, s5
        s_lshl_b32 s4, s4, 17
        s_add_u32 s3, s3, s4
        s_add_u32 s50, s3, {WS_X1}
        s_mul_i32 s4, s{S_WM}, 12288
        s_add_u32 m0, s4, s{S_DMA}
        """
        D = []
        for m in range(4): D.append(f"buffer_load_dwordx4 v1, {W}, s50 offen {ho} lds\ns_add_u32 s50, s50, 32768\ns_add_u32 m0, m0, 1024")
        for i in range(8):
            D.append(f"buffer_load_dwordx4 v1, {W}, s49 offen offset:{(i % 4) * 1024} {ho} lds" + ("\ns_add_u32 s49, s49, 4096\ns_add_u32 m0, m0, 4096" if i == 3 else ""))
        D[0] = pre + D[0]
        self.xch = D[4:8] if c.opt.get('xbf') else D[4:]
        return D[:4]
    ogv = 176
    def g_pre(self, p, c, ogv=176):
        ho = c.opt.get('hoflag', '')
        p(f"""
        s_lshl_b32 s4, s{S_MT2}, 11
        s_lshl_b32 s5, s{S_WM}, 10
        s_add_u32 s4, s4, s5
        s_add_u32 s4, s4, {WS_ST1 + 12}
        v_lshlrev_b32 v36, 4, v{T0}
        """)
        for m in range(4): p(f"buffer_load_dword v{ogv + 2 * m}, v36, s[{S_WS}:{S_WS+3}], s4 offen offset:{256 * m} {ho}")
    def g_epi(self, p, c):
        st = c.opt.get('outflag', '')
        p(f"""
        s_mul_i32 s3, s{S_WID}, 12288
        s_add_u32 s3, s3, s{S_RD}
        v_add_u32 v37, s3, v1
        """)
        for m in range(4): p(f"ds_read_b128 {vr(96 + 4 * m, 4)}, v37 offset:{1024 * m}")
        srd(p, S_AUX, ptr('out'), 2048 * 2048)
        lane_fields(p, T0, T0 + 1)
        p(f"""
        s_lshl_b32 s3, s{S_MT2}, 7
        s_lshl_b32 s4, s{S_WM}, 6
        s_add_u32 s3, s3, s4
        v_add_u32 v36, s3, v{T0}
        v_lshlrev_b32 v36, 11, v36
        v_and_b32 v{T0+2}, 1, v{T0+1}
        v_lshrrev_b32 v{T0+3}, 1, v{T0+1}
        v_lshl_add_u32 v36, v{T0+2}, 5, v36
        v_lshl_add_u32 v36, v{T0+3}, 4, v36
        s_lshl_b32 s3, s{S_NT2}, 7
        s_lshl_b32 s4, s{S_WN}, 6
        s_add_u32 s42, s3, s4
        """)
        for m in range(4):
            for n in range(2):
                a = self.acc(m, n)
                for d in range(2):
                    x = 96 + 4 * m + 2 * n + d
                    p(f"v_lshlrev_b32 v48, 16, v{x}\nv_and_b32 v49, 0xffff0000, v{x}")
                    p(f"v_pk_fma_f32 {vr(a + 2 * d, 2)}, v[48:49], {vr(self.ogv + 2 * m, 2)}, {vr(a + 2 * d, 2)} op_sel_hi:[1,0,1]")
        if hasattr(self, 'xwait'): self.xwait(p, c)
        else: p("s_barrier")
        for m in range(0 if hasattr(self, 'xwait') else 4):
            for n in range(1 if c.opt.get('xbf') else 2): p(f"ds_read_b128 {vr(144 + 4 * (4 * n + m), 4)}, v37 offset:{4096 + 1024 * (4 * n + m)}")
        for m in range(4):
            a, b = self.acc(m, 0), self.acc(m, 1)
            if c.opt.get('xbf'):
                xb = 160 if hasattr(self, 'xwait') else 144
                for i in range(4): p(f"v_lshlrev_b32 v{48 + 2 * i}, 16, v{xb + 4 * m + i}\nv_and_b32 v{49 + 2 * i}, 0xffff0000, v{xb + 4 * m + i}")
                for i, r in enumerate((a, a + 2, b, b + 2)): p(f"v_pk_add_f32 {vr(r, 2)}, {vr(r, 2)}, {vr(48 + 2 * i, 2)}")
            else:
                for r in (a, a + 2, b, b + 2): p(f"v_pk_add_f32 {vr(r, 2)}, {vr(r, 2)}, {vr(r - 80, 2)}")
            t = 72 + 4 * m
            for i, r in enumerate((a, a + 2, b, b + 2)): p(f"v_cvt_pk_bf16_f32 v{t + i}, v{r}, v{r + 1}")
            p(f"v_permlane16_swap_b32 v{t}, v{t + 2}")
            p(f"v_permlane16_swap_b32 v{t + 1}, v{t + 3}")
            p(f"buffer_store_dwordx4 {vr(t, 4)}, v36, s[{S_AUX}:{S_AUX+3}], s42 offen {st}")
            if m < 3: p(f"s_add_u32 s42, s42, {16 * 2048}")


def stats_code(p, c, xs, gs, wave):
    W = f"s[{S_WS}:{S_WS+3}]"
    st = c.opt.get('stflag', '')
    q = QKV()
    for t in range(2, 8): QKV.h_mix(q, p, c, t)
    p(f"""
    v_mov_b32 v51, v52
    v_mov_b32 v52, v48
    v_mov_b32 v53, v49
    v_lshlrev_b32 v56, 2, v56
    s_mov_b32 s5, {WS_ST1}
    s_mov_b32 exec_lo, 1
    s_mov_b32 exec_hi, 1
    buffer_store_dwordx4 v[50:53], v56, {W}, s5 offen {st}
    s_mov_b64 exec, -1
    """)

class W1F(W1):
    xbar = False
    h_steps = (0, 1, 2, 3, 4, 5)
    def h_first(self, p, c): pass
    def g_first(self, p, c, pf=True):
        srd(p, S_A, ptr('x'), 2048 * 2048)
        srd(p, S_B, ptr('gate'), 2048)
        p(f"""
        s_lshl_b32 s48, s{S_MT3}, 4
        s_add_u32 s48, s48, s{S_NT3}
        s_lshl_b32 s48, s48, 3
        s_lshl_b32 s3, s{S_WID}, 1
        s_add_u32 s48, s48, s3
        s_lshl_b32 s3, s48, 11
        buffer_load_dwordx4 v[64:67], v1, s[{S_A}:{S_A+3}], s3 offen
        buffer_load_dwordx4 v[68:71], v1, s[{S_A}:{S_A+3}], s3 offen offset:1024
        buffer_load_dwordx4 v[72:75], v1, s[{S_A}:{S_A+3}], s3 offen offset:2048
        buffer_load_dwordx4 v[76:79], v1, s[{S_A}:{S_A+3}], s3 offen offset:3072
        buffer_load_dwordx4 v[80:83], v1, s[{S_B}:{S_B+3}], 0 offen
        buffer_load_dwordx4 v[84:87], v1, s[{S_B}:{S_B+3}], 0 offen offset:1024
        """)
        if pf: g_prefetch(p, c, [('w1', 2 * MB, i, 1) for i in range(2)])
    def early(self, p, c): stats_code(p, c, 64, 80, S_WID)
    def h_poll(self, c, t):
        if t == 0: return poll_init(c)
        if t == 5: return poll_flags(c, F_ST, S_MT2)
    def h_post(self, p, c, t): pass
    def h_extra(self, p, c, t):
        L = c.opt.get('w1pf', {1: [0], 2: [1], 3: [2]})
        return g_prefetch(p, c, [('wqkv', 6 * MB, i, 1) for i in L[t]]) if t in L else 0
    def g_sites(self, c):
        def pub(p):
            p("s_waitcnt vmcnt(0)")
            publish(p, c, F_ST, False)
        def ld(p):
            ho = c.opt.get('hoflag', '')
            p(f"""
            s_lshl_b32 s3, s{S_MT2}, 9
            s_lshl_b32 s4, s{S_WM}, 8
            s_add_u32 s3, s3, s4
            s_add_u32 s3, s3, {WS_ST1}
            s_add_u32 s4, s3, 8192
            v_and_b32 v36, 15, v0
            v_lshlrev_b32 v36, 2, v36
            """)
            for m in range(4):
                p(f"buffer_load_dword v{144 + 8 * m}, v36, s[{S_WS}:{S_WS+3}], s3 offen offset:{64 * m} {ho}")
                p(f"buffer_load_dword v{145 + 8 * m}, v36, s[{S_WS}:{S_WS+3}], s4 offen offset:{64 * m} {ho}")
        return {1: pub, 6: ld}
    lds_consts = False

class QKV2(QKV):
    h_steps = (0,)
    zero_first = True
    def h_setup(self, p, c, first=False):
        srd(p, S_A, ptr('x'), 2048 * 2048)
        QKV.h_setup(self, p, c)
    def g_sites(self, c): return {}
    def h_poll(self, c, t): return None
    def h_mix(self, p, c, t): pass
    def h_extra(self, p, c, t):
        if t == 0: return g_prefetch(p, c, c.opt.get('qpf', [('wqkv', 6 * MB, 3, 3)]))
        if t == 9: return g_prefetch(p, c, [('w2', 2 * MB, 0, 2)])
        return 0
    h_steps = (0, 9)

class W2X(W2):
    xbar = True
    pubstep = 2

class QKVG(QKV):
    h_steps = (0, 1, 2, 3, 4, 5, 6)
    def h_first(self, p, c): srd(p, S_A, ptr('x'), 2048 * 2048)
    def g_first(self, p, c):
        W1F.g_first(self, p, c, False)
        QKV.g_first(self, p, c)
    def early(self, p, c): stats_code(p, c, 64, 80, S_WID)
    def h_mix(self, p, c, t): pass
    def h_extra(self, p, c, t): return QKV.h_extra(self, p, c, t) if t < 7 else 0
    def g_sites(self, c):
        def pub(p):
            p("s_waitcnt vmcnt(0)")
            publish(p, c, F_ST, False)
        return {7: pub}


def cs3_loads(a, c, S_MT3=S_MT3, S_NT3=S_NT3, dst=160):
    t = Atoms()
    srd(t, S_AUX, ptr('w3'), 1024 * 7168)
    t(f"""
    s_mul_i32 s6, s{S_NT3}, 448
    s_and_b32 s6, s6, {0xffffff80}
    s_lshl_b32 s4, s{S_WM}, 7
    s_add_u32 s6, s6, s4
    s_lshl_b32 s4, s{S_MT3}, 6
    v_lshrrev_b32 v{T0}, 3, v0
    v_add_u32 v{T0}, s4, v{T0}
    v_mul_u32_u24 v{T0}, 7168, v{T0}
    v_and_b32 v{T0+1}, 7, v0
    v_lshl_add_u32 v{T0}, v{T0+1}, 4, v{T0}
    """)
    a("\n".join(t.L))
    for i in range(8):
        a(f"buffer_load_dwordx4 {vr(dst + 4 * i, 4)}, v{T0}, s[{S_AUX}:{S_AUX+3}], s6 offen\ns_add_u32 s6, s6, {8 * 7168}")
    return 8
def cs3_math(p, c, *ids):
    q = W3()
    for t in range(1, 6): W3.h_mix(q, p, c, t)
    cs3_store(p, c, *ids)
def cs3_store(p, c, S_MT3=S_MT3, S_NT3=S_NT3):
    p(f"""
    s_lshl_b32 s3, s{S_NT3}, 4
    s_add_u32 s3, s3, s{S_MT3}
    s_lshl_b32 s3, s3, 2
    s_add_u32 s3, s3, s{S_WM}
    s_lshl_b32 s3, s3, 8
    s_add_u32 s3, s3, {WS_CSP}
    buffer_store_dwordx2 v[48:49], v56, s[{S_WS}:{S_WS+3}], s3 offen {c.opt.get('stflag', '')}
    """)

class W3E(W3):
    h_steps = (2, 3, 4, 5)
    chain = True
    def g_sites(self, c): return {}
    def h_poll(self, c, t): return None
    def poll(self, c):
        P = poll_flags(c, F_W2, S_MT3)
        P.addr += f"""
        v_and_b32 v138, 14, v0
        v_lshlrev_b32 v138, 4, v138
        v_and_b32 v139, 1, v0
        s_lshl_b32 s3, s{S_NT3}, 1
        v_add3_u32 v138, v138, v139, s3
        v_lshlrev_b32 v138, 7, v138
        v_add_u32 v136, {(F_W2 - F_W1) * 32768}, v136
        v_cmp_gt_u32 vcc, 32, v0
        v_cndmask_b32 v136, v138, v136, vcc
        s_mov_b32 s{S_POLL}, {WS_FLAG + F_W1 * 32768}
        """
        return P
    def h_late(self, a, c):
        W = f"s[{S_WS}:{S_WS+3}]"
        ho = c.opt.get('hoflag', '')
        a.atom(f"""
        v_and_b32 v{T0}, 15, v0
        v_lshrrev_b32 v{T0+1}, 4, v0
        v_lshlrev_b32 v{T0}, 4, v{T0}
        v_lshl_add_u32 v{T0+2}, v{T0+1}, 10, v{T0}
        v_lshl_add_u32 v{T0+3}, v{T0+1}, 17, v{T0}
        v_lshlrev_b32 v{T0+4}, 2, v0
        s_lshl_b32 s53, s{S_NT3}, 14
        s_lshl_b32 s4, s{S_WM}, 8
        s_add_u32 s53, s53, s4
        s_add_u32 s53, s53, {WS_CSP}
        s_lshl_b32 s50, s{S_MT3}, 10
        s_add_u32 s50, s50, s4
        s_lshr_b32 s49, s50, 1
        s_add_u32 s49, s49, {WS_G + 8192}
        s_add_u32 s50, s50, {WS_P2}
        """)
        for i in range(4): a.atom(f"buffer_load_dwordx4 {vr(160 + 4 * i, 4)}, v{T0+2}, {W}, s53 offen {ho}\ns_add_u32 s53, s53, 4096")
        for i in range(8): a.atom(f"buffer_load_dwordx4 {vr(176 + 4 * i, 4)}, v{T0+3}, {W}, s50 offen {ho}\ns_add_u32 s50, s50, 16384")
        a.atom(f"buffer_load_dword v208, v{T0+4}, {W}, s49 offen {ho}")
        return 13
    def h_extra(self, p, c, t): return 0
    def h_mix(self, p, c, t):
        if t == 2:
            for i in range(4):
                for d in range(4): p(f"v_add_f32 v{64 + 4 * i + d}, v{176 + 4 * i + d}, v{192 + 4 * i + d}")
            for st_ in (2, 1):
                for i in range(st_):
                    for d in range(4): p(f"v_add_f32 v{64 + 4 * i + d}, v{64 + 4 * i + d}, v{64 + 4 * (i + st_) + d}")
            p("v_mov_b32 v96, v208")
        if t in (3, 4, 5): W3.h_mix(self, p, c, t + 8)

class W2C(W2):
    h_steps = (1, 2, 3, 4, 5)
    def h_late(self, a, c):
        if c.opt.get('cs3at') != 'late': return 0
        t = Atoms(); n = cs3_loads(t, c, S_MT2, S_NT2); a.atom("\n".join(t.L)); return n
    def h_mix(self, p, c, t):
        if 1 <= t <= 5: W3.h_mix(self, p, c, t)
    def h_extra(self, p, c, t):
        if t == 5:
            cs3_store(p, c, S_MT2, S_NT2); return 1
        return 0
class W3F(W3E):
    def poll(self, c): return poll_flags(c, F_W2, S_MT3, col_sgpr=S_NT3)

class W3G(W3F):
    h_steps = tuple(range(1, 14))
    def h_late(self, a, c): return 0
    def h_extra(self, p, c, t):
        W = f"s[{S_WS}:{S_WS+3}]"
        ho = c.opt.get('hoflag', '')
        n = W3.h_extra(self, p, c, t) if (1 <= t <= 8 and t != 5) else 0
        if t == 5:
            p(f"buffer_load_dwordx4 {vr(64 + 4 * (t - 1), 4)}, v63, {W}, s50 offen {ho}\ns_add_u32 s50, s50, 16384"); n = 1
        if 8 <= t <= 11:
            p(f"buffer_load_dwordx4 {vr(160 + 4 * (t - 8), 4)}, v62, {W}, s53 offen {ho}\ns_add_u32 s53, s53, 4096"); n += 1
        return n
    def h_mix(self, p, c, t):
        if t >= 10: W3.h_mix(self, p, c, t)

class W3W(W3E):
    h_steps = (13,)
    pubv = 28
    def poll(self, c): return poll_flags(c, F_W2, S_MT3)
    def h_late(self, a, c): return 0
    def g_sites(self, c):
        return {2: lambda p: publish(p, c, F_CS, False, 28)} if c.opt.get('persist') else {}
    def h_poll(self, c, t): return poll_flags(c, F_CS, S_NT3) if t == 13 else None
    def w_indep(self, p, c): cs3_loads(p, c)
    def w_dep(self, p, c):
        for t in range(1, 9): W3G.h_extra(self, p, c, t) if t < 8 else W3.h_extra(self, p, c, t)
    def w_math(self, p, c):
        cs3_math(p, c)
        for t in (10, 11, 12): W3.h_mix(self, p, c, t)
    def w_fin(self, p, c):
        p("""
        ds_write_b32 v57, v64
        ds_write_b32 v57, v65 offset:512
        s_mov_b32 exec_hi, 0
        ds_write_b32 v58, v96 offset:1024
        s_mov_b32 exec_hi, -1
        s_waitcnt lgkmcnt(0)
        """)
    def h_pre(self, p, c, t):
        if t == 14:
            p(f"""
            v_and_b32 v60, 15, v0
            v_lshrrev_b32 v61, 4, v0
            v_lshlrev_b32 v60, 4, v60
            v_lshl_add_u32 v62, v61, 10, v60
            s_lshl_b32 s4, s{S_WM}, 8
            s_lshl_b32 s53, s{S_NT3}, 14
            s_add_u32 s53, s53, s4
            s_add_u32 s53, s53, {WS_CSP}
            """)
    def h_extra(self, p, c, t): return W3.h_extra(self, p, c, 11) if t == 14 else 0
    def h_mix(self, p, c, t):
        if t == 15: W3.h_mix(self, p, c, 13)
    def h_post(self, p, c, t):
        if t == 15: p("ds_write_b32 v56, v160\ns_waitcnt lgkmcnt(0)")

class W2D(W2):
    def w_l2(self, p, c):
        if not c.opt.get('l2w2', 0): return
        p(f"""
        s_and_b32 s3, s{S_MT2}, 3
        s_lshl_b32 s3, s3, 14
        s_add_u32 s3, s3, {2 * self.stepB}
        s_mov_b32 m0, {L_DUMMY}
        """)
        for i in range(6): p(f"buffer_load_dwordx4 v40, s[{S_B}:{S_B+3}], s3 offen lds\ns_add_u32 s3, s3, {self.stepB}")
    def w_last(self, p, c):
        if c.opt.get('xtag', 0) == 1:
            p(xch_off(c, f"s_mov_b32 s4, s{S_NT2}", S_WID, 3))
            for r in range(4): p(f"v_mov_b32 v{20 + r}, -1")
            for m in range(4): p(f"buffer_store_dwordx4 v[20:23], v1, s[{S_WS}:{S_WS+3}], s3 offen offset:{m * 1024} {c.opt.get('stflag', '')}")
        return cs3_loads(p, c, S_MT2, S_NT2, 176) + (4 if c.opt.get('xtag', 0) == 1 else 0)
    def g_epi(self, p, c):
        p(f"""
        v_and_b32 v8, 15, v0
        v_and_b32 v9, 1, v0
        v_lshlrev_b32 v9, 4, v9
        v_mov_b32 v10, 0x3f80
        v_lshlrev_b32 v9, v9, v10
        v_lshrrev_b32 v8, 1, v8
        """)
        for r in range(4): p(f"v_cmp_eq_u32 vcc, {r}, v8\nv_cndmask_b32 v{12 + r}, 0, v9, vcc")
        for i in range(8): p(mfma16(16, 12, 176 + 4 * i, "0" if i == 0 else None))
        W2.g_epi(self, p, c)
        for r in range(4): p(f"v_add_f32_dpp v{16 + r}, v{16 + r}, v{16 + r} row_ror:8 row_mask:0xf bank_mask:0xf")
        p(f"""
        v_and_b32 v8, 7, v0
        v_lshrrev_b32 v9, 4, v0
        v_lshlrev_b32 v8, 5, v8
        v_lshl_add_u32 v8, v9, 4, v8
        s_lshl_b32 s3, s{S_NT2}, 4
        s_add_u32 s3, s3, s{S_MT2}
        s_lshl_b32 s3, s3, 2
        s_add_u32 s3, s3, s{S_WID}
        s_lshl_b32 s3, s3, 8
        s_add_u32 s3, s3, {WS_CSP}
        s_mov_b32 exec_lo, 0x00ff00ff
        s_mov_b32 exec_hi, 0
        buffer_store_dwordx4 v[16:19], v8, s[{S_WS}:{S_WS+3}], s3 offen {c.opt.get('stflag', '')}
        s_mov_b64 exec, -1
        """)

class W3X(W3F):
    h_steps = ()
    quiet = True
    def h_late(self, a, c): return 0
    def h_mix(self, p, c, t): pass
    def h_post(self, p, c, t): pass
    def w_indep(self, p, c): pass
    def w_dep(self, p, c):
        for t in range(1, 12): W3G.h_extra(self, p, c, t)
    def w_math(self, p, c):
        for t in (10, 11, 12, 13): W3.h_mix(self, p, c, t)
    def w_fin(self, p, c): W3.h_post(self, p, c, 15)
    def h_extra(self, p, c, t):
        if c.opt.get('xtag') == 2 and t == c.opt.get('xtagt', 0):
            p(xch_off(c, f"s_mov_b32 s4, s{S_NT2}", S_WM, 3))
            for r in range(4): p(f"v_mov_b32 v{132 + r}, -1")
            for m in range(4): p(f"buffer_store_dwordx4 v[132:135], v1, s[{S_WS}:{S_WS+3}], s3 offen offset:{m * 1024} {c.opt.get('stflag', '')}")
            return 4
        return 0
    def h_every(self, p, c, t):
        if not c.opt.get('spf4'): return
        if t == (self.host.hsteps - 1 if self.host else 0):
            p(f"""
            s_lshl_b32 s3, s2, 2
            s_add_u32 s3, s3, s{S_WM}
            s_mul_i32 s3, s3, {(14 - (self.host.hsteps if self.host else 0)) * 512}
            s_add_u32 s94, s{ptr('w4')}, s3
            s_addc_u32 s95, s{ptr('w4')+1}, 0
            """)
        if (t is None or t <= 13) and not self.in_host:
            for i in range(8):
                p.I.append(Inst("s_nop 0")); p.I[-1].text = f"s_load_dword s98, s[94:95], {i * 64}"
            p("s_add_u32 s94, s94, 512\ns_addc_u32 s95, s95, 0")
        if t == 15: p("s_waitcnt lgkmcnt(0)")

class W4T(W4):
    pubkind = None
    def h_poll(self, c, t):
        P = W4.h_poll(self, c, t)
        if P and c.opt.get('xtag') == 2:
            P.addr += f"""
            s_xor_b32 s3, s{S_NT3}, 8
            s_lshl_b32 s4, s{S_MT3}, 4
            s_add_u32 s3, s3, s4
            s_lshl_b32 s3, s3, 7
            v_add_u32 v136, {(F_ATT - F_W3) * 32768}, v136
            v_mov_b32 v138, s3
            v_cmp_gt_u32 vcc, 32, v0
            v_cndmask_b32 v136, v138, v136, vcc
            s_mov_b32 s{S_POLL}, {WS_FLAG + F_W3 * 32768}
            """
        return P
class WOT(WO):
    def h_poll(self, c, t): return None
    def h_pre(self, p, c, t): pass
    def h_extra(self, p, c, t): return 0
    def h_epi(self, p, c): pass
    def xloads(self, c):
        return [f"buffer_load_dwordx4 {vr(160 + 4 * m, 4)}, v1, s[{S_WS}:{S_WS+3}], s49 offen offset:{m * 1024} sc1" for m in range(4)]
    def g_sites(self, c):
        def f(p):
            p(xch_off(c, f"s_xor_b32 s4, s{S_NT2}, 1", S_WID, 49))
            p.add(self.xloads(c))
        self.xf_ = f
        return {c.opt.get('xat', 1): f} if c.opt.get('xat', 1) else {}
    def early(self, p, c):
        p(f"v_and_b32 v{T0}, 15, v0")
        WO.g_pre(self, p, c, 2)
    def g_pre(self, p, c):
        if not c.opt.get('xat', 1):
            self.g_sites(c); self.xf_(p)
    ogv = 2
    def xwait(self, p, c):
        L = c.lab("xw"); E = c.lab("xwe")
        p(f"s_mov_b32 s5, {c.opt.get('spinmax', 100000)}")
        p.label(L)
        p("v_max3_u32 v50, v160, v161, v162")
        for i in range(163, 175, 2): p(f"v_max3_u32 v50, v50, v{i}, v{i + 1}")
        p(f"""
        v_max_u32 v50, v50, v175
        v_cmp_eq_u32 vcc, -1, v50
        s_cbranch_vccz {E}
        s_sub_u32 s5, s5, 1
        s_cmp_eq_u32 s5, 0
        s_cbranch_scc1 {E}
        s_sleep 2
        """)
        p.add(self.xloads(c))
        p(f"s_waitcnt vmcnt(0)\ns_branch {L}")
        p.label(E)
```

```python
from mk import *
from attn import *
from g2 import *
from attn2 import *
from w4q import *
PF3 = ([('w2', 0, 2), ('w3', 0, 4)], [('w3', 4, 3), ('w4', 0, 1), ('w4', 3, 2)], [('w4', 1, 2), ('w4', 5, 2), ('wo', 0, 2)])
def P1(): return [[G1, Attn(0, (8, 12), True, pf=PF3[0]), W2, Attn(20, (8, 12), pf=PF3[1]), W3, Attn(40, (12, 12), pf=PF3[2]), W4(4), WO(4, True, 1)]]
def P2(Q=QKVG): return [[Q, W1, Attn(0, (8, 12), pf=PF3[0]), W2, Attn(20, (8, 12), pf=PF3[1]), W3, Attn(40, (12, 12), pf=PF3[2]), W4(4), WO(4, True, 1)]]
def P3(): return [[W1F, QKV2, W2X, Attn(0, (8, 12, 12), defer1=False, pf=[('w3', 0, 7), ('w4', 0, 1)]), W3,
                   Attn(32, (12, 8, 12), pf=[('w4', 3, 2), ('w4', 1, 2), ('w4', 5, 2), ('wo', 0, 2)]), W4(4), WO(4, True, 1)]]
def P4(G=G2, pf0=[('w3', 0, 4)], wo=(4, True, 1)): return [[G, Attn(0, (8, 12), local=True, pf=pf0), W2, Attn(20, (8, 12), pf=PF3[1]), W3, Attn(40, (12, 12), pf=PF3[2]), W4(wo[0]), WO(*wo)]]
def P5(): return [[G2, AttnH(0, (8, 12), local=True, pf=[('w3', 0, 4)]), W2, AttnH(20, (8, 12), pf=PF3[1]), W3, AttnH(40, (12, 12), pf=PF3[2]), W4(4), WO(4, True, 1)]]
PF4 = ([('w3', 0, 4)], [('w3', 4, 3), ('w4', 0, 3)], [('w4', 3, 4), ('wo', 0, 2)])
def P6(xw=1, xbar=True, ps=2, lead=1): return [[G2, Attn(0, (8, 12), local=True, pf=PF4[0]), W2, Attn(20, (8, 12), pf=PF4[1]), W3, Attn(40, (12, 12), pf=PF4[2]), W4Q(xw), WOQ(xw, xbar, ps, lead)]]
def P7(pf=([('w4', 0, 2)], [('w4', 2, 5)], [('wo', 0, 2)])): return [[G2, Attn(0, (8, 12), local=True, pf=pf[0]), W2, Attn(20, (8, 12), pf=pf[1]), W3E, Attn(40, (12, 12), pf=pf[2]), W4(4), WO(4, True, 1)]]
def P8(pf=([('w3', 0, 7)], [('w4', 0, 7)], [('wo', 0, 2)])): return [[G2, Attn(0, (8, 12), local=True, pf=pf[0]), W2C, Attn(20, (8, 12), pf=pf[1]), W3F, Attn(40, (12, 12), pf=pf[2]), W4(4), WO(4, True, 1)]]
def P9(xw=2, xbar=True, ps=1, lead=1, pf=([('w3', 0, 7)], [('w4', 0, 7)], [('wo', 0, 2)])): return [[G2, Attn(0, (8, 12), local=True, pf=pf[0]), W2C, Attn(20, (8, 12), pf=pf[1]), W3F, Attn(40, (12, 12), pf=pf[2]), W4Q(xw), WOQ(xw, xbar, ps, lead)]]
def PH(w=((8, 8), (8, 8), (8, 8)), h2=8, h4=8, pf=([('w4', 0, 3)], [('w4', 3, 4)], [('wo', 0, 2)])):
    b1 = sum(w[0]) + h2; b2 = b1 + sum(w[1])
    assert b2 + sum(w[2]) + h4 == 64
    return [[G2, AttnW(0, w[0], local=True, pf=pf[0], hosted=h2), W2, AttnW(b1, w[1], pf=pf[1], cont_in=h2 > 0), W3G,
             AttnW(b2, w[2], pf=pf[2], hosted=h4), W4(4), WO(4, True, 1)]]
def PW(w=((8, 8), (8, 8), (8, 8)), h2=8, h4=8, pf=([('w3', 2, 2)], [], [('w4', 1, 2), ('w4', 5, 2)]), pf2=([], [('w4', 0, 1), ('w4', 3, 2)], [('wo', 0, 2)])):
    b1 = sum(w[0]) + h2; b2 = b1 + sum(w[1])
    assert b2 + sum(w[2]) + h4 == 64
    return [[G2, AttnW(0, w[0], local=True, pf=pf[0], pf2=pf2[0], hosted=h2), W2, AttnW(b1, w[1], pf=pf[1], pf2=pf2[1], cont_in=h2 > 0), W3W,
             AttnW(b2, w[2], pf=pf[2], pf2=pf2[2], hosted=h4), W4(4), WO(4, True, 1)]]
def PX(w=((8, 8), (8, 8), (8, 8)), h2=8, h4=8, h3=0, pf=([], [('w4', 0, 5)], []), pf2=([], [('w4', 5, 2)], [('wo', 0, 2)]), xbar=False, tag=True, xw=5):
    b1 = sum(w[0]) + h2; b2 = b1 + sum(w[1]) + h3
    assert b2 + sum(w[2]) + h4 == 64
    return [[G2, AttnW(0, w[0], local=True, pf=pf[0], pf2=pf2[0], hosted=h2), W2D, AttnW(b1, w[1], pf=pf[1], pf2=pf2[1], cont_in=h2 > 0, hosted=h3), W3X,
             AttnW(b2, w[2], pf=pf[2], pf2=pf2[2], hosted=h4, cont_in=h3 > 0), (W4T if tag else W4)(xw), (WOT if tag else WO)(xw, xbar, 1)]]
P = PX
base = dict(stflag='sc1', hoflag='sc1', persist=1, spinsleep=4, xbf=1, g1pub=1, gfirst=1, xtag=2, xtagt=14, csat=1, cpfat=5, pollfirst=(0, 1, 1), scoop4=1, outflag='nt', spf=(8, 6), g2pf=[('w2', 2 * MB, 0, 2)])
base5 = dict(base, hslate=1, g1pub=1)
if __name__ == "__main__":
    make("p4a.s", P(), dict(base, stamp=1))
    make("p4b.s", P(), dict(base, hstamp=1))
    make("p4f.s", P(), dict(base, final=1))
    make("p4s.s", P(), dict(base, sstamp=1))
    make("p4m.s", P(), dict(base, stamp=1, fine=1))
    make("p4c.s", P(), dict(base, spincnt=1))
```
